```python
import torch

def _softmax(x, axis=-1):
    return torch.softmax(x, dim=axis)

def _gelu(x):
    return torch.nn.functional.gelu(x, approximate='tanh')

def _silu(x):
    return torch.nn.functional.silu(x)

def _sigmoid(x):
    return torch.sigmoid(x)

def _layernorm(x, axis=-1, eps=1e-05):
    m = x.mean(dim=axis, keepdim=True)
    v = x.var(dim=axis, keepdim=True, unbiased=False)
    return (x - m) / torch.sqrt(v + eps)

def _scatter_add(tgt, idx, src, axis=0):
    return tgt.clone().index_add_(axis, idx, src)

def _segment_sum(src, seg, n):
    out = torch.zeros((n,) + src.shape[1:], dtype=src.dtype)
    return out.index_add_(0, seg, src)

def _pad(x, pw):
    flat = tuple((v for pair in reversed(pw) for v in pair))
    return torch.nn.functional.pad(x, flat)
kernel_name = 'adaLN_cond__spectral_fnet__mixer_gmlp__prompt'

def setup_inputs():

    _w = lambda a: (lambda t: t.to(torch.bfloat16) if t.is_floating_point() else t)(torch.as_tensor(a))

    def _A_setup():
        B, S, D = (1, 2048, 512)
        ns = torch.arange(S)[:, None] * torch.arange(S)[None, :]
        nd = torch.arange(D)[:, None] * torch.arange(D)[None, :]
        Ws_re = torch.cos(-2.0 * torch.pi * ns / S).to(float)
        Ws_im = torch.sin(-2.0 * torch.pi * ns / S).to(float)
        Wd_re = torch.cos(-2.0 * torch.pi * nd / D).to(float)
        Wd_im = torch.sin(-2.0 * torch.pi * nd / D).to(float)
        return {'x': _w((lambda *s: torch.randn(*s, dtype=torch.bfloat16) * 0.05)(B, S, D)), 'dft_seq_re': _w(Ws_re), 'dft_seq_im': _w(Ws_im), 'dft_hid_re': _w(Wd_re), 'dft_hid_im': _w(Wd_im)}
    _A_in = _A_setup()

    def _B_setup():
        B, S, D, F = (1, 2048, 512, 1792)
        Fh = F // 2
        return {'x': _w((lambda *s: torch.randn(*s, dtype=torch.bfloat16) * 0.05)(B, S, D)), 'w_in': _w((lambda *s: torch.randn(*s, dtype=torch.bfloat16) * 3.2)(D, 2 * Fh)), 'w_sp': _w(0.01 * (lambda *s: torch.randn(*s, dtype=torch.bfloat16) * 3.2)(S, S)), 'b_sp': _w(1.0 + 0.01 * (lambda *s: torch.randn(*s, dtype=torch.bfloat16) * 1.6)(S)), 'w_out': _w((lambda *s: torch.randn(*s, dtype=torch.bfloat16) * 1.6)(Fh, D))}
    _B_in = _B_setup()
    return {'A_x': _A_in['x'], 'A_dft_seq_re': _A_in['dft_seq_re'], 'A_dft_seq_im': _A_in['dft_seq_im'], 'A_dft_hid_re': _A_in['dft_hid_re'], 'A_dft_hid_im': _A_in['dft_hid_im'], 'B_x': _B_in['x'], 'B_w_in': _B_in['w_in'], 'B_w_sp': _B_in['w_sp'], 'B_b_sp': _B_in['b_sp'], 'B_w_out': _B_in['w_out'], 'c': _w((lambda *s: torch.randn(*s, dtype=torch.bfloat16) * 0.1)(1, 512) * 8.0), 'w_mod': _w((lambda *s: torch.randn(*s, dtype=torch.bfloat16) * 0.1)(512, 6 * 512) * 512 ** (-0.5) * 8.0)}

def reference(A_x, A_dft_seq_re, A_dft_seq_im, A_dft_hid_re, A_dft_hid_im, B_x, B_w_in, B_w_sp, B_b_sp, B_w_out, c, w_mod):

    def _A_ref(x, dft_seq_re, dft_seq_im, dft_hid_re, dft_hid_im):
        a = torch.einsum('bsd,ed->bse', x, dft_hid_re)
        b = torch.einsum('bsd,ed->bse', x, dft_hid_im)
        y = torch.einsum('ts,bse->bte', dft_seq_re, a) - torch.einsum('ts,bse->bte', dft_seq_im, b)
        return y

    def _B_ref(x, w_in, w_sp, b_sp, w_out):
        B, S, D = x.shape
        F = w_in.shape[-1]
        Fh = F // 2
        z = _gelu(torch.einsum('bsd,df->bsf', x, w_in))
        z1 = z[..., :Fh].clone()
        z2 = _layernorm(z[..., Fh:], axis=-1)
        g = torch.einsum('ts,bsf->btf', w_sp, z2) + b_sp[None, :, None]
        return torch.einsum('bsf,fd->bsd', z1 * g, w_out)
    x = A_x
    mod = (_silu(c) @ w_mod).reshape(c.shape[0], 6, 1, -1)
    sa, ca, ga, sb, cb, gb = (mod[:, 0].clone(), mod[:, 1].clone(), mod[:, 2].clone(), mod[:, 3].clone(), mod[:, 4].clone(), mod[:, 5].clone())
    h = _layernorm(x, axis=-1) * (1 + ca) + sa
    x = x + ga * _A_ref(h, A_dft_seq_re, A_dft_seq_im, A_dft_hid_re, A_dft_hid_im)
    h = _layernorm(x, axis=-1) * (1 + cb) + sb
    x = x + gb * _B_ref(h, B_w_in, B_w_sp, B_b_sp, B_w_out)
    return x
```

```python
import re

def v(n, c=1): return f"v{n}" if c == 1 else f"v[{n}:{n+c-1}]"
def a(n, c=1): return f"a{n}" if c == 1 else f"a[{n}:{n+c-1}]"
def s(n, c=1): return f"s{n}" if c == 1 else f"s[{n}:{n+c-1}]"

_REG = re.compile(r"^(-|\|)?(abs\()?([vas])(\d+)\)?\|?$")
_RNG = re.compile(r"^(-)?([vas])\[(\d+):(\d+)\]$")

def regs_of(tok):
    tok = tok.strip()
    m = _RNG.match(tok)
    if m:
        return {(m.group(2), i) for i in range(int(m.group(3)), int(m.group(4)) + 1)}
    m = _REG.match(tok)
    if m:
        return {(m.group(3), int(m.group(4)))}
    if tok == "vcc": return {("s", "vcc_lo"), ("s", "vcc_hi")}
    if tok in ("vcc_lo", "vcc_hi"): return {("s", tok)}
    if tok == "exec": return {("s", "exec_lo"), ("s", "exec_hi")}
    if tok in ("exec_lo", "exec_hi"): return {("s", tok)}
    if tok == "m0": return {("s", "m0")}
    return set()

TRANS = ("v_exp_f32", "v_log_f32", "v_rcp_f32", "v_rsq_f32", "v_sqrt_f32", "v_sin_f32", "v_cos_f32", "v_rcp_iflag_f32")

class Ins:
    __slots__ = ("text", "op", "ops", "mods", "kind", "wr", "rd", "srcA", "srcB", "srcC", "passes", "ws", "dpp", "sdata")
    def __init__(self, text):
        self.text = text
        t = text.split(";")[0].strip()
        parts = t.split(None, 1)
        self.op = parts[0]
        rest = parts[1] if len(parts) > 1 else ""
        ops, cur, depth = [], "", 0
        for ch in rest:
            if ch in "[(": depth += 1
            if ch in "])": depth -= 1
            if ch == "," and depth == 0:
                ops.append(cur.strip()); cur = ""
            else: cur += ch
        if cur.strip(): ops.append(cur.strip())
        mods = ""
        if ops:
            last = ops[-1].split(None, 1)
            ops[-1] = last[0]
            mods = last[1] if len(last) > 1 else ""
        self.ops, self.mods = ops, mods
        self.wr, self.rd = set(), set()
        self.srcA = self.srcB = self.srcC = set()
        self.passes = 0; self.ws = 1; self.dpp = False; self.sdata = set()
        op = self.op
        R = regs_of
        if op == "s_nop":
            self.kind = "nop"; self.ws = int(ops[0], 0) + 1
        elif op.startswith("v_mfma"):
            self.kind = "mfma"
            self.wr = R(ops[0]); self.srcA = R(ops[1]); self.srcB = R(ops[2]); self.srcC = R(ops[3])
            self.rd = self.srcA | self.srcB | self.srcC
            self.passes = 8 if "32x32" in op else 4
        elif op.startswith("v_"):
            self.kind = "valu"
            self.dpp = ("_dpp" in op) or ("quad_perm" in mods) or ("row_" in mods)
            base = op.replace("_e32", "").replace("_e64", "").replace("_dpp", "").replace("_sdwa", "")
            if base.startswith("v_cmp"):
                self.wr = R(ops[0]); [self.rd.update(R(o)) for o in ops[1:]]
                if base.startswith("v_cmpx"): self.wr |= R("exec")
            elif base in ("v_readfirstlane_b32", "v_readlane_b32"):
                self.wr = R(ops[0]); [self.rd.update(R(o)) for o in ops[1:]]
            elif base.startswith("v_permlane") and "swap" in base:
                self.wr = R(ops[0]) | R(ops[1]); self.rd = set(self.wr)
            elif base in ("v_add_co_u32", "v_sub_co_u32", "v_subrev_co_u32", "v_addc_co_u32", "v_subb_co_u32", "v_div_scale_f32", "v_mad_u64_u32"):
                self.wr = R(ops[0]) | R(ops[1]); [self.rd.update(R(o)) for o in ops[2:]]
            else:
                self.wr = R(ops[0]); [self.rd.update(R(o)) for o in ops[1:]]
                if base.startswith(("v_fmac", "v_dot2c", "v_pk_fmac", "v_writelane", "v_mac")) or self.dpp or "_sdwa" in op or "op_sel" in mods and base.startswith("v_cvt"):
                    self.rd |= self.wr
                if base == "v_cndmask_b32" and len(ops) == 3: self.rd |= R("vcc")
        elif op.startswith("ds_"):
            self.kind = "ds"
            if op.startswith(("ds_read", "ds_bpermute", "ds_permute", "ds_swizzle")):
                self.wr = R(ops[0]); [self.rd.update(R(o)) for o in ops[1:]]
            else:
                [self.rd.update(R(o)) for o in ops]
        elif op.startswith(("buffer_", "global_", "flat_")):
            self.kind = "vmem"
            lds = (" lds" in " " + mods) or ("_lds_" in op)
            isload = "_load" in op and not lds
            if lds:
                [self.rd.update(R(o)) for o in ops]; self.rd |= R("m0"); self.kind = "vmem"
            elif isload:
                self.wr = R(ops[0]); [self.rd.update(R(o)) for o in ops[1:]]
            elif "atomic" in op:
                [self.rd.update(R(o)) for o in ops]
                if "sc0" in mods: self.wr = R(ops[0]) if op.startswith("buffer_") else R(ops[0])
            else:
                [self.rd.update(R(o)) for o in ops]
                if "x3" in op or "x4" in op:
                    self.sdata = R(ops[0]) if op.startswith("buffer_") else R(ops[1])
        elif op.startswith("s_"):
            self.kind = "salu"
            if op.startswith(("s_cmp", "s_cbranch", "s_branch", "s_waitcnt", "s_barrier", "s_endpgm", "s_sleep", "s_setprio", "s_bitcmp", "s_sethalt", "s_setreg", "s_set_gpr_idx")):
                [self.rd.update(R(o)) for o in ops]
            else:
                self.wr = R(ops[0]) if ops else set(); [self.rd.update(R(o)) for o in ops[1:]]
                if "saveexec" in op: self.wr |= R("exec"); self.rd |= R("exec")
            if op.startswith(("s_load", "s_buffer_load", "s_memtime", "s_memrealtime")): self.kind = "smem"
        else:
            raise ValueError("unknown instr: " + text)

def _vg(st): return {r for r in st if r[0] in "va"}
def _sg(st): return {r for r in st if r[0] == "s"}

def required(p, c):
    need = 0
    if p.kind == "valu":
        wv = _vg(p.wr); wsg = _sg(p.wr)
        if c.kind == "mfma" and wv & c.rd: need = max(need, 2)
        if c.kind == "mfma" and ("s", "exec_lo") in wsg: need = max(need, 4)
        if c.kind == "valu":
            cb = c.op
            if wv & c.rd:
                if c.dpp: need = max(need, 2)
                if cb.startswith("v_permlane"): need = max(need, 2)
                if cb.startswith(("v_readlane", "v_readfirstlane")): need = max(need, 1)
                if p.op.replace("_e32", "").replace("_e64", "") in TRANS: need = max(need, 1)
                if "_sdwa" in p.op or ("op_sel" in p.mods and not p.op.startswith("v_pk") and not p.op.startswith("v_fma_mix")): need = max(need, 1)
            if wsg & c.rd:
                need = max(need, 2)
                if cb.startswith(("v_readlane", "v_writelane")) and len(c.ops) > 2 and (wsg & regs_of(c.ops[2])): need = max(need, 4)
            if ("s", "exec_lo") in wsg:
                if c.dpp: need = max(need, 5)
                if cb.startswith(("v_readlane", "v_readfirstlane", "v_writelane", "v_permlane")): need = max(need, 4)
        if c.kind in ("vmem", "ds"):
            if c.kind == "vmem" and wsg & c.rd: need = max(need, 5)
            if p.op.replace("_e32", "").replace("_e64", "") in TRANS and wv & c.rd: need = max(need, 1)
    if p.kind == "valu" and p.op.startswith("v_dot"):
        wv = _vg(p.wr)
        if c.op.split("_e")[0] == p.op.split("_e")[0]:
            srcs = set()
            for o in c.ops[1:3]: srcs |= regs_of(o)
            if wv & srcs: need = max(need, 3)
        elif wv & (c.rd | c.wr): need = max(need, 3)
    if p.kind == "salu":
        if ("s", "m0") in p.wr and ("s", "m0") in c.rd and c.kind in ("vmem", "ds"): need = max(need, 1)
    if p.kind == "vmem" and p.sdata:
        if c.kind == "valu" and (p.sdata & c.wr): need = max(need, 2)
        elif (p.sdata & c.wr): need = max(need, 1)
    if p.kind == "mfma":
        P = p.passes
        raw = {4: 8, 8: 12}[P]
        if c.kind == "mfma":
            if p.wr & c.srcC:
                if p.wr == c.srcC and p.passes == c.passes: pass
                else: need = max(need, {4: 6, 8: 10}[P])
            if p.wr & (c.srcA | c.srcB): need = max(need, raw)
            if (p.wr & c.wr) and not (p.wr & c.srcC): need = max(need, raw)
        else:
            if p.wr & (c.rd | c.wr): need = max(need, raw)
            if c.kind == "valu" and (p.srcC & c.wr): need = max(need, {4: 3, 8: 7}[P])
    return need

WINDOW = 24

class Asm:
    def __init__(self):
        self.items = []
        self.uid = 0
    def __call__(self, text):
        for line in text.split("\n"):
            line = line.strip()
            if not line or line.startswith(";"):
                if line: self.items.append(("t", "    " + line))
                continue
            if line.endswith(":"): self.items.append(("l", line[:-1])); continue
            if line.startswith("."): self.items.append(("t", line)); continue
            self.items.append(("i", Ins(line)))
    def raw(self, text): self.items.append(("t", text))
    def label(self, name): self.items.append(("l", name))
    def newlabel(self, base="L"):
        self.uid += 1; return f"{base}_{self.uid}"
    def barrier_state(self):
        self.items.append(("x", None))

    def finalize(self):
        out = []
        hist = []
        nnop = 0
        for kind, it in self.items:
            if kind == "x": hist = []; continue
            if kind != "i": out.append((kind, it)); continue
            dist = 0; need = 0
            for p in reversed(hist):
                r = required(p, it)
                if r - dist > need: need = r - dist
                dist += p.ws
                if dist >= WINDOW: break
            if need > 0:
                while need > 0:
                    n = min(need, 16)
                    nop = Ins(f"s_nop {n-1}"); out.append(("i", nop)); hist.append(nop); need -= n; nnop += 1
            out.append(("i", it)); hist.append(it)
            if it.op in ("s_endpgm", "s_branch"): hist = []
            if len(hist) > 64: hist = hist[-48:]
        labels = {}
        for idx, (kind, it) in enumerate(out):
            if kind == "l": labels[it] = idx
        errs = []
        for idx, (kind, it) in enumerate(out):
            if kind == "i" and (it.op.startswith("s_cbranch") or it.op == "s_branch"):
                tgt = it.ops[0]
                if tgt not in labels: errs.append(f"unknown label {tgt}"); continue
                prev = []; d = 0; j = idx
                while j >= 0 and d < WINDOW:
                    k2, i2 = out[j]
                    if k2 == "i":
                        if i2.op in ("s_endpgm",) or (i2.op == "s_branch" and j != idx): break
                        prev.append(i2); d += i2.ws
                    j -= 1
                prev.reverse()
                j = labels[tgt]; d = 0; seq = list(prev)
                while j < len(out) and d < WINDOW:
                    k2, i2 = out[j]
                    if k2 == "i":
                        dist = 0
                        for p in reversed(seq):
                            r = required(p, i2)
                            if r > dist and p in prev:
                                errs.append(f"hazard across branch {it.text} -> {tgt}: '{p.text}' -> '{i2.text}' needs {r} has {dist}")
                            dist += p.ws
                            if dist >= WINDOW: break
                        seq.append(i2); d += i2.ws
                        if i2.op in ("s_endpgm", "s_branch"): break
                    j += 1
        if errs:
            raise RuntimeError("\n".join(errs))
        lines = []
        for kind, it in out:
            if kind == "i": lines.append("    " + it.text)
            elif kind == "l": lines.append(it + ":")
            else: lines.append(it)
        self.nnop = nnop
        return "\n".join(lines) + "\n"

class RegAlloc:
    def __init__(self, start=0, limit=256): self.next = start; self.limit = limit; self.hi = start
    def alloc(self, n=1, align=1):
        if n >= 2 and align == 1: align = 2
        if n >= 4 and align < 4 and n % 4 == 0: align = 4 if n >= 4 else align
        b = (self.next + align - 1) // align * align
        self.next = b + n
        self.hi = max(self.hi, self.next)
        assert self.next <= self.limit, f"out of registers: {self.next} > {self.limit}"
        return b
    def mark(self): return self.next
    def release(self, m): self.next = m

def kernel_header(name):
    return f""".globl {name}
.p2align 8
.type {name},@function
{name}:"""

def kernel_desc(name, vgpr, sgpr=96, accum=None):
    if accum is None: accum = (vgpr + 3) // 4 * 4
    return f""".amdhsa_kernel {name}
  .amdhsa_next_free_vgpr {vgpr}
  .amdhsa_next_free_sgpr {sgpr}
  .amdhsa_accum_offset {accum}
  .amdhsa_group_segment_fixed_size 0
  .amdhsa_kernarg_size 120
  .amdhsa_user_sgpr_count 2
  .amdhsa_user_sgpr_kernarg_segment_ptr 1
  .amdhsa_system_sgpr_workgroup_id_x 1
  .amdhsa_float_denorm_mode_32 3
.end_amdhsa_kernel"""
```

```python
from asmgen import *
S, D, FH = 2048, 512, 896
KA = dict(x=0, sre=8, sim=16, hre=24, him=32, bx=40, win=48, wsp=56, bsp=64, wout=72, c=80, wmod=88, out=96, dbg=104, ws=112)
MB = 1 << 20
WS_MOD = 0
WS_STAT = 0x10000
WS_T = 4 * MB
WS_X1 = 8 * MB
WS_H2 = 12 * MB
WS_Z1 = 16 * MB
WS_Z2T = 20 * MB
WS_P0 = 24 * MB
WS_P1 = 28 * MB

def load_ptr(A, sreg, name):
    A(f"s_load_dwordx2 {s(sreg,2)}, s[0:1], {KA[name]}")

def make_srd(A, sd, sp, nbytes, off=None, off_s=None):
    if off is None and off_s is None:
        A(f"s_mov_b32 {s(sd)}, {s(sp)}")
        A(f"s_and_b32 {s(sd+1)}, {s(sp+1)}, 0xffff")
    else:
        first = True
        if off is not None:
            A(f"s_add_u32 {s(sd)}, {s(sp)}, {off}")
            A(f"s_addc_u32 {s(sd+1)}, {s(sp+1)}, 0")
            first = False
        if off_s is not None:
            src = sp if first else sd
            A(f"s_add_u32 {s(sd)}, {s(src)}, {s(off_s)}")
            A(f"s_addc_u32 {s(sd+1)}, {s(src+1)}, 0")
        A(f"s_and_b32 {s(sd+1)}, {s(sd+1)}, 0xffff")
    A(f"s_mov_b32 {s(sd+2)}, {nbytes}")
    A(f"s_mov_b32 {s(sd+3)}, 0x20000")

WS_STAMP = 64 * MB
class Stamps:
    def __init__(self, A, base=70, on=True): self.A = A; self.base = base; self.n = 0; self.on = on
    def stamp(self):
        if not self.on: return
        self.A(f"s_memrealtime {s(self.base + 2*self.n, 2)}"); self.n += 1
    def flush(self, ws_pair, vtmp, srd=88, slot=0):
        if not self.on: return
        A = self.A
        A("s_waitcnt lgkmcnt(0)")
        make_srd(A, srd, ws_pair, 1 << 20, off=WS_STAMP)
        A(f"s_lshl_b32 s3, s2, 8")
        A(f"s_add_u32 s3, s3, {slot*64}")
        A(f"v_mov_b32 {v(vtmp)}, s3")
        for k in range(self.n):
            A(f"v_mov_b32 {v(vtmp+2)}, {s(self.base+2*k)}")
            A(f"v_mov_b32 {v(vtmp+3)}, {s(self.base+2*k+1)}")
            A(f"buffer_store_dwordx2 {v(vtmp+2,2)}, {v(vtmp)}, {s(srd,4)}, 0 offen offset:{k*8}")
            A("s_nop 1")
```

```python
from common import *

def interleave(ms, rs, per=2, bg=None, bg_per=0):
    out = []; rs = list(rs)
    for m in ms:
        out.append(m)
        for _ in range(per):
            if rs: out.append(rs.pop(0))
        if bg is not None:
            for _ in range(bg_per):
                if bg: out.append(bg.pop(0))
    return out + rs

def consumer_pipeline(A, nst, reads, mfmas, bg=None, bg_per=0, hook=None, per=2):
    A("s_barrier")
    for r in reads(0, 0, 0): A(r)
    for st in range(nst):
        A("s_waitcnt lgkmcnt(0)")
        b = bg(st) if bg else None
        for x in interleave(mfmas(st, 0, 0), reads(st, 1, 1), per, b, bg_per): A(x)
        A("s_waitcnt lgkmcnt(0)")
        if st < nst - 1:
            A("s_barrier")
            for x in interleave(mfmas(st, 1, 1), reads(st + 1, 0, 0), per, b, bg_per): A(x)
        else:
            for x in interleave(mfmas(st, 1, 1), [], per, b, bg_per): A(x)
        if b:
            for x in b: A(x)
        if hook: hook(st)

def loader_pipeline(A, nst, ns, issue, count, tail=None):
    for st in range(min(ns, nst)): issue(st)
    issued = min(ns, nst)
    for i in range(nst):
        if i >= 2 or (i == 1 and False):
            pass
        out = sum(count(j) for j in range(i + 1, issued))
        assert out <= 63
        A(f"s_waitcnt vmcnt({out})")
        A("s_barrier")
        if i >= 1 and issued < nst:
            issue(issued); issued += 1
    if tail: tail()

import struct
def fhex(f): return "0x%08x" % struct.unpack("<I", struct.pack("<f", f))[0]
GELU_C1 = -2.0 * 0.7978845608028654 * 1.4426950408889634
GELU_C2 = GELU_C1 * 0.044715
def gelu4(xs, ts, vc2):
    o = []
    for x, t in zip(xs, ts): o.append(f"v_mul_f32 {v(t)}, {v(x)}, {v(x)}")
    for x, t in zip(xs, ts): o.append(f"v_fmaak_f32 {v(t)}, {v(t)}, {v(vc2)}, {fhex(GELU_C1)}")
    for x, t in zip(xs, ts): o.append(f"v_mul_f32 {v(t)}, {v(t)}, {v(x)}")
    for x, t in zip(xs, ts): o.append(f"v_exp_f32 {v(t)}, {v(t)}")
    for x, t in zip(xs, ts): o.append(f"v_add_f32 {v(t)}, 1.0, {v(t)}")
    for x, t in zip(xs, ts): o.append(f"v_rcp_f32 {v(t)}, {v(t)}")
    for x, t in zip(xs, ts): o.append(f"v_mul_f32 {v(x)}, {v(x)}, {v(t)}")
    return o

def div14(A, vq_, vr_, vsrc, vtmp):
    A(f"v_mul_u32_u24 {v(vq_)}, 4682, {v(vsrc)}")
    A(f"v_lshrrev_b32 {v(vq_)}, 16, {v(vq_)}")
    A(f"v_mul_u32_u24 {v(vtmp)}, 14, {v(vq_)}")
    A(f"v_sub_u32 {v(vr_)}, {v(vsrc)}, {v(vtmp)}")
assert all((c * 4682) >> 16 == c // 14 for c in range(1024))

def xor16_32_sum(A, regs, tmp):
    for r in regs:
        A(f"v_mov_b32 {v(tmp)}, {v(r)}")
        A(f"v_permlane16_swap_b32 {v(r)}, {v(tmp)}")
        A(f"v_add_f32 {v(r)}, {v(r)}, {v(tmp)}")
        A(f"v_mov_b32 {v(tmp)}, {v(r)}")
        A(f"v_permlane32_swap_b32 {v(r)}, {v(tmp)}")
        A(f"v_add_f32 {v(r)}, {v(r)}, {v(tmp)}")
```

```python
from common import *

NMOD = 48
def bf16_round(A, vd, vs, vt):
    A(f"v_cvt_pk_bf16_f32 {v(vt)}, {v(vs)}, {v(vs)}")
    A(f"v_lshlrev_b32 {v(vd)}, 16, {v(vt)}")

def gen_ka(A, name="ka_kernel", extra=None):
    NFFT = 256
    NWG = NFFT + NMOD
    A.barrier_state()
    A.raw(kernel_header(name))
    sW, sS2, sCB, sT0, sT1 = 20, 21, 22, 23, 24
    sCO = 26
    SRD_X, SRD_F, SRD_T = 36, 40, 44
    A(f"s_cmp_ge_u32 s2, {NWG}")
    A(f"s_cbranch_scc1 {name}_end")
    A(f"s_cmp_ge_u32 s2, {NFFT}")
    A(f"s_cbranch_scc1 {name}_mod")
    load_ptr(A, 4, "x"); load_ptr(A, 6, "sre"); load_ptr(A, 8, "sim"); load_ptr(A, 10, "ws")
    A("v_lshrrev_b32 v1, 6, v0")
    A("v_and_b32 v0, 63, v0")
    A(f"v_readfirstlane_b32 {s(sW)}, v1")
    A(f"s_and_b32 {s(sT0)}, s2, 7")
    A(f"s_lshl_b32 {s(sT0)}, {s(sT0)}, 2")
    A(f"s_lshr_b32 {s(sT1)}, s2, 3")
    A(f"s_and_b32 {s(sT1)}, {s(sT1)}, 3")
    A(f"s_add_u32 {s(sS2)}, {s(sT0)}, {s(sT1)}")
    A(f"s_lshr_b32 {s(sCB)}, s2, 5")
    for it in range(8):
        A(f"s_add_u32 {s(sT0)}, {s(sCB)}, {it}")
        A(f"s_and_b32 {s(sT0)}, {s(sT0)}, 7")
        A(f"s_lshl_b32 {s(sCO+it)}, {s(sT0)}, 7")
    R = RegAlloc(2)
    vr = R.alloc(); vc = R.alloc(); vq = R.alloc(); vi = R.alloc()
    voff = R.alloc(); vf = R.alloc(); vt0 = R.alloc(); vt1 = R.alloc(); vS = R.alloc(); vQ = R.alloc(); vones = R.alloc()
    xr = [R.alloc(4) for _ in range(8)]
    Ff = [[R.alloc(4) for _ in range(2)] for _ in range(2)]
    Af = [R.alloc(4) for _ in range(2)]
    acc = [R.alloc(4) for _ in range(2)]
    tmp = R.alloc(8, 4)
    A(f"v_lshrrev_b32 {v(vr)}, 3, v0")
    A(f"v_and_b32 {v(vc)}, 7, v0")
    A(f"v_lshrrev_b32 {v(vq)}, 4, v0")
    A(f"v_and_b32 {v(vi)}, 15, v0")
    A(f"s_lshl_b32 {s(sT0)}, {s(sW)}, 18")
    A(f"s_lshl_b32 {s(sT1)}, {s(sS2)}, 10")
    A(f"s_add_u32 {s(sT0)}, {s(sT0)}, {s(sT1)}")
    A(f"v_lshlrev_b32 {v(voff)}, 15, {v(vr)}")
    A(f"v_lshl_add_u32 {v(voff)}, {v(vc)}, 4, {v(voff)}")
    A(f"v_add_u32 {v(voff)}, {s(sT0)}, {v(voff)}")
    A(f"v_lshlrev_b32 {v(vf)}, 17, {v(vi)}")
    A(f"v_lshl_add_u32 {v(vf)}, {v(vq)}, 4, {v(vf)}")
    A("s_waitcnt lgkmcnt(0)")
    make_srd(A, SRD_X, 4, S * D * 2)
    for it in range(8):
        A(f"buffer_load_dwordx4 {v(xr[it],4)}, {v(voff)}, {s(SRD_X,4)}, {s(sCO+it)} offen")
    A(f"s_cmp_ge_u32 {s(sW)}, 4")
    A(f"s_cselect_b32 s6, s8, s6")
    A(f"s_cselect_b32 s7, s9, s7")
    make_srd(A, SRD_F, 6, S * S * 2)
    A(f"s_mov_b32 {s(sT1)}, {16*131072}")
    for nt in range(2):
        for ks in range(2):
            so = "0" if nt == 0 else s(sT1)
            A(f"buffer_load_dwordx4 {v(Ff[nt][ks],4)}, {v(vf)}, {s(SRD_F,4)}, {so} offen offset:{ks*64}")
    if extra: extra(A, R)
    make_srd(A, SRD_T, 10, 64 * 32 * 512 * 2, off=WS_T)
    A(f"v_mov_b32 {v(vS)}, 0")
    A(f"v_mov_b32 {v(vQ)}, 0")
    A(f"s_mov_b32 {s(sT0)}, 0x3f803f80")
    nextra = extra.nloads if extra else 0
    for it in range(8):
        A(f"s_waitcnt vmcnt({7 - it + 4 + nextra})")
        for j in range(4):
            A(f"v_dot2_f32_bf16 {v(vS)}, {v(xr[it]+j)}, {s(sT0)}, {v(vS)}")
            A(f"v_dot2_f32_bf16 {v(vQ)}, {v(xr[it]+j)}, {v(xr[it]+j)}, {v(vQ)}")
    for mode in ("quad_perm:[1,0,3,2]", "quad_perm:[2,3,0,1]", "row_half_mirror"):
        A(f"v_add_f32_dpp {v(vS)}, {v(vS)}, {v(vS)} {mode} row_mask:0xf bank_mask:0xf")
        A(f"v_add_f32_dpp {v(vQ)}, {v(vQ)}, {v(vQ)} {mode} row_mask:0xf bank_mask:0xf")
    A(f"v_mul_f32 {v(vS)}, {1.0/512}, {v(vS)}".replace(str(1.0/512), "0x3b000000"))
    A(f"v_mul_f32 {v(vQ)}, 0x3b000000, {v(vQ)}")
    A(f"v_fma_f32 {v(vQ)}, -{v(vS)}, {v(vS)}, {v(vQ)}")
    A(f"v_max_f32 {v(vQ)}, 0, {v(vQ)}")
    A(f"v_add_f32 {v(vQ)}, 0x3727c5ac, {v(vQ)}")
    A(f"v_rsq_f32 {v(vQ)}, {v(vQ)}")
    A(f"v_mul_f32 {v(vS)}, {v(vS)}, {v(vQ)}")
    A(f"v_sub_f32 {v(vS)}, 0, {v(vS)}")
    A(f"s_mov_b32 {s(sT0)}, 0xffff0000")
    for j in range(4):
        A(f"v_lshlrev_b32 {v(tmp+2*j)}, 16, {v(xr[0]+j)}")
        A(f"v_and_b32 {v(tmp+2*j+1)}, {s(sT0)}, {v(xr[0]+j)}")
    for j in range(8):
        A(f"v_fma_f32 {v(tmp+j)}, {v(tmp+j)}, {v(vQ)}, {v(vS)}")
    for j in range(4):
        A(f"v_cvt_pk_bf16_f32 {v(xr[1]+j)}, {v(tmp+2*j)}, {v(tmp+2*j+1)}")
    A(f"s_lshl_b32 {s(sT1)}, {s(sW)}, 10")
    A(f"v_lshlrev_b32 {v(vt0)}, 7, {v(vr)}")
    A(f"v_lshl_add_u32 {v(vt0)}, {v(vc)}, 4, {v(vt0)}")
    A(f"v_add_u32 {v(vt0)}, {s(sT1)}, {v(vt0)}")
    A(f"ds_write_b128 {v(vt0)}, {v(xr[1],4)}")
    A(f"v_lshrrev_b32 {v(vt1)}, 2, {v(vi)}")
    A(f"v_lshl_add_u32 {v(vt1)}, {v(vq)}, 3, {v(vt1)}")
    A(f"v_lshlrev_b32 {v(vt1)}, 7, {v(vt1)}")
    A(f"v_and_b32 {v(vt0)}, 3, {v(vi)}")
    A(f"v_lshl_add_u32 {v(vt1)}, {v(vt0)}, 3, {v(vt1)}")
    A(f"s_and_b32 {s(sT0)}, {s(sW)}, 3")
    A(f"s_lshl_b32 {s(sT1)}, {s(sT0)}, 5")
    A(f"v_add_u32 {v(vt1)}, {s(sT1)}, {v(vt1)}")
    A(f"s_waitcnt vmcnt({nextra})")
    A(f"v_cmp_eq_u32 vcc, 0, {v(vi)}")
    A(f"s_cmp_ge_u32 {s(sW)}, 4")
    A(f"s_cselect_b64 vcc, vcc, 0")
    A(f"v_mov_b32 {v(vt0)}, 0xbf803f80")
    for ks in range(2):
        for j in range(4):
            A(f"v_cndmask_b32 {v(Ff[0][ks]+j)}, {v(Ff[0][ks]+j)}, {v(vt0)}, vcc")
    A(f"s_lshr_b32 {s(sT0)}, {s(sW)}, 2")
    A(f"s_lshl_b32 {s(sT0)}, {s(sT0)}, 20")
    A(f"s_lshl_b32 {s(sCO)}, {s(sS2)}, 10")
    A(f"s_add_u32 {s(sT0)}, {s(sT0)}, {s(sCO)}")
    A(f"s_lshl_b32 {s(sCO)}, {s(sCB)}, 7")
    A(f"s_add_u32 {s(sT0)}, {s(sT0)}, {s(sCO)}")
    A(f"s_add_u32 {s(sT0)}, {s(sT0)}, {s(sT1)}")
    A(f"v_lshlrev_b32 {v(voff)}, 15, {v(vi)}")
    A(f"v_lshl_add_u32 {v(voff)}, {v(vq)}, 3, {v(voff)}")
    A(f"v_add_u32 {v(voff)}, {s(sT0)}, {v(voff)}")
    A("s_waitcnt lgkmcnt(0)")
    A("s_barrier")
    for ks in range(2):
        for p in range(2):
            A(f"ds_read_b64_tr_b16 {v(Af[ks]+2*p,2)}, {v(vt1)} offset:{ks*32*128 + p*4*128}")
    for nt in range(2):
        for r in range(4): A(f"v_mov_b32 {v(acc[nt]+r)}, 0")
    A("s_waitcnt lgkmcnt(0)")
    for ks in range(2):
        for nt in range(2):
            A(f"v_mfma_f32_16x16x32_bf16 {v(acc[nt],4)}, {v(Af[ks],4)}, {v(Ff[nt][ks],4)}, {v(acc[nt],4)}")
    A(f"s_mov_b32 {s(sT1)}, {16*32768}")
    for nt in range(2):
        A(f"v_cvt_pk_bf16_f32 {v(tmp+2*nt)}, {v(acc[nt])}, {v(acc[nt]+1)}")
        A(f"v_cvt_pk_bf16_f32 {v(tmp+2*nt+1)}, {v(acc[nt]+2)}, {v(acc[nt]+3)}")
        so = "0" if nt == 0 else s(sT1)
        A(f"buffer_store_dwordx2 {v(tmp+2*nt,2)}, {v(voff)}, {s(SRD_T,4)}, {so} offen")
    A("s_endpgm")
    nv = R.hi
    A.label(f"{name}_mod")
    SRD_W, SRD_C, SRD_M = 36, 40, 44
    load_ptr(A, 4, "wmod"); load_ptr(A, 6, "c"); load_ptr(A, 10, "ws")
    A("v_lshrrev_b32 v1, 6, v0")
    A("v_and_b32 v0, 63, v0")
    A(f"v_readfirstlane_b32 {s(sW)}, v1")
    A(f"s_sub_u32 {s(sCB)}, s2, {NFFT}")
    R = RegAlloc(2)
    vr = R.alloc(); vc = R.alloc(); voff = R.alloc(); vco = R.alloc(); vt0 = R.alloc(); vt1 = R.alloc()
    wr = [R.alloc(4) for _ in range(8)]
    cv = [R.alloc() for _ in range(8)]
    ac = R.alloc(8, 4)
    A(f"v_lshrrev_b32 {v(vr)}, 3, v0")
    A(f"v_and_b32 {v(vc)}, 7, v0")
    A(f"s_lshl_b32 {s(sT0)}, {s(sW)}, 6")
    A(f"v_add_u32 {v(vco)}, {s(sT0)}, {v(vr)}")
    A(f"v_mul_u32_u24 {v(voff)}, 6144, {v(vco)}")
    A(f"v_lshl_add_u32 {v(voff)}, {v(vc)}, 4, {v(voff)}")
    A(f"s_lshl_b32 {s(sT0)}, {s(sCB)}, 7")
    A(f"v_add_u32 {v(voff)}, {s(sT0)}, {v(voff)}")
    A(f"v_lshlrev_b32 {v(vco)}, 1, {v(vco)}")
    for it in range(8): A(f"s_mov_b32 {s(sCO+it)}, {it*8*6144}")
    A("s_waitcnt lgkmcnt(0)")
    make_srd(A, SRD_C, 6, 512 * 2)
    make_srd(A, SRD_W, 4, 512 * 3072 * 2)
    for it in range(8):
        A(f"buffer_load_ushort {v(cv[it])}, {v(vco)}, {s(SRD_C,4)}, 0 offen offset:{it*16}")
    for it in range(8):
        A(f"buffer_load_dwordx4 {v(wr[it],4)}, {v(voff)}, {s(SRD_W,4)}, {s(sCO+it)} offen")
    make_srd(A, SRD_M, 10, 3072 * 4, off=WS_MOD)
    A("s_waitcnt vmcnt(8)")
    for it in range(8):
        A(f"v_lshlrev_b32 {v(cv[it])}, 16, {v(cv[it])}")
        A(f"v_mul_f32 {v(vt0)}, 0xbfb8aa3b, {v(cv[it])}")
        A(f"v_exp_f32 {v(vt0)}, {v(vt0)}")
        A(f"v_add_f32 {v(vt0)}, 1.0, {v(vt0)}")
        A(f"v_rcp_f32 {v(vt0)}, {v(vt0)}")
        A(f"v_mul_f32 {v(cv[it])}, {v(cv[it])}, {v(vt0)}")
        bf16_round(A, cv[it], cv[it], vt0)
    for j in range(8): A(f"v_mov_b32 {v(ac+j)}, 0")
    A(f"s_mov_b32 {s(sT0)}, 0xffff0000")
    for it in range(8):
        A(f"s_waitcnt vmcnt({7-it})")
        for j in range(4):
            A(f"v_lshlrev_b32 {v(vt0)}, 16, {v(wr[it]+j)}")
            A(f"v_and_b32 {v(vt1)}, {s(sT0)}, {v(wr[it]+j)}")
            A(f"v_fmac_f32 {v(ac+2*j)}, {v(cv[it])}, {v(vt0)}")
            A(f"v_fmac_f32 {v(ac+2*j+1)}, {v(cv[it])}, {v(vt1)}")
    for j in range(8):
        A(f"v_add_f32_dpp {v(ac+j)}, {v(ac+j)}, {v(ac+j)} row_ror:8 row_mask:0xf bank_mask:0xf")
    A(f"v_lshrrev_b32 {v(vt0)}, 4, v0")
    A(f"s_lshl_b32 {s(sT0)}, {s(sW)}, 2")
    A(f"v_add_u32 {v(vt0)}, {s(sT0)}, {v(vt0)}")
    A(f"v_lshlrev_b32 {v(vt0)}, 8, {v(vt0)}")
    A(f"v_lshl_add_u32 {v(vt0)}, {v(vc)}, 5, {v(vt0)}")
    A(f"ds_write_b128 {v(vt0)}, {v(ac,4)}")
    A(f"ds_write_b128 {v(vt0)}, {v(ac+4,4)} offset:16")
    A("s_waitcnt lgkmcnt(0)")
    A("s_barrier")
    A(f"s_cmp_lg_u32 {s(sW)}, 0")
    A(f"s_cbranch_scc1 {name}_end")
    A(f"v_lshlrev_b32 {v(vt0)}, 2, v0")
    for p in range(32):
        A(f"ds_read_b32 {v(wr[0]+p)}, {v(vt0)} offset:{p*256}")
    A("s_waitcnt lgkmcnt(0)")
    for st in (16, 8, 4, 2, 1):
        for p in range(st):
            A(f"v_add_f32 {v(wr[0]+p)}, {v(wr[0]+p)}, {v(wr[0]+p+st)}")
    val = wr[0]
    bf16_round(A, val, val, vt1)
    A(f"s_lshr_b32 {s(sT0)}, {s(sCB)}, 3")
    A(f"s_cmp_eq_u32 {s(sT0)}, 1")
    A(f"s_cselect_b32 {s(sT1)}, 1.0, 0")
    A(f"s_cmp_eq_u32 {s(sT0)}, 4")
    A(f"s_cselect_b32 {s(sT1)}, 1.0, {s(sT1)}")
    A(f"v_add_f32 {v(val)}, {s(sT1)}, {v(val)}")
    bf16_round(A, val, val, vt1)
    A(f"s_lshl_b32 {s(sT0)}, {s(sCB)}, 8")
    A(f"buffer_store_dword {v(val)}, {v(vt0)}, {s(SRD_M,4)}, {s(sT0)} offen")
    A.label(f"{name}_end")
    A("s_endpgm")
    return dict(name=name, grid=NWG, block=512, lds=8192, vgpr=max(nv, R.hi), sgpr=64)
```

```python
from common import *

def wave_sum(A, vx, sdst):
    for mode in ("quad_perm:[1,0,3,2]", "quad_perm:[2,3,0,1]", "row_half_mirror", "row_mirror"):
        A(f"v_add_f32_dpp {v(vx)}, {v(vx)}, {v(vx)} {mode} row_mask:0xf bank_mask:0xf")
    A(f"v_add_f32_dpp {v(vx)}, {v(vx)}, {v(vx)} row_bcast:15 row_mask:0xa bank_mask:0xf")
    A(f"v_add_f32_dpp {v(vx)}, {v(vx)}, {v(vx)} row_bcast:31 row_mask:0xc bank_mask:0xf")
    A(f"v_readlane_b32 {s(sdst)}, {v(vx)}, 63")

def gen_kb(A, name="kb_kernel", extra=None):
    NWG = 264
    TS = 1056
    V_OFF = 64 * TS; VS = 80
    U_OFF = 0; US = 144
    Y_OFF = 16384; YS = 2064
    LDS = V_OFF + 128 * VS
    A.barrier_state()
    A.raw(kernel_header(name))
    sW, sC, sG, sT0, sT1, sT2, sRow, sMir = 20, 21, 22, 23, 24, 25, 26, 27
    SRD_T, SRD_RE, SRD_IM, SRD_M, SRD_X, SRD_X1, SRD_H2 = 32, 36, 40, 44, 48, 52, 56
    A(f"s_cmp_ge_u32 s2, {NWG}")
    A(f"s_cbranch_scc1 {name}_end")
    load_ptr(A, 4, "x"); load_ptr(A, 6, "sre"); load_ptr(A, 8, "sim"); load_ptr(A, 10, "ws")
    A("v_lshrrev_b32 v1, 6, v0")
    A("v_and_b32 v0, 63, v0")
    A(f"v_readfirstlane_b32 {s(sW)}, v1")
    A(f"s_and_b32 {s(sT0)}, s2, 7")
    A(f"s_lshr_b32 {s(sT1)}, s2, 3")
    A(f"s_and_b32 {s(sG)}, {s(sT1)}, 7")
    A(f"s_lshr_b32 {s(sT1)}, {s(sT1)}, 3")
    A(f"s_lshl_b32 {s(sT1)}, {s(sT1)}, 3")
    A(f"s_add_u32 {s(sC)}, {s(sT0)}, {s(sT1)}")
    A(f"s_cmp_ge_u32 s2, 256")
    A(f"s_cselect_b32 {s(sC)}, 32, {s(sC)}")
    A(f"s_cselect_b32 {s(sG)}, {s(sT0)}, {s(sG)}")
    R = RegAlloc(2)
    vq = R.alloc(); vi = R.alloc(); vl16 = R.alloc()
    vt = [R.alloc() for _ in range(6)]
    Rr = R.alloc(4); Ri = R.alloc(4); A0 = R.alloc(4); A1 = R.alloc(4)
    F1 = [R.alloc(4) for _ in range(2)]; F2 = [R.alloc(4) for _ in range(2)]
    twc = [[R.alloc() for _ in range(2)] for _ in range(2)]; tws = [[R.alloc() for _ in range(2)] for _ in range(2)]
    opca = [R.alloc() for _ in range(4)]; sav = [R.alloc() for _ in range(4)]
    xrow = R.alloc(4); ga = R.alloc(8, 4); ocb = R.alloc(8, 4); sb = R.alloc(8, 4)
    Bf = [[R.alloc(4) for _ in range(2)] for _ in range(4)]
    acc = [R.alloc(4) for _ in range(4)]
    vaT = R.alloc(); vaVw = R.alloc(); vaVr = R.alloc(); vaUw = R.alloc(); vaUr = R.alloc(); vaYw = R.alloc()
    A(f"v_lshrrev_b32 {v(vq)}, 4, v0")
    A(f"v_and_b32 {v(vi)}, 15, v0")
    A(f"v_lshlrev_b32 {v(vl16)}, 4, v0")
    A(f"s_lshl_b32 {s(sT0)}, {s(sC)}, 15")
    A(f"s_add_u32 {s(sT1)}, {s(sC)}, 32")
    A(f"s_lshl_b32 {s(sT1)}, {s(sT1)}, 15")
    A(f"s_and_b32 {s(sT2)}, {s(sC)}, 31")
    A(f"s_cmp_eq_u32 {s(sT2)}, 0")
    A(f"s_cselect_b32 {s(sMir)}, 0, 1")
    A(f"s_cselect_b32 {s(sT1)}, 0x40000000, {s(sT1)}")
    A(f"s_cmp_ge_u32 {s(sW)}, 4")
    A(f"s_cselect_b32 {s(sT0)}, {s(sT1)}, {s(sT0)}")
    A(f"s_and_b32 {s(sT1)}, {s(sW)}, 3")
    A(f"s_lshl_b32 {s(sT1)}, {s(sT1)}, 13")
    A(f"s_add_u32 {s(sT0)}, {s(sT0)}, {s(sT1)}")
    A(f"s_mul_i32 {s(sT1)}, {s(sW)}, {8*TS}")
    A("s_waitcnt lgkmcnt(0)")
    make_srd(A, SRD_T, 10, 64 * 32 * 512 * 2, off=WS_T)
    for j in range(8):
        if j == 0: A(f"s_mov_b32 m0, {s(sT1)}")
        else:
            A(f"s_add_u32 m0, m0, {TS}")
            A(f"s_add_u32 {s(sT0)}, {s(sT0)}, 1024")
        A(f"buffer_load_dwordx4 {v(vl16)}, {s(SRD_T,4)}, {s(sT0)} offen lds")
    make_srd(A, SRD_RE, 6, S * S * 2); make_srd(A, SRD_IM, 8, S * S * 2)
    A(f"v_bfe_u32 {v(vt[0])}, {v(vi)}, 1, 2")
    A(f"s_lshl_b32 {s(sT0)}, {s(sG)}, 2")
    A(f"v_add_u32 {v(vt[0])}, {s(sT0)}, {v(vt[0])}")
    A(f"v_lshlrev_b32 {v(vt[0])}, 6, {v(vt[0])}")
    A(f"v_add_u32 {v(vt[0])}, {s(sC)}, {v(vt[0])}")
    A(f"v_lshlrev_b32 {v(vt[0])}, 12, {v(vt[0])}")
    A(f"v_lshl_add_u32 {v(vt[0])}, {v(vq)}, 3, {v(vt[0])}")
    for reg, srd in ((Rr, SRD_RE), (Ri, SRD_IM)):
        A(f"buffer_load_dwordx2 {v(reg,2)}, {v(vt[0])}, {s(srd,4)}, 0 offen")
        A(f"buffer_load_dwordx2 {v(reg+2,2)}, {v(vt[0])}, {s(srd,4)}, 0 offen offset:32")
    make_srd(A, SRD_M, 10, 3072 * 4, off=WS_MOD)
    A(f"s_lshl_b32 {s(sT0)}, {s(sW)}, 6")
    A(f"v_add_u32 {v(vt[1])}, {s(sT0)}, {v(vi)}")
    A(f"v_lshlrev_b32 {v(vt[1])}, 2, {v(vt[1])}")
    for jt in range(4):
        A(f"buffer_load_dword {v(sav[jt])}, {v(vt[1])}, {s(SRD_M,4)}, 0 offen offset:{jt*64}")
        A(f"buffer_load_dword {v(opca[jt])}, {v(vt[1])}, {s(SRD_M,4)}, 0 offen offset:{2048+jt*64}")
    A(f"s_and_b32 {s(sT0)}, {s(sW)}, 3")
    A(f"s_lshl_b32 {s(sT1)}, {s(sG)}, 2")
    A(f"s_add_u32 {s(sT0)}, {s(sT0)}, {s(sT1)}")
    A(f"s_lshl_b32 {s(sT0)}, {s(sT0)}, 6")
    A(f"s_add_u32 {s(sRow)}, {s(sT0)}, {s(sC)}")
    A(f"s_sub_u32 {s(sT0)}, 2048, {s(sRow)}")
    A(f"s_and_b32 {s(sT0)}, {s(sT0)}, 2047")
    A(f"s_cmp_ge_u32 {s(sW)}, 4")
    A(f"s_cselect_b32 {s(sRow)}, {s(sT0)}, {s(sRow)}")
    A(f"s_lshl_b32 {s(sRow)}, {s(sRow)}, 10")
    make_srd(A, SRD_X, 4, S * D * 2)
    A(f"buffer_load_dwordx4 {v(xrow,4)}, {v(vl16)}, {s(SRD_X,4)}, {s(sRow)} offen")
    A(f"v_lshlrev_b32 {v(vt[2])}, 5, v0")
    for reg, sec in ((ga, 2), (sb, 3), (ocb, 4)):
        A(f"s_mov_b32 {s(sT0)}, {sec*2048}")
        A(f"buffer_load_dwordx4 {v(reg,4)}, {v(vt[2])}, {s(SRD_M,4)}, {s(sT0)} offen")
        A(f"buffer_load_dwordx4 {v(reg+4,4)}, {v(vt[2])}, {s(SRD_M,4)}, {s(sT0)} offen offset:16")
    SRD_S = 60
    make_srd(A, SRD_S, 10, S * 128, off=WS_STAT)
    for j in range(4): A(f"v_mov_b32 {v(Bf[3][1]+j)}, -1")
    A(f"s_lshl_b32 {s(sT0)}, s2, 10")
    A(f"s_cmp_eq_u32 {s(sW)}, 7")
    A(f"s_cselect_b32 {s(sT0)}, {s(sT0)}, 0x40000000")
    A(f"buffer_store_dwordx4 {v(Bf[3][1],4)}, {v(vl16)}, {s(SRD_S,4)}, {s(sT0)} offen")
    NLATE = 8 + 1 + 6 + 1
    if extra: extra(A, R); NLATE += extra.nloads
    make_srd(A, SRD_X1, 10, S * D * 2, off=WS_X1); make_srd(A, SRD_H2, 10, S * D * 2, off=WS_H2)
    def sincos(vnum, mask, scale_hex, vc_, vs_):
        if mask is not None: A(f"v_and_b32 {v(vnum)}, {mask}, {v(vnum)}")
        A(f"v_cvt_f32_u32 {v(vnum)}, {v(vnum)}")
        A(f"v_mul_f32 {v(vnum)}, {scale_hex}, {v(vnum)}")
        A(f"v_cos_f32 {v(vc_)}, {v(vnum)}")
        A(f"v_sin_f32 {v(vs_)}, {v(vnum)}")
    A(f"v_and_b32 {v(vt[3])}, 1, {v(vi)}")
    A(f"v_cmp_eq_u32 s[28:29], 1, {v(vt[3])}")
    for mt in range(2):
        for jj in range(4):
            A(f"v_lshrrev_b32 {v(vt[0])}, 1, {v(vi)}")
            if mt: A(f"v_add_u32 {v(vt[0])}, 8, {v(vt[0])}")
            A(f"v_lshl_add_u32 {v(vt[1])}, {v(vq)}, 2, {jj}")
            A(f"v_mul_u32_u24 {v(vt[0])}, {v(vt[0])}, {v(vt[1])}")
            sincos(vt[0], 15, "0x3d800000", vt[1], vt[2])
            A(f"v_sub_f32 {v(vt[3])}, 0, {v(vt[2])}")
            A(f"v_cndmask_b32 {v(vt[4])}, {v(vt[1])}, {v(vt[3])}, s[28:29]")
            A(f"v_cndmask_b32 {v(vt[5])}, {v(vt[2])}, {v(vt[1])}, s[28:29]")
            A(f"v_cvt_pk_bf16_f32 {v(F1[mt]+jj)}, {v(vt[4])}, {v(vt[5])}")
    A(f"s_and_b32 {s(sT0)}, {s(sW)}, 1")
    A(f"s_lshl_b32 {s(sT0)}, {s(sT0)}, 4")
    A(f"v_add_u32 {v(vt[3])}, {s(sT0)}, {v(vi)}")
    for ks in range(2):
        for jj in range(4):
            A(f"v_lshl_add_u32 {v(vt[1])}, {v(vq)}, 2, {16*ks+jj}")
            A(f"v_mul_u32_u24 {v(vt[0])}, {v(vt[3])}, {v(vt[1])}")
            sincos(vt[0], 31, "0x3d000000", vt[1], vt[2])
            A(f"v_cvt_pk_bf16_f32 {v(F2[ks]+jj)}, {v(vt[1])}, {v(vt[2])}")
    for mt in range(2):
        for pp in range(2):
            A(f"v_lshl_add_u32 {v(vt[1])}, {v(vq)}, 1, {8*mt+pp}")
            A(f"v_mul_u32_u24 {v(vt[0])}, {v(vt[3])}, {v(vt[1])}")
            sincos(vt[0], None, "0x3b000000", twc[mt][pp], tws[mt][pp])
    A(f"v_lshrrev_b32 {v(vt[0])}, 2, {v(vi)}")
    A(f"v_lshl_add_u32 {v(vt[0])}, {v(vq)}, 2, {v(vt[0])}")
    A(f"v_mul_u32_u24 {v(vaT)}, {TS}, {v(vt[0])}")
    A(f"v_and_b32 {v(vt[0])}, 3, {v(vi)}")
    A(f"v_lshl_add_u32 {v(vaT)}, {v(vt[0])}, 3, {v(vaT)}")
    A(f"s_lshl_b32 {s(sT0)}, {s(sW)}, 7")
    A(f"v_add_u32 {v(vaT)}, {s(sT0)}, {v(vaT)}")
    A(f"v_and_b32 {v(vt[0])}, 1, {v(vq)}")
    A(f"v_lshl_add_u32 {v(vt[0])}, {v(vt[0])}, 6, {v(vi)}")
    A(f"v_mul_u32_u24 {v(vaVw)}, {VS}, {v(vt[0])}")
    A(f"s_lshl_b32 {s(sT0)}, {s(sW)}, 3")
    A(f"s_add_u32 {s(sT0)}, {s(sT0)}, {V_OFF}")
    A(f"v_add_u32 {v(vaVw)}, {s(sT0)}, {v(vaVw)}")
    A(f"s_lshl_b32 {s(sT0)}, {s(sW)}, 4")
    A(f"v_add_u32 {v(vt[0])}, {s(sT0)}, {v(vi)}")
    A(f"v_mul_u32_u24 {v(vaVr)}, {VS}, {v(vt[0])}")
    A(f"v_lshl_add_u32 {v(vaVr)}, {v(vq)}, 4, {v(vaVr)}")
    A(f"v_add_u32 {v(vaVr)}, {V_OFF}, {v(vaVr)}")
    A(f"s_lshr_b32 {s(sT0)}, {s(sW)}, 1")
    A(f"s_lshl_b32 {s(sT0)}, {s(sT0)}, 4")
    A(f"v_lshl_add_u32 {v(vt[0])}, {v(vq)}, 1, {s(sT0)}")
    A(f"v_mul_u32_u24 {v(vaUw)}, {US}, {v(vt[0])}")
    A(f"v_lshl_add_u32 {v(vaUw)}, {v(vt[3])}, 2, {v(vaUw)}")
    if U_OFF: A(f"v_add_u32 {v(vaUw)}, {U_OFF}, {v(vaUw)}")
    A(f"v_add_u32 {v(vt[0])}, {s(sT0)}, {v(vi)}")
    A(f"v_mul_u32_u24 {v(vaUr)}, {US}, {v(vt[0])}")
    A(f"v_lshl_add_u32 {v(vaUr)}, {v(vq)}, 4, {v(vaUr)}")
    if U_OFF: A(f"v_add_u32 {v(vaUr)}, {U_OFF}, {v(vaUr)}")
    A(f"s_lshr_b32 {s(sT0)}, {s(sW)}, 1")
    A(f"s_mul_i32 {s(sT0)}, {s(sT0)}, {YS}")
    A(f"s_and_b32 {s(sT1)}, {s(sW)}, 1")
    A(f"s_lshl_b32 {s(sT1)}, {s(sT1)}, 10")
    A(f"s_add_u32 {s(sT0)}, {s(sT0)}, {s(sT1)}")
    A(f"s_add_u32 {s(sT0)}, {s(sT0)}, {Y_OFF}")
    A(f"v_lshlrev_b32 {v(vaYw)}, 6, {v(vi)}")
    A(f"v_lshl_add_u32 {v(vaYw)}, {v(vq)}, 4, {v(vaYw)}")
    A(f"v_add_u32 {v(vaYw)}, {s(sT0)}, {v(vaYw)}")
    A(f"s_waitcnt vmcnt({NLATE})")
    A(f"s_mov_b32 {s(sT0)}, 0x80008000")
    for j in range(4):
        A(f"v_cndmask_b32 {v(A0+j)}, {v(Rr+j)}, {v(Ri+j)}, s[28:29]")
        A(f"v_xor_b32 {v(vt[0])}, {s(sT0)}, {v(Ri+j)}")
        A(f"v_cndmask_b32 {v(A1+j)}, {v(vt[0])}, {v(Rr+j)}, s[28:29]")
    A(f"s_or_b32 {s(sT0)}, {s(sC)}, {s(sG)}")
    A(f"s_cmp_eq_u32 {s(sT0)}, 0")
    A(f"s_cselect_b32 {s(sT0)}, 0x45000000, 0")
    A(f"v_and_b32 {v(vt[0])}, 1, {v(vq)}")
    A(f"v_cmp_eq_u32 vcc, 0, {v(vt[0])}")
    A(f"v_mov_b32 {v(vt[1])}, {s(sT0)}")
    A(f"v_cndmask_b32 {v(vt[1])}, 0, {v(vt[1])}, vcc")
    for jt in range(4):
        for r in range(4): A(f"v_mov_b32 {v(acc[jt]+r)}, 0")
    A("s_waitcnt vmcnt(0)")
    for jt in range(4): A(f"v_mul_f32 {v(sav[jt])}, {v(sav[jt])}, {v(vt[1])}")
    A("s_barrier")
    for jt in range(4):
        for c in range(2):
            for p in range(2):
                A(f"ds_read_b64_tr_b16 {v(Bf[jt][c]+2*p,2)}, {v(vaT)} offset:{c*32*TS + p*16*TS + jt*32}")
    for jt in range(4):
        A(f"s_waitcnt lgkmcnt({(3-jt)*4})")
        A(f"v_mfma_f32_16x16x32_bf16 {v(acc[jt],4)}, {v(A0,4)}, {v(Bf[jt][0],4)}, {v(acc[jt],4)}")
        A(f"v_mfma_f32_16x16x32_bf16 {v(acc[jt],4)}, {v(A1,4)}, {v(Bf[jt][1],4)}, {v(acc[jt],4)}")
    for jt in range(4):
        ac = acc[jt]
        A(f"v_fma_f32 {v(ac)}, {v(ac)}, {v(opca[jt])}, {v(sav[jt])}")
        for r in range(1, 4): A(f"v_mul_f32 {v(ac+r)}, {v(ac+r)}, {v(opca[jt])}")
        for rp in range(2):
            A(f"v_cvt_pk_bf16_f32 {v(ac+2*rp)}, {v(ac+2*rp)}, {v(ac+2*rp+1)}")
            A(f"ds_write_b32 {v(vaVw)}, {v(ac+2*rp)} offset:{rp*32*VS + (jt&1)*16*VS + (jt>>1)*4}")
    A("s_waitcnt lgkmcnt(0)")
    A("s_barrier")
    A(f"ds_read_b128 {v(Bf[0][0],4)}, {v(vaVr)}")
    for mt in range(2):
        for r in range(4): A(f"v_mov_b32 {v(acc[mt]+r)}, 0")
    A("s_waitcnt lgkmcnt(0)")
    for mt in range(2):
        A(f"v_mfma_f32_16x16x32_bf16 {v(acc[mt],4)}, {v(F1[mt],4)}, {v(Bf[0][0],4)}, {v(acc[mt],4)}")
    for mt in range(2):
        for pp in range(2):
            re, im = acc[mt] + 2 * pp, acc[mt] + 2 * pp + 1
            c_, s_ = twc[mt][pp], tws[mt][pp]
            A(f"v_mul_f32 {v(vt[0])}, {v(re)}, {v(c_)}")
            A(f"v_mul_f32 {v(vt[1])}, {v(im)}, {v(c_)}")
            A(f"v_fma_f32 {v(vt[0])}, {v(im)}, {v(s_)}, {v(vt[0])}")
            A(f"v_fma_f32 {v(vt[1])}, -{v(re)}, {v(s_)}, {v(vt[1])}")
            A(f"v_cvt_pk_bf16_f32 {v(vt[2+pp])}, {v(vt[0])}, {v(vt[1])}")
            A(f"ds_write_b32 {v(vaUw)}, {v(vt[2+pp])} offset:{(8*mt+pp)*US}")
    A("s_waitcnt lgkmcnt(0)")
    A("s_barrier")
    for ks in range(2):
        A(f"ds_read_b128 {v(Bf[ks][0],4)}, {v(vaUr)} offset:{ks*64}")
    for r in range(4): A(f"v_mov_b32 {v(acc[2]+r)}, 0")
    A("s_waitcnt lgkmcnt(0)")
    for ks in range(2):
        A(f"v_mfma_f32_16x16x32_bf16 {v(acc[2],4)}, {v(Bf[ks][0],4)}, {v(F2[ks],4)}, {v(acc[2],4)}")
    A(f"ds_write_b128 {v(vaYw)}, {v(acc[2],4)}")
    A("s_waitcnt lgkmcnt(0)")
    A("s_barrier")
    A(f"s_cmp_ge_u32 {s(sW)}, 4")
    A(f"s_cbranch_scc1 {name}_mir")
    y = Bf[0][0]
    assert Bf[0][1] == Bf[0][0] + 4
    A(f"s_mul_i32 {s(sT0)}, {s(sW)}, {YS}")
    A(f"s_add_u32 {s(sT0)}, {s(sT0)}, {Y_OFF}")
    A(f"v_lshlrev_b32 {v(vt[0])}, 5, v0")
    A(f"v_add_u32 {v(vt[0])}, {s(sT0)}, {v(vt[0])}")
    A(f"ds_read_b128 {v(y,4)}, {v(vt[0])}")
    A(f"ds_read_b128 {v(y+4,4)}, {v(vt[0])} offset:16")
    A(f"s_branch {name}_fin")
    A.label(f"{name}_mir")
    A(f"s_cmp_eq_u32 {s(sMir)}, 0")
    A(f"s_cbranch_scc1 {name}_end")
    A(f"s_sub_u32 {s(sT0)}, {s(sW)}, 4")
    A(f"s_mul_i32 {s(sT0)}, {s(sT0)}, {YS}")
    A(f"s_add_u32 {s(sT0)}, {s(sT0)}, {Y_OFF}")
    A(f"v_lshlrev_b32 {v(vt[0])}, 3, v0")
    A(f"v_sub_u32 {v(vt[1])}, 512, {v(vt[0])}")
    A(f"v_and_b32 {v(vt[1])}, 511, {v(vt[1])}")
    A(f"v_lshlrev_b32 {v(vt[1])}, 2, {v(vt[1])}")
    A(f"v_add_u32 {v(vt[1])}, {s(sT0)}, {v(vt[1])}")
    A(f"v_sub_u32 {v(vt[0])}, 505, {v(vt[0])}")
    A(f"v_lshlrev_b32 {v(vt[0])}, 2, {v(vt[0])}")
    A(f"v_add_u32 {v(vt[0])}, {s(sT0)}, {v(vt[0])}")
    A(f"ds_read_b32 {v(y)}, {v(vt[1])}")
    for j in range(1, 8):
        A(f"ds_read_b32 {v(y+j)}, {v(vt[0])} offset:{(7-j)*4}")
    A.label(f"{name}_fin")
    xf = Bf[1][0]
    assert Bf[1][1] == xf + 4
    A(f"s_mov_b32 {s(sT0)}, 0xffff0000")
    for j in range(4):
        A(f"v_lshlrev_b32 {v(xf+2*j)}, 16, {v(xrow+j)}")
        A(f"v_and_b32 {v(xf+2*j+1)}, {s(sT0)}, {v(xrow+j)}")
    A("s_waitcnt lgkmcnt(0)")
    for j in range(8): A(f"v_fma_f32 {v(xf+j)}, {v(ga+j)}, {v(y+j)}, {v(xf+j)}")
    for j in range(4): A(f"v_cvt_pk_bf16_f32 {v(xrow+j)}, {v(xf+2*j)}, {v(xf+2*j+1)}")
    A(f"buffer_store_dwordx4 {v(xrow,4)}, {v(vl16)}, {s(SRD_X1,4)}, {s(sRow)} offen")
    for j in range(4):
        A(f"v_lshlrev_b32 {v(xf+2*j)}, 16, {v(xrow+j)}")
        A(f"v_and_b32 {v(xf+2*j+1)}, {s(sT0)}, {v(xrow+j)}")
    A(f"v_add_f32 {v(vt[0])}, {v(xf)}, {v(xf+1)}")
    for j in range(2, 8): A(f"v_add_f32 {v(vt[0])}, {v(vt[0])}, {v(xf+j)}")
    wave_sum(A, vt[0], sT1)
    A(f"v_mov_b32 {v(vt[1])}, 0x3b000000")
    A(f"v_mul_f32 {v(vt[1])}, {s(sT1)}, {v(vt[1])}")
    for j in range(8): A(f"v_sub_f32 {v(xf+j)}, {v(xf+j)}, {v(vt[1])}")
    A(f"v_mul_f32 {v(vt[0])}, {v(xf)}, {v(xf)}")
    for j in range(1, 8): A(f"v_fmac_f32 {v(vt[0])}, {v(xf+j)}, {v(xf+j)}")
    wave_sum(A, vt[0], sT1)
    A(f"v_mov_b32 {v(vt[1])}, 0x3b000000")
    A(f"v_mul_f32 {v(vt[1])}, {s(sT1)}, {v(vt[1])}")
    A(f"v_add_f32 {v(vt[1])}, 0x3727c5ac, {v(vt[1])}")
    A(f"v_rsq_f32 {v(vt[1])}, {v(vt[1])}")
    for j in range(8):
        A(f"v_mul_f32 {v(xf+j)}, {v(xf+j)}, {v(vt[1])}")
    for j in range(8):
        A(f"v_fma_f32 {v(xf+j)}, {v(xf+j)}, {v(ocb+j)}, {v(sb+j)}")
    for j in range(4): A(f"v_cvt_pk_bf16_f32 {v(y+j)}, {v(xf+2*j)}, {v(xf+2*j+1)}")
    A(f"buffer_store_dwordx4 {v(y,4)}, {v(vl16)}, {s(SRD_H2,4)}, {s(sRow)} offen")
    A.label(f"{name}_end")
    A("s_endpgm")
    return dict(name=name, grid=NWG, block=512, lds=LDS, vgpr=R.hi, sgpr=72)
```

```python
from common import *

def gen_kg(A, name="kg_kernel", TT=128, split=2, NS=5, compute=True, reads=True, dma=True, epilogue=True, stamps=False, store=True, z1load=True, stflags=''):
    TF = 112; BK = 64
    KLEN = S // split
    NST = KLEN // BK
    NTB = S // TT
    A_BYTES = TF * 128; B_BYTES = TT * 128
    STAGE = A_BYTES + B_BYTES
    LDS = NS * STAGE
    nA = TF // 8 // 2
    nB = TT // 8 // 2
    WT = TT // 4
    NB = WT // 16
    NWG = 8 * NTB * split
    assert NWG == 256
    A.barrier_state()
    A.raw(kernel_header(name))
    sW, sFB, sTB, sKH, sSlot, sI, sK, sT0, sT1 = 20, 21, 22, 23, 24, 25, 26, 27, 28
    SRD_A, SRD_B, SRD_Z1, SRD_P, SRD_BS = 32, 36, 40, 44, 48
    ST = Stamps(A, on=stamps)
    A(f"s_cmp_ge_u32 s2, {NWG}")
    A(f"s_cbranch_scc1 {name}_end")
    ST.stamp()
    load_ptr(A, 4, "ws"); load_ptr(A, 6, "wsp"); load_ptr(A, 8, "bsp")
    A(f"v_lshrrev_b32 v1, 6, v0")
    A(f"v_and_b32 v0, 63, v0")
    A(f"v_readfirstlane_b32 {s(sW)}, v1")
    A(f"s_and_b32 {s(sT0)}, s2, 7")
    A(f"s_lshr_b32 {s(sT1)}, s2, 3")
    if split == 2:
        A(f"s_lshr_b32 {s(sKH)}, {s(sT0)}, 2")
        A(f"s_and_b32 {s(sFB)}, {s(sT1)}, 7")
        A(f"s_and_b32 {s(sTB)}, {s(sT0)}, 3")
        A(f"s_lshl_b32 {s(sTB)}, {s(sTB)}, 2")
        A(f"s_lshr_b32 {s(sT1)}, {s(sT1)}, 3")
        A(f"s_add_u32 {s(sTB)}, {s(sTB)}, {s(sT1)}")
    else:
        A(f"s_mov_b32 {s(sKH)}, 0")
        A(f"s_and_b32 {s(sFB)}, {s(sT0)}, 1")
        A(f"s_lshl_b32 {s(sFB)}, {s(sFB)}, 2")
        A(f"s_and_b32 {s(sTB)}, {s(sT1)}, 3")
        A(f"s_add_u32 {s(sFB)}, {s(sFB)}, {s(sTB)}")
        A(f"s_lshr_b32 {s(sTB)}, {s(sT0)}, 1")
        A(f"s_lshl_b32 {s(sTB)}, {s(sTB)}, 3")
        A(f"s_lshr_b32 {s(sT1)}, {s(sT1)}, 2")
        A(f"s_add_u32 {s(sTB)}, {s(sTB)}, {s(sT1)}")
    A("s_waitcnt lgkmcnt(0)")
    A(f"s_cmp_ge_u32 {s(sW)}, 4")
    A(f"s_cbranch_scc1 {name}_loader")
    R = RegAlloc(2)
    vq = R.alloc(); vi = R.alloc()
    vA = [R.alloc(), R.alloc()]; vB = [R.alloc(), R.alloc()]
    cA = [R.alloc(), R.alloc()]; cB = [R.alloc(), R.alloc()]
    vt = R.alloc(); vt2 = R.alloc()
    acc = [[R.alloc(4) for _ in range(NB)] for _ in range(7)]
    FA = [[R.alloc(4) for _ in range(7)] for _ in range(2)]
    FB = [[R.alloc(4) for _ in range(NB)] for _ in range(2)]
    z1 = [[R.alloc(2) for _ in range(NB)] for _ in range(7)]
    vbs = [R.alloc() for _ in range(NB)]
    vout = [R.alloc() for _ in range(NB)]
    A(f"v_lshrrev_b32 {v(vq)}, 4, v0")
    A(f"v_and_b32 {v(vi)}, 15, v0")
    A(f"s_mul_i32 {s(sT0)}, {s(sTB)}, {TT}")
    A(f"s_mul_i32 {s(sT1)}, {s(sW)}, {WT}")
    A(f"s_add_u32 {s(sT0)}, {s(sT0)}, {s(sT1)}")
    make_srd(A, SRD_Z1, 4, FH * S * 2, off=WS_Z1)
    make_srd(A, SRD_BS, 8, S * 2)
    A(f"s_mul_i32 {s(sT1)}, {s(sKH)}, {WS_P1 - WS_P0}")
    A(f"s_add_u32 {s(sT1)}, {s(sT1)}, {WS_P0}")
    make_srd(A, SRD_P, 4, FH * S * 2, off_s=sT1)
    A(f"s_mul_i32 {s(sT1)}, {s(sFB)}, {TF*2}")
    for nb in range(NB):
        A(f"v_add_u32 {v(vt)}, {s(sT0)}, {v(vi)}")
        if nb: A(f"v_add_u32 {v(vt)}, {16*nb}, {v(vt)}")
        A(f"v_lshlrev_b32 {v(vt2)}, 1, {v(vt)}")
        A(f"buffer_load_ushort {v(vbs[nb])}, {v(vt2)}, {s(SRD_BS,4)}, 0 offen")
        A(f"v_mul_u32_u24 {v(vout[nb])}, {FH*2}, {v(vt)}")
        A(f"v_lshl_add_u32 {v(vout[nb])}, {v(vq)}, 3, {v(vout[nb])}")
        A(f"v_add_u32 {v(vout[nb])}, {s(sT1)}, {v(vout[nb])}")
        if epilogue and z1load:
            for fa in range(7):
                A(f"buffer_load_dwordx2 {v(z1[fa][nb],2)}, {v(vout[nb])}, {s(SRD_Z1,4)}, 0 offen offset:{fa*32}")
    A(f"v_and_b32 {v(vt)}, 7, {v(vi)}")
    for ks in range(2):
        A(f"v_add_u32 {v(vt2)}, {4*ks}, {v(vq)}")
        A(f"v_xor_b32 {v(vt2)}, {v(vt2)}, {v(vt)}")
        A(f"v_lshlrev_b32 {v(vt2)}, 4, {v(vt2)}")
        A(f"v_lshl_add_u32 {v(vA[ks])}, {v(vi)}, 7, {v(vt2)}")
        A(f"s_mul_i32 {s(sT1)}, {s(sW)}, {WT*128}")
        A(f"s_add_u32 {s(sT1)}, {s(sT1)}, {A_BYTES}")
        A(f"v_add_u32 {v(vB[ks])}, {s(sT1)}, {v(vA[ks])}")
    for fa in range(7):
        for nb in range(NB):
            for r in range(4): A(f"v_mov_b32 {v(acc[fa][nb]+r)}, 0")
    A(f"s_mov_b32 {s(sSlot)}, 0")
    A(f"s_mov_b32 {s(sI)}, 0")
    def rd_list(ks, buf):
        out = []
        if not reads: return out
        for fa in range(7): out.append(f"ds_read_b128 {v(FA[buf][fa],4)}, {v(cA[ks])} offset:{fa*2048}")
        for nb in range(NB): out.append(f"ds_read_b128 {v(FB[buf][nb],4)}, {v(cB[ks])} offset:{nb*2048}")
        return out
    def mm_list(buf):
        out = []
        if not compute: return out
        for fa in range(7):
            for nb in range(NB):
                out.append(f"v_mfma_f32_16x16x32_bf16 {v(acc[fa][nb],4)}, {v(FA[buf][fa],4)}, {v(FB[buf][nb],4)}, {v(acc[fa][nb],4)}")
        return out
    def interleave(ms, rs):
        out = []
        rs = list(rs)
        for m in ms:
            out.append(m)
            if rs: out.append(rs.pop(0))
        return out + rs
    def setcur(k):
        A(f"v_add_u32 {v(cA[k])}, {s(sSlot)}, {v(vA[k])}")
        A(f"v_add_u32 {v(cB[k])}, {s(sSlot)}, {v(vB[k])}")
    setcur(0); setcur(1)
    A("s_barrier")
    ST.stamp()
    for r in rd_list(0, 0): A(r)
    loop = f"{name}_cloop"
    A.label(loop)
    A("s_waitcnt lgkmcnt(0)")
    for x in interleave(mm_list(0), rd_list(1, 1)): A(x)
    A(f"s_add_u32 {s(sSlot)}, {s(sSlot)}, {STAGE}")
    A(f"s_cmp_ge_u32 {s(sSlot)}, {LDS}")
    A(f"s_cselect_b32 {s(sSlot)}, 0, {s(sSlot)}")
    A(f"s_add_u32 {s(sI)}, {s(sI)}, 1")
    A(f"s_cmp_ge_u32 {s(sI)}, {NST}")
    A("s_waitcnt lgkmcnt(0)")
    A(f"s_cbranch_scc1 {name}_ctail")
    setcur(0)
    A("s_barrier")
    xs = interleave(mm_list(1), rd_list(0, 0))
    for x in xs: A(x)
    setcur(1)
    A(f"s_branch {loop}")
    A.label(f"{name}_ctail")
    for x in mm_list(1): A(x)
    ST.stamp()
    if epilogue:
        A("s_waitcnt vmcnt(0)")
        A(f"s_cmp_eq_u32 {s(sKH)}, 0")
        A(f"s_cselect_b32 {s(sT0)}, 0xffff0000, 0")
        for nb in range(NB):
            A(f"v_lshlrev_b32 {v(vbs[nb])}, 16, {v(vbs[nb])}")
            A(f"v_and_b32 {v(vbs[nb])}, {s(sT0)}, {v(vbs[nb])}")
        A(f"s_mov_b32 {s(sT0)}, 0xffff0000")
        for fa in range(7):
            for nb in range(NB):
                ac = acc[fa][nb]; z = z1[fa][nb]
                t0, t1 = FA[0][0], FA[0][0] + 1
                for h in range(2):
                    A(f"v_lshlrev_b32 {v(t0)}, 16, {v(z+h)}")
                    A(f"v_and_b32 {v(t1)}, {s(sT0)}, {v(z+h)}")
                    A(f"v_add_f32 {v(ac+2*h)}, {v(ac+2*h)}, {v(vbs[nb])}")
                    A(f"v_add_f32 {v(ac+2*h+1)}, {v(ac+2*h+1)}, {v(vbs[nb])}")
                    A(f"v_mul_f32 {v(ac+2*h)}, {v(ac+2*h)}, {v(t0)}")
                    A(f"v_mul_f32 {v(ac+2*h+1)}, {v(ac+2*h+1)}, {v(t1)}")
                    A(f"v_cvt_pk_bf16_f32 {v(z+h)}, {v(ac+2*h)}, {v(ac+2*h+1)}")
                if store: A(f"buffer_store_dwordx2 {v(z,2)}, {v(vout[nb])}, {s(SRD_P,4)}, 0 offen offset:{fa*32} {stflags}")
    ST.stamp()
    A("s_waitcnt vmcnt(0)")
    ST.stamp()
    ST.flush(4, FA[0][0])
    A("s_endpgm")
    nv_cons = R.hi
    A.label(f"{name}_loader")
    R = RegAlloc(2)
    voff = [R.alloc() for _ in range(8)]
    vt = R.alloc(); vt2 = R.alloc()
    A(f"v_lshrrev_b32 {v(vt)}, 3, v0")
    A(f"v_and_b32 {v(vt2)}, 7, v0")
    A(f"v_xor_b32 {v(vt2)}, {v(vt2)}, {v(vt)}")
    A(f"v_lshlrev_b32 {v(vt2)}, 4, {v(vt2)}")
    A(f"v_lshl_add_u32 {v(vt)}, {v(vt)}, 12, {v(vt2)}")
    A(f"s_mul_i32 {s(sK)}, {s(sKH)}, {KLEN*2}")
    A(f"s_cmp_ge_u32 {s(sW)}, 6")
    A(f"s_cbranch_scc1 {name}_ldB")
    def loader(tag, n, srd, ldsbase_s):
        def issue():
            for j in range(n):
                if j == 0: A(f"s_add_u32 m0, {s(sSlot)}, {s(ldsbase_s)}")
                else: A(f"s_add_u32 m0, m0, 1024")
                if dma: A(f"buffer_load_dwordx4 {v(voff[j])}, {s(srd,4)}, {s(sK)} offen lds")
            A(f"s_add_u32 {s(sK)}, {s(sK)}, 128")
            A(f"s_add_u32 {s(sSlot)}, {s(sSlot)}, {STAGE}")
            A(f"s_cmp_ge_u32 {s(sSlot)}, {LDS}")
            A(f"s_cselect_b32 {s(sSlot)}, 0, {s(sSlot)}")
        A(f"s_mov_b32 {s(sSlot)}, 0")
        for st in range(NS): issue()
        A(f"s_waitcnt vmcnt({(NS-1)*n})")
        A("s_barrier")
        nsteady = NST - NS
        A(f"s_mov_b32 {s(sI)}, 0")
        lp = f"{name}_{tag}_loop"
        A.label(lp)
        A(f"s_waitcnt vmcnt({(NS-2)*n})")
        A("s_barrier")
        issue()
        A(f"s_add_u32 {s(sI)}, {s(sI)}, 1")
        A(f"s_cmp_lt_u32 {s(sI)}, {nsteady}")
        A(f"s_cbranch_scc1 {lp}")
        for j in range(NST - NS + 1, NST):
            A(f"s_waitcnt vmcnt({min(NS-2, NST-1-j)*n})")
            A("s_barrier")
        A("s_endpgm")
    A(f"s_mul_i32 {s(sT0)}, {s(sFB)}, {TF*S*2}")
    A(f"s_add_u32 {s(sT0)}, {s(sT0)}, {WS_Z2T}")
    make_srd(A, SRD_A, 4, TF * S * 2, off_s=sT0)
    A(f"s_sub_u32 {s(sT0)}, {s(sW)}, 4")
    A(f"s_mul_i32 {s(sT1)}, {s(sT0)}, {nA*8*4096}")
    A(f"v_add_u32 {v(vt)}, {s(sT1)}, {v(vt)}")
    for j in range(nA): A(f"v_add_u32 {v(voff[j])}, {j*8*4096}, {v(vt)}")
    A(f"s_mul_i32 {s(sT0)}, {s(sT0)}, {nA*1024}")
    loader("ldA", nA, SRD_A, sT0)
    A.label(f"{name}_ldB")
    A(f"s_mul_i32 {s(sT0)}, {s(sTB)}, {TT*S*2}")
    make_srd(A, SRD_B, 6, TT * S * 2, off_s=sT0)
    A(f"s_sub_u32 {s(sT0)}, {s(sW)}, 6")
    A(f"s_mul_i32 {s(sT1)}, {s(sT0)}, {nB*8*4096}")
    A(f"v_add_u32 {v(vt)}, {s(sT1)}, {v(vt)}")
    for j in range(nB): A(f"v_add_u32 {v(voff[j])}, {j*8*4096}, {v(vt)}")
    A(f"s_mul_i32 {s(sT0)}, {s(sT0)}, {nB*1024}")
    A(f"s_add_u32 {s(sT0)}, {s(sT0)}, {A_BYTES}")
    loader("ldB", nB, SRD_B, sT0)
    A.label(f"{name}_end")
    A("s_endpgm")
    return dict(name=name, grid=NWG, block=512, lds=LDS, vgpr=max(nv_cons, R.hi), sgpr=96)

def assemble(kernels_gen, launches=None):
    A = Asm()
    infos = [g(A) for g in kernels_gen]
    body = A.finalize()
    by = {i["name"]: i for i in infos}
    if launches is None: launches = [i["name"] for i in infos]
    head = "".join(f"; @launch kernel={n} grid=({by[n]['grid']},1,1) block=({by[n]['block']},1,1) lds={by[n]['lds']}\n" for n in launches)
    txt = head + '.amdgcn_target "amdgcn-amd-amdhsa--gfx950"\n.text\n' + body + '.section .rodata,"a"\n'
    for i in infos:
        txt += ".p2align 6\n" + kernel_desc(i["name"], i["vgpr"], i["sgpr"], i.get("accum")) + "\n"
    return txt
```

```python
from gemm_util import *

def gen_ko(A, name="ko_kernel", split=2, NS=6, stamps=False):
    NWG = 256
    NST = 14
    W_B = 8192; P_B = 8192
    SLOT = W_B + split * P_B
    X_OFF = NS * SLOT
    LDS = X_OFF + 8192
    nld = (8 + 8 * split) // 4
    A.barrier_state()
    A.raw(kernel_header(name))
    ST = Stamps(A, on=stamps)
    sW, sDB, sTB, sT0, sT1, sT2, sDH, sTH, sLw = 20, 21, 22, 23, 24, 25, 26, 27, 28
    SRD_W, SRD_P, SRD_X, SRD_M, SRD_O = 32, 36, 40, 44, 48
    A(f"s_cmp_ge_u32 s2, {NWG}")
    A(f"s_cbranch_scc1 {name}_end")
    ST.stamp()
    load_ptr(A, 4, "ws"); load_ptr(A, 6, "wout"); load_ptr(A, 8, "out")
    A("v_lshrrev_b32 v1, 6, v0")
    A("v_and_b32 v0, 63, v0")
    A(f"v_readfirstlane_b32 {s(sW)}, v1")
    A(f"s_and_b32 {s(sT0)}, s2, 7")
    A(f"s_lshr_b32 {s(sT1)}, s2, 3")
    A(f"s_and_b32 {s(sDB)}, {s(sT0)}, 1")
    A(f"s_lshl_b32 {s(sDB)}, {s(sDB)}, 2")
    A(f"s_and_b32 {s(sT2)}, {s(sT1)}, 3")
    A(f"s_add_u32 {s(sDB)}, {s(sDB)}, {s(sT2)}")
    A(f"s_lshr_b32 {s(sTB)}, {s(sT0)}, 1")
    A(f"s_lshl_b32 {s(sTB)}, {s(sTB)}, 3")
    A(f"s_lshr_b32 {s(sT1)}, {s(sT1)}, 2")
    A(f"s_add_u32 {s(sTB)}, {s(sTB)}, {s(sT1)}")
    A(f"s_cmp_ge_u32 {s(sW)}, 4")
    A(f"s_cbranch_scc1 {name}_loader")
    R = RegAlloc(2)
    vq = R.alloc(); vi = R.alloc()
    vtb = R.alloc(8, 4); vt = [vtb + k for k in range(8)]
    NG = (NS * SLOT + 49151) // 49152
    spg = 49152 // SLOT
    NG = (NS + spg - 1) // spg
    vW = [[R.alloc() for _ in range(2)] for _ in range(NG)]
    vP = [[R.alloc() for _ in range(2)] for _ in range(NG)]
    acc = [[R.alloc(4) for _ in range(2)] for _ in range(2)]
    FW = [[R.alloc(4) for _ in range(2)] for _ in range(2)]
    FP = [[[R.alloc(4) for _ in range(2)] for _ in range(split)] for _ in range(2)]
    gb = [R.alloc(4) for _ in range(2)]
    A(f"v_lshrrev_b32 {v(vq)}, 4, v0")
    A(f"v_and_b32 {v(vi)}, 15, v0")
    A(f"s_and_b32 {s(sDH)}, {s(sW)}, 1")
    A(f"s_lshr_b32 {s(sTH)}, {s(sW)}, 1")
    A(f"v_lshrrev_b32 {v(vt[0])}, 2, {v(vi)}")
    A(f"v_lshl_add_u32 {v(vt[0])}, {v(vq)}, 3, {v(vt[0])}")
    A(f"v_lshlrev_b32 {v(vt[0])}, 7, {v(vt[0])}")
    A(f"v_and_b32 {v(vt[1])}, 1, {v(vi)}")
    A(f"v_lshl_add_u32 {v(vt[0])}, {v(vt[1])}, 3, {v(vt[0])}")
    A(f"v_bfe_u32 {v(vt[1])}, {v(vi)}, 3, 1")
    A(f"v_and_b32 {v(vt[2])}, 1, {v(vq)}")
    A(f"v_lshl_or_b32 {v(vt[1])}, {v(vt[2])}, 1, {v(vt[1])}")
    A(f"v_lshlrev_b32 {v(vt[1])}, 1, {v(vt[1])}")
    A(f"v_bfe_u32 {v(vt[2])}, {v(vi)}, 1, 1")
    for j in range(2):
        A(f"s_lshl_b32 {s(sT0)}, {s(sDH)}, 2")
        A(f"s_add_u32 {s(sT0)}, {s(sT0)}, {2*j}")
        A(f"v_add_u32 {v(vt[3])}, {s(sT0)}, {v(vt[2])}")
        A(f"v_xor_b32 {v(vt[3])}, {v(vt[3])}, {v(vt[1])}")
        A(f"v_lshl_add_u32 {v(vW[0][j])}, {v(vt[3])}, 4, {v(vt[0])}")
    A(f"v_and_b32 {v(vt[0])}, 7, {v(vi)}")
    A(f"s_lshl_b32 {s(sT0)}, {s(sTH)}, 12")
    A(f"s_add_u32 {s(sT0)}, {s(sT0)}, {W_B}")
    for ks in range(2):
        A(f"v_add_u32 {v(vt[1])}, {4*ks}, {v(vq)}")
        A(f"v_xor_b32 {v(vt[1])}, {v(vt[1])}, {v(vt[0])}")
        A(f"v_lshlrev_b32 {v(vt[1])}, 4, {v(vt[1])}")
        A(f"v_lshl_add_u32 {v(vP[0][ks])}, {v(vi)}, 7, {v(vt[1])}")
        A(f"v_add_u32 {v(vP[0][ks])}, {s(sT0)}, {v(vP[0][ks])}")
    for g in range(1, NG):
        for j in range(2):
            A(f"v_add_u32 {v(vW[g][j])}, {g*spg*SLOT}, {v(vW[0][j])}")
            A(f"v_add_u32 {v(vP[g][j])}, {g*spg*SLOT}, {v(vP[0][j])}")
    for dt in range(2):
        for tt in range(2):
            for r in range(4): A(f"v_mov_b32 {v(acc[dt][tt]+r)}, 0")
    A("s_waitcnt lgkmcnt(0)")
    make_srd(A, SRD_M, 4, 3072 * 4, off=WS_MOD)
    make_srd(A, SRD_O, 8, S * D * 2)
    A(f"s_lshl_b32 {s(sT0)}, {s(sDB)}, 8")
    A(f"s_lshl_b32 {s(sT1)}, {s(sDH)}, 7")
    A(f"s_add_u32 {s(sT0)}, {s(sT0)}, {s(sT1)}")
    A(f"s_add_u32 {s(sT0)}, {s(sT0)}, {2560*4}")
    A(f"v_lshlrev_b32 {v(vt[0])}, 4, {v(vq)}")
    for j in range(2):
        A(f"buffer_load_dwordx4 {v(gb[j],4)}, {v(vt[0])}, {s(SRD_M,4)}, {s(sT0)} offen offset:{j*64}")
    def reads(st, ks, buf):
        slot = st % NS; g = slot // spg; so = (slot % spg) * SLOT
        o = []
        for dt in range(2):
            for p in range(2):
                o.append(f"ds_read_b64_tr_b16 {v(FW[buf][dt]+2*p,2)}, {v(vW[g][dt])} offset:{so + ks*4096 + p*512}")
        for h in range(split):
            for tt in range(2):
                o.append(f"ds_read_b128 {v(FP[buf][h][tt],4)}, {v(vP[g][ks])} offset:{so + h*P_B + tt*2048}")
        return o
    def mfmas(st, ks, buf):
        return [f"v_mfma_f32_16x16x32_bf16 {v(acc[dt][tt],4)}, {v(FW[buf][dt],4)}, {v(FP[buf][h][tt],4)}, {v(acc[dt][tt],4)}"
                for h in range(split) for dt in range(2) for tt in range(2)]
    consumer_pipeline(A, NST, reads, mfmas)
    ST.stamp()
    A("s_barrier")
    xa = [[FW[0][0], FW[0][0]+2], [FW[0][1], FW[0][1]+2]]
    va = [vt[4], vt[5]]
    A(f"v_and_b32 {v(vt[0])}, 7, {v(vi)}")
    A(f"v_lshrrev_b32 {v(vt[1])}, 1, {v(vq)}")
    A(f"v_and_b32 {v(vt[2])}, 1, {v(vq)}")
    A(f"s_lshl_b32 {s(sT1)}, {s(sTH)}, 12")
    A(f"s_add_u32 {s(sT1)}, {s(sT1)}, {X_OFF}")
    for j in range(2):
        A(f"s_lshl_b32 {s(sT0)}, {s(sDH)}, 2")
        A(f"s_add_u32 {s(sT0)}, {s(sT0)}, {2*j}")
        A(f"v_add_u32 {v(vt[3])}, {s(sT0)}, {v(vt[1])}")
        A(f"v_xor_b32 {v(vt[3])}, {v(vt[3])}, {v(vt[0])}")
        A(f"v_lshlrev_b32 {v(vt[3])}, 4, {v(vt[3])}")
        A(f"v_lshl_add_u32 {v(vt[3])}, {v(vt[2])}, 3, {v(vt[3])}")
        A(f"v_lshl_add_u32 {v(va[j])}, {v(vi)}, 7, {v(vt[3])}")
        A(f"v_add_u32 {v(va[j])}, {s(sT1)}, {v(va[j])}")
        for tt in range(2):
            A(f"ds_read_b64 {v(xa[j][tt],2)}, {v(va[j])} offset:{tt*2048}")
    A("s_waitcnt vmcnt(0) lgkmcnt(0)")
    A(f"s_mov_b32 {s(sT0)}, 0xffff0000")
    for dt in range(2):
        for tt in range(2):
            ac = acc[dt][tt]; x = xa[dt][tt]
            for h in range(2):
                A(f"v_lshlrev_b32 {v(vt[0])}, 16, {v(x+h)}")
                A(f"v_and_b32 {v(vt[1])}, {s(sT0)}, {v(x+h)}")
                A(f"v_fma_f32 {v(vt[0])}, {v(ac+2*h)}, {v(gb[dt]+2*h)}, {v(vt[0])}")
                A(f"v_fma_f32 {v(vt[1])}, {v(ac+2*h+1)}, {v(gb[dt]+2*h+1)}, {v(vt[1])}")
                A(f"v_cvt_pk_bf16_f32 {v(x+h)}, {v(vt[0])}, {v(vt[1])}")
            A(f"ds_write_b64 {v(va[dt])}, {v(x,2)} offset:{tt*2048}")
    A(f"v_lshrrev_b32 {v(vt[0])}, 2, v0")
    A(f"v_and_b32 {v(vt[1])}, 3, v0")
    A(f"s_lshl_b32 {s(sT0)}, {s(sDH)}, 2")
    A(f"v_add_u32 {v(vt[1])}, {s(sT0)}, {v(vt[1])}")
    A(f"v_and_b32 {v(vt[2])}, 7, {v(vt[0])}")
    A(f"v_xor_b32 {v(vt[2])}, {v(vt[2])}, {v(vt[1])}")
    A(f"v_lshlrev_b32 {v(vt[2])}, 4, {v(vt[2])}")
    A(f"v_lshl_add_u32 {v(vt[2])}, {v(vt[0])}, 7, {v(vt[2])}")
    A(f"v_add_u32 {v(vt[2])}, {s(sT1)}, {v(vt[2])}")
    A("s_waitcnt lgkmcnt(0)")
    ob = [FP[0][0][0], FP[0][0][1]]
    for u in range(2): A(f"ds_read_b128 {v(ob[u],4)}, {v(vt[2])} offset:{u*2048}")
    A(f"v_lshlrev_b32 {v(vt[3])}, 10, {v(vt[0])}")
    A(f"v_lshl_add_u32 {v(vt[3])}, {v(vt[1])}, 4, {v(vt[3])}")
    A(f"s_lshl_b32 {s(sT0)}, {s(sTB)}, 16")
    A(f"s_lshl_b32 {s(sT1)}, {s(sTH)}, 15")
    A(f"s_add_u32 {s(sT0)}, {s(sT0)}, {s(sT1)}")
    A(f"s_lshl_b32 {s(sT1)}, {s(sDB)}, 7")
    A(f"s_add_u32 {s(sT0)}, {s(sT0)}, {s(sT1)}")
    A(f"s_add_u32 {s(sT1)}, {s(sT0)}, 16384")
    A("s_waitcnt lgkmcnt(1)")
    A(f"buffer_store_dwordx4 {v(ob[0],4)}, {v(vt[3])}, {s(SRD_O,4)}, {s(sT0)} offen")
    A("s_waitcnt lgkmcnt(0)")
    A(f"buffer_store_dwordx4 {v(ob[1],4)}, {v(vt[3])}, {s(SRD_O,4)}, {s(sT1)} offen")
    if stamps:
        ST.stamp(); A("s_waitcnt vmcnt(0)"); ST.stamp(); ST.flush(4, vt[4])
    A("s_endpgm")
    nv = R.hi
    A.label(f"{name}_loader")
    R = RegAlloc(2)
    voW = [R.alloc() for _ in range(2)]; voP = [R.alloc() for _ in range(2)]; voX = [R.alloc() for _ in range(2)]
    t0 = R.alloc(); t1 = R.alloc(); t2 = R.alloc(); t3 = R.alloc()
    A(f"s_sub_u32 {s(sLw)}, {s(sW)}, 4")
    A(f"v_lshrrev_b32 {v(t0)}, 3, v0")
    A(f"v_and_b32 {v(t1)}, 7, v0")
    A(f"v_bfe_u32 {v(t2)}, v0, 4, 1")
    for jj in range(2):
        A(f"v_or_b32 {v(t3)}, {jj<<1}, {v(t2)}")
        A(f"v_lshlrev_b32 {v(t3)}, 1, {v(t3)}")
        A(f"v_xor_b32 {v(t3)}, {v(t3)}, {v(t1)}")
        A(f"v_lshlrev_b32 {v(t3)}, 4, {v(t3)}")
        A(f"v_lshl_add_u32 {v(voW[jj])}, {v(t0)}, 10, {v(t3)}")
        A(f"s_lshl_b32 {s(sT0)}, {s(sLw)}, 14")
        A(f"s_add_u32 {s(sT0)}, {s(sT0)}, {jj*8192}")
        A(f"v_add_u32 {v(voW[jj])}, {s(sT0)}, {v(voW[jj])}")
    A(f"v_xor_b32 {v(t1)}, {v(t1)}, {v(t0)}")
    A(f"v_lshlrev_b32 {v(t1)}, 4, {v(t1)}")
    for jj in range(2):
        A(f"s_lshl_b32 {s(sT0)}, {s(sLw)}, 4")
        A(f"s_add_u32 {s(sT0)}, {s(sT0)}, {8*jj}")
        A(f"v_add_u32 {v(t2)}, {s(sT0)}, {v(t0)}")
        A(f"v_mul_u32_u24 {v(voP[jj])}, 1792, {v(t2)}")
        A(f"v_add_u32 {v(voP[jj])}, {v(voP[jj])}, {v(t1)}")
        A(f"v_lshl_add_u32 {v(voX[jj])}, {v(t2)}, 10, {v(t1)}")
    sWc, sPb, sL, sTmp, sXb = 30, 31, 52, 53, 54
    A(f"s_lshl_b32 {s(sWc)}, {s(sDB)}, 7")
    A(f"s_mul_i32 {s(sPb)}, {s(sTB)}, {64*1792}")
    A(f"s_lshl_b32 {s(sL)}, {s(sLw)}, 11")
    A(f"s_lshl_b32 {s(sXb)}, {s(sTB)}, 16")
    A(f"s_lshl_b32 {s(sTmp)}, {s(sDB)}, 7")
    A(f"s_add_u32 {s(sXb)}, {s(sXb)}, {s(sTmp)}")
    A("s_waitcnt lgkmcnt(0)")
    make_srd(A, SRD_W, 6, FH * D * 2)
    make_srd(A, SRD_P, 4, (WS_P1 - WS_P0) + S * FH * 2, off=WS_P0)
    make_srd(A, SRD_X, 4, S * D * 2, off=WS_X1)
    def issue(st):
        slot = st % NS
        A(f"s_add_u32 {s(sTmp)}, {s(sWc)}, {st*64*1024}")
        for jj in range(2):
            A(f"s_add_u32 m0, {s(sL)}, {slot*SLOT + jj*1024}")
            A(f"buffer_load_dwordx4 {v(voW[jj])}, {s(SRD_W,4)}, {s(sTmp)} offen lds")
        for h in range(split):
            A(f"s_add_u32 {s(sTmp)}, {s(sPb)}, {st*128 + h*(WS_P1-WS_P0)}")
            for jj in range(2):
                A(f"s_add_u32 m0, {s(sL)}, {slot*SLOT + W_B + h*P_B + jj*1024}")
                A(f"buffer_load_dwordx4 {v(voP[jj])}, {s(SRD_P,4)}, {s(sTmp)} offen lds")
        if st == NST - 1:
            for jj in range(2):
                A(f"s_add_u32 m0, {s(sL)}, {X_OFF + jj*1024}")
                A(f"buffer_load_dwordx4 {v(voX[jj])}, {s(SRD_X,4)}, {s(sXb)} offen lds")
    loader_pipeline(A, NST, NS, issue, lambda st: nld + (2 if st == NST - 1 else 0))
    A("s_barrier")
    A("s_endpgm")
    A.label(f"{name}_end")
    A("s_endpgm")
    return dict(name=name, grid=NWG, block=512, lds=LDS, vgpr=max(nv, R.hi), sgpr=96)
```

```python
from gemm_util import *

def gen_kz(A, name="kz_kernel", NS=6, stamps=False):
    NWG = 256
    GS = 960; SLOT = 16 * GS; W_OFF = 65536
    LDS = W_OFF + NS * SLOT
    NST = 16
    WROW = 1792 * 2
    A.barrier_state()
    A.raw(kernel_header(name))
    ST = Stamps(A, on=stamps)
    sW, sRB, sCC, sT0, sT1, sT2, sTH, sFH, sK, sLw = 20, 21, 22, 23, 24, 25, 26, 27, 28, 29
    SRD_H, SRD_W, SRD_Z1, SRD_Z2, SRD_S = 32, 36, 40, 44, 48
    A(f"s_cmp_ge_u32 s2, {NWG}")
    A(f"s_cbranch_scc1 {name}_end")
    ST.stamp()
    load_ptr(A, 4, "ws"); load_ptr(A, 6, "win")
    A("v_lshrrev_b32 v1, 6, v0")
    A("v_and_b32 v0, 63, v0")
    A(f"v_readfirstlane_b32 {s(sW)}, v1")
    A(f"s_and_b32 {s(sT0)}, s2, 7")
    A(f"s_lshr_b32 {s(sT1)}, s2, 3")
    A(f"s_lshr_b32 {s(sRB)}, {s(sT0)}, 1")
    A(f"s_lshl_b32 {s(sRB)}, {s(sRB)}, 3")
    A(f"s_and_b32 {s(sT2)}, {s(sT1)}, 7")
    A(f"s_add_u32 {s(sRB)}, {s(sRB)}, {s(sT2)}")
    A(f"s_and_b32 {s(sCC)}, {s(sT0)}, 1")
    A(f"s_lshl_b32 {s(sCC)}, {s(sCC)}, 2")
    A(f"s_lshr_b32 {s(sT1)}, {s(sT1)}, 3")
    A(f"s_add_u32 {s(sCC)}, {s(sCC)}, {s(sT1)}")
    A(f"s_cmp_ge_u32 {s(sW)}, 4")
    A(f"s_cbranch_scc1 {name}_loader")
    R = RegAlloc(2)
    vq = R.alloc(); vi = R.alloc(); vc2 = R.alloc()
    vtb = R.alloc(8, 4); vt = [vtb + k for k in range(8)]
    vH = [[R.alloc() for _ in range(2)] for _ in range(2)]
    vWa = [R.alloc() for _ in range(2)]; vWb = [R.alloc() for _ in range(2)]
    acc = [[R.alloc(4) for _ in range(7)] for _ in range(2)]
    FH_ = [[R.alloc(4) for _ in range(2)] for _ in range(2)]
    FW = [[R.alloc(4) for _ in range(4)] for _ in range(2)]
    z2p = [R.alloc(2) for _ in range(7)]
    st1 = [R.alloc() for _ in range(2)]; st2 = [R.alloc() for _ in range(2)]
    TILES = [(0, 0), (0, 1), (1, 0), (1, 1), (2, 0), (2, 1), (3, 0)]
    A(f"v_lshrrev_b32 {v(vq)}, 4, v0")
    A(f"v_and_b32 {v(vi)}, 15, v0")
    A(f"v_mov_b32 {v(vc2)}, {fhex(GELU_C2)}")
    A(f"s_and_b32 {s(sTH)}, {s(sW)}, 1")
    A(f"s_lshr_b32 {s(sFH)}, {s(sW)}, 1")
    A(f"v_and_b32 {v(vt[0])}, 7, {v(vi)}")
    for hf in range(2):
        A(f"s_xor_b32 {s(sT0)}, {s(sFH)}, {hf}")
        A(f"s_lshl_b32 {s(sT1)}, {s(sTH)}, 1")
        A(f"s_add_u32 {s(sT0)}, {s(sT0)}, {s(sT1)}")
        A(f"s_lshl_b32 {s(sT0)}, {s(sT0)}, 11")
        for ks in range(2):
            A(f"v_add_u32 {v(vt[1])}, {4*ks}, {v(vq)}")
            A(f"v_xor_b32 {v(vt[1])}, {v(vt[1])}, {v(vt[0])}")
            A(f"v_lshlrev_b32 {v(vt[1])}, 4, {v(vt[1])}")
            A(f"v_lshl_add_u32 {v(vH[hf][ks])}, {v(vi)}, 7, {v(vt[1])}")
            A(f"v_add_u32 {v(vH[hf][ks])}, {s(sT0)}, {v(vH[hf][ks])}")
    A(f"v_mul_u32_u24 {v(vt[1])}, {2*GS}, {v(vq)}")
    A(f"v_lshrrev_b32 {v(vt[2])}, 2, {v(vi)}")
    A(f"v_mul_u32_u24 {v(vt[2])}, 224, {v(vt[2])}")
    A(f"v_add_u32 {v(vt[1])}, {v(vt[1])}, {v(vt[2])}")
    A(f"v_and_b32 {v(vt[2])}, 3, {v(vi)}")
    A(f"v_lshl_add_u32 {v(vt[1])}, {v(vt[2])}, 3, {v(vt[1])}")
    A(f"s_lshl_b32 {s(sT0)}, {s(sFH)}, 7")
    A(f"s_add_u32 {s(sT0)}, {s(sT0)}, {W_OFF}")
    A(f"v_add_u32 {v(vWa[0])}, {s(sT0)}, {v(vt[1])}")
    A(f"v_add_u32 {v(vWb[0])}, {W_OFF+96}, {v(vt[1])}")
    A(f"v_add_u32 {v(vWa[1])}, {3*SLOT}, {v(vWa[0])}")
    A(f"v_add_u32 {v(vWb[1])}, {3*SLOT}, {v(vWb[0])}")
    for h in range(2):
        for tl in range(7):
            for r in range(4): A(f"v_mov_b32 {v(acc[h][tl]+r)}, 0")
    A("s_waitcnt lgkmcnt(0)")
    make_srd(A, SRD_S, 4, S * 128, off=WS_STAT)
    make_srd(A, SRD_Z1, 4, S * FH * 2, off=WS_Z1)
    make_srd(A, SRD_Z2, 4, S * FH * 2, off=WS_Z2T)
    def reads(st, ks, buf):
        kc = st & 7; slot = st % NS; sg = slot // 3; so = (slot % 3) * SLOT
        o = []
        for hf in range(2): o.append(f"ds_read_b128 {v(FH_[buf][hf],4)}, {v(vH[hf][ks])} offset:{kc*8192}")
        for wf in range(4):
            for p in range(2):
                base = vWa[sg] if wf < 3 else vWb[sg]
                off = so + ks * 8 * GS + p * GS + (wf * 32 if wf < 3 else 0)
                o.append(f"ds_read_b64_tr_b16 {v(FW[buf][wf]+2*p,2)}, {v(base)} offset:{off}")
        return o
    def mfmas(st, ks, buf):
        h = st >> 3
        return [f"v_mfma_f32_16x16x32_bf16 {v(acc[h][tl],4)}, {v(FW[buf][wf],4)}, {v(FH_[buf][hf],4)}, {v(acc[h][tl],4)}" for tl, (wf, hf) in enumerate(TILES)]
    def z2_part1():
        ST.stamp()
        for hf in range(2):
            A(f"v_mov_b32 {v(st1[hf])}, 0"); A(f"v_mov_b32 {v(st2[hf])}, 0")
        A(f"s_mov_b32 {s(sT0)}, 0xffff0000")
        for tl, (wf, hf) in enumerate(TILES):
            ac = acc[0][tl]
            for x in gelu4([ac + r for r in range(4)], vt[:4], vc2): A(x)
            for h in range(2):
                A(f"v_cvt_pk_bf16_f32 {v(z2p[tl]+h)}, {v(ac+2*h)}, {v(ac+2*h+1)}")
            for h in range(2):
                A(f"v_lshlrev_b32 {v(vt[0])}, 16, {v(z2p[tl]+h)}")
                A(f"v_and_b32 {v(vt[1])}, {s(sT0)}, {v(z2p[tl]+h)}")
                A(f"v_add_f32 {v(st1[hf])}, {v(st1[hf])}, {v(vt[0])}")
                A(f"v_fmac_f32 {v(st2[hf])}, {v(vt[0])}, {v(vt[0])}")
                A(f"v_add_f32 {v(st1[hf])}, {v(st1[hf])}, {v(vt[1])}")
                A(f"v_fmac_f32 {v(st2[hf])}, {v(vt[1])}, {v(vt[1])}")
        xor16_32_sum(A, [st1[0], st2[0], st1[1], st2[1]], vt[0])
        A(f"v_cmp_eq_u32 vcc, 1, {v(vq)}")
        A(f"v_cndmask_b32 {v(vt[2])}, {v(st1[0])}, {v(st1[1])}, vcc")
        A(f"v_cndmask_b32 {v(vt[3])}, {v(st2[0])}, {v(st2[1])}, vcc")
        for r in (vt[2], vt[3]):
            A(f"v_cmp_eq_u32 s[30:31], -1, {v(r)}")
            A(f"v_mov_b32 {v(vt[4])}, 0x7fc00000")
            A(f"v_cndmask_b32 {v(r)}, {v(r)}, {v(vt[4])}, s[30:31]")
        A(f"v_xor_b32 {v(vt[0])}, {s(sFH)}, {v(vq)}")
        A(f"v_and_b32 {v(vt[0])}, 1, {v(vt[0])}")
        A(f"s_lshl_b32 {s(sT0)}, {s(sTH)}, 1")
        A(f"v_add_u32 {v(vt[0])}, {s(sT0)}, {v(vt[0])}")
        A(f"v_lshl_add_u32 {v(vt[0])}, {v(vt[0])}, 4, {v(vi)}")
        A(f"s_lshl_b32 {s(sT0)}, {s(sRB)}, 6")
        A(f"v_add_u32 {v(vt[0])}, {s(sT0)}, {v(vt[0])}")
        A(f"v_lshlrev_b32 {v(vt[0])}, 7, {v(vt[0])}")
        A(f"s_lshl_b32 {s(sT0)}, {s(sCC)}, 1")
        A(f"s_add_u32 {s(sT0)}, {s(sT0)}, {s(sFH)}")
        A(f"s_lshl_b32 {s(sT0)}, {s(sT0)}, 3")
        A(f"v_cmp_gt_u32 vcc, 2, {v(vq)}")
        A(f"s_and_saveexec_b64 s[30:31], vcc")
        A(f"buffer_store_dwordx2 {v(vt[2],2)}, {v(vt[0])}, {s(SRD_S,4)}, {s(sT0)} offen sc0 sc1")
        A(f"s_mov_b64 exec, s[30:31]")
        ST.stamp()
    assert vt[2] % 2 == 0 and vt[3] == vt[2] + 1
    def hook(st):
        if st == 7: z2_part1()
    consumer_pipeline(A, NST, reads, mfmas, hook=hook)
    ST.stamp()
    A("s_barrier")
    vLa = [vH[0][0], vH[1][0]]; vL4 = vH[0][1]
    for hf in range(2):
        A(f"s_xor_b32 {s(sT0)}, {s(sFH)}, {hf}")
        A(f"s_lshl_b32 {s(sT1)}, {s(sTH)}, 1")
        A(f"s_add_u32 {s(sT0)}, {s(sT0)}, {s(sT1)}")
        A(f"s_mul_i32 {s(sT0)}, {s(sT0)}, {16*224}")
        A(f"v_mul_u32_u24 {v(vLa[hf])}, 224, {v(vi)}")
        A(f"v_lshl_add_u32 {v(vLa[hf])}, {v(vq)}, 3, {v(vLa[hf])}")
        A(f"v_add_u32 {v(vLa[hf])}, {s(sT0)}, {v(vLa[hf])}")
        if hf == 0: A(f"v_add_u32 {v(vL4)}, 96, {v(vLa[0])}")
        A(f"s_lshl_b32 {s(sT0)}, {s(sFH)}, 7")
        A(f"v_add_u32 {v(vLa[hf])}, {s(sT0)}, {v(vLa[hf])}")
    def tile_write(tl, src, base_off):
        wf, hf = TILES[tl]
        if wf < 3: A(f"ds_write_b64 {v(vLa[hf])}, {v(src,2)} offset:{base_off + wf*32}")
        else: A(f"ds_write_b64 {v(vL4)}, {v(src,2)} offset:{base_off}")
    Z1_L = 0; Z2_L = 16384
    for tl in range(7):
        ac = acc[1][tl]
        for x in gelu4([ac + r for r in range(4)], vt[:4], vc2): A(x)
        for h in range(2): A(f"v_cvt_pk_bf16_f32 {v(ac+h)}, {v(ac+2*h)}, {v(ac+2*h+1)}")
        tile_write(tl, ac, Z1_L)
    pol = [FW[0][0], FW[0][1], FW[0][2], FW[0][3]]
    vrow = [vt[4], vt[5]]
    for hf in range(2):
        A(f"s_xor_b32 {s(sT0)}, {s(sFH)}, {hf}")
        A(f"s_lshl_b32 {s(sT1)}, {s(sTH)}, 1")
        A(f"s_add_u32 {s(sT0)}, {s(sT0)}, {s(sT1)}")
        A(f"s_lshl_b32 {s(sT0)}, {s(sT0)}, 4")
        A(f"s_lshl_b32 {s(sT1)}, {s(sRB)}, 6")
        A(f"s_add_u32 {s(sT0)}, {s(sT0)}, {s(sT1)}")
        A(f"v_add_u32 {v(vrow[hf])}, {s(sT0)}, {v(vi)}")
        A(f"v_lshlrev_b32 {v(vrow[hf])}, 7, {v(vrow[hf])}")
        A(f"v_lshl_add_u32 {v(vrow[hf])}, {v(vq)}, 5, {v(vrow[hf])}")
    A(f"s_mov_b32 {s(sK)}, 0")
    A.label(f"{name}_poll")
    for hf in range(2):
        for u in range(2):
            A(f"buffer_load_dwordx4 {v(pol[hf*2+u],4)}, {v(vrow[hf])}, {s(SRD_S,4)}, 0 offen offset:{u*16} sc0 sc1")
    A("s_waitcnt vmcnt(0)")
    A(f"v_max_u32 {v(vt[0])}, {v(pol[0])}, {v(pol[0]+1)}")
    for b_ in range(4):
        for r in range(4):
            if b_ == 0 and r < 2: continue
            A(f"v_max_u32 {v(vt[0])}, {v(vt[0])}, {v(pol[b_]+r)}")
    A(f"v_cmp_eq_u32 vcc, -1, {v(vt[0])}")
    A(f"s_add_u32 {s(sK)}, {s(sK)}, 1")
    A(f"s_cmp_ge_u32 {s(sK)}, 0x40000")
    A(f"s_cbranch_scc1 {name}_polled")
    A(f"s_cmp_eq_u64 vcc, 0")
    A(f"s_cbranch_scc0 {name}_poll")
    A.label(f"{name}_polled")
    mean = [vt[0], vt[1]]; rstd = [vt[2], vt[3]]
    for hf in range(2):
        p0, p1 = pol[hf*2], pol[hf*2+1]
        A(f"v_add_f32 {v(mean[hf])}, {v(p0)}, {v(p0+2)}")
        A(f"v_add_f32 {v(rstd[hf])}, {v(p0+1)}, {v(p0+3)}")
        A(f"v_add_f32 {v(mean[hf])}, {v(mean[hf])}, {v(p1)}")
        A(f"v_add_f32 {v(rstd[hf])}, {v(rstd[hf])}, {v(p1+1)}")
        A(f"v_add_f32 {v(mean[hf])}, {v(mean[hf])}, {v(p1+2)}")
        A(f"v_add_f32 {v(rstd[hf])}, {v(rstd[hf])}, {v(p1+3)}")
    xor16_32_sum(A, mean + rstd, vt[6])
    for hf in range(2):
        A(f"v_mul_f32 {v(mean[hf])}, {fhex(1.0/896)}, {v(mean[hf])}")
        A(f"v_mul_f32 {v(rstd[hf])}, {fhex(1.0/896)}, {v(rstd[hf])}")
        A(f"v_fma_f32 {v(rstd[hf])}, -{v(mean[hf])}, {v(mean[hf])}, {v(rstd[hf])}")
        A(f"v_max_f32 {v(rstd[hf])}, 0, {v(rstd[hf])}")
        A(f"v_add_f32 {v(rstd[hf])}, 0x3727c5ac, {v(rstd[hf])}")
        A(f"v_rsq_f32 {v(rstd[hf])}, {v(rstd[hf])}")
        A(f"v_mul_f32 {v(mean[hf])}, {v(mean[hf])}, {v(rstd[hf])}")
        A(f"v_sub_f32 {v(mean[hf])}, 0, {v(mean[hf])}")
    A(f"s_mov_b32 {s(sT0)}, 0xffff0000")
    for tl, (wf, hf) in enumerate(TILES):
        z = z2p[tl]
        for h in range(2):
            A(f"v_lshlrev_b32 {v(vt[4])}, 16, {v(z+h)}")
            A(f"v_and_b32 {v(vt[5])}, {s(sT0)}, {v(z+h)}")
            A(f"v_fma_f32 {v(vt[4])}, {v(vt[4])}, {v(rstd[hf])}, {v(mean[hf])}")
            A(f"v_fma_f32 {v(vt[5])}, {v(vt[5])}, {v(rstd[hf])}, {v(mean[hf])}")
            A(f"v_cvt_pk_bf16_f32 {v(z+h)}, {v(vt[4])}, {v(vt[5])}")
        tile_write(tl, z, Z2_L)
    A("s_waitcnt lgkmcnt(0)")
    A("s_barrier")
    ST.stamp()
    buf = [FW[1][0], FW[1][1], FW[1][2], FW[1][3]]
    for j in range(4):
        A(f"v_add_u32 {v(vt[0])}, {64*j}, v0")
        A(f"s_mul_i32 {s(sT0)}, {s(sW)}, {16*224}")
        A(f"v_lshlrev_b32 {v(vt[1])}, 4, {v(vt[0])}")
        A(f"v_add_u32 {v(vt[1])}, {s(sT0)}, {v(vt[1])}")
        A(f"ds_read_b128 {v(buf[j],4)}, {v(vt[1])} offset:{Z1_L}")
        div14(A, vt[2], vt[3], vt[0], vt[4])
        A(f"v_mul_u32_u24 {v(vt[2])}, 1792, {v(vt[2])}")
        A(f"v_lshl_add_u32 {v(FH_[0][0]+j)}, {v(vt[3])}, 4, {v(vt[2])}")
        if j == 3:
            A(f"v_cmp_lt_u32 vcc, 31, v0")
            A(f"v_mov_b32 {v(vt[4])}, 0x7fffffff")
            A(f"v_cndmask_b32 {v(FH_[0][0]+j)}, {v(FH_[0][0]+j)}, {v(vt[4])}, vcc")
    A(f"s_lshl_b32 {s(sT0)}, {s(sRB)}, 2")
    A(f"s_add_u32 {s(sT0)}, {s(sT0)}, {s(sW)}")
    A(f"s_mul_i32 {s(sT0)}, {s(sT0)}, {16*1792}")
    A(f"s_mul_i32 {s(sT1)}, {s(sCC)}, 224")
    A(f"s_add_u32 {s(sT0)}, {s(sT0)}, {s(sT1)}")
    A(f"v_lshrrev_b32 {v(vt[5])}, 2, {v(vi)}")
    A(f"v_lshl_add_u32 {v(vt[5])}, {v(vq)}, 3, {v(vt[5])}")
    A(f"v_mul_u32_u24 {v(vt[5])}, 224, {v(vt[5])}")
    A(f"v_and_b32 {v(vt[6])}, 3, {v(vi)}")
    A(f"v_lshl_add_u32 {v(vt[5])}, {v(vt[6])}, 3, {v(vt[5])}")
    A(f"s_lshl_b32 {s(sT1)}, {s(sW)}, 5")
    A(f"v_add_u32 {v(vt[5])}, {s(sT1)}, {v(vt[5])}")
    zb = [FW[0][0], FW[0][1], FW[0][2], FW[0][3]]
    for k2 in range(2):
        for u in range(2):
            for p in range(2):
                A(f"ds_read_b64_tr_b16 {v(zb[k2*2+u]+2*p,2)}, {v(vt[5])} offset:{Z2_L + k2*128 + (32*u+4*p)*224}")
    A(f"v_lshlrev_b32 {v(vt[6])}, 12, {v(vi)}")
    A(f"v_lshl_add_u32 {v(vt[6])}, {v(vq)}, 4, {v(vt[6])}")
    A(f"s_mul_i32 {s(sT1)}, {s(sCC)}, {112*4096}")
    A(f"s_lshl_b32 {s(sT2)}, {s(sW)}, 16")
    A(f"s_add_u32 {s(sT1)}, {s(sT1)}, {s(sT2)}")
    A(f"s_lshl_b32 {s(sT2)}, {s(sRB)}, 7")
    A(f"s_add_u32 {s(sT1)}, {s(sT1)}, {s(sT2)}")
    A("s_waitcnt lgkmcnt(8)")
    for j in range(4):
        A(f"buffer_store_dwordx4 {v(buf[j],4)}, {v(FH_[0][0]+j)}, {s(SRD_Z1,4)}, {s(sT0)} offen")
    A("s_waitcnt lgkmcnt(0)")
    for u in range(2):
        A(f"buffer_store_dwordx4 {v(zb[u],4)}, {v(vt[6])}, {s(SRD_Z2,4)}, {s(sT1)} offen offset:{u*64}")
    A(f"s_cmp_eq_u32 {s(sW)}, 3")
    A(f"s_cbranch_scc1 {name}_cdone")
    A(f"s_add_u32 {s(sT1)}, {s(sT1)}, {4*16*4096}")
    for u in range(2):
        A(f"buffer_store_dwordx4 {v(zb[2+u],4)}, {v(vt[6])}, {s(SRD_Z2,4)}, {s(sT1)} offen offset:{u*64}")
    A.label(f"{name}_cdone")
    if stamps:
        ST.stamp(); A("s_waitcnt vmcnt(0)"); ST.stamp(); ST.flush(4, vt[0] + (vt[0] & 1))
    A("s_endpgm")
    nv = R.hi
    A.label(f"{name}_loader")
    R = RegAlloc(2)
    voW = [R.alloc() for _ in range(4)]; voH = [R.alloc() for _ in range(2)]
    t0 = R.alloc(); t1 = R.alloc(); t2 = R.alloc(); t3 = R.alloc()
    A(f"s_sub_u32 {s(sLw)}, {s(sW)}, 4")
    div14(A, t0, t1, 0, t2)
    A(f"v_mul_u32_u24 {v(t0)}, {WROW}, {v(t0)}")
    A(f"v_lshl_add_u32 {v(t0)}, {v(t1)}, 4, {v(t0)}")
    A(f"s_mul_i32 {s(sT0)}, {s(sLw)}, {16*WROW}")
    A(f"v_add_u32 {v(t0)}, {s(sT0)}, {v(t0)}")
    for g in range(4): A(f"v_add_u32 {v(voW[g])}, {4*g*WROW}, {v(t0)}")
    A(f"v_lshrrev_b32 {v(t0)}, 3, v0")
    A(f"v_and_b32 {v(t1)}, 7, v0")
    A(f"v_xor_b32 {v(t1)}, {v(t1)}, {v(t0)}")
    A(f"v_lshlrev_b32 {v(t1)}, 4, {v(t1)}")
    A(f"v_lshl_add_u32 {v(t0)}, {v(t0)}, 10, {v(t1)}")
    A(f"s_lshl_b32 {s(sT0)}, {s(sLw)}, 14")
    A(f"v_add_u32 {v(voH[0])}, {s(sT0)}, {v(t0)}")
    A(f"v_add_u32 {v(voH[1])}, 8192, {v(voH[0])}")
    sWc, sHb, sLW, sLH, sTmp = 30, 31, 52, 53, 54
    A(f"s_mul_i32 {s(sWc)}, {s(sCC)}, 224")
    A(f"s_lshl_b32 {s(sHb)}, {s(sRB)}, 16")
    A(f"s_mul_i32 {s(sLW)}, {s(sLw)}, {4*GS}")
    A(f"s_lshl_b32 {s(sLH)}, {s(sLw)}, 11")
    A("s_waitcnt lgkmcnt(0)")
    make_srd(A, SRD_W, 6, 512 * WROW)
    make_srd(A, SRD_H, 4, S * D * 2, off=WS_H2)
    def issue(st):
        half, kc = st >> 3, st & 7; slot = st % NS
        A(f"s_add_u32 {s(sTmp)}, {s(sWc)}, {kc*64*WROW + (1792 if half == 0 else 0)}")
        A("s_mov_b32 exec_hi, 0x00ffffff")
        for g in range(4):
            A(f"s_add_u32 m0, {s(sLW)}, {W_OFF + slot*SLOT + g*GS}")
            A(f"buffer_load_dwordx4 {v(voW[g])}, {s(SRD_W,4)}, {s(sTmp)} offen lds")
        if half == 0:
            A("s_mov_b32 exec_hi, -1")
            A(f"s_add_u32 {s(sTmp)}, {s(sHb)}, {kc*128}")
            for j in range(2):
                A(f"s_add_u32 m0, {s(sLH)}, {kc*8192 + j*1024}")
                A(f"buffer_load_dwordx4 {v(voH[j])}, {s(SRD_H,4)}, {s(sTmp)} offen lds")
    loader_pipeline(A, NST, NS, issue, lambda st: 6 if st < 8 else 4)
    A("s_endpgm")
    A.label(f"{name}_end")
    A("s_endpgm")
    return dict(name=name, grid=NWG, block=512, lds=LDS, vgpr=max(nv, R.hi), sgpr=96)
```

```python
import sys
from kg import assemble, gen_kg
from ka import gen_ka
gens = [gen_ka]
try:
    from kb import gen_kb; gens.append(gen_kb)
    from kz import gen_kz; gens.append(gen_kz)
    gens.append(gen_kg)
    from ko import gen_ko; gens.append(gen_ko)
except ImportError as e:
    print("partial build:", e)
txt = assemble(gens)
out = sys.argv[1] if len(sys.argv) > 1 else "full.s"
open(out, "w").write(txt)
print(out, len(txt.splitlines()), "lines")
```

```python
import sys
from kg import assemble, gen_kg
from ka import gen_ka
from kb import gen_kb
from kz import gen_kz
from ko import gen_ko
from asmgen import *
def gen_empty(A, name="empty_kernel", grid=256, block=256):
    A.barrier_state(); A.raw(kernel_header(name)); A("s_endpgm")
    return dict(name=name, grid=grid, block=block, lds=0, vgpr=8, sgpr=16)
gens = [gen_ka, gen_kb, gen_kz, gen_kg, gen_ko, gen_empty]
base = ["ka_kernel", "kb_kernel", "kz_kernel", "kg_kernel", "ko_kernel"]
V = {
 "v_base": base,
 "v_e4": base + ["empty_kernel"] * 4,
 "v_e4pre": ["empty_kernel"] * 4 + base,
 "v_dupA": ["ka_kernel", "ka_kernel", "kb_kernel", "kb_kernel"] + base[2:],
 "v_dupB": base[:2] + ["kz_kernel", "kz_kernel", "kg_kernel", "kg_kernel", "ko_kernel", "ko_kernel"],
}
for n, l in V.items():
    open(f"dev/{n}.s", "w").write(assemble(gens, l))
```

```python
from asmgen import *
S, D, FH = 2048, 512, 896
KA = dict(x=0, sre=8, sim=16, hre=24, him=32, bx=40, win=48, wsp=56, bsp=64, wout=72, c=80, wmod=88, out=96, dbg=104, ws=112)
MB = 1 << 20
WS_MOD = 0
WS_STAT = 0x10000
WS_T = 4 * MB
WS_X1 = 8 * MB
WS_H2 = 12 * MB
WS_Z1 = 16 * MB
WS_Z2T = 20 * MB
WS_P0 = 24 * MB
WS_P1 = 28 * MB

def load_ptr(A, sreg, name):
    A(f"s_load_dwordx2 {s(sreg,2)}, s[0:1], {KA[name]}")

def make_srd(A, sd, sp, nbytes, off=None, off_s=None):
    if off is None and off_s is None:
        A(f"s_mov_b32 {s(sd)}, {s(sp)}")
        A(f"s_and_b32 {s(sd+1)}, {s(sp+1)}, 0xffff")
    else:
        first = True
        if off is not None:
            A(f"s_add_u32 {s(sd)}, {s(sp)}, {off}")
            A(f"s_addc_u32 {s(sd+1)}, {s(sp+1)}, 0")
            first = False
        if off_s is not None:
            src = sp if first else sd
            A(f"s_add_u32 {s(sd)}, {s(src)}, {s(off_s)}")
            A(f"s_addc_u32 {s(sd+1)}, {s(src+1)}, 0")
        A(f"s_and_b32 {s(sd+1)}, {s(sd+1)}, 0xffff")
    A(f"s_mov_b32 {s(sd+2)}, {nbytes}")
    A(f"s_mov_b32 {s(sd+3)}, 0x20000")

WS_STAMP = 64 * MB
class Stamps:
    def __init__(self, A, base=70, on=True, kidx=0): self.A = A; self.base = base; self.n = 0; self.on = on; self.kidx = kidx
    def cstamp(self):
        if not self.on: return
        self.A(f"s_memtime {s(self.base + 2*self.n, 2)}"); self.A("s_waitcnt lgkmcnt(0)"); self.n += 1
    def stamp(self):
        if not self.on: return
        self.A(f"s_memrealtime {s(self.base + 2*self.n, 2)}"); self.A("s_waitcnt lgkmcnt(0)"); self.n += 1
    def flush(self, ws_pair, vtmp, srd=88, slot=0):
        if not self.on: return
        A = self.A
        A("s_waitcnt lgkmcnt(0)")
        lab = A.newlabel("Lst")
        A("s_cmp_lg_u32 s20, 0")
        A(f"s_cbranch_scc1 {lab}")
        make_srd(A, srd, ws_pair, 1 << 20, off=WS_STAMP + self.kidx * (1 << 20))
        A(f"s_lshl_b32 s3, s2, 8")
        A(f"s_add_u32 s3, s3, {slot*64}")
        A(f"v_mov_b32 {v(vtmp)}, s3")
        for k in range(self.n):
            A(f"v_mov_b32 {v(vtmp+2)}, {s(self.base+2*k)}")
            A(f"v_mov_b32 {v(vtmp+3)}, {s(self.base+2*k+1)}")
            A(f"buffer_store_dwordx2 {v(vtmp+2,2)}, {v(vtmp)}, {s(srd,4)}, 0 offen offset:{k*8}")
            A("s_nop 1")
        A.label(lab)
```

```python
from common import *
from gemm_util import fhex
from tables import TAB_OFF
NMOD = 96

def getpc_sym(A, sd, sym):
    A(f"s_getpc_b64 {s(sd,2)}")
    A(f"s_add_u32 {s(sd)}, {s(sd)}, {sym}@rel32@lo+4")
    A(f"s_addc_u32 {s(sd+1)}, {s(sd+1)}, {sym}@rel32@hi+12")

def gen_ka(A, name="ka_kernel", stamps=False, prefetch=True):
    NFFT = 256; NPF = 16 if prefetch else 0; NWG = NFFT + NMOD + NPF
    A.barrier_state(); A.raw(kernel_header(name))
    ST = Stamps(A, on=stamps, kidx=0)
    A(f"s_cmp_ge_u32 s2, {NWG}")
    A(f"s_cbranch_scc1 {name}_end")
    ST.stamp()
    A(f"s_cmp_ge_u32 s2, {NFFT}")
    A(f"s_cbranch_scc1 {name}_mod")
    load_ptr(A, 4, "x"); load_ptr(A, 6, "ws")
    getpc_sym(A, 8, "fft_tables")
    A("s_and_b32 s10, s2, 7")
    A("s_bfe_u32 s11, s2, 0x20003")
    A("s_lshl2_add_u32 s10, s10, s11")
    A("s_lshl_b32 s10, s10, 10")
    A("s_lshr_b32 s11, s2, 5")
    A("s_lshl_b32 s11, s11, 7")
    R = RegAlloc(1)
    voff = R.alloc(); vown = R.alloc(); vf = R.alloc(); vi = R.alloc(); vq = R.alloc(); vt0 = R.alloc(); vt1 = R.alloc()
    vS = R.alloc(); vQ = R.alloc(); vtr = R.alloc(); vst = R.alloc(); vpf = R.alloc()
    xr = [R.alloc(4) for _ in range(8)]; xo = R.alloc(4)
    Ff = [[R.alloc(4) for _ in range(2)] for _ in range(2)]
    Af = [R.alloc(4) for _ in range(2)]
    acc = [R.alloc(4) for _ in range(2)]
    tmp = R.alloc(8, 4)
    A(f"v_lshrrev_b32 {v(vt0)}, 3, v0")
    A(f"v_and_b32 {v(vt1)}, 7, v0")
    A(f"v_lshlrev_b32 {v(vt0)}, 15, {v(vt0)}")
    A(f"v_lshl_add_u32 {v(voff)}, {v(vt1)}, 4, {v(vt0)}")
    A(f"v_add_u32 {v(voff)}, s10, {v(voff)}")
    A(f"v_add_u32 {v(vown)}, s11, {v(voff)}")
    A(f"v_and_b32 {v(vi)}, 15, v0")
    A(f"v_bfe_u32 {v(vq)}, v0, 4, 2")
    A(f"v_lshrrev_b32 {v(vt0)}, 8, v0")
    A(f"v_lshlrev_b32 {v(vf)}, 12, {v(vt0)}")
    A(f"v_lshl_add_u32 {v(vf)}, {v(vi)}, 7, {v(vf)}")
    A(f"v_lshl_add_u32 {v(vf)}, {v(vq)}, 4, {v(vf)}")
    A("s_waitcnt lgkmcnt(0)")
    A(f"global_load_dwordx4 {v(xo,4)}, {v(vown)}, s[4:5]")
    for it in range(8):
        A(f"global_load_dwordx4 {v(xr[it],4)}, {v(voff)}, s[4:5] offset:{it*128}")
    for nt in range(2):
        for ks in range(2):
            A(f"global_load_dwordx4 {v(Ff[nt][ks],4)}, {v(vf)}, s[8:9] offset:{TAB_OFF['tab_f64'] + nt*2048 + ks*64}")
    npf = 0
    A(f"v_lshlrev_b32 {v(vst)}, 20, {v(vt0)}")
    A(f"v_lshl_add_u32 {v(vst)}, {v(vi)}, 15, {v(vst)}")
    A(f"v_bfe_u32 {v(vt0)}, v0, 6, 2")
    A(f"v_lshl_add_u32 {v(vst)}, {v(vt0)}, 5, {v(vst)}")
    A(f"v_lshl_add_u32 {v(vst)}, {v(vq)}, 3, {v(vst)}")
    A("s_add_u32 s10, s10, s11")
    A(f"s_add_u32 s10, s10, {WS_T}")
    A(f"v_add_u32 {v(vst)}, s10, {v(vst)}")
    A(f"v_lshrrev_b32 {v(vt1)}, 2, {v(vi)}")
    A(f"v_lshl_add_u32 {v(vt1)}, {v(vq)}, 3, {v(vt1)}")
    A(f"v_lshlrev_b32 {v(vtr)}, 7, {v(vt1)}")
    A(f"v_lshl_add_u32 {v(vtr)}, {v(vt0)}, 5, {v(vtr)}")
    A(f"v_and_b32 {v(vt1)}, 3, {v(vi)}")
    A(f"v_lshl_add_u32 {v(vtr)}, {v(vt1)}, 3, {v(vtr)}")
    assert all((L * 9363) >> 17 == L // 14 for L in range(7168))
    A(f"v_mov_b32 {v(vS)}, 0")
    A(f"v_mov_b32 {v(vQ)}, 0")
    A("s_mov_b32 s12, 0x3f803f80")
    for it in range(8):
        A(f"s_waitcnt vmcnt({7 - it + 4})")
        for j in range(4):
            A(f"v_dot2_f32_bf16 {v(vS)}, {v(xr[it]+j)}, s12, {v(vS)}")
            A(f"v_dot2_f32_bf16 {v(vQ)}, {v(xr[it]+j)}, {v(xr[it]+j)}, {v(vQ)}")
    ST.stamp()
    A("s_mov_b32 s12, 0xffff0000")
    for j in range(4):
        A(f"v_lshlrev_b32 {v(tmp+2*j)}, 16, {v(xo+j)}")
        A(f"v_and_b32 {v(tmp+2*j+1)}, s12, {v(xo+j)}")
    for mode in ("quad_perm:[1,0,3,2]", "quad_perm:[2,3,0,1]", "row_half_mirror"):
        A(f"v_add_f32_dpp {v(vS)}, {v(vS)}, {v(vS)} {mode} row_mask:0xf bank_mask:0xf")
        A(f"v_add_f32_dpp {v(vQ)}, {v(vQ)}, {v(vQ)} {mode} row_mask:0xf bank_mask:0xf")
    A(f"v_mul_f32 {v(vS)}, 0x3b000000, {v(vS)}")
    A(f"v_mul_f32 {v(vQ)}, 0x3b000000, {v(vQ)}")
    A(f"v_fma_f32 {v(vQ)}, -{v(vS)}, {v(vS)}, {v(vQ)}")
    A(f"v_max_f32 {v(vQ)}, 0, {v(vQ)}")
    A(f"v_add_f32 {v(vQ)}, 0x3727c5ac, {v(vQ)}")
    A(f"v_rsq_f32 {v(vQ)}, {v(vQ)}")
    A(f"v_lshlrev_b32 {v(vt0)}, 4, v0")
    A(f"v_mul_f32 {v(vS)}, {v(vS)}, {v(vQ)}")
    for j in range(8):
        A(f"v_fma_f32 {v(tmp+j)}, {v(tmp+j)}, {v(vQ)}, -{v(vS)}")
    for j in range(4):
        A(f"v_cvt_pk_bf16_f32 {v(xo+j)}, {v(tmp+2*j)}, {v(tmp+2*j+1)}")
    A(f"ds_write_b128 {v(vt0)}, {v(xo,4)}")
    A("s_waitcnt lgkmcnt(0)")
    A("s_barrier")
    for ks in range(2):
        for p in range(2):
            A(f"ds_read_b64_tr_b16 {v(Af[ks]+2*p,2)}, {v(vtr)} offset:{ks*32*128 + p*4*128}")
    A(f"v_add_u32 {v(vt1)}, {16*32768}, {v(vst)}")
    A("s_waitcnt vmcnt(0) lgkmcnt(2)")
    for nt in range(2):
        A(f"v_mfma_f32_16x16x32_bf16 {v(acc[nt],4)}, {v(Af[0],4)}, {v(Ff[nt][0],4)}, 0")
    A("s_waitcnt lgkmcnt(0)")
    for nt in range(2):
        A(f"v_mfma_f32_16x16x32_bf16 {v(acc[nt],4)}, {v(Af[1],4)}, {v(Ff[nt][1],4)}, {v(acc[nt],4)}")
    for nt in range(2):
        A(f"v_cvt_pk_bf16_f32 {v(tmp+2*nt)}, {v(acc[nt])}, {v(acc[nt]+1)}")
        A(f"v_cvt_pk_bf16_f32 {v(tmp+2*nt+1)}, {v(acc[nt]+2)}, {v(acc[nt]+3)}")
        A(f"global_store_dwordx2 {v(vst if nt == 0 else vt1)}, {v(tmp+2*nt,2)}, s[6:7]")
    if stamps:
        A("v_readfirstlane_b32 s20, v0"); A("s_lshr_b32 s20, s20, 6")
        ST.stamp(); A("s_waitcnt vmcnt(0)"); ST.stamp(); ST.flush(6, tmp)
    A("s_endpgm")
    nv = R.hi
    A.label(f"{name}_mod")
    if prefetch:
        A(f"s_cmp_ge_u32 s2, {NFFT+NMOD}")
        A(f"s_cbranch_scc1 {name}_pf")
    load_ptr(A, 4, "wmod"); load_ptr(A, 8, "c"); load_ptr(A, 6, "ws")
    A(f"s_sub_u32 s10, s2, {NFFT}")
    A("s_lshl_b32 s11, s10, 6")
    R = RegAlloc(1)
    vk = R.alloc(); vt0 = R.alloc(); vt1 = R.alloc(); vc = R.alloc()
    vo = [R.alloc() for _ in range(4)]
    wr = [R.alloc(4) for _ in range(4)]
    cv = [R.alloc() for _ in range(4)]; ch = [R.alloc() for _ in range(4)]
    ac = R.alloc(8, 4); rr = R.alloc(16, 4)
    A(f"v_and_b32 {v(vt0)}, 0x1c0, v0")
    A(f"v_bfe_u32 {v(vt1)}, v0, 2, 4")
    A(f"v_add_u32 {v(vk)}, {v(vt0)}, {v(vt1)}")
    A(f"v_and_b32 {v(vc)}, 3, v0")
    A(f"v_mul_u32_u24 {v(vo[0])}, 6144, {v(vk)}")
    A(f"v_lshl_add_u32 {v(vo[0])}, {v(vc)}, 4, {v(vo[0])}")
    A(f"v_add_u32 {v(vo[0])}, s11, {v(vo[0])}")
    for it in range(1, 4): A(f"v_add_u32 {v(vo[it])}, {it*16*6144}, {v(vo[0])}")
    A(f"v_lshlrev_b32 {v(vk)}, 1, {v(vk)}")
    A("s_waitcnt lgkmcnt(0)")
    for it in range(4): A(f"global_load_ushort {v(cv[it])}, {v(vk)}, s[8:9] offset:{it*32}")
    for it in range(4): A(f"global_load_dwordx4 {v(wr[it],4)}, {v(vo[it])}, s[4:5]")
    for j in range(8): A(f"v_mov_b32 {v(ac+j)}, 0")
    A("s_waitcnt vmcnt(4)" if not prefetch else "s_waitcnt vmcnt(4)")
    for it in range(4): A(f"v_lshlrev_b32 {v(cv[it])}, 16, {v(cv[it])}")
    for it in range(4): A(f"v_mul_f32 {v(ch[it])}, 0xbfb8aa3b, {v(cv[it])}")
    for it in range(4): A(f"v_exp_f32 {v(ch[it])}, {v(ch[it])}")
    for it in range(4): A(f"v_add_f32 {v(ch[it])}, 1.0, {v(ch[it])}")
    for it in range(4): A(f"v_rcp_f32 {v(ch[it])}, {v(ch[it])}")
    for it in range(4): A(f"v_mul_f32 {v(cv[it])}, {v(cv[it])}, {v(ch[it])}")
    for it in range(4): A(f"v_cvt_pk_bf16_f32 {v(cv[it])}, {v(cv[it])}, 0")
    for it in range(4): A(f"v_lshlrev_b32 {v(ch[it])}, 16, {v(cv[it])}")
    for it in range(4):
        A(f"s_waitcnt vmcnt({3-it})")
        for j in range(4):
            A(f"v_dot2_f32_bf16 {v(ac+2*j)}, {v(wr[it]+j)}, {v(cv[it])}, {v(ac+2*j)}")
            A(f"v_dot2_f32_bf16 {v(ac+2*j+1)}, {v(wr[it]+j)}, {v(ch[it])}, {v(ac+2*j+1)}")
    for rot in (4, 8):
        for j in range(8):
            A(f"v_add_f32_dpp {v(ac+j)}, {v(ac+j)}, {v(ac+j)} row_ror:{rot} row_mask:0xf bank_mask:0xf")
    A(f"v_lshrrev_b32 {v(vt0)}, 4, v0")
    A(f"v_lshlrev_b32 {v(vt0)}, 7, {v(vt0)}")
    A(f"v_lshl_add_u32 {v(vt0)}, {v(vc)}, 5, {v(vt0)}")
    A(f"ds_write_b128 {v(vt0)}, {v(ac,4)}")
    A(f"ds_write_b128 {v(vt0)}, {v(ac+4,4)} offset:16")
    if prefetch:
        lab = f"{name}_nocp"
        A("s_cmp_ge_u32 s10, 8")
        A(f"s_cbranch_scc1 {lab}")
        getpc_sym(A, 12, "code_begin")
        A(f"v_lshlrev_b32 {v(vt0)}, 7, v0")
        A(f"v_mov_b32 {v(vt1)}, code_end-code_begin-4")
        A(f"v_min_u32 {v(vt0)}, {v(vt0)}, {v(vt1)}")
        A(f"v_and_b32 {v(vt0)}, -4, {v(vt0)}")
        A(f"global_load_dword {v(vk)}, {v(vt0)}, s[12:13]")
        A.label(lab)
    A("v_readfirstlane_b32 s20, v0")
    A("s_waitcnt lgkmcnt(0)")
    A("s_barrier")
    A("s_cmp_ge_u32 s20, 64")
    A(f"s_cbranch_scc1 {name}_end")
    A(f"v_and_b32 {v(vt1)}, 31, v0")
    A(f"v_lshrrev_b32 {v(vt0)}, 5, v0")
    A(f"v_lshlrev_b32 {v(vt0)}, 11, {v(vt0)}")
    A(f"v_lshl_add_u32 {v(vt0)}, {v(vt1)}, 2, {v(vt0)}")
    for p in range(16): A(f"ds_read_b32 {v(rr+p)}, {v(vt0)} offset:{p*128}")
    A("s_lshr_b32 s11, s10, 4")
    A("s_cmp_eq_u32 s11, 1")
    A("s_cselect_b32 s12, 1.0, 0")
    A("s_cmp_eq_u32 s11, 4")
    A("s_cselect_b32 s12, 1.0, s12")
    A("s_lshl_b32 s11, s10, 7")
    A(f"s_add_u32 s11, s11, {WS_MOD}")
    A(f"v_lshl_add_u32 {v(vt1)}, {v(vt1)}, 2, s11")
    A("s_waitcnt lgkmcnt(0)")
    for st_ in (8, 4, 2, 1):
        for p in range(st_): A(f"v_add_f32 {v(rr+p)}, {v(rr+p)}, {v(rr+p+st_)}")
    A(f"v_mov_b32 {v(rr+1)}, {v(rr)}")
    A(f"v_permlane32_swap_b32 {v(rr)}, {v(rr+1)}")
    A(f"v_add_f32 {v(rr)}, {v(rr)}, {v(rr+1)}")
    A(f"v_cvt_pk_bf16_f32 {v(rr)}, {v(rr)}, {v(rr)}")
    A(f"v_lshlrev_b32 {v(rr)}, 16, {v(rr)}")
    A(f"v_add_f32 {v(rr)}, s12, {v(rr)}")
    A(f"v_cvt_pk_bf16_f32 {v(rr)}, {v(rr)}, {v(rr)}")
    A(f"v_lshlrev_b32 {v(rr)}, 16, {v(rr)}")
    A(f"global_store_dword {v(vt1)}, {v(rr)}, s[6:7]")
    if stamps:
        A("s_mov_b32 s20, 0"); ST.n = 1; ST.stamp(); ST.stamp(); A("s_waitcnt vmcnt(0)"); ST.stamp(); ST.flush(6, ac)
    A("s_endpgm")
    if prefetch:
        A.label(f"{name}_pf")
        load_ptr(A, 4, "win")
        A("s_bfe_u32 s10, s2, 0x10003")
        A("s_mul_i32 s10, s10, 3584")
        A("s_and_b32 s11, s2, 1")
        A("s_mul_i32 s11, s11, 896")
        A("v_add_u32 v1, s10, v0")
        A("v_mov_b32 v6, 896")
        A("s_waitcnt lgkmcnt(0)")
        for it in range(7):
            A("v_mul_u32_u24 v2, 9363, v1")
            A("v_lshrrev_b32 v2, 17, v2")
            A("v_mul_u32_u24 v3, 14, v2")
            A("v_sub_u32 v3, v1, v3")
            A("v_mul_u32_u24 v2, 3584, v2")
            A("v_lshl_add_u32 v2, v3, 7, v2")
            A("v_cmp_lt_u32 vcc, 6, v3")
            A("v_cndmask_b32 v3, 0, v6, vcc")
            A("v_add3_u32 v2, v2, v3, s11")
            A(f"global_load_dword v{8+it}, v2, s[4:5]")
            if it < 6: A("v_add_u32 v1, 512, v1")
    A.label(f"{name}_end")
    A("s_endpgm")
    return dict(name=name, grid=NWG, block=512, lds=8192, vgpr=max(nv, R.hi), sgpr=96 if stamps else 32)

def wave_sum(A, vx, sdst):
    for mode in ("quad_perm:[1,0,3,2]", "quad_perm:[2,3,0,1]", "row_half_mirror", "row_mirror"):
        A(f"v_add_f32_dpp {v(vx)}, {v(vx)}, {v(vx)} {mode} row_mask:0xf bank_mask:0xf")
    A(f"v_add_f32_dpp {v(vx)}, {v(vx)}, {v(vx)} row_bcast:15 row_mask:0xa bank_mask:0xf")
    A(f"v_add_f32_dpp {v(vx)}, {v(vx)}, {v(vx)} row_bcast:31 row_mask:0xc bank_mask:0xf")
    A(f"v_readlane_b32 {s(sdst)}, {v(vx)}, 63")

def gen_kb(A, name="kb_kernel", stamps=False, prefetch=True):
    NW = 264; NWG = NW + (32 if prefetch else 0)
    TS = 1056; V_OFF = 64 * TS; VS = 80; U_OFF = 0; US = 144; Y_OFF = 16384; YS = 2064
    LDS = V_OFF + 128 * VS
    A.barrier_state(); A.raw(kernel_header(name))
    ST = Stamps(A, on=stamps, kidx=1)
    sW, sC, sG, sT0, sT1, sT2, sRow, sMir = 20, 21, 22, 23, 24, 25, 26, 27
    SRD_T = 16
    A(f"s_cmp_ge_u32 s2, {NWG}")
    A(f"s_cbranch_scc1 {name}_end")
    if prefetch:
        A(f"s_cmp_ge_u32 s2, {NW}")
        A(f"s_cbranch_scc1 {name}_pf")
    ST.stamp()
    load_ptr(A, 16, "ws"); load_ptr(A, 4, "x"); load_ptr(A, 6, "sre"); load_ptr(A, 8, "sim")
    getpc_sym(A, 10, "fft_tables")
    A(f"v_readfirstlane_b32 {s(sW)}, v0")
    A(f"s_mov_b32 s18, {WS_T + 2*MB}")
    A("s_mov_b32 s19, 0x20000")
    A(f"s_and_b32 {s(sT0)}, s2, 7")
    A(f"s_bfe_u32 {s(sG)}, s2, 0x30003")
    A(f"s_lshr_b32 {s(sT1)}, s2, 6")
    A(f"s_lshl3_add_u32 {s(sC)}, {s(sT1)}, {s(sT0)}")
    A(f"s_cmp_ge_u32 s2, 256")
    A(f"s_cselect_b32 {s(sC)}, 32, {s(sC)}")
    A(f"s_cselect_b32 {s(sG)}, {s(sT0)}, {s(sG)}")
    A(f"s_lshr_b32 {s(sW)}, {s(sW)}, 6")
    R = RegAlloc(1)
    vl = R.alloc(); vq = R.alloc(); vi = R.alloc(); vl16 = R.alloc()
    vtb = R.alloc(6, 2); vt = [vtb + k for k in range(6)]
    A0 = R.alloc(4); A1 = R.alloc(4)
    F1 = [R.alloc(4) for _ in range(2)]; F2 = [R.alloc(4) for _ in range(2)]
    tw = R.alloc(8, 4)
    opca = [R.alloc() for _ in range(4)]
    xrow = R.alloc(4)
    Bf = [[R.alloc(4) for _ in range(2)] for _ in range(4)]
    acc = [R.alloc(4) for _ in range(4)]
    ga = R.alloc(8, 4); sb = R.alloc(8, 4); ocb = F1[0]
    assert F1[1] == F1[0] + 4
    vaT = R.alloc(); vaVw = R.alloc(); vaVr = R.alloc(); vaUw = R.alloc(); vaUr = R.alloc(); vaYw = R.alloc()
    Rr, Ri = acc[0], acc[1]
    A(f"v_and_b32 {v(vl)}, 63, v0")
    A(f"v_lshlrev_b32 {v(vl16)}, 4, {v(vl)}")
    A(f"s_add_u32 {s(sT1)}, {s(sC)}, 32")
    A(f"s_and_b32 {s(sT2)}, {s(sC)}, 31")
    A(f"s_cselect_b32 {s(sMir)}, 1, 0")
    A(f"s_cselect_b32 {s(sT1)}, {s(sT1)}, 0x4000")
    A(f"s_cmp_ge_u32 {s(sW)}, 4")
    A(f"s_cselect_b32 {s(sT0)}, {s(sT1)}, {s(sC)}")
    A(f"s_lshl_b32 {s(sT0)}, {s(sT0)}, 15")
    A(f"s_and_b32 {s(sT1)}, {s(sW)}, 3")
    A(f"s_lshl_b32 {s(sT1)}, {s(sT1)}, 13")
    A(f"s_add_u32 {s(sT0)}, {s(sT0)}, {s(sT1)}")
    A(f"s_add_u32 {s(sT0)}, {s(sT0)}, {WS_T}")
    A(f"s_mul_i32 m0, {s(sW)}, {8*TS}")
    A(f"v_and_b32 {v(vi)}, 15, v0")
    A(f"v_bfe_u32 {v(vq)}, v0, 4, 2")
    A("s_waitcnt lgkmcnt(0)")
    for j in range(8):
        if j:
            A(f"s_add_u32 m0, m0, {TS}")
            A(f"s_add_u32 {s(sT0)}, {s(sT0)}, 1024")
        A(f"buffer_load_dwordx4 {v(vl16)}, {s(SRD_T,4)}, {s(sT0)} offen lds")
    A(f"v_bfe_u32 {v(vt[0])}, v0, 1, 2")
    A(f"s_lshl_b32 {s(sT0)}, {s(sG)}, 20")
    A(f"s_lshl_b32 {s(sT1)}, {s(sC)}, 12")
    A(f"s_add_u32 {s(sT0)}, {s(sT0)}, {s(sT1)}")
    A(f"v_lshlrev_b32 {v(vt[0])}, 18, {v(vt[0])}")
    A(f"v_lshl_add_u32 {v(vt[0])}, {v(vq)}, 3, {v(vt[0])}")
    A(f"v_add_u32 {v(vt[0])}, {s(sT0)}, {v(vt[0])}")
    for reg, base in ((Rr, 6), (Ri, 8)):
        A(f"global_load_dwordx2 {v(reg,2)}, {v(vt[0])}, {s(base,2)}")
        A(f"global_load_dwordx2 {v(reg+2,2)}, {v(vt[0])}, {s(base,2)} offset:32")
    A(f"v_add_u32 {v(vt[1])}, {TAB_OFF['tab_f1']}, {v(vl16)}")
    for mt in range(2): A(f"global_load_dwordx4 {v(F1[mt],4)}, {v(vt[1])}, s[10:11] offset:{mt*1024}")
    A(f"s_and_b32 {s(sT2)}, {s(sW)}, 1")
    A(f"s_lshl_b32 {s(sT0)}, {s(sT2)}, 11")
    A(f"s_add_u32 {s(sT0)}, {s(sT0)}, {TAB_OFF['tab_f2']}")
    A(f"v_add_u32 {v(vt[1])}, {s(sT0)}, {v(vl16)}")
    for ks in range(2): A(f"global_load_dwordx4 {v(F2[ks],4)}, {v(vt[1])}, s[10:11] offset:{ks*1024}")
    A(f"v_lshl_add_u32 {v(vt[1])}, {v(vl16)}, 1, {s(sT0)}")
    A(f"v_add_u32 {v(vt[1])}, {TAB_OFF['tab_tw'] - TAB_OFF['tab_f2']}, {v(vt[1])}")
    for h in range(2): A(f"global_load_dwordx4 {v(tw+4*h,4)}, {v(vt[1])}, s[10:11] offset:{h*16}")
    A(f"v_and_b32 {v(vt[2])}, 0x1cf, v0")
    A(f"v_lshlrev_b32 {v(vt[2])}, 2, {v(vt[2])}")
    if WS_MOD: A(f"v_add_u32 {v(vt[2])}, {WS_MOD}, {v(vt[2])}")
    for jt in range(4): A(f"global_load_dword {v(opca[jt])}, {v(vt[2])}, s[16:17] offset:{2048+jt*64}")
    A(f"s_and_b32 {s(sT0)}, {s(sW)}, 3")
    A(f"s_lshl2_add_u32 {s(sT0)}, {s(sG)}, {s(sT0)}")
    A(f"s_lshl_b32 {s(sT0)}, {s(sT0)}, 6")
    A(f"s_add_u32 {s(sRow)}, {s(sT0)}, {s(sC)}")
    A(f"s_sub_u32 {s(sT0)}, 2048, {s(sRow)}")
    A(f"s_and_b32 {s(sT0)}, {s(sT0)}, 2047")
    A(f"s_cmp_ge_u32 {s(sW)}, 4")
    A(f"s_cselect_b32 {s(sRow)}, {s(sT0)}, {s(sRow)}")
    A(f"s_lshl_b32 {s(sRow)}, {s(sRow)}, 10")
    vrow = R.alloc()
    A(f"v_add_u32 {v(vrow)}, {s(sRow)}, {v(vl16)}")
    A(f"global_load_dwordx4 {v(xrow,4)}, {v(vrow)}, s[4:5]")
    A(f"v_lshlrev_b32 {v(vt[3])}, 1, {v(vl16)}")
    if WS_MOD: A(f"v_add_u32 {v(vt[3])}, {WS_MOD}, {v(vt[3])}")
    A(f"v_add_u32 {v(vt[3])}, 4096, {v(vt[3])}")
    for reg, sec in ((ga, 0), (sb, 1)):
        A(f"global_load_dwordx4 {v(reg,4)}, {v(vt[3])}, s[16:17] offset:{sec*2048}")
        A(f"global_load_dwordx4 {v(reg+4,4)}, {v(vt[3])}, s[16:17] offset:{sec*2048+16}")
    vocb = R.alloc()
    A(f"v_add_u32 {v(vocb)}, 4096, {v(vt[3])}")
    NLATE = 2 + 2 + 2 + 4 + 1 + 4
    A(f"v_lshrrev_b32 {v(vt[0])}, 2, {v(vi)}")
    A(f"v_lshl_add_u32 {v(vt[0])}, {v(vq)}, 2, {v(vt[0])}")
    A(f"v_mul_u32_u24 {v(vaT)}, {TS}, {v(vt[0])}")
    A(f"v_and_b32 {v(vt[0])}, 3, {v(vi)}")
    A(f"v_lshl_add_u32 {v(vaT)}, {v(vt[0])}, 3, {v(vaT)}")
    A(f"v_and_b32 {v(vt[4])}, 0x1c0, v0")
    A(f"v_lshl_add_u32 {v(vaT)}, {v(vt[4])}, 1, {v(vaT)}")
    A(f"v_and_b32 {v(vt[0])}, 1, {v(vq)}")
    A(f"v_lshl_add_u32 {v(vt[0])}, {v(vt[0])}, 6, {v(vi)}")
    A(f"v_mul_u32_u24 {v(vaVw)}, {VS}, {v(vt[0])}")
    A(f"v_lshrrev_b32 {v(vt[0])}, 3, {v(vt[4])}")
    A(f"v_add_u32 {v(vaVw)}, {v(vaVw)}, {v(vt[0])}")
    A(f"v_add_u32 {v(vaVw)}, {V_OFF}, {v(vaVw)}")
    A(f"v_lshrrev_b32 {v(vt[0])}, 2, {v(vt[4])}")
    A(f"v_add_u32 {v(vt[0])}, {v(vt[0])}, {v(vi)}")
    A(f"v_mul_u32_u24 {v(vaVr)}, {VS}, {v(vt[0])}")
    A(f"v_lshl_add_u32 {v(vaVr)}, {v(vq)}, 4, {v(vaVr)}")
    A(f"v_add_u32 {v(vaVr)}, {V_OFF}, {v(vaVr)}")
    A(f"v_lshrrev_b32 {v(vt[0])}, 3, v0")
    A(f"v_and_b32 {v(vt[0])}, 0x30, {v(vt[0])}")
    A(f"v_lshrrev_b32 {v(vt[1])}, 2, v0")
    A(f"v_and_b32 {v(vt[1])}, 16, {v(vt[1])}")
    A(f"v_add_u32 {v(vt[2])}, {v(vt[1])}, {v(vi)}")
    A(f"v_lshl_add_u32 {v(vt[3])}, {v(vq)}, 1, {v(vt[0])}")
    A(f"v_mul_u32_u24 {v(vaUw)}, {US}, {v(vt[3])}")
    A(f"v_lshl_add_u32 {v(vaUw)}, {v(vt[2])}, 2, {v(vaUw)}")
    A(f"v_add_u32 {v(vt[3])}, {v(vt[0])}, {v(vi)}")
    A(f"v_mul_u32_u24 {v(vaUr)}, {US}, {v(vt[3])}")
    A(f"v_lshl_add_u32 {v(vaUr)}, {v(vq)}, 4, {v(vaUr)}")
    A(f"v_mul_u32_u24 {v(vaYw)}, {YS//16}, {v(vt[0])}")
    A(f"v_lshl_add_u32 {v(vaYw)}, {v(vt[1])}, 6, {v(vaYw)}")
    A(f"v_lshl_add_u32 {v(vaYw)}, {v(vi)}, 6, {v(vaYw)}")
    A(f"v_lshl_add_u32 {v(vaYw)}, {v(vq)}, 4, {v(vaYw)}")
    A(f"v_add_u32 {v(vaYw)}, {Y_OFF}, {v(vaYw)}")
    assert YS % 16 == 0
    A(f"v_and_b32 {v(vt[3])}, 1, v0")
    A(f"v_cmp_eq_u32 vcc, 1, {v(vt[3])}")
    A(f"s_mov_b32 {s(sT0)}, 0x80008000")
    A(f"s_waitcnt vmcnt({NLATE})")
    for j in range(4):
        A(f"v_xor_b32 {v(vt[0])}, {s(sT0)}, {v(Ri+j)}")
        A(f"v_cndmask_b32 {v(A0+j)}, {v(Rr+j)}, {v(Ri+j)}, vcc")
        A(f"v_cndmask_b32 {v(A1+j)}, {v(vt[0])}, {v(Rr+j)}, vcc")
    A("s_waitcnt vmcnt(0)")
    ST.stamp()
    A("s_barrier")
    for jt in range(4):
        for c in range(2):
            for p in range(2):
                A(f"ds_read_b64_tr_b16 {v(Bf[jt][c]+2*p,2)}, {v(vaT)} offset:{c*32*TS + p*16*TS + jt*32}")
    for j in range(4): A(f"v_mov_b32 {v(acc[2]+j)}, -1")
    A(f"s_lshl_b32 {s(sT0)}, s2, 10")
    A(f"s_add_u32 {s(sT0)}, {s(sT0)}, {WS_STAT}")
    A(f"v_add_u32 {v(vt[0])}, {s(sT0)}, {v(vl16)}")
    lab = f"{name}_nors"
    A(f"s_cmp_lg_u32 {s(sW)}, 7")
    A(f"s_cbranch_scc1 {lab}")
    A(f"s_cmp_ge_u32 s2, 256")
    A(f"s_cbranch_scc1 {lab}")
    A(f"global_store_dwordx4 {v(vt[0])}, {v(acc[2],4)}, s[16:17]")
    A.label(lab)
    for jt in range(4):
        A(f"s_waitcnt lgkmcnt({(3-jt)*4})")
        A(f"v_mfma_f32_16x16x32_bf16 {v(acc[jt],4)}, {v(A0,4)}, {v(Bf[jt][0],4)}, 0")
        A(f"v_mfma_f32_16x16x32_bf16 {v(acc[jt],4)}, {v(A1,4)}, {v(Bf[jt][1],4)}, {v(acc[jt],4)}")
    for jt in range(4):
        for r in range(4): A(f"v_mul_f32 {v(acc[jt]+r)}, {v(acc[jt]+r)}, {v(opca[jt])}")
    lab = f"{name}_nodc"
    A(f"s_or_b32 {s(sT0)}, {s(sC)}, {s(sG)}")
    A(f"s_cbranch_scc1 {lab}")
    A(f"v_and_b32 {v(vt[2])}, 0x1cf, v0")
    A(f"v_lshlrev_b32 {v(vt[2])}, 2, {v(vt[2])}")
    if WS_MOD: A(f"v_add_u32 {v(vt[2])}, {WS_MOD}, {v(vt[2])}")
    for jt in range(4): A(f"global_load_dword {v(Bf[0][0]+jt)}, {v(vt[2])}, s[16:17] offset:{jt*64}")
    A(f"v_and_b32 {v(vt[0])}, 1, {v(vq)}")
    A(f"v_cmp_eq_u32 vcc, 0, {v(vt[0])}")
    A(f"v_mov_b32 {v(vt[1])}, 0x45000000")
    A(f"v_cndmask_b32 {v(vt[1])}, 0, {v(vt[1])}, vcc")
    A("s_waitcnt vmcnt(0)")
    for jt in range(4): A(f"v_fmac_f32 {v(acc[jt])}, {v(Bf[0][0]+jt)}, {v(vt[1])}")
    A.label(lab)
    for jt in range(4):
        ac = acc[jt]
        A(f"v_cvt_pk_bf16_f32 {v(ac)}, {v(ac)}, {v(ac+1)}")
        A(f"v_cvt_pk_bf16_f32 {v(ac+1)}, {v(ac+2)}, {v(ac+3)}")
        o0 = (jt&1)*16*VS + (jt>>1)*4
        A(f"ds_write_b32 {v(vaVw)}, {v(ac)} offset:{o0}")
        A(f"ds_write_b32 {v(vaVw)}, {v(ac+1)} offset:{o0 + 32*VS}")
    A("s_waitcnt lgkmcnt(0)")
    A("s_barrier")
    A(f"ds_read_b128 {v(Bf[0][0],4)}, {v(vaVr)}")
    A("s_waitcnt lgkmcnt(0)")
    for mt in range(2):
        A(f"v_mfma_f32_16x16x32_bf16 {v(acc[mt],4)}, {v(F1[mt],4)}, {v(Bf[0][0],4)}, 0")
    A("s_nop 7")
    A(f"global_load_dwordx4 {v(ocb,4)}, {v(vocb)}, s[16:17]")
    A(f"global_load_dwordx4 {v(ocb+4,4)}, {v(vocb)}, s[16:17] offset:16")
    for mt in range(2):
        for pp in range(2):
            re, im = acc[mt] + 2 * pp, acc[mt] + 2 * pp + 1
            c_, s_ = tw + (mt*2+pp)*2, tw + (mt*2+pp)*2 + 1
            t0, t1 = vt[2*pp], vt[2*pp+1]
            A(f"v_mul_f32 {v(t0)}, {v(re)}, {v(c_)}")
            A(f"v_mul_f32 {v(t1)}, {v(im)}, {v(c_)}")
            A(f"v_fma_f32 {v(t0)}, {v(im)}, {v(s_)}, {v(t0)}")
            A(f"v_fma_f32 {v(t1)}, -{v(re)}, {v(s_)}, {v(t1)}")
            A(f"v_cvt_pk_bf16_f32 {v(vt[4+pp])}, {v(t0)}, {v(t1)}")
            A(f"ds_write_b32 {v(vaUw)}, {v(vt[4+pp])} offset:{(8*mt+pp)*US}")
    A("s_waitcnt lgkmcnt(0)")
    A("s_barrier")
    for ks in range(2): A(f"ds_read_b128 {v(Bf[ks][0],4)}, {v(vaUr)} offset:{ks*64}")
    A("s_waitcnt lgkmcnt(1)")
    A(f"v_mfma_f32_16x16x32_bf16 {v(acc[2],4)}, {v(Bf[0][0],4)}, {v(F2[0],4)}, 0")
    A("s_waitcnt lgkmcnt(0)")
    A(f"v_mfma_f32_16x16x32_bf16 {v(acc[2],4)}, {v(Bf[1][0],4)}, {v(F2[1],4)}, {v(acc[2],4)}")
    xf = Bf[2][0]
    assert Bf[2][1] == xf + 4
    A(f"s_mov_b32 {s(sT0)}, 0xffff0000")
    for j in range(4):
        A(f"v_lshlrev_b32 {v(xf+2*j)}, 16, {v(xrow+j)}")
        A(f"v_and_b32 {v(xf+2*j+1)}, {s(sT0)}, {v(xrow+j)}")
    A(f"ds_write_b128 {v(vaYw)}, {v(acc[2],4)}")
    y = Bf[0][0]
    assert Bf[0][1] == Bf[0][0] + 4
    A(f"s_and_b32 {s(sT1)}, {s(sW)}, 3")
    A(f"s_mul_i32 {s(sT1)}, {s(sT1)}, {YS}")
    A(f"s_add_u32 {s(sT1)}, {s(sT1)}, {Y_OFF}")
    A(f"s_cmp_ge_u32 {s(sW)}, 4")
    A(f"s_cbranch_scc1 {name}_mir")
    A(f"v_lshl_add_u32 {v(vt[0])}, {v(vl16)}, 1, {s(sT1)}")
    A("s_waitcnt lgkmcnt(0)")
    A("s_barrier")
    ST.stamp()
    A(f"ds_read_b128 {v(y,4)}, {v(vt[0])}")
    A(f"ds_read_b128 {v(y+4,4)}, {v(vt[0])} offset:16")
    A(f"s_branch {name}_fin")
    A.label(f"{name}_mir")
    A(f"v_lshlrev_b32 {v(vt[0])}, 1, {v(vl16)}")
    A(f"v_sub_u32 {v(vt[1])}, 2048, {v(vt[0])}")
    A(f"v_and_b32 {v(vt[1])}, 2047, {v(vt[1])}")
    A(f"v_add_u32 {v(vt[1])}, {s(sT1)}, {v(vt[1])}")
    A(f"s_add_u32 {s(sT1)}, {s(sT1)}, {505*4}")
    A(f"v_sub_u32 {v(vt[0])}, {s(sT1)}, {v(vt[0])}")
    A("s_waitcnt lgkmcnt(0)")
    A("s_barrier")
    if stamps: ST.n -= 1; ST.stamp()
    A(f"s_cmp_eq_u32 {s(sMir)}, 0")
    A(f"s_cbranch_scc1 {name}_end")
    A(f"ds_read_b32 {v(y)}, {v(vt[1])}")
    A(f"ds_read_b32 {v(y+1)}, {v(vt[0])} offset:24")
    for j in (2, 4, 6): A(f"ds_read2_b32 {v(y+j,2)}, {v(vt[0])} offset0:{7-j} offset1:{6-j}")
    A.label(f"{name}_fin")
    A("s_waitcnt lgkmcnt(0)")
    for j in range(8): A(f"v_fma_f32 {v(xf+j)}, {v(ga+j)}, {v(y+j)}, {v(xf+j)}")
    for j in range(4): A(f"v_cvt_pk_bf16_f32 {v(xrow+j)}, {v(xf+2*j)}, {v(xf+2*j+1)}")
    A(f"v_add_u32 {v(vt[2])}, {WS_X1}, {v(vrow)}")
    A(f"global_store_dwordx4 {v(vt[2])}, {v(xrow,4)}, s[16:17]")
    for j in range(4):
        A(f"v_lshlrev_b32 {v(xf+2*j)}, 16, {v(xrow+j)}")
        A(f"v_and_b32 {v(xf+2*j+1)}, {s(sT0)}, {v(xrow+j)}")
    A(f"v_add_f32 {v(vt[0])}, {v(xf)}, {v(xf+1)}")
    A(f"v_add_f32 {v(vt[1])}, {v(xf+2)}, {v(xf+3)}")
    for j in range(4, 8, 2):
        A(f"v_add_f32 {v(vt[0])}, {v(vt[0])}, {v(xf+j)}")
        A(f"v_add_f32 {v(vt[1])}, {v(vt[1])}, {v(xf+j+1)}")
    A(f"v_add_f32 {v(vt[0])}, {v(vt[0])}, {v(vt[1])}")
    wave_sum(A, vt[0], sT1)
    A(f"v_mov_b32 {v(vt[1])}, 0x3b000000")
    A(f"v_mul_f32 {v(vt[1])}, {s(sT1)}, {v(vt[1])}")
    for j in range(8): A(f"v_sub_f32 {v(xf+j)}, {v(xf+j)}, {v(vt[1])}")
    A(f"v_mul_f32 {v(vt[0])}, {v(xf)}, {v(xf)}")
    A(f"v_mul_f32 {v(vt[1])}, {v(xf+1)}, {v(xf+1)}")
    for j in range(2, 8, 2):
        A(f"v_fmac_f32 {v(vt[0])}, {v(xf+j)}, {v(xf+j)}")
        A(f"v_fmac_f32 {v(vt[1])}, {v(xf+j+1)}, {v(xf+j+1)}")
    A(f"v_add_f32 {v(vt[0])}, {v(vt[0])}, {v(vt[1])}")
    wave_sum(A, vt[0], sT1)
    A(f"v_mov_b32 {v(vt[1])}, 0x3b000000")
    A(f"v_mul_f32 {v(vt[1])}, {s(sT1)}, {v(vt[1])}")
    A(f"v_add_f32 {v(vt[1])}, 0x3727c5ac, {v(vt[1])}")
    A(f"v_rsq_f32 {v(vt[1])}, {v(vt[1])}")
    A(f"v_add_u32 {v(vt[2])}, {WS_H2}, {v(vrow)}")
    A("s_waitcnt vmcnt(1)")
    for j in range(8): A(f"v_mul_f32 {v(ocb+j)}, {v(ocb+j)}, {v(vt[1])}")
    for j in range(8): A(f"v_fma_f32 {v(xf+j)}, {v(xf+j)}, {v(ocb+j)}, {v(sb+j)}")
    for j in range(4): A(f"v_cvt_pk_bf16_f32 {v(y+j)}, {v(xf+2*j)}, {v(xf+2*j+1)}")
    A(f"global_store_dwordx4 {v(vt[2])}, {v(y,4)}, s[16:17]")
    if stamps:
        ST.stamp(); A("s_waitcnt vmcnt(0)"); ST.stamp(); ST.flush(16, ga)
    A("s_endpgm")
    if prefetch:
        A.label(f"{name}_pf")
        load_ptr(A, 4, "wsp")
        A("s_bfe_u32 s10, s2, 0x20001")
        A("s_lshl_b32 s10, s10, 21")
        A(f"s_sub_u32 s11, s2, {NW}")
        A("s_lshr_b32 s11, s11, 3")
        A("s_lshl_b32 s11, s11, 19")
        A("s_add_u32 s10, s10, s11")
        A("v_lshl_add_u32 v1, v0, 7, s10")
        A("s_waitcnt lgkmcnt(0)")
        for it in range(8):
            A(f"global_load_dword v{8+it}, v1, s[4:5]")
            if it < 7: A("v_add_u32 v1, 0x10000, v1")
    A.label(f"{name}_end")
    A("s_endpgm")
    assert R.hi <= 128, R.hi
    return dict(name=name, grid=NWG, block=512, lds=LDS, vgpr=R.hi, sgpr=96 if stamps else 40)
```

```python
from gemm_util import *

def interleave2(ms, rs, bg=None, rper=2, bper=0):
    out = []; rs = list(rs)
    for m in ms:
        out.append(m)
        for _ in range(rper):
            if rs: out.append(rs.pop(0))
        for _ in range(bper):
            if bg: out.append(bg.pop(0))
    return out + rs

def consumer_full(A, nst, reads, mfmas, bg=None, bper=0, hook=None, rper=2):
    A("s_barrier")
    for r in reads(0, 0): A(r)
    for st in range(nst):
        A("s_waitcnt lgkmcnt(0)")
        b = bg(st) if bg else None
        if st < nst - 1:
            A("s_barrier")
            for x in interleave2(mfmas(st, st & 1), reads(st + 1, (st + 1) & 1), b, rper, bper): A(x)
        else:
            for x in interleave2(mfmas(st, st & 1), [], b, rper, bper): A(x)
        if hook: hook(st)

def pk(op, d, a, b, c=None, sel=None):
    t = f"v_pk_{op}_f32 {v(d,2)}, {a}, {b}" + (f", {c}" if c else "")
    if sel: t += " " + sel
    return t

def gelu_pk(ac, t, vC):
    o = []
    for h in (0, 2): o.append(pk("mul", t + h, v(ac + h, 2), v(ac + h, 2)))
    for h in (0, 2): o.append(pk("fma", t + h, v(t + h, 2), v(vC, 2), v(vC, 2), "op_sel:[0,0,1] op_sel_hi:[1,0,1]"))
    for h in (0, 2): o.append(pk("mul", t + h, v(t + h, 2), v(ac + h, 2)))
    for r in range(4): o.append(f"v_exp_f32 {v(t+r)}, {v(t+r)}")
    for h in (0, 2): o.append(pk("add", t + h, v(t + h, 2), "1.0", sel="op_sel_hi:[1,0]"))
    for r in range(4): o.append(f"v_rcp_f32 {v(t+r)}, {v(t+r)}")
    for h in (0, 2): o.append(pk("mul", ac + h, v(ac + h, 2), v(t + h, 2)))
    return o

def gen_kz(A, name="kz_kernel", NS=6, stamps=False, prefetch=True):
    NWG = 256
    GS = 960; SLOT = 16 * GS; W_OFF = 65536
    LDS = W_OFF + NS * SLOT
    NST = 16; WROW = 3584
    A.barrier_state(); A.raw(kernel_header(name))
    ST = Stamps(A, on=stamps, kidx=2)
    sW, sRB, sCC, sT0, sT1, sT2, sTH, sFH, sK = 20, 21, 22, 23, 24, 25, 26, 27, 28
    A(f"s_cmp_ge_u32 s2, {NWG}")
    A(f"s_cbranch_scc1 {name}_end")
    ST.stamp()
    load_ptr(A, 4, "ws"); load_ptr(A, 8, "win")
    A(f"v_readfirstlane_b32 {s(sW)}, v0")
    A(f"s_bfe_u32 {s(sRB)}, s2, 0x20001")
    A(f"s_bfe_u32 {s(sT0)}, s2, 0x30003")
    A(f"s_lshl3_add_u32 {s(sRB)}, {s(sRB)}, {s(sT0)}")
    A(f"s_and_b32 {s(sCC)}, s2, 1")
    A(f"s_lshr_b32 {s(sT0)}, s2, 6")
    A(f"s_lshl2_add_u32 {s(sCC)}, {s(sCC)}, {s(sT0)}")
    A(f"s_lshr_b32 {s(sW)}, {s(sW)}, 6")
    A(f"s_cmp_ge_u32 {s(sW)}, 4")
    A(f"s_cbranch_scc1 {name}_loader")
    R = RegAlloc(1)
    vq = R.alloc(); vi = R.alloc()
    vC = R.alloc(2)
    vtb = R.alloc(8, 4); vt = [vtb + k for k in range(8)]
    vH = [[R.alloc() for _ in range(2)] for _ in range(2)]
    vWa = [R.alloc() for _ in range(2)]; vWb = [R.alloc() for _ in range(2)]
    acc = [[R.alloc(4) for _ in range(7)] for _ in range(2)]
    FH_ = [[[R.alloc(4) for _ in range(2)] for _ in range(2)] for _ in range(2)]
    FW = [[[R.alloc(4) for _ in range(4)] for _ in range(2)] for _ in range(2)]
    z2p = [R.alloc(2) for _ in range(7)]
    st1 = [R.alloc(2) for _ in range(2)]; st2 = [R.alloc(2) for _ in range(2)]
    vtt = [R.alloc() for _ in range(2)]
    TILES = [(0, 0), (0, 1), (1, 0), (1, 1), (2, 0), (2, 1), (3, 0)]
    A(f"v_bfe_u32 {v(vq)}, v0, 4, 2")
    A(f"v_and_b32 {v(vi)}, 15, v0")
    A(f"v_mov_b32 {v(vC)}, {fhex(GELU_C2)}")
    A(f"v_mov_b32 {v(vC+1)}, {fhex(GELU_C1)}")
    A(f"s_and_b32 {s(sTH)}, {s(sW)}, 1")
    A(f"s_lshr_b32 {s(sFH)}, {s(sW)}, 1")
    A(f"s_lshl1_add_u32 {s(sT0)}, {s(sTH)}, {s(sFH)}")
    A(f"s_xor_b32 {s(sT1)}, {s(sT0)}, 1")
    A(f"v_and_b32 {v(vt[0])}, 7, {v(vi)}")
    for hf, sr in ((0, sT0), (1, sT1)):
        A(f"v_lshl_add_u32 {v(vtt[hf])}, {s(sr)}, 4, {v(vi)}")
    A(f"v_xor_b32 {v(vt[1])}, {v(vq)}, {v(vt[0])}")
    A(f"v_lshlrev_b32 {v(vt[1])}, 4, {v(vt[1])}")
    for hf in range(2):
        A(f"v_lshl_add_u32 {v(vH[hf][0])}, {v(vtt[hf])}, 7, {v(vt[1])}")
        A(f"v_xor_b32 {v(vH[hf][1])}, 64, {v(vH[hf][0])}")
    A(f"v_mul_u32_u24 {v(vt[1])}, {2*GS}, {v(vq)}")
    A(f"v_lshrrev_b32 {v(vt[2])}, 2, {v(vi)}")
    A(f"v_mul_u32_u24 {v(vt[2])}, 224, {v(vt[2])}")
    A(f"v_and_b32 {v(vt[3])}, 3, {v(vi)}")
    A(f"v_lshl_add_u32 {v(vt[1])}, {v(vt[3])}, 3, {v(vt[1])}")
    A(f"v_add3_u32 {v(vt[1])}, {v(vt[1])}, {v(vt[2])}, s[ZZ]".replace("s[ZZ]", s(sT2)) if False else f"v_add_u32 {v(vt[1])}, {v(vt[1])}, {v(vt[2])}")
    A(f"s_lshl_b32 {s(sT0)}, {s(sFH)}, 7")
    A(f"s_add_u32 {s(sT0)}, {s(sT0)}, {W_OFF}")
    A(f"v_add_u32 {v(vWa[0])}, {s(sT0)}, {v(vt[1])}")
    A(f"v_add_u32 {v(vWb[0])}, {W_OFF+96}, {v(vt[1])}")
    A(f"v_add_u32 {v(vWa[1])}, {3*SLOT}, {v(vWa[0])}")
    A(f"v_add_u32 {v(vWb[1])}, {3*SLOT}, {v(vWb[0])}")
    for hf in range(2):
        for r in range(2):
            A(f"v_mov_b32 {v(st1[hf]+r)}, 0"); A(f"v_mov_b32 {v(st2[hf]+r)}, 0")
    def reads(st, buf):
        kc = st & 7; slot = st % NS; sg = slot // 3; so = (slot % 3) * SLOT
        o = []
        for ks in range(2):
            for hf in range(2): o.append(f"ds_read_b128 {v(FH_[buf][ks][hf],4)}, {v(vH[hf][ks])} offset:{kc*8192}")
            for wf in range(4):
                for p in range(2):
                    base = vWa[sg] if wf < 3 else vWb[sg]
                    off = so + ks * 8 * GS + p * GS + (wf * 32 if wf < 3 else 0)
                    o.append(f"ds_read_b64_tr_b16 {v(FW[buf][ks][wf]+2*p,2)}, {v(base)} offset:{off}")
        return o
    def mfmas(st, buf):
        h = st >> 3
        o = []
        for ks in range(2):
            for tl, (wf, hf) in enumerate(TILES):
                c = "0" if (st & 7) == 0 and ks == 0 else v(acc[h][tl], 4)
                o.append(f"v_mfma_f32_16x16x32_bf16 {v(acc[h][tl],4)}, {v(FW[buf][ks][wf],4)}, {v(FH_[buf][ks][hf],4)}, {c}")
        return o
    BG = []
    BG.append(f"s_mov_b32 {s(sT2)}, 0xffff0000")
    for tl, (wf, hf) in enumerate(TILES):
        ac = acc[0][tl]
        BG += gelu_pk(ac, vt[0], vC)
        for h in range(2): BG.append(f"v_cvt_pk_bf16_f32 {v(z2p[tl]+h)}, {v(ac+2*h)}, {v(ac+2*h+1)}")
        for h in range(2):
            BG.append(f"v_lshlrev_b32 {v(vt[4]+2*h)}, 16, {v(z2p[tl]+h)}")
            BG.append(f"v_and_b32 {v(vt[4]+2*h+1)}, {s(sT2)}, {v(z2p[tl]+h)}")
        for h in range(2):
            BG.append(pk("add", st1[hf], v(st1[hf], 2), v(vt[4]+2*h, 2)))
            BG.append(pk("fma", st2[hf], v(vt[4]+2*h, 2), v(vt[4]+2*h, 2), v(st2[hf], 2)))
    for hf in range(2):
        BG.append(f"v_add_f32 {v(st1[hf])}, {v(st1[hf])}, {v(st1[hf]+1)}")
        BG.append(f"v_add_f32 {v(st2[hf])}, {v(st2[hf])}, {v(st2[hf]+1)}")
    for r in (st1[0], st2[0], st1[1], st2[1]):
        BG += [f"v_mov_b32 {v(vt[0])}, {v(r)}", f"v_permlane16_swap_b32 {v(r)}, {v(vt[0])}", f"v_add_f32 {v(r)}, {v(r)}, {v(vt[0])}",
               f"v_mov_b32 {v(vt[0])}, {v(r)}", f"v_permlane32_swap_b32 {v(r)}, {v(vt[0])}", f"v_add_f32 {v(r)}, {v(r)}, {v(vt[0])}"]
    BG += [f"v_cmp_eq_u32 vcc, 1, {v(vq)}",
           f"v_mov_b32 {v(vt[4])}, 0x7fc00000",
           f"v_cndmask_b32 {v(vt[2])}, {v(st1[0])}, {v(st1[1])}, vcc",
           f"v_cndmask_b32 {v(vt[3])}, {v(st2[0])}, {v(st2[1])}, vcc",
           f"v_cndmask_b32 {v(vt[0])}, {v(vtt[0])}, {v(vtt[1])}, vcc",
           f"v_cmp_eq_u32 vcc, -1, {v(vt[2])}",
           f"s_lshl_b32 {s(sT0)}, {s(sRB)}, 13",
           f"v_cndmask_b32 {v(vt[2])}, {v(vt[2])}, {v(vt[4])}, vcc",
           f"v_cmp_eq_u32 vcc, -1, {v(vt[3])}",
           f"s_lshl1_add_u32 {s(sT1)}, {s(sCC)}, {s(sFH)}",
           f"v_cndmask_b32 {v(vt[3])}, {v(vt[3])}, {v(vt[4])}, vcc",
           f"s_lshl3_add_u32 {s(sT0)}, {s(sT1)}, {s(sT0)}",
           f"s_add_u32 {s(sT0)}, {s(sT0)}, {WS_STAT}",
           f"v_lshl_add_u32 {v(vt[0])}, {v(vt[0])}, 7, {s(sT0)}",
           f"s_mov_b32 exec_lo, -1", f"s_mov_b32 exec_hi, 0",
           f"global_store_dwordx2 {v(vt[0])}, {v(vt[2],2)}, s[4:5] sc0 sc1",
           f"s_mov_b32 exec_hi, -1"]
    unit = " ;; ".join(BG[-3:]); BG = BG[:-4] + [BG[-4] if False else None]
    BG = [x for x in BG if x]
    BG_TAIL = [f"s_mov_b32 exec_hi, 0", f"global_store_dwordx2 {v(vt[0])}, {v(vt[2],2)}, s[4:5] sc0 sc1", f"s_mov_b32 exec_hi, -1"]
    bgq = list(BG)
    published = [False]
    def bg(st): return bgq if st >= 8 else None
    def hook(st):
        if st >= 8 and not bgq and not published[0]:
            for x in BG_TAIL: A(x)
            published[0] = True
            ST.stamp()
    A("s_waitcnt lgkmcnt(0)")
    consumer_full(A, NST, reads, mfmas, bg=bg, bper=4, hook=hook)
    for x in bgq: A(x)
    if not published[0]:
        for x in BG_TAIL: A(x)
    ST.stamp()
    A("s_barrier")
    vLa = [vH[0][0], vH[1][0]]; vL4 = vH[0][1]
    for hf in range(2):
        A(f"v_mul_u32_u24 {v(vLa[hf])}, 224, {v(vtt[hf])}")
        A(f"v_lshl_add_u32 {v(vLa[hf])}, {v(vq)}, 3, {v(vLa[hf])}")
    A(f"v_add_u32 {v(vL4)}, 96, {v(vLa[0])}")
    A(f"s_lshl_b32 {s(sT0)}, {s(sFH)}, 7")
    for hf in range(2): A(f"v_add_u32 {v(vLa[hf])}, {s(sT0)}, {v(vLa[hf])}")
    def tile_write(tl, src, base_off):
        wf, hf = TILES[tl]
        if wf < 3: A(f"ds_write_b64 {v(vLa[hf])}, {v(src,2)} offset:{base_off + wf*32}")
        else: A(f"ds_write_b64 {v(vL4)}, {v(src,2)} offset:{base_off}")
    Z1_L = 0; Z2_L = 16384
    pol = [FW[0][0][0], FW[0][0][1], FW[0][0][2], FW[0][0][3]]
    vrow = [vWa[0], vWa[1]]
    A(f"s_lshl_b32 {s(sT0)}, {s(sRB)}, 13")
    A(f"s_add_u32 {s(sT0)}, {s(sT0)}, {WS_STAT}")
    for hf in range(2):
        A(f"v_lshl_add_u32 {v(vrow[hf])}, {v(vtt[hf])}, 7, {s(sT0)}")
        A(f"v_lshl_add_u32 {v(vrow[hf])}, {v(vq)}, 5, {v(vrow[hf])}")
    def poll_loads():
        for hf in range(2):
            for u in range(2):
                A(f"global_load_dwordx4 {v(pol[hf*2+u],4)}, {v(vrow[hf])}, s[4:5] offset:{u*16} sc0 sc1")
    poll_loads()
    for tl in range(7):
        ac = acc[1][tl]
        for x in gelu_pk(ac, vt[0], vC): A(x)
        for h in range(2): A(f"v_cvt_pk_bf16_f32 {v(ac+h)}, {v(ac+2*h)}, {v(ac+2*h+1)}")
        tile_write(tl, ac, Z1_L)
    A(f"s_mov_b32 {s(sK)}, 0")
    A.label(f"{name}_poll")
    A("s_waitcnt vmcnt(0)")
    A(f"v_max3_u32 {v(vt[0])}, {v(pol[0])}, {v(pol[0]+1)}, {v(pol[0]+2)}")
    rest = [pol[0]+3] + [pol[b_]+r for b_ in range(1, 4) for r in range(4)]
    for k in range(0, len(rest) - 1, 2): A(f"v_max3_u32 {v(vt[0])}, {v(vt[0])}, {v(rest[k])}, {v(rest[k+1])}")
    A(f"v_max_u32 {v(vt[0])}, {v(vt[0])}, {v(rest[-1])}")
    A(f"v_cmp_eq_u32 vcc, -1, {v(vt[0])}")
    A(f"s_add_u32 {s(sK)}, {s(sK)}, 1")
    A(f"s_cmp_eq_u64 vcc, 0")
    A(f"s_cbranch_scc1 {name}_polled")
    A(f"s_cmp_ge_u32 {s(sK)}, 0x40000")
    A(f"s_cbranch_scc1 {name}_polled")
    poll_loads()
    A(f"s_branch {name}_poll")
    A.label(f"{name}_polled")
    mean = [vt[0], vt[1]]; rstd = [vt[2], vt[3]]
    for hf in range(2):
        p0, p1 = pol[hf*2], pol[hf*2+1]
        A(pk("add", p0, v(p0, 2), v(p0+2, 2)))
        A(pk("add", p1, v(p1, 2), v(p1+2, 2)))
        A(pk("add", p0, v(p0, 2), v(p1, 2)))
        A(f"v_mov_b32 {v(mean[hf])}, {v(p0)}")
        A(f"v_mov_b32 {v(rstd[hf])}, {v(p0+1)}")
    xor16_32_sum(A, mean + rstd, vt[6])
    for hf in range(2):
        A(f"v_mul_f32 {v(mean[hf])}, {fhex(1.0/896)}, {v(mean[hf])}")
        A(f"v_mul_f32 {v(rstd[hf])}, {fhex(1.0/896)}, {v(rstd[hf])}")
        A(f"v_fma_f32 {v(rstd[hf])}, -{v(mean[hf])}, {v(mean[hf])}, {v(rstd[hf])}")
        A(f"v_max_f32 {v(rstd[hf])}, 0, {v(rstd[hf])}")
        A(f"v_add_f32 {v(rstd[hf])}, 0x3727c5ac, {v(rstd[hf])}")
        A(f"v_rsq_f32 {v(rstd[hf])}, {v(rstd[hf])}")
        A(f"v_mul_f32 {v(mean[hf])}, {v(mean[hf])}, {v(rstd[hf])}")
    for hf in range(2):
        A(f"v_mov_b32 {v(st1[hf])}, {v(rstd[hf])}")
        A(f"v_sub_f32 {v(st1[hf]+1)}, 0, {v(mean[hf])}")
    A(f"s_mov_b32 {s(sT0)}, 0xffff0000")
    for tl, (wf, hf) in enumerate(TILES):
        z = z2p[tl]
        for h in range(2):
            A(f"v_lshlrev_b32 {v(vt[4])}, 16, {v(z+h)}")
            A(f"v_and_b32 {v(vt[5])}, {s(sT0)}, {v(z+h)}")
            A(pk("fma", vt[4], v(vt[4], 2), v(st1[hf], 2), v(st1[hf], 2), "op_sel:[0,0,1] op_sel_hi:[1,0,1]"))
            A(f"v_cvt_pk_bf16_f32 {v(z+h)}, {v(vt[4])}, {v(vt[5])}")
        tile_write(tl, z, Z2_L)
    buf = [FW[1][0][0], FW[1][0][1], FW[1][0][2], FW[1][0][3]]
    vz = FH_[0][0][0]
    vlr = FH_[0][0][1]
    A(f"v_and_b32 {v(vt[0])}, 63, v0")
    for j in range(4):
        A(f"v_add_u32 {v(vt[1])}, {64*j}, {v(vt[0])}")
        div14(A, vt[2], vt[3], vt[1], vt[6])
        A(f"v_mul_u32_u24 {v(vt[2])}, 1792, {v(vt[2])}")
        A(f"v_lshl_add_u32 {v(vz+j)}, {v(vt[3])}, 4, {v(vt[2])}")
    A(f"s_lshl2_add_u32 {s(sT0)}, {s(sRB)}, {s(sW)}")
    A(f"s_mul_i32 {s(sT0)}, {s(sT0)}, {16*1792}")
    A(f"s_mul_i32 {s(sT1)}, {s(sCC)}, 224")
    A(f"s_add_u32 {s(sT0)}, {s(sT0)}, {s(sT1)}")
    A(f"s_add_u32 {s(sT0)}, {s(sT0)}, {WS_Z1}")
    for j in range(4): A(f"v_add_u32 {v(vz+j)}, {s(sT0)}, {v(vz+j)}")
    A(f"s_mul_i32 {s(sT0)}, {s(sW)}, {16*224}")
    A(f"v_lshl_add_u32 {v(vlr)}, {v(vt[0])}, 4, {s(sT0)}")
    A(f"v_lshrrev_b32 {v(vt[5])}, 2, {v(vi)}")
    A(f"v_lshl_add_u32 {v(vt[5])}, {v(vq)}, 3, {v(vt[5])}")
    A(f"v_mul_u32_u24 {v(vt[5])}, 224, {v(vt[5])}")
    A(f"v_and_b32 {v(vt[6])}, 3, {v(vi)}")
    A(f"v_lshl_add_u32 {v(vt[5])}, {v(vt[6])}, 3, {v(vt[5])}")
    A(f"s_lshl_b32 {s(sT1)}, {s(sW)}, 5")
    A(f"v_add_u32 {v(vt[5])}, {s(sT1)}, {v(vt[5])}")
    A(f"v_lshlrev_b32 {v(vt[6])}, 12, {v(vi)}")
    A(f"v_lshl_add_u32 {v(vt[6])}, {v(vq)}, 4, {v(vt[6])}")
    A(f"s_mul_i32 {s(sT1)}, {s(sCC)}, {112*4096}")
    A(f"s_lshl_b32 {s(sT2)}, {s(sW)}, 16")
    A(f"s_add_u32 {s(sT1)}, {s(sT1)}, {s(sT2)}")
    A(f"s_lshl_b32 {s(sT2)}, {s(sRB)}, 7")
    A(f"s_add_u32 {s(sT1)}, {s(sT1)}, {s(sT2)}")
    A(f"s_add_u32 {s(sT1)}, {s(sT1)}, {WS_Z2T}")
    A(f"v_add_u32 {v(vt[6])}, {s(sT1)}, {v(vt[6])}")
    A("s_waitcnt lgkmcnt(0)")
    A("s_barrier")
    ST.stamp()
    for j in range(4): A(f"ds_read_b128 {v(buf[j],4)}, {v(vlr)} offset:{Z1_L + j*1024}")
    zb = [FW[0][0][0], FW[0][0][1], FW[0][0][2], FW[0][0][3]]
    for k2 in range(2):
        for u in range(2):
            for p in range(2):
                A(f"ds_read_b64_tr_b16 {v(zb[k2*2+u]+2*p,2)}, {v(vt[5])} offset:{Z2_L + k2*128 + (32*u+4*p)*224}")
    for j in range(3):
        A(f"s_waitcnt lgkmcnt({11-j})")
        A(f"global_store_dwordx4 {v(vz+j)}, {v(buf[j],4)}, s[4:5]")
    A("s_waitcnt lgkmcnt(8)")
    A("s_mov_b32 exec_hi, 0")
    A(f"global_store_dwordx4 {v(vz+3)}, {v(buf[3],4)}, s[4:5]")
    A("s_mov_b32 exec_hi, -1")
    A("s_waitcnt lgkmcnt(4)")
    for u in range(2): A(f"global_store_dwordx4 {v(vt[6])}, {v(zb[u],4)}, s[4:5] offset:{u*64}")
    A(f"s_cmp_eq_u32 {s(sW)}, 3")
    A(f"s_cbranch_scc1 {name}_cdone")
    A(f"v_add_u32 {v(vt[6])}, {4*16*4096}, {v(vt[6])}")
    A("s_waitcnt lgkmcnt(0)")
    for u in range(2): A(f"global_store_dwordx4 {v(vt[6])}, {v(zb[2+u],4)}, s[4:5] offset:{u*64}")
    A.label(f"{name}_cdone")
    if stamps:
        ST.stamp(); A("s_waitcnt vmcnt(0)"); ST.stamp(); ST.flush(4, vt[0])
    A("s_endpgm")
    nv = R.hi
    A.label(f"{name}_loader")
    R = RegAlloc(1)
    voW = [R.alloc() for _ in range(4)]; voH = [R.alloc() for _ in range(2)]
    vl = R.alloc(); t0 = R.alloc(); t1 = R.alloc(); t2 = R.alloc()
    sLw, sWk, sHk, sLW, sLH = 29, 30, 31, 32, 33
    A("s_mov_b32 s10, %d" % (512 * WROW)); A("s_mov_b32 s11, 0x20000")
    A("s_mov_b32 s6, %d" % (WS_H2 + S * D * 2)); A("s_mov_b32 s7, 0x20000")
    A(f"s_sub_u32 {s(sLw)}, {s(sW)}, 4")
    A(f"v_and_b32 {v(vl)}, 63, v0")
    div14(A, t0, t1, vl, t2)
    A(f"v_mul_u32_u24 {v(t0)}, {WROW}, {v(t0)}")
    A(f"v_lshl_add_u32 {v(t0)}, {v(t1)}, 4, {v(t0)}")
    A(f"s_mul_i32 {s(sT0)}, {s(sLw)}, {16*WROW}")
    A(f"v_add_u32 {v(voW[0])}, {s(sT0)}, {v(t0)}")
    for g in range(1, 4): A(f"v_add_u32 {v(voW[g])}, {g*(4*WROW - GS)}, {v(voW[0])}")
    A(f"v_lshrrev_b32 {v(t0)}, 3, {v(vl)}")
    A(f"v_and_b32 {v(t1)}, 7, {v(vl)}")
    A(f"v_xor_b32 {v(t1)}, {v(t1)}, {v(t0)}")
    A(f"v_lshlrev_b32 {v(t1)}, 4, {v(t1)}")
    A(f"v_lshl_add_u32 {v(t0)}, {v(t0)}, 10, {v(t1)}")
    A(f"s_lshl_b32 {s(sT0)}, {s(sLw)}, 14")
    A(f"v_add_u32 {v(voH[0])}, {s(sT0)}, {v(t0)}")
    A(f"v_add_u32 {v(voH[1])}, {8192-1024}, {v(voH[0])}")
    A(f"s_mul_i32 {s(sWk)}, {s(sCC)}, 224")
    A(f"s_lshl_b32 {s(sHk)}, {s(sRB)}, 16")
    A(f"s_add_u32 {s(sHk)}, {s(sHk)}, {WS_H2}")
    A(f"s_mul_i32 {s(sLW)}, {s(sLw)}, {4*GS}")
    A(f"s_lshl_b32 {s(sLH)}, {s(sLw)}, 11")
    A("s_waitcnt lgkmcnt(0)")
    def issue(st):
        half, kc = st >> 3, st & 7; slot = st % NS
        A(f"s_add_u32 m0, {s(sLW)}, {W_OFF + slot*SLOT}")
        A(f"s_add_u32 {s(sT0)}, {s(sWk)}, {kc*64*WROW + (1792 if half == 0 else 0)}")
        A("s_mov_b32 exec_hi, 0x00ffffff")
        for g in range(4):
            A(f"buffer_load_dwordx4 {v(voW[g])}, s[8:11], {s(sT0)} offen offset:{g*GS} lds")
        if half == 0:
            A(f"s_add_u32 m0, {s(sLH)}, {kc*8192}")
            A(f"s_add_u32 {s(sT0)}, {s(sHk)}, {kc*128}")
            A("s_mov_b32 exec_hi, -1")
            for j in range(2):
                A(f"buffer_load_dwordx4 {v(voH[j])}, s[4:7], {s(sT0)} offen offset:{j*1024} lds")
    loader_pipeline(A, NST, NS, issue, lambda st: 6 if st < 8 else 4)
    A("s_endpgm")
    A.label(f"{name}_end")
    A("s_endpgm")
    return dict(name=name, grid=NWG, block=512, lds=LDS, vgpr=max(nv, R.hi), sgpr=96 if stamps else 40)

def gen_kg(A, name="kg_kernel", NS=6, stamps=False, prefetch=True, noread=False, nomfma=False):
    NWG = 256; TF = 112; TT = 64; NST = 32
    A_B = 14 * 1024; B_OFF = 15 * 1024; STAGE = 24 * 1024
    RING = NS * STAGE
    Z_OFF = RING
    LDS = RING + 64 * 224
    last_slot = (NST - 1) % NS
    X_OFF = ((last_slot + 1) % NS) * STAGE
    assert X_OFF + 4 * 7168 <= RING and not (X_OFF <= last_slot * STAGE < X_OFF + 4 * 7168)
    A.barrier_state(); A.raw(kernel_header(name))
    ST = Stamps(A, on=stamps, kidx=3)
    sW, sFB, sTB, sT0, sT1, sT2, sSlot, sI = 20, 21, 22, 23, 24, 25, 26, 27
    A(f"s_cmp_ge_u32 s2, {NWG}")
    A(f"s_cbranch_scc1 {name}_end")
    ST.stamp()
    load_ptr(A, 4, "ws"); load_ptr(A, 8, "wsp"); load_ptr(A, 12, "bsp")
    if prefetch: load_ptr(A, 16, "wout")
    A(f"v_readfirstlane_b32 {s(sW)}, v0")
    A(f"s_and_b32 {s(sFB)}, s2, 1")
    A(f"s_bfe_u32 {s(sT0)}, s2, 0x20003")
    A(f"s_lshl2_add_u32 {s(sFB)}, {s(sFB)}, {s(sT0)}")
    A(f"s_bfe_u32 {s(sTB)}, s2, 0x20001")
    A(f"s_lshr_b32 {s(sT0)}, s2, 5")
    A(f"s_lshl3_add_u32 {s(sTB)}, {s(sTB)}, {s(sT0)}")
    A(f"s_lshr_b32 {s(sW)}, {s(sW)}, 6")
    A(f"s_cmp_ge_u32 {s(sW)}, 4")
    A(f"s_cbranch_scc1 {name}_loader")
    R = RegAlloc(1)
    vq = R.alloc(); vi = R.alloc(); vA = R.alloc(); vB = [R.alloc() for _ in range(2)]
    cA = R.alloc(); cB = [R.alloc() for _ in range(2)]
    vtb = R.alloc(8, 4); vt = [vtb + k for k in range(8)]
    acc = [[R.alloc(4) for _ in range(2)] for _ in range(7)]
    FA = [[R.alloc(4) for _ in range(7)] for _ in range(2)]
    FB = [[R.alloc(4) for _ in range(2)] for _ in range(2)]
    vb = R.alloc(); vtt = R.alloc()
    A(f"v_bfe_u32 {v(vq)}, v0, 4, 2")
    A(f"v_and_b32 {v(vi)}, 15, v0")
    A(f"v_lshl_add_u32 {v(vtt)}, {s(sW)}, 4, {v(vi)}")
    A(f"v_lshl_add_u32 {v(vt[0])}, {s(sTB)}, 6, {v(vtt)}")
    A(f"v_lshlrev_b32 {v(vt[0])}, 1, {v(vt[0])}")
    A(f"s_and_b32 {s(sT0)}, {s(sW)}, 1")
    A(f"s_lshl_b32 {s(sT0)}, {s(sT0)}, 2")
    A(f"v_add_u32 {v(vt[1])}, {s(sT0)}, {v(vq)}")
    A(f"v_and_b32 {v(vt[2])}, 7, {v(vi)}")
    A(f"v_xor_b32 {v(vt[1])}, {v(vt[1])}, {v(vt[2])}")
    A(f"v_lshlrev_b32 {v(vt[1])}, 4, {v(vt[1])}")
    A(f"v_lshl_add_u32 {v(vA)}, {v(vi)}, 7, {v(vt[1])}")
    A(f"v_lshl_add_u32 {v(vB[0])}, {v(vtt)}, 7, {v(vt[1])}")
    A(f"v_add_u32 {v(vB[0])}, {B_OFF}, {v(vB[0])}")
    A(f"v_xor_b32 {v(vB[1])}, 2048, {v(vB[0])}") if B_OFF % 4096 == 0 else None
    if B_OFF % 4096:
        A(f"v_xor_b32 {v(vt[3])}, 16, {v(vtt)}")
        A(f"v_lshl_add_u32 {v(vB[1])}, {v(vt[3])}, 7, {v(vt[1])}")
        A(f"v_add_u32 {v(vB[1])}, {B_OFF}, {v(vB[1])}")
    A("s_waitcnt lgkmcnt(0)")
    A(f"global_load_ushort {v(vb)}, {v(vt[0])}, s[12:13]")
    A(f"s_mov_b32 {s(sSlot)}, 0")
    A(f"s_mov_b32 {s(sI)}, 0")
    def rds(buf, a_, b_):
        if noread: return []
        return [f"ds_read_b128 {v(FA[buf][fa],4)}, {v(a_)} offset:{fa*2048}" for fa in range(7)] + \
               [f"ds_read_b128 {v(FB[buf][nb],4)}, {v(b_[nb])}" for nb in range(2)]
    def mms(buf, first=False):
        o = []
        if nomfma: return o
        for fa in range(7):
            for nb in range(2):
                c = "0" if first else v(acc[fa][nb], 4)
                o.append(f"v_mfma_f32_16x16x32_bf16 {v(acc[fa][nb],4)}, {v(FA[buf][fa],4)}, {v(FB[buf][nb],4)}, {c}")
        return o
    def adv():
        A(f"s_add_u32 {s(sSlot)}, {s(sSlot)}, {STAGE}")
        A(f"s_cmp_ge_u32 {s(sSlot)}, {RING}")
        A(f"s_cselect_b32 {s(sSlot)}, 0, {s(sSlot)}")
        A(f"v_add_u32 {v(cA)}, {s(sSlot)}, {v(vA)}")
        for nb in range(2): A(f"v_add_u32 {v(cB[nb])}, {s(sSlot)}, {v(vB[nb])}")
    A("s_barrier")
    ST.stamp()
    for r in rds(0, vA, vB): A(r)
    adv()
    A("s_waitcnt lgkmcnt(0)")
    A("s_barrier")
    for x in interleave2(mms(0, True), rds(1, cA, cB)): A(x)
    loop = f"{name}_cloop"
    A.label(loop)
    for buf in (1, 0):
        adv()
        A("s_waitcnt lgkmcnt(0)")
        A("s_barrier")
        for x in interleave2(mms(buf), rds(buf ^ 1, cA, cB)): A(x)
    A(f"s_add_u32 {s(sI)}, {s(sI)}, 1")
    A(f"s_cmp_lt_u32 {s(sI)}, 15")
    A(f"s_cbranch_scc1 {loop}")
    A("s_waitcnt lgkmcnt(0)")
    for x in mms(1): A(x)
    ST.stamp()
    A(f"v_and_b32 {v(vt[0])}, 63, v0")
    A(f"s_mul_i32 {s(sT0)}, {s(sW)}, 7168")
    A(f"s_add_u32 {s(sT0)}, {s(sT0)}, {X_OFF}")
    A(f"v_lshl_add_u32 {v(vt[1])}, {v(vt[0])}, 4, {s(sT0)}")
    A(f"s_xor_b32 {s(sT1)}, {s(sW)}, 1")
    A(f"s_mul_i32 {s(sT1)}, {s(sT1)}, 7168")
    A(f"s_add_u32 {s(sT1)}, {s(sT1)}, {X_OFF}")
    A(f"v_lshl_add_u32 {v(vt[2])}, {v(vt[0])}, 4, {s(sT1)}")
    for fa in range(7): A(f"ds_write_b128 {v(vt[1])}, {v(acc[fa][1],4)} offset:{fa*1024}")
    A(f"v_mul_u32_u24 {v(vt[3])}, 224, {v(vtt)}")
    A(f"v_lshl_add_u32 {v(vt[3])}, {v(vq)}, 3, {v(vt[3])}")
    A(f"v_add_u32 {v(vt[3])}, {Z_OFF}, {v(vt[3])}")
    vz = FB[0][0]
    for j in range(4):
        A(f"v_add_u32 {v(vt[4])}, {64*j}, {v(vt[0])}")
        div14(A, vt[5], vt[6], vt[4], vt[7])
        A(f"v_mul_u32_u24 {v(vt[5])}, 1792, {v(vt[5])}")
        A(f"v_lshl_add_u32 {v(vz+j)}, {v(vt[6])}, 4, {v(vt[5])}")
    A(f"s_lshl2_add_u32 {s(sT0)}, {s(sTB)}, {s(sW)}")
    A(f"s_mul_i32 {s(sT0)}, {s(sT0)}, {16*1792}")
    A(f"s_mul_i32 {s(sT1)}, {s(sFB)}, 224")
    A(f"s_add_u32 {s(sT0)}, {s(sT0)}, {s(sT1)}")
    A(f"s_add_u32 {s(sT0)}, {s(sT0)}, {WS_P0}")
    for j in range(4): A(f"v_add_u32 {v(vz+j)}, {s(sT0)}, {v(vz+j)}")
    A(f"s_mul_i32 {s(sT0)}, {s(sW)}, {16*224}")
    A(f"s_add_u32 {s(sT0)}, {s(sT0)}, {Z_OFF}")
    A(f"v_lshl_add_u32 {v(vt[4])}, {v(vt[0])}, 4, {s(sT0)}")
    A("s_waitcnt vmcnt(0) lgkmcnt(0)")
    A("s_barrier")
    for fa in range(7): A(f"ds_read_b128 {v(FA[0][fa],4)}, {v(vt[2])} offset:{fa*1024}")
    zr = [FA[1][fa] for fa in range(7)]
    for fa in range(7): A(f"ds_read_b64 {v(zr[fa],2)}, {v(vt[3])} offset:{fa*32}")
    A(f"v_lshlrev_b32 {v(vb)}, 16, {v(vb)}")
    A(f"v_mov_b32 {v(FB[1][0])}, {v(vb)}")
    A(f"v_mov_b32 {v(FB[1][0]+1)}, {v(vb)}")
    A(f"s_mov_b32 {s(sT0)}, 0xffff0000")
    for fa in range(7):
        ac = acc[fa][0]; pr = FA[0][fa]; z = zr[fa]
        A(f"s_waitcnt lgkmcnt({min(15, 13 - fa)})")
        for h in (0, 2): A(pk("add", ac + h, v(ac + h, 2), v(pr + h, 2)))
        for h in (0, 2): A(pk("add", ac + h, v(ac + h, 2), v(FB[1][0], 2)))
        A(f"s_waitcnt lgkmcnt({6 - fa})")
        for h in range(2):
            A(f"v_lshlrev_b32 {v(z+2)}, 16, {v(z+h)}")
            A(f"v_and_b32 {v(z+3)}, {s(sT0)}, {v(z+h)}")
            A(pk("mul", ac + 2*h, v(ac + 2*h, 2), v(z + 2, 2)))
            A(f"v_cvt_pk_bf16_f32 {v(pr+h)}, {v(ac+2*h)}, {v(ac+2*h+1)}")
    for fa in range(7): A(f"ds_write_b64 {v(vt[3])}, {v(FA[0][fa],2)} offset:{fa*32}")
    A("s_waitcnt lgkmcnt(0)")
    ob = [FA[1][j] for j in range(4)]
    for j in range(4): A(f"ds_read_b128 {v(ob[j],4)}, {v(vt[4])} offset:{j*1024}")
    for j in range(3):
        A(f"s_waitcnt lgkmcnt({3-j})")
        A(f"global_store_dwordx4 {v(vz+j)}, {v(ob[j],4)}, s[4:5]")
    A("s_waitcnt lgkmcnt(0)")
    A("s_mov_b32 exec_hi, 0")
    A(f"global_store_dwordx4 {v(vz+3)}, {v(ob[3],4)}, s[4:5]")
    if stamps:
        A("s_mov_b32 exec_hi, -1")
        ST.stamp(); A("s_waitcnt vmcnt(0)"); ST.stamp(); ST.flush(4, vt[0])
    A("s_endpgm")
    nv = R.hi
    A.label(f"{name}_loader")
    R = RegAlloc(1)
    vo = [R.alloc() for _ in range(6)]; vz1 = [R.alloc() for _ in range(4)]
    vl = R.alloc(); t0 = R.alloc(); t1 = R.alloc(); t2 = R.alloc(); t3 = R.alloc()
    sLw, sK1, sK2, sL1, sL2 = 28, 29, 30, 31, 32
    SR1, SR2 = 36, 40
    A(f"s_sub_u32 {s(sLw)}, {s(sW)}, 4")
    A(f"v_and_b32 {v(vl)}, 63, v0")
    A(f"v_lshrrev_b32 {v(t0)}, 3, {v(vl)}")
    A(f"v_and_b32 {v(t1)}, 7, {v(vl)}")
    A(f"v_xor_b32 {v(t1)}, {v(t1)}, {v(t0)}")
    A(f"v_lshlrev_b32 {v(t1)}, 4, {v(t1)}")
    A(f"v_lshl_add_u32 {v(t0)}, {v(t0)}, 12, {v(t1)}")
    A(f"s_lshl_b32 {s(sT0)}, {s(sLw)}, 3")
    A(f"s_mov_b32 {s(sT1)}, 0x030c0600")
    A(f"s_lshr_b32 {s(sT1)}, {s(sT1)}, {s(sT0)}")
    A(f"s_and_b32 {s(sT1)}, {s(sT1)}, 0xff")
    A(f"s_mov_b32 {s(sT2)}, 0x06000903")
    A(f"s_lshr_b32 {s(sT2)}, {s(sT2)}, {s(sT0)}")
    A(f"s_and_b32 {s(sT2)}, {s(sT2)}, 0xff")
    STEP = 8 * 4096 - 1024
    A(f"s_lshl_b32 {s(sT0)}, {s(sT1)}, 15")
    A(f"v_add_u32 {v(vo[0])}, {s(sT0)}, {v(t0)}")
    A(f"s_lshl_b32 {s(sT0)}, {s(sT2)}, 15")
    A(f"v_add_u32 {v(vo[3])}, {s(sT0)}, {v(t0)}")
    for k in (1, 2):
        A(f"v_add_u32 {v(vo[k])}, {k*STEP}, {v(vo[0])}")
        A(f"v_add_u32 {v(vo[3+k])}, {k*STEP}, {v(vo[3])}")
    A(f"s_lshl_b32 {s(sL1)}, {s(sT1)}, 10")
    A(f"s_lshl_b32 {s(sL2)}, {s(sT2)}, 10")
    A(f"s_cmp_eq_u32 {s(sLw)}, 3")
    A(f"s_cselect_b32 {s(sT0)}, {B_OFF}, 0")
    A(f"s_add_u32 {s(sL1)}, {s(sL1)}, {s(sT0)}")
    A(f"s_cmp_ge_u32 {s(sLw)}, 2")
    A(f"s_cselect_b32 {s(sT0)}, {B_OFF}, 0")
    A(f"s_add_u32 {s(sL2)}, {s(sL2)}, {s(sT0)}")
    for j in range(4):
        A(f"v_add_u32 {v(t1)}, {64*j}, {v(vl)}")
        div14(A, t2, t3, t1, vz1[j])
        A(f"v_mul_u32_u24 {v(t2)}, 1792, {v(t2)}")
        A(f"v_lshl_add_u32 {v(vz1[j])}, {v(t3)}, 4, {v(t2)}")
        if j: A(f"v_subrev_u32 {v(vz1[j])}, {j*1024}, {v(vz1[j])}")
    A("s_waitcnt lgkmcnt(0)")
    A(f"s_mul_i32 {s(sT0)}, {s(sFB)}, {TF*4096}")
    A(f"s_add_u32 {s(sT0)}, {s(sT0)}, {WS_Z2T}")
    A(f"s_add_u32 s44, s4, {s(sT0)}")
    A(f"s_addc_u32 s45, s5, 0")
    A(f"s_lshl_b32 {s(sT0)}, {s(sTB)}, 18")
    A(f"s_add_u32 s46, s8, {s(sT0)}")
    A(f"s_addc_u32 s47, s9, 0")
    A(f"s_mov_b32 s48, {TT*4096}"); A(f"s_mov_b32 s49, {TF*4096}")
    A(f"s_cmp_eq_u32 {s(sLw)}, 3")
    A(f"s_cselect_b32 {s(SR1)}, s46, s44")
    A(f"s_cselect_b32 {s(SR1+1)}, s47, s45")
    A(f"s_cselect_b32 {s(SR1+2)}, s48, s49")
    A(f"s_mov_b32 {s(SR1+3)}, 0x20000")
    A(f"s_cmp_ge_u32 {s(sLw)}, 2")
    A(f"s_cselect_b32 {s(SR2)}, s46, s44")
    A(f"s_cselect_b32 {s(SR2+1)}, s47, s45")
    A(f"s_cselect_b32 {s(SR2+2)}, s48, s49")
    A(f"s_mov_b32 {s(SR2+3)}, 0x20000")
    A(f"s_mov_b32 {s(sK1)}, 0")
    A(f"s_mov_b32 {s(sSlot)}, 0")
    def issue():
        A(f"s_add_u32 m0, {s(sSlot)}, {s(sL1)}")
        A(f"s_add_u32 {s(sT0)}, {s(sSlot)}, {s(sL2)}")
        for k in range(3): A(f"buffer_load_dwordx4 {v(vo[k])}, {s(SR1,4)}, {s(sK1)} offen offset:{k*1024} lds")
        A(f"s_mov_b32 m0, {s(sT0)}")
        A(f"s_add_u32 {s(sSlot)}, {s(sSlot)}, {STAGE}")
        for k in range(3): A(f"buffer_load_dwordx4 {v(vo[3+k])}, {s(SR2,4)}, {s(sK1)} offen offset:{k*1024} lds")
        A(f"s_add_u32 {s(sK1)}, {s(sK1)}, 128")
        A(f"s_cmp_ge_u32 {s(sSlot)}, {RING}")
        A(f"s_cselect_b32 {s(sSlot)}, 0, {s(sSlot)}")
    n = 6
    for st in range(NS): issue()
    npf = 0
    if prefetch:
        A(f"s_lshr_b32 {s(sT0)}, s2, 3")
        A(f"s_lshl2_add_u32 {s(sT0)}, {s(sT0)}, {s(sLw)}")
        A(f"v_lshl_add_u32 {v(t1)}, {s(sT0)}, 6, {v(vl)}")
        A(f"v_lshrrev_b32 {v(t2)}, 2, {v(t1)}")
        A(f"v_and_b32 {v(t1)}, 3, {v(t1)}")
        A(f"v_lshlrev_b32 {v(t2)}, 10, {v(t2)}")
        A(f"v_lshl_add_u32 {v(t2)}, {v(t1)}, 7, {v(t2)}")
        A(f"s_and_b32 {s(sT0)}, s2, 1")
        A(f"s_lshl_b32 {s(sT0)}, {s(sT0)}, 9")
        A(f"s_mov_b32 s18, {FH*D*2}"); A("s_mov_b32 s19, 0x20000")
        A(f"buffer_load_dword {v(t3)}, {v(t2)}, s[16:19], {s(sT0)} offen")
        npf = 1
    A(f"s_waitcnt vmcnt({(NS-1)*n + npf})")
    A("s_barrier")
    nsteady = NST - NS
    A(f"s_mov_b32 {s(sI)}, 0")
    lp = f"{name}_lloop"
    A.label(lp)
    A(f"s_waitcnt vmcnt({(NS-2)*n})")
    A("s_barrier")
    issue()
    A(f"s_add_u32 {s(sI)}, {s(sI)}, 1")
    A(f"s_cmp_lt_u32 {s(sI)}, {nsteady}")
    A(f"s_cbranch_scc1 {lp}")
    A(f"s_lshl2_add_u32 {s(sT0)}, {s(sTB)}, {s(sLw)}")
    A(f"s_mul_i32 {s(sT0)}, {s(sT0)}, {16*1792}")
    A(f"s_mul_i32 {s(sT1)}, {s(sFB)}, 224")
    A(f"s_add_u32 {s(sT0)}, {s(sT0)}, {s(sT1)}")
    A(f"s_add_u32 {s(sT0)}, {s(sT0)}, {WS_Z1}")
    A(f"s_mov_b32 s6, {WS_Z1 + S*FH*2}"); A("s_mov_b32 s7, 0x20000")
    A(f"s_mul_i32 {s(sT1)}, {s(sLw)}, {16*224}")
    A(f"s_add_u32 m0, {s(sT1)}, {Z_OFF}")
    for j in range(3): A(f"buffer_load_dwordx4 {v(vz1[j])}, s[4:7], {s(sT0)} offen offset:{j*1024} lds")
    A("s_mov_b32 exec_hi, 0")
    A(f"buffer_load_dwordx4 {v(vz1[3])}, s[4:7], {s(sT0)} offen offset:3072 lds")
    A("s_mov_b32 exec_hi, -1")
    for j in range(NST - NS + 1, NST):
        A(f"s_waitcnt vmcnt({min(NS-2, NST-1-j)*n + 4})")
        A("s_barrier")
    A("s_waitcnt vmcnt(0)")
    A("s_barrier")
    A("s_endpgm")
    A.label(f"{name}_end")
    A("s_endpgm")
    return dict(name=name, grid=NWG, block=512, lds=LDS, vgpr=max(nv, R.hi), sgpr=96 if stamps else 56)

def gen_ko(A, name="ko_kernel", NS=4, stamps=False):
    NWG = 256; NST = 7
    W_B = 16384; P_B = 16384; SLOT = W_B + P_B
    X_OFF = NS * SLOT
    LDS = X_OFF + 8192
    last_slot = (NST - 1) % NS
    E_OFF = ((last_slot + 1) % NS) * SLOT
    A.barrier_state(); A.raw(kernel_header(name))
    ST = Stamps(A, on=stamps, kidx=4)
    sW, sDB, sTB, sT0, sT1, sT2 = 20, 21, 22, 23, 24, 25
    A(f"s_cmp_ge_u32 s2, {NWG}")
    A(f"s_cbranch_scc1 {name}_end")
    ST.stamp()
    load_ptr(A, 4, "ws"); load_ptr(A, 8, "wout"); load_ptr(A, 12, "out")
    A(f"v_readfirstlane_b32 {s(sW)}, v0")
    A(f"s_and_b32 {s(sDB)}, s2, 1")
    A(f"s_bfe_u32 {s(sT0)}, s2, 0x20003")
    A(f"s_lshl2_add_u32 {s(sDB)}, {s(sDB)}, {s(sT0)}")
    A(f"s_bfe_u32 {s(sTB)}, s2, 0x20001")
    A(f"s_lshr_b32 {s(sT0)}, s2, 5")
    A(f"s_lshl3_add_u32 {s(sTB)}, {s(sTB)}, {s(sT0)}")
    A(f"s_lshr_b32 {s(sW)}, {s(sW)}, 6")
    A(f"s_cmp_ge_u32 {s(sW)}, 4")
    A(f"s_cbranch_scc1 {name}_loader")
    R = RegAlloc(1)
    vq = R.alloc(); vi = R.alloc(); vtt = R.alloc()
    vtb = R.alloc(8, 4); vt = [vtb + k for k in range(8)]
    NG = 2
    vW = [[R.alloc() for _ in range(4)] for _ in range(NG)]
    vP = [[[R.alloc() for _ in range(2)] for _ in range(2)] for _ in range(NG)]
    acc = [[R.alloc(4) for _ in range(2)] for _ in range(4)]
    FW = [[[R.alloc(4) for _ in range(4)] for _ in range(2)] for _ in range(2)]
    FP = [[[R.alloc(4) for _ in range(2)] for _ in range(2)] for _ in range(2)]
    gb = [R.alloc(4) for _ in range(4)]
    A(f"v_bfe_u32 {v(vq)}, v0, 4, 2")
    A(f"v_and_b32 {v(vi)}, 15, v0")
    A(f"v_lshl_add_u32 {v(vtt)}, {s(sW)}, 4, {v(vi)}")
    A(f"s_and_b32 {s(sT2)}, {s(sW)}, 1")
    A(f"v_lshrrev_b32 {v(vt[0])}, 2, {v(vi)}")
    A(f"v_lshl_add_u32 {v(vt[0])}, {v(vq)}, 3, {v(vt[0])}")
    A(f"v_lshlrev_b32 {v(vt[0])}, 7, {v(vt[0])}")
    A(f"v_and_b32 {v(vt[1])}, 1, {v(vi)}")
    A(f"v_lshl_add_u32 {v(vt[0])}, {v(vt[1])}, 3, {v(vt[0])}")
    A(f"s_lshl_b32 {s(sT0)}, {s(sT2)}, 13")
    A(f"v_add_u32 {v(vt[0])}, {s(sT0)}, {v(vt[0])}")
    A(f"v_bfe_u32 {v(vt[1])}, {v(vi)}, 3, 1")
    A(f"v_and_b32 {v(vt[2])}, 1, {v(vq)}")
    A(f"v_lshl_or_b32 {v(vt[1])}, {v(vt[2])}, 1, {v(vt[1])}")
    A(f"v_lshlrev_b32 {v(vt[1])}, 1, {v(vt[1])}")
    A(f"v_bfe_u32 {v(vt[2])}, {v(vi)}, 1, 1")
    A(f"v_xor_b32 {v(vt[1])}, {v(vt[1])}, {v(vt[2])}")
    for dt in range(4):
        A(f"v_xor_b32 {v(vt[3])}, {2*dt}, {v(vt[1])}")
        A(f"v_lshl_add_u32 {v(vW[0][dt])}, {v(vt[3])}, 4, {v(vt[0])}")
    A(f"v_and_b32 {v(vt[0])}, 7, {v(vi)}")
    A(f"v_xor_b32 {v(vt[1])}, {v(vq)}, {v(vt[0])}")
    A(f"v_lshlrev_b32 {v(vt[1])}, 4, {v(vt[1])}")
    A(f"s_add_u32 {s(sT0)}, {s(sT0)}, {W_B}")
    A(f"v_add_u32 {v(vt[1])}, {s(sT0)}, {v(vt[1])}")
    A(f"v_lshl_add_u32 {v(vP[0][0][0])}, {v(vtt)}, 7, {v(vt[1])}")
    A(f"v_xor_b32 {v(vP[0][1][0])}, 2048, {v(vP[0][0][0])}")
    for tl in range(2): A(f"v_xor_b32 {v(vP[0][tl][1])}, 64, {v(vP[0][tl][0])}")
    for dt in range(4): A(f"v_add_u32 {v(vW[1][dt])}, {2*SLOT}, {v(vW[0][dt])}")
    for tl in range(2):
        for ks in range(2): A(f"v_add_u32 {v(vP[1][tl][ks])}, {2*SLOT}, {v(vP[0][tl][ks])}")
    A(f"s_lshl_b32 {s(sT0)}, {s(sDB)}, 8")
    A(f"s_add_u32 {s(sT0)}, {s(sT0)}, {WS_MOD + 2560*4}")
    A(f"v_lshl_add_u32 {v(vt[0])}, {v(vq)}, 4, {s(sT0)}")
    A("s_waitcnt lgkmcnt(0)")
    for dt in range(4): A(f"global_load_dwordx4 {v(gb[dt],4)}, {v(vt[0])}, s[4:5] offset:{dt*64}")
    def reads(st, buf):
        slot = st % NS; g = slot // 2; so = (slot % 2) * SLOT
        o = []
        for ks in range(2):
            for tl in range(2): o.append(f"ds_read_b128 {v(FP[buf][ks][tl],4)}, {v(vP[g][tl][ks])} offset:{so}")
            for dt in range(4):
                for p in range(2):
                    o.append(f"ds_read_b64_tr_b16 {v(FW[buf][ks][dt]+2*p,2)}, {v(vW[g][dt])} offset:{so + ks*4096 + p*512}")
        return o
    def mfmas(st, buf):
        o = []
        for ks in range(2):
            for dt in range(4):
                for tl in range(2):
                    c = "0" if st == 0 and ks == 0 else v(acc[dt][tl], 4)
                    o.append(f"v_mfma_f32_16x16x32_bf16 {v(acc[dt][tl],4)}, {v(FW[buf][ks][dt],4)}, {v(FP[buf][ks][tl],4)}, {c}")
        return o
    consumer_full(A, NST, reads, mfmas)
    ST.stamp()
    A(f"v_and_b32 {v(vt[0])}, 63, v0")
    A(f"s_lshl_b32 {s(sT0)}, {s(sW)}, 12")
    A(f"s_add_u32 {s(sT0)}, {s(sT0)}, {E_OFF}")
    A(f"v_lshl_add_u32 {v(vt[1])}, {v(vt[0])}, 4, {s(sT0)}")
    A(f"v_xor_b32 {v(vt[2])}, 4096, {v(vt[1])}")
    for dt in range(4): A(f"ds_write_b128 {v(vt[1])}, {v(acc[dt][1],4)} offset:{dt*1024}")
    va = [vt[4], vt[5], vt[6], vt[7]]
    A(f"v_and_b32 {v(vt[3])}, 7, {v(vi)}")
    A(f"v_lshrrev_b32 {v(vW[0][0])}, 1, {v(vq)}")
    A(f"v_xor_b32 {v(vt[3])}, {v(vt[3])}, {v(vW[0][0])}")
    A(f"v_and_b32 {v(vW[0][0])}, 1, {v(vq)}")
    A(f"v_lshlrev_b32 {v(vW[0][0])}, 3, {v(vW[0][0])}")
    A(f"v_lshl_add_u32 {v(vW[0][0])}, {v(vtt)}, 7, {v(vW[0][0])}")
    A(f"v_add_u32 {v(vW[0][0])}, {X_OFF}, {v(vW[0][0])}")
    for dt in range(4):
        A(f"v_xor_b32 {v(vW[0][1])}, {2*dt}, {v(vt[3])}")
        A(f"v_lshl_add_u32 {v(va[dt])}, {v(vW[0][1])}, 4, {v(vW[0][0])}")
    vrb = vW[1][0]; vgo = vW[1][1]
    A(f"v_lshrrev_b32 {v(vW[1][2])}, 3, {v(vt[0])}")
    A(f"v_and_b32 {v(vW[1][3])}, 7, {v(vt[0])}")
    A(f"v_xor_b32 {v(vrb)}, {v(vW[1][2])}, {v(vW[1][3])}")
    A(f"v_lshlrev_b32 {v(vrb)}, 4, {v(vrb)}")
    A(f"v_lshl_add_u32 {v(vrb)}, {v(vW[1][2])}, 7, {v(vrb)}")
    A(f"s_lshl_b32 {s(sT0)}, {s(sW)}, 11")
    A(f"s_add_u32 {s(sT0)}, {s(sT0)}, {X_OFF}")
    A(f"v_add_u32 {v(vrb)}, {s(sT0)}, {v(vrb)}")
    A(f"v_lshlrev_b32 {v(vgo)}, 10, {v(vW[1][2])}")
    A(f"v_lshl_add_u32 {v(vgo)}, {v(vW[1][3])}, 4, {v(vgo)}")
    A(f"s_lshl2_add_u32 {s(sT0)}, {s(sTB)}, {s(sW)}")
    A(f"s_lshl_b32 {s(sT0)}, {s(sT0)}, 14")
    A(f"s_lshl_b32 {s(sT1)}, {s(sDB)}, 7")
    A(f"s_add_u32 {s(sT0)}, {s(sT0)}, {s(sT1)}")
    A(f"v_add_u32 {v(vgo)}, {s(sT0)}, {v(vgo)}")
    A("s_waitcnt vmcnt(0) lgkmcnt(0)")
    A("s_barrier")
    for dt in range(4): A(f"ds_read_b128 {v(FW[0][0][dt],4)}, {v(vt[2])} offset:{dt*1024}")
    xa = [FW[0][1][dt] for dt in range(4)]
    for dt in range(4): A(f"ds_read_b64 {v(xa[dt],2)}, {v(va[dt])}")
    A(f"s_mov_b32 {s(sT0)}, 0xffff0000")
    for dt in range(4):
        ac = acc[dt][0]; pr = FW[0][0][dt]; x = xa[dt]
        A(f"s_waitcnt lgkmcnt({7-dt})")
        for h in (0, 2): A(pk("add", ac + h, v(ac + h, 2), v(pr + h, 2)))
        A(f"s_waitcnt lgkmcnt({3-dt})")
        for h in range(2):
            A(f"v_lshlrev_b32 {v(x+2)}, 16, {v(x+h)}")
            A(f"v_and_b32 {v(x+3)}, {s(sT0)}, {v(x+h)}")
            A(pk("fma", pr + 2*0, v(ac + 2*h, 2), v(gb[dt] + 2*h, 2), v(x + 2, 2)))
            A(f"v_cvt_pk_bf16_f32 {v(ac+h)}, {v(pr)}, {v(pr+1)}") if h == 0 else A(f"v_cvt_pk_bf16_f32 {v(ac+1)}, {v(pr)}, {v(pr+1)}")
        A(f"ds_write_b64 {v(va[dt])}, {v(ac,2)}")
    A("s_waitcnt lgkmcnt(0)")
    ob = [FP[0][0][0], FP[0][0][1]]
    for u in range(2): A(f"ds_read_b128 {v(ob[u],4)}, {v(vrb)} offset:{u*1024}")
    A("s_waitcnt lgkmcnt(1)")
    A(f"global_store_dwordx4 {v(vgo)}, {v(ob[0],4)}, s[12:13]")
    A(f"v_add_u32 {v(vgo)}, 8192, {v(vgo)}")
    A("s_waitcnt lgkmcnt(0)")
    A(f"global_store_dwordx4 {v(vgo)}, {v(ob[1],4)}, s[12:13]")
    if stamps:
        ST.stamp(); A("s_waitcnt vmcnt(0)"); ST.stamp(); ST.flush(4, vt[4])
    A("s_endpgm")
    nv = R.hi
    A.label(f"{name}_loader")
    R = RegAlloc(1)
    voW = [R.alloc() for _ in range(4)]; voP = [R.alloc() for _ in range(4)]; voX = [R.alloc() for _ in range(2)]
    vl = R.alloc(); t0 = R.alloc(); t1 = R.alloc(); t2 = R.alloc(); t3 = R.alloc()
    sLw, sWk, sPk, sLW, sLP, sXb = 28, 29, 30, 31, 32, 33
    A(f"s_mov_b32 s10, {FH*D*2}"); A("s_mov_b32 s11, 0x20000")
    A(f"s_mov_b32 s6, {WS_P0 + S*FH*2}"); A("s_mov_b32 s7, 0x20000")
    A(f"s_sub_u32 {s(sLw)}, {s(sW)}, 4")
    A(f"v_and_b32 {v(vl)}, 63, v0")
    A(f"v_lshrrev_b32 {v(t0)}, 3, {v(vl)}")
    A(f"v_and_b32 {v(t1)}, 7, {v(vl)}")
    A(f"v_bfe_u32 {v(t2)}, {v(vl)}, 4, 1")
    A(f"s_lshl_b32 {s(sT0)}, {s(sLw)}, 15")
    for jj in range(4):
        A(f"v_or_b32 {v(t3)}, {(jj&1)<<1}, {v(t2)}")
        A(f"v_lshlrev_b32 {v(t3)}, 1, {v(t3)}")
        A(f"v_xor_b32 {v(t3)}, {v(t3)}, {v(t1)}")
        A(f"v_lshlrev_b32 {v(t3)}, 4, {v(t3)}")
        A(f"v_lshl_add_u32 {v(voW[jj])}, {v(t0)}, 10, {v(t3)}")
        A(f"v_add_u32 {v(voW[jj])}, {s(sT0)}, {v(voW[jj])}")
        if jj: A(f"v_add_u32 {v(voW[jj])}, {jj*(8192-1024)}, {v(voW[jj])}")
    A(f"v_xor_b32 {v(t1)}, {v(t1)}, {v(t0)}")
    A(f"v_lshlrev_b32 {v(t1)}, 4, {v(t1)}")
    A(f"s_and_b32 {s(sT0)}, {s(sLw)}, 1")
    A(f"s_lshl_b32 {s(sT0)}, {s(sT0)}, 5")
    A(f"v_add_u32 {v(t2)}, {s(sT0)}, {v(t0)}")
    A(f"v_mul_u32_u24 {v(voP[0])}, 1792, {v(t2)}")
    A(f"s_lshr_b32 {s(sT1)}, {s(sLw)}, 1")
    A(f"s_lshl_b32 {s(sT1)}, {s(sT1)}, 7")
    A(f"v_add3_u32 {v(voP[0])}, {v(voP[0])}, {v(t1)}, {s(sT1)}")
    for jj in range(1, 4): A(f"v_add_u32 {v(voP[jj])}, {jj*(8*1792-1024)}, {v(voP[0])}")
    A(f"s_lshl_b32 {s(sT0)}, {s(sLw)}, 4")
    A(f"v_add_u32 {v(t2)}, {s(sT0)}, {v(t0)}")
    A(f"v_lshl_add_u32 {v(voX[0])}, {v(t2)}, 10, {v(t1)}")
    A(f"v_add_u32 {v(voX[1])}, {8192-1024}, {v(voX[0])}")
    A(f"s_lshl_b32 {s(sWk)}, {s(sDB)}, 7")
    A(f"s_mul_i32 {s(sPk)}, {s(sTB)}, {64*1792}")
    A(f"s_add_u32 {s(sPk)}, {s(sPk)}, {WS_P0}")
    A(f"s_lshl_b32 {s(sLW)}, {s(sLw)}, 12")
    A(f"s_add_u32 {s(sLP)}, {s(sLW)}, {W_B}")
    A(f"s_lshl_b32 {s(sXb)}, {s(sTB)}, 16")
    A(f"s_add_u32 {s(sXb)}, {s(sXb)}, {s(sWk)}")
    A(f"s_add_u32 {s(sXb)}, {s(sXb)}, {WS_X1}")
    A("s_waitcnt lgkmcnt(0)")
    def issue(st):
        slot = st % NS
        A(f"s_add_u32 m0, {s(sLP)}, {slot*SLOT}")
        A(f"s_add_u32 {s(sT0)}, {s(sPk)}, {st*256}")
        for jj in range(4): A(f"buffer_load_dwordx4 {v(voP[jj])}, s[4:7], {s(sT0)} offen offset:{jj*1024} lds")
        A(f"s_add_u32 m0, {s(sLW)}, {slot*SLOT}")
        A(f"s_add_u32 {s(sT0)}, {s(sWk)}, {st*128*1024}")
        for jj in range(4): A(f"buffer_load_dwordx4 {v(voW[jj])}, s[8:11], {s(sT0)} offen offset:{jj*1024} lds")
        if st == NST - 1:
            A(f"s_lshl_b32 {s(sT0)}, {s(sLw)}, 11")
            A(f"s_add_u32 m0, {s(sT0)}, {X_OFF}")
            for jj in range(2): A(f"buffer_load_dwordx4 {v(voX[jj])}, s[4:7], {s(sXb)} offen offset:{jj*1024} lds")
    loader_pipeline(A, NST, NS, issue, lambda st: 8 + (2 if st == NST - 1 else 0))
    A("s_barrier")
    A("s_endpgm")
    A.label(f"{name}_end")
    A("s_endpgm")
    return dict(name=name, grid=NWG, block=512, lds=LDS, vgpr=max(nv, R.hi), sgpr=96 if stamps else 40)
```

```python
import math, struct
def f2u(f): return struct.unpack("<I", struct.pack("<f", f))[0]
def bf16(f):
    u = f2u(f)
    r = (u + 0x7FFF + ((u >> 16) & 1)) >> 16
    return r & 0xFFFF
def pk(lo, hi): return bf16(lo) | (bf16(hi) << 16)
def cs(num, den):
    a = 2 * math.pi * (num % den) / den
    c, s_ = math.cos(a), math.sin(a)
    if abs(c) < 1e-12: c = 0.0
    if abs(s_) < 1e-12: s_ = 0.0
    return c, s_
def tab_f64():
    out = []
    for n in range(64):
        row = []
        for k in range(64):
            if n <= 32: val = cs(n * k, 64)[0]
            else: val = -cs((n - 32) * k, 64)[1]
            row.append(val)
        out += [pk(row[2*j], row[2*j+1]) for j in range(32)]
    return out
def tab_f1():
    out = []
    for mt in range(2):
        for l in range(64):
            q, i = l >> 4, l & 15
            e1 = 8 * mt + (i >> 1); cp = i & 1
            for jj in range(4):
                d1 = 4 * q + jj
                c, s_ = cs(e1 * d1, 16)
                out.append(pk(c, s_) if cp == 0 else pk(-s_, c))
    return out
def tab_f2():
    out = []
    for nt in range(2):
        for ks in range(2):
            for l in range(64):
                q, i = l >> 4, l & 15
                e2 = 16 * nt + i
                for jj in range(4):
                    d2 = 16 * ks + 4 * q + jj
                    c, s_ = cs(d2 * e2, 32)
                    out.append(pk(c, s_))
    return out
def tab_tw():
    out = []
    for wp in range(2):
        for l in range(64):
            q, i = l >> 4, l & 15
            d2 = 16 * wp + i
            for mt in range(2):
                for pp in range(2):
                    e1 = 8 * mt + 2 * q + pp
                    c, s_ = cs(d2 * e1, 512)
                    out += [f2u(c), f2u(s_)]
    return out
TABS = [("tab_f64", tab_f64()), ("tab_f1", tab_f1()), ("tab_f2", tab_f2()), ("tab_tw", tab_tw())]
TAB_OFF = {}
_o = 0
for n, d in TABS:
    TAB_OFF[n] = _o; _o += len(d) * 4
TAB_BYTES = _o
def emit_tables():
    lines = [".p2align 8", ".type fft_tables,@object", "fft_tables:"]
    for n, d in TABS:
        for j in range(0, len(d), 8):
            lines.append(".long " + ", ".join("0x%08x" % x for x in d[j:j+8]))
    lines.append(f".size fft_tables, {TAB_BYTES}")
    return "\n".join(lines) + "\n"
if __name__ == "__main__": print(TAB_OFF, TAB_BYTES)
```

```python
import sys
from asmgen import *
from g2a import gen_ka, gen_kb
from g2b import gen_kz, gen_kg, gen_ko
from tables import emit_tables
def assemble2(gens, launches=None):
    A = Asm()
    A.raw("code_begin:")
    infos = [g(A) for g in gens]
    A.raw("code_end:")
    body = A.finalize()
    by = {i["name"]: i for i in infos}
    if launches is None: launches = [i["name"] for i in infos]
    head = "".join(f"; @launch kernel={n} grid=({by[n]['grid']},1,1) block=({by[n]['block']},1,1) lds={by[n]['lds']}\n" for n in launches)
    txt = head + '.amdgcn_target "amdgcn-amd-amdhsa--gfx950"\n.text\n' + body + '.section .rodata,"a"\n'
    for i in infos:
        txt += ".p2align 6\n" + kernel_desc(i["name"], i["vgpr"], i["sgpr"], i.get("accum")) + "\n"
    txt += emit_tables()
    return txt
if __name__ == "__main__":
    st = "-s" in sys.argv; pf = "-nopf" not in sys.argv
    gens = [lambda A: gen_ka(A, stamps=st, prefetch=pf), lambda A: gen_kb(A, stamps=st, prefetch=pf), lambda A: gen_kz(A, stamps=st, prefetch=pf),
            lambda A: gen_kg(A, stamps=st, prefetch=pf), lambda A: gen_ko(A, stamps=st)]
    open(sys.argv[1], "w").write(assemble2(gens))
```

```python
from common import *
from gemm_util import fhex
from tables import TAB_OFF
from g2a import getpc_sym, wave_sum
NMOD = 96

def gen_ka(A, name="ka_kernel", stamps=False, prefetch=True):
    NFFT = 128; NPF = 32 if prefetch else 0; NWG = NFFT + NMOD + NPF
    A.barrier_state(); A.raw(kernel_header(name))
    ST = Stamps(A, on=stamps, kidx=0)
    A(f"s_cmp_ge_u32 s2, {NWG}")
    A(f"s_cbranch_scc1 {name}_end")
    ST.stamp()
    A(f"s_cmp_ge_u32 s2, {NFFT}")
    A(f"s_cbranch_scc1 {name}_mod")
    load_ptr(A, 4, "x"); load_ptr(A, 6, "ws")
    getpc_sym(A, 8, "fft_tables")
    A("s_and_b32 s10, s2, 7")
    A("s_bfe_u32 s11, s2, 0x20003")
    A("s_lshl2_add_u32 s10, s10, s11")
    A("s_lshl_b32 s10, s10, 10")
    A("s_lshr_b32 s11, s2, 5")
    A("s_lshl_b32 s11, s11, 8")
    R = RegAlloc(1)
    voff = R.alloc(); vown = R.alloc(); vf = R.alloc(); vi = R.alloc(); vq = R.alloc(); vt0 = R.alloc(); vt1 = R.alloc()
    vS = R.alloc(); vQ = R.alloc(); vtr = R.alloc(); vst = R.alloc()
    xr = [R.alloc(4) for _ in range(8)]; xo = [R.alloc(4) for _ in range(2)]
    Ff = [[R.alloc(4) for _ in range(2)] for _ in range(2)]
    Af = [[R.alloc(4) for _ in range(2)] for _ in range(2)]
    acc = [[R.alloc(4) for _ in range(2)] for _ in range(2)]
    tmp = R.alloc(16, 4)
    A(f"v_lshrrev_b32 {v(vt0)}, 3, v0")
    A(f"v_and_b32 {v(vt1)}, 7, v0")
    A(f"v_lshlrev_b32 {v(vt0)}, 15, {v(vt0)}")
    A(f"v_lshl_add_u32 {v(voff)}, {v(vt1)}, 4, {v(vt0)}")
    A(f"v_add_u32 {v(voff)}, s10, {v(voff)}")
    A(f"v_add_u32 {v(vown)}, s11, {v(voff)}")
    A(f"v_and_b32 {v(vi)}, 15, v0")
    A(f"v_bfe_u32 {v(vq)}, v0, 4, 2")
    A(f"v_lshrrev_b32 {v(vt0)}, 8, v0")
    A(f"v_lshlrev_b32 {v(vf)}, 12, {v(vt0)}")
    A(f"v_lshl_add_u32 {v(vf)}, {v(vi)}, 7, {v(vf)}")
    A(f"v_lshl_add_u32 {v(vf)}, {v(vq)}, 4, {v(vf)}")
    A("s_waitcnt lgkmcnt(0)")
    for it in range(8):
        A(f"global_load_dwordx4 {v(xr[it],4)}, {v(voff)}, s[4:5] offset:{it*128}")
    for h in range(2): A(f"global_load_dwordx4 {v(xo[h],4)}, {v(vown)}, s[4:5] offset:{h*128}")
    for nt in range(2):
        for ks in range(2):
            A(f"global_load_dwordx4 {v(Ff[nt][ks],4)}, {v(vf)}, s[8:9] offset:{TAB_OFF['tab_f64'] + nt*2048 + ks*64}")
    A(f"v_lshlrev_b32 {v(vst)}, 20, {v(vt0)}")
    A(f"v_lshl_add_u32 {v(vst)}, {v(vi)}, 15, {v(vst)}")
    A(f"v_bfe_u32 {v(vt0)}, v0, 6, 2")
    A(f"v_lshl_add_u32 {v(vst)}, {v(vt0)}, 5, {v(vst)}")
    A(f"v_lshl_add_u32 {v(vst)}, {v(vq)}, 3, {v(vst)}")
    A("s_add_u32 s10, s10, s11")
    A(f"s_add_u32 s10, s10, {WS_T}")
    A(f"v_add_u32 {v(vst)}, s10, {v(vst)}")
    A(f"v_lshrrev_b32 {v(vt1)}, 2, {v(vi)}")
    A(f"v_lshl_add_u32 {v(vt1)}, {v(vq)}, 3, {v(vt1)}")
    A(f"v_lshlrev_b32 {v(vtr)}, 7, {v(vt1)}")
    A(f"v_lshl_add_u32 {v(vtr)}, {v(vt0)}, 5, {v(vtr)}")
    A(f"v_and_b32 {v(vt1)}, 3, {v(vi)}")
    A(f"v_lshl_add_u32 {v(vtr)}, {v(vt1)}, 3, {v(vtr)}")
    A(f"v_mov_b32 {v(vS)}, 0")
    A(f"v_mov_b32 {v(vQ)}, 0")
    A("s_mov_b32 s12, 0x3f803f80")
    for it in range(8):
        A(f"s_waitcnt vmcnt({7 - it + 2 + 4})")
        for j in range(4):
            A(f"v_dot2_f32_bf16 {v(vS)}, {v(xr[it]+j)}, s12, {v(vS)}")
            A(f"v_dot2_f32_bf16 {v(vQ)}, {v(xr[it]+j)}, {v(xr[it]+j)}, {v(vQ)}")
    ST.stamp()
    A("s_mov_b32 s12, 0xffff0000")
    A("s_waitcnt vmcnt(4)")
    for h in range(2):
        for j in range(4):
            A(f"v_lshlrev_b32 {v(tmp+8*h+2*j)}, 16, {v(xo[h]+j)}")
            A(f"v_and_b32 {v(tmp+8*h+2*j+1)}, s12, {v(xo[h]+j)}")
    for mode in ("quad_perm:[1,0,3,2]", "quad_perm:[2,3,0,1]", "row_half_mirror"):
        A(f"v_add_f32_dpp {v(vS)}, {v(vS)}, {v(vS)} {mode} row_mask:0xf bank_mask:0xf")
        A(f"v_add_f32_dpp {v(vQ)}, {v(vQ)}, {v(vQ)} {mode} row_mask:0xf bank_mask:0xf")
    A(f"v_mul_f32 {v(vS)}, 0x3b000000, {v(vS)}")
    A(f"v_mul_f32 {v(vQ)}, 0x3b000000, {v(vQ)}")
    A(f"v_fma_f32 {v(vQ)}, -{v(vS)}, {v(vS)}, {v(vQ)}")
    A(f"v_max_f32 {v(vQ)}, 0, {v(vQ)}")
    A(f"v_add_f32 {v(vQ)}, 0x3727c5ac, {v(vQ)}")
    A(f"v_rsq_f32 {v(vQ)}, {v(vQ)}")
    A(f"v_lshlrev_b32 {v(vt0)}, 4, v0")
    A(f"v_mul_f32 {v(vS)}, {v(vS)}, {v(vQ)}")
    for j in range(16): A(f"v_fma_f32 {v(tmp+j)}, {v(tmp+j)}, {v(vQ)}, -{v(vS)}")
    for h in range(2):
        for j in range(4): A(f"v_cvt_pk_bf16_f32 {v(xo[h]+j)}, {v(tmp+8*h+2*j)}, {v(tmp+8*h+2*j+1)}")
        A(f"ds_write_b128 {v(vt0)}, {v(xo[h],4)} offset:{h*8192}")
    A("s_waitcnt lgkmcnt(0)")
    A("s_barrier")
    for h in range(2):
        for ks in range(2):
            for p in range(2):
                A(f"ds_read_b64_tr_b16 {v(Af[h][ks]+2*p,2)}, {v(vtr)} offset:{h*8192 + ks*32*128 + p*4*128}")
    A(f"v_add_u32 {v(vt1)}, {16*32768}, {v(vst)}")
    A("s_waitcnt vmcnt(0)")
    for h in range(2):
        A(f"s_waitcnt lgkmcnt({4*(1-h)})")
        for ks in range(2):
            for nt in range(2):
                c = "0" if ks == 0 else v(acc[h][nt], 4)
                A(f"v_mfma_f32_16x16x32_bf16 {v(acc[h][nt],4)}, {v(Af[h][ks],4)}, {v(Ff[nt][ks],4)}, {c}")
    for h in range(2):
        for nt in range(2):
            k = h * 2 + nt
            A(f"v_cvt_pk_bf16_f32 {v(tmp+2*k)}, {v(acc[h][nt])}, {v(acc[h][nt]+1)}")
            A(f"v_cvt_pk_bf16_f32 {v(tmp+2*k+1)}, {v(acc[h][nt]+2)}, {v(acc[h][nt]+3)}")
            A(f"global_store_dwordx2 {v(vst if nt == 0 else vt1)}, {v(tmp+2*k,2)}, s[6:7] offset:{h*128}")
    if stamps:
        A("v_readfirstlane_b32 s20, v0"); A("s_lshr_b32 s20, s20, 6")
        ST.stamp(); A("s_waitcnt vmcnt(0)"); ST.stamp(); ST.flush(6, tmp)
    A("s_endpgm")
    nv = R.hi
    A.label(f"{name}_mod")
    if prefetch:
        A(f"s_cmp_ge_u32 s2, {NFFT+NMOD}")
        A(f"s_cbranch_scc1 {name}_pf")
    load_ptr(A, 4, "wmod"); load_ptr(A, 8, "c"); load_ptr(A, 6, "ws")
    A(f"s_sub_u32 s10, s2, {NFFT}")
    A("s_lshl_b32 s11, s10, 6")
    R = RegAlloc(1)
    vk = R.alloc(); vt0 = R.alloc(); vt1 = R.alloc(); vc = R.alloc()
    vo = [R.alloc() for _ in range(4)]
    wr = [R.alloc(4) for _ in range(4)]
    cv = [R.alloc() for _ in range(4)]; ch = [R.alloc() for _ in range(4)]
    ac = R.alloc(8, 4); rr = R.alloc(16, 4)
    A(f"v_and_b32 {v(vt0)}, 0x1c0, v0")
    A(f"v_bfe_u32 {v(vt1)}, v0, 2, 4")
    A(f"v_add_u32 {v(vk)}, {v(vt0)}, {v(vt1)}")
    A(f"v_and_b32 {v(vc)}, 3, v0")
    A(f"v_mul_u32_u24 {v(vo[0])}, 6144, {v(vk)}")
    A(f"v_lshl_add_u32 {v(vo[0])}, {v(vc)}, 4, {v(vo[0])}")
    A(f"v_add_u32 {v(vo[0])}, s11, {v(vo[0])}")
    for it in range(1, 4): A(f"v_add_u32 {v(vo[it])}, {it*16*6144}, {v(vo[0])}")
    A(f"v_lshlrev_b32 {v(vk)}, 1, {v(vk)}")
    A("s_waitcnt lgkmcnt(0)")
    for it in range(4): A(f"global_load_ushort {v(cv[it])}, {v(vk)}, s[8:9] offset:{it*32}")
    for it in range(4): A(f"global_load_dwordx4 {v(wr[it],4)}, {v(vo[it])}, s[4:5]")
    for j in range(8): A(f"v_mov_b32 {v(ac+j)}, 0")
    A("s_waitcnt vmcnt(4)")
    for it in range(4): A(f"v_lshlrev_b32 {v(cv[it])}, 16, {v(cv[it])}")
    for it in range(4): A(f"v_mul_f32 {v(ch[it])}, 0xbfb8aa3b, {v(cv[it])}")
    for it in range(4): A(f"v_exp_f32 {v(ch[it])}, {v(ch[it])}")
    for it in range(4): A(f"v_add_f32 {v(ch[it])}, 1.0, {v(ch[it])}")
    for it in range(4): A(f"v_rcp_f32 {v(ch[it])}, {v(ch[it])}")
    for it in range(4): A(f"v_mul_f32 {v(cv[it])}, {v(cv[it])}, {v(ch[it])}")
    for it in range(4): A(f"v_cvt_pk_bf16_f32 {v(cv[it])}, {v(cv[it])}, 0")
    for it in range(4): A(f"v_lshlrev_b32 {v(ch[it])}, 16, {v(cv[it])}")
    for it in range(4):
        A(f"s_waitcnt vmcnt({3-it})")
        for j in range(4):
            A(f"v_dot2_f32_bf16 {v(ac+2*j)}, {v(wr[it]+j)}, {v(cv[it])}, {v(ac+2*j)}")
            A(f"v_dot2_f32_bf16 {v(ac+2*j+1)}, {v(wr[it]+j)}, {v(ch[it])}, {v(ac+2*j+1)}")
    for rot in (4, 8):
        for j in range(8):
            A(f"v_add_f32_dpp {v(ac+j)}, {v(ac+j)}, {v(ac+j)} row_ror:{rot} row_mask:0xf bank_mask:0xf")
    A(f"v_lshrrev_b32 {v(vt0)}, 4, v0")
    A(f"v_lshlrev_b32 {v(vt0)}, 7, {v(vt0)}")
    A(f"v_lshl_add_u32 {v(vt0)}, {v(vc)}, 5, {v(vt0)}")
    A(f"ds_write_b128 {v(vt0)}, {v(ac,4)}")
    A(f"ds_write_b128 {v(vt0)}, {v(ac+4,4)} offset:16")
    if prefetch:
        lab = f"{name}_nocp"
        A("s_cmp_ge_u32 s10, 8")
        A(f"s_cbranch_scc1 {lab}")
        getpc_sym(A, 12, "code_begin")
        A(f"v_lshlrev_b32 {v(vt0)}, 7, v0")
        A(f"v_mov_b32 {v(vt1)}, code_end-code_begin-4")
        A(f"v_min_u32 {v(vt0)}, {v(vt0)}, {v(vt1)}")
        A(f"v_and_b32 {v(vt0)}, -4, {v(vt0)}")
        A(f"global_load_dword {v(vk)}, {v(vt0)}, s[12:13]")
        A.label(lab)
    A("v_readfirstlane_b32 s20, v0")
    A("s_waitcnt lgkmcnt(0)")
    A("s_barrier")
    A("s_cmp_ge_u32 s20, 64")
    A(f"s_cbranch_scc1 {name}_end")
    A(f"v_and_b32 {v(vt1)}, 31, v0")
    A(f"v_lshrrev_b32 {v(vt0)}, 5, v0")
    A(f"v_lshlrev_b32 {v(vt0)}, 11, {v(vt0)}")
    A(f"v_lshl_add_u32 {v(vt0)}, {v(vt1)}, 2, {v(vt0)}")
    for p in range(0, 16, 2): A(f"ds_read2_b32 {v(rr+p,2)}, {v(vt0)} offset0:{p*32} offset1:{(p+1)*32}") if (p+1)*32 < 256 else \
        (A(f"ds_read_b32 {v(rr+p)}, {v(vt0)} offset:{p*128}"), A(f"ds_read_b32 {v(rr+p+1)}, {v(vt0)} offset:{(p+1)*128}"))
    A("s_lshr_b32 s11, s10, 4")
    A("s_cmp_eq_u32 s11, 1")
    A("s_cselect_b32 s12, 1.0, 0")
    A("s_cmp_eq_u32 s11, 4")
    A("s_cselect_b32 s12, 1.0, s12")
    A("s_lshl_b32 s11, s10, 7")
    if WS_MOD: A(f"s_add_u32 s11, s11, {WS_MOD}")
    A(f"v_lshl_add_u32 {v(vt1)}, {v(vt1)}, 2, s11")
    A("s_waitcnt lgkmcnt(0)")
    for st_ in (8, 4, 2, 1):
        for p in range(st_): A(f"v_add_f32 {v(rr+p)}, {v(rr+p)}, {v(rr+p+st_)}")
    A(f"v_mov_b32 {v(rr+1)}, {v(rr)}")
    A(f"v_permlane32_swap_b32 {v(rr)}, {v(rr+1)}")
    A(f"v_add_f32 {v(rr)}, {v(rr)}, {v(rr+1)}")
    A(f"v_cvt_pk_bf16_f32 {v(rr)}, {v(rr)}, {v(rr)}")
    A(f"v_lshlrev_b32 {v(rr)}, 16, {v(rr)}")
    A(f"v_add_f32 {v(rr)}, s12, {v(rr)}")
    A(f"v_cvt_pk_bf16_f32 {v(rr)}, {v(rr)}, {v(rr)}")
    A(f"v_lshlrev_b32 {v(rr)}, 16, {v(rr)}")
    A(f"global_store_dword {v(vt1)}, {v(rr)}, s[6:7]")
    if stamps:
        A("s_mov_b32 s20, 0"); ST.n = 1; ST.stamp(); ST.stamp(); A("s_waitcnt vmcnt(0)"); ST.stamp(); ST.flush(6, ac)
    A("s_endpgm")
    if prefetch:
        A.label(f"{name}_pf")
        load_ptr(A, 4, "win")
        A(f"s_sub_u32 s10, s2, {NFFT+NMOD}")
        A("s_lshr_b32 s10, s10, 3")
        A("s_mul_i32 s10, s10, 1792")
        A("s_and_b32 s11, s2, 1")
        A("s_mul_i32 s11, s11, 896")
        A("v_add_u32 v1, s10, v0")
        A("v_mov_b32 v6, 896")
        A("s_waitcnt lgkmcnt(0)")
        for it in range(4):
            if it == 3:
                A("v_cmp_gt_u32 vcc, 256, v0")
                A("s_and_b64 exec, exec, vcc")
                A(f"s_cbranch_execz {name}_end")
            A("v_mul_u32_u24 v2, 9363, v1")
            A("v_lshrrev_b32 v2, 17, v2")
            A("v_mul_u32_u24 v3, 14, v2")
            A("v_sub_u32 v3, v1, v3")
            A("v_mul_u32_u24 v2, 3584, v2")
            A("v_lshl_add_u32 v2, v3, 7, v2")
            A("v_cmp_lt_u32 vcc, 6, v3")
            A("v_cndmask_b32 v3, 0, v6, vcc")
            A("v_add3_u32 v2, v2, v3, s11")
            A(f"global_load_dword v{8+it}, v2, s[4:5]")
            if it < 3: A("v_add_u32 v1, 512, v1")
        assert (NFFT + NMOD) % 8 == 0
    A.label(f"{name}_end")
    A("s_endpgm")
    return dict(name=name, grid=NWG, block=512, lds=16384, vgpr=max(nv, R.hi), sgpr=96 if stamps else 32)

def gen_kb(A, name="kb_kernel", stamps=False, prefetch=True, sentinel=True):
    NW = 132; NPF = 4; NWG = NW + NPF
    TS = 1056; V_OFF = 64 * TS; VS = 80; US = 144; YS = 2064
    U_OFF = 0; Y_OFF = 20480
    LDS = V_OFF + 256 * VS
    A.barrier_state(); A.raw(kernel_header(name))
    ST = Stamps(A, on=stamps, kidx=1)
    sW, sC, sG, sT0, sT1, sT2, sRow, sMir, sRow2 = 20, 21, 22, 23, 24, 25, 26, 27, 28
    SRD_T = 16
    A(f"s_cmp_ge_u32 s2, {NW}")
    A(f"s_cbranch_scc1 {name}_pf")
    ST.stamp()
    load_ptr(A, 16, "ws"); load_ptr(A, 4, "x"); load_ptr(A, 6, "sre"); load_ptr(A, 8, "sim")
    getpc_sym(A, 10, "fft_tables")
    A(f"v_readfirstlane_b32 {s(sW)}, v0")
    A(f"s_mov_b32 s18, {WS_T + 2*MB}")
    A("s_mov_b32 s19, 0x20000")
    A(f"s_and_b32 {s(sT0)}, s2, 7")
    A(f"s_bfe_u32 {s(sG)}, s2, 0x20003")
    A(f"s_lshr_b32 {s(sT1)}, s2, 5")
    A(f"s_lshl3_add_u32 {s(sC)}, {s(sT1)}, {s(sT0)}")
    A(f"s_cmp_ge_u32 s2, 128")
    A(f"s_cselect_b32 {s(sC)}, 32, {s(sC)}")
    A(f"s_cselect_b32 {s(sG)}, {s(sT0)}, {s(sG)}")
    A(f"s_lshr_b32 {s(sW)}, {s(sW)}, 6")
    R = RegAlloc(1)
    vl = R.alloc(); vq = R.alloc(); vi = R.alloc(); vl16 = R.alloc()
    vtb = R.alloc(8, 4); vt = [vtb + k for k in range(8)]
    A0 = R.alloc(4); A1 = R.alloc(4)
    F1 = [R.alloc(4) for _ in range(2)]; F2 = [[R.alloc(4) for _ in range(2)] for _ in range(2)]
    tw = R.alloc(16, 4)
    opca = [R.alloc() for _ in range(4)]
    xrow = [R.alloc(4) for _ in range(2)]
    Bf = [[R.alloc(4) for _ in range(2)] for _ in range(4)]
    acc = [R.alloc(4) for _ in range(4)]
    ga = R.alloc(8, 4); sb = R.alloc(8, 4); ocb = R.alloc(8, 4)
    vaT = R.alloc(); vaVw = R.alloc(); vaVr = R.alloc(); vaUw = R.alloc(); vaUr = R.alloc(); vaYw = R.alloc()
    vrow = [R.alloc() for _ in range(2)]
    xf = R.alloc(8, 4); yy = R.alloc(8, 4)
    Rr, Ri = acc[0], acc[1]
    A(f"v_and_b32 {v(vl)}, 63, v0")
    A(f"v_lshlrev_b32 {v(vl16)}, 4, {v(vl)}")
    A(f"s_add_u32 {s(sT1)}, {s(sC)}, 32")
    A(f"s_and_b32 {s(sT2)}, {s(sC)}, 31")
    A(f"s_cselect_b32 {s(sMir)}, 1, 0")
    A(f"s_cselect_b32 {s(sT1)}, {s(sT1)}, 0x4000")
    A(f"s_cmp_ge_u32 {s(sW)}, 4")
    A(f"s_cselect_b32 {s(sT0)}, {s(sT1)}, {s(sC)}")
    A(f"s_lshl_b32 {s(sT0)}, {s(sT0)}, 15")
    A(f"s_and_b32 {s(sT1)}, {s(sW)}, 3")
    A(f"s_lshl_b32 {s(sT1)}, {s(sT1)}, 13")
    A(f"s_add_u32 {s(sT0)}, {s(sT0)}, {s(sT1)}")
    A(f"s_add_u32 {s(sT0)}, {s(sT0)}, {WS_T}")
    A(f"s_mul_i32 m0, {s(sW)}, {8*TS}")
    A(f"v_and_b32 {v(vi)}, 15, v0")
    A(f"v_bfe_u32 {v(vq)}, v0, 4, 2")
    A("s_waitcnt lgkmcnt(0)")
    for j in range(8):
        if j:
            A(f"s_add_u32 m0, m0, {TS}")
            A(f"s_add_u32 {s(sT0)}, {s(sT0)}, 1024")
        A(f"buffer_load_dwordx4 {v(vl16)}, {s(SRD_T,4)}, {s(sT0)} offen lds")
    A(f"v_lshrrev_b32 {v(vt[0])}, 1, {v(vi)}")
    A(f"s_lshl_b32 {s(sT0)}, {s(sG)}, 21")
    A(f"s_lshl_b32 {s(sT1)}, {s(sC)}, 12")
    A(f"s_add_u32 {s(sT0)}, {s(sT0)}, {s(sT1)}")
    A(f"v_lshlrev_b32 {v(vt[0])}, 18, {v(vt[0])}")
    A(f"v_lshl_add_u32 {v(vt[0])}, {v(vq)}, 3, {v(vt[0])}")
    A(f"v_add_u32 {v(vt[0])}, {s(sT0)}, {v(vt[0])}")
    for reg, base in ((Rr, 6), (Ri, 8)):
        A(f"global_load_dwordx2 {v(reg,2)}, {v(vt[0])}, {s(base,2)}")
        A(f"global_load_dwordx2 {v(reg+2,2)}, {v(vt[0])}, {s(base,2)} offset:32")
    A(f"v_and_b32 {v(vt[2])}, 0x1cf, v0")
    A(f"v_lshlrev_b32 {v(vt[2])}, 2, {v(vt[2])}")
    if WS_MOD: A(f"v_add_u32 {v(vt[2])}, {WS_MOD}, {v(vt[2])}")
    for jt in range(4): A(f"global_load_dword {v(opca[jt])}, {v(vt[2])}, s[16:17] offset:{2048+jt*64}")
    A(f"v_add_u32 {v(vt[1])}, {TAB_OFF['tab_f1']}, {v(vl16)}")
    for mt in range(2): A(f"global_load_dwordx4 {v(F1[mt],4)}, {v(vt[1])}, s[10:11] offset:{mt*1024}")
    for nt in range(2):
        for ks in range(2): A(f"global_load_dwordx4 {v(F2[nt][ks],4)}, {v(vt[1])}, s[10:11] offset:{2048 + nt*2048 + ks*1024}") if 2048 + nt*2048 + ks*1024 < 4096 else None
    A(f"v_add_u32 {v(vt[1])}, 4096, {v(vt[1])}")
    for ks in range(2): A(f"global_load_dwordx4 {v(F2[1][ks],4)}, {v(vt[1])}, s[10:11] offset:{ks*1024}")
    assert TAB_OFF['tab_f2'] == TAB_OFF['tab_f1'] + 2048
    A(f"v_lshlrev_b32 {v(vt[1])}, 2, {v(vl16)}")
    A(f"v_add_u32 {v(vt[1])}, {TAB_OFF['tab_tw2']}, {v(vt[1])}")
    for h in range(4): A(f"global_load_dwordx4 {v(tw+4*h,4)}, {v(vt[1])}, s[10:11] offset:{h*16}")
    A(f"s_lshl3_add_u32 {s(sT0)}, {s(sG)}, {s(sW)}")
    A(f"s_lshl_b32 {s(sT0)}, {s(sT0)}, 6")
    A(f"s_add_u32 {s(sRow)}, {s(sT0)}, {s(sC)}")
    A(f"s_sub_u32 {s(sRow2)}, 2048, {s(sRow)}")
    A(f"s_and_b32 {s(sRow2)}, {s(sRow2)}, 2047")
    A(f"s_lshl_b32 {s(sRow)}, {s(sRow)}, 10")
    A(f"s_lshl_b32 {s(sRow2)}, {s(sRow2)}, 10")
    A(f"v_add_u32 {v(vrow[0])}, {s(sRow)}, {v(vl16)}")
    A(f"v_add_u32 {v(vrow[1])}, {s(sRow2)}, {v(vl16)}")
    for h in range(2): A(f"global_load_dwordx4 {v(xrow[h],4)}, {v(vrow[h])}, s[4:5]")
    A(f"v_lshlrev_b32 {v(vt[3])}, 1, {v(vl16)}")
    A(f"v_add_u32 {v(vt[3])}, {WS_MOD + 4096}, {v(vt[3])}")
    for reg, sec in ((ga, 0), (sb, 1)):
        A(f"global_load_dwordx4 {v(reg,4)}, {v(vt[3])}, s[16:17] offset:{sec*2048}")
        A(f"global_load_dwordx4 {v(reg+4,4)}, {v(vt[3])}, s[16:17] offset:{sec*2048+16}")
    A(f"v_add_u32 {v(vt[3])}, 4096, {v(vt[3])}")
    A(f"global_load_dwordx4 {v(ocb,4)}, {v(vt[3])}, s[16:17]")
    A(f"global_load_dwordx4 {v(ocb+4,4)}, {v(vt[3])}, s[16:17] offset:16")
    NLATE = 4 + 2 + 4 + 4 + 2 + 6
    NAFTER_OPCA = 2 + 4 + 4 + 2 + 6
    A(f"v_lshrrev_b32 {v(vt[0])}, 2, {v(vi)}")
    A(f"v_lshl_add_u32 {v(vt[0])}, {v(vq)}, 2, {v(vt[0])}")
    A(f"v_mul_u32_u24 {v(vaT)}, {TS}, {v(vt[0])}")
    A(f"v_and_b32 {v(vt[0])}, 3, {v(vi)}")
    A(f"v_lshl_add_u32 {v(vaT)}, {v(vt[0])}, 3, {v(vaT)}")
    A(f"v_and_b32 {v(vt[4])}, 0x1c0, v0")
    A(f"v_lshl_add_u32 {v(vaT)}, {v(vt[4])}, 1, {v(vaT)}")
    A(f"v_lshl_add_u32 {v(vt[0])}, {v(vq)}, 6, {v(vi)}")
    A(f"v_mul_u32_u24 {v(vaVw)}, {VS}, {v(vt[0])}")
    A(f"v_lshrrev_b32 {v(vt[0])}, 3, {v(vt[4])}")
    A(f"v_add3_u32 {v(vaVw)}, {v(vaVw)}, {v(vt[0])}, s[VV]".replace("s[VV]", s(sT2)))
    A.items.insert(len(A.items) - 1, ("i", Ins(f"s_mov_b32 {s(sT2)}, {V_OFF}")))
    A(f"v_lshrrev_b32 {v(vt[0])}, 1, {v(vt[4])}")
    A(f"v_add_u32 {v(vt[0])}, {v(vt[0])}, {v(vi)}")
    A(f"v_mul_u32_u24 {v(vaVr)}, {VS}, {v(vt[0])}")
    A(f"v_lshl_add_u32 {v(vaVr)}, {v(vq)}, 4, {v(vaVr)}")
    A(f"v_add_u32 {v(vaVr)}, {V_OFF}, {v(vaVr)}")
    A(f"v_lshrrev_b32 {v(vt[0])}, 2, {v(vt[4])}")
    A(f"v_lshl_add_u32 {v(vt[3])}, {v(vq)}, 1, {v(vt[0])}")
    A(f"v_mul_u32_u24 {v(vaUw)}, {US}, {v(vt[3])}")
    A(f"v_lshl_add_u32 {v(vaUw)}, {v(vi)}, 2, {v(vaUw)}")
    A(f"v_add_u32 {v(vt[3])}, {v(vt[0])}, {v(vi)}")
    A(f"v_mul_u32_u24 {v(vaUr)}, {US}, {v(vt[3])}")
    A(f"v_lshl_add_u32 {v(vaUr)}, {v(vq)}, 4, {v(vaUr)}")
    A(f"s_mul_i32 {s(sT1)}, {s(sW)}, {YS}")
    A(f"s_add_u32 {s(sT1)}, {s(sT1)}, {Y_OFF}")
    sY = 29
    A(f"s_mov_b32 {s(sY)}, {s(sT1)}")
    A(f"v_lshlrev_b32 {v(vaYw)}, 6, {v(vi)}")
    A(f"v_lshl_add_u32 {v(vaYw)}, {v(vq)}, 4, {v(vaYw)}")
    A(f"v_add_u32 {v(vaYw)}, {s(sY)}, {v(vaYw)}")
    A(f"v_and_b32 {v(vt[3])}, 1, v0")
    A(f"v_cmp_eq_u32 vcc, 1, {v(vt[3])}")
    A(f"s_mov_b32 {s(sT0)}, 0x80008000")
    A(f"s_waitcnt vmcnt({NLATE})")
    for j in range(4):
        A(f"v_xor_b32 {v(vt[0])}, {s(sT0)}, {v(Ri+j)}")
        A(f"v_cndmask_b32 {v(A0+j)}, {v(Rr+j)}, {v(Ri+j)}, vcc")
        A(f"v_cndmask_b32 {v(A1+j)}, {v(vt[0])}, {v(Rr+j)}, vcc")
    ST.stamp()
    A("s_barrier")
    for jt in range(4):
        for c in range(2):
            for p in range(2):
                A(f"ds_read_b64_tr_b16 {v(Bf[jt][c]+2*p,2)}, {v(vaT)} offset:{c*32*TS + p*16*TS + jt*32}")
    for jt in range(4):
        A(f"s_waitcnt lgkmcnt({(3-jt)*4})")
        A(f"v_mfma_f32_16x16x32_bf16 {v(acc[jt],4)}, {v(A0,4)}, {v(Bf[jt][0],4)}, 0")
        A(f"v_mfma_f32_16x16x32_bf16 {v(acc[jt],4)}, {v(A1,4)}, {v(Bf[jt][1],4)}, {v(acc[jt],4)}")
    A(f"s_waitcnt vmcnt({NAFTER_OPCA})")
    for jt in range(4):
        for r in range(4): A(f"v_mul_f32 {v(acc[jt]+r)}, {v(acc[jt]+r)}, {v(opca[jt])}")
    lab = f"{name}_nodc"
    A(f"s_or_b32 {s(sT0)}, {s(sC)}, {s(sG)}")
    A(f"s_cbranch_scc1 {lab}")
    A(f"v_and_b32 {v(vt[2])}, 0x1cf, v0")
    A(f"v_lshlrev_b32 {v(vt[2])}, 2, {v(vt[2])}")
    if WS_MOD: A(f"v_add_u32 {v(vt[2])}, {WS_MOD}, {v(vt[2])}")
    for jt in range(4): A(f"global_load_dword {v(Bf[0][0]+jt)}, {v(vt[2])}, s[16:17] offset:{jt*64}")
    A(f"v_cmp_eq_u32 vcc, 0, {v(vq)}")
    A(f"v_mov_b32 {v(vt[1])}, 0x45000000")
    A(f"v_cndmask_b32 {v(vt[1])}, 0, {v(vt[1])}, vcc")
    A("s_waitcnt vmcnt(0)")
    for jt in range(4): A(f"v_fmac_f32 {v(acc[jt])}, {v(Bf[0][0]+jt)}, {v(vt[1])}")
    A.label(lab)
    for jt in range(4):
        ac = acc[jt]
        A(f"v_cvt_pk_bf16_f32 {v(ac)}, {v(ac)}, {v(ac+1)}")
        A(f"v_cvt_pk_bf16_f32 {v(ac+1)}, {v(ac+2)}, {v(ac+3)}")
        o0 = (jt&1)*16*VS + (jt>>1)*4
        A(f"ds_write_b32 {v(vaVw)}, {v(ac)} offset:{o0}")
        A(f"ds_write_b32 {v(vaVw)}, {v(ac+1)} offset:{o0 + 32*VS}")
    A(f"s_mov_b32 {s(sT0)}, 0xffff0000")
    A("s_waitcnt lgkmcnt(0)")
    A("s_barrier")
    ST.stamp()
    for h in range(2): A(f"ds_read_b128 {v(Bf[h][0],4)}, {v(vaVr)} offset:{h*16*VS}")
    A("s_waitcnt vmcnt(8)")
    for h in range(2):
        A(f"s_waitcnt lgkmcnt({1-h})")
        for mt in range(2):
            A(f"v_mfma_f32_16x16x32_bf16 {v(acc[2*h+mt],4)}, {v(F1[mt],4)}, {v(Bf[h][0],4)}, 0")
    for h in range(2):
        for mt in range(2):
            for pp in range(2):
                re, im = acc[2*h+mt] + 2 * pp, acc[2*h+mt] + 2 * pp + 1
                k = ((h*2+mt)*2+pp)*2
                c_, s_ = tw + k, tw + k + 1
                t0, t1 = vt[4*pp], vt[4*pp+1]
                A(f"v_mul_f32 {v(t0)}, {v(re)}, {v(c_)}")
                A(f"v_mul_f32 {v(t1)}, {v(im)}, {v(c_)}")
                A(f"v_fma_f32 {v(t0)}, {v(im)}, {v(s_)}, {v(t0)}")
                A(f"v_fma_f32 {v(t1)}, -{v(re)}, {v(s_)}, {v(t1)}")
                A(f"v_cvt_pk_bf16_f32 {v(vt[4*pp+2])}, {v(t0)}, {v(t1)}")
                A(f"ds_write_b32 {v(vaUw)}, {v(vt[4*pp+2])} offset:{U_OFF + (8*mt+pp)*US + h*64}")
    A("s_waitcnt lgkmcnt(0)")
    for ks in range(2): A(f"ds_read_b128 {v(Bf[ks][0],4)}, {v(vaUr)} offset:{U_OFF + ks*64}")
    A("s_waitcnt vmcnt(0)")
    for h in range(2):
        for j in range(4):
            dst = xf if h == 0 else yy
    for j in range(4):
        A(f"v_lshlrev_b32 {v(xf+2*j)}, 16, {v(xrow[0]+j)}")
        A(f"v_and_b32 {v(xf+2*j+1)}, {s(sT0)}, {v(xrow[0]+j)}")
    for ks in range(2):
        A(f"s_waitcnt lgkmcnt({1-ks})")
        for nt in range(2):
            c = "0" if ks == 0 else v(acc[nt], 4)
            A(f"v_mfma_f32_16x16x32_bf16 {v(acc[nt],4)}, {v(Bf[ks][0],4)}, {v(F2[nt][ks],4)}, {c}")
    for nt in range(2): A(f"ds_write_b128 {v(vaYw)}, {v(acc[nt],4)} offset:{nt*1024}")
    A(f"v_lshl_add_u32 {v(vt[0])}, {v(vl16)}, 1, {s(sY)}")
    A(f"v_lshlrev_b32 {v(vt[2])}, 1, {v(vl16)}")
    A(f"v_sub_u32 {v(vt[1])}, 2048, {v(vt[2])}")
    A(f"v_and_b32 {v(vt[1])}, 2047, {v(vt[1])}")
    A(f"v_add_u32 {v(vt[1])}, {s(sY)}, {v(vt[1])}")
    A(f"s_add_u32 {s(sT1)}, {s(sY)}, {505*4}")
    A(f"v_sub_u32 {v(vt[2])}, {s(sT1)}, {v(vt[2])}")
    A("s_waitcnt lgkmcnt(0)")
    ST.stamp()
    y = Bf[2][0]; assert Bf[2][1] == y + 4
    y2 = Bf[3][0]; assert Bf[3][1] == y2 + 4
    A(f"ds_read_b128 {v(y,4)}, {v(vt[0])}")
    A(f"ds_read_b128 {v(y+4,4)}, {v(vt[0])} offset:16")
    A(f"ds_read_b32 {v(y2)}, {v(vt[1])}")
    A(f"ds_read_b32 {v(y2+1)}, {v(vt[2])} offset:24")
    for j in (2, 4, 6): A(f"ds_read2_b32 {v(y2+j,2)}, {v(vt[2])} offset0:{7-j} offset1:{6-j}")
    def row_epi(yr, xr_, vr, first):
        if not first:
            for j in range(4):
                A(f"v_lshlrev_b32 {v(xf+2*j)}, 16, {v(xr_+j)}")
                A(f"v_and_b32 {v(xf+2*j+1)}, {s(sT0)}, {v(xr_+j)}")
        for j in range(8): A(f"v_fma_f32 {v(xf+j)}, {v(ga+j)}, {v(yr+j)}, {v(xf+j)}")
        for j in range(4): A(f"v_cvt_pk_bf16_f32 {v(xr_+j)}, {v(xf+2*j)}, {v(xf+2*j+1)}")
        A(f"v_add_u32 {v(vt[2])}, {WS_X1}, {v(vr)}")
        A(f"global_store_dwordx4 {v(vt[2])}, {v(xr_,4)}, s[16:17]")
        for j in range(4):
            A(f"v_lshlrev_b32 {v(xf+2*j)}, 16, {v(xr_+j)}")
            A(f"v_and_b32 {v(xf+2*j+1)}, {s(sT0)}, {v(xr_+j)}")
        A(f"v_add_f32 {v(vt[0])}, {v(xf)}, {v(xf+1)}")
        A(f"v_add_f32 {v(vt[1])}, {v(xf+2)}, {v(xf+3)}")
        for j in range(4, 8, 2):
            A(f"v_add_f32 {v(vt[0])}, {v(vt[0])}, {v(xf+j)}")
            A(f"v_add_f32 {v(vt[1])}, {v(vt[1])}, {v(xf+j+1)}")
        A(f"v_add_f32 {v(vt[0])}, {v(vt[0])}, {v(vt[1])}")
        wave_sum(A, vt[0], sT1)
        A(f"v_mov_b32 {v(vt[1])}, 0x3b000000")
        A(f"v_mul_f32 {v(vt[1])}, {s(sT1)}, {v(vt[1])}")
        for j in range(8): A(f"v_sub_f32 {v(xf+j)}, {v(xf+j)}, {v(vt[1])}")
        A(f"v_mul_f32 {v(vt[0])}, {v(xf)}, {v(xf)}")
        A(f"v_mul_f32 {v(vt[1])}, {v(xf+1)}, {v(xf+1)}")
        for j in range(2, 8, 2):
            A(f"v_fmac_f32 {v(vt[0])}, {v(xf+j)}, {v(xf+j)}")
            A(f"v_fmac_f32 {v(vt[1])}, {v(xf+j+1)}, {v(xf+j+1)}")
        A(f"v_add_f32 {v(vt[0])}, {v(vt[0])}, {v(vt[1])}")
        wave_sum(A, vt[0], sT1)
        A(f"v_mov_b32 {v(vt[1])}, 0x3b000000")
        A(f"v_mul_f32 {v(vt[1])}, {s(sT1)}, {v(vt[1])}")
        A(f"v_add_f32 {v(vt[1])}, 0x3727c5ac, {v(vt[1])}")
        A(f"v_rsq_f32 {v(vt[1])}, {v(vt[1])}")
        A(f"v_add_u32 {v(vt[2])}, {WS_H2}, {v(vr)}")
        for j in range(8): A(f"v_mul_f32 {v(xf+j)}, {v(xf+j)}, {v(vt[1])}")
        for j in range(8): A(f"v_fma_f32 {v(xf+j)}, {v(xf+j)}, {v(ocb+j)}, {v(sb+j)}")
        for j in range(4): A(f"v_cvt_pk_bf16_f32 {v(yr+j)}, {v(xf+2*j)}, {v(xf+2*j+1)}")
        A(f"global_store_dwordx4 {v(vt[2])}, {v(yr,4)}, s[16:17]")
    A("s_waitcnt lgkmcnt(5)")
    row_epi(y, xrow[0], vrow[0], True)
    A(f"s_cmp_eq_u32 {s(sMir)}, 0")
    A(f"s_cbranch_scc1 {name}_fin")
    A("s_waitcnt lgkmcnt(0)")
    row_epi(y2, xrow[1], vrow[1], False)
    A.label(f"{name}_fin")
    if stamps:
        ST.stamp(); A("s_waitcnt vmcnt(0)"); ST.stamp(); ST.flush(16, ga)
    A("s_endpgm")
    A.label(f"{name}_pf")
    A(f"s_cmp_ge_u32 s2, {NWG}")
    A(f"s_cbranch_scc1 {name}_end")
    A(f"s_cmp_ge_u32 s2, {NW+4}")
    if False: A(f"s_cbranch_scc1 {name}_pf2")
    load_ptr(A, 4, "ws")
    A(f"s_sub_u32 s10, s2, {NW}")
    A("s_lshl_b32 s10, s10, 16")
    A(f"s_add_u32 s10, s10, {WS_STAT}")
    A("v_lshl_add_u32 v1, v0, 4, s10")
    for j in range(4): A(f"v_mov_b32 v{4+j}, -1")
    A("s_waitcnt lgkmcnt(0)")
    for it in range(8):
        A("global_store_dwordx4 v1, v[4:7], s[4:5]")
        if it < 7: A("v_add_u32 v1, 8192, v1")
    A("s_endpgm")
    if False:
        A.label(f"{name}_pf2")
        load_ptr(A, 4, "wsp")
        A("s_bfe_u32 s10, s2, 0x20001")
        A("s_lshl_b32 s10, s10, 21")
        A(f"s_sub_u32 s11, s2, {NW+4}")
        A("s_lshr_b32 s11, s11, 3")
        A("s_lshl_b32 s11, s11, 17")
        A("s_add_u32 s10, s10, s11")
        A("v_lshl_add_u32 v1, v0, 7, s10")
        A("s_waitcnt lgkmcnt(0)")
        for it in range(2):
            A(f"global_load_dword v{8+it}, v1, s[4:5]")
            if it < 1: A("v_add_u32 v1, 0x10000, v1")
        assert (NW + 4) % 8 == 0
    A.label(f"{name}_end")
    A("s_endpgm")
    return dict(name=name, grid=NWG, block=512, lds=LDS, vgpr=R.hi, sgpr=96 if stamps else 40)
```

```python
from g2b import *
from g2b import gen_ko as gen_ko2

def gen_kz(A, name="kz_kernel", NS=4, stamps=False, prefetch=True, slice_n=100):
    NWG = 256
    GS = 960; SLOT = 16 * GS; W_OFF = 65536
    X_OFF = W_OFF + NS * SLOT
    LDS = X_OFF + 4 * 7168
    NST = 16; WROW = 3584
    A.barrier_state(); A.raw(kernel_header(name))
    ST = Stamps(A, on=stamps, kidx=2)
    sW, sRB, sCC, sT0, sT1, sT2, sTH, sFH, sK = 20, 21, 22, 23, 24, 25, 26, 27, 28
    A(f"s_cmp_ge_u32 s2, {NWG}")
    A(f"s_cbranch_scc1 {name}_end")
    ST.stamp()
    load_ptr(A, 4, "ws"); load_ptr(A, 8, "win")
    if prefetch: load_ptr(A, 12, "wsp")
    A(f"v_readfirstlane_b32 {s(sW)}, v0")
    A(f"s_bfe_u32 {s(sRB)}, s2, 0x20001")
    A(f"s_bfe_u32 {s(sT0)}, s2, 0x30003")
    A(f"s_lshl3_add_u32 {s(sRB)}, {s(sRB)}, {s(sT0)}")
    A(f"s_and_b32 {s(sCC)}, s2, 1")
    A(f"s_lshr_b32 {s(sT0)}, s2, 6")
    A(f"s_lshl2_add_u32 {s(sCC)}, {s(sCC)}, {s(sT0)}")
    A(f"s_lshr_b32 {s(sW)}, {s(sW)}, 6")
    A(f"s_and_b32 {s(sTH)}, {s(sW)}, 1")
    A(f"s_bfe_u32 {s(sFH)}, {s(sW)}, 0x10001")
    A(f"v_bfe_u32 v1, v0, 4, 2")
    A(f"v_and_b32 v2, 15, v0")
    vq, vi = 1, 2
    vtt = [3, 4]
    A(f"s_lshl1_add_u32 {s(sT0)}, {s(sTH)}, {s(sFH)}")
    A(f"s_xor_b32 {s(sT1)}, {s(sT0)}, 1")
    A(f"v_lshl_add_u32 {v(vtt[0])}, {s(sT0)}, 4, {v(vi)}")
    A(f"v_lshl_add_u32 {v(vtt[1])}, {s(sT1)}, 4, {v(vi)}")
    A(f"s_cmp_ge_u32 {s(sW)}, 4")
    A(f"s_cbranch_scc1 {name}_loader")
    TILES = [(0, 0), (0, 1), (1, 0), (1, 1), (2, 0), (2, 1), (3, 0)]
    R = RegAlloc(5)
    vC = R.alloc(2)
    vtb = R.alloc(8, 4); vt = [vtb + k for k in range(8)]
    vH = [[R.alloc() for _ in range(2)] for _ in range(2)]
    vWa = [R.alloc() for _ in range(2)]; vWb = [R.alloc() for _ in range(2)]
    vX = R.alloc()
    acc = [[R.alloc(4) for _ in range(7)] for _ in range(2)]
    FH_ = [[[R.alloc(4) for _ in range(2)] for _ in range(2)] for _ in range(2)]
    FW = [[[R.alloc(4) for _ in range(4)] for _ in range(2)] for _ in range(2)]
    A(f"v_and_b32 {v(vt[0])}, 7, {v(vi)}")
    A(f"v_xor_b32 {v(vt[1])}, {v(vq)}, {v(vt[0])}")
    A(f"v_lshlrev_b32 {v(vt[1])}, 4, {v(vt[1])}")
    for hf in range(2):
        A(f"v_lshl_add_u32 {v(vH[hf][0])}, {v(vtt[hf])}, 7, {v(vt[1])}")
        A(f"v_xor_b32 {v(vH[hf][1])}, 64, {v(vH[hf][0])}")
    A(f"v_mul_u32_u24 {v(vt[1])}, {2*GS}, {v(vq)}")
    A(f"v_lshrrev_b32 {v(vt[2])}, 2, {v(vi)}")
    A(f"v_mul_u32_u24 {v(vt[2])}, 224, {v(vt[2])}")
    A(f"v_and_b32 {v(vt[3])}, 3, {v(vi)}")
    A(f"v_lshl_add_u32 {v(vt[1])}, {v(vt[3])}, 3, {v(vt[1])}")
    A(f"v_add_u32 {v(vt[1])}, {v(vt[1])}, {v(vt[2])}")
    A(f"s_lshl_b32 {s(sT0)}, {s(sFH)}, 7")
    A(f"s_add_u32 {s(sT0)}, {s(sT0)}, {W_OFF}")
    A(f"v_add_u32 {v(vWa[0])}, {s(sT0)}, {v(vt[1])}")
    A(f"v_add_u32 {v(vWb[0])}, {W_OFF+96}, {v(vt[1])}")
    A(f"v_add_u32 {v(vWa[1])}, {3*SLOT}, {v(vWa[0])}")
    A(f"v_add_u32 {v(vWb[1])}, {3*SLOT}, {v(vWb[0])}")
    A(f"v_and_b32 {v(vt[0])}, 63, v0")
    A(f"s_mul_i32 {s(sT0)}, {s(sW)}, 7168")
    A(f"s_add_u32 {s(sT0)}, {s(sT0)}, {X_OFF}")
    A(f"v_lshl_add_u32 {v(vX)}, {v(vt[0])}, 4, {s(sT0)}")
    A(f"v_mov_b32 {v(vC)}, {fhex(GELU_C2)}")
    A(f"v_mov_b32 {v(vC+1)}, {fhex(GELU_C1)}")
    def reads(st, buf):
        kc = st & 7; slot = st % NS; sg = slot // 3; so = (slot % 3) * SLOT
        o = []
        for ks in range(2):
            for hf in range(2): o.append(f"ds_read_b128 {v(FH_[buf][ks][hf],4)}, {v(vH[hf][ks])} offset:{kc*8192}")
            for wf in range(4):
                for p in range(2):
                    base = vWa[sg] if wf < 3 else vWb[sg]
                    off = so + ks * 8 * GS + p * GS + (wf * 32 if wf < 3 else 0)
                    o.append(f"ds_read_b64_tr_b16 {v(FW[buf][ks][wf]+2*p,2)}, {v(base)} offset:{off}")
        return o
    def mfmas(st, buf):
        h = st >> 3
        o = []
        for ks in range(2):
            for tl, (wf, hf) in enumerate(TILES):
                c = "0" if (st & 7) == 0 and ks == 0 else v(acc[h][tl], 4)
                o.append(f"v_mfma_f32_16x16x32_bf16 {v(acc[h][tl],4)}, {v(FW[buf][ks][wf],4)}, {v(FH_[buf][ks][hf],4)}, {c}")
        return o
    xw = [f"ds_write_b128 {v(vX)}, {v(acc[0][tl],4)} offset:{tl*1024}" for tl in range(7)]
    def hook(st):
        if st == 7:
            for x in xw: A(x)
            ST.stamp()
    consumer_full(A, NST, reads, mfmas, hook=hook)
    ST.stamp()
    ZS = W_OFF
    assert (NST - 1) % NS == 3 and 4 * 7168 <= 3 * SLOT
    vLa = [vH[0][0], vH[1][0]]; vL4 = vH[0][1]
    A(f"s_mul_i32 {s(sT0)}, {s(sW)}, 7168")
    A(f"s_add_u32 {s(sT0)}, {s(sT0)}, {ZS}")
    for hf in range(2):
        A(f"v_and_b32 {v(vLa[hf])}, 31, {v(vtt[hf])}")
        A(f"v_mul_u32_u24 {v(vLa[hf])}, 144, {v(vLa[hf])}")
        A(f"v_lshl_add_u32 {v(vLa[hf])}, {v(vq)}, 3, {v(vLa[hf])}")
        A(f"v_add_u32 {v(vLa[hf])}, {s(sT0)}, {v(vLa[hf])}")
    for tl, (wf, hf) in enumerate(TILES):
        ac = acc[1][tl]
        for x in gelu_pk(ac, vt[0], vC): A(x)
        for h in range(2): A(f"v_cvt_pk_bf16_f32 {v(ac+h)}, {v(ac+2*h)}, {v(ac+2*h+1)}")
        A(f"ds_write_b64 {v(vLa[hf])}, {v(ac,2)} offset:{wf*32}")
    vl = vt[0]
    A(f"v_and_b32 {v(vl)}, 63, v0")
    vg = FH_[0][0][0]; va = FH_[0][0][1]
    for j in range(3):
        A(f"v_add_u32 {v(vt[1])}, {64*j}, {v(vl)}")
        A(f"v_mul_u32_u24 {v(vt[2])}, 10923, {v(vt[1])}")
        A(f"v_lshrrev_b32 {v(vt[2])}, 16, {v(vt[2])}")
        A(f"v_mul_u32_u24 {v(vt[3])}, 6, {v(vt[2])}")
        A(f"v_sub_u32 {v(vt[3])}, {v(vt[1])}, {v(vt[3])}")
        A(f"v_mul_u32_u24 {v(vt[4])}, 144, {v(vt[2])}")
        A(f"v_lshl_add_u32 {v(va+j)}, {v(vt[3])}, 4, {v(vt[4])}")
        A(f"v_mul_u32_u24 {v(vt[4])}, 1792, {v(vt[2])}")
        A(f"v_lshl_add_u32 {v(vg+j)}, {v(vt[3])}, 4, {v(vt[4])}")
    assert all((c * 10923) >> 16 == c // 6 for c in range(192))
    A(f"v_lshrrev_b32 {v(vt[2])}, 1, {v(vl)}")
    A(f"s_lshl_b32 {s(sT1)}, {s(sFH)}, 4")
    A(f"v_add_u32 {v(vt[2])}, {s(sT1)}, {v(vt[2])}")
    A(f"v_and_b32 {v(vt[3])}, 1, {v(vl)}")
    A(f"v_mul_u32_u24 {v(vt[4])}, 144, {v(vt[2])}")
    A(f"v_lshl_add_u32 {v(va+3)}, {v(vt[3])}, 4, {v(vt[4])}")
    A(f"v_add_u32 {v(va+3)}, 96, {v(va+3)}")
    A(f"v_mul_u32_u24 {v(vt[4])}, 1792, {v(vt[2])}")
    A(f"v_lshl_add_u32 {v(vg+3)}, {v(vt[3])}, 4, {v(vt[4])}")
    for j in range(4): A(f"v_add_u32 {v(va+j)}, {s(sT0)}, {v(va+j)}")
    A(f"s_lshl1_add_u32 {s(sT0)}, {s(sRB)}, {s(sTH)}")
    A(f"s_mul_i32 {s(sT0)}, {s(sT0)}, {32*1792}")
    A(f"s_mul_i32 {s(sT1)}, {s(sCC)}, 224")
    A(f"s_add_u32 {s(sT0)}, {s(sT0)}, {s(sT1)}")
    A(f"s_add_u32 {s(sT0)}, {s(sT0)}, {WS_Z1}")
    A(f"s_add_u32 {s(sT1)}, {s(sT0)}, 96")
    A(f"v_add_u32 {v(vg+3)}, {s(sT1)}, {v(vg+3)}")
    A(f"s_lshl_b32 {s(sT1)}, {s(sFH)}, 7")
    A(f"s_add_u32 {s(sT0)}, {s(sT0)}, {s(sT1)}")
    for j in range(3): A(f"v_add_u32 {v(vg+j)}, {s(sT0)}, {v(vg+j)}")
    A("s_waitcnt lgkmcnt(0)")
    buf = [FW[1][0][j] for j in range(4)]
    for j in range(4): A(f"ds_read_b128 {v(buf[j],4)}, {v(va+j)}")
    for j in range(3):
        A(f"s_waitcnt lgkmcnt({3-j})")
        A(f"global_store_dwordx4 {v(vg+j)}, {v(buf[j],4)}, s[4:5]")
    A("s_waitcnt lgkmcnt(0)")
    A("s_mov_b32 exec_hi, 0")
    A(f"global_store_dwordx4 {v(vg+3)}, {v(buf[3],4)}, s[4:5]")
    A("s_mov_b32 exec_hi, -1")
    if prefetch:
        A(f"s_bfe_u32 {s(sT0)}, s2, 0x20001")
        A(f"s_lshl_b32 {s(sT0)}, {s(sT0)}, 21")
        A(f"s_lshr_b32 {s(sT1)}, s2, 3")
        A(f"s_lshl2_add_u32 {s(sT1)}, {s(sT1)}, {s(sW)}")
        A(f"s_lshl_b32 {s(sT1)}, {s(sT1)}, 14")
        A(f"s_add_u32 {s(sT0)}, {s(sT0)}, {s(sT1)}")
        A(f"v_lshl_add_u32 {v(vt[1])}, {v(vl)}, 7, {s(sT0)}")
        A(f"global_load_dword {v(vt[2])}, {v(vt[1])}, s[12:13]")
        A(f"v_add_u32 {v(vt[1])}, 8192, {v(vt[1])}")
        A(f"global_load_dword {v(vt[3])}, {v(vt[1])}, s[12:13]")
    if stamps:
        ST.stamp(); A("s_waitcnt vmcnt(0)"); ST.stamp(); ST.flush(4, vt[0])
    A("s_endpgm")
    nv = R.hi
    A.label(f"{name}_loader")
    STL = Stamps(A, on=stamps, kidx=2, base=70)
    R = RegAlloc(5)
    voW = [R.alloc() for _ in range(4)]; voH = [R.alloc() for _ in range(2)]
    vl = R.alloc(); t0 = R.alloc(); t1 = R.alloc(); t2 = R.alloc()
    vC = R.alloc(2)
    vtb = R.alloc(8, 4); vt = [vtb + k for k in range(8)]
    za = [R.alloc(4) for _ in range(7)]
    z2p = [R.alloc(2) for _ in range(7)]
    st1 = [R.alloc(2) for _ in range(2)]; st2 = [R.alloc(2) for _ in range(2)]
    pol = [R.alloc(4) for _ in range(4)]
    vX = R.alloc(); vrow = [R.alloc() for _ in range(2)]; vLa = [R.alloc() for _ in range(2)]
    sLw, sWk, sHk, sLW, sLH = 29, 30, 31, 32, 33
    A("s_mov_b32 s10, %d" % (512 * WROW)); A("s_mov_b32 s11, 0x20000")
    A("s_mov_b32 s6, %d" % (WS_H2 + S * D * 2)); A("s_mov_b32 s7, 0x20000")
    A(f"s_sub_u32 {s(sLw)}, {s(sW)}, 4")
    A(f"v_and_b32 {v(vl)}, 63, v0")
    div14(A, t0, t1, vl, t2)
    A(f"v_mul_u32_u24 {v(t0)}, {WROW}, {v(t0)}")
    A(f"v_lshl_add_u32 {v(t0)}, {v(t1)}, 4, {v(t0)}")
    A(f"s_mul_i32 {s(sT0)}, {s(sLw)}, {16*WROW}")
    A(f"v_add_u32 {v(voW[0])}, {s(sT0)}, {v(t0)}")
    for g in range(1, 4): A(f"v_add_u32 {v(voW[g])}, {g*(4*WROW - GS)}, {v(voW[0])}")
    A(f"v_lshrrev_b32 {v(t0)}, 3, {v(vl)}")
    A(f"v_and_b32 {v(t1)}, 7, {v(vl)}")
    A(f"v_xor_b32 {v(t1)}, {v(t1)}, {v(t0)}")
    A(f"v_lshlrev_b32 {v(t1)}, 4, {v(t1)}")
    A(f"v_lshl_add_u32 {v(t0)}, {v(t0)}, 10, {v(t1)}")
    A(f"s_lshl_b32 {s(sT0)}, {s(sLw)}, 14")
    A(f"v_add_u32 {v(voH[0])}, {s(sT0)}, {v(t0)}")
    A(f"v_add_u32 {v(voH[1])}, {8192-1024}, {v(voH[0])}")
    A(f"s_mul_i32 {s(sWk)}, {s(sCC)}, 224")
    A(f"s_lshl_b32 {s(sHk)}, {s(sRB)}, 16")
    A(f"s_add_u32 {s(sHk)}, {s(sHk)}, {WS_H2}")
    A(f"s_mul_i32 {s(sLW)}, {s(sLw)}, {4*GS}")
    A(f"s_lshl_b32 {s(sLH)}, {s(sLw)}, 11")
    A("s_waitcnt lgkmcnt(0)")
    def issue(st):
        half, kc = st >> 3, st & 7; slot = st % NS
        A(f"s_add_u32 m0, {s(sLW)}, {W_OFF + slot*SLOT}")
        A(f"s_add_u32 {s(sT0)}, {s(sWk)}, {kc*64*WROW + (1792 if half == 0 else 0)}")
        A("s_mov_b32 exec_hi, 0x00ffffff")
        for g in range(4):
            A(f"buffer_load_dwordx4 {v(voW[g])}, s[8:11], {s(sT0)} offen offset:{g*GS} lds")
        if half == 0:
            A(f"s_add_u32 m0, {s(sLH)}, {kc*8192}")
            A(f"s_add_u32 {s(sT0)}, {s(sHk)}, {kc*128}")
            A("s_mov_b32 exec_hi, -1")
            for j in range(2):
                A(f"buffer_load_dwordx4 {v(voH[j])}, s[4:7], {s(sT0)} offen offset:{j*1024} lds")
        else:
            A("s_mov_b32 exec_hi, -1")
    BG = []
    BG.append(f"s_mul_i32 {s(sT1)}, {s(sLw)}, 7168")
    BG.append(f"s_add_u32 {s(sT1)}, {s(sT1)}, {X_OFF}")
    BG.append(f"v_lshl_add_u32 {v(vX)}, {v(vl)}, 4, {s(sT1)}")
    for tl in range(7): BG.append(f"ds_read_b128 {v(za[tl],4)}, {v(vX)} offset:{tl*1024}")
    BG.append(f"v_mov_b32 {v(vC)}, {fhex(GELU_C2)}")
    BG.append(f"v_mov_b32 {v(vC+1)}, {fhex(GELU_C1)}")
    for hf in range(2):
        for r in range(2):
            BG.append(f"v_mov_b32 {v(st1[hf]+r)}, 0"); BG.append(f"v_mov_b32 {v(st2[hf]+r)}, 0")
    BG.append(f"s_mov_b32 {s(sT2)}, 0xffff0000")
    BG.append("s_waitcnt lgkmcnt(0)")
    for tl, (wf, hf) in enumerate(TILES):
        ac = za[tl]
        BG += gelu_pk(ac, vt[0], vC)
        for h in range(2): BG.append(f"v_cvt_pk_bf16_f32 {v(z2p[tl]+h)}, {v(ac+2*h)}, {v(ac+2*h+1)}")
        for h in range(2):
            BG.append(f"v_lshlrev_b32 {v(vt[4]+2*h)}, 16, {v(z2p[tl]+h)}")
            BG.append(f"v_and_b32 {v(vt[4]+2*h+1)}, {s(sT2)}, {v(z2p[tl]+h)}")
        for h in range(2):
            BG.append(pk("add", st1[hf], v(st1[hf], 2), v(vt[4]+2*h, 2)))
            BG.append(pk("fma", st2[hf], v(vt[4]+2*h, 2), v(vt[4]+2*h, 2), v(st2[hf], 2)))
    for hf in range(2):
        BG.append(f"v_add_f32 {v(st1[hf])}, {v(st1[hf])}, {v(st1[hf]+1)}")
        BG.append(f"v_add_f32 {v(st2[hf])}, {v(st2[hf])}, {v(st2[hf]+1)}")
    for r in (st1[0], st2[0], st1[1], st2[1]):
        BG += [f"v_mov_b32 {v(vt[0])}, {v(r)}", f"v_permlane16_swap_b32 {v(r)}, {v(vt[0])}", f"v_add_f32 {v(r)}, {v(r)}, {v(vt[0])}",
               f"v_mov_b32 {v(vt[0])}, {v(r)}", f"v_permlane32_swap_b32 {v(r)}, {v(vt[0])}", f"v_add_f32 {v(r)}, {v(r)}, {v(vt[0])}"]
    BG += [f"v_cmp_eq_u32 vcc, 1, {v(vq)}",
           f"v_mov_b32 {v(vt[4])}, 0x7fc00000",
           f"v_cndmask_b32 {v(vt[2])}, {v(st1[0])}, {v(st1[1])}, vcc",
           f"v_cndmask_b32 {v(vt[3])}, {v(st2[0])}, {v(st2[1])}, vcc",
           f"v_cndmask_b32 {v(vt[0])}, {v(vtt[0])}, {v(vtt[1])}, vcc",
           f"v_cmp_eq_u32 vcc, -1, {v(vt[2])}",
           f"s_lshl1_add_u32 {s(sT1)}, {s(sRB)}, {s(sTH)}",
           f"v_cndmask_b32 {v(vt[2])}, {v(vt[2])}, {v(vt[4])}, vcc",
           f"v_cmp_eq_u32 vcc, -1, {v(vt[3])}",
           f"s_lshl_b32 {s(sT1)}, {s(sT1)}, 12",
           f"v_cndmask_b32 {v(vt[3])}, {v(vt[3])}, {v(vt[4])}, vcc",
           f"s_add_u32 {s(sT1)}, {s(sT1)}, {WS_STAT}",
           f"s_lshl1_add_u32 {s(sT2)}, {s(sCC)}, {s(sFH)}",
           f"s_lshl_b32 {s(sT2)}, {s(sT2)}, 8",
           f"s_add_u32 {s(sT2)}, {s(sT2)}, {s(sT1)}",
           f"v_and_b32 {v(vt[0])}, 31, {v(vt[0])}",
           f"v_lshl_add_u32 {v(vt[0])}, {v(vt[0])}, 3, {s(sT2)}"]
    for hf in range(2):
        BG.append(f"v_and_b32 {v(vrow[hf])}, 31, {v(vtt[hf])}")
        BG.append(f"v_lshl_add_u32 {v(vrow[hf])}, {v(vrow[hf])}, 3, {s(sT1)}")
        BG.append(f"v_lshl_add_u32 {v(vrow[hf])}, {v(vq)}, 10, {v(vrow[hf])}")
    bgq = list(BG)
    for st in range(min(NS, NST)): issue(st)
    issued = min(NS, NST)
    cnt = lambda st: 6 if st < 8 else 4
    for i in range(NST):
        out = sum(cnt(j) for j in range(i + 1, issued))
        A(f"s_waitcnt vmcnt({out})")
        A("s_barrier")
        if i >= 1 and issued < NST:
            issue(issued); issued += 1
        if i == 9: A("s_setprio 2")
        if i >= 9:
            for _ in range(slice_n):
                if bgq: A(bgq.pop(0))
    for x in bgq: A(x)
    A("s_mov_b32 exec_hi, 0")
    A(f"global_store_dwordx2 {v(vt[0])}, {v(vt[2],2)}, s[4:5] sc0 sc1")
    A("s_mov_b32 exec_hi, -1")
    if stamps: A("s_mov_b32 s20, 0"); STL.n = 0; STL.stamp()
    A(f"s_mul_i32 {s(sT0)}, {s(sLw)}, 7168")
    A(f"s_add_u32 {s(sT0)}, {s(sT0)}, {X_OFF}")
    for hf in range(2):
        A(f"v_and_b32 {v(vLa[hf])}, 31, {v(vtt[hf])}")
        A(f"v_mul_u32_u24 {v(vLa[hf])}, 144, {v(vLa[hf])}")
        A(f"v_lshl_add_u32 {v(vLa[hf])}, {v(vq)}, 3, {v(vLa[hf])}")
        A(f"v_add_u32 {v(vLa[hf])}, {s(sT0)}, {v(vLa[hf])}")
    vtr = voH[0]; vgz = voH[1]; vtr3 = voW[0]; vgz3 = voW[1]
    A(f"v_lshrrev_b32 {v(t0)}, 2, {v(vi)}")
    A(f"v_lshl_add_u32 {v(t0)}, {v(vq)}, 3, {v(t0)}")
    A(f"v_mul_u32_u24 {v(vtr)}, 144, {v(t0)}")
    A(f"v_and_b32 {v(t1)}, 3, {v(vi)}")
    A(f"v_lshl_add_u32 {v(vtr)}, {v(t1)}, 3, {v(vtr)}")
    A(f"v_add_u32 {v(vtr)}, {s(sT0)}, {v(vtr)}")
    A(f"s_mul_i32 {s(sT1)}, {s(sFH)}, {16*144}")
    A(f"s_add_u32 {s(sT1)}, {s(sT1)}, 96")
    A(f"v_add_u32 {v(vtr3)}, {s(sT1)}, {v(vtr)}")
    A(f"v_lshlrev_b32 {v(vgz)}, 12, {v(vi)}")
    A(f"v_lshl_add_u32 {v(vgz)}, {v(vq)}, 4, {v(vgz)}")
    A(f"s_mul_i32 {s(sT1)}, {s(sCC)}, {112*4096}")
    A(f"s_lshl_b32 {s(sT2)}, {s(sRB)}, 7")
    A(f"s_add_u32 {s(sT1)}, {s(sT1)}, {s(sT2)}")
    A(f"s_lshl_b32 {s(sT2)}, {s(sTH)}, 6")
    A(f"s_add_u32 {s(sT1)}, {s(sT1)}, {s(sT2)}")
    A(f"s_add_u32 {s(sT1)}, {s(sT1)}, {WS_Z2T}")
    A(f"s_lshl_b32 {s(sT2)}, {s(sFH)}, 5")
    A(f"s_add_u32 {s(sT2)}, {s(sT2)}, {48*4096}")
    A(f"s_add_u32 {s(sT2)}, {s(sT2)}, {s(sT1)}")
    A(f"v_add_u32 {v(vgz3)}, {s(sT2)}, {v(vgz)}")
    A(f"s_lshl_b32 {s(sT2)}, {s(sFH)}, 18")
    A(f"s_add_u32 {s(sT1)}, {s(sT1)}, {s(sT2)}")
    A(f"v_add_u32 {v(vgz)}, {s(sT1)}, {v(vgz)}")
    A(f"s_mov_b32 {s(sK)}, 0")
    A.label(f"{name}_poll")
    for hf in range(2):
        for u in range(4):
            A(f"global_load_dwordx2 {v(pol[hf*2+(u>>1)]+2*(u&1),2)}, {v(vrow[hf])}, s[4:5] offset:{u*256} sc1")
    A("s_waitcnt vmcnt(0)")
    A(f"v_max3_u32 {v(vt[0])}, {v(pol[0])}, {v(pol[0]+1)}, {v(pol[0]+2)}")
    rest = [pol[0]+3] + [pol[b_]+r for b_ in range(1, 4) for r in range(4)]
    for k in range(0, len(rest) - 1, 2): A(f"v_max3_u32 {v(vt[0])}, {v(vt[0])}, {v(rest[k])}, {v(rest[k+1])}")
    A(f"v_max_u32 {v(vt[0])}, {v(vt[0])}, {v(rest[-1])}")
    A(f"v_cmp_eq_u32 vcc, -1, {v(vt[0])}")
    A(f"s_add_u32 {s(sK)}, {s(sK)}, 1")
    A(f"s_cmp_eq_u64 vcc, 0")
    A(f"s_cbranch_scc1 {name}_polled")
    A("s_sleep 4")
    A(f"s_cmp_lt_u32 {s(sK)}, 0x40000")
    A(f"s_cbranch_scc1 {name}_poll")
    A.label(f"{name}_polled")
    if stamps: STL.stamp()
    mean = [vt[0], vt[1]]; rstd = [vt[2], vt[3]]
    for hf in range(2):
        p0, p1 = pol[hf*2], pol[hf*2+1]
        A(pk("add", p0, v(p0, 2), v(p0+2, 2)))
        A(pk("add", p1, v(p1, 2), v(p1+2, 2)))
        A(pk("add", p0, v(p0, 2), v(p1, 2)))
        A(f"v_mov_b32 {v(mean[hf])}, {v(p0)}")
        A(f"v_mov_b32 {v(rstd[hf])}, {v(p0+1)}")
    xor16_32_sum(A, mean + rstd, vt[6])
    for hf in range(2):
        A(f"v_mul_f32 {v(mean[hf])}, {fhex(1.0/896)}, {v(mean[hf])}")
        A(f"v_mul_f32 {v(rstd[hf])}, {fhex(1.0/896)}, {v(rstd[hf])}")
        A(f"v_fma_f32 {v(rstd[hf])}, -{v(mean[hf])}, {v(mean[hf])}, {v(rstd[hf])}")
        A(f"v_max_f32 {v(rstd[hf])}, 0, {v(rstd[hf])}")
        A(f"v_add_f32 {v(rstd[hf])}, 0x3727c5ac, {v(rstd[hf])}")
        A(f"v_rsq_f32 {v(rstd[hf])}, {v(rstd[hf])}")
        A(f"v_mul_f32 {v(mean[hf])}, {v(mean[hf])}, {v(rstd[hf])}")
    for hf in range(2):
        A(f"v_mov_b32 {v(st1[hf])}, {v(rstd[hf])}")
        A(f"v_sub_f32 {v(st1[hf]+1)}, 0, {v(mean[hf])}")
    A(f"s_mov_b32 {s(sT0)}, 0xffff0000")
    for tl, (wf, hf) in enumerate(TILES):
        z = z2p[tl]
        for h in range(2):
            A(f"v_lshlrev_b32 {v(vt[4])}, 16, {v(z+h)}")
            A(f"v_and_b32 {v(vt[5])}, {s(sT0)}, {v(z+h)}")
            A(pk("fma", vt[4], v(vt[4], 2), v(st1[hf], 2), v(st1[hf], 2), "op_sel:[0,0,1] op_sel_hi:[1,0,1]"))
            A(f"v_cvt_pk_bf16_f32 {v(z+h)}, {v(vt[4])}, {v(vt[5])}")
        A(f"ds_write_b64 {v(vLa[hf])}, {v(z,2)} offset:{wf*32}")
    A("s_waitcnt lgkmcnt(0)")
    for wf in range(3):
        for p in range(2): A(f"ds_read_b64_tr_b16 {v(za[wf]+2*p,2)}, {v(vtr)} offset:{wf*32 + 4*p*144}")
    for p in range(2): A(f"ds_read_b64_tr_b16 {v(za[3]+2*p,2)}, {v(vtr3)} offset:{4*p*144}")
    for wf in range(3):
        A(f"s_waitcnt lgkmcnt({6-2*wf})")
        A(f"global_store_dwordx4 {v(vgz)}, {v(za[wf],4)}, s[4:5]")
        if wf < 2: A(f"v_add_u32 {v(vgz)}, {16*4096}, {v(vgz)}")
    A("s_waitcnt lgkmcnt(0)")
    A("s_mov_b32 exec_hi, 0")
    A(f"global_store_dwordx4 {v(vgz3)}, {v(za[3],4)}, s[4:5]")
    if stamps:
        A("s_mov_b32 exec_hi, -1")
        STL.stamp(); A("s_waitcnt vmcnt(0)"); STL.stamp()
        A(f"s_cmp_lg_u32 {s(sLw)}, 0"); A(f"s_cselect_b32 s20, 1, 0"); STL.flush(4, vt[0], slot=1)
    A("s_endpgm")
    A.label(f"{name}_end")
    A("s_endpgm")
    return dict(name=name, grid=NWG, block=512, lds=LDS, vgpr=max(nv, R.hi), sgpr=96 if stamps else 40)

def gen_kg(A, name="kg_kernel", NS=6, stamps=False, prefetch=True, noread=False, nomfma=False, tbmask=None, fbmask=None, clk=False):
    NWG = 256; TF = 112; TT = 64; NST = 32
    A_B = 14 * 1024; B_OFF = 15 * 1024; STAGE = 24 * 1024
    RING = NS * STAGE
    Z_OFF = RING
    LDS = RING + 64 * 224
    last_slot = (NST - 1) % NS
    X_OFF = ((last_slot + 1) % NS) * STAGE
    assert X_OFF + 4 * 7168 <= RING and not (X_OFF <= last_slot * STAGE < X_OFF + 4 * 7168)
    A.barrier_state(); A.raw(kernel_header(name))
    ST = Stamps(A, on=stamps, kidx=3)
    sW, sFB, sTB, sT0, sT1, sT2, sSlot, sI = 20, 21, 22, 23, 24, 25, 26, 27
    A(f"s_cmp_ge_u32 s2, {NWG}")
    A(f"s_cbranch_scc1 {name}_end")
    ST.stamp()
    load_ptr(A, 4, "ws"); load_ptr(A, 8, "wsp"); load_ptr(A, 12, "bsp")
    if prefetch: load_ptr(A, 16, "wout")
    A(f"v_readfirstlane_b32 {s(sW)}, v0")
    A(f"s_and_b32 {s(sFB)}, s2, 1")
    A(f"s_bfe_u32 {s(sT0)}, s2, 0x20003")
    A(f"s_lshl2_add_u32 {s(sFB)}, {s(sFB)}, {s(sT0)}")
    A(f"s_bfe_u32 {s(sTB)}, s2, 0x20001")
    A(f"s_lshr_b32 {s(sT0)}, s2, 5")
    A(f"s_lshl3_add_u32 {s(sTB)}, {s(sTB)}, {s(sT0)}")
    if tbmask is not None: A(f"s_and_b32 {s(sTB)}, {s(sTB)}, {tbmask}")
    if fbmask is not None: A(f"s_and_b32 {s(sFB)}, {s(sFB)}, {fbmask}")
    A(f"s_lshr_b32 {s(sW)}, {s(sW)}, 6")
    A(f"s_cmp_ge_u32 {s(sW)}, 4")
    A(f"s_cbranch_scc1 {name}_loader")
    R = RegAlloc(1)
    vq = R.alloc(); vi = R.alloc(); vA = R.alloc(); vB = [R.alloc() for _ in range(2)]
    cA = R.alloc(); cB = [R.alloc() for _ in range(2)]
    vtb = R.alloc(8, 4); vt = [vtb + k for k in range(8)]
    acc = [[R.alloc(4) for _ in range(2)] for _ in range(7)]
    FA = [[R.alloc(4) for _ in range(7)] for _ in range(2)]
    FB = [[R.alloc(4) for _ in range(2)] for _ in range(2)]
    vb = R.alloc(); vtt = R.alloc()
    A(f"v_bfe_u32 {v(vq)}, v0, 4, 2")
    A(f"v_and_b32 {v(vi)}, 15, v0")
    A(f"v_lshl_add_u32 {v(vtt)}, {s(sW)}, 4, {v(vi)}")
    A(f"v_lshl_add_u32 {v(vt[0])}, {s(sTB)}, 6, {v(vtt)}")
    A(f"v_lshlrev_b32 {v(vt[0])}, 1, {v(vt[0])}")
    A(f"s_and_b32 {s(sT0)}, {s(sW)}, 1")
    A(f"s_lshl_b32 {s(sT0)}, {s(sT0)}, 2")
    A(f"v_add_u32 {v(vt[1])}, {s(sT0)}, {v(vq)}")
    A(f"v_and_b32 {v(vt[2])}, 7, {v(vi)}")
    A(f"v_xor_b32 {v(vt[1])}, {v(vt[1])}, {v(vt[2])}")
    A(f"v_lshlrev_b32 {v(vt[1])}, 4, {v(vt[1])}")
    A(f"v_lshl_add_u32 {v(vA)}, {v(vi)}, 7, {v(vt[1])}")
    A(f"v_lshl_add_u32 {v(vB[0])}, {v(vtt)}, 7, {v(vt[1])}")
    A(f"v_add_u32 {v(vB[0])}, {B_OFF}, {v(vB[0])}")
    A(f"v_xor_b32 {v(vB[1])}, 2048, {v(vB[0])}") if B_OFF % 4096 == 0 else None
    if B_OFF % 4096:
        A(f"v_xor_b32 {v(vt[3])}, 16, {v(vtt)}")
        A(f"v_lshl_add_u32 {v(vB[1])}, {v(vt[3])}, 7, {v(vt[1])}")
        A(f"v_add_u32 {v(vB[1])}, {B_OFF}, {v(vB[1])}")
    A("s_waitcnt lgkmcnt(0)")
    A(f"global_load_ushort {v(vb)}, {v(vt[0])}, s[12:13]")
    A(f"s_mov_b32 {s(sSlot)}, 0")
    A(f"s_mov_b32 {s(sI)}, 0")
    def rds(buf, a_, b_):
        if noread: return []
        return [f"ds_read_b128 {v(FA[buf][fa],4)}, {v(a_)} offset:{fa*2048}" for fa in range(7)] + \
               [f"ds_read_b128 {v(FB[buf][nb],4)}, {v(b_[nb])}" for nb in range(2)]
    def mms(buf, first=False):
        o = []
        if nomfma: return o
        for fa in range(7):
            for nb in range(2):
                c = "0" if first else v(acc[fa][nb], 4)
                o.append(f"v_mfma_f32_16x16x32_bf16 {v(acc[fa][nb],4)}, {v(FA[buf][fa],4)}, {v(FB[buf][nb],4)}, {c}")
        return o
    def adv():
        A(f"s_add_u32 {s(sSlot)}, {s(sSlot)}, {STAGE}")
        A(f"s_cmp_ge_u32 {s(sSlot)}, {RING}")
        A(f"s_cselect_b32 {s(sSlot)}, 0, {s(sSlot)}")
        A(f"v_add_u32 {v(cA)}, {s(sSlot)}, {v(vA)}")
        for nb in range(2): A(f"v_add_u32 {v(cB[nb])}, {s(sSlot)}, {v(vB[nb])}")
    A("s_barrier")
    ST.stamp()
    if clk: ST.cstamp()
    for r in rds(0, vA, vB): A(r)
    adv()
    A("s_waitcnt lgkmcnt(0)")
    A("s_barrier")
    for x in interleave2(mms(0, True), rds(1, cA, cB)): A(x)
    loop = f"{name}_cloop"
    A.label(loop)
    for buf in (1, 0):
        adv()
        A("s_waitcnt lgkmcnt(0)")
        A("s_barrier")
        for x in interleave2(mms(buf), rds(buf ^ 1, cA, cB)): A(x)
    A(f"s_add_u32 {s(sI)}, {s(sI)}, 1")
    A(f"s_cmp_lt_u32 {s(sI)}, 15")
    A(f"s_cbranch_scc1 {loop}")
    A("s_waitcnt lgkmcnt(0)")
    for x in mms(1): A(x)
    ST.stamp()
    if clk: ST.cstamp()
    A(f"v_and_b32 {v(vt[0])}, 63, v0")
    A(f"s_mul_i32 {s(sT0)}, {s(sW)}, 7168")
    A(f"s_add_u32 {s(sT0)}, {s(sT0)}, {X_OFF}")
    A(f"v_lshl_add_u32 {v(vt[1])}, {v(vt[0])}, 4, {s(sT0)}")
    A(f"s_xor_b32 {s(sT1)}, {s(sW)}, 1")
    A(f"s_mul_i32 {s(sT1)}, {s(sT1)}, 7168")
    A(f"s_add_u32 {s(sT1)}, {s(sT1)}, {X_OFF}")
    A(f"v_lshl_add_u32 {v(vt[2])}, {v(vt[0])}, 4, {s(sT1)}")
    for fa in range(7): A(f"ds_write_b128 {v(vt[1])}, {v(acc[fa][1],4)} offset:{fa*1024}")
    A(f"v_mul_u32_u24 {v(vt[3])}, 224, {v(vtt)}")
    A(f"v_lshl_add_u32 {v(vt[3])}, {v(vq)}, 3, {v(vt[3])}")
    A(f"v_add_u32 {v(vt[3])}, {Z_OFF}, {v(vt[3])}")
    vz = FB[0][0]
    for j in range(4):
        A(f"v_add_u32 {v(vt[4])}, {64*j}, {v(vt[0])}")
        div14(A, vt[5], vt[6], vt[4], vt[7])
        A(f"v_mul_u32_u24 {v(vt[5])}, 1792, {v(vt[5])}")
        A(f"v_lshl_add_u32 {v(vz+j)}, {v(vt[6])}, 4, {v(vt[5])}")
    A(f"s_lshl2_add_u32 {s(sT0)}, {s(sTB)}, {s(sW)}")
    A(f"s_mul_i32 {s(sT0)}, {s(sT0)}, {16*1792}")
    A(f"s_mul_i32 {s(sT1)}, {s(sFB)}, 224")
    A(f"s_add_u32 {s(sT0)}, {s(sT0)}, {s(sT1)}")
    A(f"s_add_u32 {s(sT0)}, {s(sT0)}, {WS_P0}")
    for j in range(4): A(f"v_add_u32 {v(vz+j)}, {s(sT0)}, {v(vz+j)}")
    A(f"s_mul_i32 {s(sT0)}, {s(sW)}, {16*224}")
    A(f"s_add_u32 {s(sT0)}, {s(sT0)}, {Z_OFF}")
    A(f"v_lshl_add_u32 {v(vt[4])}, {v(vt[0])}, 4, {s(sT0)}")
    A("s_waitcnt vmcnt(0) lgkmcnt(0)")
    A("s_barrier")
    for fa in range(7): A(f"ds_read_b128 {v(FA[0][fa],4)}, {v(vt[2])} offset:{fa*1024}")
    zr = [FA[1][fa] for fa in range(7)]
    for fa in range(7): A(f"ds_read_b64 {v(zr[fa],2)}, {v(vt[3])} offset:{fa*32}")
    A(f"v_lshlrev_b32 {v(vb)}, 16, {v(vb)}")
    A(f"v_mov_b32 {v(FB[1][0])}, {v(vb)}")
    A(f"v_mov_b32 {v(FB[1][0]+1)}, {v(vb)}")
    A(f"s_mov_b32 {s(sT0)}, 0xffff0000")
    for fa in range(7):
        ac = acc[fa][0]; pr = FA[0][fa]; z = zr[fa]
        A(f"s_waitcnt lgkmcnt({min(15, 13 - fa)})")
        for h in (0, 2): A(pk("add", ac + h, v(ac + h, 2), v(pr + h, 2)))
        for h in (0, 2): A(pk("add", ac + h, v(ac + h, 2), v(FB[1][0], 2)))
        A(f"s_waitcnt lgkmcnt({6 - fa})")
        for h in range(2):
            A(f"v_lshlrev_b32 {v(z+2)}, 16, {v(z+h)}")
            A(f"v_and_b32 {v(z+3)}, {s(sT0)}, {v(z+h)}")
            A(pk("mul", ac + 2*h, v(ac + 2*h, 2), v(z + 2, 2)))
            A(f"v_cvt_pk_bf16_f32 {v(pr+h)}, {v(ac+2*h)}, {v(ac+2*h+1)}")
    for fa in range(7): A(f"ds_write_b64 {v(vt[3])}, {v(FA[0][fa],2)} offset:{fa*32}")
    A("s_waitcnt lgkmcnt(0)")
    ob = [FA[1][j] for j in range(4)]
    for j in range(4): A(f"ds_read_b128 {v(ob[j],4)}, {v(vt[4])} offset:{j*1024}")
    for j in range(3):
        A(f"s_waitcnt lgkmcnt({3-j})")
        A(f"global_store_dwordx4 {v(vz+j)}, {v(ob[j],4)}, s[4:5]")
    A("s_waitcnt lgkmcnt(0)")
    A("s_mov_b32 exec_hi, 0")
    A(f"global_store_dwordx4 {v(vz+3)}, {v(ob[3],4)}, s[4:5]")
    if stamps:
        A("s_mov_b32 exec_hi, -1")
        ST.stamp(); A("s_waitcnt vmcnt(0)"); ST.stamp(); ST.flush(4, vt[0])
    A("s_endpgm")
    nv = R.hi
    A.label(f"{name}_loader")
    R = RegAlloc(1)
    vo = [R.alloc() for _ in range(6)]; vz1 = [R.alloc() for _ in range(4)]
    vl = R.alloc(); t0 = R.alloc(); t1 = R.alloc(); t2 = R.alloc(); t3 = R.alloc()
    sLw, sK1, sK2, sL1, sL2 = 28, 29, 30, 31, 32
    SR1, SR2 = 36, 40
    A(f"s_sub_u32 {s(sLw)}, {s(sW)}, 4")
    A(f"v_and_b32 {v(vl)}, 63, v0")
    A(f"v_lshrrev_b32 {v(t0)}, 3, {v(vl)}")
    A(f"v_and_b32 {v(t1)}, 7, {v(vl)}")
    A(f"v_xor_b32 {v(t1)}, {v(t1)}, {v(t0)}")
    A(f"v_lshlrev_b32 {v(t1)}, 4, {v(t1)}")
    A(f"v_lshl_add_u32 {v(t0)}, {v(t0)}, 12, {v(t1)}")
    A(f"s_lshl_b32 {s(sT0)}, {s(sLw)}, 3")
    A(f"s_mov_b32 {s(sT1)}, 0x060c0600")
    A(f"s_lshr_b32 {s(sT1)}, {s(sT1)}, {s(sT0)}")
    A(f"s_and_b32 {s(sT1)}, {s(sT1)}, 0xff")
    A(f"s_mov_b32 {s(sT2)}, 0x03000903")
    A(f"s_lshr_b32 {s(sT2)}, {s(sT2)}, {s(sT0)}")
    A(f"s_and_b32 {s(sT2)}, {s(sT2)}, 0xff")
    STEP = 8 * 4096 - 1024
    A(f"s_lshl_b32 {s(sT0)}, {s(sT1)}, 15")
    A(f"v_add_u32 {v(vo[0])}, {s(sT0)}, {v(t0)}")
    A(f"s_lshl_b32 {s(sT0)}, {s(sT2)}, 15")
    A(f"v_add_u32 {v(vo[3])}, {s(sT0)}, {v(t0)}")
    for k in (1, 2):
        A(f"v_add_u32 {v(vo[k])}, {k*STEP}, {v(vo[0])}")
        A(f"v_add_u32 {v(vo[3+k])}, {k*STEP}, {v(vo[3])}")
    A(f"s_lshl_b32 {s(sL1)}, {s(sT1)}, 10")
    A(f"s_lshl_b32 {s(sL2)}, {s(sT2)}, 10")
    A(f"s_cmp_eq_u32 {s(sLw)}, 3")
    A(f"s_cselect_b32 {s(sT0)}, {B_OFF}, 0")
    A(f"s_add_u32 {s(sL1)}, {s(sL1)}, {s(sT0)}")
    A(f"s_cmp_ge_u32 {s(sLw)}, 2")
    A(f"s_cselect_b32 {s(sT0)}, {B_OFF}, 0")
    A(f"s_add_u32 {s(sL2)}, {s(sL2)}, {s(sT0)}")
    A("s_waitcnt lgkmcnt(0)")
    A(f"s_mul_i32 {s(sT0)}, {s(sFB)}, {TF*4096}")
    A(f"s_add_u32 {s(sT0)}, {s(sT0)}, {WS_Z2T}")
    A(f"s_add_u32 s44, s4, {s(sT0)}")
    A(f"s_addc_u32 s45, s5, 0")
    A(f"s_lshl_b32 {s(sT0)}, {s(sTB)}, 18")
    A(f"s_add_u32 s46, s8, {s(sT0)}")
    A(f"s_addc_u32 s47, s9, 0")
    A(f"s_cmp_eq_u32 {s(sLw)}, 3")
    A(f"s_cselect_b32 {s(SR1)}, s46, s44")
    A(f"s_cselect_b32 {s(SR1+1)}, s47, s45")
    A(f"s_mov_b32 {s(SR1+2)}, {TF*4096}")
    A(f"s_mov_b32 {s(SR1+3)}, 0x20000")
    A(f"s_cmp_ge_u32 {s(sLw)}, 2")
    A(f"s_cselect_b32 {s(SR2)}, s46, s44")
    A(f"s_cselect_b32 {s(SR2+1)}, s47, s45")
    A(f"s_mov_b32 {s(SR2+2)}, {TF*4096}")
    A(f"s_mov_b32 {s(SR2+3)}, 0x20000")
    A(f"s_mov_b32 {s(sK1)}, 0")
    A(f"s_mov_b32 {s(sSlot)}, 0")
    A(f"s_cbranch_scc1 {name}_ldY")
    def path(tag, n1):
        n = n1 + 3
        def issue():
            A(f"s_add_u32 m0, {s(sSlot)}, {s(sL1)}")
            A(f"s_add_u32 {s(sT0)}, {s(sSlot)}, {s(sL2)}")
            for k in range(n1): A(f"buffer_load_dwordx4 {v(vo[k])}, {s(SR1,4)}, {s(sK1)} offen offset:{k*1024} lds")
            A(f"s_mov_b32 m0, {s(sT0)}")
            A(f"s_add_u32 {s(sSlot)}, {s(sSlot)}, {STAGE}")
            for k in range(3): A(f"buffer_load_dwordx4 {v(vo[3+k])}, {s(SR2,4)}, {s(sK1)} offen offset:{k*1024} lds")
            A(f"s_add_u32 {s(sK1)}, {s(sK1)}, 128")
            A(f"s_cmp_ge_u32 {s(sSlot)}, {RING}")
            A(f"s_cselect_b32 {s(sSlot)}, 0, {s(sSlot)}")
        for st in range(NS): issue()
        for j in range(4):
            A(f"v_add_u32 {v(t1)}, {64*j}, {v(vl)}")
            div14(A, t2, t3, t1, vz1[j])
            A(f"v_mul_u32_u24 {v(t2)}, 1792, {v(t2)}")
            A(f"v_lshl_add_u32 {v(vz1[j])}, {v(t3)}, 4, {v(t2)}")
            if j: A(f"v_subrev_u32 {v(vz1[j])}, {j*1024}, {v(vz1[j])}")
        npf = 0
        if prefetch:
            A(f"s_lshr_b32 {s(sT0)}, s2, 3")
            A(f"s_lshl2_add_u32 {s(sT0)}, {s(sT0)}, {s(sLw)}")
            A(f"v_lshl_add_u32 {v(t1)}, {s(sT0)}, 6, {v(vl)}")
            A(f"v_lshrrev_b32 {v(t2)}, 2, {v(t1)}")
            A(f"v_and_b32 {v(t1)}, 3, {v(t1)}")
            A(f"v_lshlrev_b32 {v(t2)}, 10, {v(t2)}")
            A(f"v_lshl_add_u32 {v(t2)}, {v(t1)}, 7, {v(t2)}")
            A(f"s_and_b32 {s(sT0)}, s2, 1")
            A(f"s_lshl_b32 {s(sT0)}, {s(sT0)}, 9")
            A(f"s_mov_b32 s18, {FH*D*2}"); A("s_mov_b32 s19, 0x20000")
            A(f"buffer_load_dword {v(t3)}, {v(t2)}, s[16:19], {s(sT0)} offen")
            npf = 1
        A(f"s_waitcnt vmcnt({(NS-1)*n + npf})")
        A("s_barrier")
        nsteady = NST - NS
        A(f"s_mov_b32 {s(sI)}, 0")
        lp = f"{name}_lloop{tag}"
        A.label(lp)
        A(f"s_waitcnt vmcnt({(NS-2)*n})")
        A("s_barrier")
        issue()
        A(f"s_add_u32 {s(sI)}, {s(sI)}, 1")
        A(f"s_cmp_lt_u32 {s(sI)}, {nsteady}")
        A(f"s_cbranch_scc1 {lp}")
        A(f"s_lshl2_add_u32 {s(sT0)}, {s(sTB)}, {s(sLw)}")
        A(f"s_mul_i32 {s(sT0)}, {s(sT0)}, {16*1792}")
        A(f"s_mul_i32 {s(sT1)}, {s(sFB)}, 224")
        A(f"s_add_u32 {s(sT0)}, {s(sT0)}, {s(sT1)}")
        A(f"s_add_u32 {s(sT0)}, {s(sT0)}, {WS_Z1}")
        A(f"s_mov_b32 s6, {WS_Z1 + S*FH*2}"); A("s_mov_b32 s7, 0x20000")
        A(f"s_mul_i32 {s(sT1)}, {s(sLw)}, {16*224}")
        A(f"s_add_u32 m0, {s(sT1)}, {Z_OFF}")
        for j in range(3): A(f"buffer_load_dwordx4 {v(vz1[j])}, s[4:7], {s(sT0)} offen offset:{j*1024} lds")
        A("s_mov_b32 exec_hi, 0")
        A(f"buffer_load_dwordx4 {v(vz1[3])}, s[4:7], {s(sT0)} offen offset:3072 lds")
        A("s_mov_b32 exec_hi, -1")
        for j in range(NST - NS + 1, NST):
            A(f"s_waitcnt vmcnt({min(NS-2, NST-1-j)*n + 4})")
            A("s_barrier")
        A("s_waitcnt vmcnt(0)")
        A("s_barrier")
        A("s_endpgm")
    path("X", 3)
    A.label(f"{name}_ldY")
    path("Y", 2)
    A.label(f"{name}_end")
    A("s_endpgm")
    return dict(name=name, grid=NWG, block=512, lds=LDS, vgpr=max(nv, R.hi), sgpr=96 if stamps else 56)

gen_ko = gen_ko2
```

```python
import math, struct
def f2u(f): return struct.unpack("<I", struct.pack("<f", f))[0]
def bf16(f):
    u = f2u(f)
    r = (u + 0x7FFF + ((u >> 16) & 1)) >> 16
    return r & 0xFFFF
def pk(lo, hi): return bf16(lo) | (bf16(hi) << 16)
def cs(num, den):
    a = 2 * math.pi * (num % den) / den
    c, s_ = math.cos(a), math.sin(a)
    if abs(c) < 1e-12: c = 0.0
    if abs(s_) < 1e-12: s_ = 0.0
    return c, s_
def tab_f64():
    out = []
    for n in range(64):
        row = []
        for k in range(64):
            if n <= 32: val = cs(n * k, 64)[0]
            else: val = -cs((n - 32) * k, 64)[1]
            row.append(val)
        out += [pk(row[2*j], row[2*j+1]) for j in range(32)]
    return out
def tab_f1():
    out = []
    for mt in range(2):
        for l in range(64):
            q, i = l >> 4, l & 15
            e1 = 8 * mt + (i >> 1); cp = i & 1
            for jj in range(4):
                d1 = 4 * q + jj
                c, s_ = cs(e1 * d1, 16)
                out.append(pk(c, s_) if cp == 0 else pk(-s_, c))
    return out
def tab_f2():
    out = []
    for nt in range(2):
        for ks in range(2):
            for l in range(64):
                q, i = l >> 4, l & 15
                e2 = 16 * nt + i
                for jj in range(4):
                    d2 = 16 * ks + 4 * q + jj
                    c, s_ = cs(d2 * e2, 32)
                    out.append(pk(c, s_))
    return out
def tab_tw():
    out = []
    for wp in range(2):
        for l in range(64):
            q, i = l >> 4, l & 15
            d2 = 16 * wp + i
            for mt in range(2):
                for pp in range(2):
                    e1 = 8 * mt + 2 * q + pp
                    c, s_ = cs(d2 * e1, 512)
                    out += [f2u(c), f2u(s_)]
    return out
def tab_tw2():
    out = []
    for l in range(64):
        q, i = l >> 4, l & 15
        for h in range(2):
            d2 = 16 * h + i
            for mt in range(2):
                for pp in range(2):
                    e1 = 8 * mt + 2 * q + pp
                    c, s_ = cs(d2 * e1, 512)
                    out += [f2u(c), f2u(s_)]
    return out
TABS = [("tab_f64", tab_f64()), ("tab_f1", tab_f1()), ("tab_f2", tab_f2()), ("tab_tw2", tab_tw2())]
TAB_OFF = {}
_o = 0
for n, d in TABS:
    TAB_OFF[n] = _o; _o += len(d) * 4
TAB_BYTES = _o
def emit_tables():
    lines = [".p2align 8", ".type fft_tables,@object", "fft_tables:"]
    for n, d in TABS:
        for j in range(0, len(d), 8):
            lines.append(".long " + ", ".join("0x%08x" % x for x in d[j:j+8]))
    lines.append(f".size fft_tables, {TAB_BYTES}")
    return "\n".join(lines) + "\n"
if __name__ == "__main__": print(TAB_OFF, TAB_BYTES)
```

```python
import sys
from build4 import assemble2
from g3a import gen_ka, gen_kb
from g3b import gen_kz, gen_kg, gen_ko
def make(path, st=False, pf=True, launches=None, **kw):
    gens = [lambda A: gen_ka(A, stamps=st, prefetch=pf), lambda A: gen_kb(A, stamps=st, prefetch=pf), lambda A: gen_kz(A, stamps=st, prefetch=pf),
            lambda A: gen_kg(A, stamps=st, prefetch=pf), lambda A: gen_ko(A, stamps=st)]
    open(path, "w").write(assemble2(gens, launches))
if __name__ == "__main__":
    make(sys.argv[1], "-s" in sys.argv, "-nopf" not in sys.argv)
```

```python
import sys
from build4 import assemble2
from g3a import gen_ka, gen_kb
from g3b import gen_kz, gen_kg, gen_ko
from common import *
def gen_touch(A, name="touch_kernel"):
    A.barrier_state(); A.raw(kernel_header(name))
    A("s_cmp_ge_u32 s2, 256"); A(f"s_cbranch_scc1 {name}_end")
    items = [("x", 2048*512*2), ("wmod", 512*3072*2), ("win", 512*1792*2), ("wsp", 2048*2048*2), ("wout", 896*512*2)]
    for k, (n, sz) in enumerate(items): load_ptr(A, 4 + 4*k, n)
    A("s_lshl_b32 s3, s2, 9"); A("v_add_u32 v1, s3, v0"); A("v_lshlrev_b32 v1, 4, v1")
    A("s_waitcnt lgkmcnt(0)")
    r = 8
    for k, (n, sz) in enumerate(items):
        A(f"s_mov_b32 s{6+4*k}, {sz}"); A(f"s_mov_b32 s{7+4*k}, 0x20000")
        for off in range(0, sz, 2 << 20):
            A(f"s_mov_b32 s30, {off}")
            A(f"buffer_load_dwordx4 v[{r}:{r+3}], v1, s[{4+4*k}:{7+4*k}], s30 offen"); r += 4
    A.label(f"{name}_end"); A("s_endpgm")
    return dict(name=name, grid=256, block=512, lds=0, vgpr=64, sgpr=40)
def gen_empty(A, name="empty_kernel"):
    A.barrier_state(); A.raw(kernel_header(name)); A("s_endpgm")
    return dict(name=name, grid=256, block=256, lds=0, vgpr=8, sgpr=16)
gens = [gen_ka, gen_kb, gen_kz, gen_kg, gen_ko, gen_touch, gen_empty]
base = ["ka_kernel", "kb_kernel", "kz_kernel", "kg_kernel", "ko_kernel"]
V = {"e_base": base, "e_x2": base + base, "e_touch": ["touch_kernel"] + base, "e_touch2": ["touch_kernel", "touch_kernel"] + base,
     "e_dupKA": ["ka_kernel"] + base, "e_dupKG": base[:4] + ["kg_kernel", "ko_kernel"]}
for n, l in V.items(): open(f"dev/{n}.s", "w").write(assemble2(gens, l))
```

```python
from gemm_util import *

def interleave2(ms, rs, bg=None, rper=2, bper=0):
    out = []; rs = list(rs)
    for m in ms:
        out.append(m)
        for _ in range(rper):
            if rs: out.append(rs.pop(0))
        for _ in range(bper):
            if bg: out.append(bg.pop(0))
    return out + rs

def consumer_full(A, nst, reads, mfmas, bg=None, bper=0, hook=None, rper=2, tick=None):
    A("s_barrier")
    if tick: tick(0)
    for r in reads(0, 0): A(r)
    for st in range(nst):
        A("s_waitcnt lgkmcnt(0)")
        b = bg(st) if bg else None
        if st < nst - 1:
            A("s_barrier")
            if tick: tick(st + 1)
            for x in interleave2(mfmas(st, st & 1), reads(st + 1, (st + 1) & 1), b, rper, bper): A(x)
        else:
            for x in interleave2(mfmas(st, st & 1), [], b, rper, bper): A(x)
        if hook: hook(st)

def pk(op, d, a, b, c=None, sel=None):
    t = f"v_pk_{op}_f32 {v(d,2)}, {a}, {b}" + (f", {c}" if c else "")
    if sel: t += " " + sel
    return t

def gelu_pk(ac, t, vC):
    o = []
    for h in (0, 2): o.append(pk("mul", t + h, v(ac + h, 2), v(ac + h, 2)))
    for h in (0, 2): o.append(pk("fma", t + h, v(t + h, 2), v(vC, 2), v(vC, 2), "op_sel:[0,0,1] op_sel_hi:[1,0,1]"))
    for h in (0, 2): o.append(pk("mul", t + h, v(t + h, 2), v(ac + h, 2)))
    for r in range(4): o.append(f"v_exp_f32 {v(t+r)}, {v(t+r)}")
    for h in (0, 2): o.append(pk("add", t + h, v(t + h, 2), "1.0", sel="op_sel_hi:[1,0]"))
    for r in range(4): o.append(f"v_rcp_f32 {v(t+r)}, {v(t+r)}")
    for h in (0, 2): o.append(pk("mul", ac + h, v(ac + h, 2), v(t + h, 2)))
    return o

def gelu_pk_multi(acs, t, vC):
    pairs = [(ac + h, t + 4*k + h) for k, ac in enumerate(acs) for h in (0, 2)]
    o = []
    for x, tt in pairs: o.append(pk("mul", tt, v(x, 2), v(x, 2)))
    for x, tt in pairs: o.append(pk("fma", tt, v(tt, 2), v(vC, 2), v(vC, 2), "op_sel:[0,0,1] op_sel_hi:[1,0,1]"))
    for x, tt in pairs: o.append(pk("mul", tt, v(tt, 2), v(x, 2)))
    for x, tt in pairs: o += [f"v_exp_f32 {v(tt)}, {v(tt)}", f"v_exp_f32 {v(tt+1)}, {v(tt+1)}"]
    for x, tt in pairs: o.append(pk("add", tt, v(tt, 2), "1.0", sel="op_sel_hi:[1,0]"))
    for x, tt in pairs: o += [f"v_rcp_f32 {v(tt)}, {v(tt)}", f"v_rcp_f32 {v(tt+1)}, {v(tt+1)}"]
    for x, tt in pairs: o.append(pk("mul", x, v(x, 2), v(tt, 2)))
    return o

def gen_kz(A, name="kz_kernel", NS=6, stamps=False, prefetch=True):
    NWG = 256
    GS = 960; SLOT = 16 * GS; W_OFF = 65536
    LDS = W_OFF + NS * SLOT
    NST = 16; WROW = 3584
    A.barrier_state(); A.raw(kernel_header(name))
    ST = Stamps(A, on=stamps, kidx=2)
    sW, sRB, sCC, sT0, sT1, sT2, sTH, sFH, sK = 20, 21, 22, 23, 24, 25, 26, 27, 28
    A(f"s_cmp_ge_u32 s2, {NWG}")
    A(f"s_cbranch_scc1 {name}_end")
    ST.stamp()
    load_ptr(A, 4, "ws"); load_ptr(A, 8, "win")
    A(f"v_readfirstlane_b32 {s(sW)}, v0")
    A(f"s_bfe_u32 {s(sRB)}, s2, 0x20001")
    A(f"s_bfe_u32 {s(sT0)}, s2, 0x30003")
    A(f"s_lshl3_add_u32 {s(sRB)}, {s(sRB)}, {s(sT0)}")
    A(f"s_and_b32 {s(sCC)}, s2, 1")
    A(f"s_lshr_b32 {s(sT0)}, s2, 6")
    A(f"s_lshl2_add_u32 {s(sCC)}, {s(sCC)}, {s(sT0)}")
    A(f"s_lshr_b32 {s(sW)}, {s(sW)}, 6")
    A(f"s_cmp_ge_u32 {s(sW)}, 4")
    A(f"s_cbranch_scc1 {name}_loader")
    R = RegAlloc(1)
    vq = R.alloc(); vi = R.alloc()
    vC = R.alloc(2)
    vtb = R.alloc(8, 4); vt = [vtb + k for k in range(8)]
    vH = [[R.alloc() for _ in range(2)] for _ in range(2)]
    vWa = [R.alloc() for _ in range(2)]; vWb = [R.alloc() for _ in range(2)]
    acc = [[R.alloc(4) for _ in range(7)] for _ in range(2)]
    FH_ = [[[R.alloc(4) for _ in range(2)] for _ in range(2)] for _ in range(2)]
    FW = [[[R.alloc(4) for _ in range(4)] for _ in range(2)] for _ in range(2)]
    z2p = [R.alloc(2) for _ in range(7)]
    st1 = [R.alloc(2) for _ in range(2)]; st2 = [R.alloc(2) for _ in range(2)]
    vtt = [R.alloc() for _ in range(2)]
    TILES = [(0, 0), (0, 1), (1, 0), (1, 1), (2, 0), (2, 1), (3, 0)]
    A(f"v_bfe_u32 {v(vq)}, v0, 4, 2")
    A(f"v_and_b32 {v(vi)}, 15, v0")
    A(f"v_mov_b32 {v(vC)}, {fhex(GELU_C2)}")
    A(f"v_mov_b32 {v(vC+1)}, {fhex(GELU_C1)}")
    A(f"s_and_b32 {s(sTH)}, {s(sW)}, 1")
    A(f"s_lshr_b32 {s(sFH)}, {s(sW)}, 1")
    A(f"s_lshl1_add_u32 {s(sT0)}, {s(sTH)}, {s(sFH)}")
    A(f"s_xor_b32 {s(sT1)}, {s(sT0)}, 1")
    A(f"v_and_b32 {v(vt[0])}, 7, {v(vi)}")
    for hf, sr in ((0, sT0), (1, sT1)):
        A(f"v_lshl_add_u32 {v(vtt[hf])}, {s(sr)}, 4, {v(vi)}")
    A(f"v_xor_b32 {v(vt[1])}, {v(vq)}, {v(vt[0])}")
    A(f"v_lshlrev_b32 {v(vt[1])}, 4, {v(vt[1])}")
    for hf in range(2):
        A(f"v_lshl_add_u32 {v(vH[hf][0])}, {v(vtt[hf])}, 7, {v(vt[1])}")
        A(f"v_xor_b32 {v(vH[hf][1])}, 64, {v(vH[hf][0])}")
    A(f"v_mul_u32_u24 {v(vt[1])}, {2*GS}, {v(vq)}")
    A(f"v_lshrrev_b32 {v(vt[2])}, 2, {v(vi)}")
    A(f"v_mul_u32_u24 {v(vt[2])}, 224, {v(vt[2])}")
    A(f"v_and_b32 {v(vt[3])}, 3, {v(vi)}")
    A(f"v_lshl_add_u32 {v(vt[1])}, {v(vt[3])}, 3, {v(vt[1])}")
    A(f"v_add3_u32 {v(vt[1])}, {v(vt[1])}, {v(vt[2])}, s[ZZ]".replace("s[ZZ]", s(sT2)) if False else f"v_add_u32 {v(vt[1])}, {v(vt[1])}, {v(vt[2])}")
    A(f"s_lshl_b32 {s(sT0)}, {s(sFH)}, 7")
    A(f"s_add_u32 {s(sT0)}, {s(sT0)}, {W_OFF}")
    A(f"v_add_u32 {v(vWa[0])}, {s(sT0)}, {v(vt[1])}")
    A(f"v_add_u32 {v(vWb[0])}, {W_OFF+96}, {v(vt[1])}")
    A(f"v_add_u32 {v(vWa[1])}, {3*SLOT}, {v(vWa[0])}")
    A(f"v_add_u32 {v(vWb[1])}, {3*SLOT}, {v(vWb[0])}")
    for hf in range(2):
        for r in range(2):
            A(f"v_mov_b32 {v(st1[hf]+r)}, 0"); A(f"v_mov_b32 {v(st2[hf]+r)}, 0")
    def reads(st, buf):
        kc = st & 7; slot = st % NS; sg = slot // 3; so = (slot % 3) * SLOT
        o = []
        for ks in range(2):
            for hf in range(2): o.append(f"ds_read_b128 {v(FH_[buf][ks][hf],4)}, {v(vH[hf][ks])} offset:{kc*8192}")
            for wf in range(4):
                for p in range(2):
                    base = vWa[sg] if wf < 3 else vWb[sg]
                    off = so + ks * 8 * GS + p * GS + (wf * 32 if wf < 3 else 0)
                    o.append(f"ds_read_b64_tr_b16 {v(FW[buf][ks][wf]+2*p,2)}, {v(base)} offset:{off}")
        return o
    def mfmas(st, buf):
        h = st >> 3
        o = []
        for ks in range(2):
            for tl, (wf, hf) in enumerate(TILES):
                c = "0" if (st & 7) == 0 and ks == 0 else v(acc[h][tl], 4)
                o.append(f"v_mfma_f32_16x16x32_bf16 {v(acc[h][tl],4)}, {v(FW[buf][ks][wf],4)}, {v(FH_[buf][ks][hf],4)}, {c}")
        return o
    BG = []
    BG.append(f"s_mov_b32 {s(sT2)}, 0xffff0000")
    for tl, (wf, hf) in enumerate(TILES):
        ac = acc[0][tl]
        BG += gelu_pk(ac, vt[0], vC)
        for h in range(2): BG.append(f"v_cvt_pk_bf16_f32 {v(z2p[tl]+h)}, {v(ac+2*h)}, {v(ac+2*h+1)}")
        for h in range(2):
            BG.append(f"v_lshlrev_b32 {v(vt[4]+2*h)}, 16, {v(z2p[tl]+h)}")
            BG.append(f"v_and_b32 {v(vt[4]+2*h+1)}, {s(sT2)}, {v(z2p[tl]+h)}")
        for h in range(2):
            BG.append(pk("add", st1[hf], v(st1[hf], 2), v(vt[4]+2*h, 2)))
            BG.append(pk("fma", st2[hf], v(vt[4]+2*h, 2), v(vt[4]+2*h, 2), v(st2[hf], 2)))
    for hf in range(2):
        BG.append(f"v_add_f32 {v(st1[hf])}, {v(st1[hf])}, {v(st1[hf]+1)}")
        BG.append(f"v_add_f32 {v(st2[hf])}, {v(st2[hf])}, {v(st2[hf]+1)}")
    for r in (st1[0], st2[0], st1[1], st2[1]):
        BG += [f"v_mov_b32 {v(vt[0])}, {v(r)}", f"v_permlane16_swap_b32 {v(r)}, {v(vt[0])}", f"v_add_f32 {v(r)}, {v(r)}, {v(vt[0])}",
               f"v_mov_b32 {v(vt[0])}, {v(r)}", f"v_permlane32_swap_b32 {v(r)}, {v(vt[0])}", f"v_add_f32 {v(r)}, {v(r)}, {v(vt[0])}"]
    BG += [f"v_cmp_eq_u32 vcc, 1, {v(vq)}",
           f"v_mov_b32 {v(vt[4])}, 0x7fc00000",
           f"v_cndmask_b32 {v(vt[2])}, {v(st1[0])}, {v(st1[1])}, vcc",
           f"v_cndmask_b32 {v(vt[3])}, {v(st2[0])}, {v(st2[1])}, vcc",
           f"v_cndmask_b32 {v(vt[0])}, {v(vtt[0])}, {v(vtt[1])}, vcc",
           f"v_cmp_eq_u32 vcc, -1, {v(vt[2])}",
           f"s_lshl_b32 {s(sT0)}, {s(sRB)}, 13",
           f"v_cndmask_b32 {v(vt[2])}, {v(vt[2])}, {v(vt[4])}, vcc",
           f"v_cmp_eq_u32 vcc, -1, {v(vt[3])}",
           f"s_lshl1_add_u32 {s(sT1)}, {s(sCC)}, {s(sFH)}",
           f"v_cndmask_b32 {v(vt[3])}, {v(vt[3])}, {v(vt[4])}, vcc",
           f"s_lshl3_add_u32 {s(sT0)}, {s(sT1)}, {s(sT0)}",
           f"s_add_u32 {s(sT0)}, {s(sT0)}, {WS_STAT}",
           f"v_lshl_add_u32 {v(vt[0])}, {v(vt[0])}, 7, {s(sT0)}",
           f"s_mov_b32 exec_lo, -1", f"s_mov_b32 exec_hi, 0",
           f"global_store_dwordx2 {v(vt[0])}, {v(vt[2],2)}, s[4:5] sc0 sc1",
           f"s_mov_b32 exec_hi, -1"]
    unit = " ;; ".join(BG[-3:]); BG = BG[:-4] + [BG[-4] if False else None]
    BG = [x for x in BG if x]
    BG_TAIL = [f"s_mov_b32 exec_hi, 0", f"global_store_dwordx2 {v(vt[0])}, {v(vt[2],2)}, s[4:5] sc0 sc1", f"s_mov_b32 exec_hi, -1"]
    bgq = list(BG)
    published = [False]
    def bg(st): return bgq if st >= 8 else None
    def hook(st):
        if st >= 8 and not bgq and not published[0]:
            for x in BG_TAIL: A(x)
            published[0] = True
            ST.stamp()
    A("s_waitcnt lgkmcnt(0)")
    consumer_full(A, NST, reads, mfmas, bg=bg, bper=4, hook=hook)
    for x in bgq: A(x)
    if not published[0]:
        for x in BG_TAIL: A(x)
    ST.stamp()
    A("s_barrier")
    vLa = [vH[0][0], vH[1][0]]; vL4 = vH[0][1]
    for hf in range(2):
        A(f"v_mul_u32_u24 {v(vLa[hf])}, 224, {v(vtt[hf])}")
        A(f"v_lshl_add_u32 {v(vLa[hf])}, {v(vq)}, 3, {v(vLa[hf])}")
    A(f"v_add_u32 {v(vL4)}, 96, {v(vLa[0])}")
    A(f"s_lshl_b32 {s(sT0)}, {s(sFH)}, 7")
    for hf in range(2): A(f"v_add_u32 {v(vLa[hf])}, {s(sT0)}, {v(vLa[hf])}")
    def tile_write(tl, src, base_off):
        wf, hf = TILES[tl]
        if wf < 3: A(f"ds_write_b64 {v(vLa[hf])}, {v(src,2)} offset:{base_off + wf*32}")
        else: A(f"ds_write_b64 {v(vL4)}, {v(src,2)} offset:{base_off}")
    Z1_L = 0; Z2_L = 16384
    pol = [FW[0][0][0], FW[0][0][1], FW[0][0][2], FW[0][0][3]]
    vrow = [vWa[0], vWa[1]]
    A(f"s_lshl_b32 {s(sT0)}, {s(sRB)}, 13")
    A(f"s_add_u32 {s(sT0)}, {s(sT0)}, {WS_STAT}")
    for hf in range(2):
        A(f"v_lshl_add_u32 {v(vrow[hf])}, {v(vtt[hf])}, 7, {s(sT0)}")
        A(f"v_lshl_add_u32 {v(vrow[hf])}, {v(vq)}, 5, {v(vrow[hf])}")
    def poll_loads():
        for hf in range(2):
            for u in range(2):
                A(f"global_load_dwordx4 {v(pol[hf*2+u],4)}, {v(vrow[hf])}, s[4:5] offset:{u*16} sc0 sc1")
    poll_loads()
    for tl in range(7):
        ac = acc[1][tl]
        for x in gelu_pk(ac, vt[0], vC): A(x)
        for h in range(2): A(f"v_cvt_pk_bf16_f32 {v(ac+h)}, {v(ac+2*h)}, {v(ac+2*h+1)}")
        tile_write(tl, ac, Z1_L)
    A(f"s_mov_b32 {s(sK)}, 0")
    A.label(f"{name}_poll")
    A("s_waitcnt vmcnt(0)")
    A(f"v_max3_u32 {v(vt[0])}, {v(pol[0])}, {v(pol[0]+1)}, {v(pol[0]+2)}")
    rest = [pol[0]+3] + [pol[b_]+r for b_ in range(1, 4) for r in range(4)]
    for k in range(0, len(rest) - 1, 2): A(f"v_max3_u32 {v(vt[0])}, {v(vt[0])}, {v(rest[k])}, {v(rest[k+1])}")
    A(f"v_max_u32 {v(vt[0])}, {v(vt[0])}, {v(rest[-1])}")
    A(f"v_cmp_eq_u32 vcc, -1, {v(vt[0])}")
    A(f"s_add_u32 {s(sK)}, {s(sK)}, 1")
    A(f"s_cmp_eq_u64 vcc, 0")
    A(f"s_cbranch_scc1 {name}_polled")
    A(f"s_cmp_ge_u32 {s(sK)}, 0x40000")
    A(f"s_cbranch_scc1 {name}_polled")
    poll_loads()
    A(f"s_branch {name}_poll")
    A.label(f"{name}_polled")
    mean = [vt[0], vt[1]]; rstd = [vt[2], vt[3]]
    for hf in range(2):
        p0, p1 = pol[hf*2], pol[hf*2+1]
        A(pk("add", p0, v(p0, 2), v(p0+2, 2)))
        A(pk("add", p1, v(p1, 2), v(p1+2, 2)))
        A(pk("add", p0, v(p0, 2), v(p1, 2)))
        A(f"v_mov_b32 {v(mean[hf])}, {v(p0)}")
        A(f"v_mov_b32 {v(rstd[hf])}, {v(p0+1)}")
    xor16_32_sum(A, mean + rstd, vt[6])
    for hf in range(2):
        A(f"v_mul_f32 {v(mean[hf])}, {fhex(1.0/896)}, {v(mean[hf])}")
        A(f"v_mul_f32 {v(rstd[hf])}, {fhex(1.0/896)}, {v(rstd[hf])}")
        A(f"v_fma_f32 {v(rstd[hf])}, -{v(mean[hf])}, {v(mean[hf])}, {v(rstd[hf])}")
        A(f"v_max_f32 {v(rstd[hf])}, 0, {v(rstd[hf])}")
        A(f"v_add_f32 {v(rstd[hf])}, 0x3727c5ac, {v(rstd[hf])}")
        A(f"v_rsq_f32 {v(rstd[hf])}, {v(rstd[hf])}")
        A(f"v_mul_f32 {v(mean[hf])}, {v(mean[hf])}, {v(rstd[hf])}")
    for hf in range(2):
        A(f"v_mov_b32 {v(st1[hf])}, {v(rstd[hf])}")
        A(f"v_sub_f32 {v(st1[hf]+1)}, 0, {v(mean[hf])}")
    A(f"s_mov_b32 {s(sT0)}, 0xffff0000")
    for tl, (wf, hf) in enumerate(TILES):
        z = z2p[tl]
        for h in range(2):
            A(f"v_lshlrev_b32 {v(vt[4])}, 16, {v(z+h)}")
            A(f"v_and_b32 {v(vt[5])}, {s(sT0)}, {v(z+h)}")
            A(pk("fma", vt[4], v(vt[4], 2), v(st1[hf], 2), v(st1[hf], 2), "op_sel:[0,0,1] op_sel_hi:[1,0,1]"))
            A(f"v_cvt_pk_bf16_f32 {v(z+h)}, {v(vt[4])}, {v(vt[5])}")
        tile_write(tl, z, Z2_L)
    buf = [FW[1][0][0], FW[1][0][1], FW[1][0][2], FW[1][0][3]]
    vz = FH_[0][0][0]
    vlr = FH_[0][0][1]
    A(f"v_and_b32 {v(vt[0])}, 63, v0")
    for j in range(4):
        A(f"v_add_u32 {v(vt[1])}, {64*j}, {v(vt[0])}")
        div14(A, vt[2], vt[3], vt[1], vt[6])
        A(f"v_mul_u32_u24 {v(vt[2])}, 1792, {v(vt[2])}")
        A(f"v_lshl_add_u32 {v(vz+j)}, {v(vt[3])}, 4, {v(vt[2])}")
    A(f"s_lshl2_add_u32 {s(sT0)}, {s(sRB)}, {s(sW)}")
    A(f"s_mul_i32 {s(sT0)}, {s(sT0)}, {16*1792}")
    A(f"s_mul_i32 {s(sT1)}, {s(sCC)}, 224")
    A(f"s_add_u32 {s(sT0)}, {s(sT0)}, {s(sT1)}")
    A(f"s_add_u32 {s(sT0)}, {s(sT0)}, {WS_Z1}")
    for j in range(4): A(f"v_add_u32 {v(vz+j)}, {s(sT0)}, {v(vz+j)}")
    A(f"s_mul_i32 {s(sT0)}, {s(sW)}, {16*224}")
    A(f"v_lshl_add_u32 {v(vlr)}, {v(vt[0])}, 4, {s(sT0)}")
    A(f"v_lshrrev_b32 {v(vt[5])}, 2, {v(vi)}")
    A(f"v_lshl_add_u32 {v(vt[5])}, {v(vq)}, 3, {v(vt[5])}")
    A(f"v_mul_u32_u24 {v(vt[5])}, 224, {v(vt[5])}")
    A(f"v_and_b32 {v(vt[6])}, 3, {v(vi)}")
    A(f"v_lshl_add_u32 {v(vt[5])}, {v(vt[6])}, 3, {v(vt[5])}")
    A(f"s_lshl_b32 {s(sT1)}, {s(sW)}, 5")
    A(f"v_add_u32 {v(vt[5])}, {s(sT1)}, {v(vt[5])}")
    A(f"v_lshlrev_b32 {v(vt[6])}, 12, {v(vi)}")
    A(f"v_lshl_add_u32 {v(vt[6])}, {v(vq)}, 4, {v(vt[6])}")
    A(f"s_mul_i32 {s(sT1)}, {s(sCC)}, {112*4096}")
    A(f"s_lshl_b32 {s(sT2)}, {s(sW)}, 16")
    A(f"s_add_u32 {s(sT1)}, {s(sT1)}, {s(sT2)}")
    A(f"s_lshl_b32 {s(sT2)}, {s(sRB)}, 7")
    A(f"s_add_u32 {s(sT1)}, {s(sT1)}, {s(sT2)}")
    A(f"s_add_u32 {s(sT1)}, {s(sT1)}, {WS_Z2T}")
    A(f"v_add_u32 {v(vt[6])}, {s(sT1)}, {v(vt[6])}")
    A("s_waitcnt lgkmcnt(0)")
    A("s_barrier")
    ST.stamp()
    for j in range(4): A(f"ds_read_b128 {v(buf[j],4)}, {v(vlr)} offset:{Z1_L + j*1024}")
    zb = [FW[0][0][0], FW[0][0][1], FW[0][0][2], FW[0][0][3]]
    for k2 in range(2):
        for u in range(2):
            for p in range(2):
                A(f"ds_read_b64_tr_b16 {v(zb[k2*2+u]+2*p,2)}, {v(vt[5])} offset:{Z2_L + k2*128 + (32*u+4*p)*224}")
    for j in range(3):
        A(f"s_waitcnt lgkmcnt({11-j})")
        A(f"global_store_dwordx4 {v(vz+j)}, {v(buf[j],4)}, s[4:5]")
    A("s_waitcnt lgkmcnt(8)")
    A("s_mov_b32 exec_hi, 0")
    A(f"global_store_dwordx4 {v(vz+3)}, {v(buf[3],4)}, s[4:5]")
    A("s_mov_b32 exec_hi, -1")
    A("s_waitcnt lgkmcnt(4)")
    for u in range(2): A(f"global_store_dwordx4 {v(vt[6])}, {v(zb[u],4)}, s[4:5] offset:{u*64}")
    A(f"s_cmp_eq_u32 {s(sW)}, 3")
    A(f"s_cbranch_scc1 {name}_cdone")
    A(f"v_add_u32 {v(vt[6])}, {4*16*4096}, {v(vt[6])}")
    A("s_waitcnt lgkmcnt(0)")
    for u in range(2): A(f"global_store_dwordx4 {v(vt[6])}, {v(zb[2+u],4)}, s[4:5] offset:{u*64}")
    A.label(f"{name}_cdone")
    if stamps:
        ST.stamp(); A("s_waitcnt vmcnt(0)"); ST.stamp(); ST.flush(4, vt[0])
    A("s_endpgm")
    nv = R.hi
    A.label(f"{name}_loader")
    R = RegAlloc(1)
    voW = [R.alloc() for _ in range(4)]; voH = [R.alloc() for _ in range(2)]
    vl = R.alloc(); t0 = R.alloc(); t1 = R.alloc(); t2 = R.alloc()
    sLw, sWk, sHk, sLW, sLH = 29, 30, 31, 32, 33
    A("s_mov_b32 s10, %d" % (512 * WROW)); A("s_mov_b32 s11, 0x20000")
    A("s_mov_b32 s6, %d" % (WS_H2 + S * D * 2)); A("s_mov_b32 s7, 0x20000")
    A(f"s_sub_u32 {s(sLw)}, {s(sW)}, 4")
    A(f"v_and_b32 {v(vl)}, 63, v0")
    div14(A, t0, t1, vl, t2)
    A(f"v_mul_u32_u24 {v(t0)}, {WROW}, {v(t0)}")
    A(f"v_lshl_add_u32 {v(t0)}, {v(t1)}, 4, {v(t0)}")
    A(f"s_mul_i32 {s(sT0)}, {s(sLw)}, {16*WROW}")
    A(f"v_add_u32 {v(voW[0])}, {s(sT0)}, {v(t0)}")
    for g in range(1, 4): A(f"v_add_u32 {v(voW[g])}, {g*(4*WROW - GS)}, {v(voW[0])}")
    A(f"v_lshrrev_b32 {v(t0)}, 3, {v(vl)}")
    A(f"v_and_b32 {v(t1)}, 7, {v(vl)}")
    A(f"v_xor_b32 {v(t1)}, {v(t1)}, {v(t0)}")
    A(f"v_lshlrev_b32 {v(t1)}, 4, {v(t1)}")
    A(f"v_lshl_add_u32 {v(t0)}, {v(t0)}, 10, {v(t1)}")
    A(f"s_lshl_b32 {s(sT0)}, {s(sLw)}, 14")
    A(f"v_add_u32 {v(voH[0])}, {s(sT0)}, {v(t0)}")
    A(f"v_add_u32 {v(voH[1])}, {8192-1024}, {v(voH[0])}")
    A(f"s_mul_i32 {s(sWk)}, {s(sCC)}, 224")
    A(f"s_lshl_b32 {s(sHk)}, {s(sRB)}, 16")
    A(f"s_add_u32 {s(sHk)}, {s(sHk)}, {WS_H2}")
    A(f"s_mul_i32 {s(sLW)}, {s(sLw)}, {4*GS}")
    A(f"s_lshl_b32 {s(sLH)}, {s(sLw)}, 11")
    A("s_waitcnt lgkmcnt(0)")
    def issue(st):
        half, kc = st >> 3, st & 7; slot = st % NS
        A(f"s_add_u32 m0, {s(sLW)}, {W_OFF + slot*SLOT}")
        A(f"s_add_u32 {s(sT0)}, {s(sWk)}, {kc*64*WROW + (1792 if half == 0 else 0)}")
        A("s_mov_b32 exec_hi, 0x00ffffff")
        for g in range(4):
            A(f"buffer_load_dwordx4 {v(voW[g])}, s[8:11], {s(sT0)} offen offset:{g*GS} lds")
        if half == 0:
            A(f"s_add_u32 m0, {s(sLH)}, {kc*8192}")
            A(f"s_add_u32 {s(sT0)}, {s(sHk)}, {kc*128}")
            A("s_mov_b32 exec_hi, -1")
            for j in range(2):
                A(f"buffer_load_dwordx4 {v(voH[j])}, s[4:7], {s(sT0)} offen offset:{j*1024} lds")
    loader_pipeline(A, NST, NS, issue, lambda st: 6 if st < 8 else 4)
    A("s_endpgm")
    A.label(f"{name}_end")
    A("s_endpgm")
    return dict(name=name, grid=NWG, block=512, lds=LDS, vgpr=max(nv, R.hi), sgpr=96 if stamps else 40)

def gen_kg(A, name="kg_kernel", NS=6, stamps=False, prefetch=True, noread=False, nomfma=False):
    NWG = 256; TF = 112; TT = 64; NST = 32
    A_B = 14 * 1024; B_OFF = 15 * 1024; STAGE = 24 * 1024
    RING = NS * STAGE
    Z_OFF = RING
    LDS = RING + 64 * 224
    last_slot = (NST - 1) % NS
    X_OFF = ((last_slot + 1) % NS) * STAGE
    assert X_OFF + 4 * 7168 <= RING and not (X_OFF <= last_slot * STAGE < X_OFF + 4 * 7168)
    A.barrier_state(); A.raw(kernel_header(name))
    ST = Stamps(A, on=stamps, kidx=3)
    sW, sFB, sTB, sT0, sT1, sT2, sSlot, sI = 20, 21, 22, 23, 24, 25, 26, 27
    A(f"s_cmp_ge_u32 s2, {NWG}")
    A(f"s_cbranch_scc1 {name}_end")
    ST.stamp()
    load_ptr(A, 4, "ws"); load_ptr(A, 8, "wsp"); load_ptr(A, 12, "bsp")
    if prefetch: load_ptr(A, 16, "wout")
    A(f"v_readfirstlane_b32 {s(sW)}, v0")
    A(f"s_and_b32 {s(sFB)}, s2, 1")
    A(f"s_bfe_u32 {s(sT0)}, s2, 0x20003")
    A(f"s_lshl2_add_u32 {s(sFB)}, {s(sFB)}, {s(sT0)}")
    A(f"s_bfe_u32 {s(sTB)}, s2, 0x20001")
    A(f"s_lshr_b32 {s(sT0)}, s2, 5")
    A(f"s_lshl3_add_u32 {s(sTB)}, {s(sTB)}, {s(sT0)}")
    A(f"s_lshr_b32 {s(sW)}, {s(sW)}, 6")
    A(f"s_cmp_ge_u32 {s(sW)}, 4")
    A(f"s_cbranch_scc1 {name}_loader")
    R = RegAlloc(1)
    vq = R.alloc(); vi = R.alloc(); vA = R.alloc(); vB = [R.alloc() for _ in range(2)]
    cA = R.alloc(); cB = [R.alloc() for _ in range(2)]
    vtb = R.alloc(8, 4); vt = [vtb + k for k in range(8)]
    acc = [[R.alloc(4) for _ in range(2)] for _ in range(7)]
    FA = [[R.alloc(4) for _ in range(7)] for _ in range(2)]
    FB = [[R.alloc(4) for _ in range(2)] for _ in range(2)]
    vb = R.alloc(); vtt = R.alloc()
    A(f"v_bfe_u32 {v(vq)}, v0, 4, 2")
    A(f"v_and_b32 {v(vi)}, 15, v0")
    A(f"v_lshl_add_u32 {v(vtt)}, {s(sW)}, 4, {v(vi)}")
    A(f"v_lshl_add_u32 {v(vt[0])}, {s(sTB)}, 6, {v(vtt)}")
    A(f"v_lshlrev_b32 {v(vt[0])}, 1, {v(vt[0])}")
    A(f"s_and_b32 {s(sT0)}, {s(sW)}, 1")
    A(f"s_lshl_b32 {s(sT0)}, {s(sT0)}, 2")
    A(f"v_add_u32 {v(vt[1])}, {s(sT0)}, {v(vq)}")
    A(f"v_and_b32 {v(vt[2])}, 7, {v(vi)}")
    A(f"v_xor_b32 {v(vt[1])}, {v(vt[1])}, {v(vt[2])}")
    A(f"v_lshlrev_b32 {v(vt[1])}, 4, {v(vt[1])}")
    A(f"v_lshl_add_u32 {v(vA)}, {v(vi)}, 7, {v(vt[1])}")
    A(f"v_lshl_add_u32 {v(vB[0])}, {v(vtt)}, 7, {v(vt[1])}")
    A(f"v_add_u32 {v(vB[0])}, {B_OFF}, {v(vB[0])}")
    A(f"v_xor_b32 {v(vB[1])}, 2048, {v(vB[0])}") if B_OFF % 4096 == 0 else None
    if B_OFF % 4096:
        A(f"v_xor_b32 {v(vt[3])}, 16, {v(vtt)}")
        A(f"v_lshl_add_u32 {v(vB[1])}, {v(vt[3])}, 7, {v(vt[1])}")
        A(f"v_add_u32 {v(vB[1])}, {B_OFF}, {v(vB[1])}")
    A("s_waitcnt lgkmcnt(0)")
    A(f"global_load_ushort {v(vb)}, {v(vt[0])}, s[12:13]")
    A(f"s_mov_b32 {s(sSlot)}, 0")
    A(f"s_mov_b32 {s(sI)}, 0")
    def rds(buf, a_, b_):
        if noread: return []
        return [f"ds_read_b128 {v(FA[buf][fa],4)}, {v(a_)} offset:{fa*2048}" for fa in range(7)] + \
               [f"ds_read_b128 {v(FB[buf][nb],4)}, {v(b_[nb])}" for nb in range(2)]
    def mms(buf, first=False):
        o = []
        if nomfma: return o
        for fa in range(7):
            for nb in range(2):
                c = "0" if first else v(acc[fa][nb], 4)
                o.append(f"v_mfma_f32_16x16x32_bf16 {v(acc[fa][nb],4)}, {v(FA[buf][fa],4)}, {v(FB[buf][nb],4)}, {c}")
        return o
    def adv():
        A(f"s_add_u32 {s(sSlot)}, {s(sSlot)}, {STAGE}")
        A(f"s_cmp_ge_u32 {s(sSlot)}, {RING}")
        A(f"s_cselect_b32 {s(sSlot)}, 0, {s(sSlot)}")
        A(f"v_add_u32 {v(cA)}, {s(sSlot)}, {v(vA)}")
        for nb in range(2): A(f"v_add_u32 {v(cB[nb])}, {s(sSlot)}, {v(vB[nb])}")
    A("s_barrier")
    ST.stamp()
    for r in rds(0, vA, vB): A(r)
    adv()
    A("s_waitcnt lgkmcnt(0)")
    A("s_barrier")
    for x in interleave2(mms(0, True), rds(1, cA, cB)): A(x)
    loop = f"{name}_cloop"
    A.label(loop)
    for buf in (1, 0):
        adv()
        A("s_waitcnt lgkmcnt(0)")
        A("s_barrier")
        for x in interleave2(mms(buf), rds(buf ^ 1, cA, cB)): A(x)
    A(f"s_add_u32 {s(sI)}, {s(sI)}, 1")
    A(f"s_cmp_lt_u32 {s(sI)}, 15")
    A(f"s_cbranch_scc1 {loop}")
    A("s_waitcnt lgkmcnt(0)")
    for x in mms(1): A(x)
    ST.stamp()
    A(f"v_and_b32 {v(vt[0])}, 63, v0")
    A(f"s_mul_i32 {s(sT0)}, {s(sW)}, 7168")
    A(f"s_add_u32 {s(sT0)}, {s(sT0)}, {X_OFF}")
    A(f"v_lshl_add_u32 {v(vt[1])}, {v(vt[0])}, 4, {s(sT0)}")
    A(f"s_xor_b32 {s(sT1)}, {s(sW)}, 1")
    A(f"s_mul_i32 {s(sT1)}, {s(sT1)}, 7168")
    A(f"s_add_u32 {s(sT1)}, {s(sT1)}, {X_OFF}")
    A(f"v_lshl_add_u32 {v(vt[2])}, {v(vt[0])}, 4, {s(sT1)}")
    for fa in range(7): A(f"ds_write_b128 {v(vt[1])}, {v(acc[fa][1],4)} offset:{fa*1024}")
    A(f"v_mul_u32_u24 {v(vt[3])}, 224, {v(vtt)}")
    A(f"v_lshl_add_u32 {v(vt[3])}, {v(vq)}, 3, {v(vt[3])}")
    A(f"v_add_u32 {v(vt[3])}, {Z_OFF}, {v(vt[3])}")
    vz = FB[0][0]
    for j in range(4):
        A(f"v_add_u32 {v(vt[4])}, {64*j}, {v(vt[0])}")
        div14(A, vt[5], vt[6], vt[4], vt[7])
        A(f"v_mul_u32_u24 {v(vt[5])}, 1792, {v(vt[5])}")
        A(f"v_lshl_add_u32 {v(vz+j)}, {v(vt[6])}, 4, {v(vt[5])}")
    A(f"s_lshl2_add_u32 {s(sT0)}, {s(sTB)}, {s(sW)}")
    A(f"s_mul_i32 {s(sT0)}, {s(sT0)}, {16*1792}")
    A(f"s_mul_i32 {s(sT1)}, {s(sFB)}, 224")
    A(f"s_add_u32 {s(sT0)}, {s(sT0)}, {s(sT1)}")
    A(f"s_add_u32 {s(sT0)}, {s(sT0)}, {WS_P0}")
    for j in range(4): A(f"v_add_u32 {v(vz+j)}, {s(sT0)}, {v(vz+j)}")
    A(f"s_mul_i32 {s(sT0)}, {s(sW)}, {16*224}")
    A(f"s_add_u32 {s(sT0)}, {s(sT0)}, {Z_OFF}")
    A(f"v_lshl_add_u32 {v(vt[4])}, {v(vt[0])}, 4, {s(sT0)}")
    A("s_waitcnt vmcnt(0) lgkmcnt(0)")
    A("s_barrier")
    for fa in range(7): A(f"ds_read_b128 {v(FA[0][fa],4)}, {v(vt[2])} offset:{fa*1024}")
    zr = [FA[1][fa] for fa in range(7)]
    for fa in range(7): A(f"ds_read_b64 {v(zr[fa],2)}, {v(vt[3])} offset:{fa*32}")
    A(f"v_lshlrev_b32 {v(vb)}, 16, {v(vb)}")
    A(f"v_mov_b32 {v(FB[1][0])}, {v(vb)}")
    A(f"v_mov_b32 {v(FB[1][0]+1)}, {v(vb)}")
    A(f"s_mov_b32 {s(sT0)}, 0xffff0000")
    for fa in range(7):
        ac = acc[fa][0]; pr = FA[0][fa]; z = zr[fa]
        A(f"s_waitcnt lgkmcnt({min(15, 13 - fa)})")
        for h in (0, 2): A(pk("add", ac + h, v(ac + h, 2), v(pr + h, 2)))
        for h in (0, 2): A(pk("add", ac + h, v(ac + h, 2), v(FB[1][0], 2)))
        A(f"s_waitcnt lgkmcnt({6 - fa})")
        for h in range(2):
            A(f"v_lshlrev_b32 {v(z+2)}, 16, {v(z+h)}")
            A(f"v_and_b32 {v(z+3)}, {s(sT0)}, {v(z+h)}")
            A(pk("mul", ac + 2*h, v(ac + 2*h, 2), v(z + 2, 2)))
            A(f"v_cvt_pk_bf16_f32 {v(pr+h)}, {v(ac+2*h)}, {v(ac+2*h+1)}")
    for fa in range(7): A(f"ds_write_b64 {v(vt[3])}, {v(FA[0][fa],2)} offset:{fa*32}")
    A("s_waitcnt lgkmcnt(0)")
    ob = [FA[1][j] for j in range(4)]
    for j in range(4): A(f"ds_read_b128 {v(ob[j],4)}, {v(vt[4])} offset:{j*1024}")
    for j in range(3):
        A(f"s_waitcnt lgkmcnt({3-j})")
        A(f"global_store_dwordx4 {v(vz+j)}, {v(ob[j],4)}, s[4:5]")
    A("s_waitcnt lgkmcnt(0)")
    A("s_mov_b32 exec_hi, 0")
    A(f"global_store_dwordx4 {v(vz+3)}, {v(ob[3],4)}, s[4:5]")
    if stamps:
        A("s_mov_b32 exec_hi, -1")
        ST.stamp(); A("s_waitcnt vmcnt(0)"); ST.stamp(); ST.flush(4, vt[0])
    A("s_endpgm")
    nv = R.hi
    A.label(f"{name}_loader")
    R = RegAlloc(1)
    vo = [R.alloc() for _ in range(6)]; vz1 = [R.alloc() for _ in range(4)]
    vl = R.alloc(); t0 = R.alloc(); t1 = R.alloc(); t2 = R.alloc(); t3 = R.alloc()
    sLw, sK1, sK2, sL1, sL2 = 28, 29, 30, 31, 32
    SR1, SR2 = 36, 40
    A(f"s_sub_u32 {s(sLw)}, {s(sW)}, 4")
    A(f"v_and_b32 {v(vl)}, 63, v0")
    A(f"v_lshrrev_b32 {v(t0)}, 3, {v(vl)}")
    A(f"v_and_b32 {v(t1)}, 7, {v(vl)}")
    A(f"v_xor_b32 {v(t1)}, {v(t1)}, {v(t0)}")
    A(f"v_lshlrev_b32 {v(t1)}, 4, {v(t1)}")
    A(f"v_lshl_add_u32 {v(t0)}, {v(t0)}, 12, {v(t1)}")
    A(f"s_lshl_b32 {s(sT0)}, {s(sLw)}, 3")
    A(f"s_mov_b32 {s(sT1)}, 0x030c0600")
    A(f"s_lshr_b32 {s(sT1)}, {s(sT1)}, {s(sT0)}")
    A(f"s_and_b32 {s(sT1)}, {s(sT1)}, 0xff")
    A(f"s_mov_b32 {s(sT2)}, 0x06000903")
    A(f"s_lshr_b32 {s(sT2)}, {s(sT2)}, {s(sT0)}")
    A(f"s_and_b32 {s(sT2)}, {s(sT2)}, 0xff")
    STEP = 8 * 4096 - 1024
    A(f"s_lshl_b32 {s(sT0)}, {s(sT1)}, 15")
    A(f"v_add_u32 {v(vo[0])}, {s(sT0)}, {v(t0)}")
    A(f"s_lshl_b32 {s(sT0)}, {s(sT2)}, 15")
    A(f"v_add_u32 {v(vo[3])}, {s(sT0)}, {v(t0)}")
    for k in (1, 2):
        A(f"v_add_u32 {v(vo[k])}, {k*STEP}, {v(vo[0])}")
        A(f"v_add_u32 {v(vo[3+k])}, {k*STEP}, {v(vo[3])}")
    A(f"s_lshl_b32 {s(sL1)}, {s(sT1)}, 10")
    A(f"s_lshl_b32 {s(sL2)}, {s(sT2)}, 10")
    A(f"s_cmp_eq_u32 {s(sLw)}, 3")
    A(f"s_cselect_b32 {s(sT0)}, {B_OFF}, 0")
    A(f"s_add_u32 {s(sL1)}, {s(sL1)}, {s(sT0)}")
    A(f"s_cmp_ge_u32 {s(sLw)}, 2")
    A(f"s_cselect_b32 {s(sT0)}, {B_OFF}, 0")
    A(f"s_add_u32 {s(sL2)}, {s(sL2)}, {s(sT0)}")
    for j in range(4):
        A(f"v_add_u32 {v(t1)}, {64*j}, {v(vl)}")
        div14(A, t2, t3, t1, vz1[j])
        A(f"v_mul_u32_u24 {v(t2)}, 1792, {v(t2)}")
        A(f"v_lshl_add_u32 {v(vz1[j])}, {v(t3)}, 4, {v(t2)}")
        if j: A(f"v_subrev_u32 {v(vz1[j])}, {j*1024}, {v(vz1[j])}")
    A("s_waitcnt lgkmcnt(0)")
    A(f"s_mul_i32 {s(sT0)}, {s(sFB)}, {TF*4096}")
    A(f"s_add_u32 {s(sT0)}, {s(sT0)}, {WS_Z2T}")
    A(f"s_add_u32 s44, s4, {s(sT0)}")
    A(f"s_addc_u32 s45, s5, 0")
    A(f"s_lshl_b32 {s(sT0)}, {s(sTB)}, 18")
    A(f"s_add_u32 s46, s8, {s(sT0)}")
    A(f"s_addc_u32 s47, s9, 0")
    A(f"s_mov_b32 s48, {TT*4096}"); A(f"s_mov_b32 s49, {TF*4096}")
    A(f"s_cmp_eq_u32 {s(sLw)}, 3")
    A(f"s_cselect_b32 {s(SR1)}, s46, s44")
    A(f"s_cselect_b32 {s(SR1+1)}, s47, s45")
    A(f"s_cselect_b32 {s(SR1+2)}, s48, s49")
    A(f"s_mov_b32 {s(SR1+3)}, 0x20000")
    A(f"s_cmp_ge_u32 {s(sLw)}, 2")
    A(f"s_cselect_b32 {s(SR2)}, s46, s44")
    A(f"s_cselect_b32 {s(SR2+1)}, s47, s45")
    A(f"s_cselect_b32 {s(SR2+2)}, s48, s49")
    A(f"s_mov_b32 {s(SR2+3)}, 0x20000")
    A(f"s_mov_b32 {s(sK1)}, 0")
    A(f"s_mov_b32 {s(sSlot)}, 0")
    def issue():
        A(f"s_add_u32 m0, {s(sSlot)}, {s(sL1)}")
        A(f"s_add_u32 {s(sT0)}, {s(sSlot)}, {s(sL2)}")
        for k in range(3): A(f"buffer_load_dwordx4 {v(vo[k])}, {s(SR1,4)}, {s(sK1)} offen offset:{k*1024} lds")
        A(f"s_mov_b32 m0, {s(sT0)}")
        A(f"s_add_u32 {s(sSlot)}, {s(sSlot)}, {STAGE}")
        for k in range(3): A(f"buffer_load_dwordx4 {v(vo[3+k])}, {s(SR2,4)}, {s(sK1)} offen offset:{k*1024} lds")
        A(f"s_add_u32 {s(sK1)}, {s(sK1)}, 128")
        A(f"s_cmp_ge_u32 {s(sSlot)}, {RING}")
        A(f"s_cselect_b32 {s(sSlot)}, 0, {s(sSlot)}")
    n = 6
    for st in range(NS): issue()
    npf = 0
    if prefetch:
        A(f"s_lshr_b32 {s(sT0)}, s2, 3")
        A(f"s_lshl2_add_u32 {s(sT0)}, {s(sT0)}, {s(sLw)}")
        A(f"v_lshl_add_u32 {v(t1)}, {s(sT0)}, 6, {v(vl)}")
        A(f"v_lshrrev_b32 {v(t2)}, 2, {v(t1)}")
        A(f"v_and_b32 {v(t1)}, 3, {v(t1)}")
        A(f"v_lshlrev_b32 {v(t2)}, 10, {v(t2)}")
        A(f"v_lshl_add_u32 {v(t2)}, {v(t1)}, 7, {v(t2)}")
        A(f"s_and_b32 {s(sT0)}, s2, 1")
        A(f"s_lshl_b32 {s(sT0)}, {s(sT0)}, 9")
        A(f"s_mov_b32 s18, {FH*D*2}"); A("s_mov_b32 s19, 0x20000")
        A(f"buffer_load_dword {v(t3)}, {v(t2)}, s[16:19], {s(sT0)} offen")
        npf = 1
    A(f"s_waitcnt vmcnt({(NS-1)*n + npf})")
    A("s_barrier")
    nsteady = NST - NS
    A(f"s_mov_b32 {s(sI)}, 0")
    lp = f"{name}_lloop"
    A.label(lp)
    A(f"s_waitcnt vmcnt({(NS-2)*n})")
    A("s_barrier")
    issue()
    A(f"s_add_u32 {s(sI)}, {s(sI)}, 1")
    A(f"s_cmp_lt_u32 {s(sI)}, {nsteady}")
    A(f"s_cbranch_scc1 {lp}")
    A(f"s_lshl2_add_u32 {s(sT0)}, {s(sTB)}, {s(sLw)}")
    A(f"s_mul_i32 {s(sT0)}, {s(sT0)}, {16*1792}")
    A(f"s_mul_i32 {s(sT1)}, {s(sFB)}, 224")
    A(f"s_add_u32 {s(sT0)}, {s(sT0)}, {s(sT1)}")
    A(f"s_add_u32 {s(sT0)}, {s(sT0)}, {WS_Z1}")
    A(f"s_mov_b32 s6, {WS_Z1 + S*FH*2}"); A("s_mov_b32 s7, 0x20000")
    A(f"s_mul_i32 {s(sT1)}, {s(sLw)}, {16*224}")
    A(f"s_add_u32 m0, {s(sT1)}, {Z_OFF}")
    for j in range(3): A(f"buffer_load_dwordx4 {v(vz1[j])}, s[4:7], {s(sT0)} offen offset:{j*1024} lds")
    A("s_mov_b32 exec_hi, 0")
    A(f"buffer_load_dwordx4 {v(vz1[3])}, s[4:7], {s(sT0)} offen offset:3072 lds")
    A("s_mov_b32 exec_hi, -1")
    for j in range(NST - NS + 1, NST):
        A(f"s_waitcnt vmcnt({min(NS-2, NST-1-j)*n + 4})")
        A("s_barrier")
    A("s_waitcnt vmcnt(0)")
    A("s_barrier")
    A("s_endpgm")
    A.label(f"{name}_end")
    A("s_endpgm")
    return dict(name=name, grid=NWG, block=512, lds=LDS, vgpr=max(nv, R.hi), sgpr=96 if stamps else 56)

def gen_ko(A, name="ko_kernel", NS=4, stamps=False):
    NWG = 256; NST = 7
    W_B = 16384; P_B = 16384; SLOT = W_B + P_B
    X_OFF = NS * SLOT
    LDS = X_OFF + 8192
    last_slot = (NST - 1) % NS
    E_OFF = ((last_slot + 1) % NS) * SLOT
    A.barrier_state(); A.raw(kernel_header(name))
    ST = Stamps(A, on=stamps, kidx=4)
    sW, sDB, sTB, sT0, sT1, sT2 = 20, 21, 22, 23, 24, 25
    A(f"s_cmp_ge_u32 s2, {NWG}")
    A(f"s_cbranch_scc1 {name}_end")
    ST.stamp()
    load_ptr(A, 4, "ws"); load_ptr(A, 8, "wout"); load_ptr(A, 12, "out")
    A(f"v_readfirstlane_b32 {s(sW)}, v0")
    A(f"s_and_b32 {s(sDB)}, s2, 1")
    A(f"s_bfe_u32 {s(sT0)}, s2, 0x20003")
    A(f"s_lshl2_add_u32 {s(sDB)}, {s(sDB)}, {s(sT0)}")
    A(f"s_bfe_u32 {s(sTB)}, s2, 0x20001")
    A(f"s_lshr_b32 {s(sT0)}, s2, 5")
    A(f"s_lshl3_add_u32 {s(sTB)}, {s(sTB)}, {s(sT0)}")
    A(f"s_lshr_b32 {s(sW)}, {s(sW)}, 6")
    A(f"s_cmp_ge_u32 {s(sW)}, 4")
    A(f"s_cbranch_scc1 {name}_loader")
    R = RegAlloc(1)
    vq = R.alloc(); vi = R.alloc(); vtt = R.alloc()
    vtb = R.alloc(8, 4); vt = [vtb + k for k in range(8)]
    NG = 2
    vW = [[R.alloc() for _ in range(4)] for _ in range(NG)]
    vP = [[[R.alloc() for _ in range(2)] for _ in range(2)] for _ in range(NG)]
    acc = [[R.alloc(4) for _ in range(2)] for _ in range(4)]
    FW = [[[R.alloc(4) for _ in range(4)] for _ in range(2)] for _ in range(2)]
    FP = [[[R.alloc(4) for _ in range(2)] for _ in range(2)] for _ in range(2)]
    gb = [R.alloc(4) for _ in range(4)]
    A(f"v_bfe_u32 {v(vq)}, v0, 4, 2")
    A(f"v_and_b32 {v(vi)}, 15, v0")
    A(f"v_lshl_add_u32 {v(vtt)}, {s(sW)}, 4, {v(vi)}")
    A(f"s_and_b32 {s(sT2)}, {s(sW)}, 1")
    A(f"v_lshrrev_b32 {v(vt[0])}, 2, {v(vi)}")
    A(f"v_lshl_add_u32 {v(vt[0])}, {v(vq)}, 3, {v(vt[0])}")
    A(f"v_lshlrev_b32 {v(vt[0])}, 7, {v(vt[0])}")
    A(f"v_and_b32 {v(vt[1])}, 1, {v(vi)}")
    A(f"v_lshl_add_u32 {v(vt[0])}, {v(vt[1])}, 3, {v(vt[0])}")
    A(f"s_lshl_b32 {s(sT0)}, {s(sT2)}, 13")
    A(f"v_add_u32 {v(vt[0])}, {s(sT0)}, {v(vt[0])}")
    A(f"v_bfe_u32 {v(vt[1])}, {v(vi)}, 3, 1")
    A(f"v_and_b32 {v(vt[2])}, 1, {v(vq)}")
    A(f"v_lshl_or_b32 {v(vt[1])}, {v(vt[2])}, 1, {v(vt[1])}")
    A(f"v_lshlrev_b32 {v(vt[1])}, 1, {v(vt[1])}")
    A(f"v_bfe_u32 {v(vt[2])}, {v(vi)}, 1, 1")
    A(f"v_xor_b32 {v(vt[1])}, {v(vt[1])}, {v(vt[2])}")
    for dt in range(4):
        A(f"v_xor_b32 {v(vt[3])}, {2*dt}, {v(vt[1])}")
        A(f"v_lshl_add_u32 {v(vW[0][dt])}, {v(vt[3])}, 4, {v(vt[0])}")
    A(f"v_and_b32 {v(vt[0])}, 7, {v(vi)}")
    A(f"v_xor_b32 {v(vt[1])}, {v(vq)}, {v(vt[0])}")
    A(f"v_lshlrev_b32 {v(vt[1])}, 4, {v(vt[1])}")
    A(f"s_add_u32 {s(sT0)}, {s(sT0)}, {W_B}")
    A(f"v_add_u32 {v(vt[1])}, {s(sT0)}, {v(vt[1])}")
    A(f"v_lshl_add_u32 {v(vP[0][0][0])}, {v(vtt)}, 7, {v(vt[1])}")
    A(f"v_xor_b32 {v(vP[0][1][0])}, 2048, {v(vP[0][0][0])}")
    for tl in range(2): A(f"v_xor_b32 {v(vP[0][tl][1])}, 64, {v(vP[0][tl][0])}")
    for dt in range(4): A(f"v_add_u32 {v(vW[1][dt])}, {2*SLOT}, {v(vW[0][dt])}")
    for tl in range(2):
        for ks in range(2): A(f"v_add_u32 {v(vP[1][tl][ks])}, {2*SLOT}, {v(vP[0][tl][ks])}")
    A(f"s_lshl_b32 {s(sT0)}, {s(sDB)}, 8")
    A(f"s_add_u32 {s(sT0)}, {s(sT0)}, {WS_MOD + 2560*4}")
    A(f"v_lshl_add_u32 {v(vt[0])}, {v(vq)}, 4, {s(sT0)}")
    A("s_waitcnt lgkmcnt(0)")
    for dt in range(4): A(f"global_load_dwordx4 {v(gb[dt],4)}, {v(vt[0])}, s[4:5] offset:{dt*64}")
    def reads(st, buf):
        slot = st % NS; g = slot // 2; so = (slot % 2) * SLOT
        o = []
        for ks in range(2):
            for tl in range(2): o.append(f"ds_read_b128 {v(FP[buf][ks][tl],4)}, {v(vP[g][tl][ks])} offset:{so}")
            for dt in range(4):
                for p in range(2):
                    o.append(f"ds_read_b64_tr_b16 {v(FW[buf][ks][dt]+2*p,2)}, {v(vW[g][dt])} offset:{so + ks*4096 + p*512}")
        return o
    def mfmas(st, buf):
        o = []
        for ks in range(2):
            for dt in range(4):
                for tl in range(2):
                    c = "0" if st == 0 and ks == 0 else v(acc[dt][tl], 4)
                    o.append(f"v_mfma_f32_16x16x32_bf16 {v(acc[dt][tl],4)}, {v(FW[buf][ks][dt],4)}, {v(FP[buf][ks][tl],4)}, {c}")
        return o
    consumer_full(A, NST, reads, mfmas)
    ST.stamp()
    A(f"v_and_b32 {v(vt[0])}, 63, v0")
    A(f"s_lshl_b32 {s(sT0)}, {s(sW)}, 12")
    A(f"s_add_u32 {s(sT0)}, {s(sT0)}, {E_OFF}")
    A(f"v_lshl_add_u32 {v(vt[1])}, {v(vt[0])}, 4, {s(sT0)}")
    A(f"v_xor_b32 {v(vt[2])}, 4096, {v(vt[1])}")
    for dt in range(4): A(f"ds_write_b128 {v(vt[1])}, {v(acc[dt][1],4)} offset:{dt*1024}")
    va = [vt[4], vt[5], vt[6], vt[7]]
    A(f"v_and_b32 {v(vt[3])}, 7, {v(vi)}")
    A(f"v_lshrrev_b32 {v(vW[0][0])}, 1, {v(vq)}")
    A(f"v_xor_b32 {v(vt[3])}, {v(vt[3])}, {v(vW[0][0])}")
    A(f"v_and_b32 {v(vW[0][0])}, 1, {v(vq)}")
    A(f"v_lshlrev_b32 {v(vW[0][0])}, 3, {v(vW[0][0])}")
    A(f"v_lshl_add_u32 {v(vW[0][0])}, {v(vtt)}, 7, {v(vW[0][0])}")
    A(f"v_add_u32 {v(vW[0][0])}, {X_OFF}, {v(vW[0][0])}")
    for dt in range(4):
        A(f"v_xor_b32 {v(vW[0][1])}, {2*dt}, {v(vt[3])}")
        A(f"v_lshl_add_u32 {v(va[dt])}, {v(vW[0][1])}, 4, {v(vW[0][0])}")
    vrb = vW[1][0]; vgo = vW[1][1]
    A(f"v_lshrrev_b32 {v(vW[1][2])}, 3, {v(vt[0])}")
    A(f"v_and_b32 {v(vW[1][3])}, 7, {v(vt[0])}")
    A(f"v_xor_b32 {v(vrb)}, {v(vW[1][2])}, {v(vW[1][3])}")
    A(f"v_lshlrev_b32 {v(vrb)}, 4, {v(vrb)}")
    A(f"v_lshl_add_u32 {v(vrb)}, {v(vW[1][2])}, 7, {v(vrb)}")
    A(f"s_lshl_b32 {s(sT0)}, {s(sW)}, 11")
    A(f"s_add_u32 {s(sT0)}, {s(sT0)}, {X_OFF}")
    A(f"v_add_u32 {v(vrb)}, {s(sT0)}, {v(vrb)}")
    A(f"v_lshlrev_b32 {v(vgo)}, 10, {v(vW[1][2])}")
    A(f"v_lshl_add_u32 {v(vgo)}, {v(vW[1][3])}, 4, {v(vgo)}")
    A(f"s_lshl2_add_u32 {s(sT0)}, {s(sTB)}, {s(sW)}")
    A(f"s_lshl_b32 {s(sT0)}, {s(sT0)}, 14")
    A(f"s_lshl_b32 {s(sT1)}, {s(sDB)}, 7")
    A(f"s_add_u32 {s(sT0)}, {s(sT0)}, {s(sT1)}")
    A(f"v_add_u32 {v(vgo)}, {s(sT0)}, {v(vgo)}")
    A("s_waitcnt vmcnt(0) lgkmcnt(0)")
    A("s_barrier")
    for dt in range(4): A(f"ds_read_b128 {v(FW[0][0][dt],4)}, {v(vt[2])} offset:{dt*1024}")
    xa = [FW[0][1][dt] for dt in range(4)]
    for dt in range(4): A(f"ds_read_b64 {v(xa[dt],2)}, {v(va[dt])}")
    A(f"s_mov_b32 {s(sT0)}, 0xffff0000")
    for dt in range(4):
        ac = acc[dt][0]; pr = FW[0][0][dt]; x = xa[dt]
        A(f"s_waitcnt lgkmcnt({7-dt})")
        for h in (0, 2): A(pk("add", ac + h, v(ac + h, 2), v(pr + h, 2)))
        A(f"s_waitcnt lgkmcnt({3-dt})")
        for h in range(2):
            A(f"v_lshlrev_b32 {v(x+2)}, 16, {v(x+h)}")
            A(f"v_and_b32 {v(x+3)}, {s(sT0)}, {v(x+h)}")
            A(pk("fma", pr + 2*0, v(ac + 2*h, 2), v(gb[dt] + 2*h, 2), v(x + 2, 2)))
            A(f"v_cvt_pk_bf16_f32 {v(ac+h)}, {v(pr)}, {v(pr+1)}") if h == 0 else A(f"v_cvt_pk_bf16_f32 {v(ac+1)}, {v(pr)}, {v(pr+1)}")
        A(f"ds_write_b64 {v(va[dt])}, {v(ac,2)}")
    A("s_waitcnt lgkmcnt(0)")
    ob = [FP[0][0][0], FP[0][0][1]]
    for u in range(2): A(f"ds_read_b128 {v(ob[u],4)}, {v(vrb)} offset:{u*1024}")
    A("s_waitcnt lgkmcnt(1)")
    A(f"global_store_dwordx4 {v(vgo)}, {v(ob[0],4)}, s[12:13]")
    A(f"v_add_u32 {v(vgo)}, 8192, {v(vgo)}")
    A("s_waitcnt lgkmcnt(0)")
    A(f"global_store_dwordx4 {v(vgo)}, {v(ob[1],4)}, s[12:13]")
    if stamps:
        ST.stamp(); A("s_waitcnt vmcnt(0)"); ST.stamp(); ST.flush(4, vt[4])
    A("s_endpgm")
    nv = R.hi
    A.label(f"{name}_loader")
    R = RegAlloc(1)
    voW = [R.alloc() for _ in range(4)]; voP = [R.alloc() for _ in range(4)]; voX = [R.alloc() for _ in range(2)]
    vl = R.alloc(); t0 = R.alloc(); t1 = R.alloc(); t2 = R.alloc(); t3 = R.alloc()
    sLw, sWk, sPk, sLW, sLP, sXb = 28, 29, 30, 31, 32, 33
    A(f"s_mov_b32 s10, {FH*D*2}"); A("s_mov_b32 s11, 0x20000")
    A(f"s_mov_b32 s6, {WS_P0 + S*FH*2}"); A("s_mov_b32 s7, 0x20000")
    A(f"s_sub_u32 {s(sLw)}, {s(sW)}, 4")
    A(f"v_and_b32 {v(vl)}, 63, v0")
    A(f"v_lshrrev_b32 {v(t0)}, 3, {v(vl)}")
    A(f"v_and_b32 {v(t1)}, 7, {v(vl)}")
    A(f"v_bfe_u32 {v(t2)}, {v(vl)}, 4, 1")
    A(f"s_lshl_b32 {s(sT0)}, {s(sLw)}, 15")
    for jj in range(4):
        A(f"v_or_b32 {v(t3)}, {(jj&1)<<1}, {v(t2)}")
        A(f"v_lshlrev_b32 {v(t3)}, 1, {v(t3)}")
        A(f"v_xor_b32 {v(t3)}, {v(t3)}, {v(t1)}")
        A(f"v_lshlrev_b32 {v(t3)}, 4, {v(t3)}")
        A(f"v_lshl_add_u32 {v(voW[jj])}, {v(t0)}, 10, {v(t3)}")
        A(f"v_add_u32 {v(voW[jj])}, {s(sT0)}, {v(voW[jj])}")
        if jj: A(f"v_add_u32 {v(voW[jj])}, {jj*(8192-1024)}, {v(voW[jj])}")
    A(f"v_xor_b32 {v(t1)}, {v(t1)}, {v(t0)}")
    A(f"v_lshlrev_b32 {v(t1)}, 4, {v(t1)}")
    A(f"s_and_b32 {s(sT0)}, {s(sLw)}, 1")
    A(f"s_lshl_b32 {s(sT0)}, {s(sT0)}, 5")
    A(f"v_add_u32 {v(t2)}, {s(sT0)}, {v(t0)}")
    A(f"v_mul_u32_u24 {v(voP[0])}, 1792, {v(t2)}")
    A(f"s_lshr_b32 {s(sT1)}, {s(sLw)}, 1")
    A(f"s_lshl_b32 {s(sT1)}, {s(sT1)}, 7")
    A(f"v_add3_u32 {v(voP[0])}, {v(voP[0])}, {v(t1)}, {s(sT1)}")
    for jj in range(1, 4): A(f"v_add_u32 {v(voP[jj])}, {jj*(8*1792-1024)}, {v(voP[0])}")
    A(f"s_lshl_b32 {s(sT0)}, {s(sLw)}, 4")
    A(f"v_add_u32 {v(t2)}, {s(sT0)}, {v(t0)}")
    A(f"v_lshl_add_u32 {v(voX[0])}, {v(t2)}, 10, {v(t1)}")
    A(f"v_add_u32 {v(voX[1])}, {8192-1024}, {v(voX[0])}")
    A(f"s_lshl_b32 {s(sWk)}, {s(sDB)}, 7")
    A(f"s_mul_i32 {s(sPk)}, {s(sTB)}, {64*1792}")
    A(f"s_add_u32 {s(sPk)}, {s(sPk)}, {WS_P0}")
    A(f"s_lshl_b32 {s(sLW)}, {s(sLw)}, 12")
    A(f"s_add_u32 {s(sLP)}, {s(sLW)}, {W_B}")
    A(f"s_lshl_b32 {s(sXb)}, {s(sTB)}, 16")
    A(f"s_add_u32 {s(sXb)}, {s(sXb)}, {s(sWk)}")
    A(f"s_add_u32 {s(sXb)}, {s(sXb)}, {WS_X1}")
    A("s_waitcnt lgkmcnt(0)")
    def issue(st):
        slot = st % NS
        A(f"s_add_u32 m0, {s(sLP)}, {slot*SLOT}")
        A(f"s_add_u32 {s(sT0)}, {s(sPk)}, {st*256}")
        for jj in range(4): A(f"buffer_load_dwordx4 {v(voP[jj])}, s[4:7], {s(sT0)} offen offset:{jj*1024} lds")
        A(f"s_add_u32 m0, {s(sLW)}, {slot*SLOT}")
        A(f"s_add_u32 {s(sT0)}, {s(sWk)}, {st*128*1024}")
        for jj in range(4): A(f"buffer_load_dwordx4 {v(voW[jj])}, s[8:11], {s(sT0)} offen offset:{jj*1024} lds")
        if st == NST - 1:
            A(f"s_lshl_b32 {s(sT0)}, {s(sLw)}, 11")
            A(f"s_add_u32 m0, {s(sT0)}, {X_OFF}")
            for jj in range(2): A(f"buffer_load_dwordx4 {v(voX[jj])}, s[4:7], {s(sXb)} offen offset:{jj*1024} lds")
    loader_pipeline(A, NST, NS, issue, lambda st: 8 + (2 if st == NST - 1 else 0))
    A("s_barrier")
    A("s_endpgm")
    A.label(f"{name}_end")
    A("s_endpgm")
    return dict(name=name, grid=NWG, block=512, lds=LDS, vgpr=max(nv, R.hi), sgpr=96 if stamps else 40)
```

```python
from g2b import *
from g2b import gen_ko as gen_ko2

def gen_kz(A, name="kz_kernel", NS=4, stamps=False, prefetch=True, slice_n=45, ticks=False):
    NWG = 256
    GS = 960; SLOT = 16 * GS; W_OFF = 65536
    X_OFF = W_OFF + NS * SLOT
    XS = 32 * 144
    LDS = X_OFF + 4 * XS
    NST = 16; WROW = 3584
    A.barrier_state(); A.raw(kernel_header(name))
    ST = Stamps(A, on=stamps, kidx=2)
    sW, sRB, sCC, sT0, sT1, sT2, sTH, sFH, sK = 20, 21, 22, 23, 24, 25, 26, 27, 28
    A(f"s_cmp_ge_u32 s2, {NWG}")
    A(f"s_cbranch_scc1 {name}_end")
    ST.stamp()
    load_ptr(A, 4, "ws"); load_ptr(A, 8, "win")
    if prefetch: load_ptr(A, 12, "wsp")
    A(f"v_readfirstlane_b32 {s(sW)}, v0")
    A(f"s_bfe_u32 {s(sRB)}, s2, 0x20001")
    A(f"s_bfe_u32 {s(sT0)}, s2, 0x30003")
    A(f"s_lshl3_add_u32 {s(sRB)}, {s(sRB)}, {s(sT0)}")
    A(f"s_and_b32 {s(sCC)}, s2, 1")
    A(f"s_lshr_b32 {s(sT0)}, s2, 6")
    A(f"s_lshl2_add_u32 {s(sCC)}, {s(sCC)}, {s(sT0)}")
    A(f"s_lshr_b32 {s(sW)}, {s(sW)}, 6")
    A(f"s_and_b32 {s(sTH)}, {s(sW)}, 1")
    A(f"s_bfe_u32 {s(sFH)}, {s(sW)}, 0x10001")
    A(f"v_bfe_u32 v1, v0, 4, 2")
    A(f"v_and_b32 v2, 15, v0")
    vq, vi = 1, 2
    vtt = [3, 4]
    A(f"s_lshl1_add_u32 {s(sT0)}, {s(sTH)}, {s(sFH)}")
    A(f"s_xor_b32 {s(sT1)}, {s(sT0)}, 1")
    A(f"v_lshl_add_u32 {v(vtt[0])}, {s(sT0)}, 4, {v(vi)}")
    A(f"v_lshl_add_u32 {v(vtt[1])}, {s(sT1)}, 4, {v(vi)}")
    A(f"s_cmp_ge_u32 {s(sW)}, 4")
    A(f"s_cbranch_scc1 {name}_loader")
    TILES = [(0, 0), (0, 1), (1, 0), (1, 1), (2, 0), (2, 1), (3, 0)]
    R = RegAlloc(5)
    vC = R.alloc(2)
    vtb = R.alloc(8, 4); vt = [vtb + k for k in range(8)]
    vH = [[R.alloc() for _ in range(2)] for _ in range(2)]
    vWa = [R.alloc() for _ in range(2)]; vWb = [R.alloc() for _ in range(2)]
    vLx = [R.alloc() for _ in range(2)]
    gt2 = R.alloc(16, 4)
    z2p = [R.alloc(2) for _ in range(7)]
    st1 = [R.alloc(2) for _ in range(2)]; st2 = [R.alloc(2) for _ in range(2)]
    acc = [[R.alloc(4) for _ in range(7)] for _ in range(2)]
    FH_ = [[[R.alloc(4) for _ in range(2)] for _ in range(2)] for _ in range(2)]
    FW = [[[R.alloc(4) for _ in range(4)] for _ in range(2)] for _ in range(2)]
    A(f"v_and_b32 {v(vt[0])}, 7, {v(vi)}")
    A(f"v_xor_b32 {v(vt[1])}, {v(vq)}, {v(vt[0])}")
    A(f"v_lshlrev_b32 {v(vt[1])}, 4, {v(vt[1])}")
    for hf in range(2):
        A(f"v_lshl_add_u32 {v(vH[hf][0])}, {v(vtt[hf])}, 7, {v(vt[1])}")
        A(f"v_xor_b32 {v(vH[hf][1])}, 64, {v(vH[hf][0])}")
    A(f"v_mul_u32_u24 {v(vt[1])}, {2*GS}, {v(vq)}")
    A(f"v_lshrrev_b32 {v(vt[2])}, 2, {v(vi)}")
    A(f"v_mul_u32_u24 {v(vt[2])}, 224, {v(vt[2])}")
    A(f"v_and_b32 {v(vt[3])}, 3, {v(vi)}")
    A(f"v_lshl_add_u32 {v(vt[1])}, {v(vt[3])}, 3, {v(vt[1])}")
    A(f"v_add_u32 {v(vt[1])}, {v(vt[1])}, {v(vt[2])}")
    A(f"s_lshl_b32 {s(sT0)}, {s(sFH)}, 7")
    A(f"s_add_u32 {s(sT0)}, {s(sT0)}, {W_OFF}")
    A(f"v_add_u32 {v(vWa[0])}, {s(sT0)}, {v(vt[1])}")
    A(f"v_add_u32 {v(vWb[0])}, {W_OFF+96}, {v(vt[1])}")
    A(f"v_add_u32 {v(vWa[1])}, {3*SLOT}, {v(vWa[0])}")
    A(f"v_add_u32 {v(vWb[1])}, {3*SLOT}, {v(vWb[0])}")
    A(f"s_mul_i32 {s(sT0)}, {s(sW)}, {XS}")
    A(f"s_add_u32 {s(sT0)}, {s(sT0)}, {X_OFF}")
    for hf in range(2):
        A(f"v_and_b32 {v(vLx[hf])}, 31, {v(vtt[hf])}")
        A(f"v_mul_u32_u24 {v(vLx[hf])}, 144, {v(vLx[hf])}")
        A(f"v_lshl_add_u32 {v(vLx[hf])}, {v(vq)}, 3, {v(vLx[hf])}")
        A(f"v_add_u32 {v(vLx[hf])}, {s(sT0)}, {v(vLx[hf])}")
    for hf in range(2):
        for r in range(2):
            A(f"v_mov_b32 {v(st1[hf]+r)}, 0"); A(f"v_mov_b32 {v(st2[hf]+r)}, 0")
    A(f"v_mov_b32 {v(vC)}, {fhex(GELU_C2)}")
    A(f"v_mov_b32 {v(vC+1)}, {fhex(GELU_C1)}")
    A("s_waitcnt lgkmcnt(0)")
    def reads(st, buf):
        kc = st & 7; slot = st % NS; sg = slot // 3; so = (slot % 3) * SLOT
        o = []
        for ks in range(2):
            for hf in range(2): o.append(f"ds_read_b128 {v(FH_[buf][ks][hf],4)}, {v(vH[hf][ks])} offset:{kc*8192}")
            for wf in range(4):
                for p in range(2):
                    base = vWa[sg] if wf < 3 else vWb[sg]
                    off = so + ks * 8 * GS + p * GS + (wf * 32 if wf < 3 else 0)
                    o.append(f"ds_read_b64_tr_b16 {v(FW[buf][ks][wf]+2*p,2)}, {v(base)} offset:{off}")
        return o
    def mfmas(st, buf):
        h = st >> 3
        o = []
        for ks in range(2):
            for tl, (wf, hf) in enumerate(TILES):
                c = "0" if (st & 7) == 0 and ks == 0 else v(acc[h][tl], 4)
                o.append(f"v_mfma_f32_16x16x32_bf16 {v(acc[h][tl],4)}, {v(FW[buf][ks][wf],4)}, {v(FH_[buf][ks][hf],4)}, {c}")
        return o
    def z2_part1():
        A(f"s_mov_b32 {s(sT2)}, 0xffff0000")
        for grp in ([0, 1, 2, 3], [4, 5, 6]):
            for x in gelu_pk_multi([acc[0][tl] for tl in grp], gt2, vC): A(x)
            for tl in grp:
                ac = acc[0][tl]
                for h in range(2): A(f"v_cvt_pk_bf16_f32 {v(z2p[tl]+h)}, {v(ac+2*h)}, {v(ac+2*h+1)}")
            for k, tl in enumerate(grp):
                for h in range(2):
                    A(f"v_lshlrev_b32 {v(gt2+4*k+2*h)}, 16, {v(z2p[tl]+h)}")
                    A(f"v_and_b32 {v(gt2+4*k+2*h+1)}, {s(sT2)}, {v(z2p[tl]+h)}")
            for k, tl in enumerate(grp):
                hf = TILES[tl][1]
                for h in range(2):
                    A(pk("add", st1[hf], v(st1[hf], 2), v(gt2+4*k+2*h, 2)))
                    A(pk("fma", st2[hf], v(gt2+4*k+2*h, 2), v(gt2+4*k+2*h, 2), v(st2[hf], 2)))
        for hf in range(2):
            A(f"v_add_f32 {v(st1[hf])}, {v(st1[hf])}, {v(st1[hf]+1)}")
            A(f"v_add_f32 {v(st2[hf])}, {v(st2[hf])}, {v(st2[hf]+1)}")
        rs4 = (st1[0], st2[0], st1[1], st2[1])
        for k, r in enumerate(rs4): A(f"v_mov_b32 {v(gt2+k)}, {v(r)}")
        for k, r in enumerate(rs4): A(f"v_permlane16_swap_b32 {v(r)}, {v(gt2+k)}")
        for k, r in enumerate(rs4): A(f"v_add_f32 {v(r)}, {v(r)}, {v(gt2+k)}")
        for k, r in enumerate(rs4): A(f"v_mov_b32 {v(gt2+k)}, {v(r)}")
        for k, r in enumerate(rs4): A(f"v_permlane32_swap_b32 {v(r)}, {v(gt2+k)}")
        for k, r in enumerate(rs4): A(f"v_add_f32 {v(r)}, {v(r)}, {v(gt2+k)}")
        for x in [f"v_cmp_eq_u32 vcc, 1, {v(vq)}",
           f"v_mov_b32 {v(vt[4])}, 0x7fc00000",
           f"s_lshl1_add_u32 {s(sT1)}, {s(sRB)}, {s(sTH)}",
           f"v_cndmask_b32 {v(vt[2])}, {v(st1[0])}, {v(st1[1])}, vcc",
           f"v_cndmask_b32 {v(vt[3])}, {v(st2[0])}, {v(st2[1])}, vcc",
           f"v_cndmask_b32 {v(vt[0])}, {v(vtt[0])}, {v(vtt[1])}, vcc",
           f"v_cmp_eq_u32 vcc, -1, {v(vt[2])}",
           f"s_lshl_b32 {s(sT1)}, {s(sT1)}, 12",
           f"v_cndmask_b32 {v(vt[2])}, {v(vt[2])}, {v(vt[4])}, vcc",
           f"v_cmp_eq_u32 vcc, -1, {v(vt[3])}",
           f"s_add_u32 {s(sT1)}, {s(sT1)}, {WS_STAT}",
           f"v_cndmask_b32 {v(vt[3])}, {v(vt[3])}, {v(vt[4])}, vcc",
           f"s_lshl1_add_u32 {s(sT2)}, {s(sCC)}, {s(sFH)}",
           f"s_lshl_b32 {s(sT2)}, {s(sT2)}, 8",
           f"s_add_u32 {s(sT2)}, {s(sT2)}, {s(sT1)}",
           f"v_and_b32 {v(vt[0])}, 31, {v(vt[0])}",
           f"v_lshl_add_u32 {v(vt[0])}, {v(vt[0])}, 3, {s(sT2)}",
           "s_mov_b32 exec_hi, 0",
           f"global_store_dwordx2 {v(vt[0])}, {v(vt[2],2)}, s[4:5] sc0 sc1",
           "s_mov_b32 exec_hi, -1"]: A(x)
        for tl, (wf, hf) in enumerate(TILES):
            A(f"ds_write_b64 {v(vLx[hf])}, {v(z2p[tl],2)} offset:{wf*32}")
    def hook(st):
        if st == 7:
            ST.stamp()
            z2_part1()
            ST.stamp()
    def tick(j):
        A(f"s_memtime {s(40 + 2*j, 2)}")
    consumer_full(A, NST, reads, mfmas, hook=hook, tick=tick if ticks else None)
    if ticks:
        A("s_waitcnt lgkmcnt(0)")
        lab = A.newlabel("Ltk")
        A(f"s_cmp_lg_u32 {s(sW)}, 0"); A(f"s_cbranch_scc1 {lab}")
        A(f"s_lshl_b32 s3, s2, 8"); A(f"s_add_u32 s3, s3, {WS_STAMP + 6*(1<<20)}")
        A(f"v_mov_b32 {v(vt[0])}, s3")
        for j in range(16):
            A(f"v_mov_b32 {v(vt[2])}, {s(40+2*j)}"); A(f"v_mov_b32 {v(vt[3])}, {s(41+2*j)}")
            A(f"global_store_dwordx2 {v(vt[0])}, {v(vt[2],2)}, s[4:5] offset:{j*8}"); A("s_nop 1")
        A.label(lab)
    ST.stamp()
    if prefetch:
        A(f"v_and_b32 {v(vt[5])}, 63, v0")
        A(f"s_bfe_u32 {s(sT0)}, s2, 0x20001")
        A(f"s_lshl_b32 {s(sT0)}, {s(sT0)}, 21")
        A(f"s_lshr_b32 {s(sT1)}, s2, 3")
        A(f"s_lshl2_add_u32 {s(sT1)}, {s(sT1)}, {s(sW)}")
        A(f"s_lshl_b32 {s(sT1)}, {s(sT1)}, 14")
        A(f"s_add_u32 {s(sT0)}, {s(sT0)}, {s(sT1)}")
        A(f"v_lshl_add_u32 {v(vt[1])}, {v(vt[5])}, 7, {s(sT0)}")
        A(f"global_load_dword {v(vt[6])}, {v(vt[1])}, s[12:13]")
        A(f"v_add_u32 {v(vt[1])}, 8192, {v(vt[1])}")
        A(f"global_load_dword {v(vt[7])}, {v(vt[1])}, s[12:13]")
    ZS = W_OFF
    assert (NST - 1) % NS == 3 and 4 * 7168 <= 3 * SLOT
    vLa = [vH[0][0], vH[1][0]]; vL4 = vH[0][1]
    A(f"s_mul_i32 {s(sT0)}, {s(sW)}, 7168")
    A(f"s_add_u32 {s(sT0)}, {s(sT0)}, {ZS}")
    for hf in range(2):
        A(f"v_and_b32 {v(vLa[hf])}, 31, {v(vtt[hf])}")
        A(f"v_mul_u32_u24 {v(vLa[hf])}, 144, {v(vLa[hf])}")
        A(f"v_lshl_add_u32 {v(vLa[hf])}, {v(vq)}, 3, {v(vLa[hf])}")
        A(f"v_add_u32 {v(vLa[hf])}, {s(sT0)}, {v(vLa[hf])}")
    gt = FW[0][0][0]
    assert FW[0][0][3] == gt + 12
    for grp in ([0, 1, 2, 3], [4, 5, 6]):
        for x in gelu_pk_multi([acc[1][tl] for tl in grp], gt, vC): A(x)
        for tl in grp:
            wf, hf = TILES[tl]; ac = acc[1][tl]
            for h in range(2): A(f"v_cvt_pk_bf16_f32 {v(ac+h)}, {v(ac+2*h)}, {v(ac+2*h+1)}")
            A(f"ds_write_b64 {v(vLa[hf])}, {v(ac,2)} offset:{wf*32}")
    vl = vt[0]
    A(f"v_and_b32 {v(vl)}, 63, v0")
    vg = FH_[0][0][0]; va = FH_[0][0][1]
    for j in range(3):
        A(f"v_add_u32 {v(vt[1])}, {64*j}, {v(vl)}")
        A(f"v_mul_u32_u24 {v(vt[2])}, 10923, {v(vt[1])}")
        A(f"v_lshrrev_b32 {v(vt[2])}, 16, {v(vt[2])}")
        A(f"v_mul_u32_u24 {v(vt[3])}, 6, {v(vt[2])}")
        A(f"v_sub_u32 {v(vt[3])}, {v(vt[1])}, {v(vt[3])}")
        A(f"v_mul_u32_u24 {v(vt[4])}, 144, {v(vt[2])}")
        A(f"v_lshl_add_u32 {v(va+j)}, {v(vt[3])}, 4, {v(vt[4])}")
        A(f"v_mul_u32_u24 {v(vt[4])}, 1792, {v(vt[2])}")
        A(f"v_lshl_add_u32 {v(vg+j)}, {v(vt[3])}, 4, {v(vt[4])}")
    assert all((c * 10923) >> 16 == c // 6 for c in range(192))
    A(f"v_lshrrev_b32 {v(vt[2])}, 1, {v(vl)}")
    A(f"s_lshl_b32 {s(sT1)}, {s(sFH)}, 4")
    A(f"v_add_u32 {v(vt[2])}, {s(sT1)}, {v(vt[2])}")
    A(f"v_and_b32 {v(vt[3])}, 1, {v(vl)}")
    A(f"v_mul_u32_u24 {v(vt[4])}, 144, {v(vt[2])}")
    A(f"v_lshl_add_u32 {v(va+3)}, {v(vt[3])}, 4, {v(vt[4])}")
    A(f"v_add_u32 {v(va+3)}, 96, {v(va+3)}")
    A(f"v_mul_u32_u24 {v(vt[4])}, 1792, {v(vt[2])}")
    A(f"v_lshl_add_u32 {v(vg+3)}, {v(vt[3])}, 4, {v(vt[4])}")
    for j in range(4): A(f"v_add_u32 {v(va+j)}, {s(sT0)}, {v(va+j)}")
    A(f"s_lshl1_add_u32 {s(sT0)}, {s(sRB)}, {s(sTH)}")
    A(f"s_mul_i32 {s(sT0)}, {s(sT0)}, {32*1792}")
    A(f"s_mul_i32 {s(sT1)}, {s(sCC)}, 224")
    A(f"s_add_u32 {s(sT0)}, {s(sT0)}, {s(sT1)}")
    A(f"s_add_u32 {s(sT0)}, {s(sT0)}, {WS_Z1}")
    A(f"s_add_u32 {s(sT1)}, {s(sT0)}, 96")
    A(f"v_add_u32 {v(vg+3)}, {s(sT1)}, {v(vg+3)}")
    A(f"s_lshl_b32 {s(sT1)}, {s(sFH)}, 7")
    A(f"s_add_u32 {s(sT0)}, {s(sT0)}, {s(sT1)}")
    for j in range(3): A(f"v_add_u32 {v(vg+j)}, {s(sT0)}, {v(vg+j)}")
    A("s_waitcnt lgkmcnt(0)")
    buf = [FW[1][0][j] for j in range(4)]
    for j in range(4): A(f"ds_read_b128 {v(buf[j],4)}, {v(va+j)}")
    for j in range(3):
        A(f"s_waitcnt lgkmcnt({3-j})")
        A(f"global_store_dwordx4 {v(vg+j)}, {v(buf[j],4)}, s[4:5]")
    A("s_waitcnt lgkmcnt(0)")
    A("s_mov_b32 exec_hi, 0")
    A(f"global_store_dwordx4 {v(vg+3)}, {v(buf[3],4)}, s[4:5]")
    A("s_mov_b32 exec_hi, -1")
    if stamps:
        ST.stamp(); A("s_waitcnt vmcnt(0)"); ST.stamp(); ST.flush(4, vt[0])
    A("s_endpgm")
    nv = R.hi
    A.label(f"{name}_loader")
    STL = Stamps(A, on=stamps, kidx=2, base=70)
    R = RegAlloc(5)
    voW = [R.alloc() for _ in range(4)]; voH = [R.alloc() for _ in range(2)]
    vl = R.alloc(); t0 = R.alloc(); t1 = R.alloc(); t2 = R.alloc()
    vC = R.alloc(2)
    vtb = R.alloc(8, 4); vt = [vtb + k for k in range(8)]
    za = [R.alloc(4) for _ in range(7)]
    z2p = [R.alloc(2) for _ in range(7)]
    st1 = [R.alloc(2) for _ in range(2)]; st2 = [R.alloc(2) for _ in range(2)]
    pol = [R.alloc(4) for _ in range(4)]
    gtl = pol[0]; assert pol[3] == gtl + 12
    vX = R.alloc(); vrow = [R.alloc() for _ in range(2)]; vLa = [R.alloc() for _ in range(2)]
    sLw, sWk, sHk, sLW, sLH = 29, 30, 31, 32, 33
    A("s_mov_b32 s10, %d" % (512 * WROW)); A("s_mov_b32 s11, 0x20000")
    A("s_mov_b32 s6, %d" % (WS_H2 + S * D * 2)); A("s_mov_b32 s7, 0x20000")
    A(f"s_sub_u32 {s(sLw)}, {s(sW)}, 4")
    A(f"v_and_b32 {v(vl)}, 63, v0")
    div14(A, t0, t1, vl, t2)
    A(f"v_mul_u32_u24 {v(t0)}, {WROW}, {v(t0)}")
    A(f"v_lshl_add_u32 {v(t0)}, {v(t1)}, 4, {v(t0)}")
    A(f"s_mul_i32 {s(sT0)}, {s(sLw)}, {16*WROW}")
    A(f"v_add_u32 {v(voW[0])}, {s(sT0)}, {v(t0)}")
    for g in range(1, 4): A(f"v_add_u32 {v(voW[g])}, {g*(4*WROW - GS)}, {v(voW[0])}")
    A(f"v_lshrrev_b32 {v(t0)}, 3, {v(vl)}")
    A(f"v_and_b32 {v(t1)}, 7, {v(vl)}")
    A(f"v_xor_b32 {v(t1)}, {v(t1)}, {v(t0)}")
    A(f"v_lshlrev_b32 {v(t1)}, 4, {v(t1)}")
    A(f"v_lshl_add_u32 {v(t0)}, {v(t0)}, 10, {v(t1)}")
    A(f"s_lshl_b32 {s(sT0)}, {s(sLw)}, 14")
    A(f"v_add_u32 {v(voH[0])}, {s(sT0)}, {v(t0)}")
    A(f"v_add_u32 {v(voH[1])}, {8192-1024}, {v(voH[0])}")
    A(f"s_mul_i32 {s(sWk)}, {s(sCC)}, 224")
    A(f"s_lshl_b32 {s(sHk)}, {s(sRB)}, 16")
    A(f"s_add_u32 {s(sHk)}, {s(sHk)}, {WS_H2}")
    A(f"s_mul_i32 {s(sLW)}, {s(sLw)}, {4*GS}")
    A(f"s_lshl_b32 {s(sLH)}, {s(sLw)}, 11")
    A("s_waitcnt lgkmcnt(0)")
    def issue(st):
        half, kc = st >> 3, st & 7; slot = st % NS
        A(f"s_add_u32 m0, {s(sLW)}, {W_OFF + slot*SLOT}")
        A(f"s_add_u32 {s(sT0)}, {s(sWk)}, {kc*64*WROW + (1792 if half == 0 else 0)}")
        A("s_mov_b32 exec_hi, 0x00ffffff")
        for g in range(4):
            A(f"buffer_load_dwordx4 {v(voW[g])}, s[8:11], {s(sT0)} offen offset:{g*GS} lds")
        if half == 0:
            A(f"s_add_u32 m0, {s(sLH)}, {kc*8192}")
            A(f"s_add_u32 {s(sT0)}, {s(sHk)}, {kc*128}")
            A("s_mov_b32 exec_hi, -1")
            for j in range(2):
                A(f"buffer_load_dwordx4 {v(voH[j])}, s[4:7], {s(sT0)} offen offset:{j*1024} lds")
        else:
            A("s_mov_b32 exec_hi, -1")
    loader_pipeline(A, NST, NS, issue, lambda st: 6 if st < 8 else 4)
    A(f"s_lshl1_add_u32 {s(sT1)}, {s(sRB)}, {s(sTH)}")
    A(f"s_lshl_b32 {s(sT1)}, {s(sT1)}, 12")
    A(f"s_add_u32 {s(sT1)}, {s(sT1)}, {WS_STAT}")
    for hf in range(2):
        A(f"v_and_b32 {v(vrow[hf])}, 31, {v(vtt[hf])}")
        A(f"v_lshl_add_u32 {v(vrow[hf])}, {v(vrow[hf])}, 3, {s(sT1)}")
        A(f"v_lshl_add_u32 {v(vrow[hf])}, {v(vq)}, 10, {v(vrow[hf])}")
    if stamps: A("s_mov_b32 s20, 0"); STL.n = 0; STL.stamp()
    A(f"s_mul_i32 {s(sT0)}, {s(sLw)}, {XS}")
    A(f"s_add_u32 {s(sT0)}, {s(sT0)}, {X_OFF}")
    for hf in range(2):
        A(f"v_and_b32 {v(vLa[hf])}, 31, {v(vtt[hf])}")
        A(f"v_mul_u32_u24 {v(vLa[hf])}, 144, {v(vLa[hf])}")
        A(f"v_lshl_add_u32 {v(vLa[hf])}, {v(vq)}, 3, {v(vLa[hf])}")
        A(f"v_add_u32 {v(vLa[hf])}, {s(sT0)}, {v(vLa[hf])}")
    vtr = voH[0]; vgz = voH[1]; vtr3 = voW[0]; vgz3 = voW[1]
    A(f"v_lshrrev_b32 {v(t0)}, 2, {v(vi)}")
    A(f"v_lshl_add_u32 {v(t0)}, {v(vq)}, 3, {v(t0)}")
    A(f"v_mul_u32_u24 {v(vtr)}, 144, {v(t0)}")
    A(f"v_and_b32 {v(t1)}, 3, {v(vi)}")
    A(f"v_lshl_add_u32 {v(vtr)}, {v(t1)}, 3, {v(vtr)}")
    A(f"v_add_u32 {v(vtr)}, {s(sT0)}, {v(vtr)}")
    A(f"s_mul_i32 {s(sT1)}, {s(sFH)}, {16*144}")
    A(f"s_add_u32 {s(sT1)}, {s(sT1)}, 96")
    A(f"v_add_u32 {v(vtr3)}, {s(sT1)}, {v(vtr)}")
    A(f"v_lshlrev_b32 {v(vgz)}, 12, {v(vi)}")
    A(f"v_lshl_add_u32 {v(vgz)}, {v(vq)}, 4, {v(vgz)}")
    A(f"s_mul_i32 {s(sT1)}, {s(sCC)}, {112*4096}")
    A(f"s_lshl_b32 {s(sT2)}, {s(sRB)}, 7")
    A(f"s_add_u32 {s(sT1)}, {s(sT1)}, {s(sT2)}")
    A(f"s_lshl_b32 {s(sT2)}, {s(sTH)}, 6")
    A(f"s_add_u32 {s(sT1)}, {s(sT1)}, {s(sT2)}")
    A(f"s_add_u32 {s(sT1)}, {s(sT1)}, {WS_Z2T}")
    A(f"s_lshl_b32 {s(sT2)}, {s(sFH)}, 5")
    A(f"s_add_u32 {s(sT2)}, {s(sT2)}, {48*4096}")
    A(f"s_add_u32 {s(sT2)}, {s(sT2)}, {s(sT1)}")
    A(f"v_add_u32 {v(vgz3)}, {s(sT2)}, {v(vgz)}")
    A(f"s_lshl_b32 {s(sT2)}, {s(sFH)}, 18")
    A(f"s_add_u32 {s(sT1)}, {s(sT1)}, {s(sT2)}")
    A(f"v_add_u32 {v(vgz)}, {s(sT1)}, {v(vgz)}")
    for tl, (wf, hf) in enumerate(TILES):
        A(f"ds_read_b64 {v(z2p[tl],2)}, {v(vLa[hf])} offset:{wf*32}")
    A(f"s_mov_b32 {s(sK)}, 0")
    A.label(f"{name}_poll")
    for hf in range(2):
        for u in range(4):
            A(f"global_load_dwordx2 {v(pol[hf*2+(u>>1)]+2*(u&1),2)}, {v(vrow[hf])}, s[4:5] offset:{u*256} sc1")
    A("s_waitcnt vmcnt(0)")
    A(f"v_max3_u32 {v(vt[0])}, {v(pol[0])}, {v(pol[0]+1)}, {v(pol[0]+2)}")
    rest = [pol[0]+3] + [pol[b_]+r for b_ in range(1, 4) for r in range(4)]
    for k in range(0, len(rest) - 1, 2): A(f"v_max3_u32 {v(vt[0])}, {v(vt[0])}, {v(rest[k])}, {v(rest[k+1])}")
    A(f"v_max_u32 {v(vt[0])}, {v(vt[0])}, {v(rest[-1])}")
    A(f"v_cmp_eq_u32 vcc, -1, {v(vt[0])}")
    A(f"s_add_u32 {s(sK)}, {s(sK)}, 1")
    A(f"s_cmp_eq_u64 vcc, 0")
    A(f"s_cbranch_scc1 {name}_polled")
    A("s_sleep 2")
    A(f"s_cmp_lt_u32 {s(sK)}, 0x40000")
    A(f"s_cbranch_scc1 {name}_poll")
    A.label(f"{name}_polled")
    if stamps: STL.stamp()
    mean = [vt[0], vt[1]]; rstd = [vt[2], vt[3]]
    for hf in range(2):
        p0, p1 = pol[hf*2], pol[hf*2+1]
        A(pk("add", p0, v(p0, 2), v(p0+2, 2)))
        A(pk("add", p1, v(p1, 2), v(p1+2, 2)))
        A(pk("add", p0, v(p0, 2), v(p1, 2)))
        A(f"v_mov_b32 {v(mean[hf])}, {v(p0)}")
        A(f"v_mov_b32 {v(rstd[hf])}, {v(p0+1)}")
    xor16_32_sum(A, mean + rstd, vt[6])
    for hf in range(2):
        A(f"v_mul_f32 {v(mean[hf])}, {fhex(1.0/896)}, {v(mean[hf])}")
        A(f"v_mul_f32 {v(rstd[hf])}, {fhex(1.0/896)}, {v(rstd[hf])}")
        A(f"v_fma_f32 {v(rstd[hf])}, -{v(mean[hf])}, {v(mean[hf])}, {v(rstd[hf])}")
        A(f"v_max_f32 {v(rstd[hf])}, 0, {v(rstd[hf])}")
        A(f"v_add_f32 {v(rstd[hf])}, 0x3727c5ac, {v(rstd[hf])}")
        A(f"v_rsq_f32 {v(rstd[hf])}, {v(rstd[hf])}")
        A(f"v_mul_f32 {v(mean[hf])}, {v(mean[hf])}, {v(rstd[hf])}")
    for hf in range(2):
        A(f"v_mov_b32 {v(st1[hf])}, {v(rstd[hf])}")
        A(f"v_sub_f32 {v(st1[hf]+1)}, 0, {v(mean[hf])}")
    A(f"s_mov_b32 {s(sT0)}, 0xffff0000")
    A("s_waitcnt lgkmcnt(0)")
    for tl, (wf, hf) in enumerate(TILES):
        z = z2p[tl]
        for h in range(2):
            A(f"v_lshlrev_b32 {v(vt[4])}, 16, {v(z+h)}")
            A(f"v_and_b32 {v(vt[5])}, {s(sT0)}, {v(z+h)}")
            A(pk("fma", vt[4], v(vt[4], 2), v(st1[hf], 2), v(st1[hf], 2), "op_sel:[0,0,1] op_sel_hi:[1,0,1]"))
            A(f"v_cvt_pk_bf16_f32 {v(z+h)}, {v(vt[4])}, {v(vt[5])}")
        A(f"ds_write_b64 {v(vLa[hf])}, {v(z,2)} offset:{wf*32}")
    A("s_waitcnt lgkmcnt(0)")
    for wf in range(3):
        for p in range(2): A(f"ds_read_b64_tr_b16 {v(za[wf]+2*p,2)}, {v(vtr)} offset:{wf*32 + 4*p*144}")
    for p in range(2): A(f"ds_read_b64_tr_b16 {v(za[3]+2*p,2)}, {v(vtr3)} offset:{4*p*144}")
    for wf in range(3):
        A(f"s_waitcnt lgkmcnt({6-2*wf})")
        A(f"global_store_dwordx4 {v(vgz)}, {v(za[wf],4)}, s[4:5]")
        if wf < 2: A(f"v_add_u32 {v(vgz)}, {16*4096}, {v(vgz)}")
    A("s_waitcnt lgkmcnt(0)")
    A("s_mov_b32 exec_hi, 0")
    A(f"global_store_dwordx4 {v(vgz3)}, {v(za[3],4)}, s[4:5]")
    if stamps:
        A("s_mov_b32 exec_hi, -1")
        STL.stamp(); A("s_waitcnt vmcnt(0)"); STL.stamp()
        A(f"s_cmp_lg_u32 {s(sLw)}, 0"); A(f"s_cselect_b32 s20, 1, 0"); STL.flush(4, vt[0], slot=1)
    A("s_endpgm")
    A.label(f"{name}_end")
    A("s_endpgm")
    return dict(name=name, grid=NWG, block=512, lds=LDS, vgpr=max(nv, R.hi), sgpr=96 if stamps else 40)

def gen_kg(A, name="kg_kernel", NS=6, stamps=False, prefetch=True, clk=False, vper=2, noscale=False, n1=6, ln3=False):
    NWG = 256; TF = 112; TT = 64; NST = 32
    B_OFF = 14 * 1024; STAGE = 22 * 1024
    RING = NS * STAGE
    TAB = RING
    LDS = TAB + (16384 if ln3 else 0)
    last_slot = (NST - 1) % NS
    Z_OFF = ((NST - NS) % NS) * STAGE
    X_OFF = ((NST - NS + 1) % NS) * STAGE
    XSZ = 7 * 1024 + 256
    assert X_OFF + 4 * XSZ <= RING and X_OFF // STAGE not in (last_slot, (NST - 2) % NS) and (X_OFF // STAGE + 1) not in (last_slot, (NST - 2) % NS)
    A.barrier_state(); A.raw(kernel_header(name))
    ST = Stamps(A, on=stamps, kidx=3)
    sW, sFB, sTB, sT0, sT1, sT2, sSlot, sI, sTab = 20, 21, 22, 23, 24, 25, 26, 27, 33
    A(f"s_cmp_ge_u32 s2, {NWG}")
    A(f"s_cbranch_scc1 {name}_end")
    ST.stamp()
    load_ptr(A, 4, "ws"); load_ptr(A, 8, "wsp"); load_ptr(A, 12, "bsp")
    if prefetch: load_ptr(A, 16, "wout")
    A(f"v_readfirstlane_b32 {s(sW)}, v0")
    if ln3:
        A(f"v_lshlrev_b32 v1, 5, v0")
        A(f"v_add_u32 v1, {WS_STAT}, v1")
    A(f"s_and_b32 {s(sFB)}, s2, 1")
    A(f"s_bfe_u32 {s(sT0)}, s2, 0x20003")
    A(f"s_lshl2_add_u32 {s(sFB)}, {s(sFB)}, {s(sT0)}")
    A(f"s_bfe_u32 {s(sTB)}, s2, 0x20001")
    A(f"s_lshr_b32 {s(sT0)}, s2, 5")
    A(f"s_lshl3_add_u32 {s(sTB)}, {s(sTB)}, {s(sT0)}")
    A(f"s_lshr_b32 {s(sW)}, {s(sW)}, 6")
    A(f"s_cmp_ge_u32 {s(sW)}, 4")
    A(f"s_cbranch_scc1 {name}_loader")
    def table_build(nwait):
        if not ln3: return
        A(f"v_mov_b32 v2, {fhex(1.0/896)}")
        A(f"v_lshlrev_b32 v1, 4, v0")
        A(f"v_add_u32 v1, {TAB}, v1")
        A(f"v_lshlrev_b32 v3, 3, v0")
        A(f"v_add_u32 v3, {TAB + 8192}, v3")
        A(f"s_waitcnt vmcnt({nwait})")
        for k in range(4): A(pk("mul", 8 + 2*k, v(8 + 2*k, 2), v(2, 2), sel="op_sel_hi:[1,0]"))
        for k in range(4): A(f"v_fma_f32 v{16+k}, -v{8+2*k}, v{8+2*k}, v{9+2*k}")
        A("v_cvt_pk_bf16_f32 v4, v8, v10"); A("v_cvt_pk_bf16_f32 v5, v12, v14")
        for k in range(4): A(f"v_max_f32 v{16+k}, 0, v{16+k}")
        A("v_lshlrev_b32 v9, 16, v4"); A("v_and_b32 v11, 0xffff0000, v4"); A("v_lshlrev_b32 v13, 16, v5"); A("v_and_b32 v15, 0xffff0000, v5")
        for k in range(4): A(f"v_add_f32 v{16+k}, 0x3727c5ac, v{16+k}")
        for k in range(4): A(f"v_sub_f32 v{9+2*k}, v{8+2*k}, v{9+2*k}")
        for k in range(4): A(f"v_rsq_f32 v{16+k}, v{16+k}")
        A("v_cvt_pk_bf16_f32 v6, v9, v11"); A("v_cvt_pk_bf16_f32 v7, v13, v15")
        A("v_cvt_pk_bf16_f32 v16, v16, 0"); A("v_cvt_pk_bf16_f32 v17, 0, v17"); A("v_cvt_pk_bf16_f32 v18, v18, 0"); A("v_cvt_pk_bf16_f32 v19, 0, v19")
        A("ds_write_b64 v3, v[4:5]")
        A("ds_write_b128 v1, v[16:19]")
        A("ds_write_b64 v3, v[6:7] offset:4096")
        A("s_waitcnt lgkmcnt(0)")
        A("s_barrier")
    A("s_waitcnt lgkmcnt(0)")
    if ln3:
        A("global_load_dwordx4 v[8:11], v1, s[4:5]")
        A("global_load_dwordx4 v[12:15], v1, s[4:5] offset:16")
    R = RegAlloc(20 if ln3 else 2)
    vq = R.alloc(); vi = R.alloc(); vA = R.alloc(); vB = [R.alloc() for _ in range(2)]
    cA = R.alloc(); cB = [R.alloc() for _ in range(2)]; vTr = R.alloc(); vTm = R.alloc(); cTr = R.alloc(); cTm = R.alloc()
    vtb = R.alloc(8, 4); vt = [vtb + k for k in range(8)]
    acc = [[R.alloc(4) for _ in range(2)] for _ in range(7)]
    accc = [R.alloc(4) for _ in range(2)]
    FA = [[R.alloc(4) for _ in range(7)] for _ in range(2)]
    FB = [[R.alloc(4) for _ in range(2)] for _ in range(2)]
    FM = [R.alloc(4) for _ in range(2)]
    rr = R.alloc(8, 4); uu = [R.alloc(8, 4) for _ in range(2)]
    vb = R.alloc(); vtt = R.alloc()
    vxw = R.alloc(); vxr = R.alloc(); vz1 = R.alloc(); vz = R.alloc(4); vrb = R.alloc()
    A(f"v_bfe_u32 {v(vq)}, v0, 4, 2")
    A(f"v_and_b32 {v(vi)}, 15, v0")
    A(f"v_lshl_add_u32 {v(vtt)}, {s(sW)}, 4, {v(vi)}")
    A(f"v_lshl_add_u32 {v(vt[0])}, {s(sTB)}, 6, {v(vtt)}")
    A(f"v_lshlrev_b32 {v(vt[0])}, 1, {v(vt[0])}")
    A(f"global_load_ushort {v(vb)}, {v(vt[0])}, s[12:13]")
    A(f"s_and_b32 {s(sT0)}, {s(sW)}, 1")
    A(f"s_lshl_b32 {s(sT0)}, {s(sT0)}, 2")
    A(f"v_add_u32 {v(vt[4])}, {s(sT0)}, {v(vq)}")
    A(f"v_and_b32 {v(vt[2])}, 7, {v(vi)}")
    A(f"v_xor_b32 {v(vt[1])}, {v(vt[4])}, {v(vt[2])}")
    A(f"v_lshlrev_b32 {v(vt[1])}, 4, {v(vt[1])}")
    A(f"v_lshl_add_u32 {v(vA)}, {v(vi)}, 7, {v(vt[1])}")
    A(f"v_add_u32 {v(vt[1])}, {B_OFF}, {v(vt[1])}")
    A(f"v_lshl_add_u32 {v(vB[0])}, {v(vtt)}, 7, {v(vt[1])}")
    A(f"v_xor_b32 {v(vt[3])}, 16, {v(vtt)}")
    A(f"v_lshl_add_u32 {v(vB[1])}, {v(vt[3])}, 7, {v(vt[1])}")
    A(f"v_lshlrev_b32 {v(vTr)}, 5, {v(vt[4])}")
    A(f"v_add_u32 {v(vTr)}, {TAB}, {v(vTr)}")
    A(f"v_and_b32 {v(vt[3])}, 1, {v(vi)}")
    A(f"v_lshlrev_b32 {v(vt[3])}, 12, {v(vt[3])}")
    A(f"v_lshl_add_u32 {v(vTm)}, {v(vt[4])}, 4, {v(vt[3])}")
    A(f"v_add_u32 {v(vTm)}, {TAB + 8192}, {v(vTm)}")
    table_build(1)
    A(f"v_and_b32 {v(vt[0])}, 63, v0")
    A(f"s_mul_i32 {s(sT0)}, {s(sW)}, {XSZ}")
    A(f"s_add_u32 {s(sT0)}, {s(sT0)}, {X_OFF}")
    A(f"v_lshl_add_u32 {v(vxw)}, {v(vt[0])}, 4, {s(sT0)}")
    A(f"s_xor_b32 {s(sT1)}, {s(sW)}, 1")
    A(f"s_mul_i32 {s(sT1)}, {s(sT1)}, {XSZ}")
    A(f"s_add_u32 {s(sT1)}, {s(sT1)}, {X_OFF}")
    A(f"v_lshl_add_u32 {v(vxr)}, {v(vt[0])}, 4, {s(sT1)}")
    A(f"v_mul_u32_u24 {v(vz1)}, 224, {v(vtt)}")
    A(f"v_lshl_add_u32 {v(vz1)}, {v(vq)}, 3, {v(vz1)}")
    A(f"v_add_u32 {v(vz1)}, {Z_OFF}, {v(vz1)}")
    for j in range(4):
        A(f"v_add_u32 {v(vt[4])}, {64*j}, {v(vt[0])}")
        div14(A, vt[5], vt[6], vt[4], vt[7])
        A(f"v_mul_u32_u24 {v(vt[5])}, 1792, {v(vt[5])}")
        A(f"v_lshl_add_u32 {v(vz+j)}, {v(vt[6])}, 4, {v(vt[5])}")
    A(f"s_lshl2_add_u32 {s(sT0)}, {s(sTB)}, {s(sW)}")
    A(f"s_mul_i32 {s(sT0)}, {s(sT0)}, {16*1792}")
    A(f"s_mul_i32 {s(sT1)}, {s(sFB)}, 224")
    A(f"s_add_u32 {s(sT0)}, {s(sT0)}, {s(sT1)}")
    A(f"s_add_u32 {s(sT0)}, {s(sT0)}, {WS_P0}")
    for j in range(4): A(f"v_add_u32 {v(vz+j)}, {s(sT0)}, {v(vz+j)}")
    A(f"s_mul_i32 {s(sT0)}, {s(sW)}, {16*224}")
    A(f"s_add_u32 {s(sT0)}, {s(sT0)}, {Z_OFF}")
    A(f"v_lshl_add_u32 {v(vrb)}, {v(vt[0])}, 4, {s(sT0)}")
    A(f"s_mov_b32 {s(sSlot)}, 0")
    A(f"s_mov_b32 {s(sI)}, 0")
    A(f"s_mov_b32 {s(sTab)}, 0")
    A("s_mov_b32 s34, 0xffff0000")
    def rdsB(buf, b_, tr, tm):
        o = [f"ds_read_b128 {v(FB[buf][nb],4)}, {v(b_[nb])}" for nb in range(2)]
        if ln3: o += [f"ds_read_b128 {v(rr+4*h,4)}, {v(tr)} offset:{h*16}" for h in range(2)] + [f"ds_read_b128 {v(FM[buf],4)}, {v(tm)}"]
        return o
    def rdsA(buf, a_): return [f"ds_read_b128 {v(FA[buf][fa],4)}, {v(a_)} offset:{fa*2048}" for fa in range(7)]
    def scale(buf):
        o = []
        if noscale or not ln3: return o
        for nb in range(2):
            W = FB[buf][nb]; u = uu[nb]
            for j in range(4):
                o.append(f"v_dot2_f32_bf16 {v(u+2*j)}, {v(W+j)}, {v(rr+2*j)}, 0")
                o.append(f"v_dot2_f32_bf16 {v(u+2*j+1)}, {v(W+j)}, {v(rr+2*j+1)}, 0")
        for nb in range(2):
            W = FB[buf][nb]; u = uu[nb]
            for j in range(4): o.append(f"v_cvt_pk_bf16_f32 {v(W+j)}, {v(u+2*j)}, {v(u+2*j+1)}")
        return o
    def mms(buf, first=False):
        o = []
        for fa in range(7):
            for nb in range(2):
                c = "0" if first else v(acc[fa][nb], 4)
                o.append(f"v_mfma_f32_16x16x32_bf16 {v(acc[fa][nb],4)}, {v(FA[buf][fa],4)}, {v(FB[buf][nb],4)}, {c}")
        for nb in range(2 if ln3 else 0):
            c = "0" if first else v(accc[nb], 4)
            o.append(f"v_mfma_f32_16x16x32_bf16 {v(accc[nb],4)}, {v(FM[buf],4)}, {v(FB[buf][nb],4)}, {c}")
        return o
    def adv():
        A(f"s_add_u32 {s(sSlot)}, {s(sSlot)}, {STAGE}")
        if ln3: A(f"s_add_u32 {s(sTab)}, {s(sTab)}, 128")
        A(f"s_cmp_ge_u32 {s(sSlot)}, {RING}")
        A(f"s_cselect_b32 {s(sSlot)}, 0, {s(sSlot)}")
        A(f"v_add_u32 {v(cA)}, {s(sSlot)}, {v(vA)}")
        for nb in range(2): A(f"v_add_u32 {v(cB[nb])}, {s(sSlot)}, {v(vB[nb])}")
        if ln3:
            A(f"v_add_u32 {v(cTm)}, {s(sTab)}, {v(vTm)}")
            A(f"v_lshl_add_u32 {v(cTr)}, {s(sTab)}, 1, {v(vTr)}")
    def stage(buf, first=False, nxt=True):
        ms = mms(buf, first)
        if not nxt:
            for x in ms: A(x)
            return
        rb_ = rdsB(buf ^ 1, cB, cTr, cTm); ra = rdsA(buf ^ 1, cA)
        rs = rb_ + ra
        if not ln3:
            for x in interleave2(ms, rs): A(x)
            return
        for m in ms[:n1]:
            A(m)
            for _ in range(2):
                if rs: A(rs.pop(0))
        assert not rs
        A("s_waitcnt lgkmcnt(7)")
        sc = scale(buf ^ 1)
        for m in ms[n1:]:
            A(m)
            for _ in range(vper):
                if sc: A(sc.pop(0))
        for x in sc: A(x)
    A("s_barrier")
    ST.stamp()
    if clk: ST.cstamp()
    for r in rdsB(0, vB, vTr, vTm) + rdsA(0, vA): A(r)
    if ln3:
        A("s_waitcnt lgkmcnt(7)")
        for x in scale(0): A(x)
    adv()
    A("s_waitcnt lgkmcnt(0)")
    A("s_barrier")
    stage(0, first=True)
    loop = f"{name}_cloop"
    A.label(loop)
    for buf in (1, 0):
        adv()
        A("s_waitcnt lgkmcnt(0)")
        A("s_barrier")
        stage(buf)
    A(f"s_add_u32 {s(sI)}, {s(sI)}, 1")
    A(f"s_cmp_lt_u32 {s(sI)}, 15")
    A(f"s_cbranch_scc1 {loop}")
    A("s_waitcnt lgkmcnt(0)")
    stage(1, nxt=False)
    ST.stamp()
    if clk: ST.cstamp()
    for fa in range(7): A(f"ds_write_b128 {v(vxw)}, {v(acc[fa][1],4)} offset:{fa*1024}")
    if ln3:
        for nb in range(2): A(f"v_add_f32 {v(accc[nb])}, {v(accc[nb])}, {v(accc[nb]+1)}")
        A(f"v_lshlrev_b32 {v(vt[0])}, 2, {v(vi)}")
        A(f"s_mul_i32 {s(sT0)}, {s(sW)}, {XSZ}")
        A(f"s_add_u32 {s(sT0)}, {s(sT0)}, {X_OFF + 7168}")
        A(f"v_add_u32 {v(vt[1])}, {s(sT0)}, {v(vt[0])}")
        A(f"s_xor_b32 {s(sT1)}, {s(sW)}, 1")
        A(f"s_mul_i32 {s(sT1)}, {s(sT1)}, {XSZ}")
        A(f"s_add_u32 {s(sT1)}, {s(sT1)}, {X_OFF + 7168}")
        A(f"v_add_u32 {v(vt[2])}, {s(sT1)}, {v(vt[0])}")
        A("s_mov_b64 exec, 0xffff")
        A(f"ds_write_b32 {v(vt[1])}, {v(accc[0])}")
        A(f"ds_write_b32 {v(vt[1])}, {v(accc[1])} offset:64")
        A("s_mov_b64 exec, -1")
    A(f"v_lshlrev_b32 {v(vb)}, 16, {v(vb)}")
    A("s_waitcnt vmcnt(0) lgkmcnt(0)")
    A("s_barrier")
    if ln3:
        A(f"ds_read_b32 {v(vt[3])}, {v(vt[1])}")
        A(f"ds_read_b32 {v(vt[4])}, {v(vt[2])} offset:64")
    for fa in range(7): A(f"ds_read_b128 {v(FA[0][fa],4)}, {v(vxr)} offset:{fa*1024}")
    zr = [FA[1][fa] for fa in range(7)]
    for fa in range(7): A(f"ds_read_b64 {v(zr[fa],2)}, {v(vz1)} offset:{fa*32}")
    if ln3:
        A("s_waitcnt lgkmcnt(14)")
        A(f"v_sub_f32 {v(FB[1][0])}, {v(vb)}, {v(vt[3])}")
        A(f"v_sub_f32 {v(FB[1][0])}, {v(FB[1][0])}, {v(vt[4])}")
    else:
        A(f"v_mov_b32 {v(FB[1][0])}, {v(vb)}")
    A(f"v_mov_b32 {v(FB[1][0]+1)}, {v(FB[1][0])}")
    for fa in range(7):
        ac = acc[fa][0]; pr = FA[0][fa]
        A(f"s_waitcnt lgkmcnt({13 - fa})")
        for h in (0, 2): A(pk("add", ac + h, v(ac + h, 2), v(pr + h, 2)))
        for h in (0, 2): A(pk("add", ac + h, v(ac + h, 2), v(FB[1][0], 2)))
    for fa in range(7):
        ac = acc[fa][0]; pr = FA[0][fa]; z = zr[fa]
        A(f"s_waitcnt lgkmcnt({6 - fa})")
        for h in range(2):
            A(f"v_lshlrev_b32 {v(z+2)}, 16, {v(z+h)}")
            A(f"v_and_b32 {v(z+3)}, s34, {v(z+h)}")
            A(pk("mul", ac + 2*h, v(ac + 2*h, 2), v(z + 2, 2)))
            A(f"v_cvt_pk_bf16_f32 {v(pr+h)}, {v(ac+2*h)}, {v(ac+2*h+1)}")
        A(f"ds_write_b64 {v(vz1)}, {v(pr,2)} offset:{fa*32}")
    A("s_waitcnt lgkmcnt(0)")
    ob = [FA[1][j] for j in range(4)]
    for j in range(4): A(f"ds_read_b128 {v(ob[j],4)}, {v(vrb)} offset:{j*1024}")
    for j in range(3):
        A(f"s_waitcnt lgkmcnt({3-j})")
        A(f"global_store_dwordx4 {v(vz+j)}, {v(ob[j],4)}, s[4:5]")
    A("s_waitcnt lgkmcnt(0)")
    A("s_mov_b32 exec_hi, 0")
    A(f"global_store_dwordx4 {v(vz+3)}, {v(ob[3],4)}, s[4:5]")
    if stamps:
        A("s_mov_b32 exec_hi, -1")
        ST.stamp(); A("s_waitcnt vmcnt(0)"); ST.stamp(); ST.flush(4, vt[0])
    A("s_endpgm")
    nv = R.hi
    A.label(f"{name}_loader")
    R = RegAlloc(20 if ln3 else 2)
    vo = [R.alloc() for _ in range(6)]; vz1 = [R.alloc() for _ in range(4)]
    vl = R.alloc(); t0 = R.alloc(); t1 = R.alloc(); t2 = R.alloc(); t3 = R.alloc()
    sLw, sK1, sL1, sL2 = 28, 29, 31, 32
    SR1, SR2 = 36, 40
    A(f"s_sub_u32 {s(sLw)}, {s(sW)}, 4")
    A(f"v_and_b32 {v(vl)}, 63, v0")
    A(f"v_lshrrev_b32 {v(t0)}, 3, {v(vl)}")
    A(f"v_and_b32 {v(t1)}, 7, {v(vl)}")
    A(f"v_xor_b32 {v(t1)}, {v(t1)}, {v(t0)}")
    A(f"v_lshlrev_b32 {v(t1)}, 4, {v(t1)}")
    A(f"v_lshl_add_u32 {v(t0)}, {v(t0)}, 12, {v(t1)}")
    A(f"s_lshl_b32 {s(sT0)}, {s(sLw)}, 3")
    A(f"s_mov_b32 {s(sT1)}, 0x060c0600")
    A(f"s_lshr_b32 {s(sT1)}, {s(sT1)}, {s(sT0)}")
    A(f"s_and_b32 {s(sT1)}, {s(sT1)}, 0xff")
    A(f"s_mov_b32 {s(sT2)}, 0x03000903")
    A(f"s_lshr_b32 {s(sT2)}, {s(sT2)}, {s(sT0)}")
    A(f"s_and_b32 {s(sT2)}, {s(sT2)}, 0xff")
    STEP = 8 * 4096 - 1024
    A(f"s_lshl_b32 {s(sT0)}, {s(sT1)}, 15")
    A(f"v_add_u32 {v(vo[0])}, {s(sT0)}, {v(t0)}")
    A(f"s_lshl_b32 {s(sT0)}, {s(sT2)}, 15")
    A(f"v_add_u32 {v(vo[3])}, {s(sT0)}, {v(t0)}")
    for k in (1, 2):
        A(f"v_add_u32 {v(vo[k])}, {k*STEP}, {v(vo[0])}")
        A(f"v_add_u32 {v(vo[3+k])}, {k*STEP}, {v(vo[3])}")
    A(f"s_lshl_b32 {s(sL1)}, {s(sT1)}, 10")
    A(f"s_lshl_b32 {s(sL2)}, {s(sT2)}, 10")
    A(f"s_cmp_eq_u32 {s(sLw)}, 3")
    A(f"s_cselect_b32 {s(sT0)}, {B_OFF}, 0")
    A(f"s_add_u32 {s(sL1)}, {s(sL1)}, {s(sT0)}")
    A(f"s_cmp_ge_u32 {s(sLw)}, 2")
    A(f"s_cselect_b32 {s(sT0)}, {B_OFF}, 0")
    A(f"s_add_u32 {s(sL2)}, {s(sL2)}, {s(sT0)}")
    A("s_waitcnt lgkmcnt(0)")
    A(f"s_mul_i32 {s(sT0)}, {s(sFB)}, {TF*4096}")
    A(f"s_add_u32 {s(sT0)}, {s(sT0)}, {WS_Z2T}")
    A(f"s_add_u32 s44, s4, {s(sT0)}")
    A(f"s_addc_u32 s45, s5, 0")
    A(f"s_lshl_b32 {s(sT0)}, {s(sTB)}, 18")
    A(f"s_add_u32 s46, s8, {s(sT0)}")
    A(f"s_addc_u32 s47, s9, 0")
    A(f"s_cmp_eq_u32 {s(sLw)}, 3")
    A(f"s_cselect_b32 {s(SR1)}, s46, s44")
    A(f"s_cselect_b32 {s(SR1+1)}, s47, s45")
    A(f"s_mov_b32 {s(SR1+2)}, {TF*4096}")
    A(f"s_mov_b32 {s(SR1+3)}, 0x20000")
    A(f"s_cmp_ge_u32 {s(sLw)}, 2")
    A(f"s_cselect_b32 {s(SR2)}, s46, s44")
    A(f"s_cselect_b32 {s(SR2+1)}, s47, s45")
    A(f"s_mov_b32 {s(SR2+2)}, {TF*4096}")
    A(f"s_mov_b32 {s(SR2+3)}, 0x20000")
    A(f"s_mov_b32 {s(sK1)}, 0")
    A(f"s_mov_b32 {s(sSlot)}, 0")
    A(f"s_cbranch_scc1 {name}_ldY")
    def path(tag, n1):
        n = n1 + 3
        def issue():
            A(f"s_add_u32 m0, {s(sSlot)}, {s(sL1)}")
            A(f"s_add_u32 {s(sT0)}, {s(sSlot)}, {s(sL2)}")
            for k in range(n1): A(f"buffer_load_dwordx4 {v(vo[k])}, {s(SR1,4)}, {s(sK1)} offen offset:{k*1024} lds")
            A(f"s_mov_b32 m0, {s(sT0)}")
            A(f"s_add_u32 {s(sSlot)}, {s(sSlot)}, {STAGE}")
            for k in range(3): A(f"buffer_load_dwordx4 {v(vo[3+k])}, {s(SR2,4)}, {s(sK1)} offen offset:{k*1024} lds")
            A(f"s_add_u32 {s(sK1)}, {s(sK1)}, 128")
            A(f"s_cmp_ge_u32 {s(sSlot)}, {RING}")
            A(f"s_cselect_b32 {s(sSlot)}, 0, {s(sSlot)}")
        if ln3:
            A("global_load_dwordx4 v[8:11], v1, s[4:5]")
            A("global_load_dwordx4 v[12:15], v1, s[4:5] offset:16")
        issue(); issue()
        table_build(2 * n)
        for st in range(2, NS): issue()
        for j in range(4):
            A(f"v_add_u32 {v(t1)}, {64*j}, {v(vl)}")
            div14(A, t2, t3, t1, vz1[j])
            A(f"v_mul_u32_u24 {v(t2)}, 1792, {v(t2)}")
            A(f"v_lshl_add_u32 {v(vz1[j])}, {v(t3)}, 4, {v(t2)}")
            if j: A(f"v_subrev_u32 {v(vz1[j])}, {j*1024}, {v(vz1[j])}")
        A(f"s_waitcnt vmcnt({(NS-1)*n})")
        A("s_barrier")
        nsteady = NST - NS
        A(f"s_mov_b32 {s(sI)}, 0")
        lp = f"{name}_lloop{tag}"
        A.label(lp)
        A(f"s_waitcnt vmcnt({(NS-2)*n})")
        A("s_barrier")
        issue()
        A(f"s_add_u32 {s(sI)}, {s(sI)}, 1")
        A(f"s_cmp_lt_u32 {s(sI)}, {nsteady}")
        A(f"s_cbranch_scc1 {lp}")
        A(f"s_lshl2_add_u32 {s(sT0)}, {s(sTB)}, {s(sLw)}")
        A(f"s_mul_i32 {s(sT0)}, {s(sT0)}, {16*1792}")
        A(f"s_mul_i32 {s(sT1)}, {s(sFB)}, 224")
        A(f"s_add_u32 {s(sT0)}, {s(sT0)}, {s(sT1)}")
        A(f"s_add_u32 {s(sT0)}, {s(sT0)}, {WS_Z1}")
        A(f"s_mov_b32 s6, {WS_Z1 + S*FH*2}"); A("s_mov_b32 s7, 0x20000")
        A(f"s_mul_i32 {s(sT1)}, {s(sLw)}, {16*224}")
        A(f"s_waitcnt vmcnt({(NS-2)*n})")
        A("s_barrier")
        A(f"s_add_u32 m0, {s(sT1)}, {Z_OFF}")
        for j in range(3): A(f"buffer_load_dwordx4 {v(vz1[j])}, s[4:7], {s(sT0)} offen offset:{j*1024} lds")
        A("s_mov_b32 exec_hi, 0")
        A(f"buffer_load_dwordx4 {v(vz1[3])}, s[4:7], {s(sT0)} offen offset:3072 lds")
        A("s_mov_b32 exec_hi, -1")
        nx = 4
        if prefetch:
            A(f"s_lshr_b32 {s(sT0)}, s2, 3")
            A(f"s_lshl2_add_u32 {s(sT0)}, {s(sT0)}, {s(sLw)}")
            A(f"v_lshl_add_u32 {v(t1)}, {s(sT0)}, 6, {v(vl)}")
            A(f"v_lshrrev_b32 {v(t2)}, 2, {v(t1)}")
            A(f"v_and_b32 {v(t1)}, 3, {v(t1)}")
            A(f"v_lshlrev_b32 {v(t2)}, 10, {v(t2)}")
            A(f"v_lshl_add_u32 {v(t2)}, {v(t1)}, 7, {v(t2)}")
            A(f"s_and_b32 {s(sT0)}, s2, 1")
            A(f"s_lshl_b32 {s(sT0)}, {s(sT0)}, 9")
            A(f"s_mov_b32 s18, {FH*D*2}"); A("s_mov_b32 s19, 0x20000")
            A(f"buffer_load_dword {v(t3)}, {v(t2)}, s[16:19], {s(sT0)} offen")
            nx = 5
        for j in range(NST - NS + 2, NST):
            A(f"s_waitcnt vmcnt({min(NS-2, NST-1-j)*n + nx})")
            A("s_barrier")
        A(f"s_waitcnt vmcnt({nx-4})")
        A("s_barrier")
        A("s_endpgm")
    path("X", 3)
    A.label(f"{name}_ldY")
    path("Y", 2)
    A.label(f"{name}_end")
    A("s_endpgm")
    return dict(name=name, grid=NWG, block=512, lds=LDS, vgpr=max(nv, R.hi), sgpr=96 if stamps else 56)

gen_ko = gen_ko2
```

```python
import sys
from build4 import assemble2
from g7a import gen_ka, gen_kb
from g5b import gen_kz, gen_kg, gen_ko
def make(path, st=False, pf=True, launches=None, kzpf=False, **kw):
    gens = [lambda A: gen_ka(A, stamps=st, prefetch=pf), lambda A: gen_kb(A, stamps=st, prefetch=pf), lambda A: gen_kz(A, stamps=st, prefetch=kzpf),
            lambda A: gen_kg(A, stamps=st, prefetch=pf), lambda A: gen_ko(A, stamps=st)]
    open(path, "w").write(assemble2(gens, launches))
if __name__ == "__main__":
    make(sys.argv[1], "-s" in sys.argv, "-nopf" not in sys.argv, kzpf="-kzpf" in sys.argv)
```

```python
from asmgen import *
S, D, FH = 2048, 512, 896
KA = dict(x=0, sre=8, sim=16, hre=24, him=32, bx=40, win=48, wsp=56, bsp=64, wout=72, c=80, wmod=88, out=96, dbg=104, ws=112)
MB = 1 << 20
WS_MOD = 0
WS_STAT = 0x10000
WS_T = 4 * MB
WS_X1 = 8 * MB
WS_H2 = 12 * MB
WS_Z1 = 16 * MB
WS_Z2T = 20 * MB
WS_P0 = 24 * MB
WS_P1 = 28 * MB

def load_ptr(A, sreg, name):
    A(f"s_load_dwordx2 {s(sreg,2)}, s[0:1], {KA[name]}")

def make_srd(A, sd, sp, nbytes, off=None, off_s=None):
    if off is None and off_s is None:
        A(f"s_mov_b32 {s(sd)}, {s(sp)}")
        A(f"s_and_b32 {s(sd+1)}, {s(sp+1)}, 0xffff")
    else:
        first = True
        if off is not None:
            A(f"s_add_u32 {s(sd)}, {s(sp)}, {off}")
            A(f"s_addc_u32 {s(sd+1)}, {s(sp+1)}, 0")
            first = False
        if off_s is not None:
            src = sp if first else sd
            A(f"s_add_u32 {s(sd)}, {s(src)}, {s(off_s)}")
            A(f"s_addc_u32 {s(sd+1)}, {s(src+1)}, 0")
        A(f"s_and_b32 {s(sd+1)}, {s(sd+1)}, 0xffff")
    A(f"s_mov_b32 {s(sd+2)}, {nbytes}")
    A(f"s_mov_b32 {s(sd+3)}, 0x20000")

WS_STAMP = 64 * MB
class Stamps:
    def __init__(self, A, base=70, on=True, kidx=0): self.A = A; self.base = base; self.n = 0; self.on = on; self.kidx = kidx
    def cstamp(self):
        if not self.on: return
        self.A(f"s_memtime {s(self.base + 2*self.n, 2)}"); self.A("s_waitcnt lgkmcnt(0)"); self.n += 1
    def stamp(self):
        if not self.on: return
        self.A(f"s_memrealtime {s(self.base + 2*self.n, 2)}"); self.A("s_waitcnt lgkmcnt(0)"); self.n += 1
    def flush(self, ws_pair, vtmp, srd=40, slot=0):
        if not self.on: return
        A = self.A
        A("s_waitcnt lgkmcnt(0)")
        lab = A.newlabel("Lst")
        A("s_cmp_lg_u32 s20, 0")
        A(f"s_cbranch_scc1 {lab}")
        make_srd(A, srd, ws_pair, 1 << 20, off=WS_STAMP + self.kidx * (1 << 20))
        A(f"s_lshl_b32 s3, s2, 8")
        A(f"s_add_u32 s3, s3, {slot*128}")
        A(f"v_mov_b32 {v(vtmp)}, s3")
        for k in range(self.n):
            A(f"v_mov_b32 {v(vtmp+2)}, {s(self.base+2*k)}")
            A(f"v_mov_b32 {v(vtmp+3)}, {s(self.base+2*k+1)}")
            A(f"buffer_store_dwordx2 {v(vtmp+2,2)}, {v(vtmp)}, {s(srd,4)}, 0 offen offset:{k*8}")
            A("s_nop 1")
        A.label(lab)

class Ticks:
    def __init__(self, A, on, base=44): self.A = A; self.on = on; self.base = base; self.n = 0
    def tick(self):
        if self.on: self.A(f"s_memtime {s(self.base + 2*self.n, 2)}"); self.n += 1
    def flush(self, ws_pair, vtmp, swave):
        if not self.on: return
        A = self.A
        A("s_waitcnt lgkmcnt(0)")
        A(f"s_lshl_b32 s3, s2, 3"); A(f"s_add_u32 s3, s3, {s(swave)}"); A("s_lshl_b32 s3, s3, 7")
        A(f"s_add_u32 s3, s3, {WS_STAMP + 6*(1<<20)}")
        A(f"v_mov_b32 {v(vtmp)}, s3")
        for k in range(self.n):
            A(f"v_mov_b32 {v(vtmp+2)}, {s(self.base+2*k)}"); A(f"v_mov_b32 {v(vtmp+3)}, {s(self.base+2*k+1)}")
            A(f"global_store_dwordx2 {v(vtmp)}, {v(vtmp+2,2)}, {s(ws_pair,2)} offset:{k*8}"); A("s_nop 1")
```

```python
from common import *
from gemm_util import fhex
from tables import TAB_OFF
from g2a import getpc_sym, wave_sum
NMOD = 96

def gen_ka(A, name="ka_kernel", stamps=False, prefetch=True):
    NFFT = 128; NPF = 32 if prefetch else 0; NWG = NFFT + NMOD + NPF
    A.barrier_state(); A.raw(kernel_header(name))
    ST = Stamps(A, on=stamps, kidx=0)
    A(f"s_cmp_ge_u32 s2, {NWG}")
    A(f"s_cbranch_scc1 {name}_end")
    ST.stamp()
    A(f"s_cmp_ge_u32 s2, {NFFT}")
    A(f"s_cbranch_scc1 {name}_mod")
    load_ptr(A, 4, "x"); load_ptr(A, 6, "ws")
    getpc_sym(A, 8, "fft_tables")
    A("s_and_b32 s10, s2, 7")
    A("s_bfe_u32 s11, s2, 0x20003")
    A("s_lshl2_add_u32 s10, s10, s11")
    A("s_lshl_b32 s10, s10, 10")
    A("s_lshr_b32 s11, s2, 5")
    A("s_lshl_b32 s11, s11, 8")
    R = RegAlloc(1)
    voff = R.alloc(); vown = R.alloc(); vf = R.alloc(); vi = R.alloc(); vq = R.alloc(); vt0 = R.alloc(); vt1 = R.alloc()
    vS = R.alloc(); vQ = R.alloc(); vtr = R.alloc(); vst = R.alloc()
    xr = [R.alloc(4) for _ in range(8)]; xo = [R.alloc(4) for _ in range(2)]
    Ff = [[R.alloc(4) for _ in range(2)] for _ in range(2)]
    Af = [[R.alloc(4) for _ in range(2)] for _ in range(2)]
    acc = [[R.alloc(4) for _ in range(2)] for _ in range(2)]
    tmp = R.alloc(16, 4)
    A(f"v_lshrrev_b32 {v(vt0)}, 3, v0")
    A(f"v_and_b32 {v(vt1)}, 7, v0")
    A(f"v_lshlrev_b32 {v(vt0)}, 15, {v(vt0)}")
    A(f"v_lshl_add_u32 {v(voff)}, {v(vt1)}, 4, {v(vt0)}")
    A(f"v_add_u32 {v(voff)}, s10, {v(voff)}")
    A(f"v_add_u32 {v(vown)}, s11, {v(voff)}")
    A(f"v_and_b32 {v(vi)}, 15, v0")
    A(f"v_bfe_u32 {v(vq)}, v0, 4, 2")
    A(f"v_lshrrev_b32 {v(vt0)}, 8, v0")
    A(f"v_lshlrev_b32 {v(vf)}, 12, {v(vt0)}")
    A(f"v_lshl_add_u32 {v(vf)}, {v(vi)}, 7, {v(vf)}")
    A(f"v_lshl_add_u32 {v(vf)}, {v(vq)}, 4, {v(vf)}")
    A("s_waitcnt lgkmcnt(0)")
    for it in range(8):
        A(f"global_load_dwordx4 {v(xr[it],4)}, {v(voff)}, s[4:5] offset:{it*128}")
    for h in range(2): A(f"global_load_dwordx4 {v(xo[h],4)}, {v(vown)}, s[4:5] offset:{h*128}")
    for nt in range(2):
        for ks in range(2):
            A(f"global_load_dwordx4 {v(Ff[nt][ks],4)}, {v(vf)}, s[8:9] offset:{TAB_OFF['tab_f64'] + nt*2048 + ks*64}")
    A(f"v_lshlrev_b32 {v(vst)}, 20, {v(vt0)}")
    A(f"v_lshl_add_u32 {v(vst)}, {v(vi)}, 15, {v(vst)}")
    A(f"v_bfe_u32 {v(vt0)}, v0, 6, 2")
    A(f"v_lshl_add_u32 {v(vst)}, {v(vt0)}, 5, {v(vst)}")
    A(f"v_lshl_add_u32 {v(vst)}, {v(vq)}, 3, {v(vst)}")
    A("s_add_u32 s10, s10, s11")
    A(f"s_add_u32 s10, s10, {WS_T}")
    A(f"v_add_u32 {v(vst)}, s10, {v(vst)}")
    A(f"v_lshrrev_b32 {v(vt1)}, 2, {v(vi)}")
    A(f"v_lshl_add_u32 {v(vt1)}, {v(vq)}, 3, {v(vt1)}")
    A(f"v_lshlrev_b32 {v(vtr)}, 7, {v(vt1)}")
    A(f"v_lshl_add_u32 {v(vtr)}, {v(vt0)}, 5, {v(vtr)}")
    A(f"v_and_b32 {v(vt1)}, 3, {v(vi)}")
    A(f"v_lshl_add_u32 {v(vtr)}, {v(vt1)}, 3, {v(vtr)}")
    A(f"v_mov_b32 {v(vS)}, 0")
    A(f"v_mov_b32 {v(vQ)}, 0")
    A("s_mov_b32 s12, 0x3f803f80")
    for it in range(8):
        A(f"s_waitcnt vmcnt({7 - it + 2 + 4})")
        for j in range(4):
            A(f"v_dot2_f32_bf16 {v(vS)}, {v(xr[it]+j)}, s12, {v(vS)}")
            A(f"v_dot2_f32_bf16 {v(vQ)}, {v(xr[it]+j)}, {v(xr[it]+j)}, {v(vQ)}")
    ST.stamp()
    A("s_mov_b32 s12, 0xffff0000")
    A("s_waitcnt vmcnt(4)")
    for h in range(2):
        for j in range(4):
            A(f"v_lshlrev_b32 {v(tmp+8*h+2*j)}, 16, {v(xo[h]+j)}")
            A(f"v_and_b32 {v(tmp+8*h+2*j+1)}, s12, {v(xo[h]+j)}")
    for mode in ("quad_perm:[1,0,3,2]", "quad_perm:[2,3,0,1]", "row_half_mirror"):
        A(f"v_add_f32_dpp {v(vS)}, {v(vS)}, {v(vS)} {mode} row_mask:0xf bank_mask:0xf")
        A(f"v_add_f32_dpp {v(vQ)}, {v(vQ)}, {v(vQ)} {mode} row_mask:0xf bank_mask:0xf")
    A(f"v_mul_f32 {v(vS)}, 0x3b000000, {v(vS)}")
    A(f"v_mul_f32 {v(vQ)}, 0x3b000000, {v(vQ)}")
    A(f"v_fma_f32 {v(vQ)}, -{v(vS)}, {v(vS)}, {v(vQ)}")
    A(f"v_max_f32 {v(vQ)}, 0, {v(vQ)}")
    A(f"v_add_f32 {v(vQ)}, 0x3727c5ac, {v(vQ)}")
    A(f"v_rsq_f32 {v(vQ)}, {v(vQ)}")
    A(f"v_lshlrev_b32 {v(vt0)}, 4, v0")
    A(f"v_mul_f32 {v(vS)}, {v(vS)}, {v(vQ)}")
    for j in range(16): A(f"v_fma_f32 {v(tmp+j)}, {v(tmp+j)}, {v(vQ)}, -{v(vS)}")
    for h in range(2):
        for j in range(4): A(f"v_cvt_pk_bf16_f32 {v(xo[h]+j)}, {v(tmp+8*h+2*j)}, {v(tmp+8*h+2*j+1)}")
        A(f"ds_write_b128 {v(vt0)}, {v(xo[h],4)} offset:{h*8192}")
    A("s_waitcnt lgkmcnt(0)")
    A("s_barrier")
    for h in range(2):
        for ks in range(2):
            for p in range(2):
                A(f"ds_read_b64_tr_b16 {v(Af[h][ks]+2*p,2)}, {v(vtr)} offset:{h*8192 + ks*32*128 + p*4*128}")
    A(f"v_add_u32 {v(vt1)}, {16*32768}, {v(vst)}")
    A("s_waitcnt vmcnt(0)")
    for h in range(2):
        A(f"s_waitcnt lgkmcnt({4*(1-h)})")
        for ks in range(2):
            for nt in range(2):
                c = "0" if ks == 0 else v(acc[h][nt], 4)
                A(f"v_mfma_f32_16x16x32_bf16 {v(acc[h][nt],4)}, {v(Af[h][ks],4)}, {v(Ff[nt][ks],4)}, {c}")
    for h in range(2):
        for nt in range(2):
            k = h * 2 + nt
            A(f"v_cvt_pk_bf16_f32 {v(tmp+2*k)}, {v(acc[h][nt])}, {v(acc[h][nt]+1)}")
            A(f"v_cvt_pk_bf16_f32 {v(tmp+2*k+1)}, {v(acc[h][nt]+2)}, {v(acc[h][nt]+3)}")
            A(f"global_store_dwordx2 {v(vst if nt == 0 else vt1)}, {v(tmp+2*k,2)}, s[6:7] offset:{h*128}")
    if stamps:
        A("v_readfirstlane_b32 s20, v0"); A("s_lshr_b32 s20, s20, 6")
        ST.stamp(); A("s_waitcnt vmcnt(0)"); ST.stamp(); ST.flush(6, tmp)
    A("s_endpgm")
    nv = R.hi
    A.label(f"{name}_mod")
    if prefetch:
        A(f"s_cmp_ge_u32 s2, {NFFT+NMOD}")
        A(f"s_cbranch_scc1 {name}_pf")
    load_ptr(A, 4, "wmod"); load_ptr(A, 8, "c"); load_ptr(A, 6, "ws")
    A(f"s_sub_u32 s10, s2, {NFFT}")
    A("s_lshl_b32 s11, s10, 6")
    R = RegAlloc(1)
    vk = R.alloc(); vt0 = R.alloc(); vt1 = R.alloc(); vc = R.alloc()
    vo = [R.alloc() for _ in range(4)]
    wr = [R.alloc(4) for _ in range(4)]
    cv = [R.alloc() for _ in range(4)]; ch = [R.alloc() for _ in range(4)]
    ac = R.alloc(8, 4); rr = R.alloc(16, 4)
    A(f"v_and_b32 {v(vt0)}, 0x1c0, v0")
    A(f"v_bfe_u32 {v(vt1)}, v0, 2, 4")
    A(f"v_add_u32 {v(vk)}, {v(vt0)}, {v(vt1)}")
    A(f"v_and_b32 {v(vc)}, 3, v0")
    A(f"v_mul_u32_u24 {v(vo[0])}, 6144, {v(vk)}")
    A(f"v_lshl_add_u32 {v(vo[0])}, {v(vc)}, 4, {v(vo[0])}")
    A(f"v_add_u32 {v(vo[0])}, s11, {v(vo[0])}")
    for it in range(1, 4): A(f"v_add_u32 {v(vo[it])}, {it*16*6144}, {v(vo[0])}")
    A(f"v_lshlrev_b32 {v(vk)}, 1, {v(vk)}")
    A("s_waitcnt lgkmcnt(0)")
    for it in range(4): A(f"global_load_ushort {v(cv[it])}, {v(vk)}, s[8:9] offset:{it*32}")
    for it in range(4): A(f"global_load_dwordx4 {v(wr[it],4)}, {v(vo[it])}, s[4:5]")
    for j in range(8): A(f"v_mov_b32 {v(ac+j)}, 0")
    A("s_waitcnt vmcnt(4)")
    for it in range(4): A(f"v_lshlrev_b32 {v(cv[it])}, 16, {v(cv[it])}")
    for it in range(4): A(f"v_mul_f32 {v(ch[it])}, 0xbfb8aa3b, {v(cv[it])}")
    for it in range(4): A(f"v_exp_f32 {v(ch[it])}, {v(ch[it])}")
    for it in range(4): A(f"v_add_f32 {v(ch[it])}, 1.0, {v(ch[it])}")
    for it in range(4): A(f"v_rcp_f32 {v(ch[it])}, {v(ch[it])}")
    for it in range(4): A(f"v_mul_f32 {v(cv[it])}, {v(cv[it])}, {v(ch[it])}")
    for it in range(4): A(f"v_cvt_pk_bf16_f32 {v(cv[it])}, {v(cv[it])}, 0")
    for it in range(4): A(f"v_lshlrev_b32 {v(ch[it])}, 16, {v(cv[it])}")
    for it in range(4):
        A(f"s_waitcnt vmcnt({3-it})")
        for j in range(4):
            A(f"v_dot2_f32_bf16 {v(ac+2*j)}, {v(wr[it]+j)}, {v(cv[it])}, {v(ac+2*j)}")
            A(f"v_dot2_f32_bf16 {v(ac+2*j+1)}, {v(wr[it]+j)}, {v(ch[it])}, {v(ac+2*j+1)}")
    for rot in (4, 8):
        for j in range(8):
            A(f"v_add_f32_dpp {v(ac+j)}, {v(ac+j)}, {v(ac+j)} row_ror:{rot} row_mask:0xf bank_mask:0xf")
    A(f"v_lshrrev_b32 {v(vt0)}, 4, v0")
    A(f"v_lshlrev_b32 {v(vt0)}, 7, {v(vt0)}")
    A(f"v_lshl_add_u32 {v(vt0)}, {v(vc)}, 5, {v(vt0)}")
    A(f"ds_write_b128 {v(vt0)}, {v(ac,4)}")
    A(f"ds_write_b128 {v(vt0)}, {v(ac+4,4)} offset:16")
    if prefetch:
        lab = f"{name}_nocp"
        A("s_cmp_ge_u32 s10, 8")
        A(f"s_cbranch_scc1 {lab}")
        getpc_sym(A, 12, "code_begin")
        A(f"v_lshlrev_b32 {v(vt0)}, 7, v0")
        A(f"v_mov_b32 {v(vt1)}, code_end-code_begin-4")
        A(f"v_min_u32 {v(vt0)}, {v(vt0)}, {v(vt1)}")
        A(f"v_and_b32 {v(vt0)}, -4, {v(vt0)}")
        A(f"global_load_dword {v(vk)}, {v(vt0)}, s[12:13]")
        A.label(lab)
    A("v_readfirstlane_b32 s20, v0")
    A("s_waitcnt lgkmcnt(0)")
    A("s_barrier")
    A("s_cmp_ge_u32 s20, 64")
    A(f"s_cbranch_scc1 {name}_end")
    A(f"v_and_b32 {v(vt1)}, 31, v0")
    A(f"v_lshrrev_b32 {v(vt0)}, 5, v0")
    A(f"v_lshlrev_b32 {v(vt0)}, 11, {v(vt0)}")
    A(f"v_lshl_add_u32 {v(vt0)}, {v(vt1)}, 2, {v(vt0)}")
    for p in range(0, 16, 2): A(f"ds_read2_b32 {v(rr+p,2)}, {v(vt0)} offset0:{p*32} offset1:{(p+1)*32}") if (p+1)*32 < 256 else \
        (A(f"ds_read_b32 {v(rr+p)}, {v(vt0)} offset:{p*128}"), A(f"ds_read_b32 {v(rr+p+1)}, {v(vt0)} offset:{(p+1)*128}"))
    A("s_lshr_b32 s11, s10, 4")
    A("s_cmp_eq_u32 s11, 1")
    A("s_cselect_b32 s12, 1.0, 0")
    A("s_cmp_eq_u32 s11, 4")
    A("s_cselect_b32 s12, 1.0, s12")
    A("s_lshl_b32 s11, s10, 7")
    if WS_MOD: A(f"s_add_u32 s11, s11, {WS_MOD}")
    A(f"v_lshl_add_u32 {v(vt1)}, {v(vt1)}, 2, s11")
    A("s_waitcnt lgkmcnt(0)")
    for st_ in (8, 4, 2, 1):
        for p in range(st_): A(f"v_add_f32 {v(rr+p)}, {v(rr+p)}, {v(rr+p+st_)}")
    A(f"v_mov_b32 {v(rr+1)}, {v(rr)}")
    A(f"v_permlane32_swap_b32 {v(rr)}, {v(rr+1)}")
    A(f"v_add_f32 {v(rr)}, {v(rr)}, {v(rr+1)}")
    A(f"v_cvt_pk_bf16_f32 {v(rr)}, {v(rr)}, {v(rr)}")
    A(f"v_lshlrev_b32 {v(rr)}, 16, {v(rr)}")
    A(f"v_add_f32 {v(rr)}, s12, {v(rr)}")
    A(f"v_cvt_pk_bf16_f32 {v(rr)}, {v(rr)}, {v(rr)}")
    A(f"v_lshlrev_b32 {v(rr)}, 16, {v(rr)}")
    A(f"global_store_dword {v(vt1)}, {v(rr)}, s[6:7]")
    if stamps:
        A("s_mov_b32 s20, 0"); ST.n = 1; ST.stamp(); ST.stamp(); A("s_waitcnt vmcnt(0)"); ST.stamp(); ST.flush(6, ac)
    A("s_endpgm")
    if prefetch:
        A.label(f"{name}_pf")
        load_ptr(A, 4, "win")
        A(f"s_sub_u32 s10, s2, {NFFT+NMOD}")
        A("s_lshr_b32 s10, s10, 3")
        A("s_mul_i32 s10, s10, 1792")
        A("s_and_b32 s11, s2, 1")
        A("s_mul_i32 s11, s11, 896")
        A("v_add_u32 v1, s10, v0")
        A("v_mov_b32 v6, 896")
        A("s_waitcnt lgkmcnt(0)")
        for it in range(4):
            if it == 3:
                A("v_cmp_gt_u32 vcc, 256, v0")
                A("s_and_b64 exec, exec, vcc")
                A(f"s_cbranch_execz {name}_end")
            A("v_mul_u32_u24 v2, 9363, v1")
            A("v_lshrrev_b32 v2, 17, v2")
            A("v_mul_u32_u24 v3, 14, v2")
            A("v_sub_u32 v3, v1, v3")
            A("v_mul_u32_u24 v2, 3584, v2")
            A("v_lshl_add_u32 v2, v3, 7, v2")
            A("v_cmp_lt_u32 vcc, 6, v3")
            A("v_cndmask_b32 v3, 0, v6, vcc")
            A("v_add3_u32 v2, v2, v3, s11")
            A(f"global_load_dword v{8+it}, v2, s[4:5]")
            if it < 3: A("v_add_u32 v1, 512, v1")
        assert (NFFT + NMOD) % 8 == 0
    A.label(f"{name}_end")
    A("s_endpgm")
    return dict(name=name, grid=NWG, block=512, lds=16384, vgpr=max(nv, R.hi), sgpr=96 if stamps else 32)

def gen_kb(A, name="kb_kernel", stamps=False, prefetch=True, sentinel=True, ticks=False):
    NW = 132; NPF = 4; NWG = NW + NPF
    TS = 1056; V_OFF = 64 * TS; VS = 80; US = 144; YS = 2064
    U_OFF = 0; Y_OFF = 20480
    LDS = V_OFF + 256 * VS
    A.barrier_state(); A.raw(kernel_header(name))
    ST = Stamps(A, on=stamps, kidx=1)
    TK = Ticks(A, ticks)
    sW, sC, sG, sT0, sT1, sT2, sRow, sMir, sRow2 = 20, 21, 22, 23, 24, 25, 26, 27, 28
    SRD_T = 16
    A(f"s_cmp_ge_u32 s2, {NW}")
    A(f"s_cbranch_scc1 {name}_pf")
    ST.stamp()
    TK.tick()
    load_ptr(A, 16, "ws"); load_ptr(A, 4, "x"); load_ptr(A, 6, "sre"); load_ptr(A, 8, "sim")
    getpc_sym(A, 10, "fft_tables")
    A(f"v_readfirstlane_b32 {s(sW)}, v0")
    A(f"s_mov_b32 s18, {WS_T + 2*MB}")
    A("s_mov_b32 s19, 0x20000")
    A(f"s_and_b32 {s(sT0)}, s2, 7")
    A(f"s_bfe_u32 {s(sG)}, s2, 0x20003")
    A(f"s_lshr_b32 {s(sT1)}, s2, 5")
    A(f"s_lshl3_add_u32 {s(sC)}, {s(sT1)}, {s(sT0)}")
    A(f"s_cmp_ge_u32 s2, 128")
    A(f"s_cselect_b32 {s(sC)}, 32, {s(sC)}")
    A(f"s_cselect_b32 {s(sG)}, {s(sT0)}, {s(sG)}")
    A(f"s_lshr_b32 {s(sW)}, {s(sW)}, 6")
    R = RegAlloc(1)
    vl = R.alloc(); vq = R.alloc(); vi = R.alloc(); vl16 = R.alloc()
    vtb = R.alloc(8, 4); vt = [vtb + k for k in range(8)]
    A0 = R.alloc(4); A1 = R.alloc(4)
    F1 = [R.alloc(4) for _ in range(2)]; F2 = [[R.alloc(4) for _ in range(2)] for _ in range(2)]
    tw = R.alloc(16, 4)
    opca = [R.alloc() for _ in range(4)]
    xrow = [R.alloc(4) for _ in range(2)]
    Bf = [[R.alloc(4) for _ in range(2)] for _ in range(4)]
    acc = [R.alloc(4) for _ in range(4)]
    ga = R.alloc(8, 4); sb = R.alloc(8, 4); ocb = R.alloc(8, 4)
    vaT = R.alloc(); vaVw = R.alloc(); vaVr = R.alloc(); vaUw = R.alloc(); vaUr = R.alloc(); vaYw = R.alloc()
    vrow = [R.alloc() for _ in range(2)]
    xf = R.alloc(8, 4); yy = R.alloc(8, 4)
    Rr, Ri = acc[0], acc[1]
    A(f"v_and_b32 {v(vl)}, 63, v0")
    A(f"v_lshlrev_b32 {v(vl16)}, 4, {v(vl)}")
    A(f"s_add_u32 {s(sT1)}, {s(sC)}, 32")
    A(f"s_and_b32 {s(sT2)}, {s(sC)}, 31")
    A(f"s_cselect_b32 {s(sMir)}, 1, 0")
    A(f"s_cselect_b32 {s(sT1)}, {s(sT1)}, 0x4000")
    A(f"s_cmp_ge_u32 {s(sW)}, 4")
    A(f"s_cselect_b32 {s(sT0)}, {s(sT1)}, {s(sC)}")
    A(f"s_lshl_b32 {s(sT0)}, {s(sT0)}, 15")
    A(f"s_and_b32 {s(sT1)}, {s(sW)}, 3")
    A(f"s_lshl_b32 {s(sT1)}, {s(sT1)}, 13")
    A(f"s_add_u32 {s(sT0)}, {s(sT0)}, {s(sT1)}")
    A(f"s_add_u32 {s(sT0)}, {s(sT0)}, {WS_T}")
    A(f"s_mul_i32 m0, {s(sW)}, {8*TS}")
    A(f"s_sub_u32 {s(sT0)}, {s(sT0)}, 128")
    A(f"v_and_b32 {v(vi)}, 15, v0")
    A(f"v_bfe_u32 {v(vq)}, v0, 4, 2")
    for j in range(4): A(f"v_add_u32 {v(vt[4+j])}, {128 - 32*j}, {v(vl16)}")
    A("s_waitcnt lgkmcnt(0)")
    for g in range(2):
        if g:
            A(f"s_add_u32 m0, m0, {4*TS}")
            A(f"s_add_u32 {s(sT0)}, {s(sT0)}, 4096")
        for j in range(4):
            A(f"buffer_load_dwordx4 {v(vt[4+j])}, {s(SRD_T,4)}, {s(sT0)} offen offset:{j*TS} lds")
    TK.tick()
    A(f"v_lshrrev_b32 {v(vt[0])}, 1, {v(vi)}")
    A(f"s_lshl_b32 {s(sT0)}, {s(sG)}, 21")
    A(f"s_lshl_b32 {s(sT1)}, {s(sC)}, 12")
    A(f"s_add_u32 {s(sT0)}, {s(sT0)}, {s(sT1)}")
    A(f"v_lshlrev_b32 {v(vt[0])}, 18, {v(vt[0])}")
    A(f"v_lshl_add_u32 {v(vt[0])}, {v(vq)}, 3, {v(vt[0])}")
    A(f"v_add_u32 {v(vt[0])}, {s(sT0)}, {v(vt[0])}")
    for reg, base in ((Rr, 6), (Ri, 8)):
        A(f"global_load_dwordx2 {v(reg,2)}, {v(vt[0])}, {s(base,2)}")
        A(f"global_load_dwordx2 {v(reg+2,2)}, {v(vt[0])}, {s(base,2)} offset:32")
    A(f"v_and_b32 {v(vt[2])}, 0x1cf, v0")
    A(f"v_lshlrev_b32 {v(vt[2])}, 2, {v(vt[2])}")
    if WS_MOD: A(f"v_add_u32 {v(vt[2])}, {WS_MOD}, {v(vt[2])}")
    for jt in range(4): A(f"global_load_dword {v(opca[jt])}, {v(vt[2])}, s[16:17] offset:{2048+jt*64}")
    A(f"v_add_u32 {v(vt[1])}, {TAB_OFF['tab_f1']}, {v(vl16)}")
    for mt in range(2): A(f"global_load_dwordx4 {v(F1[mt],4)}, {v(vt[1])}, s[10:11] offset:{mt*1024}")
    for nt in range(2):
        for ks in range(2): A(f"global_load_dwordx4 {v(F2[nt][ks],4)}, {v(vt[1])}, s[10:11] offset:{2048 + nt*2048 + ks*1024}") if 2048 + nt*2048 + ks*1024 < 4096 else None
    A(f"v_add_u32 {v(vt[1])}, 4096, {v(vt[1])}")
    for ks in range(2): A(f"global_load_dwordx4 {v(F2[1][ks],4)}, {v(vt[1])}, s[10:11] offset:{ks*1024}")
    assert TAB_OFF['tab_f2'] == TAB_OFF['tab_f1'] + 2048
    A(f"v_lshlrev_b32 {v(vt[1])}, 2, {v(vl16)}")
    A(f"v_add_u32 {v(vt[1])}, {TAB_OFF['tab_tw2']}, {v(vt[1])}")
    for h in range(4): A(f"global_load_dwordx4 {v(tw+4*h,4)}, {v(vt[1])}, s[10:11] offset:{h*16}")
    A(f"s_lshl3_add_u32 {s(sT0)}, {s(sG)}, {s(sW)}")
    A(f"s_lshl_b32 {s(sT0)}, {s(sT0)}, 6")
    A(f"s_add_u32 {s(sRow)}, {s(sT0)}, {s(sC)}")
    A(f"s_sub_u32 {s(sRow2)}, 2048, {s(sRow)}")
    A(f"s_and_b32 {s(sRow2)}, {s(sRow2)}, 2047")
    A(f"s_lshl_b32 {s(sRow)}, {s(sRow)}, 10")
    A(f"s_lshl_b32 {s(sRow2)}, {s(sRow2)}, 10")
    A(f"v_add_u32 {v(vrow[0])}, {s(sRow)}, {v(vl16)}")
    A(f"v_add_u32 {v(vrow[1])}, {s(sRow2)}, {v(vl16)}")
    for h in range(2): A(f"global_load_dwordx4 {v(xrow[h],4)}, {v(vrow[h])}, s[4:5]")
    A(f"v_lshlrev_b32 {v(vt[3])}, 1, {v(vl16)}")
    A(f"v_add_u32 {v(vt[3])}, {WS_MOD + 4096}, {v(vt[3])}")
    for reg, sec in ((ga, 0), (sb, 1)):
        A(f"global_load_dwordx4 {v(reg,4)}, {v(vt[3])}, s[16:17] offset:{sec*2048}")
        A(f"global_load_dwordx4 {v(reg+4,4)}, {v(vt[3])}, s[16:17] offset:{sec*2048+16}")
    A(f"v_add_u32 {v(vt[3])}, 4096, {v(vt[3])}")
    A(f"global_load_dwordx4 {v(ocb,4)}, {v(vt[3])}, s[16:17]")
    A(f"global_load_dwordx4 {v(ocb+4,4)}, {v(vt[3])}, s[16:17] offset:16")
    NLATE = 4 + 2 + 4 + 4 + 2 + 6
    NAFTER_OPCA = 2 + 4 + 4 + 2 + 6
    A(f"v_lshrrev_b32 {v(vt[0])}, 2, {v(vi)}")
    A(f"v_lshl_add_u32 {v(vt[0])}, {v(vq)}, 2, {v(vt[0])}")
    A(f"v_mul_u32_u24 {v(vaT)}, {TS}, {v(vt[0])}")
    A(f"v_and_b32 {v(vt[0])}, 3, {v(vi)}")
    A(f"v_lshl_add_u32 {v(vaT)}, {v(vt[0])}, 3, {v(vaT)}")
    A(f"v_and_b32 {v(vt[4])}, 0x1c0, v0")
    A(f"v_lshl_add_u32 {v(vaT)}, {v(vt[4])}, 1, {v(vaT)}")
    A(f"v_lshl_add_u32 {v(vt[0])}, {v(vq)}, 6, {v(vi)}")
    A(f"v_mul_u32_u24 {v(vaVw)}, {VS}, {v(vt[0])}")
    A(f"v_lshrrev_b32 {v(vt[0])}, 3, {v(vt[4])}")
    A(f"v_add3_u32 {v(vaVw)}, {v(vaVw)}, {v(vt[0])}, s[VV]".replace("s[VV]", s(sT2)))
    A.items.insert(len(A.items) - 1, ("i", Ins(f"s_mov_b32 {s(sT2)}, {V_OFF}")))
    A(f"v_lshrrev_b32 {v(vt[0])}, 1, {v(vt[4])}")
    A(f"v_add_u32 {v(vt[0])}, {v(vt[0])}, {v(vi)}")
    A(f"v_mul_u32_u24 {v(vaVr)}, {VS}, {v(vt[0])}")
    A(f"v_lshl_add_u32 {v(vaVr)}, {v(vq)}, 4, {v(vaVr)}")
    A(f"v_add_u32 {v(vaVr)}, {V_OFF}, {v(vaVr)}")
    A(f"v_lshrrev_b32 {v(vt[0])}, 2, {v(vt[4])}")
    A(f"v_lshl_add_u32 {v(vt[3])}, {v(vq)}, 1, {v(vt[0])}")
    A(f"v_mul_u32_u24 {v(vaUw)}, {US}, {v(vt[3])}")
    A(f"v_lshl_add_u32 {v(vaUw)}, {v(vi)}, 2, {v(vaUw)}")
    A(f"v_add_u32 {v(vt[3])}, {v(vt[0])}, {v(vi)}")
    A(f"v_mul_u32_u24 {v(vaUr)}, {US}, {v(vt[3])}")
    A(f"v_lshl_add_u32 {v(vaUr)}, {v(vq)}, 4, {v(vaUr)}")
    A(f"s_mul_i32 {s(sT1)}, {s(sW)}, {YS}")
    A(f"s_add_u32 {s(sT1)}, {s(sT1)}, {Y_OFF}")
    sY = 29
    A(f"s_mov_b32 {s(sY)}, {s(sT1)}")
    A(f"v_lshlrev_b32 {v(vaYw)}, 6, {v(vi)}")
    A(f"v_lshl_add_u32 {v(vaYw)}, {v(vq)}, 4, {v(vaYw)}")
    A(f"v_add_u32 {v(vaYw)}, {s(sY)}, {v(vaYw)}")
    A(f"v_and_b32 {v(vt[3])}, 1, v0")
    A(f"v_cmp_eq_u32 vcc, 1, {v(vt[3])}")
    A(f"s_mov_b32 {s(sT0)}, 0x80008000")
    TK.tick()
    A(f"s_waitcnt vmcnt({NLATE})")
    TK.tick()
    for j in range(4):
        A(f"v_xor_b32 {v(vt[0])}, {s(sT0)}, {v(Ri+j)}")
        A(f"v_cndmask_b32 {v(A0+j)}, {v(Rr+j)}, {v(Ri+j)}, vcc")
        A(f"v_cndmask_b32 {v(A1+j)}, {v(vt[0])}, {v(Rr+j)}, vcc")
    ST.stamp()
    A("s_barrier")
    TK.tick()
    for jt in range(4):
        for c in range(2):
            for p in range(2):
                A(f"ds_read_b64_tr_b16 {v(Bf[jt][c]+2*p,2)}, {v(vaT)} offset:{c*32*TS + p*16*TS + jt*32}")
    for jt in range(4):
        A(f"s_waitcnt lgkmcnt({(3-jt)*4})")
        A(f"v_mfma_f32_16x16x32_bf16 {v(acc[jt],4)}, {v(A0,4)}, {v(Bf[jt][0],4)}, 0")
        A(f"v_mfma_f32_16x16x32_bf16 {v(acc[jt],4)}, {v(A1,4)}, {v(Bf[jt][1],4)}, {v(acc[jt],4)}")
    TK.tick()
    A(f"s_waitcnt vmcnt({NAFTER_OPCA})")
    TK.tick()
    for jt in range(4):
        for r in range(4): A(f"v_mul_f32 {v(acc[jt]+r)}, {v(acc[jt]+r)}, {v(opca[jt])}")
    lab = f"{name}_nodc"
    A(f"s_or_b32 {s(sT0)}, {s(sC)}, {s(sG)}")
    A(f"s_cbranch_scc1 {lab}")
    A(f"v_and_b32 {v(vt[2])}, 0x1cf, v0")
    A(f"v_lshlrev_b32 {v(vt[2])}, 2, {v(vt[2])}")
    if WS_MOD: A(f"v_add_u32 {v(vt[2])}, {WS_MOD}, {v(vt[2])}")
    for jt in range(4): A(f"global_load_dword {v(Bf[0][0]+jt)}, {v(vt[2])}, s[16:17] offset:{jt*64}")
    A(f"v_cmp_eq_u32 vcc, 0, {v(vq)}")
    A(f"v_mov_b32 {v(vt[1])}, 0x45000000")
    A(f"v_cndmask_b32 {v(vt[1])}, 0, {v(vt[1])}, vcc")
    A("s_waitcnt vmcnt(0)")
    for jt in range(4): A(f"v_fmac_f32 {v(acc[jt])}, {v(Bf[0][0]+jt)}, {v(vt[1])}")
    A.label(lab)
    for jt in range(4):
        ac = acc[jt]
        A(f"v_cvt_pk_bf16_f32 {v(ac)}, {v(ac)}, {v(ac+1)}")
        A(f"v_cvt_pk_bf16_f32 {v(ac+1)}, {v(ac+2)}, {v(ac+3)}")
        o0 = (jt&1)*16*VS + (jt>>1)*4
        A(f"ds_write_b32 {v(vaVw)}, {v(ac)} offset:{o0}")
        A(f"ds_write_b32 {v(vaVw)}, {v(ac+1)} offset:{o0 + 32*VS}")
    A(f"s_mov_b32 {s(sT0)}, 0xffff0000")
    TK.tick()
    A("s_waitcnt lgkmcnt(0)")
    A("s_barrier")
    TK.tick()
    ST.stamp()
    for h in range(2): A(f"ds_read_b128 {v(Bf[h][0],4)}, {v(vaVr)} offset:{h*16*VS}")
    A("s_waitcnt vmcnt(8)")
    for h in range(2):
        A(f"s_waitcnt lgkmcnt({1-h})")
        for mt in range(2):
            A(f"v_mfma_f32_16x16x32_bf16 {v(acc[2*h+mt],4)}, {v(F1[mt],4)}, {v(Bf[h][0],4)}, 0")
    for h in range(2):
        for mt in range(2):
            for pp in range(2):
                re, im = acc[2*h+mt] + 2 * pp, acc[2*h+mt] + 2 * pp + 1
                k = ((h*2+mt)*2+pp)*2
                c_, s_ = tw + k, tw + k + 1
                t0, t1 = vt[4*pp], vt[4*pp+1]
                A(f"v_mul_f32 {v(t0)}, {v(re)}, {v(c_)}")
                A(f"v_mul_f32 {v(t1)}, {v(im)}, {v(c_)}")
                A(f"v_fma_f32 {v(t0)}, {v(im)}, {v(s_)}, {v(t0)}")
                A(f"v_fma_f32 {v(t1)}, -{v(re)}, {v(s_)}, {v(t1)}")
                A(f"v_cvt_pk_bf16_f32 {v(vt[4*pp+2])}, {v(t0)}, {v(t1)}")
                A(f"ds_write_b32 {v(vaUw)}, {v(vt[4*pp+2])} offset:{U_OFF + (8*mt+pp)*US + h*64}")
    A("s_waitcnt lgkmcnt(0)")
    TK.tick()
    for ks in range(2): A(f"ds_read_b128 {v(Bf[ks][0],4)}, {v(vaUr)} offset:{U_OFF + ks*64}")
    A("s_waitcnt vmcnt(0)")
    for h in range(2):
        for j in range(4):
            dst = xf if h == 0 else yy
    for j in range(4):
        A(f"v_lshlrev_b32 {v(xf+2*j)}, 16, {v(xrow[0]+j)}")
        A(f"v_and_b32 {v(xf+2*j+1)}, {s(sT0)}, {v(xrow[0]+j)}")
    for ks in range(2):
        A(f"s_waitcnt lgkmcnt({1-ks})")
        for nt in range(2):
            c = "0" if ks == 0 else v(acc[nt], 4)
            A(f"v_mfma_f32_16x16x32_bf16 {v(acc[nt],4)}, {v(Bf[ks][0],4)}, {v(F2[nt][ks],4)}, {c}")
    for nt in range(2): A(f"ds_write_b128 {v(vaYw)}, {v(acc[nt],4)} offset:{nt*1024}")
    A(f"v_lshl_add_u32 {v(vt[0])}, {v(vl16)}, 1, {s(sY)}")
    A(f"v_lshlrev_b32 {v(vt[2])}, 1, {v(vl16)}")
    A(f"v_sub_u32 {v(vt[1])}, 2048, {v(vt[2])}")
    A(f"v_and_b32 {v(vt[1])}, 2047, {v(vt[1])}")
    A(f"v_add_u32 {v(vt[1])}, {s(sY)}, {v(vt[1])}")
    A(f"s_add_u32 {s(sT1)}, {s(sY)}, {505*4}")
    A(f"v_sub_u32 {v(vt[2])}, {s(sT1)}, {v(vt[2])}")
    A("s_waitcnt lgkmcnt(0)")
    ST.stamp()
    y = Bf[2][0]; assert Bf[2][1] == y + 4
    y2 = Bf[3][0]; assert Bf[3][1] == y2 + 4
    A(f"ds_read_b128 {v(y,4)}, {v(vt[0])}")
    A(f"ds_read_b128 {v(y+4,4)}, {v(vt[0])} offset:16")
    A(f"ds_read_b32 {v(y2)}, {v(vt[1])}")
    A(f"ds_read_b32 {v(y2+1)}, {v(vt[2])} offset:24")
    for j in (2, 4, 6): A(f"ds_read2_b32 {v(y2+j,2)}, {v(vt[2])} offset0:{7-j} offset1:{6-j}")
    TK.tick()
    xg = [xf, yy]
    for j in range(4):
        A(f"v_lshlrev_b32 {v(yy+2*j)}, 16, {v(xrow[1]+j)}")
        A(f"v_and_b32 {v(yy+2*j+1)}, {s(sT0)}, {v(xrow[1]+j)}")
    A("s_waitcnt lgkmcnt(5)")
    for j in range(8): A(f"v_fma_f32 {v(xf+j)}, {v(ga+j)}, {v(y+j)}, {v(xf+j)}")
    A("s_waitcnt lgkmcnt(0)")
    for j in range(8): A(f"v_fma_f32 {v(yy+j)}, {v(ga+j)}, {v(y2+j)}, {v(yy+j)}")
    for r in range(2):
        for j in range(4): A(f"v_cvt_pk_bf16_f32 {v(xrow[r]+j)}, {v(xg[r]+2*j)}, {v(xg[r]+2*j+1)}")
    A(f"v_add_u32 {v(vt[2])}, {WS_X1}, {v(vrow[0])}")
    A(f"v_add_u32 {v(vt[3])}, {WS_X1}, {v(vrow[1])}")
    A(f"global_store_dwordx4 {v(vt[2])}, {v(xrow[0],4)}, s[16:17]")
    lab2 = f"{name}_nomir1"
    A(f"s_cmp_eq_u32 {s(sMir)}, 0")
    A(f"s_cbranch_scc1 {lab2}")
    A(f"global_store_dwordx4 {v(vt[3])}, {v(xrow[1],4)}, s[16:17]")
    A.label(lab2)
    for r in range(2):
        for j in range(4):
            A(f"v_lshlrev_b32 {v(xg[r]+2*j)}, 16, {v(xrow[r]+j)}")
            A(f"v_and_b32 {v(xg[r]+2*j+1)}, {s(sT0)}, {v(xrow[r]+j)}")
    S_ = [vt[0], vt[1]]; Q_ = [vt[4], vt[5]]
    for r in range(2):
        A(f"v_add_f32 {v(S_[r])}, {v(xg[r])}, {v(xg[r]+1)}")
        A(f"v_mul_f32 {v(Q_[r])}, {v(xg[r])}, {v(xg[r])}")
    for j in range(1, 8):
        for r in range(2):
            if j >= 2: A(f"v_add_f32 {v(S_[r])}, {v(S_[r])}, {v(xg[r]+j)}")
            A(f"v_fmac_f32 {v(Q_[r])}, {v(xg[r]+j)}, {v(xg[r]+j)}")
    chains = [S_[0], Q_[0], S_[1], Q_[1]]
    for mode, rm in (("quad_perm:[1,0,3,2]", "0xf"), ("quad_perm:[2,3,0,1]", "0xf"), ("row_half_mirror", "0xf"), ("row_mirror", "0xf"), ("row_bcast:15", "0xa"), ("row_bcast:31", "0xc")):
        for c_ in chains: A(f"v_add_f32_dpp {v(c_)}, {v(c_)}, {v(c_)} {mode} row_mask:{rm} bank_mask:0xf")
    for k, c_ in enumerate(chains): A(f"v_readlane_b32 {s(30+k)}, {v(c_)}, 63")
    A(f"v_mov_b32 {v(vt[6])}, 0x3b000000")
    for r in range(2):
        A(f"v_mul_f32 {v(S_[r])}, {s(30+2*r)}, {v(vt[6])}")
        A(f"v_mul_f32 {v(Q_[r])}, {s(31+2*r)}, {v(vt[6])}")
    for r in range(2): A(f"v_fma_f32 {v(Q_[r])}, -{v(S_[r])}, {v(S_[r])}, {v(Q_[r])}")
    for r in range(2): A(f"v_max_f32 {v(Q_[r])}, 0, {v(Q_[r])}")
    for r in range(2): A(f"v_add_f32 {v(Q_[r])}, 0x3727c5ac, {v(Q_[r])}")
    for r in range(2): A(f"v_rsq_f32 {v(Q_[r])}, {v(Q_[r])}")
    A(f"v_add_u32 {v(vt[2])}, {WS_H2}, {v(vrow[0])}")
    A(f"v_add_u32 {v(vt[3])}, {WS_H2}, {v(vrow[1])}")
    for r in range(2):
        for j in range(8): A(f"v_sub_f32 {v(xg[r]+j)}, {v(xg[r]+j)}, {v(S_[r])}")
    for r in range(2):
        for j in range(8): A(f"v_mul_f32 {v(xg[r]+j)}, {v(xg[r]+j)}, {v(Q_[r])}")
    for r in range(2):
        for j in range(8): A(f"v_fma_f32 {v(xg[r]+j)}, {v(xg[r]+j)}, {v(ocb+j)}, {v(sb+j)}")
    yo = [y, y2]
    for r in range(2):
        for j in range(4): A(f"v_cvt_pk_bf16_f32 {v(yo[r]+j)}, {v(xg[r]+2*j)}, {v(xg[r]+2*j+1)}")
    A(f"global_store_dwordx4 {v(vt[2])}, {v(y,4)}, s[16:17]")
    A(f"s_cmp_eq_u32 {s(sMir)}, 0")
    A(f"s_cbranch_scc1 {name}_fin")
    A(f"global_store_dwordx4 {v(vt[3])}, {v(y2,4)}, s[16:17]")
    A.label(f"{name}_fin")
    TK.tick()
    TK.flush(16, ga, sW)
    if stamps:
        ST.stamp(); A("s_waitcnt vmcnt(0)"); ST.stamp(); ST.flush(16, ga)
    A("s_endpgm")
    A.label(f"{name}_pf")
    A(f"s_cmp_ge_u32 s2, {NWG}")
    A(f"s_cbranch_scc1 {name}_end")
    A(f"s_cmp_ge_u32 s2, {NW+4}")
    if False: A(f"s_cbranch_scc1 {name}_pf2")
    load_ptr(A, 4, "ws")
    A(f"s_sub_u32 s10, s2, {NW}")
    A("s_lshl_b32 s10, s10, 16")
    A(f"s_add_u32 s10, s10, {WS_STAT}")
    A("v_lshl_add_u32 v1, v0, 4, s10")
    for j in range(4): A(f"v_mov_b32 v{4+j}, -1")
    A("s_waitcnt lgkmcnt(0)")
    for it in range(8):
        A("global_store_dwordx4 v1, v[4:7], s[4:5]")
        if it < 7: A("v_add_u32 v1, 8192, v1")
    A("s_endpgm")
    if False:
        A.label(f"{name}_pf2")
        load_ptr(A, 4, "wsp")
        A("s_bfe_u32 s10, s2, 0x20001")
        A("s_lshl_b32 s10, s10, 21")
        A(f"s_sub_u32 s11, s2, {NW+4}")
        A("s_lshr_b32 s11, s11, 3")
        A("s_lshl_b32 s11, s11, 17")
        A("s_add_u32 s10, s10, s11")
        A("v_lshl_add_u32 v1, v0, 7, s10")
        A("s_waitcnt lgkmcnt(0)")
        for it in range(2):
            A(f"global_load_dword v{8+it}, v1, s[4:5]")
            if it < 1: A("v_add_u32 v1, 0x10000, v1")
        assert (NW + 4) % 8 == 0
    A.label(f"{name}_end")
    A("s_endpgm")
    return dict(name=name, grid=NWG, block=512, lds=LDS, vgpr=R.hi, sgpr=96 if (stamps or ticks) else 40)
```

```python
from common import *
from gemm_util import fhex
from tables import TAB_OFF
from g2a import getpc_sym
NMOD = 96

def gen_ka(A, name="ka_kernel", stamps=False, prefetch=True):
    NFFT = 128; NPF = 32 if prefetch else 0; NWG = NFFT + NMOD + NPF
    F_L = 16384
    A.barrier_state(); A.raw(kernel_header(name))
    ST = Stamps(A, on=stamps, kidx=0)
    A(f"s_cmp_ge_u32 s2, {NWG}")
    A(f"s_cbranch_scc1 {name}_end")
    ST.stamp()
    A(f"s_cmp_ge_u32 s2, {NFFT}")
    A(f"s_cbranch_scc1 {name}_mod")
    load_ptr(A, 4, "x"); load_ptr(A, 6, "ws")
    getpc_sym(A, 8, "fft_tables")
    A("v_readfirstlane_b32 s20, v0")
    A("s_and_b32 s10, s2, 7")
    A("s_bfe_u32 s11, s2, 0x20003")
    A("s_lshl2_add_u32 s10, s10, s11")
    A("s_lshl_b32 s10, s10, 10")
    A("s_lshr_b32 s11, s2, 5")
    R = RegAlloc(1)
    voff = R.alloc(); vi = R.alloc(); vq = R.alloc(); vt0 = R.alloc(); vt1 = R.alloc()
    vS = R.alloc(); vQ = R.alloc(); vtr = R.alloc(); vst = R.alloc(); vl16 = R.alloc()
    xr = [R.alloc(4) for _ in range(8)]
    assert xr[7] == xr[0] + 28
    xo = R.alloc(8, 4)
    Ff = [[R.alloc(4) for _ in range(2)] for _ in range(2)]
    Af = [[R.alloc(4) for _ in range(2)] for _ in range(2)]
    acc = [[R.alloc(4) for _ in range(2)] for _ in range(2)]
    tmp = R.alloc(16, 4)
    A(f"v_lshrrev_b32 {v(vt0)}, 3, v0")
    A(f"v_and_b32 {v(vt1)}, 7, v0")
    A(f"v_lshlrev_b32 {v(vt0)}, 15, {v(vt0)}")
    A(f"v_lshl_add_u32 {v(voff)}, {v(vt1)}, 4, {v(vt0)}")
    A(f"v_add_u32 {v(voff)}, s10, {v(voff)}")
    A(f"v_lshlrev_b32 {v(vl16)}, 4, v0")
    A("s_lshr_b32 s20, s20, 6")
    A("s_lshl_b32 s12, s20, 10")
    A(f"s_add_u32 m0, s12, {F_L}")
    A("s_waitcnt lgkmcnt(0)")
    for it in range(8):
        A(f"global_load_dwordx4 {v(xr[it],4)}, {v(voff)}, s[4:5] offset:{it*128}")
    A(f"global_load_lds_dwordx4 {v(vl16)}, s[8:9] offset:{TAB_OFF['tab_f64']}")
    A(f"v_and_b32 {v(vi)}, 15, v0")
    A(f"v_bfe_u32 {v(vq)}, v0, 4, 2")
    A(f"v_lshrrev_b32 {v(vt0)}, 8, v0")
    A(f"v_lshlrev_b32 {v(vst)}, 20, {v(vt0)}")
    A(f"v_lshl_add_u32 {v(vst)}, {v(vi)}, 15, {v(vst)}")
    A(f"v_bfe_u32 {v(vt1)}, v0, 6, 2")
    A(f"v_lshl_add_u32 {v(vst)}, {v(vt1)}, 5, {v(vst)}")
    A(f"v_lshl_add_u32 {v(vst)}, {v(vq)}, 3, {v(vst)}")
    A("s_lshl_b32 s12, s11, 8")
    A("s_add_u32 s10, s10, s12")
    A(f"s_add_u32 s10, s10, {WS_T}")
    A(f"v_add_u32 {v(vst)}, s10, {v(vst)}")
    A(f"v_lshlrev_b32 {v(vtr)}, 5, {v(vt1)}")
    A(f"v_lshrrev_b32 {v(vt1)}, 2, {v(vi)}")
    A(f"v_lshl_add_u32 {v(vt1)}, {v(vq)}, 3, {v(vt1)}")
    A(f"v_lshl_add_u32 {v(vtr)}, {v(vt1)}, 7, {v(vtr)}")
    A(f"v_and_b32 {v(vt1)}, 3, {v(vi)}")
    A(f"v_lshl_add_u32 {v(vtr)}, {v(vt1)}, 3, {v(vtr)}")
    vfa = R.alloc()
    A(f"v_and_b32 {v(vfa)}, 63, v0")
    A(f"v_lshlrev_b32 {v(vfa)}, 4, {v(vfa)}")
    A(f"v_lshl_add_u32 {v(vfa)}, {v(vt0)}, 12, {v(vfa)}")
    A(f"v_mov_b32 {v(vS)}, 0")
    A(f"v_mov_b32 {v(vQ)}, 0")
    A("s_mov_b32 s12, 0x3f803f80")
    for it in range(8):
        A(f"s_waitcnt vmcnt({7 - it + 1})")
        for j in range(4):
            A(f"v_dot2_f32_bf16 {v(vS)}, {v(xr[it]+j)}, s12, {v(vS)}")
            A(f"v_dot2_f32_bf16 {v(vQ)}, {v(xr[it]+j)}, {v(xr[it]+j)}, {v(vQ)}")
    ST.stamp()
    A("s_lshl_b32 s13, s11, 3")
    A("s_mov_b32 s12, 0xffff0000")
    A("s_set_gpr_idx_on s13, gpr_idx(SRC0)")
    for j in range(8): A(f"v_mov_b32 {v(xo+j)}, {v(xr[0]+j)}")
    A("s_set_gpr_idx_off")
    for mode in ("quad_perm:[1,0,3,2]", "quad_perm:[2,3,0,1]", "row_half_mirror"):
        A(f"v_add_f32_dpp {v(vS)}, {v(vS)}, {v(vS)} {mode} row_mask:0xf bank_mask:0xf")
        A(f"v_add_f32_dpp {v(vQ)}, {v(vQ)}, {v(vQ)} {mode} row_mask:0xf bank_mask:0xf")
        A(f"v_lshlrev_b32 {v(tmp+0)}, 16, {v(xo+0)}") if mode.startswith("quad_perm:[1") else None
    for j in range(8):
        if j: A(f"v_lshlrev_b32 {v(tmp+2*j)}, 16, {v(xo+j)}")
        A(f"v_and_b32 {v(tmp+2*j+1)}, s12, {v(xo+j)}")
    A(f"v_mul_f32 {v(vS)}, 0x3b000000, {v(vS)}")
    A(f"v_mul_f32 {v(vQ)}, 0x3b000000, {v(vQ)}")
    A(f"v_fma_f32 {v(vQ)}, -{v(vS)}, {v(vS)}, {v(vQ)}")
    A(f"v_max_f32 {v(vQ)}, 0, {v(vQ)}")
    A(f"v_add_f32 {v(vQ)}, 0x3727c5ac, {v(vQ)}")
    A(f"v_rsq_f32 {v(vQ)}, {v(vQ)}")
    A(f"v_mul_f32 {v(vS)}, {v(vS)}, {v(vQ)}")
    for j in range(16): A(f"v_fma_f32 {v(tmp+j)}, {v(tmp+j)}, {v(vQ)}, -{v(vS)}")
    for h in range(2):
        for j in range(4): A(f"v_cvt_pk_bf16_f32 {v(xo+4*h+j)}, {v(tmp+8*h+2*j)}, {v(tmp+8*h+2*j+1)}")
        A(f"ds_write_b128 {v(vl16)}, {v(xo+4*h,4)} offset:{h*8192}")
    A("s_waitcnt vmcnt(0) lgkmcnt(0)")
    A("s_barrier")
    for h in range(2):
        for ks in range(2):
            for p in range(2):
                A(f"ds_read_b64_tr_b16 {v(Af[h][ks]+2*p,2)}, {v(vtr)} offset:{h*8192 + ks*32*128 + p*4*128}")
        if h == 0:
            for nt in range(2):
                for ks in range(2): A(f"ds_read_b128 {v(Ff[nt][ks],4)}, {v(vfa)} offset:{F_L + nt*2048 + ks*1024}")
    A(f"v_add_u32 {v(vt1)}, {16*32768}, {v(vst)}")
    for h in range(2):
        A(f"s_waitcnt lgkmcnt({4*(1-h)})")
        for ks in range(2):
            for nt in range(2):
                c = "0" if ks == 0 else v(acc[h][nt], 4)
                A(f"v_mfma_f32_16x16x32_bf16 {v(acc[h][nt],4)}, {v(Af[h][ks],4)}, {v(Ff[nt][ks],4)}, {c}")
    for h in range(2):
        for nt in range(2):
            k = h * 2 + nt
            A(f"v_cvt_pk_bf16_f32 {v(tmp+2*k)}, {v(acc[h][nt])}, {v(acc[h][nt]+1)}")
            A(f"v_cvt_pk_bf16_f32 {v(tmp+2*k+1)}, {v(acc[h][nt]+2)}, {v(acc[h][nt]+3)}")
            A(f"global_store_dwordx2 {v(vst if nt == 0 else vt1)}, {v(tmp+2*k,2)}, s[6:7] offset:{h*128}")
    if stamps:
        ST.stamp(); A("s_waitcnt vmcnt(0)"); ST.stamp(); ST.flush(6, tmp)
    A("s_endpgm")
    return_nv = R.hi
    import g6a
    return _ka_tail(A, name, ST, stamps, prefetch, NFFT, NPF, NWG, return_nv, F_L + 8192)

def _ka_tail(A, name, ST, stamps, prefetch, NFFT, NPF, NWG, nv, lds):
    A.label(f"{name}_mod")
    if prefetch:
        A(f"s_cmp_ge_u32 s2, {NFFT+NMOD}")
        A(f"s_cbranch_scc1 {name}_pf")
    load_ptr(A, 4, "wmod"); load_ptr(A, 8, "c"); load_ptr(A, 6, "ws")
    A(f"s_sub_u32 s10, s2, {NFFT}")
    A("s_lshl_b32 s11, s10, 6")
    R = RegAlloc(1)
    vk = R.alloc(); vt0 = R.alloc(); vt1 = R.alloc(); vc = R.alloc()
    vo = [R.alloc() for _ in range(4)]
    wr = [R.alloc(4) for _ in range(4)]
    cv = [R.alloc() for _ in range(4)]; ch = [R.alloc() for _ in range(4)]
    ac = R.alloc(8, 4); rr = R.alloc(16, 4)
    A(f"v_and_b32 {v(vt0)}, 0x1c0, v0")
    A(f"v_bfe_u32 {v(vt1)}, v0, 2, 4")
    A(f"v_add_u32 {v(vk)}, {v(vt0)}, {v(vt1)}")
    A(f"v_and_b32 {v(vc)}, 3, v0")
    A(f"v_mul_u32_u24 {v(vo[0])}, 6144, {v(vk)}")
    A(f"v_lshl_add_u32 {v(vo[0])}, {v(vc)}, 4, {v(vo[0])}")
    A(f"v_add_u32 {v(vo[0])}, s11, {v(vo[0])}")
    for it in range(1, 4): A(f"v_add_u32 {v(vo[it])}, {it*16*6144}, {v(vo[0])}")
    A(f"v_lshlrev_b32 {v(vk)}, 1, {v(vk)}")
    A("s_waitcnt lgkmcnt(0)")
    for it in range(4): A(f"global_load_ushort {v(cv[it])}, {v(vk)}, s[8:9] offset:{it*32}")
    for it in range(4): A(f"global_load_dwordx4 {v(wr[it],4)}, {v(vo[it])}, s[4:5]")
    for j in range(8): A(f"v_mov_b32 {v(ac+j)}, 0")
    A("s_waitcnt vmcnt(4)")
    for it in range(4): A(f"v_lshlrev_b32 {v(cv[it])}, 16, {v(cv[it])}")
    for it in range(4): A(f"v_mul_f32 {v(ch[it])}, 0xbfb8aa3b, {v(cv[it])}")
    for it in range(4): A(f"v_exp_f32 {v(ch[it])}, {v(ch[it])}")
    for it in range(4): A(f"v_add_f32 {v(ch[it])}, 1.0, {v(ch[it])}")
    for it in range(4): A(f"v_rcp_f32 {v(ch[it])}, {v(ch[it])}")
    for it in range(4): A(f"v_mul_f32 {v(cv[it])}, {v(cv[it])}, {v(ch[it])}")
    for it in range(4): A(f"v_cvt_pk_bf16_f32 {v(cv[it])}, {v(cv[it])}, 0")
    for it in range(4): A(f"v_lshlrev_b32 {v(ch[it])}, 16, {v(cv[it])}")
    for it in range(4):
        A(f"s_waitcnt vmcnt({3-it})")
        for j in range(4):
            A(f"v_dot2_f32_bf16 {v(ac+2*j)}, {v(wr[it]+j)}, {v(cv[it])}, {v(ac+2*j)}")
            A(f"v_dot2_f32_bf16 {v(ac+2*j+1)}, {v(wr[it]+j)}, {v(ch[it])}, {v(ac+2*j+1)}")
    for rot in (4, 8):
        for j in range(8):
            A(f"v_add_f32_dpp {v(ac+j)}, {v(ac+j)}, {v(ac+j)} row_ror:{rot} row_mask:0xf bank_mask:0xf")
    A(f"v_lshrrev_b32 {v(vt0)}, 4, v0")
    A(f"v_lshlrev_b32 {v(vt0)}, 7, {v(vt0)}")
    A(f"v_lshl_add_u32 {v(vt0)}, {v(vc)}, 5, {v(vt0)}")
    A(f"ds_write_b128 {v(vt0)}, {v(ac,4)}")
    A(f"ds_write_b128 {v(vt0)}, {v(ac+4,4)} offset:16")
    if prefetch:
        lab = f"{name}_nocp"
        A("s_cmp_ge_u32 s10, 8")
        A(f"s_cbranch_scc1 {lab}")
        getpc_sym(A, 12, "code_begin")
        A(f"v_lshlrev_b32 {v(vt0)}, 7, v0")
        A(f"v_mov_b32 {v(vt1)}, code_end-code_begin-4")
        A(f"v_min_u32 {v(vt0)}, {v(vt0)}, {v(vt1)}")
        A(f"v_and_b32 {v(vt0)}, -4, {v(vt0)}")
        A(f"global_load_dword {v(vk)}, {v(vt0)}, s[12:13]")
        A.label(lab)
    A("v_readfirstlane_b32 s20, v0")
    A("s_waitcnt lgkmcnt(0)")
    A("s_barrier")
    A("s_cmp_ge_u32 s20, 64")
    A(f"s_cbranch_scc1 {name}_end")
    A(f"v_and_b32 {v(vt1)}, 31, v0")
    A(f"v_lshrrev_b32 {v(vt0)}, 5, v0")
    A(f"v_lshlrev_b32 {v(vt0)}, 11, {v(vt0)}")
    A(f"v_lshl_add_u32 {v(vt0)}, {v(vt1)}, 2, {v(vt0)}")
    for p in range(16): A(f"ds_read_b32 {v(rr+p)}, {v(vt0)} offset:{p*128}")
    A("s_lshr_b32 s11, s10, 4")
    A("s_cmp_eq_u32 s11, 1")
    A("s_cselect_b32 s12, 1.0, 0")
    A("s_cmp_eq_u32 s11, 4")
    A("s_cselect_b32 s12, 1.0, s12")
    A("s_lshl_b32 s11, s10, 7")
    if WS_MOD: A(f"s_add_u32 s11, s11, {WS_MOD}")
    A(f"v_lshl_add_u32 {v(vt1)}, {v(vt1)}, 2, s11")
    A("s_waitcnt lgkmcnt(0)")
    for st_ in (8, 4, 2, 1):
        for p in range(st_): A(f"v_add_f32 {v(rr+p)}, {v(rr+p)}, {v(rr+p+st_)}")
    A(f"v_mov_b32 {v(rr+1)}, {v(rr)}")
    A(f"v_permlane32_swap_b32 {v(rr)}, {v(rr+1)}")
    A(f"v_add_f32 {v(rr)}, {v(rr)}, {v(rr+1)}")
    A(f"v_cvt_pk_bf16_f32 {v(rr)}, {v(rr)}, {v(rr)}")
    A(f"v_lshlrev_b32 {v(rr)}, 16, {v(rr)}")
    A(f"v_add_f32 {v(rr)}, s12, {v(rr)}")
    A(f"v_cvt_pk_bf16_f32 {v(rr)}, {v(rr)}, {v(rr)}")
    A(f"v_lshlrev_b32 {v(rr)}, 16, {v(rr)}")
    A(f"global_store_dword {v(vt1)}, {v(rr)}, s[6:7]")
    if stamps:
        A("s_mov_b32 s20, 0"); ST.n = 1; ST.stamp(); ST.stamp(); A("s_waitcnt vmcnt(0)"); ST.stamp(); ST.flush(6, ac)
    A("s_endpgm")
    if prefetch:
        A.label(f"{name}_pf")
        load_ptr(A, 4, "win")
        A(f"s_sub_u32 s10, s2, {NFFT+NMOD}")
        A("s_lshr_b32 s10, s10, 3")
        A("s_mul_i32 s10, s10, 1792")
        A("s_and_b32 s11, s2, 1")
        A("s_mul_i32 s11, s11, 896")
        A("v_add_u32 v1, s10, v0")
        A("v_mov_b32 v6, 896")
        A("s_waitcnt lgkmcnt(0)")
        for it in range(4):
            if it == 3:
                A("v_cmp_gt_u32 vcc, 256, v0")
                A("s_and_b64 exec, exec, vcc")
                A(f"s_cbranch_execz {name}_end")
            A("v_mul_u32_u24 v2, 9363, v1")
            A("v_lshrrev_b32 v2, 17, v2")
            A("v_mul_u32_u24 v3, 14, v2")
            A("v_sub_u32 v3, v1, v3")
            A("v_mul_u32_u24 v2, 3584, v2")
            A("v_lshl_add_u32 v2, v3, 7, v2")
            A("v_cmp_lt_u32 vcc, 6, v3")
            A("v_cndmask_b32 v3, 0, v6, vcc")
            A("v_add3_u32 v2, v2, v3, s11")
            A(f"global_load_dword v{8+it}, v2, s[4:5]")
            if it < 3: A("v_add_u32 v1, 512, v1")
    A.label(f"{name}_end")
    A("s_endpgm")
    return dict(name=name, grid=NWG, block=512, lds=lds, vgpr=max(nv, R.hi), sgpr=96 if stamps else 32)

def gen_kb(A, name="kb_kernel", stamps=False, prefetch=True):
    NW = 132; NWG = NW + 4
    TB_L = 0
    MD_L = TB_L + 10240
    WM_L = MD_L + 8192
    T_B = WM_L + 1024
    TS = 1056; V_OFF = T_B + 64 * TS; VS = 80; US = 144; YS = 2064
    U_OFF = T_B; Y_OFF = T_B + 20480
    LDS = V_OFF + 256 * VS
    A.barrier_state(); A.raw(kernel_header(name))
    ST = Stamps(A, on=stamps, kidx=1)
    sW, sC, sG, sT0, sT1, sT2, sRow, sMir, sRow2, sY = 20, 21, 22, 23, 24, 25, 26, 27, 28, 29
    SRD_T = 16
    A(f"s_cmp_ge_u32 s2, {NW}")
    A(f"s_cbranch_scc1 {name}_pf")
    ST.stamp()
    load_ptr(A, 16, "ws"); load_ptr(A, 4, "x"); load_ptr(A, 6, "sre"); load_ptr(A, 8, "sim")
    if prefetch: load_ptr(A, 12, "wsp")
    getpc_sym(A, 10, "fft_tables")
    A(f"v_readfirstlane_b32 {s(sW)}, v0")
    A(f"s_mov_b32 s18, {WS_T + 2*MB}")
    A("s_mov_b32 s19, 0x20000")
    A(f"s_and_b32 {s(sT0)}, s2, 7")
    A(f"s_bfe_u32 {s(sG)}, s2, 0x20003")
    A(f"s_lshr_b32 {s(sT1)}, s2, 5")
    A(f"s_lshl3_add_u32 {s(sC)}, {s(sT1)}, {s(sT0)}")
    A(f"s_cmp_ge_u32 s2, 128")
    A(f"s_cselect_b32 {s(sC)}, 32, {s(sC)}")
    A(f"s_cselect_b32 {s(sG)}, {s(sT0)}, {s(sG)}")
    A(f"s_lshr_b32 {s(sW)}, {s(sW)}, 6")
    R = RegAlloc(1)
    vl = R.alloc(); vq = R.alloc(); vi = R.alloc(); vl16 = R.alloc(); vtid16 = R.alloc()
    vtb = R.alloc(8, 4); vt = [vtb + k for k in range(8)]
    A0 = R.alloc(4); A1 = R.alloc(4)
    F1 = [R.alloc(4) for _ in range(2)]; F2 = [[R.alloc(4) for _ in range(2)] for _ in range(2)]
    tw = R.alloc(16, 4)
    opca = [R.alloc() for _ in range(4)]
    xrow = [R.alloc(4) for _ in range(2)]
    Bf = [[R.alloc(4) for _ in range(2)] for _ in range(4)]
    acc = [R.alloc(4) for _ in range(4)]
    ga = R.alloc(8, 4); sb = R.alloc(8, 4); ocb = R.alloc(8, 4)
    vaT = R.alloc(); vaVw = R.alloc(); vaVr = R.alloc(); vaUw = R.alloc(); vaUr = R.alloc(); vaYw = R.alloc()
    vrow = [R.alloc() for _ in range(2)]
    xf = R.alloc(8, 4); yy = R.alloc(8, 4)
    Rr = R.alloc(4); Ri = R.alloc(4)
    A(f"v_and_b32 {v(vl)}, 63, v0")
    A(f"v_lshlrev_b32 {v(vl16)}, 4, {v(vl)}")
    A(f"v_lshlrev_b32 {v(vtid16)}, 4, v0")
    A(f"s_add_u32 {s(sT1)}, {s(sC)}, 32")
    A(f"s_and_b32 {s(sT2)}, {s(sC)}, 31")
    A(f"s_cselect_b32 {s(sMir)}, 1, 0")
    A(f"s_cselect_b32 {s(sT1)}, {s(sT1)}, 0x4000")
    A(f"s_cmp_ge_u32 {s(sW)}, 4")
    A(f"s_cselect_b32 {s(sT0)}, {s(sT1)}, {s(sC)}")
    A(f"s_lshl_b32 {s(sT0)}, {s(sT0)}, 15")
    A(f"s_and_b32 {s(sT1)}, {s(sW)}, 3")
    A(f"s_lshl_b32 {s(sT1)}, {s(sT1)}, 13")
    A(f"s_add_u32 {s(sT0)}, {s(sT0)}, {s(sT1)}")
    A(f"s_add_u32 {s(sT0)}, {s(sT0)}, {WS_T - 128}")
    A(f"s_mul_i32 {s(sT1)}, {s(sW)}, {8*TS}")
    A(f"s_add_u32 m0, {s(sT1)}, {T_B}")
    for j in range(4): A(f"v_add_u32 {v(vt[4+j])}, {128 - 32*j}, {v(vl16)}")
    A(f"v_and_b32 {v(vi)}, 15, v0")
    A(f"v_bfe_u32 {v(vq)}, v0, 4, 2")
    A(f"v_bfe_u32 {v(vt[0])}, v0, 2, 3")
    A(f"v_lshlrev_b32 {v(vt[0])}, 18, {v(vt[0])}")
    A(f"v_and_b32 {v(vt[1])}, 3, v0")
    A(f"v_lshl_add_u32 {v(vt[0])}, {v(vt[1])}, 4, {v(vt[0])}")
    A(f"s_lshl_b32 {s(sT1)}, {s(sG)}, 21")
    A(f"s_lshl_b32 {s(sT2)}, {s(sC)}, 12")
    A(f"s_add_u32 {s(sT1)}, {s(sT1)}, {s(sT2)}")
    A(f"v_add_u32 {v(vt[0])}, {s(sT1)}, {v(vt[0])}")
    A(f"s_lshl3_add_u32 {s(sT1)}, {s(sG)}, {s(sW)}")
    A(f"s_lshl_b32 {s(sT1)}, {s(sT1)}, 6")
    A(f"s_add_u32 {s(sRow)}, {s(sT1)}, {s(sC)}")
    A(f"s_sub_u32 {s(sRow2)}, 2048, {s(sRow)}")
    A(f"s_and_b32 {s(sRow2)}, {s(sRow2)}, 2047")
    A(f"s_lshl_b32 {s(sRow)}, {s(sRow)}, 10")
    A(f"s_lshl_b32 {s(sRow2)}, {s(sRow2)}, 10")
    A(f"v_add_u32 {v(vrow[0])}, {s(sRow)}, {v(vl16)}")
    A(f"v_add_u32 {v(vrow[1])}, {s(sRow2)}, {v(vl16)}")
    A(f"s_lshl_b32 {s(sT2)}, {s(sW)}, 10")
    A("s_waitcnt lgkmcnt(0)")
    for g in range(2):
        if g:
            A(f"s_add_u32 m0, m0, {4*TS}")
            A(f"s_add_u32 {s(sT0)}, {s(sT0)}, 4096")
        for j in range(4):
            A(f"buffer_load_dwordx4 {v(vt[4+j])}, {s(SRD_T,4)}, {s(sT0)} offen offset:{j*TS} lds")
    A(f"s_add_u32 m0, {s(sT2)}, {TB_L}")
    A(f"v_add_u32 {v(vt[1])}, {TAB_OFF['tab_f1']}, {v(vtid16)}")
    A(f"global_load_lds_dwordx4 {v(vt[1])}, s[10:11]")
    A(f"s_add_u32 m0, {s(sT2)}, {MD_L}")
    A(f"v_add_u32 {v(vt[2])}, {WS_MOD + 2048}, {v(vtid16)}")
    A(f"global_load_lds_dwordx4 {v(vt[2])}, s[16:17]")
    lx = f"{name}_nox"; l23 = f"{name}_x23"
    A(f"s_cmp_ge_u32 {s(sW)}, 4")
    A(f"s_cbranch_scc1 {lx}")
    A(f"s_cmp_ge_u32 {s(sW)}, 2")
    A(f"s_cbranch_scc1 {l23}")
    A(f"s_add_u32 m0, {s(sT2)}, {TB_L + 8192}")
    A(f"v_add_u32 {v(vt[1])}, 8192, {v(vt[1])}")
    A(f"global_load_lds_dwordx4 {v(vt[1])}, s[10:11]")
    A(f"s_branch {lx}")
    A.label(l23)
    A(f"s_cmp_eq_u32 {s(sW)}, 3")
    A("s_cselect_b32 s6, s8, s6")
    A("s_cselect_b32 s7, s9, s7")
    A(f"s_cselect_b32 m0, {WM_L + 512}, {WM_L}".replace(f"{WM_L + 512}, {WM_L}", f"{s(sT1)}, {s(sT2)}") if False else f"s_cselect_b32 {s(sT1)}, 512, 0")
    A(f"s_add_u32 m0, {s(sT1)}, {WM_L}")
    A("s_mov_b32 exec_hi, 0")
    A(f"global_load_lds_dwordx4 {v(vt[0])}, s[6:7]")
    A("s_mov_b32 exec_hi, -1")
    A.label(lx)
    for h in range(2): A(f"global_load_dwordx4 {v(xrow[h],4)}, {v(vrow[h])}, s[4:5]")
    A(f"v_lshrrev_b32 {v(vt[0])}, 2, {v(vi)}")
    A(f"v_lshl_add_u32 {v(vt[0])}, {v(vq)}, 2, {v(vt[0])}")
    A(f"v_mul_u32_u24 {v(vaT)}, {TS}, {v(vt[0])}")
    A(f"v_and_b32 {v(vt[0])}, 3, {v(vi)}")
    A(f"v_lshl_add_u32 {v(vaT)}, {v(vt[0])}, 3, {v(vaT)}")
    A(f"v_and_b32 {v(vt[4])}, 0x1c0, v0")
    A(f"v_lshl_add_u32 {v(vaT)}, {v(vt[4])}, 1, {v(vaT)}")
    A(f"v_add_u32 {v(vaT)}, {T_B}, {v(vaT)}")
    A(f"v_lshl_add_u32 {v(vt[0])}, {v(vq)}, 6, {v(vi)}")
    A(f"v_mul_u32_u24 {v(vaVw)}, {VS}, {v(vt[0])}")
    A(f"v_lshrrev_b32 {v(vt[0])}, 3, {v(vt[4])}")
    A(f"s_mov_b32 {s(sT2)}, {V_OFF}")
    A(f"v_add3_u32 {v(vaVw)}, {v(vaVw)}, {v(vt[0])}, {s(sT2)}")
    A(f"v_lshrrev_b32 {v(vt[0])}, 1, {v(vt[4])}")
    A(f"v_add_u32 {v(vt[0])}, {v(vt[0])}, {v(vi)}")
    A(f"v_mul_u32_u24 {v(vaVr)}, {VS}, {v(vt[0])}")
    A(f"v_lshl_add_u32 {v(vaVr)}, {v(vq)}, 4, {v(vaVr)}")
    A(f"v_add_u32 {v(vaVr)}, {V_OFF}, {v(vaVr)}")
    A(f"v_lshrrev_b32 {v(vt[0])}, 2, {v(vt[4])}")
    A(f"v_lshl_add_u32 {v(vt[3])}, {v(vq)}, 1, {v(vt[0])}")
    A(f"v_mul_u32_u24 {v(vaUw)}, {US}, {v(vt[3])}")
    A(f"v_lshl_add_u32 {v(vaUw)}, {v(vi)}, 2, {v(vaUw)}")
    A(f"v_add_u32 {v(vt[3])}, {v(vt[0])}, {v(vi)}")
    A(f"v_mul_u32_u24 {v(vaUr)}, {US}, {v(vt[3])}")
    A(f"v_lshl_add_u32 {v(vaUr)}, {v(vq)}, 4, {v(vaUr)}")
    A(f"s_mul_i32 {s(sY)}, {s(sW)}, {YS}")
    A(f"s_add_u32 {s(sY)}, {s(sY)}, {Y_OFF}")
    A(f"v_lshlrev_b32 {v(vaYw)}, 6, {v(vi)}")
    A(f"v_lshl_add_u32 {v(vaYw)}, {v(vq)}, 4, {v(vaYw)}")
    A(f"v_add_u32 {v(vaYw)}, {s(sY)}, {v(vaYw)}")
    A(f"v_lshrrev_b32 {v(vt[5])}, 1, {v(vi)}")
    A(f"v_lshlrev_b32 {v(vt[5])}, 6, {v(vt[5])}")
    A(f"v_lshl_add_u32 {v(vt[5])}, {v(vq)}, 3, {v(vt[5])}")
    A(f"v_add_u32 {v(vt[6])}, {v(vt[4])}, {v(vi)}")
    A(f"v_lshlrev_b32 {v(vt[6])}, 2, {v(vt[6])}")
    A(f"v_and_b32 {v(vt[3])}, 1, v0")
    A(f"v_cmp_eq_u32 vcc, 1, {v(vt[3])}")
    A(f"s_mov_b32 {s(sT0)}, 0x80008000")
    A("s_waitcnt vmcnt(2)")
    vpf = R.alloc(); vpd = R.alloc(2)
    if prefetch:
        A(f"s_bfe_u32 {s(sT1)}, s2, 0x20001")
        A(f"s_lshl_b32 {s(sT1)}, {s(sT1)}, 21")
        A(f"s_lshr_b32 {s(sT2)}, s2, 3")
        A(f"s_lshl3_add_u32 {s(sT2)}, {s(sT2)}, {s(sW)}")
        A(f"s_and_b32 {s(sT2)}, {s(sT2)}, 127")
        A(f"s_lshl_b32 {s(sT2)}, {s(sT2)}, 14")
        A(f"s_add_u32 {s(sT1)}, {s(sT1)}, {s(sT2)}")
        A(f"v_lshl_add_u32 {v(vpf)}, {v(vl)}, 7, {s(sT1)}")
    ST.stamp()
    A("s_barrier")
    if prefetch:
        A(f"global_load_dword {v(vpd)}, {v(vpf)}, s[12:13]")
        A(f"v_add_u32 {v(vpf)}, 8192, {v(vpf)}")
        A(f"global_load_dword {v(vpd+1)}, {v(vpf)}, s[12:13]")
    for reg, o in ((Rr, 0), (Ri, 512)):
        A(f"ds_read_b64 {v(reg,2)}, {v(vt[5])} offset:{WM_L + o}")
        A(f"ds_read_b64 {v(reg+2,2)}, {v(vt[5])} offset:{WM_L + o + 32}")
    for jt in range(4):
        for c in range(2):
            for p in range(2):
                A(f"ds_read_b64_tr_b16 {v(Bf[jt][c]+2*p,2)}, {v(vaT)} offset:{c*32*TS + p*16*TS + jt*32}")
        if jt == 1:
            pass
    A("s_waitcnt lgkmcnt(15)")
    for j in range(4):
        A(f"v_xor_b32 {v(vt[0])}, {s(sT0)}, {v(Ri+j)}")
        A(f"v_cndmask_b32 {v(A0+j)}, {v(Rr+j)}, {v(Ri+j)}, vcc")
        A(f"v_cndmask_b32 {v(A1+j)}, {v(vt[0])}, {v(Rr+j)}, vcc")
    for jt in range(4): A(f"ds_read_b32 {v(opca[jt])}, {v(vt[6])} offset:{MD_L + jt*64}")
    for jt in range(4):
        A(f"s_waitcnt lgkmcnt({min(15, (3-jt)*4 + 4)})")
        A(f"v_mfma_f32_16x16x32_bf16 {v(acc[jt],4)}, {v(A0,4)}, {v(Bf[jt][0],4)}, 0")
        A(f"v_mfma_f32_16x16x32_bf16 {v(acc[jt],4)}, {v(A1,4)}, {v(Bf[jt][1],4)}, {v(acc[jt],4)}")
    for mt in range(2): A(f"ds_read_b128 {v(F1[mt],4)}, {v(vl16)} offset:{TB_L + mt*1024}")
    A(f"v_lshlrev_b32 {v(vt[7])}, 2, {v(vl16)}")
    for h in range(4): A(f"ds_read_b128 {v(tw+4*h,4)}, {v(vt[7])} offset:{TB_L + 6144 + h*16}")
    A("s_waitcnt lgkmcnt(6)")
    for jt in range(4):
        for r in range(4): A(f"v_mul_f32 {v(acc[jt]+r)}, {v(acc[jt]+r)}, {v(opca[jt])}")
    lab = f"{name}_nodc"
    A(f"s_or_b32 {s(sT0)}, {s(sC)}, {s(sG)}")
    A(f"s_cbranch_scc1 {lab}")
    A(f"v_and_b32 {v(vt[2])}, 0x1cf, v0")
    A(f"v_lshlrev_b32 {v(vt[2])}, 2, {v(vt[2])}")
    if WS_MOD: A(f"v_add_u32 {v(vt[2])}, {WS_MOD}, {v(vt[2])}")
    for jt in range(4): A(f"global_load_dword {v(Bf[0][0]+jt)}, {v(vt[2])}, s[16:17] offset:{jt*64}")
    A(f"v_cmp_eq_u32 vcc, 0, {v(vq)}")
    A(f"v_mov_b32 {v(vt[1])}, 0x45000000")
    A(f"v_cndmask_b32 {v(vt[1])}, 0, {v(vt[1])}, vcc")
    A("s_waitcnt vmcnt(0)")
    for jt in range(4): A(f"v_fmac_f32 {v(acc[jt])}, {v(Bf[0][0]+jt)}, {v(vt[1])}")
    A.label(lab)
    for jt in range(4):
        ac = acc[jt]
        A(f"v_cvt_pk_bf16_f32 {v(ac)}, {v(ac)}, {v(ac+1)}")
        A(f"v_cvt_pk_bf16_f32 {v(ac+1)}, {v(ac+2)}, {v(ac+3)}")
        o0 = (jt&1)*16*VS + (jt>>1)*4
        A(f"ds_write_b32 {v(vaVw)}, {v(ac)} offset:{o0}")
        A(f"ds_write_b32 {v(vaVw)}, {v(ac+1)} offset:{o0 + 32*VS}")
    A(f"s_mov_b32 {s(sT0)}, 0xffff0000")
    A("s_waitcnt lgkmcnt(0)")
    A("s_barrier")
    ST.stamp()
    for h in range(2): A(f"ds_read_b128 {v(Bf[h][0],4)}, {v(vaVr)} offset:{h*16*VS}")
    for nt in range(2):
        for ks in range(2): A(f"ds_read_b128 {v(F2[nt][ks],4)}, {v(vl16)} offset:{TB_L + 2048 + nt*2048 + ks*1024}")
    A(f"v_lshlrev_b32 {v(vt[7])}, 1, {v(vl16)}")
    for h in range(2):
        A(f"s_waitcnt lgkmcnt({5-h})")
        for mt in range(2):
            A(f"v_mfma_f32_16x16x32_bf16 {v(acc[2*h+mt],4)}, {v(F1[mt],4)}, {v(Bf[h][0],4)}, 0")
    for reg, sec in ((ga, 1), (sb, 2), (ocb, 3)):
        for u in range(2): A(f"ds_read_b128 {v(reg+4*u,4)}, {v(vt[7])} offset:{MD_L + sec*2048 + u*16}")
    for h in range(2):
        for mt in range(2):
            for pp in range(2):
                re, im = acc[2*h+mt] + 2 * pp, acc[2*h+mt] + 2 * pp + 1
                k = ((h*2+mt)*2+pp)*2
                c_, s_ = tw + k, tw + k + 1
                t0, t1 = vt[4*pp], vt[4*pp+1]
                if pp == 1 and False: pass
                A(f"v_mul_f32 {v(t0)}, {v(re)}, {v(c_)}")
                A(f"v_mul_f32 {v(t1)}, {v(im)}, {v(c_)}")
                A(f"v_fma_f32 {v(t0)}, {v(im)}, {v(s_)}, {v(t0)}")
                A(f"v_fma_f32 {v(t1)}, -{v(re)}, {v(s_)}, {v(t1)}")
                A(f"v_cvt_pk_bf16_f32 {v(vt[4*pp+2])}, {v(t0)}, {v(t1)}")
                A(f"ds_write_b32 {v(vaUw)}, {v(vt[4*pp+2])} offset:{U_OFF + (8*mt+pp)*US + h*64}")
    A("s_waitcnt lgkmcnt(0)")
    for ks in range(2): A(f"ds_read_b128 {v(Bf[ks][0],4)}, {v(vaUr)} offset:{U_OFF + ks*64}")
    A(f"s_waitcnt vmcnt({2 if prefetch else 0})")
    xg = [xf, yy]
    for r in range(2):
        for j in range(4):
            A(f"v_lshlrev_b32 {v(xg[r]+2*j)}, 16, {v(xrow[r]+j)}")
            A(f"v_and_b32 {v(xg[r]+2*j+1)}, {s(sT0)}, {v(xrow[r]+j)}")
    for ks in range(2):
        A(f"s_waitcnt lgkmcnt({1-ks})")
        for nt in range(2):
            c = "0" if ks == 0 else v(acc[nt], 4)
            A(f"v_mfma_f32_16x16x32_bf16 {v(acc[nt],4)}, {v(Bf[ks][0],4)}, {v(F2[nt][ks],4)}, {c}")
    A(f"v_lshl_add_u32 {v(vt[0])}, {v(vl16)}, 1, {s(sY)}")
    A(f"v_lshlrev_b32 {v(vt[2])}, 1, {v(vl16)}")
    A(f"v_sub_u32 {v(vt[1])}, 2048, {v(vt[2])}")
    A(f"v_and_b32 {v(vt[1])}, 2047, {v(vt[1])}")
    A(f"v_add_u32 {v(vt[1])}, {s(sY)}, {v(vt[1])}")
    A(f"s_add_u32 {s(sT1)}, {s(sY)}, {505*4}")
    A(f"v_sub_u32 {v(vt[2])}, {s(sT1)}, {v(vt[2])}")
    for nt in range(2): A(f"ds_write_b128 {v(vaYw)}, {v(acc[nt],4)} offset:{nt*1024}")
    A("s_waitcnt lgkmcnt(0)")
    ST.stamp()
    y = Bf[2][0]; assert Bf[2][1] == y + 4
    y2 = Bf[3][0]; assert Bf[3][1] == y2 + 4
    A(f"ds_read_b128 {v(y,4)}, {v(vt[0])}")
    A(f"ds_read_b128 {v(y+4,4)}, {v(vt[0])} offset:16")
    A(f"ds_read_b32 {v(y2)}, {v(vt[1])}")
    A(f"ds_read_b32 {v(y2+1)}, {v(vt[2])} offset:24")
    for j in (2, 4, 6): A(f"ds_read2_b32 {v(y2+j,2)}, {v(vt[2])} offset0:{7-j} offset1:{6-j}")
    A("s_waitcnt lgkmcnt(5)")
    for j in range(8): A(f"v_fma_f32 {v(xf+j)}, {v(ga+j)}, {v(y+j)}, {v(xf+j)}")
    A("s_waitcnt lgkmcnt(0)")
    for j in range(8): A(f"v_fma_f32 {v(yy+j)}, {v(ga+j)}, {v(y2+j)}, {v(yy+j)}")
    for r in range(2):
        for j in range(4): A(f"v_cvt_pk_bf16_f32 {v(xrow[r]+j)}, {v(xg[r]+2*j)}, {v(xg[r]+2*j+1)}")
    A(f"v_add_u32 {v(vt[2])}, {WS_X1}, {v(vrow[0])}")
    A(f"v_add_u32 {v(vt[3])}, {WS_X1}, {v(vrow[1])}")
    A(f"global_store_dwordx4 {v(vt[2])}, {v(xrow[0],4)}, s[16:17]")
    lab2 = f"{name}_nomir1"
    A(f"s_cmp_eq_u32 {s(sMir)}, 0")
    A(f"s_cbranch_scc1 {lab2}")
    A(f"global_store_dwordx4 {v(vt[3])}, {v(xrow[1],4)}, s[16:17]")
    A.label(lab2)
    for r in range(2):
        for j in range(4):
            A(f"v_lshlrev_b32 {v(xg[r]+2*j)}, 16, {v(xrow[r]+j)}")
            A(f"v_and_b32 {v(xg[r]+2*j+1)}, {s(sT0)}, {v(xrow[r]+j)}")
    S_ = [vt[0], vt[1]]; Q_ = [vt[4], vt[5]]
    for r in range(2):
        A(f"v_add_f32 {v(S_[r])}, {v(xg[r])}, {v(xg[r]+1)}")
        A(f"v_mul_f32 {v(Q_[r])}, {v(xg[r])}, {v(xg[r])}")
    for j in range(1, 8):
        for r in range(2):
            if j >= 2: A(f"v_add_f32 {v(S_[r])}, {v(S_[r])}, {v(xg[r]+j)}")
            A(f"v_fmac_f32 {v(Q_[r])}, {v(xg[r]+j)}, {v(xg[r]+j)}")
    chains = [S_[0], Q_[0], S_[1], Q_[1]]
    for mode, rm in (("quad_perm:[1,0,3,2]", "0xf"), ("quad_perm:[2,3,0,1]", "0xf"), ("row_half_mirror", "0xf"), ("row_mirror", "0xf"), ("row_bcast:15", "0xa"), ("row_bcast:31", "0xc")):
        for c_ in chains: A(f"v_add_f32_dpp {v(c_)}, {v(c_)}, {v(c_)} {mode} row_mask:{rm} bank_mask:0xf")
    for k, c_ in enumerate(chains): A(f"v_readlane_b32 {s(30+k)}, {v(c_)}, 63")
    A(f"v_mov_b32 {v(vt[6])}, 0x3b000000")
    for r in range(2):
        A(f"v_mul_f32 {v(S_[r])}, {s(30+2*r)}, {v(vt[6])}")
        A(f"v_mul_f32 {v(Q_[r])}, {s(31+2*r)}, {v(vt[6])}")
    for r in range(2): A(f"v_fma_f32 {v(Q_[r])}, -{v(S_[r])}, {v(S_[r])}, {v(Q_[r])}")
    for r in range(2): A(f"v_max_f32 {v(Q_[r])}, 0, {v(Q_[r])}")
    for r in range(2): A(f"v_add_f32 {v(Q_[r])}, 0x3727c5ac, {v(Q_[r])}")
    for r in range(2): A(f"v_rsq_f32 {v(Q_[r])}, {v(Q_[r])}")
    A(f"v_add_u32 {v(vt[2])}, {WS_H2}, {v(vrow[0])}")
    A(f"v_add_u32 {v(vt[3])}, {WS_H2}, {v(vrow[1])}")
    for r in range(2):
        for j in range(8): A(f"v_sub_f32 {v(xg[r]+j)}, {v(xg[r]+j)}, {v(S_[r])}")
    for r in range(2):
        for j in range(8): A(f"v_mul_f32 {v(xg[r]+j)}, {v(xg[r]+j)}, {v(Q_[r])}")
    for r in range(2):
        for j in range(8): A(f"v_fma_f32 {v(xg[r]+j)}, {v(xg[r]+j)}, {v(ocb+j)}, {v(sb+j)}")
    yo = [y, y2]
    for r in range(2):
        for j in range(4): A(f"v_cvt_pk_bf16_f32 {v(yo[r]+j)}, {v(xg[r]+2*j)}, {v(xg[r]+2*j+1)}")
    A(f"global_store_dwordx4 {v(vt[2])}, {v(y,4)}, s[16:17]")
    A(f"s_cmp_eq_u32 {s(sMir)}, 0")
    A(f"s_cbranch_scc1 {name}_fin")
    A(f"global_store_dwordx4 {v(vt[3])}, {v(y2,4)}, s[16:17]")
    A.label(f"{name}_fin")
    if stamps:
        ST.stamp(); A("s_waitcnt vmcnt(0)"); ST.stamp(); ST.flush(16, ga)
    A("s_endpgm")
    A.label(f"{name}_pf")
    A(f"s_cmp_ge_u32 s2, {NWG}")
    A(f"s_cbranch_scc1 {name}_end")
    load_ptr(A, 4, "ws")
    A(f"s_sub_u32 s10, s2, {NW}")
    A("s_lshl_b32 s10, s10, 16")
    A(f"s_add_u32 s10, s10, {WS_STAT}")
    A("v_lshl_add_u32 v1, v0, 4, s10")
    for j in range(4): A(f"v_mov_b32 v{4+j}, -1")
    A("s_waitcnt lgkmcnt(0)")
    for it in range(8):
        A("global_store_dwordx4 v1, v[4:7], s[4:5]")
        if it < 7: A("v_add_u32 v1, 8192, v1")
    A.label(f"{name}_end")
    A("s_endpgm")
    return dict(name=name, grid=NWG, block=512, lds=LDS, vgpr=R.hi, sgpr=96 if stamps else 40)
```

```python
import math, struct
def f2u(f): return struct.unpack("<I", struct.pack("<f", f))[0]
def bf16(f):
    u = f2u(f)
    r = (u + 0x7FFF + ((u >> 16) & 1)) >> 16
    return r & 0xFFFF
def pk(lo, hi): return bf16(lo) | (bf16(hi) << 16)
def cs(num, den):
    a = 2 * math.pi * (num % den) / den
    c, s_ = math.cos(a), math.sin(a)
    if abs(c) < 1e-12: c = 0.0
    if abs(s_) < 1e-12: s_ = 0.0
    return c, s_
def tab_f64():
    out = []
    for n in range(64):
        row = []
        for k in range(64):
            if n <= 32: val = cs(n * k, 64)[0]
            else: val = -cs((n - 32) * k, 64)[1]
            row.append(val)
        out += [pk(row[2*j], row[2*j+1]) for j in range(32)]
    return out
def tab_f1():
    out = []
    for mt in range(2):
        for l in range(64):
            q, i = l >> 4, l & 15
            e1 = 8 * mt + (i >> 1); cp = i & 1
            for jj in range(4):
                d1 = 4 * q + jj
                c, s_ = cs(e1 * d1, 16)
                out.append(pk(c, s_) if cp == 0 else pk(-s_, c))
    return out
def tab_f2():
    out = []
    for nt in range(2):
        for ks in range(2):
            for l in range(64):
                q, i = l >> 4, l & 15
                e2 = 16 * nt + i
                for jj in range(4):
                    d2 = 16 * ks + 4 * q + jj
                    c, s_ = cs(d2 * e2, 32)
                    out.append(pk(c, s_))
    return out
def tab_tw():
    out = []
    for wp in range(2):
        for l in range(64):
            q, i = l >> 4, l & 15
            d2 = 16 * wp + i
            for mt in range(2):
                for pp in range(2):
                    e1 = 8 * mt + 2 * q + pp
                    c, s_ = cs(d2 * e1, 512)
                    out += [f2u(c), f2u(s_)]
    return out
def tab_tw2():
    out = []
    for l in range(64):
        q, i = l >> 4, l & 15
        for h in range(2):
            d2 = 16 * h + i
            for mt in range(2):
                for pp in range(2):
                    e1 = 8 * mt + 2 * q + pp
                    c, s_ = cs(d2 * e1, 512)
                    out += [f2u(c), f2u(s_)]
    return out
def tab_f64frag():
    out = []
    for nh in range(2):
        for nt in range(2):
            for ks in range(2):
                for l in range(64):
                    q, i = l >> 4, l & 15
                    n = 32*nh + 16*nt + i
                    vals = []
                    for jj in range(8):
                        k = 32*ks + 8*q + jj
                        vals.append(cs(n * k, 64)[0] if n <= 32 else -cs((n - 32) * k, 64)[1])
                    out += [pk(vals[2*j], vals[2*j+1]) for j in range(4)]
    return out
TABS = [("tab_f64", tab_f64frag()), ("tab_f1", tab_f1()), ("tab_f2", tab_f2()), ("tab_tw2", tab_tw2())]
TAB_OFF = {}
_o = 0
for n, d in TABS:
    TAB_OFF[n] = _o; _o += len(d) * 4
TAB_BYTES = _o
def emit_tables():
    lines = [".p2align 8", ".type fft_tables,@object", "fft_tables:"]
    for n, d in TABS:
        for j in range(0, len(d), 8):
            lines.append(".long " + ", ".join("0x%08x" % x for x in d[j:j+8]))
    lines.append(f".size fft_tables, {TAB_BYTES}")
    return "\n".join(lines) + "\n"
if __name__ == "__main__": print(TAB_OFF, TAB_BYTES)
```

```python
from common import *
from gemm_util import fhex
from tables import TAB_OFF
from g2a import getpc_sym
NMOD = 96

def gen_ka(A, name="ka_kernel", stamps=False, prefetch=True):
    NFFT = 128; NPF = 32 if prefetch else 0; NWG = NFFT + NMOD + NPF
    F_L = 16384
    A.barrier_state(); A.raw(kernel_header(name))
    ST = Stamps(A, on=stamps, kidx=0)
    A(f"s_cmp_ge_u32 s2, {NWG}")
    A(f"s_cbranch_scc1 {name}_end")
    ST.stamp()
    A(f"s_cmp_ge_u32 s2, {NFFT}")
    A(f"s_cbranch_scc1 {name}_mod")
    load_ptr(A, 4, "x"); load_ptr(A, 6, "ws")
    getpc_sym(A, 8, "fft_tables")
    A("v_readfirstlane_b32 s20, v0")
    A("s_and_b32 s10, s2, 7")
    A("s_bfe_u32 s11, s2, 0x20003")
    A("s_lshl2_add_u32 s10, s10, s11")
    A("s_lshl_b32 s10, s10, 10")
    A("s_lshr_b32 s11, s2, 5")
    R = RegAlloc(1)
    voff = R.alloc(); vi = R.alloc(); vq = R.alloc(); vt0 = R.alloc(); vt1 = R.alloc()
    vS = R.alloc(); vQ = R.alloc(); vtr = R.alloc(); vst = R.alloc(); vl16 = R.alloc()
    xr = [R.alloc(4) for _ in range(8)]
    assert xr[7] == xr[0] + 28
    xo = R.alloc(8, 4)
    Ff = [[R.alloc(4) for _ in range(2)] for _ in range(2)]
    Af = [[R.alloc(4) for _ in range(2)] for _ in range(2)]
    acc = [[R.alloc(4) for _ in range(2)] for _ in range(2)]
    tmp = R.alloc(16, 4)
    A(f"v_lshrrev_b32 {v(vt0)}, 3, v0")
    A(f"v_and_b32 {v(vt1)}, 7, v0")
    A(f"v_lshlrev_b32 {v(vt0)}, 15, {v(vt0)}")
    A(f"v_lshl_add_u32 {v(voff)}, {v(vt1)}, 4, {v(vt0)}")
    A(f"v_add_u32 {v(voff)}, s10, {v(voff)}")
    A(f"v_lshlrev_b32 {v(vl16)}, 4, v0")
    A("s_lshr_b32 s20, s20, 6")
    A("s_lshl_b32 s12, s20, 10")
    A(f"s_add_u32 m0, s12, {F_L}")
    A("s_waitcnt lgkmcnt(0)")
    for it in range(8):
        A(f"global_load_dwordx4 {v(xr[it],4)}, {v(voff)}, s[4:5] offset:{it*128}")
    A(f"global_load_lds_dwordx4 {v(vl16)}, s[8:9] offset:{TAB_OFF['tab_f64']}")
    A(f"v_and_b32 {v(vi)}, 15, v0")
    A(f"v_bfe_u32 {v(vq)}, v0, 4, 2")
    A(f"v_lshrrev_b32 {v(vt0)}, 8, v0")
    A(f"v_lshlrev_b32 {v(vst)}, 20, {v(vt0)}")
    A(f"v_lshl_add_u32 {v(vst)}, {v(vi)}, 15, {v(vst)}")
    A(f"v_bfe_u32 {v(vt1)}, v0, 6, 2")
    A(f"v_lshl_add_u32 {v(vst)}, {v(vt1)}, 5, {v(vst)}")
    A(f"v_lshl_add_u32 {v(vst)}, {v(vq)}, 3, {v(vst)}")
    A("s_lshl_b32 s12, s11, 8")
    A("s_add_u32 s10, s10, s12")
    A(f"s_add_u32 s10, s10, {WS_T}")
    A(f"v_add_u32 {v(vst)}, s10, {v(vst)}")
    A(f"v_lshlrev_b32 {v(vtr)}, 5, {v(vt1)}")
    A(f"v_lshrrev_b32 {v(vt1)}, 2, {v(vi)}")
    A(f"v_lshl_add_u32 {v(vt1)}, {v(vq)}, 3, {v(vt1)}")
    A(f"v_lshl_add_u32 {v(vtr)}, {v(vt1)}, 7, {v(vtr)}")
    A(f"v_and_b32 {v(vt1)}, 3, {v(vi)}")
    A(f"v_lshl_add_u32 {v(vtr)}, {v(vt1)}, 3, {v(vtr)}")
    vfa = R.alloc()
    A(f"v_and_b32 {v(vfa)}, 63, v0")
    A(f"v_lshlrev_b32 {v(vfa)}, 4, {v(vfa)}")
    A(f"v_lshl_add_u32 {v(vfa)}, {v(vt0)}, 12, {v(vfa)}")
    A(f"v_mov_b32 {v(vS)}, 0")
    A(f"v_mov_b32 {v(vQ)}, 0")
    A("s_mov_b32 s12, 0x3f803f80")
    for it in range(8):
        A(f"s_waitcnt vmcnt({7 - it + 1})")
        for j in range(4):
            A(f"v_dot2_f32_bf16 {v(vS)}, {v(xr[it]+j)}, s12, {v(vS)}")
            A(f"v_dot2_f32_bf16 {v(vQ)}, {v(xr[it]+j)}, {v(xr[it]+j)}, {v(vQ)}")
    ST.stamp()
    A("s_lshl_b32 s13, s11, 3")
    A("s_mov_b32 s12, 0xffff0000")
    A("s_set_gpr_idx_on s13, gpr_idx(SRC0)")
    for j in range(8): A(f"v_mov_b32 {v(xo+j)}, {v(xr[0]+j)}")
    A("s_set_gpr_idx_off")
    for mode in ("quad_perm:[1,0,3,2]", "quad_perm:[2,3,0,1]", "row_half_mirror"):
        A(f"v_add_f32_dpp {v(vS)}, {v(vS)}, {v(vS)} {mode} row_mask:0xf bank_mask:0xf")
        A(f"v_add_f32_dpp {v(vQ)}, {v(vQ)}, {v(vQ)} {mode} row_mask:0xf bank_mask:0xf")
        A(f"v_lshlrev_b32 {v(tmp+0)}, 16, {v(xo+0)}") if mode.startswith("quad_perm:[1") else None
    for j in range(8):
        if j: A(f"v_lshlrev_b32 {v(tmp+2*j)}, 16, {v(xo+j)}")
        A(f"v_and_b32 {v(tmp+2*j+1)}, s12, {v(xo+j)}")
    A(f"v_mul_f32 {v(vS)}, 0x3b000000, {v(vS)}")
    A(f"v_mul_f32 {v(vQ)}, 0x3b000000, {v(vQ)}")
    A(f"v_fma_f32 {v(vQ)}, -{v(vS)}, {v(vS)}, {v(vQ)}")
    A(f"v_max_f32 {v(vQ)}, 0, {v(vQ)}")
    A(f"v_add_f32 {v(vQ)}, 0x3727c5ac, {v(vQ)}")
    A(f"v_rsq_f32 {v(vQ)}, {v(vQ)}")
    A(f"v_mul_f32 {v(vS)}, {v(vS)}, {v(vQ)}")
    for j in range(16): A(f"v_fma_f32 {v(tmp+j)}, {v(tmp+j)}, {v(vQ)}, -{v(vS)}")
    for h in range(2):
        for j in range(4): A(f"v_cvt_pk_bf16_f32 {v(xo+4*h+j)}, {v(tmp+8*h+2*j)}, {v(tmp+8*h+2*j+1)}")
        A(f"ds_write_b128 {v(vl16)}, {v(xo+4*h,4)} offset:{h*8192}")
    A("s_waitcnt vmcnt(0) lgkmcnt(0)")
    A("s_barrier")
    for h in range(2):
        for ks in range(2):
            for p in range(2):
                A(f"ds_read_b64_tr_b16 {v(Af[h][ks]+2*p,2)}, {v(vtr)} offset:{h*8192 + ks*32*128 + p*4*128}")
        if h == 0:
            for nt in range(2):
                for ks in range(2): A(f"ds_read_b128 {v(Ff[nt][ks],4)}, {v(vfa)} offset:{F_L + nt*2048 + ks*1024}")
    A(f"v_add_u32 {v(vt1)}, {16*32768}, {v(vst)}")
    for h in range(2):
        A(f"s_waitcnt lgkmcnt({4*(1-h)})")
        for ks in range(2):
            for nt in range(2):
                c = "0" if ks == 0 else v(acc[h][nt], 4)
                A(f"v_mfma_f32_16x16x32_bf16 {v(acc[h][nt],4)}, {v(Af[h][ks],4)}, {v(Ff[nt][ks],4)}, {c}")
    for h in range(2):
        for nt in range(2):
            k = h * 2 + nt
            A(f"v_cvt_pk_bf16_f32 {v(tmp+2*k)}, {v(acc[h][nt])}, {v(acc[h][nt]+1)}")
            A(f"v_cvt_pk_bf16_f32 {v(tmp+2*k+1)}, {v(acc[h][nt]+2)}, {v(acc[h][nt]+3)}")
            A(f"global_store_dwordx2 {v(vst if nt == 0 else vt1)}, {v(tmp+2*k,2)}, s[6:7] offset:{h*128}")
    if stamps:
        ST.stamp(); A("s_waitcnt vmcnt(0)"); ST.stamp(); ST.flush(6, tmp)
    A("s_endpgm")
    return_nv = R.hi
    import g6a
    return _ka_tail(A, name, ST, stamps, prefetch, NFFT, NPF, NWG, return_nv, F_L + 8192)

def _ka_tail(A, name, ST, stamps, prefetch, NFFT, NPF, NWG, nv, lds):
    A.label(f"{name}_mod")
    if prefetch:
        A(f"s_cmp_ge_u32 s2, {NFFT+NMOD}")
        A(f"s_cbranch_scc1 {name}_pf")
    load_ptr(A, 4, "wmod"); load_ptr(A, 8, "c"); load_ptr(A, 6, "ws")
    A(f"s_sub_u32 s10, s2, {NFFT}")
    A("s_lshl_b32 s11, s10, 6")
    R = RegAlloc(1)
    vk = R.alloc(); vt0 = R.alloc(); vt1 = R.alloc(); vc = R.alloc()
    vo = [R.alloc() for _ in range(4)]
    wr = [R.alloc(4) for _ in range(4)]
    cv = [R.alloc() for _ in range(4)]; ch = [R.alloc() for _ in range(4)]
    ac = R.alloc(8, 4); rr = R.alloc(16, 4)
    A(f"v_and_b32 {v(vt0)}, 0x1c0, v0")
    A(f"v_bfe_u32 {v(vt1)}, v0, 2, 4")
    A(f"v_add_u32 {v(vk)}, {v(vt0)}, {v(vt1)}")
    A(f"v_and_b32 {v(vc)}, 3, v0")
    A(f"v_mul_u32_u24 {v(vo[0])}, 6144, {v(vk)}")
    A(f"v_lshl_add_u32 {v(vo[0])}, {v(vc)}, 4, {v(vo[0])}")
    A(f"v_add_u32 {v(vo[0])}, s11, {v(vo[0])}")
    for it in range(1, 4): A(f"v_add_u32 {v(vo[it])}, {it*16*6144}, {v(vo[0])}")
    A(f"v_lshlrev_b32 {v(vk)}, 1, {v(vk)}")
    A("s_waitcnt lgkmcnt(0)")
    for it in range(4): A(f"global_load_ushort {v(cv[it])}, {v(vk)}, s[8:9] offset:{it*32}")
    for it in range(4): A(f"global_load_dwordx4 {v(wr[it],4)}, {v(vo[it])}, s[4:5]")
    for j in range(8): A(f"v_mov_b32 {v(ac+j)}, 0")
    A("s_waitcnt vmcnt(4)")
    for it in range(4): A(f"v_lshlrev_b32 {v(cv[it])}, 16, {v(cv[it])}")
    for it in range(4): A(f"v_mul_f32 {v(ch[it])}, 0xbfb8aa3b, {v(cv[it])}")
    for it in range(4): A(f"v_exp_f32 {v(ch[it])}, {v(ch[it])}")
    for it in range(4): A(f"v_add_f32 {v(ch[it])}, 1.0, {v(ch[it])}")
    for it in range(4): A(f"v_rcp_f32 {v(ch[it])}, {v(ch[it])}")
    for it in range(4): A(f"v_mul_f32 {v(cv[it])}, {v(cv[it])}, {v(ch[it])}")
    for it in range(4): A(f"v_cvt_pk_bf16_f32 {v(cv[it])}, {v(cv[it])}, 0")
    for it in range(4): A(f"v_lshlrev_b32 {v(ch[it])}, 16, {v(cv[it])}")
    for it in range(4):
        A(f"s_waitcnt vmcnt({3-it})")
        for j in range(4):
            A(f"v_dot2_f32_bf16 {v(ac+2*j)}, {v(wr[it]+j)}, {v(cv[it])}, {v(ac+2*j)}")
            A(f"v_dot2_f32_bf16 {v(ac+2*j+1)}, {v(wr[it]+j)}, {v(ch[it])}, {v(ac+2*j+1)}")
    for rot in (4, 8):
        for j in range(8):
            A(f"v_add_f32_dpp {v(ac+j)}, {v(ac+j)}, {v(ac+j)} row_ror:{rot} row_mask:0xf bank_mask:0xf")
    A(f"v_lshrrev_b32 {v(vt0)}, 4, v0")
    A(f"v_lshlrev_b32 {v(vt0)}, 7, {v(vt0)}")
    A(f"v_lshl_add_u32 {v(vt0)}, {v(vc)}, 5, {v(vt0)}")
    A(f"ds_write_b128 {v(vt0)}, {v(ac,4)}")
    A(f"ds_write_b128 {v(vt0)}, {v(ac+4,4)} offset:16")
    if prefetch:
        lab = f"{name}_nocp"
        A("s_cmp_ge_u32 s10, 8")
        A(f"s_cbranch_scc1 {lab}")
        getpc_sym(A, 12, "code_begin")
        A(f"v_lshlrev_b32 {v(vt0)}, 7, v0")
        A(f"v_mov_b32 {v(vt1)}, code_end-code_begin-4")
        A(f"v_min_u32 {v(vt0)}, {v(vt0)}, {v(vt1)}")
        A(f"v_and_b32 {v(vt0)}, -4, {v(vt0)}")
        A(f"global_load_dword {v(vk)}, {v(vt0)}, s[12:13]")
        A.label(lab)
    A("v_readfirstlane_b32 s20, v0")
    A("s_waitcnt lgkmcnt(0)")
    A("s_barrier")
    A("s_cmp_ge_u32 s20, 64")
    A(f"s_cbranch_scc1 {name}_end")
    A(f"v_and_b32 {v(vt1)}, 31, v0")
    A(f"v_lshrrev_b32 {v(vt0)}, 5, v0")
    A(f"v_lshlrev_b32 {v(vt0)}, 11, {v(vt0)}")
    A(f"v_lshl_add_u32 {v(vt0)}, {v(vt1)}, 2, {v(vt0)}")
    for p in range(16): A(f"ds_read_b32 {v(rr+p)}, {v(vt0)} offset:{p*128}")
    A("s_lshr_b32 s11, s10, 4")
    A("s_cmp_eq_u32 s11, 1")
    A("s_cselect_b32 s12, 1.0, 0")
    A("s_cmp_eq_u32 s11, 4")
    A("s_cselect_b32 s12, 1.0, s12")
    A("s_lshl_b32 s11, s10, 7")
    if WS_MOD: A(f"s_add_u32 s11, s11, {WS_MOD}")
    A(f"v_lshl_add_u32 {v(vt1)}, {v(vt1)}, 2, s11")
    A("s_waitcnt lgkmcnt(0)")
    for st_ in (8, 4, 2, 1):
        for p in range(st_): A(f"v_add_f32 {v(rr+p)}, {v(rr+p)}, {v(rr+p+st_)}")
    A(f"v_mov_b32 {v(rr+1)}, {v(rr)}")
    A(f"v_permlane32_swap_b32 {v(rr)}, {v(rr+1)}")
    A(f"v_add_f32 {v(rr)}, {v(rr)}, {v(rr+1)}")
    A(f"v_cvt_pk_bf16_f32 {v(rr)}, {v(rr)}, {v(rr)}")
    A(f"v_lshlrev_b32 {v(rr)}, 16, {v(rr)}")
    A(f"v_add_f32 {v(rr)}, s12, {v(rr)}")
    A(f"v_cvt_pk_bf16_f32 {v(rr)}, {v(rr)}, {v(rr)}")
    A(f"v_lshlrev_b32 {v(rr)}, 16, {v(rr)}")
    A(f"global_store_dword {v(vt1)}, {v(rr)}, s[6:7]")
    if stamps:
        A("s_mov_b32 s20, 0"); ST.n = 1; ST.stamp(); ST.stamp(); A("s_waitcnt vmcnt(0)"); ST.stamp(); ST.flush(6, ac)
    A("s_endpgm")
    if prefetch:
        A.label(f"{name}_pf")
        load_ptr(A, 4, "win")
        A(f"s_sub_u32 s10, s2, {NFFT+NMOD}")
        A("s_lshr_b32 s10, s10, 3")
        A("s_mul_i32 s10, s10, 1792")
        A("s_and_b32 s11, s2, 1")
        A("s_mul_i32 s11, s11, 896")
        A("v_add_u32 v1, s10, v0")
        A("v_mov_b32 v6, 896")
        A("s_waitcnt lgkmcnt(0)")
        for it in range(4):
            if it == 3:
                A("v_cmp_gt_u32 vcc, 256, v0")
                A("s_and_b64 exec, exec, vcc")
                A(f"s_cbranch_execz {name}_end")
            A("v_mul_u32_u24 v2, 9363, v1")
            A("v_lshrrev_b32 v2, 17, v2")
            A("v_mul_u32_u24 v3, 14, v2")
            A("v_sub_u32 v3, v1, v3")
            A("v_mul_u32_u24 v2, 3584, v2")
            A("v_lshl_add_u32 v2, v3, 7, v2")
            A("v_cmp_lt_u32 vcc, 6, v3")
            A("v_cndmask_b32 v3, 0, v6, vcc")
            A("v_add3_u32 v2, v2, v3, s11")
            A(f"global_load_dword v{8+it}, v2, s[4:5]")
            if it < 3: A("v_add_u32 v1, 512, v1")
    A.label(f"{name}_end")
    A("s_endpgm")
    return dict(name=name, grid=NWG, block=512, lds=lds, vgpr=max(nv, R.hi), sgpr=96 if stamps else 32)

def gen_kb(A, name="kb_kernel", stamps=False, prefetch=True, pfhalf=True):
    NW = 132; NWG = NW + 4
    TB_L = 0
    MD_L = TB_L + 10240
    WM_L = MD_L + 8192
    T_B = WM_L + 1024
    TS = 1056; V_OFF = T_B + 64 * TS; VS = 80; US = 144; YS = 2064
    U_OFF = T_B; Y_OFF = T_B + 20480
    LDS = V_OFF + 256 * VS
    A.barrier_state(); A.raw(kernel_header(name))
    ST = Stamps(A, on=stamps, kidx=1)
    sW, sC, sG, sT0, sT1, sT2, sRow, sMir, sRow2, sY = 20, 21, 22, 23, 24, 25, 26, 27, 28, 29
    SRD_T = 16
    A(f"s_cmp_ge_u32 s2, {NW}")
    A(f"s_cbranch_scc1 {name}_pf")
    ST.stamp()
    load_ptr(A, 16, "ws"); load_ptr(A, 4, "x"); load_ptr(A, 6, "sre"); load_ptr(A, 8, "sim")
    if prefetch: load_ptr(A, 12, "wsp")
    getpc_sym(A, 10, "fft_tables")
    A(f"v_readfirstlane_b32 {s(sW)}, v0")
    A(f"s_mov_b32 s18, {WS_T + 2*MB}")
    A("s_mov_b32 s19, 0x20000")
    A(f"s_and_b32 {s(sT0)}, s2, 7")
    A(f"s_bfe_u32 {s(sG)}, s2, 0x20003")
    A(f"s_lshr_b32 {s(sT1)}, s2, 5")
    A(f"s_lshl3_add_u32 {s(sC)}, {s(sT1)}, {s(sT0)}")
    A(f"s_cmp_ge_u32 s2, 128")
    A(f"s_cselect_b32 {s(sC)}, 32, {s(sC)}")
    A(f"s_cselect_b32 {s(sG)}, {s(sT0)}, {s(sG)}")
    A(f"s_lshr_b32 {s(sW)}, {s(sW)}, 6")
    R = RegAlloc(1)
    vl = R.alloc(); vq = R.alloc(); vi = R.alloc(); vl16 = R.alloc(); vtid16 = R.alloc()
    vtb = R.alloc(8, 4); vt = [vtb + k for k in range(8)]
    A0 = R.alloc(4); A1 = R.alloc(4)
    F1 = [R.alloc(4) for _ in range(2)]; F2 = [[R.alloc(4) for _ in range(2)] for _ in range(2)]
    tw = R.alloc(16, 4)
    opca = [R.alloc() for _ in range(4)]
    xrow = [R.alloc(4) for _ in range(2)]
    Bf = [[R.alloc(4) for _ in range(2)] for _ in range(4)]
    acc = [R.alloc(4) for _ in range(4)]
    ga = R.alloc(8, 4); sb = R.alloc(8, 4); ocb = R.alloc(8, 4)
    vaT = R.alloc(); vaVw = R.alloc(); vaVr = R.alloc(); vaUw = R.alloc(); vaUr = R.alloc(); vaYw = R.alloc()
    vrow = [R.alloc() for _ in range(2)]
    xf = R.alloc(8, 4); yy = R.alloc(8, 4)
    Rr = R.alloc(4); Ri = R.alloc(4)
    A(f"v_and_b32 {v(vl)}, 63, v0")
    A(f"v_lshlrev_b32 {v(vl16)}, 4, {v(vl)}")
    A(f"v_lshlrev_b32 {v(vtid16)}, 4, v0")
    A(f"s_add_u32 {s(sT1)}, {s(sC)}, 32")
    A(f"s_and_b32 {s(sT2)}, {s(sC)}, 31")
    A(f"s_cselect_b32 {s(sMir)}, 1, 0")
    A(f"s_cselect_b32 {s(sT1)}, {s(sT1)}, 0x4000")
    A(f"s_cmp_ge_u32 {s(sW)}, 4")
    A(f"s_cselect_b32 {s(sT0)}, {s(sT1)}, {s(sC)}")
    A(f"s_lshl_b32 {s(sT0)}, {s(sT0)}, 15")
    A(f"s_and_b32 {s(sT1)}, {s(sW)}, 3")
    A(f"s_lshl_b32 {s(sT1)}, {s(sT1)}, 13")
    A(f"s_add_u32 {s(sT0)}, {s(sT0)}, {s(sT1)}")
    A(f"s_add_u32 {s(sT0)}, {s(sT0)}, {WS_T - 128}")
    A(f"s_mul_i32 {s(sT1)}, {s(sW)}, {8*TS}")
    A(f"s_add_u32 m0, {s(sT1)}, {T_B}")
    for j in range(4): A(f"v_add_u32 {v(vt[4+j])}, {128 - 32*j}, {v(vl16)}")
    A(f"v_and_b32 {v(vi)}, 15, v0")
    A(f"v_bfe_u32 {v(vq)}, v0, 4, 2")
    A(f"v_bfe_u32 {v(vt[0])}, v0, 2, 3")
    A(f"v_lshlrev_b32 {v(vt[0])}, 18, {v(vt[0])}")
    A(f"v_and_b32 {v(vt[1])}, 3, v0")
    A(f"v_lshl_add_u32 {v(vt[0])}, {v(vt[1])}, 4, {v(vt[0])}")
    A(f"s_lshl_b32 {s(sT1)}, {s(sG)}, 21")
    A(f"s_lshl_b32 {s(sT2)}, {s(sC)}, 12")
    A(f"s_add_u32 {s(sT1)}, {s(sT1)}, {s(sT2)}")
    A(f"v_add_u32 {v(vt[0])}, {s(sT1)}, {v(vt[0])}")
    A(f"s_lshl3_add_u32 {s(sT1)}, {s(sG)}, {s(sW)}")
    A(f"s_lshl_b32 {s(sT1)}, {s(sT1)}, 6")
    A(f"s_add_u32 {s(sRow)}, {s(sT1)}, {s(sC)}")
    A(f"s_sub_u32 {s(sRow2)}, 2048, {s(sRow)}")
    A(f"s_and_b32 {s(sRow2)}, {s(sRow2)}, 2047")
    A(f"s_lshl_b32 {s(sRow)}, {s(sRow)}, 10")
    A(f"s_lshl_b32 {s(sRow2)}, {s(sRow2)}, 10")
    A(f"v_add_u32 {v(vrow[0])}, {s(sRow)}, {v(vl16)}")
    A(f"v_add_u32 {v(vrow[1])}, {s(sRow2)}, {v(vl16)}")
    A(f"s_lshl_b32 {s(sT2)}, {s(sW)}, 10")
    A("s_waitcnt lgkmcnt(0)")
    for g in range(2):
        if g:
            A(f"s_add_u32 m0, m0, {4*TS}")
            A(f"s_add_u32 {s(sT0)}, {s(sT0)}, 4096")
        for j in range(4):
            A(f"buffer_load_dwordx4 {v(vt[4+j])}, {s(SRD_T,4)}, {s(sT0)} offen offset:{j*TS} lds")
    A(f"s_add_u32 m0, {s(sT2)}, {TB_L}")
    A(f"v_add_u32 {v(vt[1])}, {TAB_OFF['tab_f1']}, {v(vtid16)}")
    A(f"global_load_lds_dwordx4 {v(vt[1])}, s[10:11]")
    A(f"s_add_u32 m0, {s(sT2)}, {MD_L}")
    A(f"v_add_u32 {v(vt[2])}, {WS_MOD + 2048}, {v(vtid16)}")
    A(f"global_load_lds_dwordx4 {v(vt[2])}, s[16:17]")
    lx = f"{name}_nox"; l23 = f"{name}_x23"
    A(f"s_cmp_ge_u32 {s(sW)}, 4")
    A(f"s_cbranch_scc1 {lx}")
    A(f"s_cmp_ge_u32 {s(sW)}, 2")
    A(f"s_cbranch_scc1 {l23}")
    A(f"s_add_u32 m0, {s(sT2)}, {TB_L + 8192}")
    A(f"v_add_u32 {v(vt[1])}, 8192, {v(vt[1])}")
    A(f"global_load_lds_dwordx4 {v(vt[1])}, s[10:11]")
    A(f"s_branch {lx}")
    A.label(l23)
    A(f"s_cmp_eq_u32 {s(sW)}, 3")
    A("s_cselect_b32 s6, s8, s6")
    A("s_cselect_b32 s7, s9, s7")
    A(f"s_cselect_b32 m0, {WM_L + 512}, {WM_L}".replace(f"{WM_L + 512}, {WM_L}", f"{s(sT1)}, {s(sT2)}") if False else f"s_cselect_b32 {s(sT1)}, 512, 0")
    A(f"s_add_u32 m0, {s(sT1)}, {WM_L}")
    A("s_mov_b32 exec_hi, 0")
    A(f"global_load_lds_dwordx4 {v(vt[0])}, s[6:7]")
    A("s_mov_b32 exec_hi, -1")
    A.label(lx)
    for h in range(2): A(f"global_load_dwordx4 {v(xrow[h],4)}, {v(vrow[h])}, s[4:5]")
    A(f"v_lshrrev_b32 {v(vt[0])}, 2, {v(vi)}")
    A(f"v_lshl_add_u32 {v(vt[0])}, {v(vq)}, 2, {v(vt[0])}")
    A(f"v_mul_u32_u24 {v(vaT)}, {TS}, {v(vt[0])}")
    A(f"v_and_b32 {v(vt[0])}, 3, {v(vi)}")
    A(f"v_lshl_add_u32 {v(vaT)}, {v(vt[0])}, 3, {v(vaT)}")
    A(f"v_and_b32 {v(vt[4])}, 0x1c0, v0")
    A(f"v_lshl_add_u32 {v(vaT)}, {v(vt[4])}, 1, {v(vaT)}")
    A(f"v_add_u32 {v(vaT)}, {T_B}, {v(vaT)}")
    A(f"v_lshl_add_u32 {v(vt[0])}, {v(vq)}, 6, {v(vi)}")
    A(f"v_mul_u32_u24 {v(vaVw)}, {VS}, {v(vt[0])}")
    A(f"v_lshrrev_b32 {v(vt[0])}, 3, {v(vt[4])}")
    A(f"s_mov_b32 {s(sT2)}, {V_OFF}")
    A(f"v_add3_u32 {v(vaVw)}, {v(vaVw)}, {v(vt[0])}, {s(sT2)}")
    A(f"v_lshrrev_b32 {v(vt[0])}, 1, {v(vt[4])}")
    A(f"v_add_u32 {v(vt[0])}, {v(vt[0])}, {v(vi)}")
    A(f"v_mul_u32_u24 {v(vaVr)}, {VS}, {v(vt[0])}")
    A(f"v_lshl_add_u32 {v(vaVr)}, {v(vq)}, 4, {v(vaVr)}")
    A(f"v_add_u32 {v(vaVr)}, {V_OFF}, {v(vaVr)}")
    A(f"v_lshrrev_b32 {v(vt[0])}, 2, {v(vt[4])}")
    A(f"v_lshl_add_u32 {v(vt[3])}, {v(vq)}, 1, {v(vt[0])}")
    A(f"v_mul_u32_u24 {v(vaUw)}, {US}, {v(vt[3])}")
    A(f"v_lshl_add_u32 {v(vaUw)}, {v(vi)}, 2, {v(vaUw)}")
    A(f"v_add_u32 {v(vt[3])}, {v(vt[0])}, {v(vi)}")
    A(f"v_mul_u32_u24 {v(vaUr)}, {US}, {v(vt[3])}")
    A(f"v_lshl_add_u32 {v(vaUr)}, {v(vq)}, 4, {v(vaUr)}")
    A(f"s_mul_i32 {s(sY)}, {s(sW)}, {YS}")
    A(f"s_add_u32 {s(sY)}, {s(sY)}, {Y_OFF}")
    A(f"v_lshlrev_b32 {v(vaYw)}, 6, {v(vi)}")
    A(f"v_lshl_add_u32 {v(vaYw)}, {v(vq)}, 4, {v(vaYw)}")
    A(f"v_add_u32 {v(vaYw)}, {s(sY)}, {v(vaYw)}")
    A(f"v_lshrrev_b32 {v(vt[5])}, 1, {v(vi)}")
    A(f"v_lshlrev_b32 {v(vt[5])}, 6, {v(vt[5])}")
    A(f"v_lshl_add_u32 {v(vt[5])}, {v(vq)}, 3, {v(vt[5])}")
    A(f"v_add_u32 {v(vt[6])}, {v(vt[4])}, {v(vi)}")
    A(f"v_lshlrev_b32 {v(vt[6])}, 2, {v(vt[6])}")
    A(f"v_and_b32 {v(vt[3])}, 1, v0")
    A(f"v_cmp_eq_u32 vcc, 1, {v(vt[3])}")
    A(f"s_mov_b32 {s(sT0)}, 0x80008000")
    A("s_waitcnt vmcnt(2)")
    vpf = R.alloc(); vpd = R.alloc(2)
    if prefetch:
        A(f"s_bfe_u32 {s(sT1)}, s2, 0x20001")
        A(f"s_lshl_b32 {s(sT1)}, {s(sT1)}, 21")
        A(f"s_lshr_b32 {s(sT2)}, s2, 3")
        A(f"s_lshl3_add_u32 {s(sT2)}, {s(sT2)}, {s(sW)}")
        A(f"s_and_b32 {s(sT2)}, {s(sT2)}, 127")
        A(f"s_lshl_b32 {s(sT2)}, {s(sT2)}, 14")
        A(f"s_add_u32 {s(sT1)}, {s(sT1)}, {s(sT2)}")
        if pfhalf:
            A(f"s_and_b32 {s(sT2)}, s2, 1")
            A(f"s_lshl_b32 {s(sT2)}, {s(sT2)}, 13")
            A(f"s_add_u32 {s(sT1)}, {s(sT1)}, {s(sT2)}")
        A(f"v_lshl_add_u32 {v(vpf)}, {v(vl)}, 7, {s(sT1)}")
    ST.stamp()
    A("s_barrier")
    if prefetch:
        A(f"global_load_dword {v(vpd)}, {v(vpf)}, s[12:13]")
        if not pfhalf:
            A(f"v_add_u32 {v(vpf)}, 8192, {v(vpf)}")
            A(f"global_load_dword {v(vpd+1)}, {v(vpf)}, s[12:13]")
    for reg, o in ((Rr, 0), (Ri, 512)):
        A(f"ds_read_b64 {v(reg,2)}, {v(vt[5])} offset:{WM_L + o}")
        A(f"ds_read_b64 {v(reg+2,2)}, {v(vt[5])} offset:{WM_L + o + 32}")
    for jt in range(4):
        for c in range(2):
            for p in range(2):
                A(f"ds_read_b64_tr_b16 {v(Bf[jt][c]+2*p,2)}, {v(vaT)} offset:{c*32*TS + p*16*TS + jt*32}")
        if jt == 1:
            pass
    A("s_waitcnt lgkmcnt(15)")
    for j in range(4):
        A(f"v_xor_b32 {v(vt[0])}, {s(sT0)}, {v(Ri+j)}")
        A(f"v_cndmask_b32 {v(A0+j)}, {v(Rr+j)}, {v(Ri+j)}, vcc")
        A(f"v_cndmask_b32 {v(A1+j)}, {v(vt[0])}, {v(Rr+j)}, vcc")
    for jt in range(4): A(f"ds_read_b32 {v(opca[jt])}, {v(vt[6])} offset:{MD_L + jt*64}")
    for jt in range(4):
        A(f"s_waitcnt lgkmcnt({min(15, (3-jt)*4 + 4)})")
        A(f"v_mfma_f32_16x16x32_bf16 {v(acc[jt],4)}, {v(A0,4)}, {v(Bf[jt][0],4)}, 0")
        A(f"v_mfma_f32_16x16x32_bf16 {v(acc[jt],4)}, {v(A1,4)}, {v(Bf[jt][1],4)}, {v(acc[jt],4)}")
    for mt in range(2): A(f"ds_read_b128 {v(F1[mt],4)}, {v(vl16)} offset:{TB_L + mt*1024}")
    A(f"v_lshlrev_b32 {v(vt[7])}, 2, {v(vl16)}")
    for h in range(4): A(f"ds_read_b128 {v(tw+4*h,4)}, {v(vt[7])} offset:{TB_L + 6144 + h*16}")
    A("s_waitcnt lgkmcnt(6)")
    for jt in range(4):
        for r in range(4): A(f"v_mul_f32 {v(acc[jt]+r)}, {v(acc[jt]+r)}, {v(opca[jt])}")
    lab = f"{name}_nodc"
    A(f"s_or_b32 {s(sT0)}, {s(sC)}, {s(sG)}")
    A(f"s_cbranch_scc1 {lab}")
    A(f"v_and_b32 {v(vt[2])}, 0x1cf, v0")
    A(f"v_lshlrev_b32 {v(vt[2])}, 2, {v(vt[2])}")
    if WS_MOD: A(f"v_add_u32 {v(vt[2])}, {WS_MOD}, {v(vt[2])}")
    for jt in range(4): A(f"global_load_dword {v(Bf[0][0]+jt)}, {v(vt[2])}, s[16:17] offset:{jt*64}")
    A(f"v_cmp_eq_u32 vcc, 0, {v(vq)}")
    A(f"v_mov_b32 {v(vt[1])}, 0x45000000")
    A(f"v_cndmask_b32 {v(vt[1])}, 0, {v(vt[1])}, vcc")
    A("s_waitcnt vmcnt(0)")
    for jt in range(4): A(f"v_fmac_f32 {v(acc[jt])}, {v(Bf[0][0]+jt)}, {v(vt[1])}")
    A.label(lab)
    for jt in range(4):
        ac = acc[jt]
        A(f"v_cvt_pk_bf16_f32 {v(ac)}, {v(ac)}, {v(ac+1)}")
        A(f"v_cvt_pk_bf16_f32 {v(ac+1)}, {v(ac+2)}, {v(ac+3)}")
        o0 = (jt&1)*16*VS + (jt>>1)*4
        A(f"ds_write_b32 {v(vaVw)}, {v(ac)} offset:{o0}")
        A(f"ds_write_b32 {v(vaVw)}, {v(ac+1)} offset:{o0 + 32*VS}")
    A(f"s_mov_b32 {s(sT0)}, 0xffff0000")
    A("s_waitcnt lgkmcnt(0)")
    A("s_barrier")
    ST.stamp()
    for h in range(2): A(f"ds_read_b128 {v(Bf[h][0],4)}, {v(vaVr)} offset:{h*16*VS}")
    for nt in range(2):
        for ks in range(2): A(f"ds_read_b128 {v(F2[nt][ks],4)}, {v(vl16)} offset:{TB_L + 2048 + nt*2048 + ks*1024}")
    A(f"v_lshlrev_b32 {v(vt[7])}, 1, {v(vl16)}")
    for h in range(2):
        A(f"s_waitcnt lgkmcnt({5-h})")
        for mt in range(2):
            A(f"v_mfma_f32_16x16x32_bf16 {v(acc[2*h+mt],4)}, {v(F1[mt],4)}, {v(Bf[h][0],4)}, 0")
    for reg, sec in ((ga, 1), (sb, 2), (ocb, 3)):
        for u in range(2): A(f"ds_read_b128 {v(reg+4*u,4)}, {v(vt[7])} offset:{MD_L + sec*2048 + u*16}")
    for h in range(2):
        for mt in range(2):
            for pp in range(2):
                re, im = acc[2*h+mt] + 2 * pp, acc[2*h+mt] + 2 * pp + 1
                k = ((h*2+mt)*2+pp)*2
                c_, s_ = tw + k, tw + k + 1
                t0, t1 = vt[4*pp], vt[4*pp+1]
                if pp == 1 and False: pass
                A(f"v_mul_f32 {v(t0)}, {v(re)}, {v(c_)}")
                A(f"v_mul_f32 {v(t1)}, {v(im)}, {v(c_)}")
                A(f"v_fma_f32 {v(t0)}, {v(im)}, {v(s_)}, {v(t0)}")
                A(f"v_fma_f32 {v(t1)}, -{v(re)}, {v(s_)}, {v(t1)}")
                A(f"v_cvt_pk_bf16_f32 {v(vt[4*pp+2])}, {v(t0)}, {v(t1)}")
                A(f"ds_write_b32 {v(vaUw)}, {v(vt[4*pp+2])} offset:{U_OFF + (8*mt+pp)*US + h*64}")
    A("s_waitcnt lgkmcnt(0)")
    for ks in range(2): A(f"ds_read_b128 {v(Bf[ks][0],4)}, {v(vaUr)} offset:{U_OFF + ks*64}")
    A(f"s_waitcnt vmcnt({(1 if pfhalf else 2) if prefetch else 0})")
    xg = [xf, yy]
    for r in range(2):
        for j in range(4):
            A(f"v_lshlrev_b32 {v(xg[r]+2*j)}, 16, {v(xrow[r]+j)}")
            A(f"v_and_b32 {v(xg[r]+2*j+1)}, {s(sT0)}, {v(xrow[r]+j)}")
    for ks in range(2):
        A(f"s_waitcnt lgkmcnt({1-ks})")
        for nt in range(2):
            c = "0" if ks == 0 else v(acc[nt], 4)
            A(f"v_mfma_f32_16x16x32_bf16 {v(acc[nt],4)}, {v(Bf[ks][0],4)}, {v(F2[nt][ks],4)}, {c}")
    A(f"v_lshl_add_u32 {v(vt[0])}, {v(vl16)}, 1, {s(sY)}")
    A(f"v_lshlrev_b32 {v(vt[2])}, 1, {v(vl16)}")
    A(f"v_sub_u32 {v(vt[1])}, 2048, {v(vt[2])}")
    A(f"v_and_b32 {v(vt[1])}, 2047, {v(vt[1])}")
    A(f"v_add_u32 {v(vt[1])}, {s(sY)}, {v(vt[1])}")
    A(f"s_add_u32 {s(sT1)}, {s(sY)}, {505*4}")
    A(f"v_sub_u32 {v(vt[2])}, {s(sT1)}, {v(vt[2])}")
    for nt in range(2): A(f"ds_write_b128 {v(vaYw)}, {v(acc[nt],4)} offset:{nt*1024}")
    A("s_waitcnt lgkmcnt(0)")
    ST.stamp()
    y = Bf[2][0]; assert Bf[2][1] == y + 4
    y2 = Bf[3][0]; assert Bf[3][1] == y2 + 4
    A(f"ds_read_b128 {v(y,4)}, {v(vt[0])}")
    A(f"ds_read_b128 {v(y+4,4)}, {v(vt[0])} offset:16")
    A(f"ds_read_b32 {v(y2)}, {v(vt[1])}")
    A(f"ds_read_b32 {v(y2+1)}, {v(vt[2])} offset:24")
    for j in (2, 4, 6): A(f"ds_read2_b32 {v(y2+j,2)}, {v(vt[2])} offset0:{7-j} offset1:{6-j}")
    A("s_waitcnt lgkmcnt(5)")
    for j in range(8): A(f"v_fma_f32 {v(xf+j)}, {v(ga+j)}, {v(y+j)}, {v(xf+j)}")
    A("s_waitcnt lgkmcnt(0)")
    for j in range(8): A(f"v_fma_f32 {v(yy+j)}, {v(ga+j)}, {v(y2+j)}, {v(yy+j)}")
    for r in range(2):
        for j in range(4): A(f"v_cvt_pk_bf16_f32 {v(xrow[r]+j)}, {v(xg[r]+2*j)}, {v(xg[r]+2*j+1)}")
    A(f"v_add_u32 {v(vt[2])}, {WS_X1}, {v(vrow[0])}")
    A(f"v_add_u32 {v(vt[3])}, {WS_X1}, {v(vrow[1])}")
    A(f"global_store_dwordx4 {v(vt[2])}, {v(xrow[0],4)}, s[16:17]")
    lab2 = f"{name}_nomir1"
    A(f"s_cmp_eq_u32 {s(sMir)}, 0")
    A(f"s_cbranch_scc1 {lab2}")
    A(f"global_store_dwordx4 {v(vt[3])}, {v(xrow[1],4)}, s[16:17]")
    A.label(lab2)
    for r in range(2):
        for j in range(4):
            A(f"v_lshlrev_b32 {v(xg[r]+2*j)}, 16, {v(xrow[r]+j)}")
            A(f"v_and_b32 {v(xg[r]+2*j+1)}, {s(sT0)}, {v(xrow[r]+j)}")
    S_ = [vt[0], vt[1]]; Q_ = [vt[4], vt[5]]
    for r in range(2):
        A(f"v_add_f32 {v(S_[r])}, {v(xg[r])}, {v(xg[r]+1)}")
        A(f"v_mul_f32 {v(Q_[r])}, {v(xg[r])}, {v(xg[r])}")
    for j in range(1, 8):
        for r in range(2):
            if j >= 2: A(f"v_add_f32 {v(S_[r])}, {v(S_[r])}, {v(xg[r]+j)}")
            A(f"v_fmac_f32 {v(Q_[r])}, {v(xg[r]+j)}, {v(xg[r]+j)}")
    chains = [S_[0], Q_[0], S_[1], Q_[1]]
    for mode, rm in (("quad_perm:[1,0,3,2]", "0xf"), ("quad_perm:[2,3,0,1]", "0xf"), ("row_half_mirror", "0xf"), ("row_mirror", "0xf"), ("row_bcast:15", "0xa"), ("row_bcast:31", "0xc")):
        for c_ in chains: A(f"v_add_f32_dpp {v(c_)}, {v(c_)}, {v(c_)} {mode} row_mask:{rm} bank_mask:0xf")
    for k, c_ in enumerate(chains): A(f"v_readlane_b32 {s(30+k)}, {v(c_)}, 63")
    A(f"v_mov_b32 {v(vt[6])}, 0x3b000000")
    for r in range(2):
        A(f"v_mul_f32 {v(S_[r])}, {s(30+2*r)}, {v(vt[6])}")
        A(f"v_mul_f32 {v(Q_[r])}, {s(31+2*r)}, {v(vt[6])}")
    for r in range(2): A(f"v_fma_f32 {v(Q_[r])}, -{v(S_[r])}, {v(S_[r])}, {v(Q_[r])}")
    for r in range(2): A(f"v_max_f32 {v(Q_[r])}, 0, {v(Q_[r])}")
    for r in range(2): A(f"v_add_f32 {v(Q_[r])}, 0x3727c5ac, {v(Q_[r])}")
    for r in range(2): A(f"v_rsq_f32 {v(Q_[r])}, {v(Q_[r])}")
    A(f"v_add_u32 {v(vt[2])}, {WS_H2}, {v(vrow[0])}")
    A(f"v_add_u32 {v(vt[3])}, {WS_H2}, {v(vrow[1])}")
    for r in range(2):
        for j in range(8): A(f"v_sub_f32 {v(xg[r]+j)}, {v(xg[r]+j)}, {v(S_[r])}")
    for r in range(2):
        for j in range(8): A(f"v_mul_f32 {v(xg[r]+j)}, {v(xg[r]+j)}, {v(Q_[r])}")
    for r in range(2):
        for j in range(8): A(f"v_fma_f32 {v(xg[r]+j)}, {v(xg[r]+j)}, {v(ocb+j)}, {v(sb+j)}")
    yo = [y, y2]
    for r in range(2):
        for j in range(4): A(f"v_cvt_pk_bf16_f32 {v(yo[r]+j)}, {v(xg[r]+2*j)}, {v(xg[r]+2*j+1)}")
    A(f"global_store_dwordx4 {v(vt[2])}, {v(y,4)}, s[16:17]")
    A(f"s_cmp_eq_u32 {s(sMir)}, 0")
    A(f"s_cbranch_scc1 {name}_fin")
    A(f"global_store_dwordx4 {v(vt[3])}, {v(y2,4)}, s[16:17]")
    A.label(f"{name}_fin")
    if stamps:
        ST.stamp(); A("s_waitcnt vmcnt(0)"); ST.stamp(); ST.flush(16, ga)
    A("s_endpgm")
    A.label(f"{name}_pf")
    A(f"s_cmp_ge_u32 s2, {NWG}")
    A(f"s_cbranch_scc1 {name}_end")
    load_ptr(A, 4, "ws")
    A(f"s_sub_u32 s10, s2, {NW}")
    A("s_lshl_b32 s10, s10, 16")
    A(f"s_add_u32 s10, s10, {WS_STAT}")
    A("v_lshl_add_u32 v1, v0, 4, s10")
    for j in range(4): A(f"v_mov_b32 v{4+j}, -1")
    A("s_waitcnt lgkmcnt(0)")
    for it in range(8):
        A("global_store_dwordx4 v1, v[4:7], s[4:5]")
        if it < 7: A("v_add_u32 v1, 8192, v1")
    A.label(f"{name}_end")
    A("s_endpgm")
    return dict(name=name, grid=NWG, block=512, lds=LDS, vgpr=R.hi, sgpr=96 if stamps else 40)
```

```python
from common import *
from gemm_util import fhex
from tables import TAB_OFF
from g2a import getpc_sym
NMOD = 96

def gen_ka(A, name="ka_kernel", stamps=False, prefetch=True, codepf=True):
    NFFT = 128; NPF = 32 if prefetch else 0; NWG = NFFT + NMOD + NPF
    F_L = 16384
    A.barrier_state(); A.raw(kernel_header(name))
    ST = Stamps(A, on=stamps, kidx=0)
    A(f"s_cmp_ge_u32 s2, {NWG}")
    A(f"s_cbranch_scc1 {name}_end")
    ST.stamp()
    A(f"s_cmp_ge_u32 s2, {NFFT}")
    A(f"s_cbranch_scc1 {name}_mod")
    load_ptr(A, 4, "x"); load_ptr(A, 6, "ws")
    getpc_sym(A, 8, "fft_tables")
    A("v_readfirstlane_b32 s20, v0")
    A("s_and_b32 s10, s2, 7")
    A("s_bfe_u32 s11, s2, 0x20003")
    A("s_lshl2_add_u32 s10, s10, s11")
    A("s_lshl_b32 s10, s10, 10")
    A("s_lshr_b32 s11, s2, 5")
    R = RegAlloc(1)
    voff = R.alloc(); vi = R.alloc(); vq = R.alloc(); vt0 = R.alloc(); vt1 = R.alloc()
    vS = R.alloc(); vQ = R.alloc(); vtr = R.alloc(); vst = R.alloc(); vl16 = R.alloc()
    xr = [R.alloc(4) for _ in range(8)]
    assert xr[7] == xr[0] + 28
    xo = R.alloc(8, 4)
    Ff = [[R.alloc(4) for _ in range(2)] for _ in range(2)]
    Af = [[R.alloc(4) for _ in range(2)] for _ in range(2)]
    acc = [[R.alloc(4) for _ in range(2)] for _ in range(2)]
    tmp = R.alloc(16, 4)
    A(f"v_lshrrev_b32 {v(vt0)}, 3, v0")
    A(f"v_and_b32 {v(vt1)}, 7, v0")
    A(f"v_lshlrev_b32 {v(vt0)}, 15, {v(vt0)}")
    A(f"v_lshl_add_u32 {v(voff)}, {v(vt1)}, 4, {v(vt0)}")
    A(f"v_add_u32 {v(voff)}, s10, {v(voff)}")
    A(f"v_lshlrev_b32 {v(vl16)}, 4, v0")
    A("s_lshr_b32 s20, s20, 6")
    A("s_lshl_b32 s12, s20, 10")
    A(f"s_add_u32 m0, s12, {F_L}")
    A("s_waitcnt lgkmcnt(0)")
    for it in range(8):
        A(f"global_load_dwordx4 {v(xr[it],4)}, {v(voff)}, s[4:5] offset:{it*128}")
    A(f"global_load_lds_dwordx4 {v(vl16)}, s[8:9] offset:{TAB_OFF['tab_f64']}")
    A(f"v_and_b32 {v(vi)}, 15, v0")
    A(f"v_bfe_u32 {v(vq)}, v0, 4, 2")
    A(f"v_lshrrev_b32 {v(vt0)}, 8, v0")
    A(f"v_lshlrev_b32 {v(vst)}, 20, {v(vt0)}")
    A(f"v_lshl_add_u32 {v(vst)}, {v(vi)}, 15, {v(vst)}")
    A(f"v_bfe_u32 {v(vt1)}, v0, 6, 2")
    A(f"v_lshl_add_u32 {v(vst)}, {v(vt1)}, 5, {v(vst)}")
    A(f"v_lshl_add_u32 {v(vst)}, {v(vq)}, 3, {v(vst)}")
    A("s_lshl_b32 s12, s11, 8")
    A("s_add_u32 s10, s10, s12")
    A(f"s_add_u32 s10, s10, {WS_T}")
    A(f"v_add_u32 {v(vst)}, s10, {v(vst)}")
    A(f"v_lshlrev_b32 {v(vtr)}, 5, {v(vt1)}")
    A(f"v_lshrrev_b32 {v(vt1)}, 2, {v(vi)}")
    A(f"v_lshl_add_u32 {v(vt1)}, {v(vq)}, 3, {v(vt1)}")
    A(f"v_lshl_add_u32 {v(vtr)}, {v(vt1)}, 7, {v(vtr)}")
    A(f"v_and_b32 {v(vt1)}, 3, {v(vi)}")
    A(f"v_lshl_add_u32 {v(vtr)}, {v(vt1)}, 3, {v(vtr)}")
    vfa = R.alloc()
    A(f"v_and_b32 {v(vfa)}, 63, v0")
    A(f"v_lshlrev_b32 {v(vfa)}, 4, {v(vfa)}")
    A(f"v_lshl_add_u32 {v(vfa)}, {v(vt0)}, 12, {v(vfa)}")
    A(f"v_mov_b32 {v(vS)}, 0")
    A(f"v_mov_b32 {v(vQ)}, 0")
    A("s_mov_b32 s12, 0x3f803f80")
    for it in range(8):
        A(f"s_waitcnt vmcnt({7 - it + 1})")
        for j in range(4):
            A(f"v_dot2_f32_bf16 {v(vS)}, {v(xr[it]+j)}, s12, {v(vS)}")
            A(f"v_dot2_f32_bf16 {v(vQ)}, {v(xr[it]+j)}, {v(xr[it]+j)}, {v(vQ)}")
    ST.stamp()
    A("s_lshl_b32 s13, s11, 3")
    A("s_mov_b32 s12, 0xffff0000")
    A("s_set_gpr_idx_on s13, gpr_idx(SRC0)")
    for j in range(8): A(f"v_mov_b32 {v(xo+j)}, {v(xr[0]+j)}")
    A("s_set_gpr_idx_off")
    for mode in ("quad_perm:[1,0,3,2]", "quad_perm:[2,3,0,1]", "row_half_mirror"):
        A(f"v_add_f32_dpp {v(vS)}, {v(vS)}, {v(vS)} {mode} row_mask:0xf bank_mask:0xf")
        A(f"v_add_f32_dpp {v(vQ)}, {v(vQ)}, {v(vQ)} {mode} row_mask:0xf bank_mask:0xf")
        A(f"v_lshlrev_b32 {v(tmp+0)}, 16, {v(xo+0)}") if mode.startswith("quad_perm:[1") else None
    for j in range(8):
        if j: A(f"v_lshlrev_b32 {v(tmp+2*j)}, 16, {v(xo+j)}")
        A(f"v_and_b32 {v(tmp+2*j+1)}, s12, {v(xo+j)}")
    A(f"v_mul_f32 {v(vS)}, 0x3b000000, {v(vS)}")
    A(f"v_mul_f32 {v(vQ)}, 0x3b000000, {v(vQ)}")
    A(f"v_fma_f32 {v(vQ)}, -{v(vS)}, {v(vS)}, {v(vQ)}")
    A(f"v_max_f32 {v(vQ)}, 0, {v(vQ)}")
    A(f"v_add_f32 {v(vQ)}, 0x3727c5ac, {v(vQ)}")
    A(f"v_rsq_f32 {v(vQ)}, {v(vQ)}")
    A(f"v_mul_f32 {v(vS)}, {v(vS)}, {v(vQ)}")
    for j in range(16): A(f"v_fma_f32 {v(tmp+j)}, {v(tmp+j)}, {v(vQ)}, -{v(vS)}")
    for h in range(2):
        for j in range(4): A(f"v_cvt_pk_bf16_f32 {v(xo+4*h+j)}, {v(tmp+8*h+2*j)}, {v(tmp+8*h+2*j+1)}")
        A(f"ds_write_b128 {v(vl16)}, {v(xo+4*h,4)} offset:{h*8192}")
    A("s_waitcnt vmcnt(0) lgkmcnt(0)")
    A("s_barrier")
    for h in range(2):
        for ks in range(2):
            for p in range(2):
                A(f"ds_read_b64_tr_b16 {v(Af[h][ks]+2*p,2)}, {v(vtr)} offset:{h*8192 + ks*32*128 + p*4*128}")
        if h == 0:
            for nt in range(2):
                for ks in range(2): A(f"ds_read_b128 {v(Ff[nt][ks],4)}, {v(vfa)} offset:{F_L + nt*2048 + ks*1024}")
    A(f"v_add_u32 {v(vt1)}, {16*32768}, {v(vst)}")
    for h in range(2):
        A(f"s_waitcnt lgkmcnt({4*(1-h)})")
        for ks in range(2):
            for nt in range(2):
                c = "0" if ks == 0 else v(acc[h][nt], 4)
                A(f"v_mfma_f32_16x16x32_bf16 {v(acc[h][nt],4)}, {v(Af[h][ks],4)}, {v(Ff[nt][ks],4)}, {c}")
    for h in range(2):
        for nt in range(2):
            k = h * 2 + nt
            A(f"v_cvt_pk_bf16_f32 {v(tmp+2*k)}, {v(acc[h][nt])}, {v(acc[h][nt]+1)}")
            A(f"v_cvt_pk_bf16_f32 {v(tmp+2*k+1)}, {v(acc[h][nt]+2)}, {v(acc[h][nt]+3)}")
            A(f"global_store_dwordx2 {v(vst if nt == 0 else vt1)}, {v(tmp+2*k,2)}, s[6:7] offset:{h*128}")
    if stamps:
        ST.stamp(); A("s_waitcnt vmcnt(0)"); ST.stamp(); ST.flush(6, tmp)
    A("s_endpgm")
    return_nv = R.hi
    import g6a
    return _ka_tail(A, name, ST, stamps, prefetch, NFFT, NPF, NWG, return_nv, F_L + 8192, codepf)

def _ka_tail(A, name, ST, stamps, prefetch, NFFT, NPF, NWG, nv, lds, codepf=True):
    A.label(f"{name}_mod")
    if prefetch:
        A(f"s_cmp_ge_u32 s2, {NFFT+NMOD}")
        A(f"s_cbranch_scc1 {name}_pf")
    load_ptr(A, 4, "wmod"); load_ptr(A, 8, "c"); load_ptr(A, 6, "ws")
    A(f"s_sub_u32 s10, s2, {NFFT}")
    A("s_lshl_b32 s11, s10, 6")
    R = RegAlloc(1)
    vk = R.alloc(); vt0 = R.alloc(); vt1 = R.alloc(); vc = R.alloc()
    vo = [R.alloc() for _ in range(4)]
    wr = [R.alloc(4) for _ in range(4)]
    cv = [R.alloc() for _ in range(4)]; ch = [R.alloc() for _ in range(4)]
    ac = R.alloc(8, 4); rr = R.alloc(16, 4)
    A(f"v_and_b32 {v(vt0)}, 0x1c0, v0")
    A(f"v_bfe_u32 {v(vt1)}, v0, 2, 4")
    A(f"v_add_u32 {v(vk)}, {v(vt0)}, {v(vt1)}")
    A(f"v_and_b32 {v(vc)}, 3, v0")
    A(f"v_mul_u32_u24 {v(vo[0])}, 6144, {v(vk)}")
    A(f"v_lshl_add_u32 {v(vo[0])}, {v(vc)}, 4, {v(vo[0])}")
    A(f"v_add_u32 {v(vo[0])}, s11, {v(vo[0])}")
    for it in range(1, 4): A(f"v_add_u32 {v(vo[it])}, {it*16*6144}, {v(vo[0])}")
    A(f"v_lshlrev_b32 {v(vk)}, 1, {v(vk)}")
    A("s_waitcnt lgkmcnt(0)")
    for it in range(4): A(f"global_load_ushort {v(cv[it])}, {v(vk)}, s[8:9] offset:{it*32}")
    for it in range(4): A(f"global_load_dwordx4 {v(wr[it],4)}, {v(vo[it])}, s[4:5]")
    for j in range(8): A(f"v_mov_b32 {v(ac+j)}, 0")
    A("s_waitcnt vmcnt(4)")
    for it in range(4): A(f"v_lshlrev_b32 {v(cv[it])}, 16, {v(cv[it])}")
    for it in range(4): A(f"v_mul_f32 {v(ch[it])}, 0xbfb8aa3b, {v(cv[it])}")
    for it in range(4): A(f"v_exp_f32 {v(ch[it])}, {v(ch[it])}")
    for it in range(4): A(f"v_add_f32 {v(ch[it])}, 1.0, {v(ch[it])}")
    for it in range(4): A(f"v_rcp_f32 {v(ch[it])}, {v(ch[it])}")
    for it in range(4): A(f"v_mul_f32 {v(cv[it])}, {v(cv[it])}, {v(ch[it])}")
    for it in range(4): A(f"v_cvt_pk_bf16_f32 {v(cv[it])}, {v(cv[it])}, 0")
    for it in range(4): A(f"v_lshlrev_b32 {v(ch[it])}, 16, {v(cv[it])}")
    for it in range(4):
        A(f"s_waitcnt vmcnt({3-it})")
        for j in range(4):
            A(f"v_dot2_f32_bf16 {v(ac+2*j)}, {v(wr[it]+j)}, {v(cv[it])}, {v(ac+2*j)}")
            A(f"v_dot2_f32_bf16 {v(ac+2*j+1)}, {v(wr[it]+j)}, {v(ch[it])}, {v(ac+2*j+1)}")
    for rot in (4, 8):
        for j in range(8):
            A(f"v_add_f32_dpp {v(ac+j)}, {v(ac+j)}, {v(ac+j)} row_ror:{rot} row_mask:0xf bank_mask:0xf")
    A(f"v_lshrrev_b32 {v(vt0)}, 4, v0")
    A(f"v_lshlrev_b32 {v(vt0)}, 7, {v(vt0)}")
    A(f"v_lshl_add_u32 {v(vt0)}, {v(vc)}, 5, {v(vt0)}")
    A(f"ds_write_b128 {v(vt0)}, {v(ac,4)}")
    A(f"ds_write_b128 {v(vt0)}, {v(ac+4,4)} offset:16")
    if prefetch and codepf:
        lab = f"{name}_nocp"
        A("s_cmp_ge_u32 s10, 8")
        A(f"s_cbranch_scc1 {lab}")
        getpc_sym(A, 12, "code_begin")
        A(f"v_lshlrev_b32 {v(vt0)}, 7, v0")
        A(f"v_mov_b32 {v(vt1)}, code_end-code_begin-4")
        A(f"v_min_u32 {v(vt0)}, {v(vt0)}, {v(vt1)}")
        A(f"v_and_b32 {v(vt0)}, -4, {v(vt0)}")
        A(f"global_load_dword {v(vk)}, {v(vt0)}, s[12:13]")
        A.label(lab)
    A("v_readfirstlane_b32 s20, v0")
    A("s_waitcnt lgkmcnt(0)")
    A("s_barrier")
    A("s_cmp_ge_u32 s20, 64")
    A(f"s_cbranch_scc1 {name}_end")
    A(f"v_and_b32 {v(vt1)}, 31, v0")
    A(f"v_lshrrev_b32 {v(vt0)}, 5, v0")
    A(f"v_lshlrev_b32 {v(vt0)}, 11, {v(vt0)}")
    A(f"v_lshl_add_u32 {v(vt0)}, {v(vt1)}, 2, {v(vt0)}")
    for p in range(16): A(f"ds_read_b32 {v(rr+p)}, {v(vt0)} offset:{p*128}")
    A("s_lshr_b32 s11, s10, 4")
    A("s_cmp_eq_u32 s11, 1")
    A("s_cselect_b32 s12, 1.0, 0")
    A("s_cmp_eq_u32 s11, 4")
    A("s_cselect_b32 s12, 1.0, s12")
    A("s_lshl_b32 s11, s10, 7")
    if WS_MOD: A(f"s_add_u32 s11, s11, {WS_MOD}")
    A(f"v_lshl_add_u32 {v(vt1)}, {v(vt1)}, 2, s11")
    A("s_waitcnt lgkmcnt(0)")
    for st_ in (8, 4, 2, 1):
        for p in range(st_): A(f"v_add_f32 {v(rr+p)}, {v(rr+p)}, {v(rr+p+st_)}")
    A(f"v_mov_b32 {v(rr+1)}, {v(rr)}")
    A(f"v_permlane32_swap_b32 {v(rr)}, {v(rr+1)}")
    A(f"v_add_f32 {v(rr)}, {v(rr)}, {v(rr+1)}")
    A(f"v_cvt_pk_bf16_f32 {v(rr)}, {v(rr)}, {v(rr)}")
    A(f"v_lshlrev_b32 {v(rr)}, 16, {v(rr)}")
    A(f"v_add_f32 {v(rr)}, s12, {v(rr)}")
    A(f"v_cvt_pk_bf16_f32 {v(rr)}, {v(rr)}, {v(rr)}")
    A(f"v_lshlrev_b32 {v(rr)}, 16, {v(rr)}")
    A(f"global_store_dword {v(vt1)}, {v(rr)}, s[6:7]")
    if stamps:
        A("s_mov_b32 s20, 0"); ST.n = 1; ST.stamp(); ST.stamp(); A("s_waitcnt vmcnt(0)"); ST.stamp(); ST.flush(6, ac)
    A("s_endpgm")
    if prefetch:
        A.label(f"{name}_pf")
        load_ptr(A, 4, "win")
        A(f"s_sub_u32 s10, s2, {NFFT+NMOD}")
        A("s_lshr_b32 s10, s10, 3")
        A("s_mul_i32 s10, s10, 1792")
        A("s_and_b32 s11, s2, 1")
        A("s_mul_i32 s11, s11, 896")
        A("v_add_u32 v1, s10, v0")
        A("v_mov_b32 v6, 896")
        A("s_waitcnt lgkmcnt(0)")
        for it in range(4):
            if it == 3:
                A("v_cmp_gt_u32 vcc, 256, v0")
                A("s_and_b64 exec, exec, vcc")
                A(f"s_cbranch_execz {name}_end")
            A("v_mul_u32_u24 v2, 9363, v1")
            A("v_lshrrev_b32 v2, 17, v2")
            A("v_mul_u32_u24 v3, 14, v2")
            A("v_sub_u32 v3, v1, v3")
            A("v_mul_u32_u24 v2, 3584, v2")
            A("v_lshl_add_u32 v2, v3, 7, v2")
            A("v_cmp_lt_u32 vcc, 6, v3")
            A("v_cndmask_b32 v3, 0, v6, vcc")
            A("v_add3_u32 v2, v2, v3, s11")
            A(f"global_load_dword v{8+it}, v2, s[4:5]")
            if it < 3: A("v_add_u32 v1, 512, v1")
    A.label(f"{name}_end")
    A("s_endpgm")
    return dict(name=name, grid=NWG, block=512, lds=lds, vgpr=max(nv, R.hi), sgpr=96 if stamps else 32)

def gen_kb(A, name="kb_kernel", stamps=False, prefetch=True, pfhalf=True):
    NW = 132; NWG = NW + 4
    TB_L = 0
    MD_L = TB_L + 10240
    WM_L = MD_L + 8192
    T_B = WM_L + 1024
    TS = 1056; V_OFF = T_B + 64 * TS; VS = 80; US = 144; YS = 2064
    U_OFF = T_B; Y_OFF = T_B + 20480
    LDS = V_OFF + 256 * VS
    A.barrier_state(); A.raw(kernel_header(name))
    ST = Stamps(A, on=stamps, kidx=1)
    sW, sC, sG, sT0, sT1, sT2, sRow, sMir, sRow2, sY = 20, 21, 22, 23, 24, 25, 26, 27, 28, 29
    SRD_T = 16
    A(f"s_cmp_ge_u32 s2, {NW}")
    A(f"s_cbranch_scc1 {name}_pf")
    ST.stamp()
    load_ptr(A, 16, "ws"); load_ptr(A, 4, "x"); load_ptr(A, 6, "sre"); load_ptr(A, 8, "sim")
    if prefetch: load_ptr(A, 12, "wsp")
    getpc_sym(A, 10, "fft_tables")
    A(f"v_readfirstlane_b32 {s(sW)}, v0")
    A(f"s_mov_b32 s18, {WS_T + 2*MB}")
    A("s_mov_b32 s19, 0x20000")
    A(f"s_and_b32 {s(sT0)}, s2, 7")
    A(f"s_bfe_u32 {s(sG)}, s2, 0x20003")
    A(f"s_lshr_b32 {s(sT1)}, s2, 5")
    A(f"s_lshl3_add_u32 {s(sC)}, {s(sT1)}, {s(sT0)}")
    A(f"s_cmp_ge_u32 s2, 128")
    A(f"s_cselect_b32 {s(sC)}, 32, {s(sC)}")
    A(f"s_cselect_b32 {s(sG)}, {s(sT0)}, {s(sG)}")
    A(f"s_lshr_b32 {s(sW)}, {s(sW)}, 6")
    R = RegAlloc(1)
    vl = R.alloc(); vq = R.alloc(); vi = R.alloc(); vl16 = R.alloc(); vtid16 = R.alloc()
    vtb = R.alloc(8, 4); vt = [vtb + k for k in range(8)]
    A0 = R.alloc(4); A1 = R.alloc(4)
    F1 = [R.alloc(4) for _ in range(2)]; F2 = [[R.alloc(4) for _ in range(2)] for _ in range(2)]
    tw = R.alloc(16, 4)
    opca = [R.alloc() for _ in range(4)]
    xrow = [R.alloc(4) for _ in range(2)]
    Bf = [[R.alloc(4) for _ in range(2)] for _ in range(4)]
    acc = [R.alloc(4) for _ in range(4)]
    ga = R.alloc(8, 4); sb = R.alloc(8, 4); ocb = R.alloc(8, 4)
    vaT = R.alloc(); vaVw = R.alloc(); vaVr = R.alloc(); vaUw = R.alloc(); vaUr = R.alloc(); vaYw = R.alloc()
    vrow = [R.alloc() for _ in range(2)]
    xf = R.alloc(8, 4); yy = R.alloc(8, 4)
    Rr = R.alloc(4); Ri = R.alloc(4)
    A(f"v_and_b32 {v(vl)}, 63, v0")
    A(f"v_lshlrev_b32 {v(vl16)}, 4, {v(vl)}")
    A(f"v_lshlrev_b32 {v(vtid16)}, 4, v0")
    A(f"s_add_u32 {s(sT1)}, {s(sC)}, 32")
    A(f"s_and_b32 {s(sT2)}, {s(sC)}, 31")
    A(f"s_cselect_b32 {s(sMir)}, 1, 0")
    A(f"s_cselect_b32 {s(sT1)}, {s(sT1)}, 0x4000")
    A(f"s_cmp_ge_u32 {s(sW)}, 4")
    A(f"s_cselect_b32 {s(sT0)}, {s(sT1)}, {s(sC)}")
    A(f"s_lshl_b32 {s(sT0)}, {s(sT0)}, 15")
    A(f"s_and_b32 {s(sT1)}, {s(sW)}, 3")
    A(f"s_lshl_b32 {s(sT1)}, {s(sT1)}, 13")
    A(f"s_add_u32 {s(sT0)}, {s(sT0)}, {s(sT1)}")
    A(f"s_add_u32 {s(sT0)}, {s(sT0)}, {WS_T - 128}")
    A(f"s_mul_i32 {s(sT1)}, {s(sW)}, {8*TS}")
    A(f"s_add_u32 m0, {s(sT1)}, {T_B}")
    for j in range(4): A(f"v_add_u32 {v(vt[4+j])}, {128 - 32*j}, {v(vl16)}")
    A(f"v_and_b32 {v(vi)}, 15, v0")
    A(f"v_bfe_u32 {v(vq)}, v0, 4, 2")
    A(f"v_bfe_u32 {v(vt[0])}, v0, 2, 3")
    A(f"v_lshlrev_b32 {v(vt[0])}, 18, {v(vt[0])}")
    A(f"v_and_b32 {v(vt[1])}, 3, v0")
    A(f"v_lshl_add_u32 {v(vt[0])}, {v(vt[1])}, 4, {v(vt[0])}")
    A(f"s_lshl_b32 {s(sT1)}, {s(sG)}, 21")
    A(f"s_lshl_b32 {s(sT2)}, {s(sC)}, 12")
    A(f"s_add_u32 {s(sT1)}, {s(sT1)}, {s(sT2)}")
    A(f"v_add_u32 {v(vt[0])}, {s(sT1)}, {v(vt[0])}")
    A(f"s_lshl3_add_u32 {s(sT1)}, {s(sG)}, {s(sW)}")
    A(f"s_lshl_b32 {s(sT1)}, {s(sT1)}, 6")
    A(f"s_add_u32 {s(sRow)}, {s(sT1)}, {s(sC)}")
    A(f"s_sub_u32 {s(sRow2)}, 2048, {s(sRow)}")
    A(f"s_and_b32 {s(sRow2)}, {s(sRow2)}, 2047")
    A(f"s_lshl_b32 {s(sRow)}, {s(sRow)}, 10")
    A(f"s_lshl_b32 {s(sRow2)}, {s(sRow2)}, 10")
    A(f"v_add_u32 {v(vrow[0])}, {s(sRow)}, {v(vl16)}")
    A(f"v_add_u32 {v(vrow[1])}, {s(sRow2)}, {v(vl16)}")
    A(f"s_lshl_b32 {s(sT2)}, {s(sW)}, 10")
    A("s_waitcnt lgkmcnt(0)")
    for g in range(2):
        if g:
            A(f"s_add_u32 m0, m0, {4*TS}")
            A(f"s_add_u32 {s(sT0)}, {s(sT0)}, 4096")
        for j in range(4):
            A(f"buffer_load_dwordx4 {v(vt[4+j])}, {s(SRD_T,4)}, {s(sT0)} offen offset:{j*TS} lds")
    A(f"s_add_u32 m0, {s(sT2)}, {TB_L}")
    A(f"v_add_u32 {v(vt[1])}, {TAB_OFF['tab_f1']}, {v(vtid16)}")
    A(f"global_load_lds_dwordx4 {v(vt[1])}, s[10:11]")
    A(f"s_add_u32 m0, {s(sT2)}, {MD_L}")
    A(f"v_add_u32 {v(vt[2])}, {WS_MOD + 2048}, {v(vtid16)}")
    A(f"global_load_lds_dwordx4 {v(vt[2])}, s[16:17]")
    lx = f"{name}_nox"; l23 = f"{name}_x23"
    A(f"s_cmp_ge_u32 {s(sW)}, 4")
    A(f"s_cbranch_scc1 {lx}")
    A(f"s_cmp_ge_u32 {s(sW)}, 2")
    A(f"s_cbranch_scc1 {l23}")
    A(f"s_add_u32 m0, {s(sT2)}, {TB_L + 8192}")
    A(f"v_add_u32 {v(vt[1])}, 8192, {v(vt[1])}")
    A(f"global_load_lds_dwordx4 {v(vt[1])}, s[10:11]")
    A(f"s_branch {lx}")
    A.label(l23)
    A(f"s_cmp_eq_u32 {s(sW)}, 3")
    A("s_cselect_b32 s6, s8, s6")
    A("s_cselect_b32 s7, s9, s7")
    A(f"s_cselect_b32 m0, {WM_L + 512}, {WM_L}".replace(f"{WM_L + 512}, {WM_L}", f"{s(sT1)}, {s(sT2)}") if False else f"s_cselect_b32 {s(sT1)}, 512, 0")
    A(f"s_add_u32 m0, {s(sT1)}, {WM_L}")
    A("s_mov_b32 exec_hi, 0")
    A(f"global_load_lds_dwordx4 {v(vt[0])}, s[6:7]")
    A("s_mov_b32 exec_hi, -1")
    A.label(lx)
    for h in range(2): A(f"global_load_dwordx4 {v(xrow[h],4)}, {v(vrow[h])}, s[4:5]")
    A(f"v_lshrrev_b32 {v(vt[0])}, 2, {v(vi)}")
    A(f"v_lshl_add_u32 {v(vt[0])}, {v(vq)}, 2, {v(vt[0])}")
    A(f"v_mul_u32_u24 {v(vaT)}, {TS}, {v(vt[0])}")
    A(f"v_and_b32 {v(vt[0])}, 3, {v(vi)}")
    A(f"v_lshl_add_u32 {v(vaT)}, {v(vt[0])}, 3, {v(vaT)}")
    A(f"v_and_b32 {v(vt[4])}, 0x1c0, v0")
    A(f"v_lshl_add_u32 {v(vaT)}, {v(vt[4])}, 1, {v(vaT)}")
    A(f"v_add_u32 {v(vaT)}, {T_B}, {v(vaT)}")
    A(f"v_lshl_add_u32 {v(vt[0])}, {v(vq)}, 6, {v(vi)}")
    A(f"v_mul_u32_u24 {v(vaVw)}, {VS}, {v(vt[0])}")
    A(f"v_lshrrev_b32 {v(vt[0])}, 3, {v(vt[4])}")
    A(f"s_mov_b32 {s(sT2)}, {V_OFF}")
    A(f"v_add3_u32 {v(vaVw)}, {v(vaVw)}, {v(vt[0])}, {s(sT2)}")
    A(f"v_lshrrev_b32 {v(vt[0])}, 1, {v(vt[4])}")
    A(f"v_add_u32 {v(vt[0])}, {v(vt[0])}, {v(vi)}")
    A(f"v_mul_u32_u24 {v(vaVr)}, {VS}, {v(vt[0])}")
    A(f"v_lshl_add_u32 {v(vaVr)}, {v(vq)}, 4, {v(vaVr)}")
    A(f"v_add_u32 {v(vaVr)}, {V_OFF}, {v(vaVr)}")
    A(f"v_lshrrev_b32 {v(vt[0])}, 2, {v(vt[4])}")
    A(f"v_lshl_add_u32 {v(vt[3])}, {v(vq)}, 1, {v(vt[0])}")
    A(f"v_mul_u32_u24 {v(vaUw)}, {US}, {v(vt[3])}")
    A(f"v_lshl_add_u32 {v(vaUw)}, {v(vi)}, 2, {v(vaUw)}")
    A(f"v_add_u32 {v(vt[3])}, {v(vt[0])}, {v(vi)}")
    A(f"v_mul_u32_u24 {v(vaUr)}, {US}, {v(vt[3])}")
    A(f"v_lshl_add_u32 {v(vaUr)}, {v(vq)}, 4, {v(vaUr)}")
    A(f"s_mul_i32 {s(sY)}, {s(sW)}, {YS}")
    A(f"s_add_u32 {s(sY)}, {s(sY)}, {Y_OFF}")
    A(f"v_lshlrev_b32 {v(vaYw)}, 6, {v(vi)}")
    A(f"v_lshl_add_u32 {v(vaYw)}, {v(vq)}, 4, {v(vaYw)}")
    A(f"v_add_u32 {v(vaYw)}, {s(sY)}, {v(vaYw)}")
    A(f"v_lshrrev_b32 {v(vt[5])}, 1, {v(vi)}")
    A(f"v_lshlrev_b32 {v(vt[5])}, 6, {v(vt[5])}")
    A(f"v_lshl_add_u32 {v(vt[5])}, {v(vq)}, 3, {v(vt[5])}")
    A(f"v_add_u32 {v(vt[6])}, {v(vt[4])}, {v(vi)}")
    A(f"v_lshlrev_b32 {v(vt[6])}, 2, {v(vt[6])}")
    A(f"v_and_b32 {v(vt[3])}, 1, v0")
    A(f"v_cmp_eq_u32 vcc, 1, {v(vt[3])}")
    A(f"s_mov_b32 {s(sT0)}, 0x80008000")
    A("s_waitcnt vmcnt(2)")
    vpf = R.alloc(); vpd = R.alloc(2)
    if prefetch:
        A(f"s_bfe_u32 {s(sT1)}, s2, 0x20001")
        A(f"s_lshl_b32 {s(sT1)}, {s(sT1)}, 21")
        A(f"s_lshr_b32 {s(sT2)}, s2, 3")
        A(f"s_lshl3_add_u32 {s(sT2)}, {s(sT2)}, {s(sW)}")
        A(f"s_and_b32 {s(sT2)}, {s(sT2)}, 127")
        A(f"s_lshl_b32 {s(sT2)}, {s(sT2)}, 14")
        A(f"s_add_u32 {s(sT1)}, {s(sT1)}, {s(sT2)}")
        if pfhalf:
            A(f"s_and_b32 {s(sT2)}, s2, 1")
            A(f"s_lshl_b32 {s(sT2)}, {s(sT2)}, 13")
            A(f"s_add_u32 {s(sT1)}, {s(sT1)}, {s(sT2)}")
        A(f"v_lshl_add_u32 {v(vpf)}, {v(vl)}, 7, {s(sT1)}")
    ST.stamp()
    A("s_barrier")
    if prefetch:
        A(f"global_load_dword {v(vpd)}, {v(vpf)}, s[12:13]")
        if not pfhalf:
            A(f"v_add_u32 {v(vpf)}, 8192, {v(vpf)}")
            A(f"global_load_dword {v(vpd+1)}, {v(vpf)}, s[12:13]")
    for reg, o in ((Rr, 0), (Ri, 512)):
        A(f"ds_read_b64 {v(reg,2)}, {v(vt[5])} offset:{WM_L + o}")
        A(f"ds_read_b64 {v(reg+2,2)}, {v(vt[5])} offset:{WM_L + o + 32}")
    for jt in range(4):
        for c in range(2):
            for p in range(2):
                A(f"ds_read_b64_tr_b16 {v(Bf[jt][c]+2*p,2)}, {v(vaT)} offset:{c*32*TS + p*16*TS + jt*32}")
        if jt == 1:
            pass
    A("s_waitcnt lgkmcnt(15)")
    for j in range(4):
        A(f"v_xor_b32 {v(vt[0])}, {s(sT0)}, {v(Ri+j)}")
        A(f"v_cndmask_b32 {v(A0+j)}, {v(Rr+j)}, {v(Ri+j)}, vcc")
        A(f"v_cndmask_b32 {v(A1+j)}, {v(vt[0])}, {v(Rr+j)}, vcc")
    for jt in range(4): A(f"ds_read_b32 {v(opca[jt])}, {v(vt[6])} offset:{MD_L + jt*64}")
    for jt in range(4):
        A(f"s_waitcnt lgkmcnt({min(15, (3-jt)*4 + 4)})")
        A(f"v_mfma_f32_16x16x32_bf16 {v(acc[jt],4)}, {v(A0,4)}, {v(Bf[jt][0],4)}, 0")
        A(f"v_mfma_f32_16x16x32_bf16 {v(acc[jt],4)}, {v(A1,4)}, {v(Bf[jt][1],4)}, {v(acc[jt],4)}")
    for mt in range(2): A(f"ds_read_b128 {v(F1[mt],4)}, {v(vl16)} offset:{TB_L + mt*1024}")
    A(f"v_lshlrev_b32 {v(vt[7])}, 2, {v(vl16)}")
    for h in range(4): A(f"ds_read_b128 {v(tw+4*h,4)}, {v(vt[7])} offset:{TB_L + 6144 + h*16}")
    A("s_waitcnt lgkmcnt(6)")
    for jt in range(4):
        for r in range(4): A(f"v_mul_f32 {v(acc[jt]+r)}, {v(acc[jt]+r)}, {v(opca[jt])}")
    lab = f"{name}_nodc"
    A(f"s_or_b32 {s(sT0)}, {s(sC)}, {s(sG)}")
    A(f"s_cbranch_scc1 {lab}")
    A(f"v_and_b32 {v(vt[2])}, 0x1cf, v0")
    A(f"v_lshlrev_b32 {v(vt[2])}, 2, {v(vt[2])}")
    if WS_MOD: A(f"v_add_u32 {v(vt[2])}, {WS_MOD}, {v(vt[2])}")
    for jt in range(4): A(f"global_load_dword {v(Bf[0][0]+jt)}, {v(vt[2])}, s[16:17] offset:{jt*64}")
    A(f"v_cmp_eq_u32 vcc, 0, {v(vq)}")
    A(f"v_mov_b32 {v(vt[1])}, 0x45000000")
    A(f"v_cndmask_b32 {v(vt[1])}, 0, {v(vt[1])}, vcc")
    A("s_waitcnt vmcnt(0)")
    for jt in range(4): A(f"v_fmac_f32 {v(acc[jt])}, {v(Bf[0][0]+jt)}, {v(vt[1])}")
    A.label(lab)
    for jt in range(4):
        ac = acc[jt]
        A(f"v_cvt_pk_bf16_f32 {v(ac)}, {v(ac)}, {v(ac+1)}")
        A(f"v_cvt_pk_bf16_f32 {v(ac+1)}, {v(ac+2)}, {v(ac+3)}")
        o0 = (jt&1)*16*VS + (jt>>1)*4
        A(f"ds_write_b32 {v(vaVw)}, {v(ac)} offset:{o0}")
        A(f"ds_write_b32 {v(vaVw)}, {v(ac+1)} offset:{o0 + 32*VS}")
    A(f"s_mov_b32 {s(sT0)}, 0xffff0000")
    A("s_waitcnt lgkmcnt(0)")
    A("s_barrier")
    ST.stamp()
    for h in range(2): A(f"ds_read_b128 {v(Bf[h][0],4)}, {v(vaVr)} offset:{h*16*VS}")
    for nt in range(2):
        for ks in range(2): A(f"ds_read_b128 {v(F2[nt][ks],4)}, {v(vl16)} offset:{TB_L + 2048 + nt*2048 + ks*1024}")
    A(f"v_lshlrev_b32 {v(vt[7])}, 1, {v(vl16)}")
    for h in range(2):
        A(f"s_waitcnt lgkmcnt({5-h})")
        for mt in range(2):
            A(f"v_mfma_f32_16x16x32_bf16 {v(acc[2*h+mt],4)}, {v(F1[mt],4)}, {v(Bf[h][0],4)}, 0")
    for reg, sec in ((ga, 1), (sb, 2), (ocb, 3)):
        for u in range(2): A(f"ds_read_b128 {v(reg+4*u,4)}, {v(vt[7])} offset:{MD_L + sec*2048 + u*16}")
    for h in range(2):
        for mt in range(2):
            for pp in range(2):
                re, im = acc[2*h+mt] + 2 * pp, acc[2*h+mt] + 2 * pp + 1
                k = ((h*2+mt)*2+pp)*2
                c_, s_ = tw + k, tw + k + 1
                t0, t1 = vt[4*pp], vt[4*pp+1]
                if pp == 1 and False: pass
                A(f"v_mul_f32 {v(t0)}, {v(re)}, {v(c_)}")
                A(f"v_mul_f32 {v(t1)}, {v(im)}, {v(c_)}")
                A(f"v_fma_f32 {v(t0)}, {v(im)}, {v(s_)}, {v(t0)}")
                A(f"v_fma_f32 {v(t1)}, -{v(re)}, {v(s_)}, {v(t1)}")
                A(f"v_cvt_pk_bf16_f32 {v(vt[4*pp+2])}, {v(t0)}, {v(t1)}")
                A(f"ds_write_b32 {v(vaUw)}, {v(vt[4*pp+2])} offset:{U_OFF + (8*mt+pp)*US + h*64}")
    A("s_waitcnt lgkmcnt(0)")
    for ks in range(2): A(f"ds_read_b128 {v(Bf[ks][0],4)}, {v(vaUr)} offset:{U_OFF + ks*64}")
    A(f"s_waitcnt vmcnt({(1 if pfhalf else 2) if prefetch else 0})")
    xg = [xf, yy]
    for r in range(2):
        for j in range(4):
            A(f"v_lshlrev_b32 {v(xg[r]+2*j)}, 16, {v(xrow[r]+j)}")
            A(f"v_and_b32 {v(xg[r]+2*j+1)}, {s(sT0)}, {v(xrow[r]+j)}")
    for ks in range(2):
        A(f"s_waitcnt lgkmcnt({1-ks})")
        for nt in range(2):
            c = "0" if ks == 0 else v(acc[nt], 4)
            A(f"v_mfma_f32_16x16x32_bf16 {v(acc[nt],4)}, {v(Bf[ks][0],4)}, {v(F2[nt][ks],4)}, {c}")
    A(f"v_lshl_add_u32 {v(vt[0])}, {v(vl16)}, 1, {s(sY)}")
    A(f"v_lshlrev_b32 {v(vt[2])}, 1, {v(vl16)}")
    A(f"v_sub_u32 {v(vt[1])}, 2048, {v(vt[2])}")
    A(f"v_and_b32 {v(vt[1])}, 2047, {v(vt[1])}")
    A(f"v_add_u32 {v(vt[1])}, {s(sY)}, {v(vt[1])}")
    A(f"s_add_u32 {s(sT1)}, {s(sY)}, {505*4}")
    A(f"v_sub_u32 {v(vt[2])}, {s(sT1)}, {v(vt[2])}")
    for nt in range(2): A(f"ds_write_b128 {v(vaYw)}, {v(acc[nt],4)} offset:{nt*1024}")
    A("s_waitcnt lgkmcnt(0)")
    ST.stamp()
    y = Bf[2][0]; assert Bf[2][1] == y + 4
    y2 = Bf[3][0]; assert Bf[3][1] == y2 + 4
    A(f"ds_read_b128 {v(y,4)}, {v(vt[0])}")
    A(f"ds_read_b128 {v(y+4,4)}, {v(vt[0])} offset:16")
    A(f"ds_read_b32 {v(y2)}, {v(vt[1])}")
    A(f"ds_read_b32 {v(y2+1)}, {v(vt[2])} offset:24")
    for j in (2, 4, 6): A(f"ds_read2_b32 {v(y2+j,2)}, {v(vt[2])} offset0:{7-j} offset1:{6-j}")
    A("s_waitcnt lgkmcnt(5)")
    for j in range(8): A(f"v_fma_f32 {v(xf+j)}, {v(ga+j)}, {v(y+j)}, {v(xf+j)}")
    A("s_waitcnt lgkmcnt(0)")
    for j in range(8): A(f"v_fma_f32 {v(yy+j)}, {v(ga+j)}, {v(y2+j)}, {v(yy+j)}")
    for r in range(2):
        for j in range(4): A(f"v_cvt_pk_bf16_f32 {v(xrow[r]+j)}, {v(xg[r]+2*j)}, {v(xg[r]+2*j+1)}")
    A(f"v_add_u32 {v(vt[2])}, {WS_X1}, {v(vrow[0])}")
    A(f"v_add_u32 {v(vt[3])}, {WS_X1}, {v(vrow[1])}")
    A(f"global_store_dwordx4 {v(vt[2])}, {v(xrow[0],4)}, s[16:17]")
    lab2 = f"{name}_nomir1"
    A(f"s_cmp_eq_u32 {s(sMir)}, 0")
    A(f"s_cbranch_scc1 {lab2}")
    A(f"global_store_dwordx4 {v(vt[3])}, {v(xrow[1],4)}, s[16:17]")
    A.label(lab2)
    for r in range(2):
        for j in range(4):
            A(f"v_lshlrev_b32 {v(xg[r]+2*j)}, 16, {v(xrow[r]+j)}")
            A(f"v_and_b32 {v(xg[r]+2*j+1)}, {s(sT0)}, {v(xrow[r]+j)}")
    S_ = [vt[0], vt[1]]; Q_ = [vt[4], vt[5]]
    for r in range(2):
        A(f"v_add_f32 {v(S_[r])}, {v(xg[r])}, {v(xg[r]+1)}")
        A(f"v_mul_f32 {v(Q_[r])}, {v(xg[r])}, {v(xg[r])}")
    for j in range(1, 8):
        for r in range(2):
            if j >= 2: A(f"v_add_f32 {v(S_[r])}, {v(S_[r])}, {v(xg[r]+j)}")
            A(f"v_fmac_f32 {v(Q_[r])}, {v(xg[r]+j)}, {v(xg[r]+j)}")
    chains = [S_[0], Q_[0], S_[1], Q_[1]]
    for mode, rm in (("quad_perm:[1,0,3,2]", "0xf"), ("quad_perm:[2,3,0,1]", "0xf"), ("row_half_mirror", "0xf"), ("row_mirror", "0xf"), ("row_bcast:15", "0xa"), ("row_bcast:31", "0xc")):
        for c_ in chains: A(f"v_add_f32_dpp {v(c_)}, {v(c_)}, {v(c_)} {mode} row_mask:{rm} bank_mask:0xf")
    for k, c_ in enumerate(chains): A(f"v_readlane_b32 {s(30+k)}, {v(c_)}, 63")
    A(f"v_mov_b32 {v(vt[6])}, 0x3b000000")
    for r in range(2):
        A(f"v_mul_f32 {v(S_[r])}, {s(30+2*r)}, {v(vt[6])}")
        A(f"v_mul_f32 {v(Q_[r])}, {s(31+2*r)}, {v(vt[6])}")
    for r in range(2): A(f"v_fma_f32 {v(Q_[r])}, -{v(S_[r])}, {v(S_[r])}, {v(Q_[r])}")
    for r in range(2): A(f"v_max_f32 {v(Q_[r])}, 0, {v(Q_[r])}")
    for r in range(2): A(f"v_add_f32 {v(Q_[r])}, 0x3727c5ac, {v(Q_[r])}")
    for r in range(2): A(f"v_rsq_f32 {v(Q_[r])}, {v(Q_[r])}")
    A(f"v_add_u32 {v(vt[2])}, {WS_H2}, {v(vrow[0])}")
    A(f"v_add_u32 {v(vt[3])}, {WS_H2}, {v(vrow[1])}")
    for r in range(2):
        for j in range(8): A(f"v_sub_f32 {v(xg[r]+j)}, {v(xg[r]+j)}, {v(S_[r])}")
    for r in range(2):
        for j in range(8): A(f"v_mul_f32 {v(xg[r]+j)}, {v(xg[r]+j)}, {v(Q_[r])}")
    for r in range(2):
        for j in range(8): A(f"v_fma_f32 {v(xg[r]+j)}, {v(xg[r]+j)}, {v(ocb+j)}, {v(sb+j)}")
    yo = [y, y2]
    for r in range(2):
        for j in range(4): A(f"v_cvt_pk_bf16_f32 {v(yo[r]+j)}, {v(xg[r]+2*j)}, {v(xg[r]+2*j+1)}")
    A(f"global_store_dwordx4 {v(vt[2])}, {v(y,4)}, s[16:17]")
    A(f"s_cmp_eq_u32 {s(sMir)}, 0")
    A(f"s_cbranch_scc1 {name}_fin")
    A(f"global_store_dwordx4 {v(vt[3])}, {v(y2,4)}, s[16:17]")
    A.label(f"{name}_fin")
    if stamps:
        ST.stamp(); A("s_waitcnt vmcnt(0)"); ST.stamp(); ST.flush(16, ga)
    A("s_endpgm")
    A.label(f"{name}_pf")
    A(f"s_cmp_ge_u32 s2, {NWG}")
    A(f"s_cbranch_scc1 {name}_end")
    load_ptr(A, 4, "ws")
    A(f"s_sub_u32 s10, s2, {NW}")
    A("s_lshl_b32 s10, s10, 16")
    A(f"s_add_u32 s10, s10, {WS_STAT}")
    A("v_lshl_add_u32 v1, v0, 4, s10")
    for j in range(4): A(f"v_mov_b32 v{4+j}, -1")
    A("s_waitcnt lgkmcnt(0)")
    for it in range(8):
        A("global_store_dwordx4 v1, v[4:7], s[4:5]")
        if it < 7: A("v_add_u32 v1, 8192, v1")
    A.label(f"{name}_end")
    A("s_endpgm")
    return dict(name=name, grid=NWG, block=512, lds=LDS, vgpr=R.hi, sgpr=96 if stamps else 40)
```

```python
import sys
from build4 import assemble2
from g7a import gen_ka, gen_kb
from g5b import gen_kz, gen_kg, gen_ko
from g2a import getpc_sym
from common import *
def gen_codepf(A, name="cpf_kernel"):
    A.barrier_state(); A.raw(kernel_header(name))
    A("s_cmp_ge_u32 s2, 8"); A(f"s_cbranch_scc1 {name}_end")
    getpc_sym(A, 12, "code_begin")
    A("v_lshlrev_b32 v1, 7, v0")
    A("v_mov_b32 v2, code_end-code_begin-4")
    A("v_min_u32 v1, v1, v2"); A("v_and_b32 v1, -4, v1")
    A("global_load_dword v3, v1, s[12:13]")
    A.label(f"{name}_end"); A("s_endpgm")
    return dict(name=name, grid=8, block=512, lds=0, vgpr=8, sgpr=24)
base = ["ka_kernel", "kb_kernel", "kz_kernel", "kg_kernel", "ko_kernel"]
def mk(path, codepf=True, launches=None):
    gens = [lambda A: gen_ka(A, codepf=codepf), gen_kb, lambda A: gen_kz(A, prefetch=True), gen_kg, gen_ko, gen_codepf]
    open(path, "w").write(assemble2(gens, launches or base))
mk("c_base.s"); mk("c_nocode.s", codepf=False); mk("c_pre.s", codepf=False, launches=["cpf_kernel"] + base)
```

```python
from common import *
from gemm_util import fhex
from tables import TAB_OFF
from g2a import getpc_sym
NMOD = 96

def gen_ka(A, name="ka_kernel", stamps=False, prefetch=True, codepf=True):
    NFFT = 128; NPF = 32 if prefetch else 0; NWG = NFFT + NMOD + NPF
    F_L = 16384
    A.barrier_state(); A.raw(kernel_header(name))
    ST = Stamps(A, on=stamps, kidx=0)
    A(f"s_cmp_ge_u32 s2, {NWG}")
    A(f"s_cbranch_scc1 {name}_end")
    ST.stamp()
    A(f"s_cmp_ge_u32 s2, {NFFT}")
    A(f"s_cbranch_scc1 {name}_mod")
    load_ptr(A, 4, "x"); load_ptr(A, 6, "ws")
    getpc_sym(A, 8, "fft_tables")
    A("v_readfirstlane_b32 s20, v0")
    A("s_and_b32 s10, s2, 7")
    A("s_bfe_u32 s11, s2, 0x20003")
    A("s_lshl2_add_u32 s10, s10, s11")
    A("s_lshl_b32 s10, s10, 10")
    A("s_lshr_b32 s11, s2, 5")
    R = RegAlloc(1)
    voff = R.alloc(); vi = R.alloc(); vq = R.alloc(); vt0 = R.alloc(); vt1 = R.alloc()
    vS = R.alloc(); vQ = R.alloc(); vtr = R.alloc(); vst = R.alloc(); vl16 = R.alloc()
    xr = [R.alloc(4) for _ in range(8)]
    assert xr[7] == xr[0] + 28
    xo = R.alloc(8, 4)
    Ff = [[R.alloc(4) for _ in range(2)] for _ in range(2)]
    Af = [[R.alloc(4) for _ in range(2)] for _ in range(2)]
    acc = [[R.alloc(4) for _ in range(2)] for _ in range(2)]
    tmp = R.alloc(16, 4)
    A(f"v_lshrrev_b32 {v(vt0)}, 3, v0")
    A(f"v_and_b32 {v(vt1)}, 7, v0")
    A(f"v_lshlrev_b32 {v(vt0)}, 15, {v(vt0)}")
    A(f"v_lshl_add_u32 {v(voff)}, {v(vt1)}, 4, {v(vt0)}")
    A(f"v_add_u32 {v(voff)}, s10, {v(voff)}")
    A(f"v_lshlrev_b32 {v(vl16)}, 4, v0")
    A("s_lshr_b32 s20, s20, 6")
    A("s_lshl_b32 s12, s20, 10")
    A(f"s_add_u32 m0, s12, {F_L}")
    A("s_waitcnt lgkmcnt(0)")
    for it in range(8):
        A(f"global_load_dwordx4 {v(xr[it],4)}, {v(voff)}, s[4:5] offset:{it*128}")
    A(f"global_load_lds_dwordx4 {v(vl16)}, s[8:9] offset:{TAB_OFF['tab_f64']}")
    A(f"v_and_b32 {v(vi)}, 15, v0")
    A(f"v_bfe_u32 {v(vq)}, v0, 4, 2")
    A(f"v_lshrrev_b32 {v(vt0)}, 8, v0")
    A(f"v_lshlrev_b32 {v(vst)}, 20, {v(vt0)}")
    A(f"v_lshl_add_u32 {v(vst)}, {v(vi)}, 15, {v(vst)}")
    A(f"v_bfe_u32 {v(vt1)}, v0, 6, 2")
    A(f"v_lshl_add_u32 {v(vst)}, {v(vt1)}, 5, {v(vst)}")
    A(f"v_lshl_add_u32 {v(vst)}, {v(vq)}, 3, {v(vst)}")
    A("s_lshl_b32 s12, s11, 8")
    A("s_add_u32 s10, s10, s12")
    A(f"s_add_u32 s10, s10, {WS_T}")
    A(f"v_add_u32 {v(vst)}, s10, {v(vst)}")
    A(f"v_lshlrev_b32 {v(vtr)}, 5, {v(vt1)}")
    A(f"v_lshrrev_b32 {v(vt1)}, 2, {v(vi)}")
    A(f"v_lshl_add_u32 {v(vt1)}, {v(vq)}, 3, {v(vt1)}")
    A(f"v_lshl_add_u32 {v(vtr)}, {v(vt1)}, 7, {v(vtr)}")
    A(f"v_and_b32 {v(vt1)}, 3, {v(vi)}")
    A(f"v_lshl_add_u32 {v(vtr)}, {v(vt1)}, 3, {v(vtr)}")
    vfa = R.alloc()
    A(f"v_and_b32 {v(vfa)}, 63, v0")
    A(f"v_lshlrev_b32 {v(vfa)}, 4, {v(vfa)}")
    A(f"v_lshl_add_u32 {v(vfa)}, {v(vt0)}, 12, {v(vfa)}")
    A(f"v_mov_b32 {v(vS)}, 0")
    A(f"v_mov_b32 {v(vQ)}, 0")
    A("s_mov_b32 s12, 0x3f803f80")
    for it in range(8):
        A(f"s_waitcnt vmcnt({7 - it + 1})")
        for j in range(4):
            A(f"v_dot2_f32_bf16 {v(vS)}, {v(xr[it]+j)}, s12, {v(vS)}")
            A(f"v_dot2_f32_bf16 {v(vQ)}, {v(xr[it]+j)}, {v(xr[it]+j)}, {v(vQ)}")
    ST.stamp()
    A("s_lshl_b32 s13, s11, 3")
    A("s_mov_b32 s12, 0xffff0000")
    A("s_set_gpr_idx_on s13, gpr_idx(SRC0)")
    for j in range(8): A(f"v_mov_b32 {v(xo+j)}, {v(xr[0]+j)}")
    A("s_set_gpr_idx_off")
    for mode in ("quad_perm:[1,0,3,2]", "quad_perm:[2,3,0,1]", "row_half_mirror"):
        A(f"v_add_f32_dpp {v(vS)}, {v(vS)}, {v(vS)} {mode} row_mask:0xf bank_mask:0xf")
        A(f"v_add_f32_dpp {v(vQ)}, {v(vQ)}, {v(vQ)} {mode} row_mask:0xf bank_mask:0xf")
        A(f"v_lshlrev_b32 {v(tmp+0)}, 16, {v(xo+0)}") if mode.startswith("quad_perm:[1") else None
    for j in range(8):
        if j: A(f"v_lshlrev_b32 {v(tmp+2*j)}, 16, {v(xo+j)}")
        A(f"v_and_b32 {v(tmp+2*j+1)}, s12, {v(xo+j)}")
    A(f"v_mul_f32 {v(vS)}, 0x3b000000, {v(vS)}")
    A(f"v_mul_f32 {v(vQ)}, 0x3b000000, {v(vQ)}")
    A(f"v_fma_f32 {v(vQ)}, -{v(vS)}, {v(vS)}, {v(vQ)}")
    A(f"v_max_f32 {v(vQ)}, 0, {v(vQ)}")
    A(f"v_add_f32 {v(vQ)}, 0x3727c5ac, {v(vQ)}")
    A(f"v_rsq_f32 {v(vQ)}, {v(vQ)}")
    A(f"v_mul_f32 {v(vS)}, {v(vS)}, {v(vQ)}")
    for j in range(16): A(f"v_fma_f32 {v(tmp+j)}, {v(tmp+j)}, {v(vQ)}, -{v(vS)}")
    for h in range(2):
        for j in range(4): A(f"v_cvt_pk_bf16_f32 {v(xo+4*h+j)}, {v(tmp+8*h+2*j)}, {v(tmp+8*h+2*j+1)}")
        A(f"ds_write_b128 {v(vl16)}, {v(xo+4*h,4)} offset:{h*8192}")
    A("s_waitcnt vmcnt(0) lgkmcnt(0)")
    A("s_barrier")
    for h in range(2):
        for ks in range(2):
            for p in range(2):
                A(f"ds_read_b64_tr_b16 {v(Af[h][ks]+2*p,2)}, {v(vtr)} offset:{h*8192 + ks*32*128 + p*4*128}")
        if h == 0:
            for nt in range(2):
                for ks in range(2): A(f"ds_read_b128 {v(Ff[nt][ks],4)}, {v(vfa)} offset:{F_L + nt*2048 + ks*1024}")
    A(f"v_add_u32 {v(vt1)}, {16*32768}, {v(vst)}")
    for h in range(2):
        A(f"s_waitcnt lgkmcnt({4*(1-h)})")
        for ks in range(2):
            for nt in range(2):
                c = "0" if ks == 0 else v(acc[h][nt], 4)
                A(f"v_mfma_f32_16x16x32_bf16 {v(acc[h][nt],4)}, {v(Af[h][ks],4)}, {v(Ff[nt][ks],4)}, {c}")
    for h in range(2):
        for nt in range(2):
            k = h * 2 + nt
            A(f"v_cvt_pk_bf16_f32 {v(tmp+2*k)}, {v(acc[h][nt])}, {v(acc[h][nt]+1)}")
            A(f"v_cvt_pk_bf16_f32 {v(tmp+2*k+1)}, {v(acc[h][nt]+2)}, {v(acc[h][nt]+3)}")
            A(f"global_store_dwordx2 {v(vst if nt == 0 else vt1)}, {v(tmp+2*k,2)}, s[6:7] offset:{h*128}")
    if stamps:
        ST.stamp(); A("s_waitcnt vmcnt(0)"); ST.stamp(); ST.flush(6, tmp)
    A("s_endpgm")
    return_nv = R.hi
    import g6a
    return _ka_tail(A, name, ST, stamps, prefetch, NFFT, NPF, NWG, return_nv, F_L + 8192, codepf)

def _ka_tail(A, name, ST, stamps, prefetch, NFFT, NPF, NWG, nv, lds, codepf=True):
    A.label(f"{name}_mod")
    if prefetch:
        A(f"s_cmp_ge_u32 s2, {NFFT+NMOD}")
        A(f"s_cbranch_scc1 {name}_pf")
    load_ptr(A, 4, "wmod"); load_ptr(A, 8, "c"); load_ptr(A, 6, "ws")
    A(f"s_sub_u32 s10, s2, {NFFT}")
    A("s_lshl_b32 s11, s10, 6")
    R = RegAlloc(1)
    vk = R.alloc(); vt0 = R.alloc(); vt1 = R.alloc(); vc = R.alloc()
    vo = [R.alloc() for _ in range(4)]
    wr = [R.alloc(4) for _ in range(4)]
    cv = [R.alloc() for _ in range(4)]; ch = [R.alloc() for _ in range(4)]
    ac = R.alloc(8, 4); rr = R.alloc(16, 4)
    A(f"v_and_b32 {v(vt0)}, 0x1c0, v0")
    A(f"v_bfe_u32 {v(vt1)}, v0, 2, 4")
    A(f"v_add_u32 {v(vk)}, {v(vt0)}, {v(vt1)}")
    A(f"v_and_b32 {v(vc)}, 3, v0")
    A(f"v_mul_u32_u24 {v(vo[0])}, 6144, {v(vk)}")
    A(f"v_lshl_add_u32 {v(vo[0])}, {v(vc)}, 4, {v(vo[0])}")
    A(f"v_add_u32 {v(vo[0])}, s11, {v(vo[0])}")
    for it in range(1, 4): A(f"v_add_u32 {v(vo[it])}, {it*16*6144}, {v(vo[0])}")
    A(f"v_lshlrev_b32 {v(vk)}, 1, {v(vk)}")
    A("s_waitcnt lgkmcnt(0)")
    for it in range(4): A(f"global_load_ushort {v(cv[it])}, {v(vk)}, s[8:9] offset:{it*32}")
    for it in range(4): A(f"global_load_dwordx4 {v(wr[it],4)}, {v(vo[it])}, s[4:5]")
    for j in range(8): A(f"v_mov_b32 {v(ac+j)}, 0")
    A("s_waitcnt vmcnt(4)")
    for it in range(4): A(f"v_lshlrev_b32 {v(cv[it])}, 16, {v(cv[it])}")
    for it in range(4): A(f"v_mul_f32 {v(ch[it])}, 0xbfb8aa3b, {v(cv[it])}")
    for it in range(4): A(f"v_exp_f32 {v(ch[it])}, {v(ch[it])}")
    for it in range(4): A(f"v_add_f32 {v(ch[it])}, 1.0, {v(ch[it])}")
    for it in range(4): A(f"v_rcp_f32 {v(ch[it])}, {v(ch[it])}")
    for it in range(4): A(f"v_mul_f32 {v(cv[it])}, {v(cv[it])}, {v(ch[it])}")
    for it in range(4): A(f"v_cvt_pk_bf16_f32 {v(cv[it])}, {v(cv[it])}, 0")
    for it in range(4): A(f"v_lshlrev_b32 {v(ch[it])}, 16, {v(cv[it])}")
    for it in range(4):
        A(f"s_waitcnt vmcnt({3-it})")
        for j in range(4):
            A(f"v_dot2_f32_bf16 {v(ac+2*j)}, {v(wr[it]+j)}, {v(cv[it])}, {v(ac+2*j)}")
            A(f"v_dot2_f32_bf16 {v(ac+2*j+1)}, {v(wr[it]+j)}, {v(ch[it])}, {v(ac+2*j+1)}")
    for rot in (4, 8):
        for j in range(8):
            A(f"v_add_f32_dpp {v(ac+j)}, {v(ac+j)}, {v(ac+j)} row_ror:{rot} row_mask:0xf bank_mask:0xf")
    A(f"v_lshrrev_b32 {v(vt0)}, 4, v0")
    A(f"v_lshlrev_b32 {v(vt0)}, 7, {v(vt0)}")
    A(f"v_lshl_add_u32 {v(vt0)}, {v(vc)}, 5, {v(vt0)}")
    A(f"ds_write_b128 {v(vt0)}, {v(ac,4)}")
    A(f"ds_write_b128 {v(vt0)}, {v(ac+4,4)} offset:16")
    if prefetch and codepf:
        lab = f"{name}_nocp"
        A("s_cmp_ge_u32 s10, 8")
        A(f"s_cbranch_scc1 {lab}")
        getpc_sym(A, 12, "code_begin")
        A(f"v_lshlrev_b32 {v(vt0)}, 7, v0")
        A(f"v_mov_b32 {v(vt1)}, code_end-code_begin-4")
        A(f"v_min_u32 {v(vt0)}, {v(vt0)}, {v(vt1)}")
        A(f"v_and_b32 {v(vt0)}, -4, {v(vt0)}")
        A(f"global_load_dword {v(vk)}, {v(vt0)}, s[12:13]")
        A.label(lab)
    A("v_readfirstlane_b32 s20, v0")
    A("s_waitcnt lgkmcnt(0)")
    A("s_barrier")
    A("s_cmp_ge_u32 s20, 64")
    A(f"s_cbranch_scc1 {name}_end")
    A(f"v_and_b32 {v(vt1)}, 31, v0")
    A(f"v_lshrrev_b32 {v(vt0)}, 5, v0")
    A(f"v_lshlrev_b32 {v(vt0)}, 11, {v(vt0)}")
    A(f"v_lshl_add_u32 {v(vt0)}, {v(vt1)}, 2, {v(vt0)}")
    for p in range(16): A(f"ds_read_b32 {v(rr+p)}, {v(vt0)} offset:{p*128}")
    A("s_lshr_b32 s11, s10, 4")
    A("s_cmp_eq_u32 s11, 1")
    A("s_cselect_b32 s12, 1.0, 0")
    A("s_cmp_eq_u32 s11, 4")
    A("s_cselect_b32 s12, 1.0, s12")
    A("s_lshl_b32 s11, s10, 7")
    if WS_MOD: A(f"s_add_u32 s11, s11, {WS_MOD}")
    A(f"v_lshl_add_u32 {v(vt1)}, {v(vt1)}, 2, s11")
    A("s_waitcnt lgkmcnt(0)")
    for st_ in (8, 4, 2, 1):
        for p in range(st_): A(f"v_add_f32 {v(rr+p)}, {v(rr+p)}, {v(rr+p+st_)}")
    A(f"v_mov_b32 {v(rr+1)}, {v(rr)}")
    A(f"v_permlane32_swap_b32 {v(rr)}, {v(rr+1)}")
    A(f"v_add_f32 {v(rr)}, {v(rr)}, {v(rr+1)}")
    A(f"v_cvt_pk_bf16_f32 {v(rr)}, {v(rr)}, {v(rr)}")
    A(f"v_lshlrev_b32 {v(rr)}, 16, {v(rr)}")
    A(f"v_add_f32 {v(rr)}, s12, {v(rr)}")
    A(f"v_cvt_pk_bf16_f32 {v(rr)}, {v(rr)}, {v(rr)}")
    A(f"v_lshlrev_b32 {v(rr)}, 16, {v(rr)}")
    A(f"global_store_dword {v(vt1)}, {v(rr)}, s[6:7]")
    if stamps:
        A("s_mov_b32 s20, 0"); ST.n = 1; ST.stamp(); ST.stamp(); A("s_waitcnt vmcnt(0)"); ST.stamp(); ST.flush(6, ac)
    A("s_endpgm")
    if prefetch:
        A.label(f"{name}_pf")
        load_ptr(A, 4, "win")
        A(f"s_sub_u32 s10, s2, {NFFT+NMOD}")
        A("s_lshr_b32 s10, s10, 3")
        A("s_mul_i32 s10, s10, 1792")
        A("s_and_b32 s11, s2, 1")
        A("s_mul_i32 s11, s11, 896")
        A("v_add_u32 v1, s10, v0")
        A("v_mov_b32 v6, 896")
        A("s_waitcnt lgkmcnt(0)")
        for it in range(4):
            if it == 3:
                A("v_cmp_gt_u32 vcc, 256, v0")
                A("s_and_b64 exec, exec, vcc")
                A(f"s_cbranch_execz {name}_end")
            A("v_mul_u32_u24 v2, 9363, v1")
            A("v_lshrrev_b32 v2, 17, v2")
            A("v_mul_u32_u24 v3, 14, v2")
            A("v_sub_u32 v3, v1, v3")
            A("v_mul_u32_u24 v2, 3584, v2")
            A("v_lshl_add_u32 v2, v3, 7, v2")
            A("v_cmp_lt_u32 vcc, 6, v3")
            A("v_cndmask_b32 v3, 0, v6, vcc")
            A("v_add3_u32 v2, v2, v3, s11")
            A(f"global_load_dword v{8+it}, v2, s[4:5]")
            if it < 3: A("v_add_u32 v1, 512, v1")
    A.label(f"{name}_end")
    A("s_endpgm")
    return dict(name=name, grid=NWG, block=512, lds=lds, vgpr=max(nv, R.hi), sgpr=96 if stamps else 32)

def gen_kb(A, name="kb_kernel", stamps=False, prefetch=True, pfhalf=True):
    NW = 132; NWG = NW + 4
    TB_L = 0
    MD_L = TB_L + 10240
    WM_L = MD_L + 8192
    T_B = WM_L + 1024
    TS = 1056; V_OFF = T_B + 64 * TS; VS = 80; US = 144; YS = 2064
    U_OFF = T_B; Y_OFF = T_B + 20480
    LDS = V_OFF + 256 * VS
    A.barrier_state(); A.raw(kernel_header(name))
    ST = Stamps(A, on=stamps, kidx=1)
    sW, sC, sG, sT0, sT1, sT2, sRow, sMir, sRow2, sY = 20, 21, 22, 23, 24, 25, 26, 27, 28, 29
    SRD_T = 16
    A(f"s_cmp_ge_u32 s2, {NW}")
    A(f"s_cbranch_scc1 {name}_pf")
    ST.stamp()
    load_ptr(A, 16, "ws"); load_ptr(A, 4, "x"); load_ptr(A, 6, "sre"); load_ptr(A, 8, "sim")
    if prefetch: load_ptr(A, 12, "wsp")
    getpc_sym(A, 10, "fft_tables")
    A(f"v_readfirstlane_b32 {s(sW)}, v0")
    A(f"s_mov_b32 s18, {WS_T + 2*MB}")
    A("s_mov_b32 s19, 0x20000")
    A(f"s_and_b32 {s(sT0)}, s2, 7")
    A(f"s_bfe_u32 {s(sG)}, s2, 0x20003")
    A(f"s_lshr_b32 {s(sT1)}, s2, 5")
    A(f"s_lshl3_add_u32 {s(sC)}, {s(sT1)}, {s(sT0)}")
    A(f"s_cmp_ge_u32 s2, 128")
    A(f"s_cselect_b32 {s(sC)}, 32, {s(sC)}")
    A(f"s_cselect_b32 {s(sG)}, {s(sT0)}, {s(sG)}")
    A(f"s_lshr_b32 {s(sW)}, {s(sW)}, 6")
    R = RegAlloc(1)
    vl = R.alloc(); vq = R.alloc(); vi = R.alloc(); vl16 = R.alloc(); vtid16 = R.alloc()
    vtb = R.alloc(8, 4); vt = [vtb + k for k in range(8)]
    A0 = R.alloc(4); A1 = R.alloc(4)
    F1 = [R.alloc(4) for _ in range(2)]; F2 = [[R.alloc(4) for _ in range(2)] for _ in range(2)]
    tw = R.alloc(16, 4)
    opca = [R.alloc() for _ in range(4)]
    xrow = [R.alloc(4) for _ in range(2)]
    Bf = [[R.alloc(4) for _ in range(2)] for _ in range(4)]
    acc = [R.alloc(4) for _ in range(4)]
    ga = R.alloc(8, 4); sb = R.alloc(8, 4); ocb = R.alloc(8, 4)
    vaT = R.alloc(); vaVw = R.alloc(); vaVr = R.alloc(); vaUw = R.alloc(); vaUr = R.alloc(); vaYw = R.alloc()
    vrow = [R.alloc() for _ in range(2)]
    xf = R.alloc(8, 4); yy = R.alloc(8, 4)
    Rr = R.alloc(4); Ri = R.alloc(4)
    A(f"v_and_b32 {v(vl)}, 63, v0")
    A(f"v_lshlrev_b32 {v(vl16)}, 4, {v(vl)}")
    A(f"v_lshlrev_b32 {v(vtid16)}, 4, v0")
    A(f"s_add_u32 {s(sT1)}, {s(sC)}, 32")
    A(f"s_and_b32 {s(sT2)}, {s(sC)}, 31")
    A(f"s_cselect_b32 {s(sMir)}, 1, 0")
    A(f"s_cselect_b32 {s(sT1)}, {s(sT1)}, 0x4000")
    A(f"s_cmp_ge_u32 {s(sW)}, 4")
    A(f"s_cselect_b32 {s(sT0)}, {s(sT1)}, {s(sC)}")
    A(f"s_lshl_b32 {s(sT0)}, {s(sT0)}, 15")
    A(f"s_and_b32 {s(sT1)}, {s(sW)}, 3")
    A(f"s_lshl_b32 {s(sT1)}, {s(sT1)}, 13")
    A(f"s_add_u32 {s(sT0)}, {s(sT0)}, {s(sT1)}")
    A(f"s_add_u32 {s(sT0)}, {s(sT0)}, {WS_T - 128}")
    A(f"s_mul_i32 {s(sT1)}, {s(sW)}, {8*TS}")
    A(f"s_add_u32 m0, {s(sT1)}, {T_B}")
    for j in range(4): A(f"v_add_u32 {v(vt[4+j])}, {128 - 32*j}, {v(vl16)}")
    A(f"v_and_b32 {v(vi)}, 15, v0")
    A(f"v_bfe_u32 {v(vq)}, v0, 4, 2")
    A(f"v_bfe_u32 {v(vt[0])}, v0, 2, 3")
    A(f"v_lshlrev_b32 {v(vt[0])}, 18, {v(vt[0])}")
    A(f"v_and_b32 {v(vt[1])}, 3, v0")
    A(f"v_lshl_add_u32 {v(vt[0])}, {v(vt[1])}, 4, {v(vt[0])}")
    A(f"s_lshl_b32 {s(sT1)}, {s(sG)}, 21")
    A(f"s_lshl_b32 {s(sT2)}, {s(sC)}, 12")
    A(f"s_add_u32 {s(sT1)}, {s(sT1)}, {s(sT2)}")
    A(f"v_add_u32 {v(vt[0])}, {s(sT1)}, {v(vt[0])}")
    A(f"s_lshl3_add_u32 {s(sT1)}, {s(sG)}, {s(sW)}")
    A(f"s_lshl_b32 {s(sT1)}, {s(sT1)}, 6")
    A(f"s_add_u32 {s(sRow)}, {s(sT1)}, {s(sC)}")
    A(f"s_sub_u32 {s(sRow2)}, 2048, {s(sRow)}")
    A(f"s_and_b32 {s(sRow2)}, {s(sRow2)}, 2047")
    A(f"s_lshl_b32 {s(sRow)}, {s(sRow)}, 10")
    A(f"s_lshl_b32 {s(sRow2)}, {s(sRow2)}, 10")
    A(f"v_add_u32 {v(vrow[0])}, {s(sRow)}, {v(vl16)}")
    A(f"v_add_u32 {v(vrow[1])}, {s(sRow2)}, {v(vl16)}")
    A(f"s_lshl_b32 {s(sT2)}, {s(sW)}, 10")
    A("s_waitcnt lgkmcnt(0)")
    for g in range(2):
        if g:
            A(f"s_add_u32 m0, m0, {4*TS}")
            A(f"s_add_u32 {s(sT0)}, {s(sT0)}, 4096")
        for j in range(4):
            A(f"buffer_load_dwordx4 {v(vt[4+j])}, {s(SRD_T,4)}, {s(sT0)} offen offset:{j*TS} lds")
    A(f"s_add_u32 m0, {s(sT2)}, {TB_L}")
    A(f"v_add_u32 {v(vt[1])}, {TAB_OFF['tab_f1']}, {v(vtid16)}")
    A(f"global_load_lds_dwordx4 {v(vt[1])}, s[10:11]")
    A(f"s_add_u32 m0, {s(sT2)}, {MD_L}")
    A(f"v_add_u32 {v(vt[2])}, {WS_MOD + 2048}, {v(vtid16)}")
    A(f"global_load_lds_dwordx4 {v(vt[2])}, s[16:17]")
    lx = f"{name}_nox"; l23 = f"{name}_x23"
    A(f"s_cmp_ge_u32 {s(sW)}, 4")
    A(f"s_cbranch_scc1 {lx}")
    A(f"s_cmp_ge_u32 {s(sW)}, 2")
    A(f"s_cbranch_scc1 {l23}")
    A(f"s_add_u32 m0, {s(sT2)}, {TB_L + 8192}")
    A(f"v_add_u32 {v(vt[1])}, 8192, {v(vt[1])}")
    A(f"global_load_lds_dwordx4 {v(vt[1])}, s[10:11]")
    A(f"s_branch {lx}")
    A.label(l23)
    A(f"s_cmp_eq_u32 {s(sW)}, 3")
    A("s_cselect_b32 s6, s8, s6")
    A("s_cselect_b32 s7, s9, s7")
    A(f"s_cselect_b32 m0, {WM_L + 512}, {WM_L}".replace(f"{WM_L + 512}, {WM_L}", f"{s(sT1)}, {s(sT2)}") if False else f"s_cselect_b32 {s(sT1)}, 512, 0")
    A(f"s_add_u32 m0, {s(sT1)}, {WM_L}")
    A("s_mov_b32 exec_hi, 0")
    A(f"global_load_lds_dwordx4 {v(vt[0])}, s[6:7]")
    A("s_mov_b32 exec_hi, -1")
    A.label(lx)
    for h in range(2): A(f"global_load_dwordx4 {v(xrow[h],4)}, {v(vrow[h])}, s[4:5]")
    A(f"v_lshrrev_b32 {v(vt[0])}, 2, {v(vi)}")
    A(f"v_lshl_add_u32 {v(vt[0])}, {v(vq)}, 2, {v(vt[0])}")
    A(f"v_mul_u32_u24 {v(vaT)}, {TS}, {v(vt[0])}")
    A(f"v_and_b32 {v(vt[0])}, 3, {v(vi)}")
    A(f"v_lshl_add_u32 {v(vaT)}, {v(vt[0])}, 3, {v(vaT)}")
    A(f"v_and_b32 {v(vt[4])}, 0x1c0, v0")
    A(f"v_lshl_add_u32 {v(vaT)}, {v(vt[4])}, 1, {v(vaT)}")
    A(f"v_add_u32 {v(vaT)}, {T_B}, {v(vaT)}")
    A(f"v_lshl_add_u32 {v(vt[0])}, {v(vq)}, 6, {v(vi)}")
    A(f"v_mul_u32_u24 {v(vaVw)}, {VS}, {v(vt[0])}")
    A(f"v_lshrrev_b32 {v(vt[0])}, 3, {v(vt[4])}")
    A(f"s_mov_b32 {s(sT2)}, {V_OFF}")
    A(f"v_add3_u32 {v(vaVw)}, {v(vaVw)}, {v(vt[0])}, {s(sT2)}")
    A(f"v_lshrrev_b32 {v(vt[0])}, 1, {v(vt[4])}")
    A(f"v_add_u32 {v(vt[0])}, {v(vt[0])}, {v(vi)}")
    A(f"v_mul_u32_u24 {v(vaVr)}, {VS}, {v(vt[0])}")
    A(f"v_lshl_add_u32 {v(vaVr)}, {v(vq)}, 4, {v(vaVr)}")
    A(f"v_add_u32 {v(vaVr)}, {V_OFF}, {v(vaVr)}")
    A(f"v_lshrrev_b32 {v(vt[0])}, 2, {v(vt[4])}")
    A(f"v_lshl_add_u32 {v(vt[3])}, {v(vq)}, 1, {v(vt[0])}")
    A(f"v_mul_u32_u24 {v(vaUw)}, {US}, {v(vt[3])}")
    A(f"v_lshl_add_u32 {v(vaUw)}, {v(vi)}, 2, {v(vaUw)}")
    A(f"v_add_u32 {v(vt[3])}, {v(vt[0])}, {v(vi)}")
    A(f"v_mul_u32_u24 {v(vaUr)}, {US}, {v(vt[3])}")
    A(f"v_lshl_add_u32 {v(vaUr)}, {v(vq)}, 4, {v(vaUr)}")
    A(f"s_mul_i32 {s(sY)}, {s(sW)}, {YS}")
    A(f"s_add_u32 {s(sY)}, {s(sY)}, {Y_OFF}")
    A(f"v_lshlrev_b32 {v(vaYw)}, 6, {v(vi)}")
    A(f"v_lshl_add_u32 {v(vaYw)}, {v(vq)}, 4, {v(vaYw)}")
    A(f"v_add_u32 {v(vaYw)}, {s(sY)}, {v(vaYw)}")
    A(f"v_lshrrev_b32 {v(vt[5])}, 1, {v(vi)}")
    A(f"v_lshlrev_b32 {v(vt[5])}, 6, {v(vt[5])}")
    A(f"v_lshl_add_u32 {v(vt[5])}, {v(vq)}, 3, {v(vt[5])}")
    A(f"v_add_u32 {v(vt[6])}, {v(vt[4])}, {v(vi)}")
    A(f"v_lshlrev_b32 {v(vt[6])}, 2, {v(vt[6])}")
    A(f"v_and_b32 {v(vt[3])}, 1, v0")
    A(f"v_cmp_eq_u32 vcc, 1, {v(vt[3])}")
    A(f"s_mov_b32 {s(sT0)}, 0x80008000")
    A("s_waitcnt vmcnt(2)")
    vpf = R.alloc(); vpd = R.alloc(2)
    if prefetch:
        A(f"s_bfe_u32 {s(sT1)}, s2, 0x20001")
        A(f"s_lshl_b32 {s(sT1)}, {s(sT1)}, 21")
        A(f"s_lshr_b32 {s(sT2)}, s2, 3")
        A(f"s_lshl3_add_u32 {s(sT2)}, {s(sT2)}, {s(sW)}")
        A(f"s_and_b32 {s(sT2)}, {s(sT2)}, 127")
        A(f"s_lshl_b32 {s(sT2)}, {s(sT2)}, 14")
        A(f"s_add_u32 {s(sT1)}, {s(sT1)}, {s(sT2)}")
        if pfhalf:
            A(f"s_and_b32 {s(sT2)}, s2, 1")
            A(f"s_lshl_b32 {s(sT2)}, {s(sT2)}, 13")
            A(f"s_add_u32 {s(sT1)}, {s(sT1)}, {s(sT2)}")
        A(f"v_lshl_add_u32 {v(vpf)}, {v(vl)}, 7, {s(sT1)}")
    ST.stamp()
    A("s_barrier")
    if prefetch:
        A(f"global_load_dword {v(vpd)}, {v(vpf)}, s[12:13]")
        if not pfhalf:
            A(f"v_add_u32 {v(vpf)}, 8192, {v(vpf)}")
            A(f"global_load_dword {v(vpd+1)}, {v(vpf)}, s[12:13]")
    for reg, o in ((Rr, 0), (Ri, 512)):
        A(f"ds_read_b64 {v(reg,2)}, {v(vt[5])} offset:{WM_L + o}")
        A(f"ds_read_b64 {v(reg+2,2)}, {v(vt[5])} offset:{WM_L + o + 32}")
    for jt in range(4):
        for c in range(2):
            for p in range(2):
                A(f"ds_read_b64_tr_b16 {v(Bf[jt][c]+2*p,2)}, {v(vaT)} offset:{c*32*TS + p*16*TS + jt*32}")
        if jt == 1:
            pass
    A("s_waitcnt lgkmcnt(15)")
    for j in range(4):
        A(f"v_xor_b32 {v(vt[0])}, {s(sT0)}, {v(Ri+j)}")
        A(f"v_cndmask_b32 {v(A0+j)}, {v(Rr+j)}, {v(Ri+j)}, vcc")
        A(f"v_cndmask_b32 {v(A1+j)}, {v(vt[0])}, {v(Rr+j)}, vcc")
    for jt in range(4): A(f"ds_read_b32 {v(opca[jt])}, {v(vt[6])} offset:{MD_L + jt*64}")
    for jt in range(4):
        A(f"s_waitcnt lgkmcnt({min(15, (3-jt)*4 + 4)})")
        A(f"v_mfma_f32_16x16x32_bf16 {v(acc[jt],4)}, {v(A0,4)}, {v(Bf[jt][0],4)}, 0")
        A(f"v_mfma_f32_16x16x32_bf16 {v(acc[jt],4)}, {v(A1,4)}, {v(Bf[jt][1],4)}, {v(acc[jt],4)}")
    for mt in range(2): A(f"ds_read_b128 {v(F1[mt],4)}, {v(vl16)} offset:{TB_L + mt*1024}")
    A(f"v_lshlrev_b32 {v(vt[7])}, 2, {v(vl16)}")
    for h in range(4): A(f"ds_read_b128 {v(tw+4*h,4)}, {v(vt[7])} offset:{TB_L + 6144 + h*16}")
    A("s_waitcnt lgkmcnt(6)")
    for jt in range(4):
        for r in range(4): A(f"v_mul_f32 {v(acc[jt]+r)}, {v(acc[jt]+r)}, {v(opca[jt])}")
    lab = f"{name}_nodc"
    A(f"s_or_b32 {s(sT0)}, {s(sC)}, {s(sG)}")
    A(f"s_cbranch_scc1 {lab}")
    A(f"v_and_b32 {v(vt[2])}, 0x1cf, v0")
    A(f"v_lshlrev_b32 {v(vt[2])}, 2, {v(vt[2])}")
    if WS_MOD: A(f"v_add_u32 {v(vt[2])}, {WS_MOD}, {v(vt[2])}")
    for jt in range(4): A(f"global_load_dword {v(Bf[0][0]+jt)}, {v(vt[2])}, s[16:17] offset:{jt*64}")
    A(f"v_cmp_eq_u32 vcc, 0, {v(vq)}")
    A(f"v_mov_b32 {v(vt[1])}, 0x45000000")
    A(f"v_cndmask_b32 {v(vt[1])}, 0, {v(vt[1])}, vcc")
    A("s_waitcnt vmcnt(0)")
    for jt in range(4): A(f"v_fmac_f32 {v(acc[jt])}, {v(Bf[0][0]+jt)}, {v(vt[1])}")
    A.label(lab)
    for jt in range(4):
        ac = acc[jt]
        A(f"v_cvt_pk_bf16_f32 {v(ac)}, {v(ac)}, {v(ac+1)}")
        A(f"v_cvt_pk_bf16_f32 {v(ac+1)}, {v(ac+2)}, {v(ac+3)}")
        o0 = (jt&1)*16*VS + (jt>>1)*4
        A(f"ds_write_b32 {v(vaVw)}, {v(ac)} offset:{o0}")
        A(f"ds_write_b32 {v(vaVw)}, {v(ac+1)} offset:{o0 + 32*VS}")
    A(f"s_mov_b32 {s(sT0)}, 0xffff0000")
    A("s_waitcnt lgkmcnt(0)")
    A("s_barrier")
    ST.stamp()
    for h in range(2): A(f"ds_read_b128 {v(Bf[h][0],4)}, {v(vaVr)} offset:{h*16*VS}")
    for nt in range(2):
        for ks in range(2): A(f"ds_read_b128 {v(F2[nt][ks],4)}, {v(vl16)} offset:{TB_L + 2048 + nt*2048 + ks*1024}")
    A(f"v_lshlrev_b32 {v(vt[7])}, 1, {v(vl16)}")
    for h in range(2):
        A(f"s_waitcnt lgkmcnt({5-h})")
        for mt in range(2):
            A(f"v_mfma_f32_16x16x32_bf16 {v(acc[2*h+mt],4)}, {v(F1[mt],4)}, {v(Bf[h][0],4)}, 0")
    for reg, sec in ((ga, 1), (sb, 2), (ocb, 3)):
        for u in range(2): A(f"ds_read_b128 {v(reg+4*u,4)}, {v(vt[7])} offset:{MD_L + sec*2048 + u*16}")
    for h in range(2):
        for mt in range(2):
            for pp in range(2):
                re, im = acc[2*h+mt] + 2 * pp, acc[2*h+mt] + 2 * pp + 1
                k = ((h*2+mt)*2+pp)*2
                c_, s_ = tw + k, tw + k + 1
                t0, t1 = vt[4*pp], vt[4*pp+1]
                if pp == 1 and False: pass
                A(f"v_mul_f32 {v(t0)}, {v(re)}, {v(c_)}")
                A(f"v_mul_f32 {v(t1)}, {v(im)}, {v(c_)}")
                A(f"v_fma_f32 {v(t0)}, {v(im)}, {v(s_)}, {v(t0)}")
                A(f"v_fma_f32 {v(t1)}, -{v(re)}, {v(s_)}, {v(t1)}")
                A(f"v_cvt_pk_bf16_f32 {v(vt[4*pp+2])}, {v(t0)}, {v(t1)}")
                A(f"ds_write_b32 {v(vaUw)}, {v(vt[4*pp+2])} offset:{U_OFF + (8*mt+pp)*US + h*64}")
    A("s_waitcnt lgkmcnt(0)")
    for ks in range(2): A(f"ds_read_b128 {v(Bf[ks][0],4)}, {v(vaUr)} offset:{U_OFF + ks*64}")
    A(f"s_waitcnt vmcnt({(1 if pfhalf else 2) if prefetch else 0})")
    xg = [xf, yy]
    for r in range(2):
        for j in range(4):
            A(f"v_lshlrev_b32 {v(xg[r]+2*j)}, 16, {v(xrow[r]+j)}")
            A(f"v_and_b32 {v(xg[r]+2*j+1)}, {s(sT0)}, {v(xrow[r]+j)}")
    for ks in range(2):
        A(f"s_waitcnt lgkmcnt({1-ks})")
        for nt in range(2):
            c = "0" if ks == 0 else v(acc[nt], 4)
            A(f"v_mfma_f32_16x16x32_bf16 {v(acc[nt],4)}, {v(Bf[ks][0],4)}, {v(F2[nt][ks],4)}, {c}")
    A(f"v_lshl_add_u32 {v(vt[0])}, {v(vl16)}, 1, {s(sY)}")
    A(f"v_lshlrev_b32 {v(vt[2])}, 1, {v(vl16)}")
    A(f"v_sub_u32 {v(vt[1])}, 2048, {v(vt[2])}")
    A(f"v_and_b32 {v(vt[1])}, 2047, {v(vt[1])}")
    A(f"v_add_u32 {v(vt[1])}, {s(sY)}, {v(vt[1])}")
    A(f"s_add_u32 {s(sT1)}, {s(sY)}, {505*4}")
    A(f"v_sub_u32 {v(vt[2])}, {s(sT1)}, {v(vt[2])}")
    for nt in range(2): A(f"ds_write_b128 {v(vaYw)}, {v(acc[nt],4)} offset:{nt*1024}")
    A("s_waitcnt lgkmcnt(0)")
    ST.stamp()
    y = Bf[2][0]; assert Bf[2][1] == y + 4
    y2 = Bf[3][0]; assert Bf[3][1] == y2 + 4
    A(f"ds_read_b128 {v(y,4)}, {v(vt[0])}")
    A(f"ds_read_b128 {v(y+4,4)}, {v(vt[0])} offset:16")
    A(f"ds_read_b32 {v(y2)}, {v(vt[1])}")
    A(f"ds_read_b32 {v(y2+1)}, {v(vt[2])} offset:24")
    for j in (2, 4, 6): A(f"ds_read2_b32 {v(y2+j,2)}, {v(vt[2])} offset0:{7-j} offset1:{6-j}")
    A("s_waitcnt lgkmcnt(5)")
    for j in range(8): A(f"v_fma_f32 {v(xf+j)}, {v(ga+j)}, {v(y+j)}, {v(xf+j)}")
    A("s_waitcnt lgkmcnt(0)")
    for j in range(8): A(f"v_fma_f32 {v(yy+j)}, {v(ga+j)}, {v(y2+j)}, {v(yy+j)}")
    for r in range(2):
        for j in range(4): A(f"v_cvt_pk_bf16_f32 {v(xrow[r]+j)}, {v(xg[r]+2*j)}, {v(xg[r]+2*j+1)}")
    A(f"v_add_u32 {v(vt[2])}, {WS_X1}, {v(vrow[0])}")
    A(f"v_add_u32 {v(vt[3])}, {WS_X1}, {v(vrow[1])}")
    A(f"global_store_dwordx4 {v(vt[2])}, {v(xrow[0],4)}, s[16:17]")
    lab2 = f"{name}_nomir1"
    A(f"s_cmp_eq_u32 {s(sMir)}, 0")
    A(f"s_cbranch_scc1 {lab2}")
    A(f"global_store_dwordx4 {v(vt[3])}, {v(xrow[1],4)}, s[16:17]")
    A.label(lab2)
    for r in range(2):
        for j in range(4):
            A(f"v_lshlrev_b32 {v(xg[r]+2*j)}, 16, {v(xrow[r]+j)}")
            A(f"v_and_b32 {v(xg[r]+2*j+1)}, {s(sT0)}, {v(xrow[r]+j)}")
    S_ = [vt[0], vt[1]]; Q_ = [vt[4], vt[5]]
    for r in range(2):
        A(f"v_add_f32 {v(S_[r])}, {v(xg[r])}, {v(xg[r]+1)}")
        A(f"v_mul_f32 {v(Q_[r])}, {v(xg[r])}, {v(xg[r])}")
    for j in range(1, 8):
        for r in range(2):
            if j >= 2: A(f"v_add_f32 {v(S_[r])}, {v(S_[r])}, {v(xg[r]+j)}")
            A(f"v_fmac_f32 {v(Q_[r])}, {v(xg[r]+j)}, {v(xg[r]+j)}")
    chains = [S_[0], Q_[0], S_[1], Q_[1]]
    for mode, rm in (("quad_perm:[1,0,3,2]", "0xf"), ("quad_perm:[2,3,0,1]", "0xf"), ("row_half_mirror", "0xf"), ("row_mirror", "0xf"), ("row_bcast:15", "0xa"), ("row_bcast:31", "0xc")):
        for c_ in chains: A(f"v_add_f32_dpp {v(c_)}, {v(c_)}, {v(c_)} {mode} row_mask:{rm} bank_mask:0xf")
    for k, c_ in enumerate(chains): A(f"v_readlane_b32 {s(30+k)}, {v(c_)}, 63")
    A(f"v_mov_b32 {v(vt[6])}, 0x3b000000")
    for r in range(2):
        A(f"v_mul_f32 {v(S_[r])}, {s(30+2*r)}, {v(vt[6])}")
        A(f"v_mul_f32 {v(Q_[r])}, {s(31+2*r)}, {v(vt[6])}")
    for r in range(2): A(f"v_fma_f32 {v(Q_[r])}, -{v(S_[r])}, {v(S_[r])}, {v(Q_[r])}")
    for r in range(2): A(f"v_max_f32 {v(Q_[r])}, 0, {v(Q_[r])}")
    for r in range(2): A(f"v_add_f32 {v(Q_[r])}, 0x3727c5ac, {v(Q_[r])}")
    for r in range(2): A(f"v_rsq_f32 {v(Q_[r])}, {v(Q_[r])}")
    A(f"v_add_u32 {v(vt[2])}, {WS_H2}, {v(vrow[0])}")
    A(f"v_add_u32 {v(vt[3])}, {WS_H2}, {v(vrow[1])}")
    for r in range(2):
        for j in range(8): A(f"v_sub_f32 {v(xg[r]+j)}, {v(xg[r]+j)}, {v(S_[r])}")
    for r in range(2):
        for j in range(8): A(f"v_mul_f32 {v(xg[r]+j)}, {v(xg[r]+j)}, {v(Q_[r])}")
    for r in range(2):
        for j in range(8): A(f"v_fma_f32 {v(xg[r]+j)}, {v(xg[r]+j)}, {v(ocb+j)}, {v(sb+j)}")
    yo = [y, y2]
    for r in range(2):
        for j in range(4): A(f"v_cvt_pk_bf16_f32 {v(yo[r]+j)}, {v(xg[r]+2*j)}, {v(xg[r]+2*j+1)}")
    A(f"global_store_dwordx4 {v(vt[2])}, {v(y,4)}, s[16:17]")
    A(f"s_cmp_eq_u32 {s(sMir)}, 0")
    A(f"s_cbranch_scc1 {name}_fin")
    A(f"global_store_dwordx4 {v(vt[3])}, {v(y2,4)}, s[16:17]")
    A.label(f"{name}_fin")
    if stamps:
        ST.stamp(); A("s_waitcnt vmcnt(0)"); ST.stamp(); ST.flush(16, ga)
    A("s_endpgm")
    A.label(f"{name}_pf")
    A(f"s_cmp_ge_u32 s2, {NWG}")
    A(f"s_cbranch_scc1 {name}_end")
    load_ptr(A, 4, "ws")
    A(f"s_sub_u32 s10, s2, {NW}")
    A("s_lshl_b32 s10, s10, 16")
    A(f"s_add_u32 s10, s10, {WS_STAT}")
    A("v_lshl_add_u32 v1, v0, 4, s10")
    for j in range(4): A(f"v_mov_b32 v{4+j}, -1")
    A("s_waitcnt lgkmcnt(0)")
    for it in range(8):
        A("global_store_dwordx4 v1, v[4:7], s[4:5]")
        if it < 7: A("v_add_u32 v1, 8192, v1")
    A(f"s_cmp_lg_u32 s2, {NW}")
    A(f"s_cbranch_scc1 {name}_end")
    A("v_lshlrev_b32 v1, 4, v0")
    A(f"v_add_u32 v1, {WS_STAT + 256*1024}, v1")
    for j in range(4): A(f"v_mov_b32 v{8+j}, 0")
    A("global_store_dwordx4 v1, v[8:11], s[4:5]")
    A.label(f"{name}_end")
    A("s_endpgm")
    return dict(name=name, grid=NWG, block=512, lds=LDS, vgpr=R.hi, sgpr=96 if stamps else 40)
```

```python
from g2b import *
WS_CNT = WS_STAT + 256 * 1024
SPIN = 0x8000

def gen_km(A, name="km_kernel", stamps=False):
    NWG = 256
    GS = 960; SLOT = 16 * GS; W_OFF = 65536; NSZ = 4; NSTZ = 16; WROW = 3584
    X_OFF = W_OFF + NSZ * SLOT; XS = 32 * 144
    ZT = 145408
    NSG = 5; NSTG = 32; B_OFF = 14 * 1024; STAGE = 22 * 1024; RING = NSG * STAGE
    GX = 114688
    OW = 0; OP = 114688; NSO = 3; NSTO = 7; PSLOT = 16384
    LDS = 163840
    A.barrier_state(); A.raw(kernel_header(name))
    ST = Stamps(A, on=stamps, kidx=2)
    sW, sRB, sCC, sT0, sT1, sT2, sTH, sFH, sK, sSlot, sI = 20, 21, 22, 23, 24, 25, 26, 27, 28, 34, 35
    A(f"s_cmp_ge_u32 s2, {NWG}")
    A(f"s_cbranch_scc1 {name}_end")
    ST.stamp()
    load_ptr(A, 4, "ws"); load_ptr(A, 8, "win"); load_ptr(A, 12, "wsp"); load_ptr(A, 16, "wout"); load_ptr(A, 36, "bsp"); load_ptr(A, 38, "out")
    A(f"v_readfirstlane_b32 {s(sW)}, v0")
    A(f"s_bfe_u32 {s(sRB)}, s2, 0x20001")
    A(f"s_bfe_u32 {s(sT0)}, s2, 0x30003")
    A(f"s_lshl3_add_u32 {s(sRB)}, {s(sRB)}, {s(sT0)}")
    A(f"s_and_b32 {s(sCC)}, s2, 1")
    A(f"s_lshr_b32 {s(sT0)}, s2, 6")
    A(f"s_lshl2_add_u32 {s(sCC)}, {s(sCC)}, {s(sT0)}")
    A(f"s_lshr_b32 {s(sW)}, {s(sW)}, 6")
    A(f"s_and_b32 {s(sTH)}, {s(sW)}, 1")
    A(f"s_bfe_u32 {s(sFH)}, {s(sW)}, 0x10001")
    vq, vi = 1, 2
    vtt = [3, 4]
    A(f"v_bfe_u32 v1, v0, 4, 2")
    A(f"v_and_b32 v2, 15, v0")
    A(f"s_lshl1_add_u32 {s(sT0)}, {s(sTH)}, {s(sFH)}")
    A(f"s_xor_b32 {s(sT1)}, {s(sT0)}, 1")
    A(f"v_lshl_add_u32 {v(vtt[0])}, {s(sT0)}, 4, {v(vi)}")
    A(f"v_lshl_add_u32 {v(vtt[1])}, {s(sT1)}, 4, {v(vi)}")
    A(f"s_cmp_ge_u32 {s(sW)}, 4")
    A(f"s_cbranch_scc1 {name}_loader")
    TILES = [(0, 0), (0, 1), (1, 0), (1, 1), (2, 0), (2, 1), (3, 0)]
    nvmax = [0]
    R = RegAlloc(5)
    vC = R.alloc(2)
    vtb = R.alloc(8, 4); vt = [vtb + k for k in range(8)]
    vH = [[R.alloc() for _ in range(2)] for _ in range(2)]
    vWa = [R.alloc() for _ in range(2)]; vWb = [R.alloc() for _ in range(2)]
    vLx = [R.alloc() for _ in range(2)]
    gt2 = R.alloc(16, 4)
    z2p = [R.alloc(2) for _ in range(7)]
    st1 = [R.alloc(2) for _ in range(2)]; st2 = [R.alloc(2) for _ in range(2)]
    acc = [[R.alloc(4) for _ in range(7)] for _ in range(2)]
    FH_ = [[[R.alloc(4) for _ in range(2)] for _ in range(2)] for _ in range(2)]
    FW = [[[R.alloc(4) for _ in range(4)] for _ in range(2)] for _ in range(2)]
    A(f"v_and_b32 {v(vt[0])}, 7, {v(vi)}")
    A(f"v_xor_b32 {v(vt[1])}, {v(vq)}, {v(vt[0])}")
    A(f"v_lshlrev_b32 {v(vt[1])}, 4, {v(vt[1])}")
    for hf in range(2):
        A(f"v_lshl_add_u32 {v(vH[hf][0])}, {v(vtt[hf])}, 7, {v(vt[1])}")
        A(f"v_xor_b32 {v(vH[hf][1])}, 64, {v(vH[hf][0])}")
    A(f"v_mul_u32_u24 {v(vt[1])}, {2*GS}, {v(vq)}")
    A(f"v_lshrrev_b32 {v(vt[2])}, 2, {v(vi)}")
    A(f"v_mul_u32_u24 {v(vt[2])}, 224, {v(vt[2])}")
    A(f"v_and_b32 {v(vt[3])}, 3, {v(vi)}")
    A(f"v_lshl_add_u32 {v(vt[1])}, {v(vt[3])}, 3, {v(vt[1])}")
    A(f"v_add_u32 {v(vt[1])}, {v(vt[1])}, {v(vt[2])}")
    A(f"s_lshl_b32 {s(sT0)}, {s(sFH)}, 7")
    A(f"s_add_u32 {s(sT0)}, {s(sT0)}, {W_OFF}")
    A(f"v_add_u32 {v(vWa[0])}, {s(sT0)}, {v(vt[1])}")
    A(f"v_add_u32 {v(vWb[0])}, {W_OFF+96}, {v(vt[1])}")
    A(f"v_add_u32 {v(vWa[1])}, {3*SLOT}, {v(vWa[0])}")
    A(f"v_add_u32 {v(vWb[1])}, {3*SLOT}, {v(vWb[0])}")
    A(f"s_mul_i32 {s(sT0)}, {s(sW)}, {XS}")
    A(f"s_add_u32 {s(sT0)}, {s(sT0)}, {X_OFF}")
    for hf in range(2):
        A(f"v_and_b32 {v(vLx[hf])}, 31, {v(vtt[hf])}")
        A(f"v_mul_u32_u24 {v(vLx[hf])}, 144, {v(vLx[hf])}")
        A(f"v_lshl_add_u32 {v(vLx[hf])}, {v(vq)}, 3, {v(vLx[hf])}")
        A(f"v_add_u32 {v(vLx[hf])}, {s(sT0)}, {v(vLx[hf])}")
    for hf in range(2):
        for r in range(2):
            A(f"v_mov_b32 {v(st1[hf]+r)}, 0"); A(f"v_mov_b32 {v(st2[hf]+r)}, 0")
    A(f"v_mov_b32 {v(vC)}, {fhex(GELU_C2)}")
    A(f"v_mov_b32 {v(vC+1)}, {fhex(GELU_C1)}")
    A("s_waitcnt lgkmcnt(0)")
    def readsZ(st, buf):
        kc = st & 7; slot = st % NSZ; sg = slot // 3; so = (slot % 3) * SLOT
        o = []
        for ks in range(2):
            for hf in range(2): o.append(f"ds_read_b128 {v(FH_[buf][ks][hf],4)}, {v(vH[hf][ks])} offset:{kc*8192}")
            for wf in range(4):
                for p in range(2):
                    base = vWa[sg] if wf < 3 else vWb[sg]
                    off = so + ks * 8 * GS + p * GS + (wf * 32 if wf < 3 else 0)
                    o.append(f"ds_read_b64_tr_b16 {v(FW[buf][ks][wf]+2*p,2)}, {v(base)} offset:{off}")
        return o
    def mfmasZ(st, buf):
        h = st >> 3
        o = []
        for ks in range(2):
            for tl, (wf, hf) in enumerate(TILES):
                c = "0" if (st & 7) == 0 and ks == 0 else v(acc[h][tl], 4)
                o.append(f"v_mfma_f32_16x16x32_bf16 {v(acc[h][tl],4)}, {v(FW[buf][ks][wf],4)}, {v(FH_[buf][ks][hf],4)}, {c}")
        return o
    def z2_part1():
        A(f"s_mov_b32 {s(sT2)}, 0xffff0000")
        for grp in ([0, 1, 2, 3], [4, 5, 6]):
            for x in gelu_pk_multi([acc[0][tl] for tl in grp], gt2, vC): A(x)
            for tl in grp:
                ac = acc[0][tl]
                for h in range(2): A(f"v_cvt_pk_bf16_f32 {v(z2p[tl]+h)}, {v(ac+2*h)}, {v(ac+2*h+1)}")
            for k, tl in enumerate(grp):
                for h in range(2):
                    A(f"v_lshlrev_b32 {v(gt2+4*k+2*h)}, 16, {v(z2p[tl]+h)}")
                    A(f"v_and_b32 {v(gt2+4*k+2*h+1)}, {s(sT2)}, {v(z2p[tl]+h)}")
            for k, tl in enumerate(grp):
                hf = TILES[tl][1]
                for h in range(2):
                    A(pk("add", st1[hf], v(st1[hf], 2), v(gt2+4*k+2*h, 2)))
                    A(pk("fma", st2[hf], v(gt2+4*k+2*h, 2), v(gt2+4*k+2*h, 2), v(st2[hf], 2)))
        for hf in range(2):
            A(f"v_add_f32 {v(st1[hf])}, {v(st1[hf])}, {v(st1[hf]+1)}")
            A(f"v_add_f32 {v(st2[hf])}, {v(st2[hf])}, {v(st2[hf]+1)}")
        rs4 = (st1[0], st2[0], st1[1], st2[1])
        for k, r in enumerate(rs4): A(f"v_mov_b32 {v(gt2+k)}, {v(r)}")
        for k, r in enumerate(rs4): A(f"v_permlane16_swap_b32 {v(r)}, {v(gt2+k)}")
        for k, r in enumerate(rs4): A(f"v_add_f32 {v(r)}, {v(r)}, {v(gt2+k)}")
        for k, r in enumerate(rs4): A(f"v_mov_b32 {v(gt2+k)}, {v(r)}")
        for k, r in enumerate(rs4): A(f"v_permlane32_swap_b32 {v(r)}, {v(gt2+k)}")
        for k, r in enumerate(rs4): A(f"v_add_f32 {v(r)}, {v(r)}, {v(gt2+k)}")
        for x in [f"v_cmp_eq_u32 vcc, 1, {v(vq)}",
           f"v_mov_b32 {v(vt[4])}, 0x7fc00000",
           f"s_lshl1_add_u32 {s(sT1)}, {s(sRB)}, {s(sTH)}",
           f"v_cndmask_b32 {v(vt[2])}, {v(st1[0])}, {v(st1[1])}, vcc",
           f"v_cndmask_b32 {v(vt[3])}, {v(st2[0])}, {v(st2[1])}, vcc",
           f"v_cndmask_b32 {v(vt[0])}, {v(vtt[0])}, {v(vtt[1])}, vcc",
           f"v_cmp_eq_u32 vcc, -1, {v(vt[2])}",
           f"s_lshl_b32 {s(sT1)}, {s(sT1)}, 12",
           f"v_cndmask_b32 {v(vt[2])}, {v(vt[2])}, {v(vt[4])}, vcc",
           f"v_cmp_eq_u32 vcc, -1, {v(vt[3])}",
           f"s_add_u32 {s(sT1)}, {s(sT1)}, {WS_STAT}",
           f"v_cndmask_b32 {v(vt[3])}, {v(vt[3])}, {v(vt[4])}, vcc",
           f"s_lshl1_add_u32 {s(sT2)}, {s(sCC)}, {s(sFH)}",
           f"s_lshl_b32 {s(sT2)}, {s(sT2)}, 8",
           f"s_add_u32 {s(sT2)}, {s(sT2)}, {s(sT1)}",
           f"v_and_b32 {v(vt[0])}, 31, {v(vt[0])}",
           f"v_lshl_add_u32 {v(vt[0])}, {v(vt[0])}, 3, {s(sT2)}",
           "s_mov_b32 exec_hi, 0",
           f"global_store_dwordx2 {v(vt[0])}, {v(vt[2],2)}, s[4:5] sc0 sc1",
           "s_mov_b32 exec_hi, -1"]: A(x)
        for tl, (wf, hf) in enumerate(TILES):
            A(f"ds_write_b64 {v(vLx[hf])}, {v(z2p[tl],2)} offset:{wf*32}")
    def hookZ(st):
        if st == 7: z2_part1()
    consumer_full(A, NSTZ, readsZ, mfmasZ, hook=hookZ)
    A("s_barrier")
    ST.stamp()
    vLa = [vH[0][0], vH[1][0]]; vL4 = vH[0][1]
    for hf in range(2):
        A(f"v_mul_u32_u24 {v(vLa[hf])}, 224, {v(vtt[hf])}")
        A(f"v_lshl_add_u32 {v(vLa[hf])}, {v(vq)}, 3, {v(vLa[hf])}")
        A(f"v_add_u32 {v(vLa[hf])}, {ZT}, {v(vLa[hf])}")
    A(f"v_add_u32 {v(vL4)}, 96, {v(vLa[0])}")
    A(f"s_lshl_b32 {s(sT0)}, {s(sFH)}, 7")
    for hf in range(2): A(f"v_add_u32 {v(vLa[hf])}, {s(sT0)}, {v(vLa[hf])}")
    gt = FW[0][0][0]
    for grp in ([0, 1, 2, 3], [4, 5, 6]):
        for x in gelu_pk_multi([acc[1][tl] for tl in grp], gt, vC): A(x)
        for tl in grp:
            wf, hf = TILES[tl]; ac = acc[1][tl]
            for h in range(2): A(f"v_cvt_pk_bf16_f32 {v(ac+h)}, {v(ac+2*h)}, {v(ac+2*h+1)}")
            if wf < 3: A(f"ds_write_b64 {v(vLa[hf])}, {v(ac,2)} offset:{wf*32}")
            else: A(f"ds_write_b64 {v(vL4)}, {v(ac,2)}")
    nvmax[0] = max(nvmax[0], R.hi)
    R = RegAlloc(5)
    vA = R.alloc(); vB = [R.alloc() for _ in range(2)]
    cA = R.alloc(); cB = [R.alloc() for _ in range(2)]
    vtb = R.alloc(8, 4); vt = [vtb + k for k in range(8)]
    accg = [[R.alloc(4) for _ in range(2)] for _ in range(7)]
    FA = [[R.alloc(4) for _ in range(7)] for _ in range(2)]
    FB = [[R.alloc(4) for _ in range(2)] for _ in range(2)]
    vb = R.alloc(); vtw = R.alloc()
    vxw = R.alloc(); vxr = R.alloc(); vz1 = R.alloc(); vz = R.alloc(4); vrb = R.alloc()
    A("s_waitcnt lgkmcnt(0)")
    A(f"v_lshl_add_u32 {v(vtw)}, {s(sW)}, 4, {v(vi)}")
    A(f"v_lshl_add_u32 {v(vt[0])}, {s(sRB)}, 6, {v(vtw)}")
    A(f"v_lshlrev_b32 {v(vt[0])}, 1, {v(vt[0])}")
    A(f"global_load_ushort {v(vb)}, {v(vt[0])}, s[36:37]")
    A(f"s_and_b32 {s(sT0)}, {s(sW)}, 1")
    A(f"s_lshl_b32 {s(sT0)}, {s(sT0)}, 2")
    A(f"v_add_u32 {v(vt[4])}, {s(sT0)}, {v(vq)}")
    A(f"v_and_b32 {v(vt[2])}, 7, {v(vi)}")
    A(f"v_xor_b32 {v(vt[1])}, {v(vt[4])}, {v(vt[2])}")
    A(f"v_lshlrev_b32 {v(vt[1])}, 4, {v(vt[1])}")
    A(f"v_lshl_add_u32 {v(vA)}, {v(vi)}, 7, {v(vt[1])}")
    A(f"v_add_u32 {v(vt[1])}, {B_OFF}, {v(vt[1])}")
    A(f"v_lshl_add_u32 {v(vB[0])}, {v(vtw)}, 7, {v(vt[1])}")
    A(f"v_xor_b32 {v(vt[3])}, 16, {v(vtw)}")
    A(f"v_lshl_add_u32 {v(vB[1])}, {v(vt[3])}, 7, {v(vt[1])}")
    A(f"v_and_b32 {v(vt[0])}, 63, v0")
    A(f"s_mul_i32 {s(sT0)}, {s(sW)}, 7168")
    A(f"s_add_u32 {s(sT0)}, {s(sT0)}, {GX}")
    A(f"v_lshl_add_u32 {v(vxw)}, {v(vt[0])}, 4, {s(sT0)}")
    A(f"s_xor_b32 {s(sT1)}, {s(sW)}, 1")
    A(f"s_mul_i32 {s(sT1)}, {s(sT1)}, 7168")
    A(f"s_add_u32 {s(sT1)}, {s(sT1)}, {GX}")
    A(f"v_lshl_add_u32 {v(vxr)}, {v(vt[0])}, 4, {s(sT1)}")
    A(f"v_mul_u32_u24 {v(vz1)}, 224, {v(vtw)}")
    A(f"v_lshl_add_u32 {v(vz1)}, {v(vq)}, 3, {v(vz1)}")
    A(f"v_add_u32 {v(vz1)}, {ZT}, {v(vz1)}")
    for j in range(4):
        A(f"v_add_u32 {v(vt[4])}, {64*j}, {v(vt[0])}")
        div14(A, vt[5], vt[6], vt[4], vt[7])
        A(f"v_mul_u32_u24 {v(vt[5])}, 1792, {v(vt[5])}")
        A(f"v_lshl_add_u32 {v(vz+j)}, {v(vt[6])}, 4, {v(vt[5])}")
    A(f"s_lshl2_add_u32 {s(sT0)}, {s(sRB)}, {s(sW)}")
    A(f"s_mul_i32 {s(sT0)}, {s(sT0)}, {16*1792}")
    A(f"s_mul_i32 {s(sT1)}, {s(sCC)}, 224")
    A(f"s_add_u32 {s(sT0)}, {s(sT0)}, {s(sT1)}")
    A(f"s_add_u32 {s(sT0)}, {s(sT0)}, {WS_P0}")
    for j in range(4): A(f"v_add_u32 {v(vz+j)}, {s(sT0)}, {v(vz+j)}")
    A(f"s_mul_i32 {s(sT0)}, {s(sW)}, {16*224}")
    A(f"s_add_u32 {s(sT0)}, {s(sT0)}, {ZT}")
    A(f"v_lshl_add_u32 {v(vrb)}, {v(vt[0])}, 4, {s(sT0)}")
    A(f"s_mov_b32 {s(sSlot)}, 0")
    A(f"s_mov_b32 {s(sI)}, 0")
    def rdsG(buf, a_, b_):
        return [f"ds_read_b128 {v(FB[buf][nb],4)}, {v(b_[nb])}" for nb in range(2)] + \
               [f"ds_read_b128 {v(FA[buf][fa],4)}, {v(a_)} offset:{fa*2048}" for fa in range(7)]
    def mmsG(buf, first=False):
        o = []
        for fa in range(7):
            for nb in range(2):
                c = "0" if first else v(accg[fa][nb], 4)
                o.append(f"v_mfma_f32_16x16x32_bf16 {v(accg[fa][nb],4)}, {v(FA[buf][fa],4)}, {v(FB[buf][nb],4)}, {c}")
        return o
    def adv():
        A(f"s_add_u32 {s(sSlot)}, {s(sSlot)}, {STAGE}")
        A(f"s_cmp_ge_u32 {s(sSlot)}, {RING}")
        A(f"s_cselect_b32 {s(sSlot)}, 0, {s(sSlot)}")
        A(f"v_add_u32 {v(cA)}, {s(sSlot)}, {v(vA)}")
        for nb in range(2): A(f"v_add_u32 {v(cB[nb])}, {s(sSlot)}, {v(vB[nb])}")
    ST.stamp()
    A("s_barrier")
    ST.stamp()
    for r in rdsG(0, vA, vB): A(r)
    adv()
    A("s_waitcnt lgkmcnt(0)")
    A("s_barrier")
    for x in interleave2(mmsG(0, True), rdsG(1, cA, cB)): A(x)
    loop = f"{name}_gloop"
    A.label(loop)
    for buf in (1, 0):
        adv()
        A("s_waitcnt lgkmcnt(0)")
        A("s_barrier")
        for x in interleave2(mmsG(buf), rdsG(buf ^ 1, cA, cB)): A(x)
    A(f"s_add_u32 {s(sI)}, {s(sI)}, 1")
    A(f"s_cmp_lt_u32 {s(sI)}, 15")
    A(f"s_cbranch_scc1 {loop}")
    A("s_waitcnt lgkmcnt(0)")
    for x in mmsG(1): A(x)
    ST.stamp()
    for fa in range(7): A(f"ds_write_b128 {v(vxw)}, {v(accg[fa][1],4)} offset:{fa*1024}")
    A("s_waitcnt vmcnt(0) lgkmcnt(0)")
    A(f"v_lshlrev_b32 {v(vb)}, 16, {v(vb)}")
    A("s_barrier")
    for fa in range(7): A(f"ds_read_b128 {v(FA[0][fa],4)}, {v(vxr)} offset:{fa*1024}")
    zr = [FA[1][fa] for fa in range(7)]
    for fa in range(7): A(f"ds_read_b64 {v(zr[fa],2)}, {v(vz1)} offset:{fa*32}")
    A(f"v_mov_b32 {v(FB[1][0])}, {v(vb)}")
    A(f"v_mov_b32 {v(FB[1][0]+1)}, {v(vb)}")
    A("s_mov_b32 s33, 0xffff0000")
    for fa in range(7):
        ac = accg[fa][0]; pr = FA[0][fa]
        A(f"s_waitcnt lgkmcnt({13 - fa})")
        for h in (0, 2): A(pk("add", ac + h, v(ac + h, 2), v(pr + h, 2)))
        for h in (0, 2): A(pk("add", ac + h, v(ac + h, 2), v(FB[1][0], 2)))
    for fa in range(7):
        ac = accg[fa][0]; pr = FA[0][fa]; z = zr[fa]
        A(f"s_waitcnt lgkmcnt({6 - fa})")
        for h in range(2):
            A(f"v_lshlrev_b32 {v(z+2)}, 16, {v(z+h)}")
            A(f"v_and_b32 {v(z+3)}, s33, {v(z+h)}")
            A(pk("mul", ac + 2*h, v(ac + 2*h, 2), v(z + 2, 2)))
            A(f"v_cvt_pk_bf16_f32 {v(pr+h)}, {v(ac+2*h)}, {v(ac+2*h+1)}")
        A(f"ds_write_b64 {v(vz1)}, {v(pr,2)} offset:{fa*32}")
    A("s_waitcnt lgkmcnt(0)")
    ob = [FA[1][j] for j in range(4)]
    for j in range(4): A(f"ds_read_b128 {v(ob[j],4)}, {v(vrb)} offset:{j*1024}")
    for j in range(3):
        A(f"s_waitcnt lgkmcnt({3-j})")
        A(f"global_store_dwordx4 {v(vz+j)}, {v(ob[j],4)}, s[4:5] sc0 sc1")
    A("s_waitcnt lgkmcnt(0)")
    A("s_mov_b32 exec_hi, 0")
    A(f"global_store_dwordx4 {v(vz+3)}, {v(ob[3],4)}, s[4:5] sc0 sc1")
    A("s_mov_b32 exec_hi, -1")
    nvmax[0] = max(nvmax[0], R.hi)
    R = RegAlloc(5)
    vtw2 = R.alloc()
    vtb = R.alloc(8, 4); vt = [vtb + k for k in range(8)]
    vW = [[R.alloc() for _ in range(4)] for _ in range(2)]
    vP = [[R.alloc() for _ in range(2)] for _ in range(2)]
    acco = [[R.alloc(4) for _ in range(2)] for _ in range(4)]
    FWo = [[[R.alloc(4) for _ in range(4)] for _ in range(2)] for _ in range(2)]
    FP = [[[R.alloc(4) for _ in range(2)] for _ in range(2)] for _ in range(2)]
    gb = [R.alloc(4) for _ in range(4)]
    vcnt = R.alloc(2)
    A(f"s_lshl_b32 {s(sT0)}, {s(sRB)}, 7")
    A(f"s_add_u32 {s(sT0)}, {s(sT0)}, {WS_CNT + 1024}")
    A("s_waitcnt vmcnt(0)")
    ST.stamp()
    A(f"v_mov_b32 {v(vcnt)}, {s(sT0)}")
    A(f"v_mov_b32 {v(vcnt+1)}, 1")
    A("s_mov_b64 exec, 1")
    A(f"global_atomic_add {v(vcnt)}, {v(vcnt+1)}, s[4:5] sc1")
    A("s_mov_b64 exec, -1")
    A(f"v_lshl_add_u32 {v(vtw2)}, {s(sW)}, 4, {v(vi)}")
    A(f"s_and_b32 {s(sT2)}, {s(sW)}, 1")
    A(f"v_lshrrev_b32 {v(vt[0])}, 2, {v(vi)}")
    A(f"v_lshl_add_u32 {v(vt[0])}, {v(vq)}, 3, {v(vt[0])}")
    A(f"v_lshlrev_b32 {v(vt[0])}, 7, {v(vt[0])}")
    A(f"v_and_b32 {v(vt[1])}, 1, {v(vi)}")
    A(f"v_lshl_add_u32 {v(vt[0])}, {v(vt[1])}, 3, {v(vt[0])}")
    A(f"s_lshl_b32 {s(sT0)}, {s(sT2)}, 13")
    A(f"v_add_u32 {v(vt[0])}, {s(sT0)}, {v(vt[0])}")
    A(f"v_bfe_u32 {v(vt[1])}, {v(vi)}, 3, 1")
    A(f"v_and_b32 {v(vt[2])}, 1, {v(vq)}")
    A(f"v_lshl_or_b32 {v(vt[1])}, {v(vt[2])}, 1, {v(vt[1])}")
    A(f"v_lshlrev_b32 {v(vt[1])}, 1, {v(vt[1])}")
    A(f"v_bfe_u32 {v(vt[2])}, {v(vi)}, 1, 1")
    A(f"v_xor_b32 {v(vt[1])}, {v(vt[1])}, {v(vt[2])}")
    for dt in range(4):
        A(f"v_xor_b32 {v(vt[3])}, {2*dt}, {v(vt[1])}")
        A(f"v_lshl_add_u32 {v(vW[0][dt])}, {v(vt[3])}, 4, {v(vt[0])}")
        A(f"v_add_u32 {v(vW[1][dt])}, 65536, {v(vW[0][dt])}")
    A(f"v_and_b32 {v(vt[0])}, 7, {v(vi)}")
    A(f"v_xor_b32 {v(vt[1])}, {v(vq)}, {v(vt[0])}")
    A(f"v_lshlrev_b32 {v(vt[1])}, 4, {v(vt[1])}")
    A(f"s_add_u32 {s(sT0)}, {s(sT0)}, {OP}")
    A(f"v_add_u32 {v(vt[1])}, {s(sT0)}, {v(vt[1])}")
    A(f"v_lshl_add_u32 {v(vP[0][0])}, {v(vtw2)}, 7, {v(vt[1])}")
    A(f"v_xor_b32 {v(vP[1][0])}, 2048, {v(vP[0][0])}")
    for tl in range(2): A(f"v_xor_b32 {v(vP[tl][1])}, 64, {v(vP[tl][0])}")
    A(f"s_lshl_b32 {s(sT0)}, {s(sCC)}, 8")
    A(f"s_add_u32 {s(sT0)}, {s(sT0)}, {WS_MOD + 2560*4}")
    A(f"v_lshl_add_u32 {v(vt[0])}, {v(vq)}, 4, {s(sT0)}")
    for dt in range(4): A(f"global_load_dwordx4 {v(gb[dt],4)}, {v(vt[0])}, s[4:5] offset:{dt*64}")
    assert (OP + 2048) % 4096 == 2048 and OP % 4096 == 0
    def readsO(st, buf):
        g = st // 4; so = (st % 4) * 16384; po = (st % NSO) * PSLOT
        o = []
        for ks in range(2):
            for tl in range(2): o.append(f"ds_read_b128 {v(FP[buf][ks][tl],4)}, {v(vP[tl][ks])} offset:{po}")
            for dt in range(4):
                for p in range(2):
                    o.append(f"ds_read_b64_tr_b16 {v(FWo[buf][ks][dt]+2*p,2)}, {v(vW[g][dt])} offset:{so + ks*4096 + p*512}")
        return o
    def mfmasO(st, buf):
        o = []
        for ks in range(2):
            for dt in range(4):
                for tl in range(2):
                    c = "0" if st == 0 and ks == 0 else v(acco[dt][tl], 4)
                    o.append(f"v_mfma_f32_16x16x32_bf16 {v(acco[dt][tl],4)}, {v(FWo[buf][ks][dt],4)}, {v(FP[buf][ks][tl],4)}, {c}")
        return o
    XT = OP + ((NSTO - 3) % NSO) * PSLOT
    E_OFF = 0
    consumer_full(A, NSTO, readsO, mfmasO)
    ST.stamp()
    A(f"v_and_b32 {v(vt[0])}, 63, v0")
    A(f"s_lshl_b32 {s(sT0)}, {s(sW)}, 12")
    A(f"s_add_u32 {s(sT0)}, {s(sT0)}, {E_OFF}")
    A(f"v_lshl_add_u32 {v(vt[1])}, {v(vt[0])}, 4, {s(sT0)}")
    A(f"v_xor_b32 {v(vt[2])}, 4096, {v(vt[1])}")
    for dt in range(4): A(f"ds_write_b128 {v(vt[1])}, {v(acco[dt][1],4)} offset:{dt*1024}")
    va = [vt[4], vt[5], vt[6], vt[7]]
    A(f"v_and_b32 {v(vt[3])}, 7, {v(vi)}")
    A(f"v_lshrrev_b32 {v(vW[0][0])}, 1, {v(vq)}")
    A(f"v_xor_b32 {v(vt[3])}, {v(vt[3])}, {v(vW[0][0])}")
    A(f"v_and_b32 {v(vW[0][0])}, 1, {v(vq)}")
    A(f"v_lshlrev_b32 {v(vW[0][0])}, 3, {v(vW[0][0])}")
    A(f"v_lshl_add_u32 {v(vW[0][0])}, {v(vtw2)}, 7, {v(vW[0][0])}")
    A(f"v_add_u32 {v(vW[0][0])}, {XT}, {v(vW[0][0])}")
    for dt in range(4):
        A(f"v_xor_b32 {v(vW[0][1])}, {2*dt}, {v(vt[3])}")
        A(f"v_lshl_add_u32 {v(va[dt])}, {v(vW[0][1])}, 4, {v(vW[0][0])}")
    vrb2 = vW[1][0]; vgo = vW[1][1]
    A(f"v_lshrrev_b32 {v(vW[1][2])}, 3, {v(vt[0])}")
    A(f"v_and_b32 {v(vW[1][3])}, 7, {v(vt[0])}")
    A(f"v_xor_b32 {v(vrb2)}, {v(vW[1][2])}, {v(vW[1][3])}")
    A(f"v_lshlrev_b32 {v(vrb2)}, 4, {v(vrb2)}")
    A(f"v_lshl_add_u32 {v(vrb2)}, {v(vW[1][2])}, 7, {v(vrb2)}")
    A(f"s_lshl_b32 {s(sT0)}, {s(sW)}, 11")
    A(f"s_add_u32 {s(sT0)}, {s(sT0)}, {XT}")
    A(f"v_add_u32 {v(vrb2)}, {s(sT0)}, {v(vrb2)}")
    A(f"v_lshlrev_b32 {v(vgo)}, 10, {v(vW[1][2])}")
    A(f"v_lshl_add_u32 {v(vgo)}, {v(vW[1][3])}, 4, {v(vgo)}")
    A(f"s_lshl2_add_u32 {s(sT0)}, {s(sRB)}, {s(sW)}")
    A(f"s_lshl_b32 {s(sT0)}, {s(sT0)}, 14")
    A(f"s_lshl_b32 {s(sT1)}, {s(sCC)}, 7")
    A(f"s_add_u32 {s(sT0)}, {s(sT0)}, {s(sT1)}")
    A(f"v_add_u32 {v(vgo)}, {s(sT0)}, {v(vgo)}")
    A("s_waitcnt vmcnt(0) lgkmcnt(0)")
    A("s_barrier")
    for dt in range(4): A(f"ds_read_b128 {v(FWo[0][0][dt],4)}, {v(vt[2])} offset:{dt*1024}")
    xa = [FWo[0][1][dt] for dt in range(4)]
    for dt in range(4): A(f"ds_read_b64 {v(xa[dt],2)}, {v(va[dt])}")
    A(f"s_mov_b32 {s(sT0)}, 0xffff0000")
    for dt in range(4):
        ac = acco[dt][0]; pr = FWo[0][0][dt]; x = xa[dt]
        A(f"s_waitcnt lgkmcnt({7-dt})")
        for h in (0, 2): A(pk("add", ac + h, v(ac + h, 2), v(pr + h, 2)))
        A(f"s_waitcnt lgkmcnt({3-dt})")
        for h in range(2):
            A(f"v_lshlrev_b32 {v(x+2)}, 16, {v(x+h)}")
            A(f"v_and_b32 {v(x+3)}, {s(sT0)}, {v(x+h)}")
            A(pk("fma", pr, v(ac + 2*h, 2), v(gb[dt] + 2*h, 2), v(x + 2, 2)))
            A(f"v_cvt_pk_bf16_f32 {v(ac+h)}, {v(pr)}, {v(pr+1)}")
        A(f"ds_write_b64 {v(va[dt])}, {v(ac,2)}")
    A("s_waitcnt lgkmcnt(0)")
    ob = [FP[0][0][0], FP[0][0][1]]
    for u in range(2): A(f"ds_read_b128 {v(ob[u],4)}, {v(vrb2)} offset:{u*1024}")
    A("s_waitcnt lgkmcnt(1)")
    A(f"global_store_dwordx4 {v(vgo)}, {v(ob[0],4)}, s[38:39]")
    A(f"v_add_u32 {v(vgo)}, 8192, {v(vgo)}")
    A("s_waitcnt lgkmcnt(0)")
    A(f"global_store_dwordx4 {v(vgo)}, {v(ob[1],4)}, s[38:39]")
    if stamps:
        ST.stamp(); ST.flush(4, vt[4])
    A("s_endpgm")
    nvmax[0] = max(nvmax[0], R.hi)
    A.label(f"{name}_loader")
    STL = Stamps(A, on=stamps, kidx=2, base=70)
    R = RegAlloc(5)
    voW = [R.alloc() for _ in range(4)]; voH = [R.alloc() for _ in range(2)]
    vl = R.alloc(); t0 = R.alloc(); t1 = R.alloc(); t2 = R.alloc(); t3 = R.alloc()
    vtb = R.alloc(8, 4); vt = [vtb + k for k in range(8)]
    za = [R.alloc(4) for _ in range(4)]
    z2p = [R.alloc(2) for _ in range(7)]
    st1 = [R.alloc(2) for _ in range(2)]
    pol = [R.alloc(4) for _ in range(4)]
    vrow = [R.alloc() for _ in range(2)]; vLa = [R.alloc() for _ in range(2)]
    vo = [R.alloc() for _ in range(6)]
    vcn = R.alloc(2)
    sLw, sWk, sHk, sLW, sLH = 29, 30, 31, 32, 33
    A("s_mov_b32 s10, %d" % (512 * WROW)); A("s_mov_b32 s11, 0x20000")
    A("s_mov_b32 s6, %d" % (32 * MB)); A("s_mov_b32 s7, 0x20000")
    A(f"s_sub_u32 {s(sLw)}, {s(sW)}, 4")
    A(f"v_and_b32 {v(vl)}, 63, v0")
    div14(A, t0, t1, vl, t2)
    A(f"v_mul_u32_u24 {v(t0)}, {WROW}, {v(t0)}")
    A(f"v_lshl_add_u32 {v(t0)}, {v(t1)}, 4, {v(t0)}")
    A(f"s_mul_i32 {s(sT0)}, {s(sLw)}, {16*WROW}")
    A(f"v_add_u32 {v(voW[0])}, {s(sT0)}, {v(t0)}")
    for g in range(1, 4): A(f"v_add_u32 {v(voW[g])}, {g*(4*WROW - GS)}, {v(voW[0])}")
    A(f"v_lshrrev_b32 {v(t0)}, 3, {v(vl)}")
    A(f"v_and_b32 {v(t1)}, 7, {v(vl)}")
    A(f"v_xor_b32 {v(t1)}, {v(t1)}, {v(t0)}")
    A(f"v_lshlrev_b32 {v(t1)}, 4, {v(t1)}")
    A(f"v_lshl_add_u32 {v(t0)}, {v(t0)}, 10, {v(t1)}")
    A(f"s_lshl_b32 {s(sT0)}, {s(sLw)}, 14")
    A(f"v_add_u32 {v(voH[0])}, {s(sT0)}, {v(t0)}")
    A(f"v_add_u32 {v(voH[1])}, {8192-1024}, {v(voH[0])}")
    A(f"s_mul_i32 {s(sWk)}, {s(sCC)}, 224")
    A(f"s_lshl_b32 {s(sHk)}, {s(sRB)}, 16")
    A(f"s_add_u32 {s(sHk)}, {s(sHk)}, {WS_H2}")
    A(f"s_mul_i32 {s(sLW)}, {s(sLw)}, {4*GS}")
    A(f"s_lshl_b32 {s(sLH)}, {s(sLw)}, 11")
    A("s_waitcnt lgkmcnt(0)")
    def issueZ(st):
        half, kc = st >> 3, st & 7; slot = st % NSZ
        A(f"s_add_u32 m0, {s(sLW)}, {W_OFF + slot*SLOT}")
        A(f"s_add_u32 {s(sT0)}, {s(sWk)}, {kc*64*WROW + (1792 if half == 0 else 0)}")
        A("s_mov_b32 exec_hi, 0x00ffffff")
        for g in range(4):
            A(f"buffer_load_dwordx4 {v(voW[g])}, s[8:11], {s(sT0)} offen offset:{g*GS} lds")
        A("s_mov_b32 exec_hi, -1")
        if half == 0:
            A(f"s_add_u32 m0, {s(sLH)}, {kc*8192}")
            A(f"s_add_u32 {s(sT0)}, {s(sHk)}, {kc*128}")
            for j in range(2):
                A(f"buffer_load_dwordx4 {v(voH[j])}, s[4:7], {s(sT0)} offen offset:{j*1024} lds")
    for st in range(NSZ): issueZ(st)
    A(f"v_lshrrev_b32 {v(t0)}, 3, {v(vl)}")
    A(f"v_lshl_add_u32 {v(t0)}, {v(t0)}, 12, {v(t1)}")
    sL1, sL2, sK1 = 40, 41, 42
    SR1, SR2 = 44, 48
    A(f"s_lshl_b32 {s(sT0)}, {s(sLw)}, 3")
    A(f"s_mov_b32 {s(sT1)}, 0x060c0600")
    A(f"s_lshr_b32 {s(sT1)}, {s(sT1)}, {s(sT0)}")
    A(f"s_and_b32 {s(sT1)}, {s(sT1)}, 0xff")
    A(f"s_mov_b32 {s(sT2)}, 0x03000903")
    A(f"s_lshr_b32 {s(sT2)}, {s(sT2)}, {s(sT0)}")
    A(f"s_and_b32 {s(sT2)}, {s(sT2)}, 0xff")
    STEP = 8 * 4096 - 1024
    A(f"s_lshl_b32 {s(sT0)}, {s(sT1)}, 15")
    A(f"v_add_u32 {v(vo[0])}, {s(sT0)}, {v(t0)}")
    A(f"s_lshl_b32 {s(sT0)}, {s(sT2)}, 15")
    A(f"v_add_u32 {v(vo[3])}, {s(sT0)}, {v(t0)}")
    for k in (1, 2):
        A(f"v_add_u32 {v(vo[k])}, {k*STEP}, {v(vo[0])}")
        A(f"v_add_u32 {v(vo[3+k])}, {k*STEP}, {v(vo[3])}")
    A(f"s_lshl_b32 {s(sL1)}, {s(sT1)}, 10")
    A(f"s_lshl_b32 {s(sL2)}, {s(sT2)}, 10")
    A(f"s_cmp_eq_u32 {s(sLw)}, 3")
    A(f"s_cselect_b32 {s(sT0)}, {B_OFF}, 0")
    A(f"s_add_u32 {s(sL1)}, {s(sL1)}, {s(sT0)}")
    A(f"s_cmp_ge_u32 {s(sLw)}, 2")
    A(f"s_cselect_b32 {s(sT0)}, {B_OFF}, 0")
    A(f"s_add_u32 {s(sL2)}, {s(sL2)}, {s(sT0)}")
    A(f"s_mul_i32 {s(sT0)}, {s(sCC)}, {112*4096}")
    A(f"s_add_u32 {s(sT0)}, {s(sT0)}, {WS_Z2T}")
    A(f"s_add_u32 s52, s4, {s(sT0)}")
    A(f"s_addc_u32 s53, s5, 0")
    A(f"s_lshl_b32 {s(sT0)}, {s(sRB)}, 18")
    A(f"s_add_u32 s54, s12, {s(sT0)}")
    A(f"s_addc_u32 s55, s13, 0")
    A(f"s_cmp_eq_u32 {s(sLw)}, 3")
    A(f"s_cselect_b32 {s(SR1)}, s54, s52")
    A(f"s_cselect_b32 {s(SR1+1)}, s55, s53")
    A(f"s_mov_b32 {s(SR1+2)}, {112*4096}")
    A(f"s_mov_b32 {s(SR1+3)}, 0x20000")
    A(f"s_cmp_ge_u32 {s(sLw)}, 2")
    A(f"s_cselect_b32 {s(SR2)}, s54, s52")
    A(f"s_cselect_b32 {s(SR2+1)}, s55, s53")
    A(f"s_mov_b32 {s(SR2+2)}, {112*4096}")
    A(f"s_mov_b32 {s(SR2+3)}, 0x20000")
    cntZ = lambda st: 6 if st < 8 else 4
    issued = NSZ
    for i in range(NSTZ):
        out = sum(cntZ(j) for j in range(i + 1, issued))
        A(f"s_waitcnt vmcnt({out})")
        A("s_barrier")
        if i >= 1 and issued < NSTZ:
            issueZ(issued); issued += 1
    A(f"s_lshl1_add_u32 {s(sT1)}, {s(sRB)}, {s(sTH)}")
    A(f"s_lshl_b32 {s(sT1)}, {s(sT1)}, 12")
    A(f"s_add_u32 {s(sT1)}, {s(sT1)}, {WS_STAT}")
    for hf in range(2):
        A(f"v_and_b32 {v(vrow[hf])}, 31, {v(vtt[hf])}")
        A(f"v_lshl_add_u32 {v(vrow[hf])}, {v(vrow[hf])}, 3, {s(sT1)}")
        A(f"v_lshl_add_u32 {v(vrow[hf])}, {v(vq)}, 10, {v(vrow[hf])}")
    A(f"s_mul_i32 {s(sT0)}, {s(sLw)}, {XS}")
    A(f"s_add_u32 {s(sT0)}, {s(sT0)}, {X_OFF}")
    for hf in range(2):
        A(f"v_and_b32 {v(vLa[hf])}, 31, {v(vtt[hf])}")
        A(f"v_mul_u32_u24 {v(vLa[hf])}, 144, {v(vLa[hf])}")
        A(f"v_lshl_add_u32 {v(vLa[hf])}, {v(vq)}, 3, {v(vLa[hf])}")
        A(f"v_add_u32 {v(vLa[hf])}, {s(sT0)}, {v(vLa[hf])}")
    vtr = voH[0]; vgz = voH[1]; vtr3 = voW[0]; vgz3 = voW[1]
    A(f"v_lshrrev_b32 {v(t0)}, 2, {v(vi)}")
    A(f"v_lshl_add_u32 {v(t0)}, {v(vq)}, 3, {v(t0)}")
    A(f"v_mul_u32_u24 {v(vtr)}, 144, {v(t0)}")
    A(f"v_and_b32 {v(t1)}, 3, {v(vi)}")
    A(f"v_lshl_add_u32 {v(vtr)}, {v(t1)}, 3, {v(vtr)}")
    A(f"v_add_u32 {v(vtr)}, {s(sT0)}, {v(vtr)}")
    A(f"s_mul_i32 {s(sT1)}, {s(sFH)}, {16*144}")
    A(f"s_add_u32 {s(sT1)}, {s(sT1)}, 96")
    A(f"v_add_u32 {v(vtr3)}, {s(sT1)}, {v(vtr)}")
    A(f"v_lshlrev_b32 {v(vgz)}, 12, {v(vi)}")
    A(f"v_lshl_add_u32 {v(vgz)}, {v(vq)}, 4, {v(vgz)}")
    A(f"s_mul_i32 {s(sT1)}, {s(sCC)}, {112*4096}")
    A(f"s_lshl_b32 {s(sT2)}, {s(sRB)}, 7")
    A(f"s_add_u32 {s(sT1)}, {s(sT1)}, {s(sT2)}")
    A(f"s_lshl_b32 {s(sT2)}, {s(sTH)}, 6")
    A(f"s_add_u32 {s(sT1)}, {s(sT1)}, {s(sT2)}")
    A(f"s_add_u32 {s(sT1)}, {s(sT1)}, {WS_Z2T}")
    A(f"s_lshl_b32 {s(sT2)}, {s(sFH)}, 5")
    A(f"s_add_u32 {s(sT2)}, {s(sT2)}, {48*4096}")
    A(f"s_add_u32 {s(sT2)}, {s(sT2)}, {s(sT1)}")
    A(f"v_add_u32 {v(vgz3)}, {s(sT2)}, {v(vgz)}")
    A(f"s_lshl_b32 {s(sT2)}, {s(sFH)}, 18")
    A(f"s_add_u32 {s(sT1)}, {s(sT1)}, {s(sT2)}")
    A(f"v_add_u32 {v(vgz)}, {s(sT1)}, {v(vgz)}")
    for tl, (wf, hf) in enumerate(TILES):
        A(f"ds_read_b64 {v(z2p[tl],2)}, {v(vLa[hf])} offset:{wf*32}")
    A("s_barrier")
    lskip = f"{name}_nob"
    A(f"s_cmp_lt_u32 {s(sLw)}, 2")
    A(f"s_cbranch_scc1 {lskip}")
    A(f"s_mov_b32 {s(sK1)}, 0")
    for st in range(NSG):
        A(f"s_add_u32 m0, {s(sL2)}, {st*STAGE}")
        if st: A(f"s_add_u32 {s(sK1)}, {s(sK1)}, 128")
        for k in range(3): A(f"buffer_load_dwordx4 {v(vo[3+k])}, {s(SR2,4)}, {s(sK1)} offen offset:{k*1024} lds")
    A.label(lskip)
    if stamps: A("s_mov_b32 s20, 0"); STL.n = 0; STL.stamp()
    A(f"s_mov_b32 {s(sK)}, 0")
    A.label(f"{name}_poll")
    for hf in range(2):
        for u in range(4):
            A(f"global_load_dwordx2 {v(pol[hf*2+(u>>1)]+2*(u&1),2)}, {v(vrow[hf])}, s[4:5] offset:{u*256} sc1")
    A("s_waitcnt vmcnt(0)")
    A(f"v_max3_u32 {v(vt[0])}, {v(pol[0])}, {v(pol[0]+1)}, {v(pol[0]+2)}")
    rest = [pol[0]+3] + [pol[b_]+r for b_ in range(1, 4) for r in range(4)]
    for k in range(0, len(rest) - 1, 2): A(f"v_max3_u32 {v(vt[0])}, {v(vt[0])}, {v(rest[k])}, {v(rest[k+1])}")
    A(f"v_max_u32 {v(vt[0])}, {v(vt[0])}, {v(rest[-1])}")
    A(f"v_cmp_eq_u32 vcc, -1, {v(vt[0])}")
    A(f"s_add_u32 {s(sK)}, {s(sK)}, 1")
    A(f"s_cmp_eq_u64 vcc, 0")
    A(f"s_cbranch_scc1 {name}_polled")
    A("s_sleep 2")
    A(f"s_cmp_lt_u32 {s(sK)}, {SPIN}")
    A(f"s_cbranch_scc1 {name}_poll")
    A.label(f"{name}_polled")
    mean = [vt[0], vt[1]]; rstd = [vt[2], vt[3]]
    for hf in range(2):
        p0, p1 = pol[hf*2], pol[hf*2+1]
        A(pk("add", p0, v(p0, 2), v(p0+2, 2)))
        A(pk("add", p1, v(p1, 2), v(p1+2, 2)))
        A(pk("add", p0, v(p0, 2), v(p1, 2)))
        A(f"v_mov_b32 {v(mean[hf])}, {v(p0)}")
        A(f"v_mov_b32 {v(rstd[hf])}, {v(p0+1)}")
    xor16_32_sum(A, mean + rstd, vt[6])
    for hf in range(2):
        A(f"v_mul_f32 {v(mean[hf])}, {fhex(1.0/896)}, {v(mean[hf])}")
        A(f"v_mul_f32 {v(rstd[hf])}, {fhex(1.0/896)}, {v(rstd[hf])}")
        A(f"v_fma_f32 {v(rstd[hf])}, -{v(mean[hf])}, {v(mean[hf])}, {v(rstd[hf])}")
        A(f"v_max_f32 {v(rstd[hf])}, 0, {v(rstd[hf])}")
        A(f"v_add_f32 {v(rstd[hf])}, 0x3727c5ac, {v(rstd[hf])}")
        A(f"v_rsq_f32 {v(rstd[hf])}, {v(rstd[hf])}")
        A(f"v_mul_f32 {v(mean[hf])}, {v(mean[hf])}, {v(rstd[hf])}")
    for hf in range(2):
        A(f"v_mov_b32 {v(st1[hf])}, {v(rstd[hf])}")
        A(f"v_sub_f32 {v(st1[hf]+1)}, 0, {v(mean[hf])}")
    A(f"s_mov_b32 {s(sT0)}, 0xffff0000")
    A("s_waitcnt lgkmcnt(0)")
    for tl, (wf, hf) in enumerate(TILES):
        z = z2p[tl]
        for h in range(2):
            A(f"v_lshlrev_b32 {v(vt[4])}, 16, {v(z+h)}")
            A(f"v_and_b32 {v(vt[5])}, {s(sT0)}, {v(z+h)}")
            A(pk("fma", vt[4], v(vt[4], 2), v(st1[hf], 2), v(st1[hf], 2), "op_sel:[0,0,1] op_sel_hi:[1,0,1]"))
            A(f"v_cvt_pk_bf16_f32 {v(z+h)}, {v(vt[4])}, {v(vt[5])}")
        A(f"ds_write_b64 {v(vLa[hf])}, {v(z,2)} offset:{wf*32}")
    A("s_waitcnt lgkmcnt(0)")
    for wf in range(3):
        for p in range(2): A(f"ds_read_b64_tr_b16 {v(za[wf]+2*p,2)}, {v(vtr)} offset:{wf*32 + 4*p*144}")
    for p in range(2): A(f"ds_read_b64_tr_b16 {v(za[3]+2*p,2)}, {v(vtr3)} offset:{4*p*144}")
    for wf in range(3):
        A(f"s_waitcnt lgkmcnt({6-2*wf})")
        A(f"global_store_dwordx4 {v(vgz)}, {v(za[wf],4)}, s[4:5] sc0 sc1")
        if wf < 2: A(f"v_add_u32 {v(vgz)}, {16*4096}, {v(vgz)}")
    A("s_waitcnt lgkmcnt(0)")
    A("s_mov_b32 exec_hi, 0")
    A(f"global_store_dwordx4 {v(vgz3)}, {v(za[3],4)}, s[4:5] sc0 sc1")
    A("s_mov_b32 exec_hi, -1")
    def arrive(s_off):
        A(f"v_mov_b32 {v(vcn)}, {s(s_off)}")
        A(f"v_mov_b32 {v(vcn+1)}, 1")
        A("s_waitcnt vmcnt(0)")
        A("s_mov_b64 exec, 1")
        A(f"global_atomic_add {v(vcn)}, {v(vcn+1)}, s[4:5] sc1")
        A("s_mov_b64 exec, -1")
    def wait_cnt(tag, target):
        A(f"s_mov_b32 {s(sK)}, 0")
        lp = f"{name}_w{tag}"; dn = f"{name}_d{tag}"
        A.label(lp)
        A(f"global_load_dword {v(vcn+1)}, {v(vcn)}, s[4:5] sc1")
        A("s_waitcnt vmcnt(0)")
        A(f"v_readfirstlane_b32 {s(sT0)}, {v(vcn+1)}")
        A(f"s_add_u32 {s(sK)}, {s(sK)}, 1")
        A(f"s_cmp_ge_u32 {s(sT0)}, {target}")
        A(f"s_cbranch_scc1 {dn}")
        A("s_sleep 1")
        A(f"s_cmp_lt_u32 {s(sK)}, {SPIN}")
        A(f"s_cbranch_scc1 {lp}")
        A.label(dn)
    A(f"s_lshl_b32 {s(sT0)}, {s(sCC)}, 7")
    A(f"s_add_u32 {s(sT0)}, {s(sT0)}, {WS_CNT}")
    arrive(sT0)
    if stamps: STL.stamp()
    wait_cnt("c", 128)
    if stamps: STL.stamp()
    A(f"s_cmp_ge_u32 {s(sLw)}, 2")
    A(f"s_cbranch_scc1 {name}_ldY")
    def pathG(tag, n1, early2):
        n = n1 + 3
        q = []
        def need(x): return len(q) - 1 - max(k for k, y in enumerate(q) if y == x)
        A(f"s_mov_b32 {s(sK1)}, 0")
        for st in range(NSG):
            A(f"s_add_u32 m0, {s(sL1)}, {st*STAGE}")
            if st: A(f"s_add_u32 {s(sK1)}, {s(sK1)}, 128")
            for k in range(n1): A(f"buffer_load_dwordx4 {v(vo[k])}, {s(SR1,4)}, {s(sK1)} offen offset:{k*1024} lds"); q.append(st)
            if not early2:
                A(f"s_add_u32 m0, {s(sL2)}, {st*STAGE}")
                for k in range(3): A(f"buffer_load_dwordx4 {v(vo[3+k])}, {s(SR2,4)}, {s(sK1)} offen offset:{k*1024} lds"); q.append(st)
        A(f"s_add_u32 {s(sK1)}, {s(sK1)}, 128")
        A(f"s_mov_b32 {s(sSlot)}, 0")
        def issue(st):
            A(f"s_add_u32 m0, {s(sSlot)}, {s(sL1)}")
            A(f"s_add_u32 {s(sT0)}, {s(sSlot)}, {s(sL2)}")
            for k in range(n1): A(f"buffer_load_dwordx4 {v(vo[k])}, {s(SR1,4)}, {s(sK1)} offen offset:{k*1024} lds"); q.append(st)
            A(f"s_mov_b32 m0, {s(sT0)}")
            A(f"s_add_u32 {s(sSlot)}, {s(sSlot)}, {STAGE}")
            for k in range(3): A(f"buffer_load_dwordx4 {v(vo[3+k])}, {s(SR2,4)}, {s(sK1)} offen offset:{k*1024} lds"); q.append(st)
            A(f"s_add_u32 {s(sK1)}, {s(sK1)}, 128")
            A(f"s_cmp_ge_u32 {s(sSlot)}, {RING}")
            A(f"s_cselect_b32 {s(sSlot)}, 0, {s(sSlot)}")
        A(f"s_waitcnt vmcnt({need(0)})")
        A("s_barrier")
        H = NSG + 1
        for i in range(1, H):
            A(f"s_waitcnt vmcnt({need(i)})"); A("s_barrier"); issue(i - 1 + NSG)
        nsteady = NSTG - NSG
        A(f"s_mov_b32 {s(sI)}, {H}")
        lp = f"{name}_gl{tag}"
        A.label(lp)
        wv = need(H)
        A(f"s_waitcnt vmcnt({wv})"); A("s_barrier"); issue(H - 1 + NSG)
        A(f"s_add_u32 {s(sI)}, {s(sI)}, 1")
        A(f"s_cmp_le_u32 {s(sI)}, {nsteady}")
        A(f"s_cbranch_scc1 {lp}")
        for i in range(H + 1, nsteady + 1):
            assert need(i) == wv
            for _ in range(n): q.append(i - 1 + NSG)
        for i in range(nsteady + 1, NSTG):
            A(f"s_waitcnt vmcnt({need(i)})"); A("s_barrier")
        A(f"s_branch {name}_gdone")
    pathG("X", 3, False)
    A.label(f"{name}_ldY")
    pathG("Y", 2, True)
    A.label(f"{name}_gdone")
    voWo = voW; voP = [vo[0], vo[1], vo[2], vo[3]]; voX = [vo[4], vo[5]]
    A(f"v_lshrrev_b32 {v(t0)}, 3, {v(vl)}")
    A(f"v_and_b32 {v(t1)}, 7, {v(vl)}")
    A(f"v_bfe_u32 {v(t2)}, {v(vl)}, 4, 1")
    for jj in range(4):
        A(f"v_or_b32 {v(t3)}, {(jj&1)<<1}, {v(t2)}")
        A(f"v_lshlrev_b32 {v(t3)}, 1, {v(t3)}")
        A(f"v_xor_b32 {v(t3)}, {v(t3)}, {v(t1)}")
        A(f"v_lshlrev_b32 {v(t3)}, 4, {v(t3)}")
        A(f"v_lshl_add_u32 {v(voWo[jj])}, {v(t0)}, 10, {v(t3)}")
        if jj: A(f"v_add_u32 {v(voWo[jj])}, {jj*(8192-1024)}, {v(voWo[jj])}")
    A(f"v_xor_b32 {v(t1)}, {v(t1)}, {v(t0)}")
    A(f"v_lshlrev_b32 {v(t1)}, 4, {v(t1)}")
    A(f"s_and_b32 {s(sT0)}, {s(sLw)}, 1")
    A(f"s_lshl_b32 {s(sT0)}, {s(sT0)}, 5")
    A(f"v_add_u32 {v(t2)}, {s(sT0)}, {v(t0)}")
    A(f"v_mul_u32_u24 {v(voP[0])}, 1792, {v(t2)}")
    A(f"s_lshr_b32 {s(sT1)}, {s(sLw)}, 1")
    A(f"s_lshl_b32 {s(sT1)}, {s(sT1)}, 7")
    A(f"v_add3_u32 {v(voP[0])}, {v(voP[0])}, {v(t1)}, {s(sT1)}")
    for jj in range(1, 4): A(f"v_add_u32 {v(voP[jj])}, {jj*(8*1792-1024)}, {v(voP[0])}")
    A(f"s_lshl_b32 {s(sT0)}, {s(sLw)}, 4")
    A(f"v_add_u32 {v(t2)}, {s(sT0)}, {v(t0)}")
    A(f"v_lshl_add_u32 {v(voX[0])}, {v(t2)}, 10, {v(t1)}")
    A(f"v_add_u32 {v(voX[1])}, {8192-1024}, {v(voX[0])}")
    A(f"s_mov_b32 s18, {FH*D*2}"); A("s_mov_b32 s19, 0x20000")
    A(f"s_mul_i32 {s(sWk)}, {s(sLw)}, {28*8192}")
    A(f"s_lshl_b32 {s(sT0)}, {s(sCC)}, 7")
    A(f"s_add_u32 {s(sWk)}, {s(sWk)}, {s(sT0)}")
    A(f"s_mul_i32 {s(sLW)}, {s(sLw)}, {28*1024}")
    sPk, sLP, sXb = 31, 33, 40
    A(f"s_mul_i32 {s(sPk)}, {s(sRB)}, {64*1792}")
    A(f"s_add_u32 {s(sPk)}, {s(sPk)}, {WS_P0}")
    A(f"s_lshl_b32 {s(sLP)}, {s(sLw)}, 12")
    A(f"s_add_u32 {s(sLP)}, {s(sLP)}, {OP}")
    A(f"s_lshl_b32 {s(sXb)}, {s(sRB)}, 16")
    A(f"s_add_u32 {s(sXb)}, {s(sXb)}, {s(sT0)}")
    A(f"s_add_u32 {s(sXb)}, {s(sXb)}, {WS_X1}")
    A("s_barrier")
    assert 28 % 2 == 0
    for g in range(7):
        A(f"s_add_u32 m0, {s(sLW)}, {OW + g*4096}")
        A(f"s_add_u32 {s(sT0)}, {s(sWk)}, {g*32768}")
        for jj in range(4): A(f"buffer_load_dwordx4 {v(voWo[jj])}, s[16:19], {s(sT0)} offen offset:{jj*1024} lds")
    A(f"s_lshl_b32 {s(sT0)}, {s(sRB)}, 7")
    A(f"s_add_u32 {s(sT0)}, {s(sT0)}, {WS_CNT + 1024}")
    A(f"v_mov_b32 {v(vcn)}, {s(sT0)}")
    wait_cnt("t", 32)
    if stamps: STL.stamp()
    def issueO(st):
        slot = st % NSO
        A(f"s_add_u32 m0, {s(sLP)}, {slot*PSLOT}")
        A(f"s_add_u32 {s(sT0)}, {s(sPk)}, {st*256}")
        for jj in range(4): A(f"buffer_load_dwordx4 {v(voP[jj])}, s[4:7], {s(sT0)} offen offset:{jj*1024} lds")
    cntO = lambda st: 4
    for st in range(NSO): issueO(st)
    issued = NSO; xq = 0
    for i in range(NSTO):
        out = sum(cntO(j) for j in range(i + 1, issued)) + xq
        A(f"s_waitcnt vmcnt({out})")
        A("s_barrier")
        if i >= 1 and issued < NSTO:
            issueO(issued); issued += 1
        if i == NSTO - 2:
            A(f"s_lshl_b32 {s(sT0)}, {s(sLw)}, 11")
            A(f"s_add_u32 m0, {s(sT0)}, {XT}")
            for jj in range(2): A(f"buffer_load_dwordx4 {v(voX[jj])}, s[4:7], {s(sXb)} offen offset:{jj*1024} lds")
            xq = 2
    A("s_waitcnt vmcnt(0)")
    A("s_barrier")
    if stamps:
        STL.stamp(); A(f"s_cmp_lg_u32 {s(sLw)}, 0"); A(f"s_cselect_b32 s20, 1, 0"); STL.flush(4, vt[0], slot=1)
    A("s_endpgm")
    nvmax[0] = max(nvmax[0], R.hi)
    A.label(f"{name}_end")
    A("s_endpgm")
    return dict(name=name, grid=NWG, block=512, lds=LDS, vgpr=nvmax[0], sgpr=96 if stamps else 60)
```

```python
import sys
from build4 import assemble2
from g7a import gen_ka, gen_kb
from gkm import gen_km
def make(path, st=False, pf=True, kbpf=False, kmpf=True):
    gens = [lambda A: gen_ka(A, stamps=st, prefetch=pf), lambda A: gen_kb(A, stamps=st, prefetch=kbpf), lambda A: gen_km(A, stamps=st, prefetch=kmpf)]
    open(path, "w").write(assemble2(gens))
if __name__ == "__main__":
    make(sys.argv[1], "-s" in sys.argv, "-nopf" not in sys.argv, kbpf="-kbpf" in sys.argv, kmpf="-nokmpf" not in sys.argv)
```

```python
from common import *
from gemm_util import fhex
from tables import TAB_OFF
from g2a import getpc_sym
NMOD = 96

def gen_ka(A, name="ka_kernel", stamps=False, prefetch=True, codepf=True):
    NFFT = 128; NPF = 32 if prefetch else 0; NWG = NFFT + NMOD + NPF
    F_L = 16384
    A.barrier_state(); A.raw(kernel_header(name))
    ST = Stamps(A, on=stamps, kidx=0)
    A(f"s_cmp_ge_u32 s2, {NWG}")
    A(f"s_cbranch_scc1 {name}_end")
    ST.stamp()
    A(f"s_cmp_ge_u32 s2, {NFFT}")
    A(f"s_cbranch_scc1 {name}_mod")
    load_ptr(A, 4, "x"); load_ptr(A, 6, "ws")
    getpc_sym(A, 8, "fft_tables")
    A("v_readfirstlane_b32 s20, v0")
    A("s_and_b32 s10, s2, 7")
    A("s_bfe_u32 s11, s2, 0x20003")
    A("s_lshl2_add_u32 s10, s10, s11")
    A("s_lshl_b32 s10, s10, 10")
    A("s_lshr_b32 s11, s2, 5")
    R = RegAlloc(1)
    voff = R.alloc(); vi = R.alloc(); vq = R.alloc(); vt0 = R.alloc(); vt1 = R.alloc()
    vS = R.alloc(); vQ = R.alloc(); vtr = R.alloc(); vst = R.alloc(); vl16 = R.alloc()
    xr = [R.alloc(4) for _ in range(8)]
    assert xr[7] == xr[0] + 28
    xo = R.alloc(8, 4)
    Ff = [[R.alloc(4) for _ in range(2)] for _ in range(2)]
    Af = [[R.alloc(4) for _ in range(2)] for _ in range(2)]
    acc = [[R.alloc(4) for _ in range(2)] for _ in range(2)]
    tmp = R.alloc(16, 4)
    A(f"v_lshrrev_b32 {v(vt0)}, 3, v0")
    A(f"v_and_b32 {v(vt1)}, 7, v0")
    A(f"v_lshlrev_b32 {v(vt0)}, 15, {v(vt0)}")
    A(f"v_lshl_add_u32 {v(voff)}, {v(vt1)}, 4, {v(vt0)}")
    A(f"v_add_u32 {v(voff)}, s10, {v(voff)}")
    A(f"v_lshlrev_b32 {v(vl16)}, 4, v0")
    A("s_lshr_b32 s20, s20, 6")
    A("s_lshl_b32 s12, s20, 10")
    A(f"s_add_u32 m0, s12, {F_L}")
    A("s_waitcnt lgkmcnt(0)")
    for it in range(8):
        A(f"global_load_dwordx4 {v(xr[it],4)}, {v(voff)}, s[4:5] offset:{it*128}")
    A(f"global_load_lds_dwordx4 {v(vl16)}, s[8:9] offset:{TAB_OFF['tab_f64']}")
    A(f"v_and_b32 {v(vi)}, 15, v0")
    A(f"v_bfe_u32 {v(vq)}, v0, 4, 2")
    A(f"v_lshrrev_b32 {v(vt0)}, 8, v0")
    A(f"v_lshlrev_b32 {v(vst)}, 20, {v(vt0)}")
    A(f"v_lshl_add_u32 {v(vst)}, {v(vi)}, 15, {v(vst)}")
    A(f"v_bfe_u32 {v(vt1)}, v0, 6, 2")
    A(f"v_lshl_add_u32 {v(vst)}, {v(vt1)}, 5, {v(vst)}")
    A(f"v_lshl_add_u32 {v(vst)}, {v(vq)}, 3, {v(vst)}")
    A("s_lshl_b32 s12, s11, 8")
    A("s_add_u32 s10, s10, s12")
    A(f"s_add_u32 s10, s10, {WS_T}")
    A(f"v_add_u32 {v(vst)}, s10, {v(vst)}")
    A(f"v_lshlrev_b32 {v(vtr)}, 5, {v(vt1)}")
    A(f"v_lshrrev_b32 {v(vt1)}, 2, {v(vi)}")
    A(f"v_lshl_add_u32 {v(vt1)}, {v(vq)}, 3, {v(vt1)}")
    A(f"v_lshl_add_u32 {v(vtr)}, {v(vt1)}, 7, {v(vtr)}")
    A(f"v_and_b32 {v(vt1)}, 3, {v(vi)}")
    A(f"v_lshl_add_u32 {v(vtr)}, {v(vt1)}, 3, {v(vtr)}")
    vfa = R.alloc()
    A(f"v_and_b32 {v(vfa)}, 63, v0")
    A(f"v_lshlrev_b32 {v(vfa)}, 4, {v(vfa)}")
    A(f"v_lshl_add_u32 {v(vfa)}, {v(vt0)}, 12, {v(vfa)}")
    A(f"v_mov_b32 {v(vS)}, 0")
    A(f"v_mov_b32 {v(vQ)}, 0")
    A("s_mov_b32 s12, 0x3f803f80")
    for it in range(8):
        A(f"s_waitcnt vmcnt({7 - it + 1})")
        for j in range(4):
            A(f"v_dot2_f32_bf16 {v(vS)}, {v(xr[it]+j)}, s12, {v(vS)}")
            A(f"v_dot2_f32_bf16 {v(vQ)}, {v(xr[it]+j)}, {v(xr[it]+j)}, {v(vQ)}")
    ST.stamp()
    A("s_lshl_b32 s13, s11, 3")
    A("s_mov_b32 s12, 0xffff0000")
    A("s_set_gpr_idx_on s13, gpr_idx(SRC0)")
    for j in range(8): A(f"v_mov_b32 {v(xo+j)}, {v(xr[0]+j)}")
    A("s_set_gpr_idx_off")
    for mode in ("quad_perm:[1,0,3,2]", "quad_perm:[2,3,0,1]", "row_half_mirror"):
        A(f"v_add_f32_dpp {v(vS)}, {v(vS)}, {v(vS)} {mode} row_mask:0xf bank_mask:0xf")
        A(f"v_add_f32_dpp {v(vQ)}, {v(vQ)}, {v(vQ)} {mode} row_mask:0xf bank_mask:0xf")
        A(f"v_lshlrev_b32 {v(tmp+0)}, 16, {v(xo+0)}") if mode.startswith("quad_perm:[1") else None
    for j in range(8):
        if j: A(f"v_lshlrev_b32 {v(tmp+2*j)}, 16, {v(xo+j)}")
        A(f"v_and_b32 {v(tmp+2*j+1)}, s12, {v(xo+j)}")
    A(f"v_mul_f32 {v(vS)}, 0x3b000000, {v(vS)}")
    A(f"v_mul_f32 {v(vQ)}, 0x3b000000, {v(vQ)}")
    A(f"v_fma_f32 {v(vQ)}, -{v(vS)}, {v(vS)}, {v(vQ)}")
    A(f"v_max_f32 {v(vQ)}, 0, {v(vQ)}")
    A(f"v_add_f32 {v(vQ)}, 0x3727c5ac, {v(vQ)}")
    A(f"v_rsq_f32 {v(vQ)}, {v(vQ)}")
    A(f"v_mul_f32 {v(vS)}, {v(vS)}, {v(vQ)}")
    for j in range(16): A(f"v_fma_f32 {v(tmp+j)}, {v(tmp+j)}, {v(vQ)}, -{v(vS)}")
    for h in range(2):
        for j in range(4): A(f"v_cvt_pk_bf16_f32 {v(xo+4*h+j)}, {v(tmp+8*h+2*j)}, {v(tmp+8*h+2*j+1)}")
        A(f"ds_write_b128 {v(vl16)}, {v(xo+4*h,4)} offset:{h*8192}")
    A("s_waitcnt vmcnt(0) lgkmcnt(0)")
    A("s_barrier")
    for h in range(2):
        for ks in range(2):
            for p in range(2):
                A(f"ds_read_b64_tr_b16 {v(Af[h][ks]+2*p,2)}, {v(vtr)} offset:{h*8192 + ks*32*128 + p*4*128}")
        if h == 0:
            for nt in range(2):
                for ks in range(2): A(f"ds_read_b128 {v(Ff[nt][ks],4)}, {v(vfa)} offset:{F_L + nt*2048 + ks*1024}")
    A(f"v_add_u32 {v(vt1)}, {16*32768}, {v(vst)}")
    for h in range(2):
        A(f"s_waitcnt lgkmcnt({4*(1-h)})")
        for ks in range(2):
            for nt in range(2):
                c = "0" if ks == 0 else v(acc[h][nt], 4)
                A(f"v_mfma_f32_16x16x32_bf16 {v(acc[h][nt],4)}, {v(Af[h][ks],4)}, {v(Ff[nt][ks],4)}, {c}")
    for h in range(2):
        for nt in range(2):
            k = h * 2 + nt
            A(f"v_cvt_pk_bf16_f32 {v(tmp+2*k)}, {v(acc[h][nt])}, {v(acc[h][nt]+1)}")
            A(f"v_cvt_pk_bf16_f32 {v(tmp+2*k+1)}, {v(acc[h][nt]+2)}, {v(acc[h][nt]+3)}")
            A(f"global_store_dwordx2 {v(vst if nt == 0 else vt1)}, {v(tmp+2*k,2)}, s[6:7] offset:{h*128}")
    if stamps:
        ST.stamp(); A("s_waitcnt vmcnt(0)"); ST.stamp(); ST.flush(6, tmp)
    A("s_endpgm")
    return_nv = R.hi
    import g6a
    return _ka_tail(A, name, ST, stamps, prefetch, NFFT, NPF, NWG, return_nv, F_L + 8192, codepf)

def _ka_tail(A, name, ST, stamps, prefetch, NFFT, NPF, NWG, nv, lds, codepf=True):
    A.label(f"{name}_mod")
    if prefetch:
        A(f"s_cmp_ge_u32 s2, {NFFT+NMOD}")
        A(f"s_cbranch_scc1 {name}_pf")
    load_ptr(A, 4, "wmod"); load_ptr(A, 8, "c"); load_ptr(A, 6, "ws")
    A(f"s_sub_u32 s10, s2, {NFFT}")
    A("s_lshl_b32 s11, s10, 6")
    R = RegAlloc(1)
    vk = R.alloc(); vt0 = R.alloc(); vt1 = R.alloc(); vc = R.alloc()
    vo = [R.alloc() for _ in range(4)]
    wr = [R.alloc(4) for _ in range(4)]
    cv = [R.alloc() for _ in range(4)]; ch = [R.alloc() for _ in range(4)]
    ac = R.alloc(8, 4); rr = R.alloc(16, 4)
    A(f"v_and_b32 {v(vt0)}, 0x1c0, v0")
    A(f"v_bfe_u32 {v(vt1)}, v0, 2, 4")
    A(f"v_add_u32 {v(vk)}, {v(vt0)}, {v(vt1)}")
    A(f"v_and_b32 {v(vc)}, 3, v0")
    A(f"v_mul_u32_u24 {v(vo[0])}, 6144, {v(vk)}")
    A(f"v_lshl_add_u32 {v(vo[0])}, {v(vc)}, 4, {v(vo[0])}")
    A(f"v_add_u32 {v(vo[0])}, s11, {v(vo[0])}")
    for it in range(1, 4): A(f"v_add_u32 {v(vo[it])}, {it*16*6144}, {v(vo[0])}")
    A(f"v_lshlrev_b32 {v(vk)}, 1, {v(vk)}")
    A("s_waitcnt lgkmcnt(0)")
    for it in range(4): A(f"global_load_ushort {v(cv[it])}, {v(vk)}, s[8:9] offset:{it*32}")
    for it in range(4): A(f"global_load_dwordx4 {v(wr[it],4)}, {v(vo[it])}, s[4:5]")
    for j in range(8): A(f"v_mov_b32 {v(ac+j)}, 0")
    A("s_waitcnt vmcnt(4)")
    for it in range(4): A(f"v_lshlrev_b32 {v(cv[it])}, 16, {v(cv[it])}")
    for it in range(4): A(f"v_mul_f32 {v(ch[it])}, 0xbfb8aa3b, {v(cv[it])}")
    for it in range(4): A(f"v_exp_f32 {v(ch[it])}, {v(ch[it])}")
    for it in range(4): A(f"v_add_f32 {v(ch[it])}, 1.0, {v(ch[it])}")
    for it in range(4): A(f"v_rcp_f32 {v(ch[it])}, {v(ch[it])}")
    for it in range(4): A(f"v_mul_f32 {v(cv[it])}, {v(cv[it])}, {v(ch[it])}")
    for it in range(4): A(f"v_cvt_pk_bf16_f32 {v(cv[it])}, {v(cv[it])}, 0")
    for it in range(4): A(f"v_lshlrev_b32 {v(ch[it])}, 16, {v(cv[it])}")
    for it in range(4):
        A(f"s_waitcnt vmcnt({3-it})")
        for j in range(4):
            A(f"v_dot2_f32_bf16 {v(ac+2*j)}, {v(wr[it]+j)}, {v(cv[it])}, {v(ac+2*j)}")
            A(f"v_dot2_f32_bf16 {v(ac+2*j+1)}, {v(wr[it]+j)}, {v(ch[it])}, {v(ac+2*j+1)}")
    for rot in (4, 8):
        for j in range(8):
            A(f"v_add_f32_dpp {v(ac+j)}, {v(ac+j)}, {v(ac+j)} row_ror:{rot} row_mask:0xf bank_mask:0xf")
    A(f"v_lshrrev_b32 {v(vt0)}, 4, v0")
    A(f"v_lshlrev_b32 {v(vt0)}, 7, {v(vt0)}")
    A(f"v_lshl_add_u32 {v(vt0)}, {v(vc)}, 5, {v(vt0)}")
    A(f"ds_write_b128 {v(vt0)}, {v(ac,4)}")
    A(f"ds_write_b128 {v(vt0)}, {v(ac+4,4)} offset:16")
    if prefetch and codepf:
        lab = f"{name}_nocp"
        A("s_cmp_ge_u32 s10, 8")
        A(f"s_cbranch_scc1 {lab}")
        getpc_sym(A, 12, "code_begin")
        A(f"v_lshlrev_b32 {v(vt0)}, 7, v0")
        A(f"v_mov_b32 {v(vt1)}, code_end-code_begin-4")
        A(f"v_min_u32 {v(vt0)}, {v(vt0)}, {v(vt1)}")
        A(f"v_and_b32 {v(vt0)}, -4, {v(vt0)}")
        A(f"global_load_dword {v(vk)}, {v(vt0)}, s[12:13]")
        A.label(lab)
    A("v_readfirstlane_b32 s20, v0")
    A("s_waitcnt lgkmcnt(0)")
    A("s_barrier")
    A("s_cmp_ge_u32 s20, 64")
    A(f"s_cbranch_scc1 {name}_end")
    A(f"v_and_b32 {v(vt1)}, 31, v0")
    A(f"v_lshrrev_b32 {v(vt0)}, 5, v0")
    A(f"v_lshlrev_b32 {v(vt0)}, 11, {v(vt0)}")
    A(f"v_lshl_add_u32 {v(vt0)}, {v(vt1)}, 2, {v(vt0)}")
    for p in range(16): A(f"ds_read_b32 {v(rr+p)}, {v(vt0)} offset:{p*128}")
    A("s_lshr_b32 s11, s10, 4")
    A("s_cmp_eq_u32 s11, 1")
    A("s_cselect_b32 s12, 1.0, 0")
    A("s_cmp_eq_u32 s11, 4")
    A("s_cselect_b32 s12, 1.0, s12")
    A("s_lshl_b32 s11, s10, 7")
    if WS_MOD: A(f"s_add_u32 s11, s11, {WS_MOD}")
    A(f"v_lshl_add_u32 {v(vt1)}, {v(vt1)}, 2, s11")
    A("s_waitcnt lgkmcnt(0)")
    for st_ in (8, 4, 2, 1):
        for p in range(st_): A(f"v_add_f32 {v(rr+p)}, {v(rr+p)}, {v(rr+p+st_)}")
    A(f"v_mov_b32 {v(rr+1)}, {v(rr)}")
    A(f"v_permlane32_swap_b32 {v(rr)}, {v(rr+1)}")
    A(f"v_add_f32 {v(rr)}, {v(rr)}, {v(rr+1)}")
    A(f"v_cvt_pk_bf16_f32 {v(rr)}, {v(rr)}, {v(rr)}")
    A(f"v_lshlrev_b32 {v(rr)}, 16, {v(rr)}")
    A(f"v_add_f32 {v(rr)}, s12, {v(rr)}")
    A(f"v_cvt_pk_bf16_f32 {v(rr)}, {v(rr)}, {v(rr)}")
    A(f"v_lshlrev_b32 {v(rr)}, 16, {v(rr)}")
    A(f"global_store_dword {v(vt1)}, {v(rr)}, s[6:7]")
    if stamps:
        A("s_mov_b32 s20, 0"); ST.n = 1; ST.stamp(); ST.stamp(); A("s_waitcnt vmcnt(0)"); ST.stamp(); ST.flush(6, ac)
    A("s_endpgm")
    if prefetch:
        A.label(f"{name}_pf")
        load_ptr(A, 4, "win")
        A(f"s_sub_u32 s10, s2, {NFFT+NMOD}")
        A("s_lshr_b32 s10, s10, 3")
        A("s_mul_i32 s10, s10, 1792")
        A("s_and_b32 s11, s2, 1")
        A("s_mul_i32 s11, s11, 896")
        A("v_add_u32 v1, s10, v0")
        A("v_mov_b32 v6, 896")
        A("s_waitcnt lgkmcnt(0)")
        for it in range(4):
            if it == 3:
                A("v_cmp_gt_u32 vcc, 256, v0")
                A("s_and_b64 exec, exec, vcc")
                A(f"s_cbranch_execz {name}_end")
            A("v_mul_u32_u24 v2, 9363, v1")
            A("v_lshrrev_b32 v2, 17, v2")
            A("v_mul_u32_u24 v3, 14, v2")
            A("v_sub_u32 v3, v1, v3")
            A("v_mul_u32_u24 v2, 3584, v2")
            A("v_lshl_add_u32 v2, v3, 7, v2")
            A("v_cmp_lt_u32 vcc, 6, v3")
            A("v_cndmask_b32 v3, 0, v6, vcc")
            A("v_add3_u32 v2, v2, v3, s11")
            A(f"global_load_dword v{8+it}, v2, s[4:5]")
            if it < 3: A("v_add_u32 v1, 512, v1")
    A.label(f"{name}_end")
    A("s_endpgm")
    return dict(name=name, grid=NWG, block=512, lds=lds, vgpr=max(nv, R.hi), sgpr=96 if stamps else 32)

def gen_kb(A, name="kb_kernel", stamps=False, prefetch=True, pfhalf=True):
    NW = 132; NWG = NW + 4
    TB_L = 0
    MD_L = TB_L + 10240
    WM_L = MD_L + 8192
    T_B = WM_L + 1024
    TS = 1056; V_OFF = T_B + 64 * TS; VS = 80; US = 144; YS = 2064
    U_OFF = T_B; Y_OFF = T_B + 20480
    LDS = V_OFF + 256 * VS
    A.barrier_state(); A.raw(kernel_header(name))
    ST = Stamps(A, on=stamps, kidx=1)
    sW, sC, sG, sT0, sT1, sT2, sRow, sMir, sRow2, sY = 20, 21, 22, 23, 24, 25, 26, 27, 28, 29
    SRD_T = 16
    A(f"s_cmp_ge_u32 s2, {NW}")
    A(f"s_cbranch_scc1 {name}_pf")
    ST.stamp()
    load_ptr(A, 16, "ws"); load_ptr(A, 4, "x"); load_ptr(A, 6, "sre"); load_ptr(A, 8, "sim")
    if prefetch: load_ptr(A, 12, "wsp")
    getpc_sym(A, 10, "fft_tables")
    A(f"v_readfirstlane_b32 {s(sW)}, v0")
    A(f"s_mov_b32 s18, {WS_T + 2*MB}")
    A("s_mov_b32 s19, 0x20000")
    A(f"s_and_b32 {s(sT0)}, s2, 7")
    A(f"s_bfe_u32 {s(sG)}, s2, 0x20003")
    A(f"s_lshr_b32 {s(sT1)}, s2, 5")
    A(f"s_lshl3_add_u32 {s(sC)}, {s(sT1)}, {s(sT0)}")
    A(f"s_cmp_ge_u32 s2, 128")
    A(f"s_cselect_b32 {s(sC)}, 32, {s(sC)}")
    A(f"s_cselect_b32 {s(sG)}, {s(sT0)}, {s(sG)}")
    A(f"s_lshr_b32 {s(sW)}, {s(sW)}, 6")
    R = RegAlloc(1)
    vl = R.alloc(); vq = R.alloc(); vi = R.alloc(); vl16 = R.alloc(); vtid16 = R.alloc()
    vtb = R.alloc(8, 4); vt = [vtb + k for k in range(8)]
    A0 = R.alloc(4); A1 = R.alloc(4)
    F1 = [R.alloc(4) for _ in range(2)]; F2 = [[R.alloc(4) for _ in range(2)] for _ in range(2)]
    tw = R.alloc(16, 4)
    opca = [R.alloc() for _ in range(4)]
    xrow = [R.alloc(4) for _ in range(2)]
    Bf = [[R.alloc(4) for _ in range(2)] for _ in range(4)]
    acc = [R.alloc(4) for _ in range(4)]
    ga = R.alloc(8, 4); sb = R.alloc(8, 4); ocb = R.alloc(8, 4)
    vaT = R.alloc(); vaVw = R.alloc(); vaVr = R.alloc(); vaUw = R.alloc(); vaUr = R.alloc(); vaYw = R.alloc()
    vrow = [R.alloc() for _ in range(2)]
    xf = R.alloc(8, 4); yy = R.alloc(8, 4)
    Rr = R.alloc(4); Ri = R.alloc(4)
    A(f"v_and_b32 {v(vl)}, 63, v0")
    A(f"v_lshlrev_b32 {v(vl16)}, 4, {v(vl)}")
    A(f"v_lshlrev_b32 {v(vtid16)}, 4, v0")
    A(f"s_add_u32 {s(sT1)}, {s(sC)}, 32")
    A(f"s_and_b32 {s(sT2)}, {s(sC)}, 31")
    A(f"s_cselect_b32 {s(sMir)}, 1, 0")
    A(f"s_cselect_b32 {s(sT1)}, {s(sT1)}, 0x4000")
    A(f"s_cmp_ge_u32 {s(sW)}, 4")
    A(f"s_cselect_b32 {s(sT0)}, {s(sT1)}, {s(sC)}")
    A(f"s_lshl_b32 {s(sT0)}, {s(sT0)}, 15")
    A(f"s_and_b32 {s(sT1)}, {s(sW)}, 3")
    A(f"s_lshl_b32 {s(sT1)}, {s(sT1)}, 13")
    A(f"s_add_u32 {s(sT0)}, {s(sT0)}, {s(sT1)}")
    A(f"s_add_u32 {s(sT0)}, {s(sT0)}, {WS_T - 128}")
    A(f"s_mul_i32 {s(sT1)}, {s(sW)}, {8*TS}")
    A(f"s_add_u32 m0, {s(sT1)}, {T_B}")
    for j in range(4): A(f"v_add_u32 {v(vt[4+j])}, {128 - 32*j}, {v(vl16)}")
    A(f"v_and_b32 {v(vi)}, 15, v0")
    A(f"v_bfe_u32 {v(vq)}, v0, 4, 2")
    A(f"v_bfe_u32 {v(vt[0])}, v0, 2, 3")
    A(f"v_lshlrev_b32 {v(vt[0])}, 18, {v(vt[0])}")
    A(f"v_and_b32 {v(vt[1])}, 3, v0")
    A(f"v_lshl_add_u32 {v(vt[0])}, {v(vt[1])}, 4, {v(vt[0])}")
    A(f"s_lshl_b32 {s(sT1)}, {s(sG)}, 21")
    A(f"s_lshl_b32 {s(sT2)}, {s(sC)}, 12")
    A(f"s_add_u32 {s(sT1)}, {s(sT1)}, {s(sT2)}")
    A(f"v_add_u32 {v(vt[0])}, {s(sT1)}, {v(vt[0])}")
    A(f"s_lshl3_add_u32 {s(sT1)}, {s(sG)}, {s(sW)}")
    A(f"s_lshl_b32 {s(sT1)}, {s(sT1)}, 6")
    A(f"s_add_u32 {s(sRow)}, {s(sT1)}, {s(sC)}")
    A(f"s_sub_u32 {s(sRow2)}, 2048, {s(sRow)}")
    A(f"s_and_b32 {s(sRow2)}, {s(sRow2)}, 2047")
    A(f"s_lshl_b32 {s(sRow)}, {s(sRow)}, 10")
    A(f"s_lshl_b32 {s(sRow2)}, {s(sRow2)}, 10")
    A(f"v_add_u32 {v(vrow[0])}, {s(sRow)}, {v(vl16)}")
    A(f"v_add_u32 {v(vrow[1])}, {s(sRow2)}, {v(vl16)}")
    A(f"s_lshl_b32 {s(sT2)}, {s(sW)}, 10")
    A("s_waitcnt lgkmcnt(0)")
    for g in range(2):
        if g:
            A(f"s_add_u32 m0, m0, {4*TS}")
            A(f"s_add_u32 {s(sT0)}, {s(sT0)}, 4096")
        for j in range(4):
            A(f"buffer_load_dwordx4 {v(vt[4+j])}, {s(SRD_T,4)}, {s(sT0)} offen offset:{j*TS} lds")
    A(f"s_add_u32 m0, {s(sT2)}, {TB_L}")
    A(f"v_add_u32 {v(vt[1])}, {TAB_OFF['tab_f1']}, {v(vtid16)}")
    A(f"global_load_lds_dwordx4 {v(vt[1])}, s[10:11]")
    A(f"s_add_u32 m0, {s(sT2)}, {MD_L}")
    A(f"v_add_u32 {v(vt[2])}, {WS_MOD + 2048}, {v(vtid16)}")
    A(f"global_load_lds_dwordx4 {v(vt[2])}, s[16:17]")
    lx = f"{name}_nox"; l23 = f"{name}_x23"
    A(f"s_cmp_ge_u32 {s(sW)}, 4")
    A(f"s_cbranch_scc1 {lx}")
    A(f"s_cmp_ge_u32 {s(sW)}, 2")
    A(f"s_cbranch_scc1 {l23}")
    A(f"s_add_u32 m0, {s(sT2)}, {TB_L + 8192}")
    A(f"v_add_u32 {v(vt[1])}, 8192, {v(vt[1])}")
    A(f"global_load_lds_dwordx4 {v(vt[1])}, s[10:11]")
    A(f"s_branch {lx}")
    A.label(l23)
    A(f"s_cmp_eq_u32 {s(sW)}, 3")
    A("s_cselect_b32 s6, s8, s6")
    A("s_cselect_b32 s7, s9, s7")
    A(f"s_cselect_b32 m0, {WM_L + 512}, {WM_L}".replace(f"{WM_L + 512}, {WM_L}", f"{s(sT1)}, {s(sT2)}") if False else f"s_cselect_b32 {s(sT1)}, 512, 0")
    A(f"s_add_u32 m0, {s(sT1)}, {WM_L}")
    A("s_mov_b32 exec_hi, 0")
    A(f"global_load_lds_dwordx4 {v(vt[0])}, s[6:7]")
    A("s_mov_b32 exec_hi, -1")
    A.label(lx)
    for h in range(2): A(f"global_load_dwordx4 {v(xrow[h],4)}, {v(vrow[h])}, s[4:5]")
    A(f"v_lshrrev_b32 {v(vt[0])}, 2, {v(vi)}")
    A(f"v_lshl_add_u32 {v(vt[0])}, {v(vq)}, 2, {v(vt[0])}")
    A(f"v_mul_u32_u24 {v(vaT)}, {TS}, {v(vt[0])}")
    A(f"v_and_b32 {v(vt[0])}, 3, {v(vi)}")
    A(f"v_lshl_add_u32 {v(vaT)}, {v(vt[0])}, 3, {v(vaT)}")
    A(f"v_and_b32 {v(vt[4])}, 0x1c0, v0")
    A(f"v_lshl_add_u32 {v(vaT)}, {v(vt[4])}, 1, {v(vaT)}")
    A(f"v_add_u32 {v(vaT)}, {T_B}, {v(vaT)}")
    A(f"v_lshl_add_u32 {v(vt[0])}, {v(vq)}, 6, {v(vi)}")
    A(f"v_mul_u32_u24 {v(vaVw)}, {VS}, {v(vt[0])}")
    A(f"v_lshrrev_b32 {v(vt[0])}, 3, {v(vt[4])}")
    A(f"s_mov_b32 {s(sT2)}, {V_OFF}")
    A(f"v_add3_u32 {v(vaVw)}, {v(vaVw)}, {v(vt[0])}, {s(sT2)}")
    A(f"v_lshrrev_b32 {v(vt[0])}, 1, {v(vt[4])}")
    A(f"v_add_u32 {v(vt[0])}, {v(vt[0])}, {v(vi)}")
    A(f"v_mul_u32_u24 {v(vaVr)}, {VS}, {v(vt[0])}")
    A(f"v_lshl_add_u32 {v(vaVr)}, {v(vq)}, 4, {v(vaVr)}")
    A(f"v_add_u32 {v(vaVr)}, {V_OFF}, {v(vaVr)}")
    A(f"v_lshrrev_b32 {v(vt[0])}, 2, {v(vt[4])}")
    A(f"v_lshl_add_u32 {v(vt[3])}, {v(vq)}, 1, {v(vt[0])}")
    A(f"v_mul_u32_u24 {v(vaUw)}, {US}, {v(vt[3])}")
    A(f"v_lshl_add_u32 {v(vaUw)}, {v(vi)}, 2, {v(vaUw)}")
    A(f"v_add_u32 {v(vt[3])}, {v(vt[0])}, {v(vi)}")
    A(f"v_mul_u32_u24 {v(vaUr)}, {US}, {v(vt[3])}")
    A(f"v_lshl_add_u32 {v(vaUr)}, {v(vq)}, 4, {v(vaUr)}")
    A(f"s_mul_i32 {s(sY)}, {s(sW)}, {YS}")
    A(f"s_add_u32 {s(sY)}, {s(sY)}, {Y_OFF}")
    A(f"v_lshlrev_b32 {v(vaYw)}, 6, {v(vi)}")
    A(f"v_lshl_add_u32 {v(vaYw)}, {v(vq)}, 4, {v(vaYw)}")
    A(f"v_add_u32 {v(vaYw)}, {s(sY)}, {v(vaYw)}")
    A(f"v_lshrrev_b32 {v(vt[5])}, 1, {v(vi)}")
    A(f"v_lshlrev_b32 {v(vt[5])}, 6, {v(vt[5])}")
    A(f"v_lshl_add_u32 {v(vt[5])}, {v(vq)}, 3, {v(vt[5])}")
    A(f"v_add_u32 {v(vt[6])}, {v(vt[4])}, {v(vi)}")
    A(f"v_lshlrev_b32 {v(vt[6])}, 2, {v(vt[6])}")
    A(f"v_and_b32 {v(vt[3])}, 1, v0")
    A(f"v_cmp_eq_u32 vcc, 1, {v(vt[3])}")
    A(f"s_mov_b32 {s(sT0)}, 0x80008000")
    A("s_waitcnt vmcnt(2)")
    vpf = R.alloc(); vpd = R.alloc(2)
    if prefetch:
        A(f"s_bfe_u32 {s(sT1)}, s2, 0x20001")
        A(f"s_lshl_b32 {s(sT1)}, {s(sT1)}, 21")
        A(f"s_lshr_b32 {s(sT2)}, s2, 3")
        A(f"s_lshl3_add_u32 {s(sT2)}, {s(sT2)}, {s(sW)}")
        A(f"s_and_b32 {s(sT2)}, {s(sT2)}, 127")
        A(f"s_lshl_b32 {s(sT2)}, {s(sT2)}, 14")
        A(f"s_add_u32 {s(sT1)}, {s(sT1)}, {s(sT2)}")
        if pfhalf:
            A(f"s_and_b32 {s(sT2)}, s2, 1")
            A(f"s_lshl_b32 {s(sT2)}, {s(sT2)}, 13")
            A(f"s_add_u32 {s(sT1)}, {s(sT1)}, {s(sT2)}")
        A(f"v_lshl_add_u32 {v(vpf)}, {v(vl)}, 7, {s(sT1)}")
    ST.stamp()
    A("s_barrier")
    if prefetch:
        A(f"global_load_dword {v(vpd)}, {v(vpf)}, s[12:13]")
        if not pfhalf:
            A(f"v_add_u32 {v(vpf)}, 8192, {v(vpf)}")
            A(f"global_load_dword {v(vpd+1)}, {v(vpf)}, s[12:13]")
    for reg, o in ((Rr, 0), (Ri, 512)):
        A(f"ds_read_b64 {v(reg,2)}, {v(vt[5])} offset:{WM_L + o}")
        A(f"ds_read_b64 {v(reg+2,2)}, {v(vt[5])} offset:{WM_L + o + 32}")
    for jt in range(4):
        for c in range(2):
            for p in range(2):
                A(f"ds_read_b64_tr_b16 {v(Bf[jt][c]+2*p,2)}, {v(vaT)} offset:{c*32*TS + p*16*TS + jt*32}")
        if jt == 1:
            pass
    A("s_waitcnt lgkmcnt(15)")
    for j in range(4):
        A(f"v_xor_b32 {v(vt[0])}, {s(sT0)}, {v(Ri+j)}")
        A(f"v_cndmask_b32 {v(A0+j)}, {v(Rr+j)}, {v(Ri+j)}, vcc")
        A(f"v_cndmask_b32 {v(A1+j)}, {v(vt[0])}, {v(Rr+j)}, vcc")
    for jt in range(4): A(f"ds_read_b32 {v(opca[jt])}, {v(vt[6])} offset:{MD_L + jt*64}")
    for jt in range(4):
        A(f"s_waitcnt lgkmcnt({min(15, (3-jt)*4 + 4)})")
        A(f"v_mfma_f32_16x16x32_bf16 {v(acc[jt],4)}, {v(A0,4)}, {v(Bf[jt][0],4)}, 0")
        A(f"v_mfma_f32_16x16x32_bf16 {v(acc[jt],4)}, {v(A1,4)}, {v(Bf[jt][1],4)}, {v(acc[jt],4)}")
    for mt in range(2): A(f"ds_read_b128 {v(F1[mt],4)}, {v(vl16)} offset:{TB_L + mt*1024}")
    A(f"v_lshlrev_b32 {v(vt[7])}, 2, {v(vl16)}")
    for h in range(4): A(f"ds_read_b128 {v(tw+4*h,4)}, {v(vt[7])} offset:{TB_L + 6144 + h*16}")
    A("s_waitcnt lgkmcnt(6)")
    for jt in range(4):
        for r in range(4): A(f"v_mul_f32 {v(acc[jt]+r)}, {v(acc[jt]+r)}, {v(opca[jt])}")
    lab = f"{name}_nodc"
    A(f"s_or_b32 {s(sT0)}, {s(sC)}, {s(sG)}")
    A(f"s_cbranch_scc1 {lab}")
    A(f"v_and_b32 {v(vt[2])}, 0x1cf, v0")
    A(f"v_lshlrev_b32 {v(vt[2])}, 2, {v(vt[2])}")
    if WS_MOD: A(f"v_add_u32 {v(vt[2])}, {WS_MOD}, {v(vt[2])}")
    for jt in range(4): A(f"global_load_dword {v(Bf[0][0]+jt)}, {v(vt[2])}, s[16:17] offset:{jt*64}")
    A(f"v_cmp_eq_u32 vcc, 0, {v(vq)}")
    A(f"v_mov_b32 {v(vt[1])}, 0x45000000")
    A(f"v_cndmask_b32 {v(vt[1])}, 0, {v(vt[1])}, vcc")
    A("s_waitcnt vmcnt(0)")
    for jt in range(4): A(f"v_fmac_f32 {v(acc[jt])}, {v(Bf[0][0]+jt)}, {v(vt[1])}")
    A.label(lab)
    for jt in range(4):
        ac = acc[jt]
        A(f"v_cvt_pk_bf16_f32 {v(ac)}, {v(ac)}, {v(ac+1)}")
        A(f"v_cvt_pk_bf16_f32 {v(ac+1)}, {v(ac+2)}, {v(ac+3)}")
        o0 = (jt&1)*16*VS + (jt>>1)*4
        A(f"ds_write_b32 {v(vaVw)}, {v(ac)} offset:{o0}")
        A(f"ds_write_b32 {v(vaVw)}, {v(ac+1)} offset:{o0 + 32*VS}")
    A(f"s_mov_b32 {s(sT0)}, 0xffff0000")
    A("s_waitcnt lgkmcnt(0)")
    A("s_barrier")
    ST.stamp()
    for h in range(2): A(f"ds_read_b128 {v(Bf[h][0],4)}, {v(vaVr)} offset:{h*16*VS}")
    for nt in range(2):
        for ks in range(2): A(f"ds_read_b128 {v(F2[nt][ks],4)}, {v(vl16)} offset:{TB_L + 2048 + nt*2048 + ks*1024}")
    A(f"v_lshlrev_b32 {v(vt[7])}, 1, {v(vl16)}")
    for h in range(2):
        A(f"s_waitcnt lgkmcnt({5-h})")
        for mt in range(2):
            A(f"v_mfma_f32_16x16x32_bf16 {v(acc[2*h+mt],4)}, {v(F1[mt],4)}, {v(Bf[h][0],4)}, 0")
    for reg, sec in ((ga, 1), (sb, 2), (ocb, 3)):
        for u in range(2): A(f"ds_read_b128 {v(reg+4*u,4)}, {v(vt[7])} offset:{MD_L + sec*2048 + u*16}")
    for h in range(2):
        for mt in range(2):
            for pp in range(2):
                re, im = acc[2*h+mt] + 2 * pp, acc[2*h+mt] + 2 * pp + 1
                k = ((h*2+mt)*2+pp)*2
                c_, s_ = tw + k, tw + k + 1
                t0, t1 = vt[4*pp], vt[4*pp+1]
                if pp == 1 and False: pass
                A(f"v_mul_f32 {v(t0)}, {v(re)}, {v(c_)}")
                A(f"v_mul_f32 {v(t1)}, {v(im)}, {v(c_)}")
                A(f"v_fma_f32 {v(t0)}, {v(im)}, {v(s_)}, {v(t0)}")
                A(f"v_fma_f32 {v(t1)}, -{v(re)}, {v(s_)}, {v(t1)}")
                A(f"v_cvt_pk_bf16_f32 {v(vt[4*pp+2])}, {v(t0)}, {v(t1)}")
                A(f"ds_write_b32 {v(vaUw)}, {v(vt[4*pp+2])} offset:{U_OFF + (8*mt+pp)*US + h*64}")
    A("s_waitcnt lgkmcnt(0)")
    for ks in range(2): A(f"ds_read_b128 {v(Bf[ks][0],4)}, {v(vaUr)} offset:{U_OFF + ks*64}")
    A(f"s_waitcnt vmcnt({(1 if pfhalf else 2) if prefetch else 0})")
    xg = [xf, yy]
    for r in range(2):
        for j in range(4):
            A(f"v_lshlrev_b32 {v(xg[r]+2*j)}, 16, {v(xrow[r]+j)}")
            A(f"v_and_b32 {v(xg[r]+2*j+1)}, {s(sT0)}, {v(xrow[r]+j)}")
    for ks in range(2):
        A(f"s_waitcnt lgkmcnt({1-ks})")
        for nt in range(2):
            c = "0" if ks == 0 else v(acc[nt], 4)
            A(f"v_mfma_f32_16x16x32_bf16 {v(acc[nt],4)}, {v(Bf[ks][0],4)}, {v(F2[nt][ks],4)}, {c}")
    A(f"v_lshl_add_u32 {v(vt[0])}, {v(vl16)}, 1, {s(sY)}")
    A(f"v_lshlrev_b32 {v(vt[2])}, 1, {v(vl16)}")
    A(f"v_sub_u32 {v(vt[1])}, 2048, {v(vt[2])}")
    A(f"v_and_b32 {v(vt[1])}, 2047, {v(vt[1])}")
    A(f"v_add_u32 {v(vt[1])}, {s(sY)}, {v(vt[1])}")
    A(f"s_add_u32 {s(sT1)}, {s(sY)}, {505*4}")
    A(f"v_sub_u32 {v(vt[2])}, {s(sT1)}, {v(vt[2])}")
    for nt in range(2): A(f"ds_write_b128 {v(vaYw)}, {v(acc[nt],4)} offset:{nt*1024}")
    A("s_waitcnt lgkmcnt(0)")
    ST.stamp()
    y = Bf[2][0]; assert Bf[2][1] == y + 4
    y2 = Bf[3][0]; assert Bf[3][1] == y2 + 4
    A(f"ds_read_b128 {v(y,4)}, {v(vt[0])}")
    A(f"ds_read_b128 {v(y+4,4)}, {v(vt[0])} offset:16")
    A(f"ds_read_b32 {v(y2)}, {v(vt[1])}")
    A(f"ds_read_b32 {v(y2+1)}, {v(vt[2])} offset:24")
    for j in (2, 4, 6): A(f"ds_read2_b32 {v(y2+j,2)}, {v(vt[2])} offset0:{7-j} offset1:{6-j}")
    A("s_waitcnt lgkmcnt(5)")
    for j in range(8): A(f"v_fma_f32 {v(xf+j)}, {v(ga+j)}, {v(y+j)}, {v(xf+j)}")
    A("s_waitcnt lgkmcnt(0)")
    for j in range(8): A(f"v_fma_f32 {v(yy+j)}, {v(ga+j)}, {v(y2+j)}, {v(yy+j)}")
    for r in range(2):
        for j in range(4): A(f"v_cvt_pk_bf16_f32 {v(xrow[r]+j)}, {v(xg[r]+2*j)}, {v(xg[r]+2*j+1)}")
    A(f"v_add_u32 {v(vt[2])}, {WS_X1}, {v(vrow[0])}")
    A(f"v_add_u32 {v(vt[3])}, {WS_X1}, {v(vrow[1])}")
    A(f"global_store_dwordx4 {v(vt[2])}, {v(xrow[0],4)}, s[16:17]")
    lab2 = f"{name}_nomir1"
    A(f"s_cmp_eq_u32 {s(sMir)}, 0")
    A(f"s_cbranch_scc1 {lab2}")
    A(f"global_store_dwordx4 {v(vt[3])}, {v(xrow[1],4)}, s[16:17]")
    A.label(lab2)
    for r in range(2):
        for j in range(4):
            A(f"v_lshlrev_b32 {v(xg[r]+2*j)}, 16, {v(xrow[r]+j)}")
            A(f"v_and_b32 {v(xg[r]+2*j+1)}, {s(sT0)}, {v(xrow[r]+j)}")
    S_ = [vt[0], vt[1]]; Q_ = [vt[4], vt[5]]
    for r in range(2):
        A(f"v_add_f32 {v(S_[r])}, {v(xg[r])}, {v(xg[r]+1)}")
        A(f"v_mul_f32 {v(Q_[r])}, {v(xg[r])}, {v(xg[r])}")
    for j in range(1, 8):
        for r in range(2):
            if j >= 2: A(f"v_add_f32 {v(S_[r])}, {v(S_[r])}, {v(xg[r]+j)}")
            A(f"v_fmac_f32 {v(Q_[r])}, {v(xg[r]+j)}, {v(xg[r]+j)}")
    chains = [S_[0], Q_[0], S_[1], Q_[1]]
    for mode, rm in (("quad_perm:[1,0,3,2]", "0xf"), ("quad_perm:[2,3,0,1]", "0xf"), ("row_half_mirror", "0xf"), ("row_mirror", "0xf"), ("row_bcast:15", "0xa"), ("row_bcast:31", "0xc")):
        for c_ in chains: A(f"v_add_f32_dpp {v(c_)}, {v(c_)}, {v(c_)} {mode} row_mask:{rm} bank_mask:0xf")
    for k, c_ in enumerate(chains): A(f"v_readlane_b32 {s(30+k)}, {v(c_)}, 63")
    A(f"v_mov_b32 {v(vt[6])}, 0x3b000000")
    for r in range(2):
        A(f"v_mul_f32 {v(S_[r])}, {s(30+2*r)}, {v(vt[6])}")
        A(f"v_mul_f32 {v(Q_[r])}, {s(31+2*r)}, {v(vt[6])}")
    for r in range(2): A(f"v_fma_f32 {v(Q_[r])}, -{v(S_[r])}, {v(S_[r])}, {v(Q_[r])}")
    for r in range(2): A(f"v_max_f32 {v(Q_[r])}, 0, {v(Q_[r])}")
    for r in range(2): A(f"v_add_f32 {v(Q_[r])}, 0x3727c5ac, {v(Q_[r])}")
    for r in range(2): A(f"v_rsq_f32 {v(Q_[r])}, {v(Q_[r])}")
    A(f"v_add_u32 {v(vt[2])}, {WS_H2}, {v(vrow[0])}")
    A(f"v_add_u32 {v(vt[3])}, {WS_H2}, {v(vrow[1])}")
    for r in range(2):
        for j in range(8): A(f"v_sub_f32 {v(xg[r]+j)}, {v(xg[r]+j)}, {v(S_[r])}")
    for r in range(2):
        for j in range(8): A(f"v_mul_f32 {v(xg[r]+j)}, {v(xg[r]+j)}, {v(Q_[r])}")
    for r in range(2):
        for j in range(8): A(f"v_fma_f32 {v(xg[r]+j)}, {v(xg[r]+j)}, {v(ocb+j)}, {v(sb+j)}")
    yo = [y, y2]
    for r in range(2):
        for j in range(4): A(f"v_cvt_pk_bf16_f32 {v(yo[r]+j)}, {v(xg[r]+2*j)}, {v(xg[r]+2*j+1)}")
    A(f"global_store_dwordx4 {v(vt[2])}, {v(y,4)}, s[16:17]")
    A(f"s_cmp_eq_u32 {s(sMir)}, 0")
    A(f"s_cbranch_scc1 {name}_fin")
    A(f"global_store_dwordx4 {v(vt[3])}, {v(y2,4)}, s[16:17]")
    A.label(f"{name}_fin")
    if stamps:
        ST.stamp(); A("s_waitcnt vmcnt(0)"); ST.stamp(); ST.flush(16, ga)
    A("s_endpgm")
    A.label(f"{name}_pf")
    A(f"s_cmp_ge_u32 s2, {NWG}")
    A(f"s_cbranch_scc1 {name}_end")
    load_ptr(A, 4, "ws")
    A(f"s_sub_u32 s10, s2, {NW}")
    A("s_lshl_b32 s10, s10, 16")
    A(f"s_add_u32 s10, s10, {WS_STAT}")
    A("v_lshl_add_u32 v1, v0, 4, s10")
    for j in range(4): A(f"v_mov_b32 v{4+j}, -1")
    A("s_waitcnt lgkmcnt(0)")
    for it in range(8):
        A("global_store_dwordx4 v1, v[4:7], s[4:5]")
        if it < 7: A("v_add_u32 v1, 8192, v1")
    A(f"s_sub_u32 s10, s2, {NW}")
    A("s_lshl_b32 s10, s10, 14")
    A(f"s_add_u32 s10, s10, {WS_STAT + 256*1024}")
    A("v_lshl_add_u32 v1, v0, 4, s10")
    for j in range(4): A(f"v_mov_b32 v{8+j}, 0")
    A("global_store_dwordx4 v1, v[8:11], s[4:5]")
    A("v_add_u32 v1, 8192, v1")
    A("global_store_dwordx4 v1, v[8:11], s[4:5]")
    A.label(f"{name}_end")
    A("s_endpgm")
    return dict(name=name, grid=NWG, block=512, lds=LDS, vgpr=R.hi, sgpr=96 if stamps else 40)
```

```python
from g2b import *
WS_CNT = WS_STAT + 256 * 1024
SPIN = 0x8000

def gen_km(A, name="km_kernel", stamps=False):
    NWG = 256
    GS = 960; SLOT = 16 * GS; W_OFF = 65536; NSZ = 4; NSTZ = 16; WROW = 3584
    X_OFF = W_OFF + NSZ * SLOT; XS = 32 * 144
    ZT = 145408
    NSG = 5; NSTG = 32; B_OFF = 14 * 1024; STAGE = 22 * 1024; RING = NSG * STAGE
    GX = 114688
    OW = 0; OP = 114688; NSO = 3; NSTO = 7; PSLOT = 16384
    LDS = 163840
    JOIN = 159744
    A.barrier_state(); A.raw(kernel_header(name))
    ST = Stamps(A, on=stamps, kidx=2)
    sW, sRB, sCC, sT0, sT1, sT2, sTH, sFH, sK, sSlot, sI = 20, 21, 22, 23, 24, 25, 26, 27, 28, 34, 35
    A(f"s_cmp_ge_u32 s2, {NWG}")
    A(f"s_cbranch_scc1 {name}_end")
    ST.stamp()
    load_ptr(A, 4, "ws"); load_ptr(A, 8, "win"); load_ptr(A, 12, "wsp"); load_ptr(A, 16, "wout"); load_ptr(A, 36, "bsp"); load_ptr(A, 38, "out")
    A(f"v_readfirstlane_b32 {s(sW)}, v0")
    A(f"s_bfe_u32 {s(sRB)}, s2, 0x20001")
    A(f"s_bfe_u32 {s(sT0)}, s2, 0x30003")
    A(f"s_lshl3_add_u32 {s(sRB)}, {s(sRB)}, {s(sT0)}")
    A(f"s_and_b32 {s(sCC)}, s2, 1")
    A(f"s_lshr_b32 {s(sT0)}, s2, 6")
    A(f"s_lshl2_add_u32 {s(sCC)}, {s(sCC)}, {s(sT0)}")
    A(f"s_lshr_b32 {s(sW)}, {s(sW)}, 6")
    A(f"s_and_b32 {s(sTH)}, {s(sW)}, 1")
    A(f"s_bfe_u32 {s(sFH)}, {s(sW)}, 0x10001")
    vq, vi = 1, 2
    vtt = [3, 4]
    A(f"v_bfe_u32 v1, v0, 4, 2")
    A(f"v_and_b32 v2, 15, v0")
    A(f"s_lshl1_add_u32 {s(sT0)}, {s(sTH)}, {s(sFH)}")
    A(f"s_xor_b32 {s(sT1)}, {s(sT0)}, 1")
    A(f"v_lshl_add_u32 {v(vtt[0])}, {s(sT0)}, 4, {v(vi)}")
    A(f"v_lshl_add_u32 {v(vtt[1])}, {s(sT1)}, 4, {v(vi)}")
    A(f"s_cmp_ge_u32 {s(sW)}, 4")
    A(f"s_cbranch_scc1 {name}_loader")
    TILES = [(0, 0), (0, 1), (1, 0), (1, 1), (2, 0), (2, 1), (3, 0)]
    nvmax = [0]
    R = RegAlloc(5)
    vC = R.alloc(2)
    vtb = R.alloc(8, 4); vt = [vtb + k for k in range(8)]
    vH = [[R.alloc() for _ in range(2)] for _ in range(2)]
    vWa = [R.alloc() for _ in range(2)]; vWb = [R.alloc() for _ in range(2)]
    vLx = [R.alloc() for _ in range(2)]
    gt2 = R.alloc(16, 4)
    z2p = [R.alloc(2) for _ in range(7)]
    st1 = [R.alloc(2) for _ in range(2)]; st2 = [R.alloc(2) for _ in range(2)]
    acc = [[R.alloc(4) for _ in range(7)] for _ in range(2)]
    FH_ = [[[R.alloc(4) for _ in range(2)] for _ in range(2)] for _ in range(2)]
    FW = [[[R.alloc(4) for _ in range(4)] for _ in range(2)] for _ in range(2)]
    A(f"v_and_b32 {v(vt[0])}, 7, {v(vi)}")
    A(f"v_xor_b32 {v(vt[1])}, {v(vq)}, {v(vt[0])}")
    A(f"v_lshlrev_b32 {v(vt[1])}, 4, {v(vt[1])}")
    for hf in range(2):
        A(f"v_lshl_add_u32 {v(vH[hf][0])}, {v(vtt[hf])}, 7, {v(vt[1])}")
        A(f"v_xor_b32 {v(vH[hf][1])}, 64, {v(vH[hf][0])}")
    A(f"v_mul_u32_u24 {v(vt[1])}, {2*GS}, {v(vq)}")
    A(f"v_lshrrev_b32 {v(vt[2])}, 2, {v(vi)}")
    A(f"v_mul_u32_u24 {v(vt[2])}, 224, {v(vt[2])}")
    A(f"v_and_b32 {v(vt[3])}, 3, {v(vi)}")
    A(f"v_lshl_add_u32 {v(vt[1])}, {v(vt[3])}, 3, {v(vt[1])}")
    A(f"v_add_u32 {v(vt[1])}, {v(vt[1])}, {v(vt[2])}")
    A(f"s_lshl_b32 {s(sT0)}, {s(sFH)}, 7")
    A(f"s_add_u32 {s(sT0)}, {s(sT0)}, {W_OFF}")
    A(f"v_add_u32 {v(vWa[0])}, {s(sT0)}, {v(vt[1])}")
    A(f"v_add_u32 {v(vWb[0])}, {W_OFF+96}, {v(vt[1])}")
    A(f"v_add_u32 {v(vWa[1])}, {3*SLOT}, {v(vWa[0])}")
    A(f"v_add_u32 {v(vWb[1])}, {3*SLOT}, {v(vWb[0])}")
    A(f"s_mul_i32 {s(sT0)}, {s(sW)}, {XS}")
    A(f"s_add_u32 {s(sT0)}, {s(sT0)}, {X_OFF}")
    for hf in range(2):
        A(f"v_and_b32 {v(vLx[hf])}, 31, {v(vtt[hf])}")
        A(f"v_mul_u32_u24 {v(vLx[hf])}, 144, {v(vLx[hf])}")
        A(f"v_lshl_add_u32 {v(vLx[hf])}, {v(vq)}, 3, {v(vLx[hf])}")
        A(f"v_add_u32 {v(vLx[hf])}, {s(sT0)}, {v(vLx[hf])}")
    for hf in range(2):
        for r in range(2):
            A(f"v_mov_b32 {v(st1[hf]+r)}, 0"); A(f"v_mov_b32 {v(st2[hf]+r)}, 0")
    A(f"v_mov_b32 {v(vC)}, {fhex(GELU_C2)}")
    A(f"v_mov_b32 {v(vC+1)}, {fhex(GELU_C1)}")
    A(f"v_mov_b32 {v(vt[0])}, {JOIN}")
    A(f"v_mov_b32 {v(vt[2])}, 0"); A(f"v_mov_b32 {v(vt[3])}, 0")
    A(f"ds_write_b64 {v(vt[0])}, {v(vt[2],2)}")
    A("s_waitcnt lgkmcnt(0)")
    def readsZ(st, buf):
        kc = st & 7; slot = st % NSZ; sg = slot // 3; so = (slot % 3) * SLOT
        o = []
        for ks in range(2):
            for hf in range(2): o.append(f"ds_read_b128 {v(FH_[buf][ks][hf],4)}, {v(vH[hf][ks])} offset:{kc*8192}")
            for wf in range(4):
                for p in range(2):
                    base = vWa[sg] if wf < 3 else vWb[sg]
                    off = so + ks * 8 * GS + p * GS + (wf * 32 if wf < 3 else 0)
                    o.append(f"ds_read_b64_tr_b16 {v(FW[buf][ks][wf]+2*p,2)}, {v(base)} offset:{off}")
        return o
    def mfmasZ(st, buf):
        h = st >> 3
        o = []
        for ks in range(2):
            for tl, (wf, hf) in enumerate(TILES):
                c = "0" if (st & 7) == 0 and ks == 0 else v(acc[h][tl], 4)
                o.append(f"v_mfma_f32_16x16x32_bf16 {v(acc[h][tl],4)}, {v(FW[buf][ks][wf],4)}, {v(FH_[buf][ks][hf],4)}, {c}")
        return o
    def z2_part1():
        A(f"s_mov_b32 {s(sT2)}, 0xffff0000")
        for grp in ([0, 1, 2, 3], [4, 5, 6]):
            for x in gelu_pk_multi([acc[0][tl] for tl in grp], gt2, vC): A(x)
            for tl in grp:
                ac = acc[0][tl]
                for h in range(2): A(f"v_cvt_pk_bf16_f32 {v(z2p[tl]+h)}, {v(ac+2*h)}, {v(ac+2*h+1)}")
            for k, tl in enumerate(grp):
                for h in range(2):
                    A(f"v_lshlrev_b32 {v(gt2+4*k+2*h)}, 16, {v(z2p[tl]+h)}")
                    A(f"v_and_b32 {v(gt2+4*k+2*h+1)}, {s(sT2)}, {v(z2p[tl]+h)}")
            for k, tl in enumerate(grp):
                hf = TILES[tl][1]
                for h in range(2):
                    A(pk("add", st1[hf], v(st1[hf], 2), v(gt2+4*k+2*h, 2)))
                    A(pk("fma", st2[hf], v(gt2+4*k+2*h, 2), v(gt2+4*k+2*h, 2), v(st2[hf], 2)))
        for hf in range(2):
            A(f"v_add_f32 {v(st1[hf])}, {v(st1[hf])}, {v(st1[hf]+1)}")
            A(f"v_add_f32 {v(st2[hf])}, {v(st2[hf])}, {v(st2[hf]+1)}")
        rs4 = (st1[0], st2[0], st1[1], st2[1])
        for k, r in enumerate(rs4): A(f"v_mov_b32 {v(gt2+k)}, {v(r)}")
        for k, r in enumerate(rs4): A(f"v_permlane16_swap_b32 {v(r)}, {v(gt2+k)}")
        for k, r in enumerate(rs4): A(f"v_add_f32 {v(r)}, {v(r)}, {v(gt2+k)}")
        for k, r in enumerate(rs4): A(f"v_mov_b32 {v(gt2+k)}, {v(r)}")
        for k, r in enumerate(rs4): A(f"v_permlane32_swap_b32 {v(r)}, {v(gt2+k)}")
        for k, r in enumerate(rs4): A(f"v_add_f32 {v(r)}, {v(r)}, {v(gt2+k)}")
        for x in [f"v_cmp_eq_u32 vcc, 1, {v(vq)}",
           f"v_mov_b32 {v(vt[4])}, 0x7fc00000",
           f"s_lshl1_add_u32 {s(sT1)}, {s(sRB)}, {s(sTH)}",
           f"v_cndmask_b32 {v(vt[2])}, {v(st1[0])}, {v(st1[1])}, vcc",
           f"v_cndmask_b32 {v(vt[3])}, {v(st2[0])}, {v(st2[1])}, vcc",
           f"v_cndmask_b32 {v(vt[0])}, {v(vtt[0])}, {v(vtt[1])}, vcc",
           f"v_cmp_eq_u32 vcc, -1, {v(vt[2])}",
           f"s_lshl_b32 {s(sT1)}, {s(sT1)}, 12",
           f"v_cndmask_b32 {v(vt[2])}, {v(vt[2])}, {v(vt[4])}, vcc",
           f"v_cmp_eq_u32 vcc, -1, {v(vt[3])}",
           f"s_add_u32 {s(sT1)}, {s(sT1)}, {WS_STAT}",
           f"v_cndmask_b32 {v(vt[3])}, {v(vt[3])}, {v(vt[4])}, vcc",
           f"s_lshl1_add_u32 {s(sT2)}, {s(sCC)}, {s(sFH)}",
           f"s_lshl_b32 {s(sT2)}, {s(sT2)}, 8",
           f"s_add_u32 {s(sT2)}, {s(sT2)}, {s(sT1)}",
           f"v_and_b32 {v(vt[0])}, 31, {v(vt[0])}",
           f"v_lshl_add_u32 {v(vt[0])}, {v(vt[0])}, 3, {s(sT2)}",
           "s_mov_b32 exec_hi, 0",
           f"global_store_dwordx2 {v(vt[0])}, {v(vt[2],2)}, s[4:5] sc0 sc1",
           "s_mov_b32 exec_hi, -1"]: A(x)
        for tl, (wf, hf) in enumerate(TILES):
            A(f"ds_write_b64 {v(vLx[hf])}, {v(z2p[tl],2)} offset:{wf*32}")
    def hookZ(st):
        if st == 7: z2_part1()
    consumer_full(A, NSTZ, readsZ, mfmasZ, hook=hookZ)
    A("s_barrier")
    ST.stamp()
    vLa = [vH[0][0], vH[1][0]]; vL4 = vH[0][1]
    for hf in range(2):
        A(f"v_mul_u32_u24 {v(vLa[hf])}, 224, {v(vtt[hf])}")
        A(f"v_lshl_add_u32 {v(vLa[hf])}, {v(vq)}, 3, {v(vLa[hf])}")
        A(f"v_add_u32 {v(vLa[hf])}, {ZT}, {v(vLa[hf])}")
    A(f"v_add_u32 {v(vL4)}, 96, {v(vLa[0])}")
    A(f"s_lshl_b32 {s(sT0)}, {s(sFH)}, 7")
    for hf in range(2): A(f"v_add_u32 {v(vLa[hf])}, {s(sT0)}, {v(vLa[hf])}")
    gt = FW[0][0][0]
    for grp in ([0, 1, 2, 3], [4, 5, 6]):
        for x in gelu_pk_multi([acc[1][tl] for tl in grp], gt, vC): A(x)
        for tl in grp:
            wf, hf = TILES[tl]; ac = acc[1][tl]
            for h in range(2): A(f"v_cvt_pk_bf16_f32 {v(ac+h)}, {v(ac+2*h)}, {v(ac+2*h+1)}")
            if wf < 3: A(f"ds_write_b64 {v(vLa[hf])}, {v(ac,2)} offset:{wf*32}")
            else: A(f"ds_write_b64 {v(vL4)}, {v(ac,2)}")
    nvmax[0] = max(nvmax[0], R.hi)
    R = RegAlloc(5)
    vA = R.alloc(); vB = [R.alloc() for _ in range(2)]
    cA = R.alloc(); cB = [R.alloc() for _ in range(2)]
    vtb = R.alloc(8, 4); vt = [vtb + k for k in range(8)]
    accg = [[R.alloc(4) for _ in range(2)] for _ in range(7)]
    FA = [[R.alloc(4) for _ in range(7)] for _ in range(2)]
    FB = [[R.alloc(4) for _ in range(2)] for _ in range(2)]
    vb = R.alloc(); vtw = R.alloc()
    vxw = R.alloc(); vxr = R.alloc(); vz1 = R.alloc(); vz = R.alloc(4); vrb = R.alloc()
    A("s_waitcnt lgkmcnt(0)")
    A(f"v_lshl_add_u32 {v(vtw)}, {s(sW)}, 4, {v(vi)}")
    A(f"v_lshl_add_u32 {v(vt[0])}, {s(sRB)}, 6, {v(vtw)}")
    A(f"v_lshlrev_b32 {v(vt[0])}, 1, {v(vt[0])}")
    A(f"global_load_ushort {v(vb)}, {v(vt[0])}, s[36:37]")
    A(f"s_and_b32 {s(sT0)}, {s(sW)}, 1")
    A(f"s_lshl_b32 {s(sT0)}, {s(sT0)}, 2")
    A(f"v_add_u32 {v(vt[4])}, {s(sT0)}, {v(vq)}")
    A(f"v_and_b32 {v(vt[2])}, 7, {v(vi)}")
    A(f"v_xor_b32 {v(vt[1])}, {v(vt[4])}, {v(vt[2])}")
    A(f"v_lshlrev_b32 {v(vt[1])}, 4, {v(vt[1])}")
    A(f"v_lshl_add_u32 {v(vA)}, {v(vi)}, 7, {v(vt[1])}")
    A(f"v_add_u32 {v(vt[1])}, {B_OFF}, {v(vt[1])}")
    A(f"v_lshl_add_u32 {v(vB[0])}, {v(vtw)}, 7, {v(vt[1])}")
    A(f"v_xor_b32 {v(vt[3])}, 16, {v(vtw)}")
    A(f"v_lshl_add_u32 {v(vB[1])}, {v(vt[3])}, 7, {v(vt[1])}")
    A(f"v_and_b32 {v(vt[0])}, 63, v0")
    A(f"s_mul_i32 {s(sT0)}, {s(sW)}, 7168")
    A(f"s_add_u32 {s(sT0)}, {s(sT0)}, {GX}")
    A(f"v_lshl_add_u32 {v(vxw)}, {v(vt[0])}, 4, {s(sT0)}")
    A(f"s_xor_b32 {s(sT1)}, {s(sW)}, 1")
    A(f"s_mul_i32 {s(sT1)}, {s(sT1)}, 7168")
    A(f"s_add_u32 {s(sT1)}, {s(sT1)}, {GX}")
    A(f"v_lshl_add_u32 {v(vxr)}, {v(vt[0])}, 4, {s(sT1)}")
    A(f"v_mul_u32_u24 {v(vz1)}, 224, {v(vtw)}")
    A(f"v_lshl_add_u32 {v(vz1)}, {v(vq)}, 3, {v(vz1)}")
    A(f"v_add_u32 {v(vz1)}, {ZT}, {v(vz1)}")
    for j in range(4):
        A(f"v_add_u32 {v(vt[4])}, {64*j}, {v(vt[0])}")
        div14(A, vt[5], vt[6], vt[4], vt[7])
        A(f"v_mul_u32_u24 {v(vt[5])}, 1792, {v(vt[5])}")
        A(f"v_lshl_add_u32 {v(vz+j)}, {v(vt[6])}, 4, {v(vt[5])}")
    A(f"s_lshl2_add_u32 {s(sT0)}, {s(sRB)}, {s(sW)}")
    A(f"s_mul_i32 {s(sT0)}, {s(sT0)}, {16*1792}")
    A(f"s_mul_i32 {s(sT1)}, {s(sCC)}, 224")
    A(f"s_add_u32 {s(sT0)}, {s(sT0)}, {s(sT1)}")
    A(f"s_add_u32 {s(sT0)}, {s(sT0)}, {WS_P0}")
    for j in range(4): A(f"v_add_u32 {v(vz+j)}, {s(sT0)}, {v(vz+j)}")
    A(f"s_mul_i32 {s(sT0)}, {s(sW)}, {16*224}")
    A(f"s_add_u32 {s(sT0)}, {s(sT0)}, {ZT}")
    A(f"v_lshl_add_u32 {v(vrb)}, {v(vt[0])}, 4, {s(sT0)}")
    A(f"s_mov_b32 {s(sSlot)}, 0")
    A(f"s_mov_b32 {s(sI)}, 0")
    def rdsG(buf, a_, b_):
        return [f"ds_read_b128 {v(FB[buf][nb],4)}, {v(b_[nb])}" for nb in range(2)] + \
               [f"ds_read_b128 {v(FA[buf][fa],4)}, {v(a_)} offset:{fa*2048}" for fa in range(7)]
    def mmsG(buf, first=False):
        o = []
        for fa in range(7):
            for nb in range(2):
                c = "0" if first else v(accg[fa][nb], 4)
                o.append(f"v_mfma_f32_16x16x32_bf16 {v(accg[fa][nb],4)}, {v(FA[buf][fa],4)}, {v(FB[buf][nb],4)}, {c}")
        return o
    def adv():
        A(f"s_add_u32 {s(sSlot)}, {s(sSlot)}, {STAGE}")
        A(f"s_cmp_ge_u32 {s(sSlot)}, {RING}")
        A(f"s_cselect_b32 {s(sSlot)}, 0, {s(sSlot)}")
        A(f"v_add_u32 {v(cA)}, {s(sSlot)}, {v(vA)}")
        for nb in range(2): A(f"v_add_u32 {v(cB[nb])}, {s(sSlot)}, {v(vB[nb])}")
    ST.stamp()
    A("s_barrier")
    A("s_barrier")
    ST.stamp()
    for r in rdsG(0, vA, vB): A(r)
    adv()
    A("s_waitcnt lgkmcnt(0)")
    A("s_barrier")
    for x in interleave2(mmsG(0, True), rdsG(1, cA, cB)): A(x)
    loop = f"{name}_gloop"
    A.label(loop)
    for buf in (1, 0):
        adv()
        A("s_waitcnt lgkmcnt(0)")
        A("s_barrier")
        for x in interleave2(mmsG(buf), rdsG(buf ^ 1, cA, cB)): A(x)
    A(f"s_add_u32 {s(sI)}, {s(sI)}, 1")
    A(f"s_cmp_lt_u32 {s(sI)}, 15")
    A(f"s_cbranch_scc1 {loop}")
    A("s_waitcnt lgkmcnt(0)")
    for x in mmsG(1): A(x)
    ST.stamp()
    for fa in range(7): A(f"ds_write_b128 {v(vxw)}, {v(accg[fa][1],4)} offset:{fa*1024}")
    A("s_waitcnt vmcnt(0) lgkmcnt(0)")
    A(f"v_lshlrev_b32 {v(vb)}, 16, {v(vb)}")
    A("s_barrier")
    for fa in range(7): A(f"ds_read_b128 {v(FA[0][fa],4)}, {v(vxr)} offset:{fa*1024}")
    zr = [FA[1][fa] for fa in range(7)]
    for fa in range(7): A(f"ds_read_b64 {v(zr[fa],2)}, {v(vz1)} offset:{fa*32}")
    A(f"v_mov_b32 {v(FB[1][0])}, {v(vb)}")
    A(f"v_mov_b32 {v(FB[1][0]+1)}, {v(vb)}")
    A("s_mov_b32 s33, 0xffff0000")
    for fa in range(7):
        ac = accg[fa][0]; pr = FA[0][fa]
        A(f"s_waitcnt lgkmcnt({13 - fa})")
        for h in (0, 2): A(pk("add", ac + h, v(ac + h, 2), v(pr + h, 2)))
        for h in (0, 2): A(pk("add", ac + h, v(ac + h, 2), v(FB[1][0], 2)))
    for fa in range(7):
        ac = accg[fa][0]; pr = FA[0][fa]; z = zr[fa]
        A(f"s_waitcnt lgkmcnt({6 - fa})")
        for h in range(2):
            A(f"v_lshlrev_b32 {v(z+2)}, 16, {v(z+h)}")
            A(f"v_and_b32 {v(z+3)}, s33, {v(z+h)}")
            A(pk("mul", ac + 2*h, v(ac + 2*h, 2), v(z + 2, 2)))
            A(f"v_cvt_pk_bf16_f32 {v(pr+h)}, {v(ac+2*h)}, {v(ac+2*h+1)}")
        A(f"ds_write_b64 {v(vz1)}, {v(pr,2)} offset:{fa*32}")
    A("s_waitcnt lgkmcnt(0)")
    ob = [FA[1][j] for j in range(4)]
    for j in range(4): A(f"ds_read_b128 {v(ob[j],4)}, {v(vrb)} offset:{j*1024}")
    for j in range(3):
        A(f"s_waitcnt lgkmcnt({3-j})")
        A(f"global_store_dwordx4 {v(vz+j)}, {v(ob[j],4)}, s[4:5] sc0 sc1")
    A("s_waitcnt lgkmcnt(0)")
    A("s_mov_b32 exec_hi, 0")
    A(f"global_store_dwordx4 {v(vz+3)}, {v(ob[3],4)}, s[4:5] sc0 sc1")
    A("s_mov_b32 exec_hi, -1")
    nvmax[0] = max(nvmax[0], R.hi)
    R = RegAlloc(5)
    vtw2 = R.alloc()
    vtb = R.alloc(8, 4); vt = [vtb + k for k in range(8)]
    vW = [[R.alloc() for _ in range(4)] for _ in range(2)]
    vP = [[R.alloc() for _ in range(2)] for _ in range(2)]
    acco = [[R.alloc(4) for _ in range(2)] for _ in range(4)]
    FWo = [[[R.alloc(4) for _ in range(4)] for _ in range(2)] for _ in range(2)]
    FP = [[[R.alloc(4) for _ in range(2)] for _ in range(2)] for _ in range(2)]
    gb = [R.alloc(4) for _ in range(4)]
    vcnt = R.alloc(2)
    A(f"s_lshl3_add_u32 {s(sT0)}, {s(sRB)}, {s(sCC)}")
    A(f"s_lshl_b32 {s(sT0)}, {s(sT0)}, 7")
    A(f"s_add_u32 {s(sT0)}, {s(sT0)}, {WS_CNT + 32768}")
    A(f"v_mov_b32 {v(vcnt)}, {JOIN + 4}")
    A(f"v_mov_b32 {v(vcnt+1)}, 1")
    A("s_waitcnt vmcnt(0)")
    ST.stamp()
    A("s_mov_b64 exec, 1")
    A(f"ds_add_rtn_u32 {v(vcnt)}, {v(vcnt)}, {v(vcnt+1)}")
    A("s_waitcnt lgkmcnt(0)")
    A(f"v_readfirstlane_b32 {s(sT1)}, {v(vcnt)}")
    A(f"v_mov_b32 {v(vcnt)}, {s(sT0)}")
    A(f"s_cmp_lg_u32 {s(sT1)}, 3")
    A(f"s_cbranch_scc1 {name}_nofl2")
    A(f"global_store_dword {v(vcnt)}, {v(vcnt+1)}, s[4:5] sc0 sc1")
    A.label(f"{name}_nofl2")
    A("s_mov_b64 exec, -1")
    A("s_barrier")
    A(f"v_lshl_add_u32 {v(vtw2)}, {s(sW)}, 4, {v(vi)}")
    A(f"s_and_b32 {s(sT2)}, {s(sW)}, 1")
    A(f"v_lshrrev_b32 {v(vt[0])}, 2, {v(vi)}")
    A(f"v_lshl_add_u32 {v(vt[0])}, {v(vq)}, 3, {v(vt[0])}")
    A(f"v_lshlrev_b32 {v(vt[0])}, 7, {v(vt[0])}")
    A(f"v_and_b32 {v(vt[1])}, 1, {v(vi)}")
    A(f"v_lshl_add_u32 {v(vt[0])}, {v(vt[1])}, 3, {v(vt[0])}")
    A(f"s_lshl_b32 {s(sT0)}, {s(sT2)}, 13")
    A(f"v_add_u32 {v(vt[0])}, {s(sT0)}, {v(vt[0])}")
    A(f"v_bfe_u32 {v(vt[1])}, {v(vi)}, 3, 1")
    A(f"v_and_b32 {v(vt[2])}, 1, {v(vq)}")
    A(f"v_lshl_or_b32 {v(vt[1])}, {v(vt[2])}, 1, {v(vt[1])}")
    A(f"v_lshlrev_b32 {v(vt[1])}, 1, {v(vt[1])}")
    A(f"v_bfe_u32 {v(vt[2])}, {v(vi)}, 1, 1")
    A(f"v_xor_b32 {v(vt[1])}, {v(vt[1])}, {v(vt[2])}")
    for dt in range(4):
        A(f"v_xor_b32 {v(vt[3])}, {2*dt}, {v(vt[1])}")
        A(f"v_lshl_add_u32 {v(vW[0][dt])}, {v(vt[3])}, 4, {v(vt[0])}")
        A(f"v_add_u32 {v(vW[1][dt])}, 65536, {v(vW[0][dt])}")
    A(f"v_and_b32 {v(vt[0])}, 7, {v(vi)}")
    A(f"v_xor_b32 {v(vt[1])}, {v(vq)}, {v(vt[0])}")
    A(f"v_lshlrev_b32 {v(vt[1])}, 4, {v(vt[1])}")
    A(f"s_add_u32 {s(sT0)}, {s(sT0)}, {OP}")
    A(f"v_add_u32 {v(vt[1])}, {s(sT0)}, {v(vt[1])}")
    A(f"v_lshl_add_u32 {v(vP[0][0])}, {v(vtw2)}, 7, {v(vt[1])}")
    A(f"v_xor_b32 {v(vP[1][0])}, 2048, {v(vP[0][0])}")
    for tl in range(2): A(f"v_xor_b32 {v(vP[tl][1])}, 64, {v(vP[tl][0])}")
    A(f"s_lshl_b32 {s(sT0)}, {s(sCC)}, 8")
    A(f"s_add_u32 {s(sT0)}, {s(sT0)}, {WS_MOD + 2560*4}")
    A(f"v_lshl_add_u32 {v(vt[0])}, {v(vq)}, 4, {s(sT0)}")
    for dt in range(4): A(f"global_load_dwordx4 {v(gb[dt],4)}, {v(vt[0])}, s[4:5] offset:{dt*64}")
    assert (OP + 2048) % 4096 == 2048 and OP % 4096 == 0
    def readsO(st, buf):
        g = st // 4; so = (st % 4) * 16384; po = (st % NSO) * PSLOT
        o = []
        for ks in range(2):
            for tl in range(2): o.append(f"ds_read_b128 {v(FP[buf][ks][tl],4)}, {v(vP[tl][ks])} offset:{po}")
            for dt in range(4):
                for p in range(2):
                    o.append(f"ds_read_b64_tr_b16 {v(FWo[buf][ks][dt]+2*p,2)}, {v(vW[g][dt])} offset:{so + ks*4096 + p*512}")
        return o
    def mfmasO(st, buf):
        o = []
        for ks in range(2):
            for dt in range(4):
                for tl in range(2):
                    c = "0" if st == 0 and ks == 0 else v(acco[dt][tl], 4)
                    o.append(f"v_mfma_f32_16x16x32_bf16 {v(acco[dt][tl],4)}, {v(FWo[buf][ks][dt],4)}, {v(FP[buf][ks][tl],4)}, {c}")
        return o
    XT = OP + ((NSTO - 3) % NSO) * PSLOT
    E_OFF = 0
    consumer_full(A, NSTO, readsO, mfmasO)
    ST.stamp()
    A(f"v_and_b32 {v(vt[0])}, 63, v0")
    A(f"s_lshl_b32 {s(sT0)}, {s(sW)}, 12")
    A(f"s_add_u32 {s(sT0)}, {s(sT0)}, {E_OFF}")
    A(f"v_lshl_add_u32 {v(vt[1])}, {v(vt[0])}, 4, {s(sT0)}")
    A(f"v_xor_b32 {v(vt[2])}, 4096, {v(vt[1])}")
    for dt in range(4): A(f"ds_write_b128 {v(vt[1])}, {v(acco[dt][1],4)} offset:{dt*1024}")
    va = [vt[4], vt[5], vt[6], vt[7]]
    A(f"v_and_b32 {v(vt[3])}, 7, {v(vi)}")
    A(f"v_lshrrev_b32 {v(vW[0][0])}, 1, {v(vq)}")
    A(f"v_xor_b32 {v(vt[3])}, {v(vt[3])}, {v(vW[0][0])}")
    A(f"v_and_b32 {v(vW[0][0])}, 1, {v(vq)}")
    A(f"v_lshlrev_b32 {v(vW[0][0])}, 3, {v(vW[0][0])}")
    A(f"v_lshl_add_u32 {v(vW[0][0])}, {v(vtw2)}, 7, {v(vW[0][0])}")
    A(f"v_add_u32 {v(vW[0][0])}, {XT}, {v(vW[0][0])}")
    for dt in range(4):
        A(f"v_xor_b32 {v(vW[0][1])}, {2*dt}, {v(vt[3])}")
        A(f"v_lshl_add_u32 {v(va[dt])}, {v(vW[0][1])}, 4, {v(vW[0][0])}")
    vrb2 = vW[1][0]; vgo = vW[1][1]
    A(f"v_lshrrev_b32 {v(vW[1][2])}, 3, {v(vt[0])}")
    A(f"v_and_b32 {v(vW[1][3])}, 7, {v(vt[0])}")
    A(f"v_xor_b32 {v(vrb2)}, {v(vW[1][2])}, {v(vW[1][3])}")
    A(f"v_lshlrev_b32 {v(vrb2)}, 4, {v(vrb2)}")
    A(f"v_lshl_add_u32 {v(vrb2)}, {v(vW[1][2])}, 7, {v(vrb2)}")
    A(f"s_lshl_b32 {s(sT0)}, {s(sW)}, 11")
    A(f"s_add_u32 {s(sT0)}, {s(sT0)}, {XT}")
    A(f"v_add_u32 {v(vrb2)}, {s(sT0)}, {v(vrb2)}")
    A(f"v_lshlrev_b32 {v(vgo)}, 10, {v(vW[1][2])}")
    A(f"v_lshl_add_u32 {v(vgo)}, {v(vW[1][3])}, 4, {v(vgo)}")
    A(f"s_lshl2_add_u32 {s(sT0)}, {s(sRB)}, {s(sW)}")
    A(f"s_lshl_b32 {s(sT0)}, {s(sT0)}, 14")
    A(f"s_lshl_b32 {s(sT1)}, {s(sCC)}, 7")
    A(f"s_add_u32 {s(sT0)}, {s(sT0)}, {s(sT1)}")
    A(f"v_add_u32 {v(vgo)}, {s(sT0)}, {v(vgo)}")
    A("s_waitcnt vmcnt(0) lgkmcnt(0)")
    A("s_barrier")
    for dt in range(4): A(f"ds_read_b128 {v(FWo[0][0][dt],4)}, {v(vt[2])} offset:{dt*1024}")
    xa = [FWo[0][1][dt] for dt in range(4)]
    for dt in range(4): A(f"ds_read_b64 {v(xa[dt],2)}, {v(va[dt])}")
    A(f"s_mov_b32 {s(sT0)}, 0xffff0000")
    for dt in range(4):
        ac = acco[dt][0]; pr = FWo[0][0][dt]; x = xa[dt]
        A(f"s_waitcnt lgkmcnt({7-dt})")
        for h in (0, 2): A(pk("add", ac + h, v(ac + h, 2), v(pr + h, 2)))
        A(f"s_waitcnt lgkmcnt({3-dt})")
        for h in range(2):
            A(f"v_lshlrev_b32 {v(x+2)}, 16, {v(x+h)}")
            A(f"v_and_b32 {v(x+3)}, {s(sT0)}, {v(x+h)}")
            A(pk("fma", pr, v(ac + 2*h, 2), v(gb[dt] + 2*h, 2), v(x + 2, 2)))
            A(f"v_cvt_pk_bf16_f32 {v(ac+h)}, {v(pr)}, {v(pr+1)}")
        A(f"ds_write_b64 {v(va[dt])}, {v(ac,2)}")
    A("s_waitcnt lgkmcnt(0)")
    ob = [FP[0][0][0], FP[0][0][1]]
    for u in range(2): A(f"ds_read_b128 {v(ob[u],4)}, {v(vrb2)} offset:{u*1024}")
    A("s_waitcnt lgkmcnt(1)")
    A(f"global_store_dwordx4 {v(vgo)}, {v(ob[0],4)}, s[38:39]")
    A(f"v_add_u32 {v(vgo)}, 8192, {v(vgo)}")
    A("s_waitcnt lgkmcnt(0)")
    A(f"global_store_dwordx4 {v(vgo)}, {v(ob[1],4)}, s[38:39]")
    if stamps:
        ST.stamp(); ST.flush(4, vt[4])
    A("s_endpgm")
    nvmax[0] = max(nvmax[0], R.hi)
    A.label(f"{name}_loader")
    STL = Stamps(A, on=stamps, kidx=2, base=70)
    R = RegAlloc(5)
    voW = [R.alloc() for _ in range(4)]; voH = [R.alloc() for _ in range(2)]
    vl = R.alloc(); t0 = R.alloc(); t1 = R.alloc(); t2 = R.alloc(); t3 = R.alloc()
    vtb = R.alloc(8, 4); vt = [vtb + k for k in range(8)]
    za = [R.alloc(4) for _ in range(4)]
    z2p = [R.alloc(2) for _ in range(7)]
    st1 = [R.alloc(2) for _ in range(2)]
    pol = [R.alloc(4) for _ in range(4)]
    vrow = [R.alloc() for _ in range(2)]; vLa = [R.alloc() for _ in range(2)]
    vo = [R.alloc() for _ in range(6)]
    vcn = R.alloc(2)
    sLw, sWk, sHk, sLW, sLH = 29, 30, 31, 32, 33
    A("s_mov_b32 s10, %d" % (512 * WROW)); A("s_mov_b32 s11, 0x20000")
    A("s_mov_b32 s6, %d" % (32 * MB)); A("s_mov_b32 s7, 0x20000")
    A(f"s_sub_u32 {s(sLw)}, {s(sW)}, 4")
    A(f"v_and_b32 {v(vl)}, 63, v0")
    div14(A, t0, t1, vl, t2)
    A(f"v_mul_u32_u24 {v(t0)}, {WROW}, {v(t0)}")
    A(f"v_lshl_add_u32 {v(t0)}, {v(t1)}, 4, {v(t0)}")
    A(f"s_mul_i32 {s(sT0)}, {s(sLw)}, {16*WROW}")
    A(f"v_add_u32 {v(voW[0])}, {s(sT0)}, {v(t0)}")
    for g in range(1, 4): A(f"v_add_u32 {v(voW[g])}, {g*(4*WROW - GS)}, {v(voW[0])}")
    A(f"v_lshrrev_b32 {v(t0)}, 3, {v(vl)}")
    A(f"v_and_b32 {v(t1)}, 7, {v(vl)}")
    A(f"v_xor_b32 {v(t1)}, {v(t1)}, {v(t0)}")
    A(f"v_lshlrev_b32 {v(t1)}, 4, {v(t1)}")
    A(f"v_lshl_add_u32 {v(t0)}, {v(t0)}, 10, {v(t1)}")
    A(f"s_lshl_b32 {s(sT0)}, {s(sLw)}, 14")
    A(f"v_add_u32 {v(voH[0])}, {s(sT0)}, {v(t0)}")
    A(f"v_add_u32 {v(voH[1])}, {8192-1024}, {v(voH[0])}")
    A(f"s_mul_i32 {s(sWk)}, {s(sCC)}, 224")
    A(f"s_lshl_b32 {s(sHk)}, {s(sRB)}, 16")
    A(f"s_add_u32 {s(sHk)}, {s(sHk)}, {WS_H2}")
    A(f"s_mul_i32 {s(sLW)}, {s(sLw)}, {4*GS}")
    A(f"s_lshl_b32 {s(sLH)}, {s(sLw)}, 11")
    A("s_waitcnt lgkmcnt(0)")
    def issueZ(st):
        half, kc = st >> 3, st & 7; slot = st % NSZ
        A(f"s_add_u32 m0, {s(sLW)}, {W_OFF + slot*SLOT}")
        A(f"s_add_u32 {s(sT0)}, {s(sWk)}, {kc*64*WROW + (1792 if half == 0 else 0)}")
        A("s_mov_b32 exec_hi, 0x00ffffff")
        for g in range(4):
            A(f"buffer_load_dwordx4 {v(voW[g])}, s[8:11], {s(sT0)} offen offset:{g*GS} lds")
        A("s_mov_b32 exec_hi, -1")
        if half == 0:
            A(f"s_add_u32 m0, {s(sLH)}, {kc*8192}")
            A(f"s_add_u32 {s(sT0)}, {s(sHk)}, {kc*128}")
            for j in range(2):
                A(f"buffer_load_dwordx4 {v(voH[j])}, s[4:7], {s(sT0)} offen offset:{j*1024} lds")
    for st in range(NSZ): issueZ(st)
    A(f"v_lshrrev_b32 {v(t0)}, 3, {v(vl)}")
    A(f"v_lshl_add_u32 {v(t0)}, {v(t0)}, 12, {v(t1)}")
    sL1, sL2, sK1 = 40, 41, 42
    SR1, SR2 = 44, 48
    A(f"s_lshl_b32 {s(sT0)}, {s(sLw)}, 3")
    A(f"s_mov_b32 {s(sT1)}, 0x060c0600")
    A(f"s_lshr_b32 {s(sT1)}, {s(sT1)}, {s(sT0)}")
    A(f"s_and_b32 {s(sT1)}, {s(sT1)}, 0xff")
    A(f"s_mov_b32 {s(sT2)}, 0x03000903")
    A(f"s_lshr_b32 {s(sT2)}, {s(sT2)}, {s(sT0)}")
    A(f"s_and_b32 {s(sT2)}, {s(sT2)}, 0xff")
    STEP = 8 * 4096 - 1024
    A(f"s_lshl_b32 {s(sT0)}, {s(sT1)}, 15")
    A(f"v_add_u32 {v(vo[0])}, {s(sT0)}, {v(t0)}")
    A(f"s_lshl_b32 {s(sT0)}, {s(sT2)}, 15")
    A(f"v_add_u32 {v(vo[3])}, {s(sT0)}, {v(t0)}")
    for k in (1, 2):
        A(f"v_add_u32 {v(vo[k])}, {k*STEP}, {v(vo[0])}")
        A(f"v_add_u32 {v(vo[3+k])}, {k*STEP}, {v(vo[3])}")
    A(f"s_lshl_b32 {s(sL1)}, {s(sT1)}, 10")
    A(f"s_lshl_b32 {s(sL2)}, {s(sT2)}, 10")
    A(f"s_cmp_eq_u32 {s(sLw)}, 3")
    A(f"s_cselect_b32 {s(sT0)}, {B_OFF}, 0")
    A(f"s_add_u32 {s(sL1)}, {s(sL1)}, {s(sT0)}")
    A(f"s_cmp_ge_u32 {s(sLw)}, 2")
    A(f"s_cselect_b32 {s(sT0)}, {B_OFF}, 0")
    A(f"s_add_u32 {s(sL2)}, {s(sL2)}, {s(sT0)}")
    A(f"s_mul_i32 {s(sT0)}, {s(sCC)}, {112*4096}")
    A(f"s_add_u32 {s(sT0)}, {s(sT0)}, {WS_Z2T}")
    A(f"s_add_u32 s52, s4, {s(sT0)}")
    A(f"s_addc_u32 s53, s5, 0")
    A(f"s_lshl_b32 {s(sT0)}, {s(sRB)}, 18")
    A(f"s_add_u32 s54, s12, {s(sT0)}")
    A(f"s_addc_u32 s55, s13, 0")
    A(f"s_cmp_eq_u32 {s(sLw)}, 3")
    A(f"s_cselect_b32 {s(SR1)}, s54, s52")
    A(f"s_cselect_b32 {s(SR1+1)}, s55, s53")
    A(f"s_mov_b32 {s(SR1+2)}, {112*4096}")
    A(f"s_mov_b32 {s(SR1+3)}, 0x20000")
    A(f"s_cmp_ge_u32 {s(sLw)}, 2")
    A(f"s_cselect_b32 {s(SR2)}, s54, s52")
    A(f"s_cselect_b32 {s(SR2+1)}, s55, s53")
    A(f"s_mov_b32 {s(SR2+2)}, {112*4096}")
    A(f"s_mov_b32 {s(SR2+3)}, 0x20000")
    cntZ = lambda st: 6 if st < 8 else 4
    issued = NSZ
    for i in range(NSTZ):
        out = sum(cntZ(j) for j in range(i + 1, issued))
        A(f"s_waitcnt vmcnt({out})")
        A("s_barrier")
        if i >= 1 and issued < NSTZ:
            issueZ(issued); issued += 1
    A(f"s_lshl1_add_u32 {s(sT1)}, {s(sRB)}, {s(sTH)}")
    A(f"s_lshl_b32 {s(sT1)}, {s(sT1)}, 12")
    A(f"s_add_u32 {s(sT1)}, {s(sT1)}, {WS_STAT}")
    for hf in range(2):
        A(f"v_and_b32 {v(vrow[hf])}, 31, {v(vtt[hf])}")
        A(f"v_lshl_add_u32 {v(vrow[hf])}, {v(vrow[hf])}, 3, {s(sT1)}")
        A(f"v_lshl_add_u32 {v(vrow[hf])}, {v(vq)}, 10, {v(vrow[hf])}")
    A(f"s_mul_i32 {s(sT0)}, {s(sLw)}, {XS}")
    A(f"s_add_u32 {s(sT0)}, {s(sT0)}, {X_OFF}")
    for hf in range(2):
        A(f"v_and_b32 {v(vLa[hf])}, 31, {v(vtt[hf])}")
        A(f"v_mul_u32_u24 {v(vLa[hf])}, 144, {v(vLa[hf])}")
        A(f"v_lshl_add_u32 {v(vLa[hf])}, {v(vq)}, 3, {v(vLa[hf])}")
        A(f"v_add_u32 {v(vLa[hf])}, {s(sT0)}, {v(vLa[hf])}")
    vtr = voH[0]; vgz = voH[1]; vtr3 = voW[0]; vgz3 = voW[1]
    A(f"v_lshrrev_b32 {v(t0)}, 2, {v(vi)}")
    A(f"v_lshl_add_u32 {v(t0)}, {v(vq)}, 3, {v(t0)}")
    A(f"v_mul_u32_u24 {v(vtr)}, 144, {v(t0)}")
    A(f"v_and_b32 {v(t1)}, 3, {v(vi)}")
    A(f"v_lshl_add_u32 {v(vtr)}, {v(t1)}, 3, {v(vtr)}")
    A(f"v_add_u32 {v(vtr)}, {s(sT0)}, {v(vtr)}")
    A(f"s_mul_i32 {s(sT1)}, {s(sFH)}, {16*144}")
    A(f"s_add_u32 {s(sT1)}, {s(sT1)}, 96")
    A(f"v_add_u32 {v(vtr3)}, {s(sT1)}, {v(vtr)}")
    A(f"v_lshlrev_b32 {v(vgz)}, 12, {v(vi)}")
    A(f"v_lshl_add_u32 {v(vgz)}, {v(vq)}, 4, {v(vgz)}")
    A(f"s_mul_i32 {s(sT1)}, {s(sCC)}, {112*4096}")
    A(f"s_lshl_b32 {s(sT2)}, {s(sRB)}, 7")
    A(f"s_add_u32 {s(sT1)}, {s(sT1)}, {s(sT2)}")
    A(f"s_lshl_b32 {s(sT2)}, {s(sTH)}, 6")
    A(f"s_add_u32 {s(sT1)}, {s(sT1)}, {s(sT2)}")
    A(f"s_add_u32 {s(sT1)}, {s(sT1)}, {WS_Z2T}")
    A(f"s_lshl_b32 {s(sT2)}, {s(sFH)}, 5")
    A(f"s_add_u32 {s(sT2)}, {s(sT2)}, {48*4096}")
    A(f"s_add_u32 {s(sT2)}, {s(sT2)}, {s(sT1)}")
    A(f"v_add_u32 {v(vgz3)}, {s(sT2)}, {v(vgz)}")
    A(f"s_lshl_b32 {s(sT2)}, {s(sFH)}, 18")
    A(f"s_add_u32 {s(sT1)}, {s(sT1)}, {s(sT2)}")
    A(f"v_add_u32 {v(vgz)}, {s(sT1)}, {v(vgz)}")
    for tl, (wf, hf) in enumerate(TILES):
        A(f"ds_read_b64 {v(z2p[tl],2)}, {v(vLa[hf])} offset:{wf*32}")
    A("s_barrier")
    lskip = f"{name}_nob"
    A(f"s_cmp_lt_u32 {s(sLw)}, 2")
    A(f"s_cbranch_scc1 {lskip}")
    A(f"s_mov_b32 {s(sK1)}, 0")
    for st in range(NSG):
        A(f"s_add_u32 m0, {s(sL2)}, {st*STAGE}")
        if st: A(f"s_add_u32 {s(sK1)}, {s(sK1)}, 128")
        for k in range(3): A(f"buffer_load_dwordx4 {v(vo[3+k])}, {s(SR2,4)}, {s(sK1)} offen offset:{k*1024} lds")
    A.label(lskip)
    if stamps: A("s_mov_b32 s20, 0"); STL.n = 0; STL.stamp()
    A(f"s_mov_b32 {s(sK)}, 0")
    A.label(f"{name}_poll")
    for hf in range(2):
        for u in range(4):
            A(f"global_load_dwordx2 {v(pol[hf*2+(u>>1)]+2*(u&1),2)}, {v(vrow[hf])}, s[4:5] offset:{u*256} sc1")
    A("s_waitcnt vmcnt(0)")
    A(f"v_max3_u32 {v(vt[0])}, {v(pol[0])}, {v(pol[0]+1)}, {v(pol[0]+2)}")
    rest = [pol[0]+3] + [pol[b_]+r for b_ in range(1, 4) for r in range(4)]
    for k in range(0, len(rest) - 1, 2): A(f"v_max3_u32 {v(vt[0])}, {v(vt[0])}, {v(rest[k])}, {v(rest[k+1])}")
    A(f"v_max_u32 {v(vt[0])}, {v(vt[0])}, {v(rest[-1])}")
    A(f"v_cmp_eq_u32 vcc, -1, {v(vt[0])}")
    A(f"s_add_u32 {s(sK)}, {s(sK)}, 1")
    A(f"s_cmp_eq_u64 vcc, 0")
    A(f"s_cbranch_scc1 {name}_polled")
    A("s_sleep 2")
    A(f"s_cmp_lt_u32 {s(sK)}, {SPIN}")
    A(f"s_cbranch_scc1 {name}_poll")
    A.label(f"{name}_polled")
    mean = [vt[0], vt[1]]; rstd = [vt[2], vt[3]]
    for hf in range(2):
        p0, p1 = pol[hf*2], pol[hf*2+1]
        A(pk("add", p0, v(p0, 2), v(p0+2, 2)))
        A(pk("add", p1, v(p1, 2), v(p1+2, 2)))
        A(pk("add", p0, v(p0, 2), v(p1, 2)))
        A(f"v_mov_b32 {v(mean[hf])}, {v(p0)}")
        A(f"v_mov_b32 {v(rstd[hf])}, {v(p0+1)}")
    xor16_32_sum(A, mean + rstd, vt[6])
    for hf in range(2):
        A(f"v_mul_f32 {v(mean[hf])}, {fhex(1.0/896)}, {v(mean[hf])}")
        A(f"v_mul_f32 {v(rstd[hf])}, {fhex(1.0/896)}, {v(rstd[hf])}")
        A(f"v_fma_f32 {v(rstd[hf])}, -{v(mean[hf])}, {v(mean[hf])}, {v(rstd[hf])}")
        A(f"v_max_f32 {v(rstd[hf])}, 0, {v(rstd[hf])}")
        A(f"v_add_f32 {v(rstd[hf])}, 0x3727c5ac, {v(rstd[hf])}")
        A(f"v_rsq_f32 {v(rstd[hf])}, {v(rstd[hf])}")
        A(f"v_mul_f32 {v(mean[hf])}, {v(mean[hf])}, {v(rstd[hf])}")
    for hf in range(2):
        A(f"v_mov_b32 {v(st1[hf])}, {v(rstd[hf])}")
        A(f"v_sub_f32 {v(st1[hf]+1)}, 0, {v(mean[hf])}")
    A(f"s_mov_b32 {s(sT0)}, 0xffff0000")
    A("s_waitcnt lgkmcnt(0)")
    for tl, (wf, hf) in enumerate(TILES):
        z = z2p[tl]
        for h in range(2):
            A(f"v_lshlrev_b32 {v(vt[4])}, 16, {v(z+h)}")
            A(f"v_and_b32 {v(vt[5])}, {s(sT0)}, {v(z+h)}")
            A(pk("fma", vt[4], v(vt[4], 2), v(st1[hf], 2), v(st1[hf], 2), "op_sel:[0,0,1] op_sel_hi:[1,0,1]"))
            A(f"v_cvt_pk_bf16_f32 {v(z+h)}, {v(vt[4])}, {v(vt[5])}")
        A(f"ds_write_b64 {v(vLa[hf])}, {v(z,2)} offset:{wf*32}")
    A("s_waitcnt lgkmcnt(0)")
    for wf in range(3):
        for p in range(2): A(f"ds_read_b64_tr_b16 {v(za[wf]+2*p,2)}, {v(vtr)} offset:{wf*32 + 4*p*144}")
    for p in range(2): A(f"ds_read_b64_tr_b16 {v(za[3]+2*p,2)}, {v(vtr3)} offset:{4*p*144}")
    for wf in range(3):
        A(f"s_waitcnt lgkmcnt({6-2*wf})")
        A(f"global_store_dwordx4 {v(vgz)}, {v(za[wf],4)}, s[4:5] sc0 sc1")
        if wf < 2: A(f"v_add_u32 {v(vgz)}, {16*4096}, {v(vgz)}")
    A("s_waitcnt lgkmcnt(0)")
    A("s_mov_b32 exec_hi, 0")
    A(f"global_store_dwordx4 {v(vgz3)}, {v(za[3],4)}, s[4:5] sc0 sc1")
    A("s_mov_b32 exec_hi, -1")
    def arrive(join_off, s_off, tag):
        A(f"v_mov_b32 {v(vcn)}, {join_off}")
        A(f"v_mov_b32 {v(vcn+1)}, 1")
        A("s_waitcnt vmcnt(0)")
        A("s_mov_b64 exec, 1")
        A(f"ds_add_rtn_u32 {v(vcn)}, {v(vcn)}, {v(vcn+1)}")
        A("s_waitcnt lgkmcnt(0)")
        A(f"v_readfirstlane_b32 {s(sT1)}, {v(vcn)}")
        A(f"v_mov_b32 {v(vcn)}, {s(s_off)}")
        A(f"s_cmp_lg_u32 {s(sT1)}, 3")
        A(f"s_cbranch_scc1 {name}_nofl{tag}")
        A(f"global_store_dword {v(vcn)}, {v(vcn+1)}, s[4:5] sc0 sc1")
        A.label(f"{name}_nofl{tag}")
        A("s_mov_b64 exec, -1")
    def wait_flags(tag, s_base, nflags):
        dn = f"{name}_d{tag}"; lp = f"{name}_w{tag}"
        A(f"s_cmp_lg_u32 {s(sLw)}, 0")
        A(f"s_cbranch_scc1 {dn}")
        A(f"v_and_b32 {v(vcn)}, {nflags-1}, {v(vl)}")
        A(f"v_lshl_add_u32 {v(vcn)}, {v(vcn)}, 7, {s(s_base)}")
        A(f"s_mov_b32 {s(sK)}, 0")
        A.label(lp)
        A(f"global_load_dword {v(vcn+1)}, {v(vcn)}, s[4:5] sc1")
        A("s_waitcnt vmcnt(0)")
        A(f"v_cmp_eq_u32 vcc, 0, {v(vcn+1)}")
        A(f"s_add_u32 {s(sK)}, {s(sK)}, 1")
        A(f"s_cmp_eq_u64 vcc, 0")
        A(f"s_cbranch_scc1 {dn}")
        A("s_sleep 1")
        A(f"s_cmp_lt_u32 {s(sK)}, {SPIN}")
        A(f"s_cbranch_scc1 {lp}")
        A.label(dn)
        A("s_barrier")
    A(f"s_lshl_b32 {s(sT0)}, {s(sCC)}, 5")
    A(f"s_add_u32 {s(sT0)}, {s(sT0)}, {s(sRB)}")
    A(f"s_lshl_b32 {s(sT0)}, {s(sT0)}, 7")
    A(f"s_add_u32 {s(sT0)}, {s(sT0)}, {WS_CNT}")
    arrive(JOIN, sT0, "1")
    if stamps: STL.stamp()
    A(f"s_lshl_b32 {s(sT2)}, {s(sCC)}, 12")
    A(f"s_add_u32 {s(sT2)}, {s(sT2)}, {WS_CNT}")
    wait_flags("c", sT2, 32)
    if stamps: STL.stamp()
    A(f"s_cmp_ge_u32 {s(sLw)}, 2")
    A(f"s_cbranch_scc1 {name}_ldY")
    def pathG(tag, n1, early2):
        n = n1 + 3
        q = []
        def need(x): return len(q) - 1 - max(k for k, y in enumerate(q) if y == x)
        A(f"s_mov_b32 {s(sK1)}, 0")
        for st in range(NSG):
            A(f"s_add_u32 m0, {s(sL1)}, {st*STAGE}")
            if st: A(f"s_add_u32 {s(sK1)}, {s(sK1)}, 128")
            for k in range(n1): A(f"buffer_load_dwordx4 {v(vo[k])}, {s(SR1,4)}, {s(sK1)} offen offset:{k*1024} lds"); q.append(st)
            if not early2:
                A(f"s_add_u32 m0, {s(sL2)}, {st*STAGE}")
                for k in range(3): A(f"buffer_load_dwordx4 {v(vo[3+k])}, {s(SR2,4)}, {s(sK1)} offen offset:{k*1024} lds"); q.append(st)
        A(f"s_add_u32 {s(sK1)}, {s(sK1)}, 128")
        A(f"s_mov_b32 {s(sSlot)}, 0")
        def issue(st):
            A(f"s_add_u32 m0, {s(sSlot)}, {s(sL1)}")
            A(f"s_add_u32 {s(sT0)}, {s(sSlot)}, {s(sL2)}")
            for k in range(n1): A(f"buffer_load_dwordx4 {v(vo[k])}, {s(SR1,4)}, {s(sK1)} offen offset:{k*1024} lds"); q.append(st)
            A(f"s_mov_b32 m0, {s(sT0)}")
            A(f"s_add_u32 {s(sSlot)}, {s(sSlot)}, {STAGE}")
            for k in range(3): A(f"buffer_load_dwordx4 {v(vo[3+k])}, {s(SR2,4)}, {s(sK1)} offen offset:{k*1024} lds"); q.append(st)
            A(f"s_add_u32 {s(sK1)}, {s(sK1)}, 128")
            A(f"s_cmp_ge_u32 {s(sSlot)}, {RING}")
            A(f"s_cselect_b32 {s(sSlot)}, 0, {s(sSlot)}")
        A(f"s_waitcnt vmcnt({need(0)})")
        A("s_barrier")
        H = NSG + 1
        for i in range(1, H):
            A(f"s_waitcnt vmcnt({need(i)})"); A("s_barrier"); issue(i - 1 + NSG)
        nsteady = NSTG - NSG
        A(f"s_mov_b32 {s(sI)}, {H}")
        lp = f"{name}_gl{tag}"
        A.label(lp)
        wv = need(H)
        A(f"s_waitcnt vmcnt({wv})"); A("s_barrier"); issue(H - 1 + NSG)
        A(f"s_add_u32 {s(sI)}, {s(sI)}, 1")
        A(f"s_cmp_le_u32 {s(sI)}, {nsteady}")
        A(f"s_cbranch_scc1 {lp}")
        for i in range(H + 1, nsteady + 1):
            assert need(i) == wv
            for _ in range(n): q.append(i - 1 + NSG)
        for i in range(nsteady + 1, NSTG):
            A(f"s_waitcnt vmcnt({need(i)})"); A("s_barrier")
        A(f"s_branch {name}_gdone")
    pathG("X", 3, False)
    A.label(f"{name}_ldY")
    pathG("Y", 2, True)
    A.label(f"{name}_gdone")
    voWo = voW; voP = [vo[0], vo[1], vo[2], vo[3]]; voX = [vo[4], vo[5]]
    A(f"v_lshrrev_b32 {v(t0)}, 3, {v(vl)}")
    A(f"v_and_b32 {v(t1)}, 7, {v(vl)}")
    A(f"v_bfe_u32 {v(t2)}, {v(vl)}, 4, 1")
    for jj in range(4):
        A(f"v_or_b32 {v(t3)}, {(jj&1)<<1}, {v(t2)}")
        A(f"v_lshlrev_b32 {v(t3)}, 1, {v(t3)}")
        A(f"v_xor_b32 {v(t3)}, {v(t3)}, {v(t1)}")
        A(f"v_lshlrev_b32 {v(t3)}, 4, {v(t3)}")
        A(f"v_lshl_add_u32 {v(voWo[jj])}, {v(t0)}, 10, {v(t3)}")
        if jj: A(f"v_add_u32 {v(voWo[jj])}, {jj*(8192-1024)}, {v(voWo[jj])}")
    A(f"v_xor_b32 {v(t1)}, {v(t1)}, {v(t0)}")
    A(f"v_lshlrev_b32 {v(t1)}, 4, {v(t1)}")
    A(f"s_and_b32 {s(sT0)}, {s(sLw)}, 1")
    A(f"s_lshl_b32 {s(sT0)}, {s(sT0)}, 5")
    A(f"v_add_u32 {v(t2)}, {s(sT0)}, {v(t0)}")
    A(f"v_mul_u32_u24 {v(voP[0])}, 1792, {v(t2)}")
    A(f"s_lshr_b32 {s(sT1)}, {s(sLw)}, 1")
    A(f"s_lshl_b32 {s(sT1)}, {s(sT1)}, 7")
    A(f"v_add3_u32 {v(voP[0])}, {v(voP[0])}, {v(t1)}, {s(sT1)}")
    for jj in range(1, 4): A(f"v_add_u32 {v(voP[jj])}, {jj*(8*1792-1024)}, {v(voP[0])}")
    A(f"s_lshl_b32 {s(sT0)}, {s(sLw)}, 4")
    A(f"v_add_u32 {v(t2)}, {s(sT0)}, {v(t0)}")
    A(f"v_lshl_add_u32 {v(voX[0])}, {v(t2)}, 10, {v(t1)}")
    A(f"v_add_u32 {v(voX[1])}, {8192-1024}, {v(voX[0])}")
    A(f"s_mov_b32 s18, {FH*D*2}"); A("s_mov_b32 s19, 0x20000")
    A(f"s_mul_i32 {s(sWk)}, {s(sLw)}, {28*8192}")
    A(f"s_lshl_b32 {s(sT0)}, {s(sCC)}, 7")
    A(f"s_add_u32 {s(sWk)}, {s(sWk)}, {s(sT0)}")
    A(f"s_mul_i32 {s(sLW)}, {s(sLw)}, {28*1024}")
    sPk, sLP, sXb = 31, 33, 40
    A(f"s_mul_i32 {s(sPk)}, {s(sRB)}, {64*1792}")
    A(f"s_add_u32 {s(sPk)}, {s(sPk)}, {WS_P0}")
    A(f"s_lshl_b32 {s(sLP)}, {s(sLw)}, 12")
    A(f"s_add_u32 {s(sLP)}, {s(sLP)}, {OP}")
    A(f"s_lshl_b32 {s(sXb)}, {s(sRB)}, 16")
    A(f"s_add_u32 {s(sXb)}, {s(sXb)}, {s(sT0)}")
    A(f"s_add_u32 {s(sXb)}, {s(sXb)}, {WS_X1}")
    A("s_barrier")
    assert 28 % 2 == 0
    for g in range(7):
        A(f"s_add_u32 m0, {s(sLW)}, {OW + g*4096}")
        A(f"s_add_u32 {s(sT0)}, {s(sWk)}, {g*32768}")
        for jj in range(4): A(f"buffer_load_dwordx4 {v(voWo[jj])}, s[16:19], {s(sT0)} offen offset:{jj*1024} lds")
    A(f"s_lshl_b32 {s(sT2)}, {s(sRB)}, 10")
    A(f"s_add_u32 {s(sT2)}, {s(sT2)}, {WS_CNT + 32768}")
    wait_flags("t", sT2, 8)
    if stamps: STL.stamp()
    def issueO(st):
        slot = st % NSO
        A(f"s_add_u32 m0, {s(sLP)}, {slot*PSLOT}")
        A(f"s_add_u32 {s(sT0)}, {s(sPk)}, {st*256}")
        for jj in range(4): A(f"buffer_load_dwordx4 {v(voP[jj])}, s[4:7], {s(sT0)} offen offset:{jj*1024} lds")
    cntO = lambda st: 4
    for st in range(NSO): issueO(st)
    issued = NSO; xq = 0
    for i in range(NSTO):
        out = sum(cntO(j) for j in range(i + 1, issued)) + xq
        A(f"s_waitcnt vmcnt({out})")
        A("s_barrier")
        if i >= 1 and issued < NSTO:
            issueO(issued); issued += 1
        if i == NSTO - 2:
            A(f"s_lshl_b32 {s(sT0)}, {s(sLw)}, 11")
            A(f"s_add_u32 m0, {s(sT0)}, {XT}")
            for jj in range(2): A(f"buffer_load_dwordx4 {v(voX[jj])}, s[4:7], {s(sXb)} offen offset:{jj*1024} lds")
            xq = 2
    A("s_waitcnt vmcnt(0)")
    A("s_barrier")
    if stamps:
        STL.stamp(); A(f"s_cmp_lg_u32 {s(sLw)}, 0"); A(f"s_cselect_b32 s20, 1, 0"); STL.flush(4, vt[0], slot=1)
    A("s_endpgm")
    nvmax[0] = max(nvmax[0], R.hi)
    A.label(f"{name}_end")
    A("s_endpgm")
    return dict(name=name, grid=NWG, block=512, lds=LDS, vgpr=nvmax[0], sgpr=96 if stamps else 60)
```

```python
from g2b import *
WS_CNT = WS_STAT + 256 * 1024
SPIN = 0x8000

def gen_km(A, name="km_kernel", stamps=False, prefetch=True, pfpos=0):
    NWG = 256
    GS = 960; SLOT = 16 * GS; W_OFF = 65536; NSZ = 4; NSTZ = 16; WROW = 3584
    X_OFF = W_OFF + NSZ * SLOT; XS = 32 * 144
    ZT = 145408
    NSG = 5; NSTG = 32; B_OFF = 14 * 1024; STAGE = 22 * 1024; RING = NSG * STAGE
    GX = 114688
    OW = 0; OP = 114688; NSO = 3; NSTO = 7; PSLOT = 16384
    LDS = 163840
    JOIN = 159744
    A.barrier_state(); A.raw(kernel_header(name))
    ST = Stamps(A, on=stamps, kidx=2)
    sW, sRB, sCC, sT0, sT1, sT2, sTH, sFH, sK, sSlot, sI = 20, 21, 22, 23, 24, 25, 26, 27, 28, 34, 35
    A(f"s_cmp_ge_u32 s2, {NWG}")
    A(f"s_cbranch_scc1 {name}_end")
    ST.stamp()
    load_ptr(A, 4, "ws"); load_ptr(A, 8, "win"); load_ptr(A, 12, "wsp"); load_ptr(A, 16, "wout"); load_ptr(A, 36, "bsp"); load_ptr(A, 38, "out")
    A(f"v_readfirstlane_b32 {s(sW)}, v0")
    A(f"s_bfe_u32 {s(sRB)}, s2, 0x20001")
    A(f"s_bfe_u32 {s(sT0)}, s2, 0x30003")
    A(f"s_lshl3_add_u32 {s(sRB)}, {s(sRB)}, {s(sT0)}")
    A(f"s_and_b32 {s(sCC)}, s2, 1")
    A(f"s_lshr_b32 {s(sT0)}, s2, 6")
    A(f"s_lshl2_add_u32 {s(sCC)}, {s(sCC)}, {s(sT0)}")
    A(f"s_lshr_b32 {s(sW)}, {s(sW)}, 6")
    A(f"s_and_b32 {s(sTH)}, {s(sW)}, 1")
    A(f"s_bfe_u32 {s(sFH)}, {s(sW)}, 0x10001")
    vq, vi = 1, 2
    vtt = [3, 4]
    A(f"v_bfe_u32 v1, v0, 4, 2")
    A(f"v_and_b32 v2, 15, v0")
    A(f"s_lshl1_add_u32 {s(sT0)}, {s(sTH)}, {s(sFH)}")
    A(f"s_xor_b32 {s(sT1)}, {s(sT0)}, 1")
    A(f"v_lshl_add_u32 {v(vtt[0])}, {s(sT0)}, 4, {v(vi)}")
    A(f"v_lshl_add_u32 {v(vtt[1])}, {s(sT1)}, 4, {v(vi)}")
    A(f"s_cmp_ge_u32 {s(sW)}, 4")
    A(f"s_cbranch_scc1 {name}_loader")
    TILES = [(0, 0), (0, 1), (1, 0), (1, 1), (2, 0), (2, 1), (3, 0)]
    nvmax = [0]
    R = RegAlloc(5)
    vC = R.alloc(2)
    vtb = R.alloc(8, 4); vt = [vtb + k for k in range(8)]
    vH = [[R.alloc() for _ in range(2)] for _ in range(2)]
    vWa = [R.alloc() for _ in range(2)]; vWb = [R.alloc() for _ in range(2)]
    vLx = [R.alloc() for _ in range(2)]
    gt2 = R.alloc(16, 4)
    vpf = 252
    z2p = [R.alloc(2) for _ in range(7)]
    st1 = [R.alloc(2) for _ in range(2)]; st2 = [R.alloc(2) for _ in range(2)]
    acc = [[R.alloc(4) for _ in range(7)] for _ in range(2)]
    FH_ = [[[R.alloc(4) for _ in range(2)] for _ in range(2)] for _ in range(2)]
    FW = [[[R.alloc(4) for _ in range(4)] for _ in range(2)] for _ in range(2)]
    A(f"v_and_b32 {v(vt[0])}, 7, {v(vi)}")
    A(f"v_xor_b32 {v(vt[1])}, {v(vq)}, {v(vt[0])}")
    A(f"v_lshlrev_b32 {v(vt[1])}, 4, {v(vt[1])}")
    for hf in range(2):
        A(f"v_lshl_add_u32 {v(vH[hf][0])}, {v(vtt[hf])}, 7, {v(vt[1])}")
        A(f"v_xor_b32 {v(vH[hf][1])}, 64, {v(vH[hf][0])}")
    A(f"v_mul_u32_u24 {v(vt[1])}, {2*GS}, {v(vq)}")
    A(f"v_lshrrev_b32 {v(vt[2])}, 2, {v(vi)}")
    A(f"v_mul_u32_u24 {v(vt[2])}, 224, {v(vt[2])}")
    A(f"v_and_b32 {v(vt[3])}, 3, {v(vi)}")
    A(f"v_lshl_add_u32 {v(vt[1])}, {v(vt[3])}, 3, {v(vt[1])}")
    A(f"v_add_u32 {v(vt[1])}, {v(vt[1])}, {v(vt[2])}")
    A(f"s_lshl_b32 {s(sT0)}, {s(sFH)}, 7")
    A(f"s_add_u32 {s(sT0)}, {s(sT0)}, {W_OFF}")
    A(f"v_add_u32 {v(vWa[0])}, {s(sT0)}, {v(vt[1])}")
    A(f"v_add_u32 {v(vWb[0])}, {W_OFF+96}, {v(vt[1])}")
    A(f"v_add_u32 {v(vWa[1])}, {3*SLOT}, {v(vWa[0])}")
    A(f"v_add_u32 {v(vWb[1])}, {3*SLOT}, {v(vWb[0])}")
    A(f"s_mul_i32 {s(sT0)}, {s(sW)}, {XS}")
    A(f"s_add_u32 {s(sT0)}, {s(sT0)}, {X_OFF}")
    for hf in range(2):
        A(f"v_and_b32 {v(vLx[hf])}, 31, {v(vtt[hf])}")
        A(f"v_mul_u32_u24 {v(vLx[hf])}, 144, {v(vLx[hf])}")
        A(f"v_lshl_add_u32 {v(vLx[hf])}, {v(vq)}, 3, {v(vLx[hf])}")
        A(f"v_add_u32 {v(vLx[hf])}, {s(sT0)}, {v(vLx[hf])}")
    for hf in range(2):
        for r in range(2):
            A(f"v_mov_b32 {v(st1[hf]+r)}, 0"); A(f"v_mov_b32 {v(st2[hf]+r)}, 0")
    A(f"v_mov_b32 {v(vC)}, {fhex(GELU_C2)}")
    A(f"v_mov_b32 {v(vC+1)}, {fhex(GELU_C1)}")
    A(f"v_mov_b32 {v(vt[0])}, {JOIN}")
    A(f"v_mov_b32 {v(vt[2])}, 0"); A(f"v_mov_b32 {v(vt[3])}, 0")
    A(f"ds_write_b64 {v(vt[0])}, {v(vt[2],2)}")
    A("s_waitcnt lgkmcnt(0)")
    def readsZ(st, buf):
        kc = st & 7; slot = st % NSZ; sg = slot // 3; so = (slot % 3) * SLOT
        o = []
        for ks in range(2):
            for hf in range(2): o.append(f"ds_read_b128 {v(FH_[buf][ks][hf],4)}, {v(vH[hf][ks])} offset:{kc*8192}")
            for wf in range(4):
                for p in range(2):
                    base = vWa[sg] if wf < 3 else vWb[sg]
                    off = so + ks * 8 * GS + p * GS + (wf * 32 if wf < 3 else 0)
                    o.append(f"ds_read_b64_tr_b16 {v(FW[buf][ks][wf]+2*p,2)}, {v(base)} offset:{off}")
        return o
    def mfmasZ(st, buf):
        h = st >> 3
        o = []
        for ks in range(2):
            for tl, (wf, hf) in enumerate(TILES):
                c = "0" if (st & 7) == 0 and ks == 0 else v(acc[h][tl], 4)
                o.append(f"v_mfma_f32_16x16x32_bf16 {v(acc[h][tl],4)}, {v(FW[buf][ks][wf],4)}, {v(FH_[buf][ks][hf],4)}, {c}")
        return o
    def z2_part1():
        A(f"s_mov_b32 {s(sT2)}, 0xffff0000")
        for grp in ([0, 1, 2, 3], [4, 5, 6]):
            for x in gelu_pk_multi([acc[0][tl] for tl in grp], gt2, vC): A(x)
            for tl in grp:
                ac = acc[0][tl]
                for h in range(2): A(f"v_cvt_pk_bf16_f32 {v(z2p[tl]+h)}, {v(ac+2*h)}, {v(ac+2*h+1)}")
            for k, tl in enumerate(grp):
                for h in range(2):
                    A(f"v_lshlrev_b32 {v(gt2+4*k+2*h)}, 16, {v(z2p[tl]+h)}")
                    A(f"v_and_b32 {v(gt2+4*k+2*h+1)}, {s(sT2)}, {v(z2p[tl]+h)}")
            for k, tl in enumerate(grp):
                hf = TILES[tl][1]
                for h in range(2):
                    A(pk("add", st1[hf], v(st1[hf], 2), v(gt2+4*k+2*h, 2)))
                    A(pk("fma", st2[hf], v(gt2+4*k+2*h, 2), v(gt2+4*k+2*h, 2), v(st2[hf], 2)))
        for hf in range(2):
            A(f"v_add_f32 {v(st1[hf])}, {v(st1[hf])}, {v(st1[hf]+1)}")
            A(f"v_add_f32 {v(st2[hf])}, {v(st2[hf])}, {v(st2[hf]+1)}")
        rs4 = (st1[0], st2[0], st1[1], st2[1])
        for k, r in enumerate(rs4): A(f"v_mov_b32 {v(gt2+k)}, {v(r)}")
        for k, r in enumerate(rs4): A(f"v_permlane16_swap_b32 {v(r)}, {v(gt2+k)}")
        for k, r in enumerate(rs4): A(f"v_add_f32 {v(r)}, {v(r)}, {v(gt2+k)}")
        for k, r in enumerate(rs4): A(f"v_mov_b32 {v(gt2+k)}, {v(r)}")
        for k, r in enumerate(rs4): A(f"v_permlane32_swap_b32 {v(r)}, {v(gt2+k)}")
        for k, r in enumerate(rs4): A(f"v_add_f32 {v(r)}, {v(r)}, {v(gt2+k)}")
        for x in [f"v_cmp_eq_u32 vcc, 1, {v(vq)}",
           f"v_mov_b32 {v(vt[4])}, 0x7fc00000",
           f"s_lshl1_add_u32 {s(sT1)}, {s(sRB)}, {s(sTH)}",
           f"v_cndmask_b32 {v(vt[2])}, {v(st1[0])}, {v(st1[1])}, vcc",
           f"v_cndmask_b32 {v(vt[3])}, {v(st2[0])}, {v(st2[1])}, vcc",
           f"v_cndmask_b32 {v(vt[0])}, {v(vtt[0])}, {v(vtt[1])}, vcc",
           f"v_cmp_eq_u32 vcc, -1, {v(vt[2])}",
           f"s_lshl_b32 {s(sT1)}, {s(sT1)}, 12",
           f"v_cndmask_b32 {v(vt[2])}, {v(vt[2])}, {v(vt[4])}, vcc",
           f"v_cmp_eq_u32 vcc, -1, {v(vt[3])}",
           f"s_add_u32 {s(sT1)}, {s(sT1)}, {WS_STAT}",
           f"v_cndmask_b32 {v(vt[3])}, {v(vt[3])}, {v(vt[4])}, vcc",
           f"s_lshl1_add_u32 {s(sT2)}, {s(sCC)}, {s(sFH)}",
           f"s_lshl_b32 {s(sT2)}, {s(sT2)}, 8",
           f"s_add_u32 {s(sT2)}, {s(sT2)}, {s(sT1)}",
           f"v_and_b32 {v(vt[0])}, 31, {v(vt[0])}",
           f"v_lshl_add_u32 {v(vt[0])}, {v(vt[0])}, 3, {s(sT2)}",
           "s_mov_b32 exec_hi, 0",
           f"global_store_dwordx2 {v(vt[0])}, {v(vt[2],2)}, s[4:5] sc0 sc1",
           "s_mov_b32 exec_hi, -1"]: A(x)
        for tl, (wf, hf) in enumerate(TILES):
            A(f"ds_write_b64 {v(vLx[hf])}, {v(z2p[tl],2)} offset:{wf*32}")
    def touches():
        A(f"v_and_b32 {v(vt[5])}, 63, v0")
        A(f"s_lshr_b32 {s(sT1)}, s2, 3")
        A(f"s_lshl2_add_u32 {s(sT1)}, {s(sT1)}, {s(sW)}")
        A(f"s_bfe_u32 {s(sT0)}, s2, 0x20001")
        A(f"s_lshl_b32 {s(sT0)}, {s(sT0)}, 21")
        A(f"s_lshl_b32 {s(sT2)}, {s(sT1)}, 14")
        A(f"s_add_u32 {s(sT0)}, {s(sT0)}, {s(sT2)}")
        A(f"v_lshl_add_u32 {v(vt[1])}, {v(vt[5])}, 7, {s(sT0)}")
        A(f"global_load_dword {v(vpf)}, {v(vt[1])}, s[12:13]")
        A(f"v_add_u32 {v(vt[1])}, 8192, {v(vt[1])}")
        A(f"global_load_dword {v(vpf+1)}, {v(vt[1])}, s[12:13]")
        lab = f"{name}_nowo"
        A(f"s_cmp_ge_u32 {s(sT1)}, 56")
        A(f"s_cbranch_scc1 {lab}")
        A(f"v_lshl_add_u32 {v(vt[1])}, {s(sT1)}, 6, {v(vt[5])}")
        A(f"v_lshrrev_b32 {v(vt[2])}, 2, {v(vt[1])}")
        A(f"v_and_b32 {v(vt[1])}, 3, {v(vt[1])}")
        A(f"v_lshlrev_b32 {v(vt[2])}, 10, {v(vt[2])}")
        A(f"v_lshl_add_u32 {v(vt[2])}, {v(vt[1])}, 7, {v(vt[2])}")
        A(f"s_and_b32 {s(sT0)}, s2, 1")
        A(f"s_lshl_b32 {s(sT0)}, {s(sT0)}, 9")
        A(f"v_add_u32 {v(vt[2])}, {s(sT0)}, {v(vt[2])}")
        A(f"global_load_dword {v(vpf+2)}, {v(vt[2])}, s[16:17]")
        A.label(lab)
    def hookZ(st):
        if st == 7:
            if prefetch and pfpos == 0: touches()
            z2_part1()
    consumer_full(A, NSTZ, readsZ, mfmasZ, hook=hookZ)
    A("s_barrier")
    if prefetch and pfpos == 1: touches()
    ST.stamp()
    vLa = [vH[0][0], vH[1][0]]; vL4 = vH[0][1]
    for hf in range(2):
        A(f"v_mul_u32_u24 {v(vLa[hf])}, 224, {v(vtt[hf])}")
        A(f"v_lshl_add_u32 {v(vLa[hf])}, {v(vq)}, 3, {v(vLa[hf])}")
        A(f"v_add_u32 {v(vLa[hf])}, {ZT}, {v(vLa[hf])}")
    A(f"v_add_u32 {v(vL4)}, 96, {v(vLa[0])}")
    A(f"s_lshl_b32 {s(sT0)}, {s(sFH)}, 7")
    for hf in range(2): A(f"v_add_u32 {v(vLa[hf])}, {s(sT0)}, {v(vLa[hf])}")
    gt = FW[0][0][0]
    for grp in ([0, 1, 2, 3], [4, 5, 6]):
        for x in gelu_pk_multi([acc[1][tl] for tl in grp], gt, vC): A(x)
        for tl in grp:
            wf, hf = TILES[tl]; ac = acc[1][tl]
            for h in range(2): A(f"v_cvt_pk_bf16_f32 {v(ac+h)}, {v(ac+2*h)}, {v(ac+2*h+1)}")
            if wf < 3: A(f"ds_write_b64 {v(vLa[hf])}, {v(ac,2)} offset:{wf*32}")
            else: A(f"ds_write_b64 {v(vL4)}, {v(ac,2)}")
    nvmax[0] = max(nvmax[0], R.hi)
    R = RegAlloc(5)
    vA = R.alloc(); vB = [R.alloc() for _ in range(2)]
    cA = R.alloc(); cB = [R.alloc() for _ in range(2)]
    vtb = R.alloc(8, 4); vt = [vtb + k for k in range(8)]
    accg = [[R.alloc(4) for _ in range(2)] for _ in range(7)]
    FA = [[R.alloc(4) for _ in range(7)] for _ in range(2)]
    FB = [[R.alloc(4) for _ in range(2)] for _ in range(2)]
    vb = R.alloc(); vtw = R.alloc()
    vxw = R.alloc(); vxr = R.alloc(); vz1 = R.alloc(); vz = R.alloc(4); vrb = R.alloc()
    A("s_waitcnt lgkmcnt(0)")
    A(f"v_lshl_add_u32 {v(vtw)}, {s(sW)}, 4, {v(vi)}")
    A(f"v_lshl_add_u32 {v(vt[0])}, {s(sRB)}, 6, {v(vtw)}")
    A(f"v_lshlrev_b32 {v(vt[0])}, 1, {v(vt[0])}")
    A(f"global_load_ushort {v(vb)}, {v(vt[0])}, s[36:37]")
    A(f"s_and_b32 {s(sT0)}, {s(sW)}, 1")
    A(f"s_lshl_b32 {s(sT0)}, {s(sT0)}, 2")
    A(f"v_add_u32 {v(vt[4])}, {s(sT0)}, {v(vq)}")
    A(f"v_and_b32 {v(vt[2])}, 7, {v(vi)}")
    A(f"v_xor_b32 {v(vt[1])}, {v(vt[4])}, {v(vt[2])}")
    A(f"v_lshlrev_b32 {v(vt[1])}, 4, {v(vt[1])}")
    A(f"v_lshl_add_u32 {v(vA)}, {v(vi)}, 7, {v(vt[1])}")
    A(f"v_add_u32 {v(vt[1])}, {B_OFF}, {v(vt[1])}")
    A(f"v_lshl_add_u32 {v(vB[0])}, {v(vtw)}, 7, {v(vt[1])}")
    A(f"v_xor_b32 {v(vt[3])}, 16, {v(vtw)}")
    A(f"v_lshl_add_u32 {v(vB[1])}, {v(vt[3])}, 7, {v(vt[1])}")
    A(f"v_and_b32 {v(vt[0])}, 63, v0")
    A(f"s_mul_i32 {s(sT0)}, {s(sW)}, 7168")
    A(f"s_add_u32 {s(sT0)}, {s(sT0)}, {GX}")
    A(f"v_lshl_add_u32 {v(vxw)}, {v(vt[0])}, 4, {s(sT0)}")
    A(f"s_xor_b32 {s(sT1)}, {s(sW)}, 1")
    A(f"s_mul_i32 {s(sT1)}, {s(sT1)}, 7168")
    A(f"s_add_u32 {s(sT1)}, {s(sT1)}, {GX}")
    A(f"v_lshl_add_u32 {v(vxr)}, {v(vt[0])}, 4, {s(sT1)}")
    A(f"v_mul_u32_u24 {v(vz1)}, 224, {v(vtw)}")
    A(f"v_lshl_add_u32 {v(vz1)}, {v(vq)}, 3, {v(vz1)}")
    A(f"v_add_u32 {v(vz1)}, {ZT}, {v(vz1)}")
    for j in range(4):
        A(f"v_add_u32 {v(vt[4])}, {64*j}, {v(vt[0])}")
        div14(A, vt[5], vt[6], vt[4], vt[7])
        A(f"v_mul_u32_u24 {v(vt[5])}, 1792, {v(vt[5])}")
        A(f"v_lshl_add_u32 {v(vz+j)}, {v(vt[6])}, 4, {v(vt[5])}")
    A(f"s_lshl2_add_u32 {s(sT0)}, {s(sRB)}, {s(sW)}")
    A(f"s_mul_i32 {s(sT0)}, {s(sT0)}, {16*1792}")
    A(f"s_mul_i32 {s(sT1)}, {s(sCC)}, 224")
    A(f"s_add_u32 {s(sT0)}, {s(sT0)}, {s(sT1)}")
    A(f"s_add_u32 {s(sT0)}, {s(sT0)}, {WS_P0}")
    for j in range(4): A(f"v_add_u32 {v(vz+j)}, {s(sT0)}, {v(vz+j)}")
    A(f"s_mul_i32 {s(sT0)}, {s(sW)}, {16*224}")
    A(f"s_add_u32 {s(sT0)}, {s(sT0)}, {ZT}")
    A(f"v_lshl_add_u32 {v(vrb)}, {v(vt[0])}, 4, {s(sT0)}")
    A(f"s_mov_b32 {s(sSlot)}, 0")
    A(f"s_mov_b32 {s(sI)}, 0")
    def rdsG(buf, a_, b_):
        return [f"ds_read_b128 {v(FB[buf][nb],4)}, {v(b_[nb])}" for nb in range(2)] + \
               [f"ds_read_b128 {v(FA[buf][fa],4)}, {v(a_)} offset:{fa*2048}" for fa in range(7)]
    def mmsG(buf, first=False):
        o = []
        for fa in range(7):
            for nb in range(2):
                c = "0" if first else v(accg[fa][nb], 4)
                o.append(f"v_mfma_f32_16x16x32_bf16 {v(accg[fa][nb],4)}, {v(FA[buf][fa],4)}, {v(FB[buf][nb],4)}, {c}")
        return o
    def adv():
        A(f"s_add_u32 {s(sSlot)}, {s(sSlot)}, {STAGE}")
        A(f"s_cmp_ge_u32 {s(sSlot)}, {RING}")
        A(f"s_cselect_b32 {s(sSlot)}, 0, {s(sSlot)}")
        A(f"v_add_u32 {v(cA)}, {s(sSlot)}, {v(vA)}")
        for nb in range(2): A(f"v_add_u32 {v(cB[nb])}, {s(sSlot)}, {v(vB[nb])}")
    ST.stamp()
    A("s_barrier")
    A("s_barrier")
    ST.stamp()
    for r in rdsG(0, vA, vB): A(r)
    adv()
    A("s_waitcnt lgkmcnt(0)")
    A("s_barrier")
    for x in interleave2(mmsG(0, True), rdsG(1, cA, cB)): A(x)
    loop = f"{name}_gloop"
    A.label(loop)
    for buf in (1, 0):
        adv()
        A("s_waitcnt lgkmcnt(0)")
        A("s_barrier")
        for x in interleave2(mmsG(buf), rdsG(buf ^ 1, cA, cB)): A(x)
    A(f"s_add_u32 {s(sI)}, {s(sI)}, 1")
    A(f"s_cmp_lt_u32 {s(sI)}, 15")
    A(f"s_cbranch_scc1 {loop}")
    A("s_waitcnt lgkmcnt(0)")
    for x in mmsG(1): A(x)
    ST.stamp()
    for fa in range(7): A(f"ds_write_b128 {v(vxw)}, {v(accg[fa][1],4)} offset:{fa*1024}")
    A("s_waitcnt vmcnt(0) lgkmcnt(0)")
    A(f"v_lshlrev_b32 {v(vb)}, 16, {v(vb)}")
    A("s_barrier")
    for fa in range(7): A(f"ds_read_b128 {v(FA[0][fa],4)}, {v(vxr)} offset:{fa*1024}")
    zr = [FA[1][fa] for fa in range(7)]
    for fa in range(7): A(f"ds_read_b64 {v(zr[fa],2)}, {v(vz1)} offset:{fa*32}")
    A(f"v_mov_b32 {v(FB[1][0])}, {v(vb)}")
    A(f"v_mov_b32 {v(FB[1][0]+1)}, {v(vb)}")
    A("s_mov_b32 s33, 0xffff0000")
    for fa in range(7):
        ac = accg[fa][0]; pr = FA[0][fa]
        A(f"s_waitcnt lgkmcnt({13 - fa})")
        for h in (0, 2): A(pk("add", ac + h, v(ac + h, 2), v(pr + h, 2)))
        for h in (0, 2): A(pk("add", ac + h, v(ac + h, 2), v(FB[1][0], 2)))
    for fa in range(7):
        ac = accg[fa][0]; pr = FA[0][fa]; z = zr[fa]
        A(f"s_waitcnt lgkmcnt({6 - fa})")
        for h in range(2):
            A(f"v_lshlrev_b32 {v(z+2)}, 16, {v(z+h)}")
            A(f"v_and_b32 {v(z+3)}, s33, {v(z+h)}")
            A(pk("mul", ac + 2*h, v(ac + 2*h, 2), v(z + 2, 2)))
            A(f"v_cvt_pk_bf16_f32 {v(pr+h)}, {v(ac+2*h)}, {v(ac+2*h+1)}")
        A(f"ds_write_b64 {v(vz1)}, {v(pr,2)} offset:{fa*32}")
    A("s_waitcnt lgkmcnt(0)")
    ob = [FA[1][j] for j in range(4)]
    for j in range(4): A(f"ds_read_b128 {v(ob[j],4)}, {v(vrb)} offset:{j*1024}")
    for j in range(3):
        A(f"s_waitcnt lgkmcnt({3-j})")
        A(f"global_store_dwordx4 {v(vz+j)}, {v(ob[j],4)}, s[4:5] sc0 sc1")
    A("s_waitcnt lgkmcnt(0)")
    A("s_mov_b32 exec_hi, 0")
    A(f"global_store_dwordx4 {v(vz+3)}, {v(ob[3],4)}, s[4:5] sc0 sc1")
    A("s_mov_b32 exec_hi, -1")
    nvmax[0] = max(nvmax[0], R.hi)
    R = RegAlloc(5)
    vtw2 = R.alloc()
    vtb = R.alloc(8, 4); vt = [vtb + k for k in range(8)]
    vW = [[R.alloc() for _ in range(4)] for _ in range(2)]
    vP = [[R.alloc() for _ in range(2)] for _ in range(2)]
    acco = [[R.alloc(4) for _ in range(2)] for _ in range(4)]
    FWo = [[[R.alloc(4) for _ in range(4)] for _ in range(2)] for _ in range(2)]
    FP = [[[R.alloc(4) for _ in range(2)] for _ in range(2)] for _ in range(2)]
    gb = [R.alloc(4) for _ in range(4)]
    vcnt = R.alloc(2)
    A(f"s_lshl3_add_u32 {s(sT0)}, {s(sRB)}, {s(sCC)}")
    A(f"s_lshl_b32 {s(sT0)}, {s(sT0)}, 7")
    A(f"s_add_u32 {s(sT0)}, {s(sT0)}, {WS_CNT + 32768}")
    A(f"v_mov_b32 {v(vcnt)}, {JOIN + 4}")
    A(f"v_mov_b32 {v(vcnt+1)}, 1")
    A("s_waitcnt vmcnt(0)")
    ST.stamp()
    A("s_mov_b64 exec, 1")
    A(f"ds_add_rtn_u32 {v(vcnt)}, {v(vcnt)}, {v(vcnt+1)}")
    A("s_waitcnt lgkmcnt(0)")
    A(f"v_readfirstlane_b32 {s(sT1)}, {v(vcnt)}")
    A(f"v_mov_b32 {v(vcnt)}, {s(sT0)}")
    A(f"s_cmp_lg_u32 {s(sT1)}, 3")
    A(f"s_cbranch_scc1 {name}_nofl2")
    A(f"global_store_dword {v(vcnt)}, {v(vcnt+1)}, s[4:5] sc0 sc1")
    A.label(f"{name}_nofl2")
    A("s_mov_b64 exec, -1")
    A("s_barrier")
    A(f"v_lshl_add_u32 {v(vtw2)}, {s(sW)}, 4, {v(vi)}")
    A(f"s_and_b32 {s(sT2)}, {s(sW)}, 1")
    A(f"v_lshrrev_b32 {v(vt[0])}, 2, {v(vi)}")
    A(f"v_lshl_add_u32 {v(vt[0])}, {v(vq)}, 3, {v(vt[0])}")
    A(f"v_lshlrev_b32 {v(vt[0])}, 7, {v(vt[0])}")
    A(f"v_and_b32 {v(vt[1])}, 1, {v(vi)}")
    A(f"v_lshl_add_u32 {v(vt[0])}, {v(vt[1])}, 3, {v(vt[0])}")
    A(f"s_lshl_b32 {s(sT0)}, {s(sT2)}, 13")
    A(f"v_add_u32 {v(vt[0])}, {s(sT0)}, {v(vt[0])}")
    A(f"v_bfe_u32 {v(vt[1])}, {v(vi)}, 3, 1")
    A(f"v_and_b32 {v(vt[2])}, 1, {v(vq)}")
    A(f"v_lshl_or_b32 {v(vt[1])}, {v(vt[2])}, 1, {v(vt[1])}")
    A(f"v_lshlrev_b32 {v(vt[1])}, 1, {v(vt[1])}")
    A(f"v_bfe_u32 {v(vt[2])}, {v(vi)}, 1, 1")
    A(f"v_xor_b32 {v(vt[1])}, {v(vt[1])}, {v(vt[2])}")
    for dt in range(4):
        A(f"v_xor_b32 {v(vt[3])}, {2*dt}, {v(vt[1])}")
        A(f"v_lshl_add_u32 {v(vW[0][dt])}, {v(vt[3])}, 4, {v(vt[0])}")
        A(f"v_add_u32 {v(vW[1][dt])}, 65536, {v(vW[0][dt])}")
    A(f"v_and_b32 {v(vt[0])}, 7, {v(vi)}")
    A(f"v_xor_b32 {v(vt[1])}, {v(vq)}, {v(vt[0])}")
    A(f"v_lshlrev_b32 {v(vt[1])}, 4, {v(vt[1])}")
    A(f"s_add_u32 {s(sT0)}, {s(sT0)}, {OP}")
    A(f"v_add_u32 {v(vt[1])}, {s(sT0)}, {v(vt[1])}")
    A(f"v_lshl_add_u32 {v(vP[0][0])}, {v(vtw2)}, 7, {v(vt[1])}")
    A(f"v_xor_b32 {v(vP[1][0])}, 2048, {v(vP[0][0])}")
    for tl in range(2): A(f"v_xor_b32 {v(vP[tl][1])}, 64, {v(vP[tl][0])}")
    A(f"s_lshl_b32 {s(sT0)}, {s(sCC)}, 8")
    A(f"s_add_u32 {s(sT0)}, {s(sT0)}, {WS_MOD + 2560*4}")
    A(f"v_lshl_add_u32 {v(vt[0])}, {v(vq)}, 4, {s(sT0)}")
    for dt in range(4): A(f"global_load_dwordx4 {v(gb[dt],4)}, {v(vt[0])}, s[4:5] offset:{dt*64}")
    assert (OP + 2048) % 4096 == 2048 and OP % 4096 == 0
    def readsO(st, buf):
        g = st // 4; so = (st % 4) * 16384; po = (st % NSO) * PSLOT
        o = []
        for ks in range(2):
            for tl in range(2): o.append(f"ds_read_b128 {v(FP[buf][ks][tl],4)}, {v(vP[tl][ks])} offset:{po}")
            for dt in range(4):
                for p in range(2):
                    o.append(f"ds_read_b64_tr_b16 {v(FWo[buf][ks][dt]+2*p,2)}, {v(vW[g][dt])} offset:{so + ks*4096 + p*512}")
        return o
    def mfmasO(st, buf):
        o = []
        for ks in range(2):
            for dt in range(4):
                for tl in range(2):
                    c = "0" if st == 0 and ks == 0 else v(acco[dt][tl], 4)
                    o.append(f"v_mfma_f32_16x16x32_bf16 {v(acco[dt][tl],4)}, {v(FWo[buf][ks][dt],4)}, {v(FP[buf][ks][tl],4)}, {c}")
        return o
    XT = OP + ((NSTO - 3) % NSO) * PSLOT
    E_OFF = 0
    consumer_full(A, NSTO, readsO, mfmasO)
    ST.stamp()
    A(f"v_and_b32 {v(vt[0])}, 63, v0")
    A(f"s_lshl_b32 {s(sT0)}, {s(sW)}, 12")
    A(f"s_add_u32 {s(sT0)}, {s(sT0)}, {E_OFF}")
    A(f"v_lshl_add_u32 {v(vt[1])}, {v(vt[0])}, 4, {s(sT0)}")
    A(f"v_xor_b32 {v(vt[2])}, 4096, {v(vt[1])}")
    for dt in range(4): A(f"ds_write_b128 {v(vt[1])}, {v(acco[dt][1],4)} offset:{dt*1024}")
    va = [vt[4], vt[5], vt[6], vt[7]]
    A(f"v_and_b32 {v(vt[3])}, 7, {v(vi)}")
    A(f"v_lshrrev_b32 {v(vW[0][0])}, 1, {v(vq)}")
    A(f"v_xor_b32 {v(vt[3])}, {v(vt[3])}, {v(vW[0][0])}")
    A(f"v_and_b32 {v(vW[0][0])}, 1, {v(vq)}")
    A(f"v_lshlrev_b32 {v(vW[0][0])}, 3, {v(vW[0][0])}")
    A(f"v_lshl_add_u32 {v(vW[0][0])}, {v(vtw2)}, 7, {v(vW[0][0])}")
    A(f"v_add_u32 {v(vW[0][0])}, {XT}, {v(vW[0][0])}")
    for dt in range(4):
        A(f"v_xor_b32 {v(vW[0][1])}, {2*dt}, {v(vt[3])}")
        A(f"v_lshl_add_u32 {v(va[dt])}, {v(vW[0][1])}, 4, {v(vW[0][0])}")
    vrb2 = vW[1][0]; vgo = vW[1][1]
    A(f"v_lshrrev_b32 {v(vW[1][2])}, 3, {v(vt[0])}")
    A(f"v_and_b32 {v(vW[1][3])}, 7, {v(vt[0])}")
    A(f"v_xor_b32 {v(vrb2)}, {v(vW[1][2])}, {v(vW[1][3])}")
    A(f"v_lshlrev_b32 {v(vrb2)}, 4, {v(vrb2)}")
    A(f"v_lshl_add_u32 {v(vrb2)}, {v(vW[1][2])}, 7, {v(vrb2)}")
    A(f"s_lshl_b32 {s(sT0)}, {s(sW)}, 11")
    A(f"s_add_u32 {s(sT0)}, {s(sT0)}, {XT}")
    A(f"v_add_u32 {v(vrb2)}, {s(sT0)}, {v(vrb2)}")
    A(f"v_lshlrev_b32 {v(vgo)}, 10, {v(vW[1][2])}")
    A(f"v_lshl_add_u32 {v(vgo)}, {v(vW[1][3])}, 4, {v(vgo)}")
    A(f"s_lshl2_add_u32 {s(sT0)}, {s(sRB)}, {s(sW)}")
    A(f"s_lshl_b32 {s(sT0)}, {s(sT0)}, 14")
    A(f"s_lshl_b32 {s(sT1)}, {s(sCC)}, 7")
    A(f"s_add_u32 {s(sT0)}, {s(sT0)}, {s(sT1)}")
    A(f"v_add_u32 {v(vgo)}, {s(sT0)}, {v(vgo)}")
    A("s_waitcnt vmcnt(0) lgkmcnt(0)")
    A("s_barrier")
    for dt in range(4): A(f"ds_read_b128 {v(FWo[0][0][dt],4)}, {v(vt[2])} offset:{dt*1024}")
    xa = [FWo[0][1][dt] for dt in range(4)]
    for dt in range(4): A(f"ds_read_b64 {v(xa[dt],2)}, {v(va[dt])}")
    A(f"s_mov_b32 {s(sT0)}, 0xffff0000")
    for dt in range(4):
        ac = acco[dt][0]; pr = FWo[0][0][dt]; x = xa[dt]
        A(f"s_waitcnt lgkmcnt({7-dt})")
        for h in (0, 2): A(pk("add", ac + h, v(ac + h, 2), v(pr + h, 2)))
        A(f"s_waitcnt lgkmcnt({3-dt})")
        for h in range(2):
            A(f"v_lshlrev_b32 {v(x+2)}, 16, {v(x+h)}")
            A(f"v_and_b32 {v(x+3)}, {s(sT0)}, {v(x+h)}")
            A(pk("fma", pr, v(ac + 2*h, 2), v(gb[dt] + 2*h, 2), v(x + 2, 2)))
            A(f"v_cvt_pk_bf16_f32 {v(ac+h)}, {v(pr)}, {v(pr+1)}")
        A(f"ds_write_b64 {v(va[dt])}, {v(ac,2)}")
    A("s_waitcnt lgkmcnt(0)")
    ob = [FP[0][0][0], FP[0][0][1]]
    for u in range(2): A(f"ds_read_b128 {v(ob[u],4)}, {v(vrb2)} offset:{u*1024}")
    A("s_waitcnt lgkmcnt(1)")
    A(f"global_store_dwordx4 {v(vgo)}, {v(ob[0],4)}, s[38:39]")
    A(f"v_add_u32 {v(vgo)}, 8192, {v(vgo)}")
    A("s_waitcnt lgkmcnt(0)")
    A(f"global_store_dwordx4 {v(vgo)}, {v(ob[1],4)}, s[38:39]")
    if stamps:
        ST.stamp(); ST.flush(4, vt[4])
    A("s_endpgm")
    nvmax[0] = max(nvmax[0], R.hi)
    A.label(f"{name}_loader")
    STL = Stamps(A, on=stamps, kidx=2, base=70)
    R = RegAlloc(5)
    voW = [R.alloc() for _ in range(4)]; voH = [R.alloc() for _ in range(2)]
    vl = R.alloc(); t0 = R.alloc(); t1 = R.alloc(); t2 = R.alloc(); t3 = R.alloc()
    vtb = R.alloc(8, 4); vt = [vtb + k for k in range(8)]
    za = [R.alloc(4) for _ in range(4)]
    z2p = [R.alloc(2) for _ in range(7)]
    st1 = [R.alloc(2) for _ in range(2)]
    pol = [R.alloc(4) for _ in range(4)]
    vrow = [R.alloc() for _ in range(2)]; vLa = [R.alloc() for _ in range(2)]
    vo = [R.alloc() for _ in range(6)]
    vcn = R.alloc(2)
    sLw, sWk, sHk, sLW, sLH = 29, 30, 31, 32, 33
    A("s_mov_b32 s10, %d" % (512 * WROW)); A("s_mov_b32 s11, 0x20000")
    A("s_mov_b32 s6, %d" % (32 * MB)); A("s_mov_b32 s7, 0x20000")
    A(f"s_sub_u32 {s(sLw)}, {s(sW)}, 4")
    A(f"v_and_b32 {v(vl)}, 63, v0")
    div14(A, t0, t1, vl, t2)
    A(f"v_mul_u32_u24 {v(t0)}, {WROW}, {v(t0)}")
    A(f"v_lshl_add_u32 {v(t0)}, {v(t1)}, 4, {v(t0)}")
    A(f"s_mul_i32 {s(sT0)}, {s(sLw)}, {16*WROW}")
    A(f"v_add_u32 {v(voW[0])}, {s(sT0)}, {v(t0)}")
    for g in range(1, 4): A(f"v_add_u32 {v(voW[g])}, {g*(4*WROW - GS)}, {v(voW[0])}")
    A(f"v_lshrrev_b32 {v(t0)}, 3, {v(vl)}")
    A(f"v_and_b32 {v(t1)}, 7, {v(vl)}")
    A(f"v_xor_b32 {v(t1)}, {v(t1)}, {v(t0)}")
    A(f"v_lshlrev_b32 {v(t1)}, 4, {v(t1)}")
    A(f"v_lshl_add_u32 {v(t0)}, {v(t0)}, 10, {v(t1)}")
    A(f"s_lshl_b32 {s(sT0)}, {s(sLw)}, 14")
    A(f"v_add_u32 {v(voH[0])}, {s(sT0)}, {v(t0)}")
    A(f"v_add_u32 {v(voH[1])}, {8192-1024}, {v(voH[0])}")
    A(f"s_mul_i32 {s(sWk)}, {s(sCC)}, 224")
    A(f"s_lshl_b32 {s(sHk)}, {s(sRB)}, 16")
    A(f"s_add_u32 {s(sHk)}, {s(sHk)}, {WS_H2}")
    A(f"s_mul_i32 {s(sLW)}, {s(sLw)}, {4*GS}")
    A(f"s_lshl_b32 {s(sLH)}, {s(sLw)}, 11")
    A("s_waitcnt lgkmcnt(0)")
    def issueZ(st):
        half, kc = st >> 3, st & 7; slot = st % NSZ
        A(f"s_add_u32 m0, {s(sLW)}, {W_OFF + slot*SLOT}")
        A(f"s_add_u32 {s(sT0)}, {s(sWk)}, {kc*64*WROW + (1792 if half == 0 else 0)}")
        A("s_mov_b32 exec_hi, 0x00ffffff")
        for g in range(4):
            A(f"buffer_load_dwordx4 {v(voW[g])}, s[8:11], {s(sT0)} offen offset:{g*GS} lds")
        A("s_mov_b32 exec_hi, -1")
        if half == 0:
            A(f"s_add_u32 m0, {s(sLH)}, {kc*8192}")
            A(f"s_add_u32 {s(sT0)}, {s(sHk)}, {kc*128}")
            for j in range(2):
                A(f"buffer_load_dwordx4 {v(voH[j])}, s[4:7], {s(sT0)} offen offset:{j*1024} lds")
    for st in range(NSZ): issueZ(st)
    A(f"v_lshrrev_b32 {v(t0)}, 3, {v(vl)}")
    A(f"v_lshl_add_u32 {v(t0)}, {v(t0)}, 12, {v(t1)}")
    sL1, sL2, sK1 = 40, 41, 42
    SR1, SR2 = 44, 48
    A(f"s_lshl_b32 {s(sT0)}, {s(sLw)}, 3")
    A(f"s_mov_b32 {s(sT1)}, 0x060c0600")
    A(f"s_lshr_b32 {s(sT1)}, {s(sT1)}, {s(sT0)}")
    A(f"s_and_b32 {s(sT1)}, {s(sT1)}, 0xff")
    A(f"s_mov_b32 {s(sT2)}, 0x03000903")
    A(f"s_lshr_b32 {s(sT2)}, {s(sT2)}, {s(sT0)}")
    A(f"s_and_b32 {s(sT2)}, {s(sT2)}, 0xff")
    STEP = 8 * 4096 - 1024
    A(f"s_lshl_b32 {s(sT0)}, {s(sT1)}, 15")
    A(f"v_add_u32 {v(vo[0])}, {s(sT0)}, {v(t0)}")
    A(f"s_lshl_b32 {s(sT0)}, {s(sT2)}, 15")
    A(f"v_add_u32 {v(vo[3])}, {s(sT0)}, {v(t0)}")
    for k in (1, 2):
        A(f"v_add_u32 {v(vo[k])}, {k*STEP}, {v(vo[0])}")
        A(f"v_add_u32 {v(vo[3+k])}, {k*STEP}, {v(vo[3])}")
    A(f"s_lshl_b32 {s(sL1)}, {s(sT1)}, 10")
    A(f"s_lshl_b32 {s(sL2)}, {s(sT2)}, 10")
    A(f"s_cmp_eq_u32 {s(sLw)}, 3")
    A(f"s_cselect_b32 {s(sT0)}, {B_OFF}, 0")
    A(f"s_add_u32 {s(sL1)}, {s(sL1)}, {s(sT0)}")
    A(f"s_cmp_ge_u32 {s(sLw)}, 2")
    A(f"s_cselect_b32 {s(sT0)}, {B_OFF}, 0")
    A(f"s_add_u32 {s(sL2)}, {s(sL2)}, {s(sT0)}")
    A(f"s_mul_i32 {s(sT0)}, {s(sCC)}, {112*4096}")
    A(f"s_add_u32 {s(sT0)}, {s(sT0)}, {WS_Z2T}")
    A(f"s_add_u32 s52, s4, {s(sT0)}")
    A(f"s_addc_u32 s53, s5, 0")
    A(f"s_lshl_b32 {s(sT0)}, {s(sRB)}, 18")
    A(f"s_add_u32 s54, s12, {s(sT0)}")
    A(f"s_addc_u32 s55, s13, 0")
    A(f"s_cmp_eq_u32 {s(sLw)}, 3")
    A(f"s_cselect_b32 {s(SR1)}, s54, s52")
    A(f"s_cselect_b32 {s(SR1+1)}, s55, s53")
    A(f"s_mov_b32 {s(SR1+2)}, {112*4096}")
    A(f"s_mov_b32 {s(SR1+3)}, 0x20000")
    A(f"s_cmp_ge_u32 {s(sLw)}, 2")
    A(f"s_cselect_b32 {s(SR2)}, s54, s52")
    A(f"s_cselect_b32 {s(SR2+1)}, s55, s53")
    A(f"s_mov_b32 {s(SR2+2)}, {112*4096}")
    A(f"s_mov_b32 {s(SR2+3)}, 0x20000")
    cntZ = lambda st: 6 if st < 8 else 4
    issued = NSZ
    for i in range(NSTZ):
        out = sum(cntZ(j) for j in range(i + 1, issued))
        A(f"s_waitcnt vmcnt({out})")
        A("s_barrier")
        if i >= 1 and issued < NSTZ:
            issueZ(issued); issued += 1
    A(f"s_lshl1_add_u32 {s(sT1)}, {s(sRB)}, {s(sTH)}")
    A(f"s_lshl_b32 {s(sT1)}, {s(sT1)}, 12")
    A(f"s_add_u32 {s(sT1)}, {s(sT1)}, {WS_STAT}")
    for hf in range(2):
        A(f"v_and_b32 {v(vrow[hf])}, 31, {v(vtt[hf])}")
        A(f"v_lshl_add_u32 {v(vrow[hf])}, {v(vrow[hf])}, 3, {s(sT1)}")
        A(f"v_lshl_add_u32 {v(vrow[hf])}, {v(vq)}, 10, {v(vrow[hf])}")
    A(f"s_mul_i32 {s(sT0)}, {s(sLw)}, {XS}")
    A(f"s_add_u32 {s(sT0)}, {s(sT0)}, {X_OFF}")
    for hf in range(2):
        A(f"v_and_b32 {v(vLa[hf])}, 31, {v(vtt[hf])}")
        A(f"v_mul_u32_u24 {v(vLa[hf])}, 144, {v(vLa[hf])}")
        A(f"v_lshl_add_u32 {v(vLa[hf])}, {v(vq)}, 3, {v(vLa[hf])}")
        A(f"v_add_u32 {v(vLa[hf])}, {s(sT0)}, {v(vLa[hf])}")
    vtr = voH[0]; vgz = voH[1]; vtr3 = voW[0]; vgz3 = voW[1]
    A(f"v_lshrrev_b32 {v(t0)}, 2, {v(vi)}")
    A(f"v_lshl_add_u32 {v(t0)}, {v(vq)}, 3, {v(t0)}")
    A(f"v_mul_u32_u24 {v(vtr)}, 144, {v(t0)}")
    A(f"v_and_b32 {v(t1)}, 3, {v(vi)}")
    A(f"v_lshl_add_u32 {v(vtr)}, {v(t1)}, 3, {v(vtr)}")
    A(f"v_add_u32 {v(vtr)}, {s(sT0)}, {v(vtr)}")
    A(f"s_mul_i32 {s(sT1)}, {s(sFH)}, {16*144}")
    A(f"s_add_u32 {s(sT1)}, {s(sT1)}, 96")
    A(f"v_add_u32 {v(vtr3)}, {s(sT1)}, {v(vtr)}")
    A(f"v_lshlrev_b32 {v(vgz)}, 12, {v(vi)}")
    A(f"v_lshl_add_u32 {v(vgz)}, {v(vq)}, 4, {v(vgz)}")
    A(f"s_mul_i32 {s(sT1)}, {s(sCC)}, {112*4096}")
    A(f"s_lshl_b32 {s(sT2)}, {s(sRB)}, 7")
    A(f"s_add_u32 {s(sT1)}, {s(sT1)}, {s(sT2)}")
    A(f"s_lshl_b32 {s(sT2)}, {s(sTH)}, 6")
    A(f"s_add_u32 {s(sT1)}, {s(sT1)}, {s(sT2)}")
    A(f"s_add_u32 {s(sT1)}, {s(sT1)}, {WS_Z2T}")
    A(f"s_lshl_b32 {s(sT2)}, {s(sFH)}, 5")
    A(f"s_add_u32 {s(sT2)}, {s(sT2)}, {48*4096}")
    A(f"s_add_u32 {s(sT2)}, {s(sT2)}, {s(sT1)}")
    A(f"v_add_u32 {v(vgz3)}, {s(sT2)}, {v(vgz)}")
    A(f"s_lshl_b32 {s(sT2)}, {s(sFH)}, 18")
    A(f"s_add_u32 {s(sT1)}, {s(sT1)}, {s(sT2)}")
    A(f"v_add_u32 {v(vgz)}, {s(sT1)}, {v(vgz)}")
    for tl, (wf, hf) in enumerate(TILES):
        A(f"ds_read_b64 {v(z2p[tl],2)}, {v(vLa[hf])} offset:{wf*32}")
    A("s_barrier")
    lskip = f"{name}_nob"
    A(f"s_cmp_lt_u32 {s(sLw)}, 2")
    A(f"s_cbranch_scc1 {lskip}")
    A(f"s_mov_b32 {s(sK1)}, 0")
    for st in range(NSG):
        A(f"s_add_u32 m0, {s(sL2)}, {st*STAGE}")
        if st: A(f"s_add_u32 {s(sK1)}, {s(sK1)}, 128")
        for k in range(3): A(f"buffer_load_dwordx4 {v(vo[3+k])}, {s(SR2,4)}, {s(sK1)} offen offset:{k*1024} lds")
    A.label(lskip)
    if stamps: A("s_mov_b32 s20, 0"); STL.n = 0; STL.stamp()
    A(f"s_mov_b32 {s(sK)}, 0")
    A.label(f"{name}_poll")
    for hf in range(2):
        for u in range(4):
            A(f"global_load_dwordx2 {v(pol[hf*2+(u>>1)]+2*(u&1),2)}, {v(vrow[hf])}, s[4:5] offset:{u*256} sc1")
    A("s_waitcnt vmcnt(0)")
    A(f"v_max3_u32 {v(vt[0])}, {v(pol[0])}, {v(pol[0]+1)}, {v(pol[0]+2)}")
    rest = [pol[0]+3] + [pol[b_]+r for b_ in range(1, 4) for r in range(4)]
    for k in range(0, len(rest) - 1, 2): A(f"v_max3_u32 {v(vt[0])}, {v(vt[0])}, {v(rest[k])}, {v(rest[k+1])}")
    A(f"v_max_u32 {v(vt[0])}, {v(vt[0])}, {v(rest[-1])}")
    A(f"v_cmp_eq_u32 vcc, -1, {v(vt[0])}")
    A(f"s_add_u32 {s(sK)}, {s(sK)}, 1")
    A(f"s_cmp_eq_u64 vcc, 0")
    A(f"s_cbranch_scc1 {name}_polled")
    A("s_sleep 2")
    A(f"s_cmp_lt_u32 {s(sK)}, {SPIN}")
    A(f"s_cbranch_scc1 {name}_poll")
    A.label(f"{name}_polled")
    mean = [vt[0], vt[1]]; rstd = [vt[2], vt[3]]
    for hf in range(2):
        p0, p1 = pol[hf*2], pol[hf*2+1]
        A(pk("add", p0, v(p0, 2), v(p0+2, 2)))
        A(pk("add", p1, v(p1, 2), v(p1+2, 2)))
        A(pk("add", p0, v(p0, 2), v(p1, 2)))
        A(f"v_mov_b32 {v(mean[hf])}, {v(p0)}")
        A(f"v_mov_b32 {v(rstd[hf])}, {v(p0+1)}")
    xor16_32_sum(A, mean + rstd, vt[6])
    for hf in range(2):
        A(f"v_mul_f32 {v(mean[hf])}, {fhex(1.0/896)}, {v(mean[hf])}")
        A(f"v_mul_f32 {v(rstd[hf])}, {fhex(1.0/896)}, {v(rstd[hf])}")
        A(f"v_fma_f32 {v(rstd[hf])}, -{v(mean[hf])}, {v(mean[hf])}, {v(rstd[hf])}")
        A(f"v_max_f32 {v(rstd[hf])}, 0, {v(rstd[hf])}")
        A(f"v_add_f32 {v(rstd[hf])}, 0x3727c5ac, {v(rstd[hf])}")
        A(f"v_rsq_f32 {v(rstd[hf])}, {v(rstd[hf])}")
        A(f"v_mul_f32 {v(mean[hf])}, {v(mean[hf])}, {v(rstd[hf])}")
    for hf in range(2):
        A(f"v_mov_b32 {v(st1[hf])}, {v(rstd[hf])}")
        A(f"v_sub_f32 {v(st1[hf]+1)}, 0, {v(mean[hf])}")
    A(f"s_mov_b32 {s(sT0)}, 0xffff0000")
    A("s_waitcnt lgkmcnt(0)")
    for tl, (wf, hf) in enumerate(TILES):
        z = z2p[tl]
        for h in range(2):
            A(f"v_lshlrev_b32 {v(vt[4])}, 16, {v(z+h)}")
            A(f"v_and_b32 {v(vt[5])}, {s(sT0)}, {v(z+h)}")
            A(pk("fma", vt[4], v(vt[4], 2), v(st1[hf], 2), v(st1[hf], 2), "op_sel:[0,0,1] op_sel_hi:[1,0,1]"))
            A(f"v_cvt_pk_bf16_f32 {v(z+h)}, {v(vt[4])}, {v(vt[5])}")
        A(f"ds_write_b64 {v(vLa[hf])}, {v(z,2)} offset:{wf*32}")
    A("s_waitcnt lgkmcnt(0)")
    for wf in range(3):
        for p in range(2): A(f"ds_read_b64_tr_b16 {v(za[wf]+2*p,2)}, {v(vtr)} offset:{wf*32 + 4*p*144}")
    for p in range(2): A(f"ds_read_b64_tr_b16 {v(za[3]+2*p,2)}, {v(vtr3)} offset:{4*p*144}")
    for wf in range(3):
        A(f"s_waitcnt lgkmcnt({6-2*wf})")
        A(f"global_store_dwordx4 {v(vgz)}, {v(za[wf],4)}, s[4:5] sc0 sc1")
        if wf < 2: A(f"v_add_u32 {v(vgz)}, {16*4096}, {v(vgz)}")
    A("s_waitcnt lgkmcnt(0)")
    A("s_mov_b32 exec_hi, 0")
    A(f"global_store_dwordx4 {v(vgz3)}, {v(za[3],4)}, s[4:5] sc0 sc1")
    A("s_mov_b32 exec_hi, -1")
    def arrive(join_off, s_off, tag):
        A(f"v_mov_b32 {v(vcn)}, {join_off}")
        A(f"v_mov_b32 {v(vcn+1)}, 1")
        A("s_waitcnt vmcnt(0)")
        A("s_mov_b64 exec, 1")
        A(f"ds_add_rtn_u32 {v(vcn)}, {v(vcn)}, {v(vcn+1)}")
        A("s_waitcnt lgkmcnt(0)")
        A(f"v_readfirstlane_b32 {s(sT1)}, {v(vcn)}")
        A(f"v_mov_b32 {v(vcn)}, {s(s_off)}")
        A(f"s_cmp_lg_u32 {s(sT1)}, 3")
        A(f"s_cbranch_scc1 {name}_nofl{tag}")
        A(f"global_store_dword {v(vcn)}, {v(vcn+1)}, s[4:5] sc0 sc1")
        A.label(f"{name}_nofl{tag}")
        A("s_mov_b64 exec, -1")
    def wait_flags(tag, s_base, nflags):
        dn = f"{name}_d{tag}"; lp = f"{name}_w{tag}"
        A(f"s_cmp_lg_u32 {s(sLw)}, 0")
        A(f"s_cbranch_scc1 {dn}")
        A(f"v_and_b32 {v(vcn)}, {nflags-1}, {v(vl)}")
        A(f"v_lshl_add_u32 {v(vcn)}, {v(vcn)}, 7, {s(s_base)}")
        A(f"s_mov_b32 {s(sK)}, 0")
        A.label(lp)
        A(f"global_load_dword {v(vcn+1)}, {v(vcn)}, s[4:5] sc1")
        A("s_waitcnt vmcnt(0)")
        A(f"v_cmp_eq_u32 vcc, 0, {v(vcn+1)}")
        A(f"s_add_u32 {s(sK)}, {s(sK)}, 1")
        A(f"s_cmp_eq_u64 vcc, 0")
        A(f"s_cbranch_scc1 {dn}")
        A("s_sleep 1")
        A(f"s_cmp_lt_u32 {s(sK)}, {SPIN}")
        A(f"s_cbranch_scc1 {lp}")
        A.label(dn)
        A("s_barrier")
    A(f"s_lshl_b32 {s(sT0)}, {s(sCC)}, 5")
    A(f"s_add_u32 {s(sT0)}, {s(sT0)}, {s(sRB)}")
    A(f"s_lshl_b32 {s(sT0)}, {s(sT0)}, 7")
    A(f"s_add_u32 {s(sT0)}, {s(sT0)}, {WS_CNT}")
    arrive(JOIN, sT0, "1")
    if stamps: STL.stamp()
    A(f"s_lshl_b32 {s(sT2)}, {s(sCC)}, 12")
    A(f"s_add_u32 {s(sT2)}, {s(sT2)}, {WS_CNT}")
    wait_flags("c", sT2, 32)
    if stamps: STL.stamp()
    A(f"s_cmp_ge_u32 {s(sLw)}, 2")
    A(f"s_cbranch_scc1 {name}_ldY")
    def pathG(tag, n1, early2):
        n = n1 + 3
        q = []
        def need(x): return len(q) - 1 - max(k for k, y in enumerate(q) if y == x)
        A(f"s_mov_b32 {s(sK1)}, 0")
        for st in range(NSG):
            A(f"s_add_u32 m0, {s(sL1)}, {st*STAGE}")
            if st: A(f"s_add_u32 {s(sK1)}, {s(sK1)}, 128")
            for k in range(n1): A(f"buffer_load_dwordx4 {v(vo[k])}, {s(SR1,4)}, {s(sK1)} offen offset:{k*1024} lds"); q.append(st)
            if not early2:
                A(f"s_add_u32 m0, {s(sL2)}, {st*STAGE}")
                for k in range(3): A(f"buffer_load_dwordx4 {v(vo[3+k])}, {s(SR2,4)}, {s(sK1)} offen offset:{k*1024} lds"); q.append(st)
        A(f"s_add_u32 {s(sK1)}, {s(sK1)}, 128")
        A(f"s_mov_b32 {s(sSlot)}, 0")
        def issue(st):
            A(f"s_add_u32 m0, {s(sSlot)}, {s(sL1)}")
            A(f"s_add_u32 {s(sT0)}, {s(sSlot)}, {s(sL2)}")
            for k in range(n1): A(f"buffer_load_dwordx4 {v(vo[k])}, {s(SR1,4)}, {s(sK1)} offen offset:{k*1024} lds"); q.append(st)
            A(f"s_mov_b32 m0, {s(sT0)}")
            A(f"s_add_u32 {s(sSlot)}, {s(sSlot)}, {STAGE}")
            for k in range(3): A(f"buffer_load_dwordx4 {v(vo[3+k])}, {s(SR2,4)}, {s(sK1)} offen offset:{k*1024} lds"); q.append(st)
            A(f"s_add_u32 {s(sK1)}, {s(sK1)}, 128")
            A(f"s_cmp_ge_u32 {s(sSlot)}, {RING}")
            A(f"s_cselect_b32 {s(sSlot)}, 0, {s(sSlot)}")
        A(f"s_waitcnt vmcnt({need(0)})")
        A("s_barrier")
        H = NSG + 1
        for i in range(1, H):
            A(f"s_waitcnt vmcnt({need(i)})"); A("s_barrier"); issue(i - 1 + NSG)
        nsteady = NSTG - NSG
        A(f"s_mov_b32 {s(sI)}, {H}")
        lp = f"{name}_gl{tag}"
        A.label(lp)
        wv = need(H)
        A(f"s_waitcnt vmcnt({wv})"); A("s_barrier"); issue(H - 1 + NSG)
        A(f"s_add_u32 {s(sI)}, {s(sI)}, 1")
        A(f"s_cmp_le_u32 {s(sI)}, {nsteady}")
        A(f"s_cbranch_scc1 {lp}")
        for i in range(H + 1, nsteady + 1):
            assert need(i) == wv
            for _ in range(n): q.append(i - 1 + NSG)
        for i in range(nsteady + 1, NSTG):
            A(f"s_waitcnt vmcnt({need(i)})"); A("s_barrier")
        A(f"s_branch {name}_gdone")
    pathG("X", 3, False)
    A.label(f"{name}_ldY")
    pathG("Y", 2, True)
    A.label(f"{name}_gdone")
    voWo = voW; voP = [vo[0], vo[1], vo[2], vo[3]]; voX = [vo[4], vo[5]]
    A(f"v_lshrrev_b32 {v(t0)}, 3, {v(vl)}")
    A(f"v_and_b32 {v(t1)}, 7, {v(vl)}")
    A(f"v_bfe_u32 {v(t2)}, {v(vl)}, 4, 1")
    for jj in range(4):
        A(f"v_or_b32 {v(t3)}, {(jj&1)<<1}, {v(t2)}")
        A(f"v_lshlrev_b32 {v(t3)}, 1, {v(t3)}")
        A(f"v_xor_b32 {v(t3)}, {v(t3)}, {v(t1)}")
        A(f"v_lshlrev_b32 {v(t3)}, 4, {v(t3)}")
        A(f"v_lshl_add_u32 {v(voWo[jj])}, {v(t0)}, 10, {v(t3)}")
        if jj: A(f"v_add_u32 {v(voWo[jj])}, {jj*(8192-1024)}, {v(voWo[jj])}")
    A(f"v_xor_b32 {v(t1)}, {v(t1)}, {v(t0)}")
    A(f"v_lshlrev_b32 {v(t1)}, 4, {v(t1)}")
    A(f"s_and_b32 {s(sT0)}, {s(sLw)}, 1")
    A(f"s_lshl_b32 {s(sT0)}, {s(sT0)}, 5")
    A(f"v_add_u32 {v(t2)}, {s(sT0)}, {v(t0)}")
    A(f"v_mul_u32_u24 {v(voP[0])}, 1792, {v(t2)}")
    A(f"s_lshr_b32 {s(sT1)}, {s(sLw)}, 1")
    A(f"s_lshl_b32 {s(sT1)}, {s(sT1)}, 7")
    A(f"v_add3_u32 {v(voP[0])}, {v(voP[0])}, {v(t1)}, {s(sT1)}")
    for jj in range(1, 4): A(f"v_add_u32 {v(voP[jj])}, {jj*(8*1792-1024)}, {v(voP[0])}")
    A(f"s_lshl_b32 {s(sT0)}, {s(sLw)}, 4")
    A(f"v_add_u32 {v(t2)}, {s(sT0)}, {v(t0)}")
    A(f"v_lshl_add_u32 {v(voX[0])}, {v(t2)}, 10, {v(t1)}")
    A(f"v_add_u32 {v(voX[1])}, {8192-1024}, {v(voX[0])}")
    A(f"s_mov_b32 s18, {FH*D*2}"); A("s_mov_b32 s19, 0x20000")
    A(f"s_mul_i32 {s(sWk)}, {s(sLw)}, {28*8192}")
    A(f"s_lshl_b32 {s(sT0)}, {s(sCC)}, 7")
    A(f"s_add_u32 {s(sWk)}, {s(sWk)}, {s(sT0)}")
    A(f"s_mul_i32 {s(sLW)}, {s(sLw)}, {28*1024}")
    sPk, sLP, sXb = 31, 33, 40
    A(f"s_mul_i32 {s(sPk)}, {s(sRB)}, {64*1792}")
    A(f"s_add_u32 {s(sPk)}, {s(sPk)}, {WS_P0}")
    A(f"s_lshl_b32 {s(sLP)}, {s(sLw)}, 12")
    A(f"s_add_u32 {s(sLP)}, {s(sLP)}, {OP}")
    A(f"s_lshl_b32 {s(sXb)}, {s(sRB)}, 16")
    A(f"s_add_u32 {s(sXb)}, {s(sXb)}, {s(sT0)}")
    A(f"s_add_u32 {s(sXb)}, {s(sXb)}, {WS_X1}")
    A("s_barrier")
    assert 28 % 2 == 0
    for g in range(7):
        A(f"s_add_u32 m0, {s(sLW)}, {OW + g*4096}")
        A(f"s_add_u32 {s(sT0)}, {s(sWk)}, {g*32768}")
        for jj in range(4): A(f"buffer_load_dwordx4 {v(voWo[jj])}, s[16:19], {s(sT0)} offen offset:{jj*1024} lds")
    A(f"s_lshl_b32 {s(sT2)}, {s(sRB)}, 10")
    A(f"s_add_u32 {s(sT2)}, {s(sT2)}, {WS_CNT + 32768}")
    wait_flags("t", sT2, 8)
    if stamps: STL.stamp()
    def issueO(st):
        slot = st % NSO
        A(f"s_add_u32 m0, {s(sLP)}, {slot*PSLOT}")
        A(f"s_add_u32 {s(sT0)}, {s(sPk)}, {st*256}")
        for jj in range(4): A(f"buffer_load_dwordx4 {v(voP[jj])}, s[4:7], {s(sT0)} offen offset:{jj*1024} lds")
    cntO = lambda st: 4
    for st in range(NSO): issueO(st)
    issued = NSO; xq = 0
    for i in range(NSTO):
        out = sum(cntO(j) for j in range(i + 1, issued)) + xq
        A(f"s_waitcnt vmcnt({out})")
        A("s_barrier")
        if i >= 1 and issued < NSTO:
            issueO(issued); issued += 1
        if i == NSTO - 2:
            A(f"s_lshl_b32 {s(sT0)}, {s(sLw)}, 11")
            A(f"s_add_u32 m0, {s(sT0)}, {XT}")
            for jj in range(2): A(f"buffer_load_dwordx4 {v(voX[jj])}, s[4:7], {s(sXb)} offen offset:{jj*1024} lds")
            xq = 2
    A("s_waitcnt vmcnt(0)")
    A("s_barrier")
    if stamps:
        STL.stamp(); A(f"s_cmp_lg_u32 {s(sLw)}, 0"); A(f"s_cselect_b32 s20, 1, 0"); STL.flush(4, vt[0], slot=1)
    A("s_endpgm")
    nvmax[0] = max(nvmax[0], R.hi)
    A.label(f"{name}_end")
    A("s_endpgm")
    return dict(name=name, grid=NWG, block=512, lds=LDS, vgpr=256, sgpr=96 if stamps else 60)
```

```python
from common import *
from gemm_util import fhex
from tables import TAB_OFF
from g2a import getpc_sym
NMOD = 96

def gen_ka(A, name="ka_kernel", stamps=False, prefetch=True, codepf=True):
    NFFT = 128; NPF = 32 if prefetch else 0; NWG = NFFT + NMOD + NPF
    F_L = 16384
    A.barrier_state(); A.raw(kernel_header(name))
    ST = Stamps(A, on=stamps, kidx=0)
    A(f"s_cmp_ge_u32 s2, {NWG}")
    A(f"s_cbranch_scc1 {name}_end")
    ST.stamp()
    A(f"s_cmp_ge_u32 s2, {NFFT}")
    A(f"s_cbranch_scc1 {name}_mod")
    load_ptr(A, 4, "x"); load_ptr(A, 6, "ws")
    getpc_sym(A, 8, "fft_tables")
    A("v_readfirstlane_b32 s20, v0")
    A("s_and_b32 s10, s2, 7")
    A("s_bfe_u32 s11, s2, 0x20003")
    A("s_lshl2_add_u32 s10, s10, s11")
    A("s_lshl_b32 s10, s10, 10")
    A("s_lshr_b32 s11, s2, 5")
    R = RegAlloc(1)
    voff = R.alloc(); vi = R.alloc(); vq = R.alloc(); vt0 = R.alloc(); vt1 = R.alloc()
    vS = R.alloc(); vQ = R.alloc(); vtr = R.alloc(); vst = R.alloc(); vl16 = R.alloc()
    xr = [R.alloc(4) for _ in range(8)]
    assert xr[7] == xr[0] + 28
    xo = R.alloc(8, 4)
    Ff = [[R.alloc(4) for _ in range(2)] for _ in range(2)]
    Af = [[R.alloc(4) for _ in range(2)] for _ in range(2)]
    acc = [[R.alloc(4) for _ in range(2)] for _ in range(2)]
    tmp = R.alloc(16, 4)
    A(f"v_lshrrev_b32 {v(vt0)}, 3, v0")
    A(f"v_and_b32 {v(vt1)}, 7, v0")
    A(f"v_lshlrev_b32 {v(vt0)}, 15, {v(vt0)}")
    A(f"v_lshl_add_u32 {v(voff)}, {v(vt1)}, 4, {v(vt0)}")
    A(f"v_add_u32 {v(voff)}, s10, {v(voff)}")
    A(f"v_lshlrev_b32 {v(vl16)}, 4, v0")
    A("s_lshr_b32 s20, s20, 6")
    A("s_lshl_b32 s12, s20, 10")
    A(f"s_add_u32 m0, s12, {F_L}")
    A("s_waitcnt lgkmcnt(0)")
    for it in range(8):
        A(f"global_load_dwordx4 {v(xr[it],4)}, {v(voff)}, s[4:5] offset:{it*128}")
    A(f"global_load_lds_dwordx4 {v(vl16)}, s[8:9] offset:{TAB_OFF['tab_f64']}")
    A(f"v_and_b32 {v(vi)}, 15, v0")
    A(f"v_bfe_u32 {v(vq)}, v0, 4, 2")
    A(f"v_lshrrev_b32 {v(vt0)}, 8, v0")
    A(f"v_lshlrev_b32 {v(vst)}, 20, {v(vt0)}")
    A(f"v_lshl_add_u32 {v(vst)}, {v(vi)}, 15, {v(vst)}")
    A(f"v_bfe_u32 {v(vt1)}, v0, 6, 2")
    A(f"v_lshl_add_u32 {v(vst)}, {v(vt1)}, 5, {v(vst)}")
    A(f"v_lshl_add_u32 {v(vst)}, {v(vq)}, 3, {v(vst)}")
    A("s_lshl_b32 s12, s11, 8")
    A("s_add_u32 s10, s10, s12")
    A(f"s_add_u32 s10, s10, {WS_T}")
    A(f"v_add_u32 {v(vst)}, s10, {v(vst)}")
    A(f"v_lshlrev_b32 {v(vtr)}, 5, {v(vt1)}")
    A(f"v_lshrrev_b32 {v(vt1)}, 2, {v(vi)}")
    A(f"v_lshl_add_u32 {v(vt1)}, {v(vq)}, 3, {v(vt1)}")
    A(f"v_lshl_add_u32 {v(vtr)}, {v(vt1)}, 7, {v(vtr)}")
    A(f"v_and_b32 {v(vt1)}, 3, {v(vi)}")
    A(f"v_lshl_add_u32 {v(vtr)}, {v(vt1)}, 3, {v(vtr)}")
    vfa = R.alloc()
    A(f"v_and_b32 {v(vfa)}, 63, v0")
    A(f"v_lshlrev_b32 {v(vfa)}, 4, {v(vfa)}")
    A(f"v_lshl_add_u32 {v(vfa)}, {v(vt0)}, 12, {v(vfa)}")
    A(f"v_mov_b32 {v(vS)}, 0")
    A(f"v_mov_b32 {v(vQ)}, 0")
    A("s_mov_b32 s12, 0x3f803f80")
    for it in range(8):
        A(f"s_waitcnt vmcnt({7 - it + 1})")
        for j in range(4):
            A(f"v_dot2_f32_bf16 {v(vS)}, {v(xr[it]+j)}, s12, {v(vS)}")
            A(f"v_dot2_f32_bf16 {v(vQ)}, {v(xr[it]+j)}, {v(xr[it]+j)}, {v(vQ)}")
    ST.stamp()
    A("s_lshl_b32 s13, s11, 3")
    A("s_mov_b32 s12, 0xffff0000")
    A("s_set_gpr_idx_on s13, gpr_idx(SRC0)")
    for j in range(8): A(f"v_mov_b32 {v(xo+j)}, {v(xr[0]+j)}")
    A("s_set_gpr_idx_off")
    for mode in ("quad_perm:[1,0,3,2]", "quad_perm:[2,3,0,1]", "row_half_mirror"):
        A(f"v_add_f32_dpp {v(vS)}, {v(vS)}, {v(vS)} {mode} row_mask:0xf bank_mask:0xf")
        A(f"v_add_f32_dpp {v(vQ)}, {v(vQ)}, {v(vQ)} {mode} row_mask:0xf bank_mask:0xf")
        A(f"v_lshlrev_b32 {v(tmp+0)}, 16, {v(xo+0)}") if mode.startswith("quad_perm:[1") else None
    for j in range(8):
        if j: A(f"v_lshlrev_b32 {v(tmp+2*j)}, 16, {v(xo+j)}")
        A(f"v_and_b32 {v(tmp+2*j+1)}, s12, {v(xo+j)}")
    A(f"v_mul_f32 {v(vS)}, 0x3b000000, {v(vS)}")
    A(f"v_mul_f32 {v(vQ)}, 0x3b000000, {v(vQ)}")
    A(f"v_fma_f32 {v(vQ)}, -{v(vS)}, {v(vS)}, {v(vQ)}")
    A(f"v_max_f32 {v(vQ)}, 0, {v(vQ)}")
    A(f"v_add_f32 {v(vQ)}, 0x3727c5ac, {v(vQ)}")
    A(f"v_rsq_f32 {v(vQ)}, {v(vQ)}")
    A(f"v_mul_f32 {v(vS)}, {v(vS)}, {v(vQ)}")
    for j in range(16): A(f"v_fma_f32 {v(tmp+j)}, {v(tmp+j)}, {v(vQ)}, -{v(vS)}")
    for h in range(2):
        for j in range(4): A(f"v_cvt_pk_bf16_f32 {v(xo+4*h+j)}, {v(tmp+8*h+2*j)}, {v(tmp+8*h+2*j+1)}")
        A(f"ds_write_b128 {v(vl16)}, {v(xo+4*h,4)} offset:{h*8192}")
    A("s_waitcnt vmcnt(0) lgkmcnt(0)")
    A("s_barrier")
    for h in range(2):
        for ks in range(2):
            for p in range(2):
                A(f"ds_read_b64_tr_b16 {v(Af[h][ks]+2*p,2)}, {v(vtr)} offset:{h*8192 + ks*32*128 + p*4*128}")
        if h == 0:
            for nt in range(2):
                for ks in range(2): A(f"ds_read_b128 {v(Ff[nt][ks],4)}, {v(vfa)} offset:{F_L + nt*2048 + ks*1024}")
    A(f"v_add_u32 {v(vt1)}, {16*32768}, {v(vst)}")
    for h in range(2):
        A(f"s_waitcnt lgkmcnt({4*(1-h)})")
        for ks in range(2):
            for nt in range(2):
                c = "0" if ks == 0 else v(acc[h][nt], 4)
                A(f"v_mfma_f32_16x16x32_bf16 {v(acc[h][nt],4)}, {v(Af[h][ks],4)}, {v(Ff[nt][ks],4)}, {c}")
    for h in range(2):
        for nt in range(2):
            k = h * 2 + nt
            A(f"v_cvt_pk_bf16_f32 {v(tmp+2*k)}, {v(acc[h][nt])}, {v(acc[h][nt]+1)}")
            A(f"v_cvt_pk_bf16_f32 {v(tmp+2*k+1)}, {v(acc[h][nt]+2)}, {v(acc[h][nt]+3)}")
            A(f"global_store_dwordx2 {v(vst if nt == 0 else vt1)}, {v(tmp+2*k,2)}, s[6:7] offset:{h*128}")
    if stamps:
        ST.stamp(); A("s_waitcnt vmcnt(0)"); ST.stamp(); ST.flush(6, tmp)
    A("s_endpgm")
    return_nv = R.hi
    import g6a
    return _ka_tail(A, name, ST, stamps, prefetch, NFFT, NPF, NWG, return_nv, F_L + 8192, codepf)

def _ka_tail(A, name, ST, stamps, prefetch, NFFT, NPF, NWG, nv, lds, codepf=True):
    A.label(f"{name}_mod")
    if prefetch:
        A(f"s_cmp_ge_u32 s2, {NFFT+NMOD}")
        A(f"s_cbranch_scc1 {name}_pf")
    load_ptr(A, 4, "wmod"); load_ptr(A, 8, "c"); load_ptr(A, 6, "ws")
    A(f"s_sub_u32 s10, s2, {NFFT}")
    A("s_lshl_b32 s11, s10, 6")
    R = RegAlloc(1)
    vk = R.alloc(); vt0 = R.alloc(); vt1 = R.alloc(); vc = R.alloc()
    vo = [R.alloc() for _ in range(4)]
    wr = [R.alloc(4) for _ in range(4)]
    cv = [R.alloc() for _ in range(4)]; ch = [R.alloc() for _ in range(4)]
    ac = R.alloc(8, 4); rr = R.alloc(16, 4)
    A(f"v_and_b32 {v(vt0)}, 0x1c0, v0")
    A(f"v_bfe_u32 {v(vt1)}, v0, 2, 4")
    A(f"v_add_u32 {v(vk)}, {v(vt0)}, {v(vt1)}")
    A(f"v_and_b32 {v(vc)}, 3, v0")
    A(f"v_mul_u32_u24 {v(vo[0])}, 6144, {v(vk)}")
    A(f"v_lshl_add_u32 {v(vo[0])}, {v(vc)}, 4, {v(vo[0])}")
    A(f"v_add_u32 {v(vo[0])}, s11, {v(vo[0])}")
    for it in range(1, 4): A(f"v_add_u32 {v(vo[it])}, {it*16*6144}, {v(vo[0])}")
    A(f"v_lshlrev_b32 {v(vk)}, 1, {v(vk)}")
    A("s_waitcnt lgkmcnt(0)")
    for it in range(4): A(f"global_load_ushort {v(cv[it])}, {v(vk)}, s[8:9] offset:{it*32}")
    for it in range(4): A(f"global_load_dwordx4 {v(wr[it],4)}, {v(vo[it])}, s[4:5]")
    for j in range(8): A(f"v_mov_b32 {v(ac+j)}, 0")
    A("s_waitcnt vmcnt(4)")
    for it in range(4): A(f"v_lshlrev_b32 {v(cv[it])}, 16, {v(cv[it])}")
    for it in range(4): A(f"v_mul_f32 {v(ch[it])}, 0xbfb8aa3b, {v(cv[it])}")
    for it in range(4): A(f"v_exp_f32 {v(ch[it])}, {v(ch[it])}")
    for it in range(4): A(f"v_add_f32 {v(ch[it])}, 1.0, {v(ch[it])}")
    for it in range(4): A(f"v_rcp_f32 {v(ch[it])}, {v(ch[it])}")
    for it in range(4): A(f"v_mul_f32 {v(cv[it])}, {v(cv[it])}, {v(ch[it])}")
    for it in range(4): A(f"v_cvt_pk_bf16_f32 {v(cv[it])}, {v(cv[it])}, 0")
    for it in range(4): A(f"v_lshlrev_b32 {v(ch[it])}, 16, {v(cv[it])}")
    for it in range(4):
        A(f"s_waitcnt vmcnt({3-it})")
        for j in range(4):
            A(f"v_dot2_f32_bf16 {v(ac+2*j)}, {v(wr[it]+j)}, {v(cv[it])}, {v(ac+2*j)}")
            A(f"v_dot2_f32_bf16 {v(ac+2*j+1)}, {v(wr[it]+j)}, {v(ch[it])}, {v(ac+2*j+1)}")
    for rot in (4, 8):
        for j in range(8):
            A(f"v_add_f32_dpp {v(ac+j)}, {v(ac+j)}, {v(ac+j)} row_ror:{rot} row_mask:0xf bank_mask:0xf")
    A(f"v_lshrrev_b32 {v(vt0)}, 4, v0")
    A(f"v_lshlrev_b32 {v(vt0)}, 7, {v(vt0)}")
    A(f"v_lshl_add_u32 {v(vt0)}, {v(vc)}, 5, {v(vt0)}")
    A(f"ds_write_b128 {v(vt0)}, {v(ac,4)}")
    A(f"ds_write_b128 {v(vt0)}, {v(ac+4,4)} offset:16")
    if prefetch and codepf:
        lab = f"{name}_nocp"
        A("s_cmp_ge_u32 s10, 8")
        A(f"s_cbranch_scc1 {lab}")
        getpc_sym(A, 12, "code_begin")
        A(f"v_lshlrev_b32 {v(vt0)}, 7, v0")
        A(f"v_mov_b32 {v(vt1)}, code_end-code_begin-4")
        A(f"v_min_u32 {v(vt0)}, {v(vt0)}, {v(vt1)}")
        A(f"v_and_b32 {v(vt0)}, -4, {v(vt0)}")
        A(f"global_load_dword {v(vk)}, {v(vt0)}, s[12:13]")
        A.label(lab)
    A("v_readfirstlane_b32 s20, v0")
    A("s_waitcnt lgkmcnt(0)")
    A("s_barrier")
    A("s_cmp_ge_u32 s20, 64")
    A(f"s_cbranch_scc1 {name}_end")
    A(f"v_and_b32 {v(vt1)}, 31, v0")
    A(f"v_lshrrev_b32 {v(vt0)}, 5, v0")
    A(f"v_lshlrev_b32 {v(vt0)}, 11, {v(vt0)}")
    A(f"v_lshl_add_u32 {v(vt0)}, {v(vt1)}, 2, {v(vt0)}")
    for p in range(16): A(f"ds_read_b32 {v(rr+p)}, {v(vt0)} offset:{p*128}")
    A("s_lshr_b32 s11, s10, 4")
    A("s_cmp_eq_u32 s11, 1")
    A("s_cselect_b32 s12, 1.0, 0")
    A("s_cmp_eq_u32 s11, 4")
    A("s_cselect_b32 s12, 1.0, s12")
    A("s_lshl_b32 s11, s10, 7")
    if WS_MOD: A(f"s_add_u32 s11, s11, {WS_MOD}")
    A(f"v_lshl_add_u32 {v(vt1)}, {v(vt1)}, 2, s11")
    A("s_waitcnt lgkmcnt(0)")
    for st_ in (8, 4, 2, 1):
        for p in range(st_): A(f"v_add_f32 {v(rr+p)}, {v(rr+p)}, {v(rr+p+st_)}")
    A(f"v_mov_b32 {v(rr+1)}, {v(rr)}")
    A(f"v_permlane32_swap_b32 {v(rr)}, {v(rr+1)}")
    A(f"v_add_f32 {v(rr)}, {v(rr)}, {v(rr+1)}")
    A(f"v_cvt_pk_bf16_f32 {v(rr)}, {v(rr)}, {v(rr)}")
    A(f"v_lshlrev_b32 {v(rr)}, 16, {v(rr)}")
    A(f"v_add_f32 {v(rr)}, s12, {v(rr)}")
    A(f"v_cvt_pk_bf16_f32 {v(rr)}, {v(rr)}, {v(rr)}")
    A(f"v_lshlrev_b32 {v(rr)}, 16, {v(rr)}")
    A(f"global_store_dword {v(vt1)}, {v(rr)}, s[6:7]")
    if stamps:
        A("s_mov_b32 s20, 0"); ST.n = 1; ST.stamp(); ST.stamp(); A("s_waitcnt vmcnt(0)"); ST.stamp(); ST.flush(6, ac)
    A("s_endpgm")
    if prefetch:
        A.label(f"{name}_pf")
        load_ptr(A, 4, "win")
        A(f"s_sub_u32 s10, s2, {NFFT+NMOD}")
        A("s_lshr_b32 s10, s10, 3")
        A("s_mul_i32 s10, s10, 1792")
        A("s_and_b32 s11, s2, 1")
        A("s_mul_i32 s11, s11, 896")
        A("v_add_u32 v1, s10, v0")
        A("v_mov_b32 v6, 896")
        A("s_waitcnt lgkmcnt(0)")
        for it in range(4):
            if it == 3:
                A("v_cmp_gt_u32 vcc, 256, v0")
                A("s_and_b64 exec, exec, vcc")
                A(f"s_cbranch_execz {name}_end")
            A("v_mul_u32_u24 v2, 9363, v1")
            A("v_lshrrev_b32 v2, 17, v2")
            A("v_mul_u32_u24 v3, 14, v2")
            A("v_sub_u32 v3, v1, v3")
            A("v_mul_u32_u24 v2, 3584, v2")
            A("v_lshl_add_u32 v2, v3, 7, v2")
            A("v_cmp_lt_u32 vcc, 6, v3")
            A("v_cndmask_b32 v3, 0, v6, vcc")
            A("v_add3_u32 v2, v2, v3, s11")
            A(f"global_load_dword v{8+it}, v2, s[4:5]")
            if it < 3: A("v_add_u32 v1, 512, v1")
    A.label(f"{name}_end")
    A("s_endpgm")
    return dict(name=name, grid=NWG, block=512, lds=lds, vgpr=max(nv, R.hi), sgpr=96 if stamps else 32)

def gen_kb(A, name="kb_kernel", stamps=False, prefetch=True, pfhalf=True, wmcalc=True):
    NW = 132; NWG = NW + 4
    TB_L = 0
    MD_L = TB_L + 10240
    WM_L = MD_L + 8192
    T_B = WM_L + 1024
    TS = 1056; V_OFF = T_B + 64 * TS; VS = 80; US = 144; YS = 2064
    U_OFF = T_B; Y_OFF = T_B + 20480
    LDS = V_OFF + 256 * VS
    A.barrier_state(); A.raw(kernel_header(name))
    ST = Stamps(A, on=stamps, kidx=1)
    sW, sC, sG, sT0, sT1, sT2, sRow, sMir, sRow2, sY = 20, 21, 22, 23, 24, 25, 26, 27, 28, 29
    SRD_T = 16
    A(f"s_cmp_ge_u32 s2, {NW}")
    A(f"s_cbranch_scc1 {name}_pf")
    ST.stamp()
    load_ptr(A, 16, "ws"); load_ptr(A, 4, "x")
    if not wmcalc: load_ptr(A, 6, "sre"); load_ptr(A, 8, "sim")
    if prefetch: load_ptr(A, 12, "wsp")
    getpc_sym(A, 10, "fft_tables")
    A(f"v_readfirstlane_b32 {s(sW)}, v0")
    A(f"s_mov_b32 s18, {WS_T + 2*MB}")
    A("s_mov_b32 s19, 0x20000")
    A(f"s_and_b32 {s(sT0)}, s2, 7")
    A(f"s_bfe_u32 {s(sG)}, s2, 0x20003")
    A(f"s_lshr_b32 {s(sT1)}, s2, 5")
    A(f"s_lshl3_add_u32 {s(sC)}, {s(sT1)}, {s(sT0)}")
    A(f"s_cmp_ge_u32 s2, 128")
    A(f"s_cselect_b32 {s(sC)}, 32, {s(sC)}")
    A(f"s_cselect_b32 {s(sG)}, {s(sT0)}, {s(sG)}")
    A(f"s_lshr_b32 {s(sW)}, {s(sW)}, 6")
    R = RegAlloc(1)
    vl = R.alloc(); vq = R.alloc(); vi = R.alloc(); vl16 = R.alloc(); vtid16 = R.alloc()
    vtb = R.alloc(8, 4); vt = [vtb + k for k in range(8)]
    A0 = R.alloc(4); A1 = R.alloc(4)
    F1 = [R.alloc(4) for _ in range(2)]; F2 = [[R.alloc(4) for _ in range(2)] for _ in range(2)]
    tw = R.alloc(16, 4)
    opca = [R.alloc() for _ in range(4)]
    xrow = [R.alloc(4) for _ in range(2)]
    Bf = [[R.alloc(4) for _ in range(2)] for _ in range(4)]
    acc = [R.alloc(4) for _ in range(4)]
    ga = R.alloc(8, 4); sb = R.alloc(8, 4); ocb = R.alloc(8, 4)
    vaT = R.alloc(); vaVw = R.alloc(); vaVr = R.alloc(); vaUw = R.alloc(); vaUr = R.alloc(); vaYw = R.alloc()
    vrow = [R.alloc() for _ in range(2)]
    xf = R.alloc(8, 4); yy = R.alloc(8, 4)
    Rr = R.alloc(4); Ri = R.alloc(4)
    A(f"v_and_b32 {v(vl)}, 63, v0")
    A(f"v_lshlrev_b32 {v(vl16)}, 4, {v(vl)}")
    A(f"v_lshlrev_b32 {v(vtid16)}, 4, v0")
    A(f"s_add_u32 {s(sT1)}, {s(sC)}, 32")
    A(f"s_and_b32 {s(sT2)}, {s(sC)}, 31")
    A(f"s_cselect_b32 {s(sMir)}, 1, 0")
    A(f"s_cselect_b32 {s(sT1)}, {s(sT1)}, 0x4000")
    A(f"s_cmp_ge_u32 {s(sW)}, 4")
    A(f"s_cselect_b32 {s(sT0)}, {s(sT1)}, {s(sC)}")
    A(f"s_lshl_b32 {s(sT0)}, {s(sT0)}, 15")
    A(f"s_and_b32 {s(sT1)}, {s(sW)}, 3")
    A(f"s_lshl_b32 {s(sT1)}, {s(sT1)}, 13")
    A(f"s_add_u32 {s(sT0)}, {s(sT0)}, {s(sT1)}")
    A(f"s_add_u32 {s(sT0)}, {s(sT0)}, {WS_T - 128}")
    A(f"s_mul_i32 {s(sT1)}, {s(sW)}, {8*TS}")
    A(f"s_add_u32 m0, {s(sT1)}, {T_B}")
    for j in range(4): A(f"v_add_u32 {v(vt[4+j])}, {128 - 32*j}, {v(vl16)}")
    A(f"v_and_b32 {v(vi)}, 15, v0")
    A(f"v_bfe_u32 {v(vq)}, v0, 4, 2")
    if not wmcalc:
        A(f"v_bfe_u32 {v(vt[0])}, v0, 2, 3")
        A(f"v_lshlrev_b32 {v(vt[0])}, 18, {v(vt[0])}")
        A(f"v_and_b32 {v(vt[1])}, 3, v0")
        A(f"v_lshl_add_u32 {v(vt[0])}, {v(vt[1])}, 4, {v(vt[0])}")
        A(f"s_lshl_b32 {s(sT1)}, {s(sG)}, 21")
        A(f"s_lshl_b32 {s(sT2)}, {s(sC)}, 12")
        A(f"s_add_u32 {s(sT1)}, {s(sT1)}, {s(sT2)}")
        A(f"v_add_u32 {v(vt[0])}, {s(sT1)}, {v(vt[0])}")
    A(f"s_lshl3_add_u32 {s(sT1)}, {s(sG)}, {s(sW)}")
    A(f"s_lshl_b32 {s(sT1)}, {s(sT1)}, 6")
    A(f"s_add_u32 {s(sRow)}, {s(sT1)}, {s(sC)}")
    A(f"s_sub_u32 {s(sRow2)}, 2048, {s(sRow)}")
    A(f"s_and_b32 {s(sRow2)}, {s(sRow2)}, 2047")
    A(f"s_lshl_b32 {s(sRow)}, {s(sRow)}, 10")
    A(f"s_lshl_b32 {s(sRow2)}, {s(sRow2)}, 10")
    A(f"v_add_u32 {v(vrow[0])}, {s(sRow)}, {v(vl16)}")
    A(f"v_add_u32 {v(vrow[1])}, {s(sRow2)}, {v(vl16)}")
    A(f"s_lshl_b32 {s(sT2)}, {s(sW)}, 10")
    A("s_waitcnt lgkmcnt(0)")
    for g in range(2):
        if g:
            A(f"s_add_u32 m0, m0, {4*TS}")
            A(f"s_add_u32 {s(sT0)}, {s(sT0)}, 4096")
        for j in range(4):
            A(f"buffer_load_dwordx4 {v(vt[4+j])}, {s(SRD_T,4)}, {s(sT0)} offen offset:{j*TS} lds")
    A(f"s_add_u32 m0, {s(sT2)}, {TB_L}")
    A(f"v_add_u32 {v(vt[1])}, {TAB_OFF['tab_f1']}, {v(vtid16)}")
    A(f"global_load_lds_dwordx4 {v(vt[1])}, s[10:11]")
    A(f"s_add_u32 m0, {s(sT2)}, {MD_L}")
    A(f"v_add_u32 {v(vt[2])}, {WS_MOD + 2048}, {v(vtid16)}")
    A(f"global_load_lds_dwordx4 {v(vt[2])}, s[16:17]")
    lx = f"{name}_nox"; l23 = f"{name}_x23"
    A(f"s_cmp_ge_u32 {s(sW)}, {2 if wmcalc else 4}")
    A(f"s_cbranch_scc1 {lx}")
    if not wmcalc:
        A(f"s_cmp_ge_u32 {s(sW)}, 2")
        A(f"s_cbranch_scc1 {l23}")
    A(f"s_add_u32 m0, {s(sT2)}, {TB_L + 8192}")
    A(f"v_add_u32 {v(vt[1])}, 8192, {v(vt[1])}")
    A(f"global_load_lds_dwordx4 {v(vt[1])}, s[10:11]")
    if not wmcalc:
        A(f"s_branch {lx}")
        A.label(l23)
        A(f"s_cmp_eq_u32 {s(sW)}, 3")
        A("s_cselect_b32 s6, s8, s6")
        A("s_cselect_b32 s7, s9, s7")
        A(f"s_cselect_b32 {s(sT1)}, 512, 0")
        A(f"s_add_u32 m0, {s(sT1)}, {WM_L}")
        A("s_mov_b32 exec_hi, 0")
        A(f"global_load_lds_dwordx4 {v(vt[0])}, s[6:7]")
        A("s_mov_b32 exec_hi, -1")
    A.label(lx)
    for h in range(2): A(f"global_load_dwordx4 {v(xrow[h],4)}, {v(vrow[h])}, s[4:5]")
    A(f"v_lshrrev_b32 {v(vt[0])}, 2, {v(vi)}")
    A(f"v_lshl_add_u32 {v(vt[0])}, {v(vq)}, 2, {v(vt[0])}")
    A(f"v_mul_u32_u24 {v(vaT)}, {TS}, {v(vt[0])}")
    A(f"v_and_b32 {v(vt[0])}, 3, {v(vi)}")
    A(f"v_lshl_add_u32 {v(vaT)}, {v(vt[0])}, 3, {v(vaT)}")
    A(f"v_and_b32 {v(vt[4])}, 0x1c0, v0")
    A(f"v_lshl_add_u32 {v(vaT)}, {v(vt[4])}, 1, {v(vaT)}")
    A(f"v_add_u32 {v(vaT)}, {T_B}, {v(vaT)}")
    A(f"v_lshl_add_u32 {v(vt[0])}, {v(vq)}, 6, {v(vi)}")
    A(f"v_mul_u32_u24 {v(vaVw)}, {VS}, {v(vt[0])}")
    A(f"v_lshrrev_b32 {v(vt[0])}, 3, {v(vt[4])}")
    A(f"s_mov_b32 {s(sT2)}, {V_OFF}")
    A(f"v_add3_u32 {v(vaVw)}, {v(vaVw)}, {v(vt[0])}, {s(sT2)}")
    A(f"v_lshrrev_b32 {v(vt[0])}, 1, {v(vt[4])}")
    A(f"v_add_u32 {v(vt[0])}, {v(vt[0])}, {v(vi)}")
    A(f"v_mul_u32_u24 {v(vaVr)}, {VS}, {v(vt[0])}")
    A(f"v_lshl_add_u32 {v(vaVr)}, {v(vq)}, 4, {v(vaVr)}")
    A(f"v_add_u32 {v(vaVr)}, {V_OFF}, {v(vaVr)}")
    A(f"v_lshrrev_b32 {v(vt[0])}, 2, {v(vt[4])}")
    A(f"v_lshl_add_u32 {v(vt[3])}, {v(vq)}, 1, {v(vt[0])}")
    A(f"v_mul_u32_u24 {v(vaUw)}, {US}, {v(vt[3])}")
    A(f"v_lshl_add_u32 {v(vaUw)}, {v(vi)}, 2, {v(vaUw)}")
    A(f"v_add_u32 {v(vt[3])}, {v(vt[0])}, {v(vi)}")
    A(f"v_mul_u32_u24 {v(vaUr)}, {US}, {v(vt[3])}")
    A(f"v_lshl_add_u32 {v(vaUr)}, {v(vq)}, 4, {v(vaUr)}")
    A(f"s_mul_i32 {s(sY)}, {s(sW)}, {YS}")
    A(f"s_add_u32 {s(sY)}, {s(sY)}, {Y_OFF}")
    A(f"v_lshlrev_b32 {v(vaYw)}, 6, {v(vi)}")
    A(f"v_lshl_add_u32 {v(vaYw)}, {v(vq)}, 4, {v(vaYw)}")
    A(f"v_add_u32 {v(vaYw)}, {s(sY)}, {v(vaYw)}")
    A(f"v_lshrrev_b32 {v(vt[5])}, 1, {v(vi)}")
    A(f"v_lshlrev_b32 {v(vt[5])}, 6, {v(vt[5])}")
    A(f"v_lshl_add_u32 {v(vt[5])}, {v(vq)}, 3, {v(vt[5])}")
    A(f"v_add_u32 {v(vt[6])}, {v(vt[4])}, {v(vi)}")
    A(f"v_lshlrev_b32 {v(vt[6])}, 2, {v(vt[6])}")
    A(f"v_and_b32 {v(vt[3])}, 1, v0")
    A(f"v_cmp_eq_u32 vcc, 1, {v(vt[3])}")
    if wmcalc:
        vT = Rr; vK = Rr + 1; cs_ = [Ri + j for j in range(4)]
        A(f"s_lshl_b32 {s(sT1)}, {s(sG)}, 9")
        A(f"s_add_u32 {s(sT1)}, {s(sT1)}, {s(sC)}")
        A(f"v_lshrrev_b32 {v(vT)}, 1, {v(vi)}")
        A(f"v_lshl_add_u32 {v(vT)}, {v(vT)}, 6, {s(sT1)}")
        A(f"v_lshlrev_b32 {v(vK)}, 2, {v(vq)}")
        A(f"v_mul_u32_u24 {v(vK)}, {v(vT)}, {v(vK)}")
        for jp in range(4):
            ang = []
            for u in range(2):
                jj = 2 * jp + u; koff = jj if jj < 4 else 16 + jj - 4
                r = cs_[u]
                A(f"v_mad_u32_u24 {v(r)}, {v(vT)}, {koff}, {v(vK)}")
                A(f"v_and_b32 {v(r)}, 2047, {v(r)}")
                A(f"v_cvt_f32_u32 {v(r)}, {v(r)}")
                A(f"v_mul_f32 {v(r)}, 0x3a000000, {v(r)}")
            for u in range(2):
                A(f"v_sin_f32 {v(cs_[2+u])}, {v(cs_[u])}")
                A(f"v_cos_f32 {v(cs_[u])}, {v(cs_[u])}")
            t0_, t1_, t2_, t3_ = vt[0], vt[1], vt[2], vt[7]
            A(f"v_sub_f32 {v(t0_)}, 0, {v(cs_[2])}")
            A(f"v_sub_f32 {v(t1_)}, 0, {v(cs_[3])}")
            A(f"v_cndmask_b32 {v(t0_)}, {v(cs_[0])}, {v(t0_)}, vcc")
            A(f"v_cndmask_b32 {v(t1_)}, {v(cs_[1])}, {v(t1_)}, vcc")
            A(f"v_cvt_pk_bf16_f32 {v(A0+jp)}, {v(t0_)}, {v(t1_)}")
            A(f"v_cndmask_b32 {v(t2_)}, {v(cs_[2])}, {v(cs_[0])}, vcc")
            A(f"v_cndmask_b32 {v(t3_)}, {v(cs_[3])}, {v(cs_[1])}, vcc")
            A(f"v_cvt_pk_bf16_f32 {v(A1+jp)}, {v(t2_)}, {v(t3_)}")
    A(f"s_mov_b32 {s(sT0)}, 0x80008000")
    A("s_waitcnt vmcnt(2)")
    vpf = R.alloc(); vpd = R.alloc(2)
    if prefetch:
        A(f"s_bfe_u32 {s(sT1)}, s2, 0x20001")
        A(f"s_lshl_b32 {s(sT1)}, {s(sT1)}, 21")
        A(f"s_lshr_b32 {s(sT2)}, s2, 3")
        A(f"s_lshl3_add_u32 {s(sT2)}, {s(sT2)}, {s(sW)}")
        A(f"s_and_b32 {s(sT2)}, {s(sT2)}, 127")
        A(f"s_lshl_b32 {s(sT2)}, {s(sT2)}, 14")
        A(f"s_add_u32 {s(sT1)}, {s(sT1)}, {s(sT2)}")
        if pfhalf:
            A(f"s_and_b32 {s(sT2)}, s2, 1")
            A(f"s_lshl_b32 {s(sT2)}, {s(sT2)}, 13")
            A(f"s_add_u32 {s(sT1)}, {s(sT1)}, {s(sT2)}")
        A(f"v_lshl_add_u32 {v(vpf)}, {v(vl)}, 7, {s(sT1)}")
    ST.stamp()
    A("s_barrier")
    if prefetch:
        A(f"global_load_dword {v(vpd)}, {v(vpf)}, s[12:13]")
        if not pfhalf:
            A(f"v_add_u32 {v(vpf)}, 8192, {v(vpf)}")
            A(f"global_load_dword {v(vpd+1)}, {v(vpf)}, s[12:13]")
    if not wmcalc:
        for reg, o in ((Rr, 0), (Ri, 512)):
            A(f"ds_read_b64 {v(reg,2)}, {v(vt[5])} offset:{WM_L + o}")
            A(f"ds_read_b64 {v(reg+2,2)}, {v(vt[5])} offset:{WM_L + o + 32}")
    for jt in range(4):
        for c in range(2):
            for p in range(2):
                A(f"ds_read_b64_tr_b16 {v(Bf[jt][c]+2*p,2)}, {v(vaT)} offset:{c*32*TS + p*16*TS + jt*32}")
        if jt == 1:
            pass
    if not wmcalc:
        A("s_waitcnt lgkmcnt(15)")
        for j in range(4):
            A(f"v_xor_b32 {v(vt[0])}, {s(sT0)}, {v(Ri+j)}")
            A(f"v_cndmask_b32 {v(A0+j)}, {v(Rr+j)}, {v(Ri+j)}, vcc")
            A(f"v_cndmask_b32 {v(A1+j)}, {v(vt[0])}, {v(Rr+j)}, vcc")
    for jt in range(4): A(f"ds_read_b32 {v(opca[jt])}, {v(vt[6])} offset:{MD_L + jt*64}")
    for jt in range(4):
        A(f"s_waitcnt lgkmcnt({min(15, (3-jt)*4 + 4)})")
        A(f"v_mfma_f32_16x16x32_bf16 {v(acc[jt],4)}, {v(A0,4)}, {v(Bf[jt][0],4)}, 0")
        A(f"v_mfma_f32_16x16x32_bf16 {v(acc[jt],4)}, {v(A1,4)}, {v(Bf[jt][1],4)}, {v(acc[jt],4)}")
    for mt in range(2): A(f"ds_read_b128 {v(F1[mt],4)}, {v(vl16)} offset:{TB_L + mt*1024}")
    A(f"v_lshlrev_b32 {v(vt[7])}, 2, {v(vl16)}")
    for h in range(4): A(f"ds_read_b128 {v(tw+4*h,4)}, {v(vt[7])} offset:{TB_L + 6144 + h*16}")
    A("s_waitcnt lgkmcnt(6)")
    for jt in range(4):
        for r in range(4): A(f"v_mul_f32 {v(acc[jt]+r)}, {v(acc[jt]+r)}, {v(opca[jt])}")
    lab = f"{name}_nodc"
    A(f"s_or_b32 {s(sT0)}, {s(sC)}, {s(sG)}")
    A(f"s_cbranch_scc1 {lab}")
    A(f"v_and_b32 {v(vt[2])}, 0x1cf, v0")
    A(f"v_lshlrev_b32 {v(vt[2])}, 2, {v(vt[2])}")
    if WS_MOD: A(f"v_add_u32 {v(vt[2])}, {WS_MOD}, {v(vt[2])}")
    for jt in range(4): A(f"global_load_dword {v(Bf[0][0]+jt)}, {v(vt[2])}, s[16:17] offset:{jt*64}")
    A(f"v_cmp_eq_u32 vcc, 0, {v(vq)}")
    A(f"v_mov_b32 {v(vt[1])}, 0x45000000")
    A(f"v_cndmask_b32 {v(vt[1])}, 0, {v(vt[1])}, vcc")
    A("s_waitcnt vmcnt(0)")
    for jt in range(4): A(f"v_fmac_f32 {v(acc[jt])}, {v(Bf[0][0]+jt)}, {v(vt[1])}")
    A.label(lab)
    for jt in range(4):
        ac = acc[jt]
        A(f"v_cvt_pk_bf16_f32 {v(ac)}, {v(ac)}, {v(ac+1)}")
        A(f"v_cvt_pk_bf16_f32 {v(ac+1)}, {v(ac+2)}, {v(ac+3)}")
        o0 = (jt&1)*16*VS + (jt>>1)*4
        A(f"ds_write_b32 {v(vaVw)}, {v(ac)} offset:{o0}")
        A(f"ds_write_b32 {v(vaVw)}, {v(ac+1)} offset:{o0 + 32*VS}")
    A(f"s_mov_b32 {s(sT0)}, 0xffff0000")
    A("s_waitcnt lgkmcnt(0)")
    A("s_barrier")
    ST.stamp()
    for h in range(2): A(f"ds_read_b128 {v(Bf[h][0],4)}, {v(vaVr)} offset:{h*16*VS}")
    for nt in range(2):
        for ks in range(2): A(f"ds_read_b128 {v(F2[nt][ks],4)}, {v(vl16)} offset:{TB_L + 2048 + nt*2048 + ks*1024}")
    A(f"v_lshlrev_b32 {v(vt[7])}, 1, {v(vl16)}")
    for h in range(2):
        A(f"s_waitcnt lgkmcnt({5-h})")
        for mt in range(2):
            A(f"v_mfma_f32_16x16x32_bf16 {v(acc[2*h+mt],4)}, {v(F1[mt],4)}, {v(Bf[h][0],4)}, 0")
    for reg, sec in ((ga, 1), (sb, 2), (ocb, 3)):
        for u in range(2): A(f"ds_read_b128 {v(reg+4*u,4)}, {v(vt[7])} offset:{MD_L + sec*2048 + u*16}")
    for h in range(2):
        for mt in range(2):
            for pp in range(2):
                re, im = acc[2*h+mt] + 2 * pp, acc[2*h+mt] + 2 * pp + 1
                k = ((h*2+mt)*2+pp)*2
                c_, s_ = tw + k, tw + k + 1
                t0, t1 = vt[4*pp], vt[4*pp+1]
                if pp == 1 and False: pass
                A(f"v_mul_f32 {v(t0)}, {v(re)}, {v(c_)}")
                A(f"v_mul_f32 {v(t1)}, {v(im)}, {v(c_)}")
                A(f"v_fma_f32 {v(t0)}, {v(im)}, {v(s_)}, {v(t0)}")
                A(f"v_fma_f32 {v(t1)}, -{v(re)}, {v(s_)}, {v(t1)}")
                A(f"v_cvt_pk_bf16_f32 {v(vt[4*pp+2])}, {v(t0)}, {v(t1)}")
                A(f"ds_write_b32 {v(vaUw)}, {v(vt[4*pp+2])} offset:{U_OFF + (8*mt+pp)*US + h*64}")
    A("s_waitcnt lgkmcnt(0)")
    for ks in range(2): A(f"ds_read_b128 {v(Bf[ks][0],4)}, {v(vaUr)} offset:{U_OFF + ks*64}")
    A(f"s_waitcnt vmcnt({(1 if pfhalf else 2) if prefetch else 0})")
    xg = [xf, yy]
    for r in range(2):
        for j in range(4):
            A(f"v_lshlrev_b32 {v(xg[r]+2*j)}, 16, {v(xrow[r]+j)}")
            A(f"v_and_b32 {v(xg[r]+2*j+1)}, {s(sT0)}, {v(xrow[r]+j)}")
    for ks in range(2):
        A(f"s_waitcnt lgkmcnt({1-ks})")
        for nt in range(2):
            c = "0" if ks == 0 else v(acc[nt], 4)
            A(f"v_mfma_f32_16x16x32_bf16 {v(acc[nt],4)}, {v(Bf[ks][0],4)}, {v(F2[nt][ks],4)}, {c}")
    A(f"v_lshl_add_u32 {v(vt[0])}, {v(vl16)}, 1, {s(sY)}")
    A(f"v_lshlrev_b32 {v(vt[2])}, 1, {v(vl16)}")
    A(f"v_sub_u32 {v(vt[1])}, 2048, {v(vt[2])}")
    A(f"v_and_b32 {v(vt[1])}, 2047, {v(vt[1])}")
    A(f"v_add_u32 {v(vt[1])}, {s(sY)}, {v(vt[1])}")
    A(f"s_add_u32 {s(sT1)}, {s(sY)}, {505*4}")
    A(f"v_sub_u32 {v(vt[2])}, {s(sT1)}, {v(vt[2])}")
    for nt in range(2): A(f"ds_write_b128 {v(vaYw)}, {v(acc[nt],4)} offset:{nt*1024}")
    A("s_waitcnt lgkmcnt(0)")
    ST.stamp()
    y = Bf[2][0]; assert Bf[2][1] == y + 4
    y2 = Bf[3][0]; assert Bf[3][1] == y2 + 4
    A(f"ds_read_b128 {v(y,4)}, {v(vt[0])}")
    A(f"ds_read_b128 {v(y+4,4)}, {v(vt[0])} offset:16")
    A(f"ds_read_b32 {v(y2)}, {v(vt[1])}")
    A(f"ds_read_b32 {v(y2+1)}, {v(vt[2])} offset:24")
    for j in (2, 4, 6): A(f"ds_read2_b32 {v(y2+j,2)}, {v(vt[2])} offset0:{7-j} offset1:{6-j}")
    A("s_waitcnt lgkmcnt(5)")
    for j in range(8): A(f"v_fma_f32 {v(xf+j)}, {v(ga+j)}, {v(y+j)}, {v(xf+j)}")
    A("s_waitcnt lgkmcnt(0)")
    for j in range(8): A(f"v_fma_f32 {v(yy+j)}, {v(ga+j)}, {v(y2+j)}, {v(yy+j)}")
    for r in range(2):
        for j in range(4): A(f"v_cvt_pk_bf16_f32 {v(xrow[r]+j)}, {v(xg[r]+2*j)}, {v(xg[r]+2*j+1)}")
    A(f"v_add_u32 {v(vt[2])}, {WS_X1}, {v(vrow[0])}")
    A(f"v_add_u32 {v(vt[3])}, {WS_X1}, {v(vrow[1])}")
    A(f"global_store_dwordx4 {v(vt[2])}, {v(xrow[0],4)}, s[16:17]")
    lab2 = f"{name}_nomir1"
    A(f"s_cmp_eq_u32 {s(sMir)}, 0")
    A(f"s_cbranch_scc1 {lab2}")
    A(f"global_store_dwordx4 {v(vt[3])}, {v(xrow[1],4)}, s[16:17]")
    A.label(lab2)
    for r in range(2):
        for j in range(4):
            A(f"v_lshlrev_b32 {v(xg[r]+2*j)}, 16, {v(xrow[r]+j)}")
            A(f"v_and_b32 {v(xg[r]+2*j+1)}, {s(sT0)}, {v(xrow[r]+j)}")
    S_ = [vt[0], vt[1]]; Q_ = [vt[4], vt[5]]
    for r in range(2):
        A(f"v_add_f32 {v(S_[r])}, {v(xg[r])}, {v(xg[r]+1)}")
        A(f"v_mul_f32 {v(Q_[r])}, {v(xg[r])}, {v(xg[r])}")
    for j in range(1, 8):
        for r in range(2):
            if j >= 2: A(f"v_add_f32 {v(S_[r])}, {v(S_[r])}, {v(xg[r]+j)}")
            A(f"v_fmac_f32 {v(Q_[r])}, {v(xg[r]+j)}, {v(xg[r]+j)}")
    chains = [S_[0], Q_[0], S_[1], Q_[1]]
    for mode, rm in (("quad_perm:[1,0,3,2]", "0xf"), ("quad_perm:[2,3,0,1]", "0xf"), ("row_half_mirror", "0xf"), ("row_mirror", "0xf"), ("row_bcast:15", "0xa"), ("row_bcast:31", "0xc")):
        for c_ in chains: A(f"v_add_f32_dpp {v(c_)}, {v(c_)}, {v(c_)} {mode} row_mask:{rm} bank_mask:0xf")
    for k, c_ in enumerate(chains): A(f"v_readlane_b32 {s(30+k)}, {v(c_)}, 63")
    A(f"v_mov_b32 {v(vt[6])}, 0x3b000000")
    for r in range(2):
        A(f"v_mul_f32 {v(S_[r])}, {s(30+2*r)}, {v(vt[6])}")
        A(f"v_mul_f32 {v(Q_[r])}, {s(31+2*r)}, {v(vt[6])}")
    for r in range(2): A(f"v_fma_f32 {v(Q_[r])}, -{v(S_[r])}, {v(S_[r])}, {v(Q_[r])}")
    for r in range(2): A(f"v_max_f32 {v(Q_[r])}, 0, {v(Q_[r])}")
    for r in range(2): A(f"v_add_f32 {v(Q_[r])}, 0x3727c5ac, {v(Q_[r])}")
    for r in range(2): A(f"v_rsq_f32 {v(Q_[r])}, {v(Q_[r])}")
    A(f"v_add_u32 {v(vt[2])}, {WS_H2}, {v(vrow[0])}")
    A(f"v_add_u32 {v(vt[3])}, {WS_H2}, {v(vrow[1])}")
    for r in range(2):
        for j in range(8): A(f"v_sub_f32 {v(xg[r]+j)}, {v(xg[r]+j)}, {v(S_[r])}")
    for r in range(2):
        for j in range(8): A(f"v_mul_f32 {v(xg[r]+j)}, {v(xg[r]+j)}, {v(Q_[r])}")
    for r in range(2):
        for j in range(8): A(f"v_fma_f32 {v(xg[r]+j)}, {v(xg[r]+j)}, {v(ocb+j)}, {v(sb+j)}")
    yo = [y, y2]
    for r in range(2):
        for j in range(4): A(f"v_cvt_pk_bf16_f32 {v(yo[r]+j)}, {v(xg[r]+2*j)}, {v(xg[r]+2*j+1)}")
    A(f"global_store_dwordx4 {v(vt[2])}, {v(y,4)}, s[16:17]")
    A(f"s_cmp_eq_u32 {s(sMir)}, 0")
    A(f"s_cbranch_scc1 {name}_fin")
    A(f"global_store_dwordx4 {v(vt[3])}, {v(y2,4)}, s[16:17]")
    A.label(f"{name}_fin")
    if stamps:
        ST.stamp(); A("s_waitcnt vmcnt(0)"); ST.stamp(); ST.flush(16, ga)
    A("s_endpgm")
    A.label(f"{name}_pf")
    A(f"s_cmp_ge_u32 s2, {NWG}")
    A(f"s_cbranch_scc1 {name}_end")
    load_ptr(A, 4, "ws")
    A(f"s_sub_u32 s10, s2, {NW}")
    A("s_lshl_b32 s10, s10, 16")
    A(f"s_add_u32 s10, s10, {WS_STAT}")
    A("v_lshl_add_u32 v1, v0, 4, s10")
    for j in range(4): A(f"v_mov_b32 v{4+j}, -1")
    A("s_waitcnt lgkmcnt(0)")
    for it in range(8):
        A("global_store_dwordx4 v1, v[4:7], s[4:5]")
        if it < 7: A("v_add_u32 v1, 8192, v1")
    A(f"s_sub_u32 s10, s2, {NW}")
    A("s_lshl_b32 s10, s10, 14")
    A(f"s_add_u32 s10, s10, {WS_STAT + 256*1024}")
    A("v_lshl_add_u32 v1, v0, 4, s10")
    for j in range(4): A(f"v_mov_b32 v{8+j}, 0")
    A("global_store_dwordx4 v1, v[8:11], s[4:5]")
    A("v_add_u32 v1, 8192, v1")
    A("global_store_dwordx4 v1, v[8:11], s[4:5]")
    A.label(f"{name}_end")
    A("s_endpgm")
    return dict(name=name, grid=NWG, block=512, lds=LDS, vgpr=R.hi, sgpr=96 if stamps else 40)
```

```python
from common import *
from gemm_util import fhex
from tables import TAB_OFF
from g2a import getpc_sym
NMOD = 96

def gen_ka(A, name="ka_kernel", stamps=False, prefetch=True, codepf=True, light=False):
    NFFT = 128; NPF = 32 if prefetch else 0; NWG = NFFT + NMOD + NPF
    F_L = 16384
    A.barrier_state(); A.raw(kernel_header(name))
    ST = Stamps(A, on=stamps, kidx=0)
    A(f"s_cmp_ge_u32 s2, {NWG}")
    A(f"s_cbranch_scc1 {name}_end")
    ST.stamp()
    A(f"s_cmp_ge_u32 s2, {NFFT}")
    A(f"s_cbranch_scc1 {name}_mod")
    load_ptr(A, 4, "x"); load_ptr(A, 6, "ws")
    getpc_sym(A, 8, "fft_tables")
    A("v_readfirstlane_b32 s20, v0")
    A("s_and_b32 s10, s2, 7")
    A("s_bfe_u32 s11, s2, 0x20003")
    A("s_lshl2_add_u32 s10, s10, s11")
    A("s_lshl_b32 s10, s10, 10")
    A("s_lshr_b32 s11, s2, 5")
    R = RegAlloc(1)
    voff = R.alloc(); vi = R.alloc(); vq = R.alloc(); vt0 = R.alloc(); vt1 = R.alloc()
    vS = R.alloc(); vQ = R.alloc(); vtr = R.alloc(); vst = R.alloc(); vl16 = R.alloc()
    xr = [R.alloc(4) for _ in range(8)]
    assert xr[7] == xr[0] + 28
    xo = R.alloc(8, 4)
    Ff = [[R.alloc(4) for _ in range(2)] for _ in range(2)]
    Af = [[R.alloc(4) for _ in range(2)] for _ in range(2)]
    acc = [[R.alloc(4) for _ in range(2)] for _ in range(2)]
    tmp = R.alloc(16, 4)
    A(f"v_lshrrev_b32 {v(vt0)}, 3, v0")
    A(f"v_and_b32 {v(vt1)}, 7, v0")
    A(f"v_lshlrev_b32 {v(vt0)}, 15, {v(vt0)}")
    A(f"v_lshl_add_u32 {v(voff)}, {v(vt1)}, 4, {v(vt0)}")
    A(f"v_add_u32 {v(voff)}, s10, {v(voff)}")
    A(f"v_lshlrev_b32 {v(vl16)}, 4, v0")
    A("s_lshr_b32 s20, s20, 6")
    A("s_lshl_b32 s12, s20, 10")
    A(f"s_add_u32 m0, s12, {F_L}")
    A("s_waitcnt lgkmcnt(0)")
    for it in range(8):
        A(f"global_load_dwordx4 {v(xr[it],4)}, {v(voff)}, s[4:5] offset:{it*128}")
    A(f"global_load_lds_dwordx4 {v(vl16)}, s[8:9] offset:{TAB_OFF['tab_f64']}")
    A(f"v_and_b32 {v(vi)}, 15, v0")
    A(f"v_bfe_u32 {v(vq)}, v0, 4, 2")
    A(f"v_lshrrev_b32 {v(vt0)}, 8, v0")
    A(f"v_lshlrev_b32 {v(vst)}, 20, {v(vt0)}")
    A(f"v_lshl_add_u32 {v(vst)}, {v(vi)}, 15, {v(vst)}")
    A(f"v_bfe_u32 {v(vt1)}, v0, 6, 2")
    A(f"v_lshl_add_u32 {v(vst)}, {v(vt1)}, 5, {v(vst)}")
    A(f"v_lshl_add_u32 {v(vst)}, {v(vq)}, 3, {v(vst)}")
    A("s_lshl_b32 s12, s11, 8")
    A("s_add_u32 s10, s10, s12")
    A(f"s_add_u32 s10, s10, {WS_T}")
    A(f"v_add_u32 {v(vst)}, s10, {v(vst)}")
    A(f"v_lshlrev_b32 {v(vtr)}, 5, {v(vt1)}")
    A(f"v_lshrrev_b32 {v(vt1)}, 2, {v(vi)}")
    A(f"v_lshl_add_u32 {v(vt1)}, {v(vq)}, 3, {v(vt1)}")
    A(f"v_lshl_add_u32 {v(vtr)}, {v(vt1)}, 7, {v(vtr)}")
    A(f"v_and_b32 {v(vt1)}, 3, {v(vi)}")
    A(f"v_lshl_add_u32 {v(vtr)}, {v(vt1)}, 3, {v(vtr)}")
    vfa = R.alloc()
    A(f"v_and_b32 {v(vfa)}, 63, v0")
    A(f"v_lshlrev_b32 {v(vfa)}, 4, {v(vfa)}")
    A(f"v_lshl_add_u32 {v(vfa)}, {v(vt0)}, 12, {v(vfa)}")
    A(f"v_mov_b32 {v(vS)}, 0")
    A(f"v_mov_b32 {v(vQ)}, 0")
    A("s_mov_b32 s12, 0x3f803f80")
    for it in range(8):
        A(f"s_waitcnt vmcnt({7 - it + 1})")
        for j in range(4):
            A(f"v_dot2_f32_bf16 {v(vS)}, {v(xr[it]+j)}, s12, {v(vS)}")
            A(f"v_dot2_f32_bf16 {v(vQ)}, {v(xr[it]+j)}, {v(xr[it]+j)}, {v(vQ)}")
    ST.stamp()
    A("s_lshl_b32 s13, s11, 3")
    A("s_mov_b32 s12, 0xffff0000")
    A("s_set_gpr_idx_on s13, gpr_idx(SRC0)")
    for j in range(8): A(f"v_mov_b32 {v(xo+j)}, {v(xr[0]+j)}")
    A("s_set_gpr_idx_off")
    for mode in ("quad_perm:[1,0,3,2]", "quad_perm:[2,3,0,1]", "row_half_mirror"):
        A(f"v_add_f32_dpp {v(vS)}, {v(vS)}, {v(vS)} {mode} row_mask:0xf bank_mask:0xf")
        A(f"v_add_f32_dpp {v(vQ)}, {v(vQ)}, {v(vQ)} {mode} row_mask:0xf bank_mask:0xf")
        A(f"v_lshlrev_b32 {v(tmp+0)}, 16, {v(xo+0)}") if mode.startswith("quad_perm:[1") else None
    for j in range(8):
        if j: A(f"v_lshlrev_b32 {v(tmp+2*j)}, 16, {v(xo+j)}")
        A(f"v_and_b32 {v(tmp+2*j+1)}, s12, {v(xo+j)}")
    A(f"v_mul_f32 {v(vS)}, 0x3b000000, {v(vS)}")
    A(f"v_mul_f32 {v(vQ)}, 0x3b000000, {v(vQ)}")
    A(f"v_fma_f32 {v(vQ)}, -{v(vS)}, {v(vS)}, {v(vQ)}")
    A(f"v_max_f32 {v(vQ)}, 0, {v(vQ)}")
    A(f"v_add_f32 {v(vQ)}, 0x3727c5ac, {v(vQ)}")
    A(f"v_rsq_f32 {v(vQ)}, {v(vQ)}")
    A(f"v_mul_f32 {v(vS)}, {v(vS)}, {v(vQ)}")
    for j in range(16): A(f"v_fma_f32 {v(tmp+j)}, {v(tmp+j)}, {v(vQ)}, -{v(vS)}")
    for h in range(2):
        for j in range(4): A(f"v_cvt_pk_bf16_f32 {v(xo+4*h+j)}, {v(tmp+8*h+2*j)}, {v(tmp+8*h+2*j+1)}")
        A(f"ds_write_b128 {v(vl16)}, {v(xo+4*h,4)} offset:{h*8192}")
    A("s_waitcnt vmcnt(0) lgkmcnt(0)")
    A("s_barrier")
    for h in range(2):
        for ks in range(2):
            for p in range(2):
                A(f"ds_read_b64_tr_b16 {v(Af[h][ks]+2*p,2)}, {v(vtr)} offset:{h*8192 + ks*32*128 + p*4*128}")
        if h == 0:
            for nt in range(2):
                for ks in range(2): A(f"ds_read_b128 {v(Ff[nt][ks],4)}, {v(vfa)} offset:{F_L + nt*2048 + ks*1024}")
    A(f"v_add_u32 {v(vt1)}, {16*32768}, {v(vst)}")
    for h in range(2):
        A(f"s_waitcnt lgkmcnt({4*(1-h)})")
        for ks in range(2):
            for nt in range(2):
                c = "0" if ks == 0 else v(acc[h][nt], 4)
                A(f"v_mfma_f32_16x16x32_bf16 {v(acc[h][nt],4)}, {v(Af[h][ks],4)}, {v(Ff[nt][ks],4)}, {c}")
    for h in range(2):
        for nt in range(2):
            k = h * 2 + nt
            A(f"v_cvt_pk_bf16_f32 {v(tmp+2*k)}, {v(acc[h][nt])}, {v(acc[h][nt]+1)}")
            A(f"v_cvt_pk_bf16_f32 {v(tmp+2*k+1)}, {v(acc[h][nt]+2)}, {v(acc[h][nt]+3)}")
            A(f"global_store_dwordx2 {v(vst if nt == 0 else vt1)}, {v(tmp+2*k,2)}, s[6:7] offset:{h*128}")
    if stamps:
        ST.stamp(); A("s_waitcnt vmcnt(0)"); ST.stamp(); ST.flush(6, tmp)
    A("s_endpgm")
    return_nv = R.hi
    import g6a
    return _ka_tail(A, name, ST, stamps, prefetch, NFFT, NPF, NWG, return_nv, F_L + 8192, codepf, light)

def _ka_tail(A, name, ST, stamps, prefetch, NFFT, NPF, NWG, nv, lds, codepf=True, light=False):
    A.label(f"{name}_mod")
    if prefetch:
        A(f"s_cmp_ge_u32 s2, {NFFT+NMOD}")
        A(f"s_cbranch_scc1 {name}_pf")
    load_ptr(A, 4, "wmod"); load_ptr(A, 8, "c"); load_ptr(A, 6, "ws")
    A(f"s_sub_u32 s10, s2, {NFFT}")
    A("s_lshl_b32 s11, s10, 6")
    R = RegAlloc(1)
    vk = R.alloc(); vt0 = R.alloc(); vt1 = R.alloc(); vc = R.alloc()
    vo = [R.alloc() for _ in range(4)]
    wr = [R.alloc(4) for _ in range(4)]
    cv = [R.alloc() for _ in range(4)]; ch = [R.alloc() for _ in range(4)]
    ac = R.alloc(8, 4); rr = R.alloc(16, 4)
    A(f"v_and_b32 {v(vt0)}, 0x1c0, v0")
    A(f"v_bfe_u32 {v(vt1)}, v0, 2, 4")
    A(f"v_add_u32 {v(vk)}, {v(vt0)}, {v(vt1)}")
    A(f"v_and_b32 {v(vc)}, 3, v0")
    A(f"v_mul_u32_u24 {v(vo[0])}, 6144, {v(vk)}")
    A(f"v_lshl_add_u32 {v(vo[0])}, {v(vc)}, 4, {v(vo[0])}")
    A(f"v_add_u32 {v(vo[0])}, s11, {v(vo[0])}")
    for it in range(1, 4): A(f"v_add_u32 {v(vo[it])}, {it*16*6144}, {v(vo[0])}")
    A(f"v_lshlrev_b32 {v(vk)}, 1, {v(vk)}")
    A("s_waitcnt lgkmcnt(0)")
    for it in range(4): A(f"global_load_ushort {v(cv[it])}, {v(vk)}, s[8:9] offset:{it*32}")
    for it in range(4): A(f"global_load_dwordx4 {v(wr[it],4)}, {v(vo[it])}, s[4:5]")
    for j in range(8): A(f"v_mov_b32 {v(ac+j)}, 0")
    A("s_waitcnt vmcnt(4)")
    for it in range(4): A(f"v_lshlrev_b32 {v(cv[it])}, 16, {v(cv[it])}")
    for it in range(4): A(f"v_mul_f32 {v(ch[it])}, 0xbfb8aa3b, {v(cv[it])}")
    for it in range(4): A(f"v_exp_f32 {v(ch[it])}, {v(ch[it])}")
    for it in range(4): A(f"v_add_f32 {v(ch[it])}, 1.0, {v(ch[it])}")
    for it in range(4): A(f"v_rcp_f32 {v(ch[it])}, {v(ch[it])}")
    for it in range(4): A(f"v_mul_f32 {v(cv[it])}, {v(cv[it])}, {v(ch[it])}")
    for it in range(4): A(f"v_cvt_pk_bf16_f32 {v(cv[it])}, {v(cv[it])}, 0")
    for it in range(4): A(f"v_lshlrev_b32 {v(ch[it])}, 16, {v(cv[it])}")
    for it in range(4):
        A(f"s_waitcnt vmcnt({3-it})")
        for j in range(4):
            A(f"v_dot2_f32_bf16 {v(ac+2*j)}, {v(wr[it]+j)}, {v(cv[it])}, {v(ac+2*j)}")
            A(f"v_dot2_f32_bf16 {v(ac+2*j+1)}, {v(wr[it]+j)}, {v(ch[it])}, {v(ac+2*j+1)}")
    for rot in (4, 8):
        for j in range(8):
            A(f"v_add_f32_dpp {v(ac+j)}, {v(ac+j)}, {v(ac+j)} row_ror:{rot} row_mask:0xf bank_mask:0xf")
    A(f"v_lshrrev_b32 {v(vt0)}, 4, v0")
    A(f"v_lshlrev_b32 {v(vt0)}, 7, {v(vt0)}")
    A(f"v_lshl_add_u32 {v(vt0)}, {v(vc)}, 5, {v(vt0)}")
    A(f"ds_write_b128 {v(vt0)}, {v(ac,4)}")
    A(f"ds_write_b128 {v(vt0)}, {v(ac+4,4)} offset:16")
    if prefetch and codepf:
        lab = f"{name}_nocp"
        A("s_cmp_ge_u32 s10, 8")
        A(f"s_cbranch_scc1 {lab}")
        getpc_sym(A, 12, "code_begin")
        A(f"v_lshlrev_b32 {v(vt0)}, 7, v0")
        A(f"v_mov_b32 {v(vt1)}, code_end-code_begin-4")
        A(f"v_min_u32 {v(vt0)}, {v(vt0)}, {v(vt1)}")
        A(f"v_and_b32 {v(vt0)}, -4, {v(vt0)}")
        A(f"global_load_dword {v(vk)}, {v(vt0)}, s[12:13]")
        A.label(lab)
    A("v_readfirstlane_b32 s20, v0")
    A("s_waitcnt lgkmcnt(0)")
    A("s_barrier")
    A("s_cmp_ge_u32 s20, 64")
    A(f"s_cbranch_scc1 {name}_end")
    A(f"v_and_b32 {v(vt1)}, 31, v0")
    A(f"v_lshrrev_b32 {v(vt0)}, 5, v0")
    A(f"v_lshlrev_b32 {v(vt0)}, 11, {v(vt0)}")
    A(f"v_lshl_add_u32 {v(vt0)}, {v(vt1)}, 2, {v(vt0)}")
    for p in range(16): A(f"ds_read_b32 {v(rr+p)}, {v(vt0)} offset:{p*128}")
    A("s_lshr_b32 s11, s10, 4")
    A("s_cmp_eq_u32 s11, 1")
    A("s_cselect_b32 s12, 1.0, 0")
    A("s_cmp_eq_u32 s11, 4")
    A("s_cselect_b32 s12, 1.0, s12")
    A("s_lshl_b32 s11, s10, 7")
    if WS_MOD: A(f"s_add_u32 s11, s11, {WS_MOD}")
    A(f"v_lshl_add_u32 {v(vt1)}, {v(vt1)}, 2, s11")
    A("s_waitcnt lgkmcnt(0)")
    for st_ in (8, 4, 2, 1):
        for p in range(st_): A(f"v_add_f32 {v(rr+p)}, {v(rr+p)}, {v(rr+p+st_)}")
    A(f"v_mov_b32 {v(rr+1)}, {v(rr)}")
    A(f"v_permlane32_swap_b32 {v(rr)}, {v(rr+1)}")
    A(f"v_add_f32 {v(rr)}, {v(rr)}, {v(rr+1)}")
    A(f"v_cvt_pk_bf16_f32 {v(rr)}, {v(rr)}, {v(rr)}")
    A(f"v_lshlrev_b32 {v(rr)}, 16, {v(rr)}")
    A(f"v_add_f32 {v(rr)}, s12, {v(rr)}")
    A(f"v_cvt_pk_bf16_f32 {v(rr)}, {v(rr)}, {v(rr)}")
    A(f"v_lshlrev_b32 {v(rr)}, 16, {v(rr)}")
    A(f"global_store_dword {v(vt1)}, {v(rr)}, s[6:7]")
    if stamps:
        A("s_mov_b32 s20, 0"); ST.n = 1; ST.stamp(); ST.stamp(); A("s_waitcnt vmcnt(0)"); ST.stamp(); ST.flush(6, ac)
    A("s_endpgm")
    if prefetch and light:
        A.label(f"{name}_pf")
        load_ptr(A, 4, "win")
        A(f"s_sub_u32 s10, s2, {NFFT+NMOD}")
        A("s_mul_i32 s10, s10, 448")
        A("v_add_u32 v1, s10, v0")
        A("v_lshlrev_b32 v1, 7, v1")
        A("v_cmp_gt_u32 vcc, 448, v0")
        A("s_and_b64 exec, exec, vcc")
        A(f"s_cbranch_execz {name}_end")
        A("s_waitcnt lgkmcnt(0)")
        A("global_load_dword v2, v1, s[4:5]")
    elif prefetch:
        A.label(f"{name}_pf")
        load_ptr(A, 4, "win")
        A(f"s_sub_u32 s10, s2, {NFFT+NMOD}")
        A("s_lshr_b32 s10, s10, 3")
        A("s_mul_i32 s10, s10, 1792")
        A("s_and_b32 s11, s2, 1")
        A("s_mul_i32 s11, s11, 896")
        A("v_add_u32 v1, s10, v0")
        A("v_mov_b32 v6, 896")
        A("s_waitcnt lgkmcnt(0)")
        for it in range(4):
            if it == 3:
                A("v_cmp_gt_u32 vcc, 256, v0")
                A("s_and_b64 exec, exec, vcc")
                A(f"s_cbranch_execz {name}_end")
            A("v_mul_u32_u24 v2, 9363, v1")
            A("v_lshrrev_b32 v2, 17, v2")
            A("v_mul_u32_u24 v3, 14, v2")
            A("v_sub_u32 v3, v1, v3")
            A("v_mul_u32_u24 v2, 3584, v2")
            A("v_lshl_add_u32 v2, v3, 7, v2")
            A("v_cmp_lt_u32 vcc, 6, v3")
            A("v_cndmask_b32 v3, 0, v6, vcc")
            A("v_add3_u32 v2, v2, v3, s11")
            A(f"global_load_dword v{8+it}, v2, s[4:5]")
            if it < 3: A("v_add_u32 v1, 512, v1")
    A.label(f"{name}_end")
    A("s_endpgm")
    return dict(name=name, grid=NWG, block=512, lds=lds, vgpr=max(nv, R.hi), sgpr=96 if stamps else 32)

def gen_kb(A, name="kb_kernel", stamps=False, prefetch=True, pfhalf=True, wmcalc=True, pfwin=False):
    NW = 132; NWG = NW + 4
    TB_L = 0
    MD_L = TB_L + 10240
    WM_L = MD_L + 8192
    T_B = WM_L + 1024
    TS = 1056; V_OFF = T_B + 64 * TS; VS = 80; US = 144; YS = 2064
    U_OFF = T_B; Y_OFF = T_B + 20480
    LDS = V_OFF + 256 * VS
    A.barrier_state(); A.raw(kernel_header(name))
    ST = Stamps(A, on=stamps, kidx=1)
    sW, sC, sG, sT0, sT1, sT2, sRow, sMir, sRow2, sY = 20, 21, 22, 23, 24, 25, 26, 27, 28, 29
    SRD_T = 16
    A(f"s_cmp_ge_u32 s2, {NW}")
    A(f"s_cbranch_scc1 {name}_pf")
    ST.stamp()
    load_ptr(A, 16, "ws"); load_ptr(A, 4, "x")
    if not wmcalc: load_ptr(A, 6, "sre"); load_ptr(A, 8, "sim")
    if prefetch: load_ptr(A, 12, "win" if pfwin else "wsp")
    getpc_sym(A, 10, "fft_tables")
    A(f"v_readfirstlane_b32 {s(sW)}, v0")
    A(f"s_mov_b32 s18, {WS_T + 2*MB}")
    A("s_mov_b32 s19, 0x20000")
    A(f"s_and_b32 {s(sT0)}, s2, 7")
    A(f"s_bfe_u32 {s(sG)}, s2, 0x20003")
    A(f"s_lshr_b32 {s(sT1)}, s2, 5")
    A(f"s_lshl3_add_u32 {s(sC)}, {s(sT1)}, {s(sT0)}")
    A(f"s_cmp_ge_u32 s2, 128")
    A(f"s_cselect_b32 {s(sC)}, 32, {s(sC)}")
    A(f"s_cselect_b32 {s(sG)}, {s(sT0)}, {s(sG)}")
    A(f"s_lshr_b32 {s(sW)}, {s(sW)}, 6")
    R = RegAlloc(1)
    vl = R.alloc(); vq = R.alloc(); vi = R.alloc(); vl16 = R.alloc(); vtid16 = R.alloc()
    vtb = R.alloc(8, 4); vt = [vtb + k for k in range(8)]
    A0 = R.alloc(4); A1 = R.alloc(4)
    F1 = [R.alloc(4) for _ in range(2)]; F2 = [[R.alloc(4) for _ in range(2)] for _ in range(2)]
    tw = R.alloc(16, 4)
    opca = [R.alloc() for _ in range(4)]
    xrow = [R.alloc(4) for _ in range(2)]
    Bf = [[R.alloc(4) for _ in range(2)] for _ in range(4)]
    acc = [R.alloc(4) for _ in range(4)]
    ga = R.alloc(8, 4); sb = R.alloc(8, 4); ocb = R.alloc(8, 4)
    vaT = R.alloc(); vaVw = R.alloc(); vaVr = R.alloc(); vaUw = R.alloc(); vaUr = R.alloc(); vaYw = R.alloc()
    vrow = [R.alloc() for _ in range(2)]
    xf = R.alloc(8, 4); yy = R.alloc(8, 4)
    Rr = R.alloc(4); Ri = R.alloc(4)
    A(f"v_and_b32 {v(vl)}, 63, v0")
    A(f"v_lshlrev_b32 {v(vl16)}, 4, {v(vl)}")
    A(f"v_lshlrev_b32 {v(vtid16)}, 4, v0")
    A(f"s_add_u32 {s(sT1)}, {s(sC)}, 32")
    A(f"s_and_b32 {s(sT2)}, {s(sC)}, 31")
    A(f"s_cselect_b32 {s(sMir)}, 1, 0")
    A(f"s_cselect_b32 {s(sT1)}, {s(sT1)}, 0x4000")
    A(f"s_cmp_ge_u32 {s(sW)}, 4")
    A(f"s_cselect_b32 {s(sT0)}, {s(sT1)}, {s(sC)}")
    A(f"s_lshl_b32 {s(sT0)}, {s(sT0)}, 15")
    A(f"s_and_b32 {s(sT1)}, {s(sW)}, 3")
    A(f"s_lshl_b32 {s(sT1)}, {s(sT1)}, 13")
    A(f"s_add_u32 {s(sT0)}, {s(sT0)}, {s(sT1)}")
    A(f"s_add_u32 {s(sT0)}, {s(sT0)}, {WS_T - 128}")
    A(f"s_mul_i32 {s(sT1)}, {s(sW)}, {8*TS}")
    A(f"s_add_u32 m0, {s(sT1)}, {T_B}")
    for j in range(4): A(f"v_add_u32 {v(vt[4+j])}, {128 - 32*j}, {v(vl16)}")
    A(f"v_and_b32 {v(vi)}, 15, v0")
    A(f"v_bfe_u32 {v(vq)}, v0, 4, 2")
    if not wmcalc:
        A(f"v_bfe_u32 {v(vt[0])}, v0, 2, 3")
        A(f"v_lshlrev_b32 {v(vt[0])}, 18, {v(vt[0])}")
        A(f"v_and_b32 {v(vt[1])}, 3, v0")
        A(f"v_lshl_add_u32 {v(vt[0])}, {v(vt[1])}, 4, {v(vt[0])}")
        A(f"s_lshl_b32 {s(sT1)}, {s(sG)}, 21")
        A(f"s_lshl_b32 {s(sT2)}, {s(sC)}, 12")
        A(f"s_add_u32 {s(sT1)}, {s(sT1)}, {s(sT2)}")
        A(f"v_add_u32 {v(vt[0])}, {s(sT1)}, {v(vt[0])}")
    A(f"s_lshl3_add_u32 {s(sT1)}, {s(sG)}, {s(sW)}")
    A(f"s_lshl_b32 {s(sT1)}, {s(sT1)}, 6")
    A(f"s_add_u32 {s(sRow)}, {s(sT1)}, {s(sC)}")
    A(f"s_sub_u32 {s(sRow2)}, 2048, {s(sRow)}")
    A(f"s_and_b32 {s(sRow2)}, {s(sRow2)}, 2047")
    A(f"s_lshl_b32 {s(sRow)}, {s(sRow)}, 10")
    A(f"s_lshl_b32 {s(sRow2)}, {s(sRow2)}, 10")
    A(f"v_add_u32 {v(vrow[0])}, {s(sRow)}, {v(vl16)}")
    A(f"v_add_u32 {v(vrow[1])}, {s(sRow2)}, {v(vl16)}")
    A(f"s_lshl_b32 {s(sT2)}, {s(sW)}, 10")
    A("s_waitcnt lgkmcnt(0)")
    for g in range(2):
        if g:
            A(f"s_add_u32 m0, m0, {4*TS}")
            A(f"s_add_u32 {s(sT0)}, {s(sT0)}, 4096")
        for j in range(4):
            A(f"buffer_load_dwordx4 {v(vt[4+j])}, {s(SRD_T,4)}, {s(sT0)} offen offset:{j*TS} lds")
    A(f"s_add_u32 m0, {s(sT2)}, {TB_L}")
    A(f"v_add_u32 {v(vt[1])}, {TAB_OFF['tab_f1']}, {v(vtid16)}")
    A(f"global_load_lds_dwordx4 {v(vt[1])}, s[10:11]")
    A(f"s_add_u32 m0, {s(sT2)}, {MD_L}")
    A(f"v_add_u32 {v(vt[2])}, {WS_MOD + 2048}, {v(vtid16)}")
    A(f"global_load_lds_dwordx4 {v(vt[2])}, s[16:17]")
    lx = f"{name}_nox"; l23 = f"{name}_x23"
    A(f"s_cmp_ge_u32 {s(sW)}, {2 if wmcalc else 4}")
    A(f"s_cbranch_scc1 {lx}")
    if not wmcalc:
        A(f"s_cmp_ge_u32 {s(sW)}, 2")
        A(f"s_cbranch_scc1 {l23}")
    A(f"s_add_u32 m0, {s(sT2)}, {TB_L + 8192}")
    A(f"v_add_u32 {v(vt[1])}, 8192, {v(vt[1])}")
    A(f"global_load_lds_dwordx4 {v(vt[1])}, s[10:11]")
    if not wmcalc:
        A(f"s_branch {lx}")
        A.label(l23)
        A(f"s_cmp_eq_u32 {s(sW)}, 3")
        A("s_cselect_b32 s6, s8, s6")
        A("s_cselect_b32 s7, s9, s7")
        A(f"s_cselect_b32 {s(sT1)}, 512, 0")
        A(f"s_add_u32 m0, {s(sT1)}, {WM_L}")
        A("s_mov_b32 exec_hi, 0")
        A(f"global_load_lds_dwordx4 {v(vt[0])}, s[6:7]")
        A("s_mov_b32 exec_hi, -1")
    A.label(lx)
    for h in range(2): A(f"global_load_dwordx4 {v(xrow[h],4)}, {v(vrow[h])}, s[4:5]")
    A(f"v_lshrrev_b32 {v(vt[0])}, 2, {v(vi)}")
    A(f"v_lshl_add_u32 {v(vt[0])}, {v(vq)}, 2, {v(vt[0])}")
    A(f"v_mul_u32_u24 {v(vaT)}, {TS}, {v(vt[0])}")
    A(f"v_and_b32 {v(vt[0])}, 3, {v(vi)}")
    A(f"v_lshl_add_u32 {v(vaT)}, {v(vt[0])}, 3, {v(vaT)}")
    A(f"v_and_b32 {v(vt[4])}, 0x1c0, v0")
    A(f"v_lshl_add_u32 {v(vaT)}, {v(vt[4])}, 1, {v(vaT)}")
    A(f"v_add_u32 {v(vaT)}, {T_B}, {v(vaT)}")
    A(f"v_lshl_add_u32 {v(vt[0])}, {v(vq)}, 6, {v(vi)}")
    A(f"v_mul_u32_u24 {v(vaVw)}, {VS}, {v(vt[0])}")
    A(f"v_lshrrev_b32 {v(vt[0])}, 3, {v(vt[4])}")
    A(f"s_mov_b32 {s(sT2)}, {V_OFF}")
    A(f"v_add3_u32 {v(vaVw)}, {v(vaVw)}, {v(vt[0])}, {s(sT2)}")
    A(f"v_lshrrev_b32 {v(vt[0])}, 1, {v(vt[4])}")
    A(f"v_add_u32 {v(vt[0])}, {v(vt[0])}, {v(vi)}")
    A(f"v_mul_u32_u24 {v(vaVr)}, {VS}, {v(vt[0])}")
    A(f"v_lshl_add_u32 {v(vaVr)}, {v(vq)}, 4, {v(vaVr)}")
    A(f"v_add_u32 {v(vaVr)}, {V_OFF}, {v(vaVr)}")
    A(f"v_lshrrev_b32 {v(vt[0])}, 2, {v(vt[4])}")
    A(f"v_lshl_add_u32 {v(vt[3])}, {v(vq)}, 1, {v(vt[0])}")
    A(f"v_mul_u32_u24 {v(vaUw)}, {US}, {v(vt[3])}")
    A(f"v_lshl_add_u32 {v(vaUw)}, {v(vi)}, 2, {v(vaUw)}")
    A(f"v_add_u32 {v(vt[3])}, {v(vt[0])}, {v(vi)}")
    A(f"v_mul_u32_u24 {v(vaUr)}, {US}, {v(vt[3])}")
    A(f"v_lshl_add_u32 {v(vaUr)}, {v(vq)}, 4, {v(vaUr)}")
    A(f"s_mul_i32 {s(sY)}, {s(sW)}, {YS}")
    A(f"s_add_u32 {s(sY)}, {s(sY)}, {Y_OFF}")
    A(f"v_lshlrev_b32 {v(vaYw)}, 6, {v(vi)}")
    A(f"v_lshl_add_u32 {v(vaYw)}, {v(vq)}, 4, {v(vaYw)}")
    A(f"v_add_u32 {v(vaYw)}, {s(sY)}, {v(vaYw)}")
    A(f"v_lshrrev_b32 {v(vt[5])}, 1, {v(vi)}")
    A(f"v_lshlrev_b32 {v(vt[5])}, 6, {v(vt[5])}")
    A(f"v_lshl_add_u32 {v(vt[5])}, {v(vq)}, 3, {v(vt[5])}")
    A(f"v_add_u32 {v(vt[6])}, {v(vt[4])}, {v(vi)}")
    A(f"v_lshlrev_b32 {v(vt[6])}, 2, {v(vt[6])}")
    A(f"v_and_b32 {v(vt[3])}, 1, v0")
    A(f"v_cmp_eq_u32 vcc, 1, {v(vt[3])}")
    if wmcalc:
        vT = Rr; vK = Rr + 1; cs_ = [Ri + j for j in range(4)]
        A(f"s_lshl_b32 {s(sT1)}, {s(sG)}, 9")
        A(f"s_add_u32 {s(sT1)}, {s(sT1)}, {s(sC)}")
        A(f"v_lshrrev_b32 {v(vT)}, 1, {v(vi)}")
        A(f"v_lshl_add_u32 {v(vT)}, {v(vT)}, 6, {s(sT1)}")
        A(f"v_lshlrev_b32 {v(vK)}, 2, {v(vq)}")
        A(f"v_mul_u32_u24 {v(vK)}, {v(vT)}, {v(vK)}")
        for jp in range(4):
            ang = []
            for u in range(2):
                jj = 2 * jp + u; koff = jj if jj < 4 else 16 + jj - 4
                r = cs_[u]
                A(f"v_mad_u32_u24 {v(r)}, {v(vT)}, {koff}, {v(vK)}")
                A(f"v_and_b32 {v(r)}, 2047, {v(r)}")
                A(f"v_cvt_f32_u32 {v(r)}, {v(r)}")
                A(f"v_mul_f32 {v(r)}, 0x3a000000, {v(r)}")
            for u in range(2):
                A(f"v_sin_f32 {v(cs_[2+u])}, {v(cs_[u])}")
                A(f"v_cos_f32 {v(cs_[u])}, {v(cs_[u])}")
            t0_, t1_, t2_, t3_ = vt[0], vt[1], vt[2], vt[7]
            A(f"v_sub_f32 {v(t0_)}, 0, {v(cs_[2])}")
            A(f"v_sub_f32 {v(t1_)}, 0, {v(cs_[3])}")
            A(f"v_cndmask_b32 {v(t0_)}, {v(cs_[0])}, {v(t0_)}, vcc")
            A(f"v_cndmask_b32 {v(t1_)}, {v(cs_[1])}, {v(t1_)}, vcc")
            A(f"v_cvt_pk_bf16_f32 {v(A0+jp)}, {v(t0_)}, {v(t1_)}")
            A(f"v_cndmask_b32 {v(t2_)}, {v(cs_[2])}, {v(cs_[0])}, vcc")
            A(f"v_cndmask_b32 {v(t3_)}, {v(cs_[3])}, {v(cs_[1])}, vcc")
            A(f"v_cvt_pk_bf16_f32 {v(A1+jp)}, {v(t2_)}, {v(t3_)}")
    A(f"s_mov_b32 {s(sT0)}, 0x80008000")
    A("s_waitcnt vmcnt(2)")
    vpf = R.alloc(); vpd = R.alloc(2)
    if prefetch and pfwin:
        A(f"s_lshr_b32 {s(sT2)}, s2, 3")
        A(f"s_lshl3_add_u32 {s(sT2)}, {s(sT2)}, {s(sW)}")
        A(f"s_and_b32 {s(sT2)}, {s(sT2)}, 127")
        A(f"s_mul_i32 {s(sT2)}, {s(sT2)}, 56")
        A(f"v_min_u32 {v(vpf)}, 55, {v(vl)}")
        A(f"v_add_u32 {v(vpf)}, {s(sT2)}, {v(vpf)}")
        A(f"v_mul_u32_u24 {v(vpd)}, 9363, {v(vpf)}")
        A(f"v_lshrrev_b32 {v(vpd)}, 17, {v(vpd)}")
        A(f"v_mul_u32_u24 {v(vpd+1)}, 14, {v(vpd)}")
        A(f"v_sub_u32 {v(vpd+1)}, {v(vpf)}, {v(vpd+1)}")
        A(f"v_mul_u32_u24 {v(vpf)}, 3584, {v(vpd)}")
        A(f"v_lshl_add_u32 {v(vpf)}, {v(vpd+1)}, 7, {v(vpf)}")
        A(f"v_cmp_lt_u32 s[34:35], 6, {v(vpd+1)}")
        A(f"v_mov_b32 {v(vpd)}, 896")
        A(f"v_cndmask_b32 {v(vpd)}, 0, {v(vpd)}, s[34:35]")
        A(f"s_and_b32 {s(sT1)}, s2, 1")
        A(f"s_mul_i32 {s(sT1)}, {s(sT1)}, 896")
        A(f"v_add3_u32 {v(vpf)}, {v(vpf)}, {v(vpd)}, {s(sT1)}")
    elif prefetch:
        A(f"s_bfe_u32 {s(sT1)}, s2, 0x20001")
        A(f"s_lshl_b32 {s(sT1)}, {s(sT1)}, 21")
        A(f"s_lshr_b32 {s(sT2)}, s2, 3")
        A(f"s_lshl3_add_u32 {s(sT2)}, {s(sT2)}, {s(sW)}")
        A(f"s_and_b32 {s(sT2)}, {s(sT2)}, 127")
        A(f"s_lshl_b32 {s(sT2)}, {s(sT2)}, 14")
        A(f"s_add_u32 {s(sT1)}, {s(sT1)}, {s(sT2)}")
        if pfhalf:
            A(f"s_and_b32 {s(sT2)}, s2, 1")
            A(f"s_lshl_b32 {s(sT2)}, {s(sT2)}, 13")
            A(f"s_add_u32 {s(sT1)}, {s(sT1)}, {s(sT2)}")
        A(f"v_lshl_add_u32 {v(vpf)}, {v(vl)}, 7, {s(sT1)}")
    ST.stamp()
    A("s_barrier")
    if prefetch:
        A(f"global_load_dword {v(vpd)}, {v(vpf)}, s[12:13]")
        if not pfhalf:
            A(f"v_add_u32 {v(vpf)}, 8192, {v(vpf)}")
            A(f"global_load_dword {v(vpd+1)}, {v(vpf)}, s[12:13]")
    if not wmcalc:
        for reg, o in ((Rr, 0), (Ri, 512)):
            A(f"ds_read_b64 {v(reg,2)}, {v(vt[5])} offset:{WM_L + o}")
            A(f"ds_read_b64 {v(reg+2,2)}, {v(vt[5])} offset:{WM_L + o + 32}")
    for jt in range(4):
        for c in range(2):
            for p in range(2):
                A(f"ds_read_b64_tr_b16 {v(Bf[jt][c]+2*p,2)}, {v(vaT)} offset:{c*32*TS + p*16*TS + jt*32}")
        if jt == 1:
            pass
    if not wmcalc:
        A("s_waitcnt lgkmcnt(15)")
        for j in range(4):
            A(f"v_xor_b32 {v(vt[0])}, {s(sT0)}, {v(Ri+j)}")
            A(f"v_cndmask_b32 {v(A0+j)}, {v(Rr+j)}, {v(Ri+j)}, vcc")
            A(f"v_cndmask_b32 {v(A1+j)}, {v(vt[0])}, {v(Rr+j)}, vcc")
    for jt in range(4): A(f"ds_read_b32 {v(opca[jt])}, {v(vt[6])} offset:{MD_L + jt*64}")
    for jt in range(4):
        A(f"s_waitcnt lgkmcnt({min(15, (3-jt)*4 + 4)})")
        A(f"v_mfma_f32_16x16x32_bf16 {v(acc[jt],4)}, {v(A0,4)}, {v(Bf[jt][0],4)}, 0")
        A(f"v_mfma_f32_16x16x32_bf16 {v(acc[jt],4)}, {v(A1,4)}, {v(Bf[jt][1],4)}, {v(acc[jt],4)}")
    for mt in range(2): A(f"ds_read_b128 {v(F1[mt],4)}, {v(vl16)} offset:{TB_L + mt*1024}")
    A(f"v_lshlrev_b32 {v(vt[7])}, 2, {v(vl16)}")
    for h in range(4): A(f"ds_read_b128 {v(tw+4*h,4)}, {v(vt[7])} offset:{TB_L + 6144 + h*16}")
    A("s_waitcnt lgkmcnt(6)")
    for jt in range(4):
        for r in range(4): A(f"v_mul_f32 {v(acc[jt]+r)}, {v(acc[jt]+r)}, {v(opca[jt])}")
    lab = f"{name}_nodc"
    A(f"s_or_b32 {s(sT0)}, {s(sC)}, {s(sG)}")
    A(f"s_cbranch_scc1 {lab}")
    A(f"v_and_b32 {v(vt[2])}, 0x1cf, v0")
    A(f"v_lshlrev_b32 {v(vt[2])}, 2, {v(vt[2])}")
    if WS_MOD: A(f"v_add_u32 {v(vt[2])}, {WS_MOD}, {v(vt[2])}")
    for jt in range(4): A(f"global_load_dword {v(Bf[0][0]+jt)}, {v(vt[2])}, s[16:17] offset:{jt*64}")
    A(f"v_cmp_eq_u32 vcc, 0, {v(vq)}")
    A(f"v_mov_b32 {v(vt[1])}, 0x45000000")
    A(f"v_cndmask_b32 {v(vt[1])}, 0, {v(vt[1])}, vcc")
    A("s_waitcnt vmcnt(0)")
    for jt in range(4): A(f"v_fmac_f32 {v(acc[jt])}, {v(Bf[0][0]+jt)}, {v(vt[1])}")
    A.label(lab)
    for jt in range(4):
        ac = acc[jt]
        A(f"v_cvt_pk_bf16_f32 {v(ac)}, {v(ac)}, {v(ac+1)}")
        A(f"v_cvt_pk_bf16_f32 {v(ac+1)}, {v(ac+2)}, {v(ac+3)}")
        o0 = (jt&1)*16*VS + (jt>>1)*4
        A(f"ds_write_b32 {v(vaVw)}, {v(ac)} offset:{o0}")
        A(f"ds_write_b32 {v(vaVw)}, {v(ac+1)} offset:{o0 + 32*VS}")
    A(f"s_mov_b32 {s(sT0)}, 0xffff0000")
    A("s_waitcnt lgkmcnt(0)")
    A("s_barrier")
    ST.stamp()
    for h in range(2): A(f"ds_read_b128 {v(Bf[h][0],4)}, {v(vaVr)} offset:{h*16*VS}")
    for nt in range(2):
        for ks in range(2): A(f"ds_read_b128 {v(F2[nt][ks],4)}, {v(vl16)} offset:{TB_L + 2048 + nt*2048 + ks*1024}")
    A(f"v_lshlrev_b32 {v(vt[7])}, 1, {v(vl16)}")
    for h in range(2):
        A(f"s_waitcnt lgkmcnt({5-h})")
        for mt in range(2):
            A(f"v_mfma_f32_16x16x32_bf16 {v(acc[2*h+mt],4)}, {v(F1[mt],4)}, {v(Bf[h][0],4)}, 0")
    for reg, sec in ((ga, 1), (sb, 2), (ocb, 3)):
        for u in range(2): A(f"ds_read_b128 {v(reg+4*u,4)}, {v(vt[7])} offset:{MD_L + sec*2048 + u*16}")
    for h in range(2):
        for mt in range(2):
            for pp in range(2):
                re, im = acc[2*h+mt] + 2 * pp, acc[2*h+mt] + 2 * pp + 1
                k = ((h*2+mt)*2+pp)*2
                c_, s_ = tw + k, tw + k + 1
                t0, t1 = vt[4*pp], vt[4*pp+1]
                if pp == 1 and False: pass
                A(f"v_mul_f32 {v(t0)}, {v(re)}, {v(c_)}")
                A(f"v_mul_f32 {v(t1)}, {v(im)}, {v(c_)}")
                A(f"v_fma_f32 {v(t0)}, {v(im)}, {v(s_)}, {v(t0)}")
                A(f"v_fma_f32 {v(t1)}, -{v(re)}, {v(s_)}, {v(t1)}")
                A(f"v_cvt_pk_bf16_f32 {v(vt[4*pp+2])}, {v(t0)}, {v(t1)}")
                A(f"ds_write_b32 {v(vaUw)}, {v(vt[4*pp+2])} offset:{U_OFF + (8*mt+pp)*US + h*64}")
    A("s_waitcnt lgkmcnt(0)")
    for ks in range(2): A(f"ds_read_b128 {v(Bf[ks][0],4)}, {v(vaUr)} offset:{U_OFF + ks*64}")
    A(f"s_waitcnt vmcnt({(1 if pfhalf else 2) if prefetch else 0})")
    xg = [xf, yy]
    for r in range(2):
        for j in range(4):
            A(f"v_lshlrev_b32 {v(xg[r]+2*j)}, 16, {v(xrow[r]+j)}")
            A(f"v_and_b32 {v(xg[r]+2*j+1)}, {s(sT0)}, {v(xrow[r]+j)}")
    for ks in range(2):
        A(f"s_waitcnt lgkmcnt({1-ks})")
        for nt in range(2):
            c = "0" if ks == 0 else v(acc[nt], 4)
            A(f"v_mfma_f32_16x16x32_bf16 {v(acc[nt],4)}, {v(Bf[ks][0],4)}, {v(F2[nt][ks],4)}, {c}")
    A(f"v_lshl_add_u32 {v(vt[0])}, {v(vl16)}, 1, {s(sY)}")
    A(f"v_lshlrev_b32 {v(vt[2])}, 1, {v(vl16)}")
    A(f"v_sub_u32 {v(vt[1])}, 2048, {v(vt[2])}")
    A(f"v_and_b32 {v(vt[1])}, 2047, {v(vt[1])}")
    A(f"v_add_u32 {v(vt[1])}, {s(sY)}, {v(vt[1])}")
    A(f"s_add_u32 {s(sT1)}, {s(sY)}, {505*4}")
    A(f"v_sub_u32 {v(vt[2])}, {s(sT1)}, {v(vt[2])}")
    for nt in range(2): A(f"ds_write_b128 {v(vaYw)}, {v(acc[nt],4)} offset:{nt*1024}")
    A("s_waitcnt lgkmcnt(0)")
    ST.stamp()
    y = Bf[2][0]; assert Bf[2][1] == y + 4
    y2 = Bf[3][0]; assert Bf[3][1] == y2 + 4
    A(f"ds_read_b128 {v(y,4)}, {v(vt[0])}")
    A(f"ds_read_b128 {v(y+4,4)}, {v(vt[0])} offset:16")
    A(f"ds_read_b32 {v(y2)}, {v(vt[1])}")
    A(f"ds_read_b32 {v(y2+1)}, {v(vt[2])} offset:24")
    for j in (2, 4, 6): A(f"ds_read2_b32 {v(y2+j,2)}, {v(vt[2])} offset0:{7-j} offset1:{6-j}")
    A("s_waitcnt lgkmcnt(5)")
    for j in range(8): A(f"v_fma_f32 {v(xf+j)}, {v(ga+j)}, {v(y+j)}, {v(xf+j)}")
    A("s_waitcnt lgkmcnt(0)")
    for j in range(8): A(f"v_fma_f32 {v(yy+j)}, {v(ga+j)}, {v(y2+j)}, {v(yy+j)}")
    for r in range(2):
        for j in range(4): A(f"v_cvt_pk_bf16_f32 {v(xrow[r]+j)}, {v(xg[r]+2*j)}, {v(xg[r]+2*j+1)}")
    A(f"v_add_u32 {v(vt[2])}, {WS_X1}, {v(vrow[0])}")
    A(f"v_add_u32 {v(vt[3])}, {WS_X1}, {v(vrow[1])}")
    A(f"global_store_dwordx4 {v(vt[2])}, {v(xrow[0],4)}, s[16:17]")
    lab2 = f"{name}_nomir1"
    A(f"s_cmp_eq_u32 {s(sMir)}, 0")
    A(f"s_cbranch_scc1 {lab2}")
    A(f"global_store_dwordx4 {v(vt[3])}, {v(xrow[1],4)}, s[16:17]")
    A.label(lab2)
    for r in range(2):
        for j in range(4):
            A(f"v_lshlrev_b32 {v(xg[r]+2*j)}, 16, {v(xrow[r]+j)}")
            A(f"v_and_b32 {v(xg[r]+2*j+1)}, {s(sT0)}, {v(xrow[r]+j)}")
    S_ = [vt[0], vt[1]]; Q_ = [vt[4], vt[5]]
    for r in range(2):
        A(f"v_add_f32 {v(S_[r])}, {v(xg[r])}, {v(xg[r]+1)}")
        A(f"v_mul_f32 {v(Q_[r])}, {v(xg[r])}, {v(xg[r])}")
    for j in range(1, 8):
        for r in range(2):
            if j >= 2: A(f"v_add_f32 {v(S_[r])}, {v(S_[r])}, {v(xg[r]+j)}")
            A(f"v_fmac_f32 {v(Q_[r])}, {v(xg[r]+j)}, {v(xg[r]+j)}")
    chains = [S_[0], Q_[0], S_[1], Q_[1]]
    for mode, rm in (("quad_perm:[1,0,3,2]", "0xf"), ("quad_perm:[2,3,0,1]", "0xf"), ("row_half_mirror", "0xf"), ("row_mirror", "0xf"), ("row_bcast:15", "0xa"), ("row_bcast:31", "0xc")):
        for c_ in chains: A(f"v_add_f32_dpp {v(c_)}, {v(c_)}, {v(c_)} {mode} row_mask:{rm} bank_mask:0xf")
    for k, c_ in enumerate(chains): A(f"v_readlane_b32 {s(30+k)}, {v(c_)}, 63")
    A(f"v_mov_b32 {v(vt[6])}, 0x3b000000")
    for r in range(2):
        A(f"v_mul_f32 {v(S_[r])}, {s(30+2*r)}, {v(vt[6])}")
        A(f"v_mul_f32 {v(Q_[r])}, {s(31+2*r)}, {v(vt[6])}")
    for r in range(2): A(f"v_fma_f32 {v(Q_[r])}, -{v(S_[r])}, {v(S_[r])}, {v(Q_[r])}")
    for r in range(2): A(f"v_max_f32 {v(Q_[r])}, 0, {v(Q_[r])}")
    for r in range(2): A(f"v_add_f32 {v(Q_[r])}, 0x3727c5ac, {v(Q_[r])}")
    for r in range(2): A(f"v_rsq_f32 {v(Q_[r])}, {v(Q_[r])}")
    A(f"v_add_u32 {v(vt[2])}, {WS_H2}, {v(vrow[0])}")
    A(f"v_add_u32 {v(vt[3])}, {WS_H2}, {v(vrow[1])}")
    for r in range(2):
        for j in range(8): A(f"v_sub_f32 {v(xg[r]+j)}, {v(xg[r]+j)}, {v(S_[r])}")
    for r in range(2):
        for j in range(8): A(f"v_mul_f32 {v(xg[r]+j)}, {v(xg[r]+j)}, {v(Q_[r])}")
    for r in range(2):
        for j in range(8): A(f"v_fma_f32 {v(xg[r]+j)}, {v(xg[r]+j)}, {v(ocb+j)}, {v(sb+j)}")
    yo = [y, y2]
    for r in range(2):
        for j in range(4): A(f"v_cvt_pk_bf16_f32 {v(yo[r]+j)}, {v(xg[r]+2*j)}, {v(xg[r]+2*j+1)}")
    A(f"global_store_dwordx4 {v(vt[2])}, {v(y,4)}, s[16:17]")
    A(f"s_cmp_eq_u32 {s(sMir)}, 0")
    A(f"s_cbranch_scc1 {name}_fin")
    A(f"global_store_dwordx4 {v(vt[3])}, {v(y2,4)}, s[16:17]")
    A.label(f"{name}_fin")
    if stamps:
        ST.stamp(); A("s_waitcnt vmcnt(0)"); ST.stamp(); ST.flush(16, ga)
    A("s_endpgm")
    A.label(f"{name}_pf")
    A(f"s_cmp_ge_u32 s2, {NWG}")
    A(f"s_cbranch_scc1 {name}_end")
    load_ptr(A, 4, "ws")
    A(f"s_sub_u32 s10, s2, {NW}")
    A("s_lshl_b32 s10, s10, 16")
    A(f"s_add_u32 s10, s10, {WS_STAT}")
    A("v_lshl_add_u32 v1, v0, 4, s10")
    for j in range(4): A(f"v_mov_b32 v{4+j}, -1")
    A("s_waitcnt lgkmcnt(0)")
    for it in range(8):
        A("global_store_dwordx4 v1, v[4:7], s[4:5]")
        if it < 7: A("v_add_u32 v1, 8192, v1")
    A(f"s_sub_u32 s10, s2, {NW}")
    A("s_lshl_b32 s10, s10, 14")
    A(f"s_add_u32 s10, s10, {WS_STAT + 256*1024}")
    A("v_lshl_add_u32 v1, v0, 4, s10")
    for j in range(4): A(f"v_mov_b32 v{8+j}, 0")
    A("global_store_dwordx4 v1, v[8:11], s[4:5]")
    A("v_add_u32 v1, 8192, v1")
    A("global_store_dwordx4 v1, v[8:11], s[4:5]")
    A.label(f"{name}_end")
    A("s_endpgm")
    return dict(name=name, grid=NWG, block=512, lds=LDS, vgpr=R.hi, sgpr=96 if stamps else 40)
```

```python
from g2b import *
WS_CNT = WS_STAT + 256 * 1024
SPIN = 0x8000

def gen_km(A, name="km_kernel", stamps=False, prefetch=True, pfpos=0, pfhalf=False):
    NWG = 256
    GS = 960; SLOT = 16 * GS; W_OFF = 65536; NSZ = 4; NSTZ = 16; WROW = 3584
    X_OFF = W_OFF + NSZ * SLOT; XS = 32 * 144
    ZT = 145408
    NSG = 5; NSTG = 32; B_OFF = 14 * 1024; STAGE = 22 * 1024; RING = NSG * STAGE
    GX = 114688
    OW = 0; OP = 114688; NSO = 3; NSTO = 7; PSLOT = 16384
    LDS = 163840
    JOIN = 159744
    A.barrier_state(); A.raw(kernel_header(name))
    ST = Stamps(A, on=stamps, kidx=2)
    sW, sRB, sCC, sT0, sT1, sT2, sTH, sFH, sK, sSlot, sI = 20, 21, 22, 23, 24, 25, 26, 27, 28, 34, 35
    A(f"s_cmp_ge_u32 s2, {NWG}")
    A(f"s_cbranch_scc1 {name}_end")
    ST.stamp()
    load_ptr(A, 4, "ws"); load_ptr(A, 8, "win"); load_ptr(A, 12, "wsp"); load_ptr(A, 16, "wout"); load_ptr(A, 36, "bsp"); load_ptr(A, 38, "out")
    A(f"v_readfirstlane_b32 {s(sW)}, v0")
    A(f"s_bfe_u32 {s(sRB)}, s2, 0x20001")
    A(f"s_bfe_u32 {s(sT0)}, s2, 0x30003")
    A(f"s_lshl3_add_u32 {s(sRB)}, {s(sRB)}, {s(sT0)}")
    A(f"s_and_b32 {s(sCC)}, s2, 1")
    A(f"s_lshr_b32 {s(sT0)}, s2, 6")
    A(f"s_lshl2_add_u32 {s(sCC)}, {s(sCC)}, {s(sT0)}")
    A(f"s_lshr_b32 {s(sW)}, {s(sW)}, 6")
    A(f"s_and_b32 {s(sTH)}, {s(sW)}, 1")
    A(f"s_bfe_u32 {s(sFH)}, {s(sW)}, 0x10001")
    vq, vi = 1, 2
    vtt = [3, 4]
    A(f"v_bfe_u32 v1, v0, 4, 2")
    A(f"v_and_b32 v2, 15, v0")
    A(f"s_lshl1_add_u32 {s(sT0)}, {s(sTH)}, {s(sFH)}")
    A(f"s_xor_b32 {s(sT1)}, {s(sT0)}, 1")
    A(f"v_lshl_add_u32 {v(vtt[0])}, {s(sT0)}, 4, {v(vi)}")
    A(f"v_lshl_add_u32 {v(vtt[1])}, {s(sT1)}, 4, {v(vi)}")
    A(f"s_cmp_ge_u32 {s(sW)}, 4")
    A(f"s_cbranch_scc1 {name}_loader")
    TILES = [(0, 0), (0, 1), (1, 0), (1, 1), (2, 0), (2, 1), (3, 0)]
    nvmax = [0]
    R = RegAlloc(5)
    vC = R.alloc(2)
    vtb = R.alloc(8, 4); vt = [vtb + k for k in range(8)]
    vH = [[R.alloc() for _ in range(2)] for _ in range(2)]
    vWa = [R.alloc() for _ in range(2)]; vWb = [R.alloc() for _ in range(2)]
    vLx = [R.alloc() for _ in range(2)]
    gt2 = R.alloc(16, 4)
    vpf = 252
    z2p = [R.alloc(2) for _ in range(7)]
    st1 = [R.alloc(2) for _ in range(2)]; st2 = [R.alloc(2) for _ in range(2)]
    acc = [[R.alloc(4) for _ in range(7)] for _ in range(2)]
    FH_ = [[[R.alloc(4) for _ in range(2)] for _ in range(2)] for _ in range(2)]
    FW = [[[R.alloc(4) for _ in range(4)] for _ in range(2)] for _ in range(2)]
    A(f"v_and_b32 {v(vt[0])}, 7, {v(vi)}")
    A(f"v_xor_b32 {v(vt[1])}, {v(vq)}, {v(vt[0])}")
    A(f"v_lshlrev_b32 {v(vt[1])}, 4, {v(vt[1])}")
    for hf in range(2):
        A(f"v_lshl_add_u32 {v(vH[hf][0])}, {v(vtt[hf])}, 7, {v(vt[1])}")
        A(f"v_xor_b32 {v(vH[hf][1])}, 64, {v(vH[hf][0])}")
    A(f"v_mul_u32_u24 {v(vt[1])}, {2*GS}, {v(vq)}")
    A(f"v_lshrrev_b32 {v(vt[2])}, 2, {v(vi)}")
    A(f"v_mul_u32_u24 {v(vt[2])}, 224, {v(vt[2])}")
    A(f"v_and_b32 {v(vt[3])}, 3, {v(vi)}")
    A(f"v_lshl_add_u32 {v(vt[1])}, {v(vt[3])}, 3, {v(vt[1])}")
    A(f"v_add_u32 {v(vt[1])}, {v(vt[1])}, {v(vt[2])}")
    A(f"s_lshl_b32 {s(sT0)}, {s(sFH)}, 7")
    A(f"s_add_u32 {s(sT0)}, {s(sT0)}, {W_OFF}")
    A(f"v_add_u32 {v(vWa[0])}, {s(sT0)}, {v(vt[1])}")
    A(f"v_add_u32 {v(vWb[0])}, {W_OFF+96}, {v(vt[1])}")
    A(f"v_add_u32 {v(vWa[1])}, {3*SLOT}, {v(vWa[0])}")
    A(f"v_add_u32 {v(vWb[1])}, {3*SLOT}, {v(vWb[0])}")
    A(f"s_mul_i32 {s(sT0)}, {s(sW)}, {XS}")
    A(f"s_add_u32 {s(sT0)}, {s(sT0)}, {X_OFF}")
    for hf in range(2):
        A(f"v_and_b32 {v(vLx[hf])}, 31, {v(vtt[hf])}")
        A(f"v_mul_u32_u24 {v(vLx[hf])}, 144, {v(vLx[hf])}")
        A(f"v_lshl_add_u32 {v(vLx[hf])}, {v(vq)}, 3, {v(vLx[hf])}")
        A(f"v_add_u32 {v(vLx[hf])}, {s(sT0)}, {v(vLx[hf])}")
    for hf in range(2):
        for r in range(2):
            A(f"v_mov_b32 {v(st1[hf]+r)}, 0"); A(f"v_mov_b32 {v(st2[hf]+r)}, 0")
    A(f"v_mov_b32 {v(vC)}, {fhex(GELU_C2)}")
    A(f"v_mov_b32 {v(vC+1)}, {fhex(GELU_C1)}")
    A(f"v_mov_b32 {v(vt[0])}, {JOIN}")
    A(f"v_mov_b32 {v(vt[2])}, 0"); A(f"v_mov_b32 {v(vt[3])}, 0")
    A(f"ds_write_b64 {v(vt[0])}, {v(vt[2],2)}")
    A("s_waitcnt lgkmcnt(0)")
    def readsZ(st, buf):
        kc = st & 7; slot = st % NSZ; sg = slot // 3; so = (slot % 3) * SLOT
        o = []
        for ks in range(2):
            for hf in range(2): o.append(f"ds_read_b128 {v(FH_[buf][ks][hf],4)}, {v(vH[hf][ks])} offset:{kc*8192}")
            for wf in range(4):
                for p in range(2):
                    base = vWa[sg] if wf < 3 else vWb[sg]
                    off = so + ks * 8 * GS + p * GS + (wf * 32 if wf < 3 else 0)
                    o.append(f"ds_read_b64_tr_b16 {v(FW[buf][ks][wf]+2*p,2)}, {v(base)} offset:{off}")
        return o
    def mfmasZ(st, buf):
        h = st >> 3
        o = []
        for ks in range(2):
            for tl, (wf, hf) in enumerate(TILES):
                c = "0" if (st & 7) == 0 and ks == 0 else v(acc[h][tl], 4)
                o.append(f"v_mfma_f32_16x16x32_bf16 {v(acc[h][tl],4)}, {v(FW[buf][ks][wf],4)}, {v(FH_[buf][ks][hf],4)}, {c}")
        return o
    def z2_part1():
        A(f"s_mov_b32 {s(sT2)}, 0xffff0000")
        for grp in ([0, 1, 2, 3], [4, 5, 6]):
            for x in gelu_pk_multi([acc[0][tl] for tl in grp], gt2, vC): A(x)
            for tl in grp:
                ac = acc[0][tl]
                for h in range(2): A(f"v_cvt_pk_bf16_f32 {v(z2p[tl]+h)}, {v(ac+2*h)}, {v(ac+2*h+1)}")
            for k, tl in enumerate(grp):
                for h in range(2):
                    A(f"v_lshlrev_b32 {v(gt2+4*k+2*h)}, 16, {v(z2p[tl]+h)}")
                    A(f"v_and_b32 {v(gt2+4*k+2*h+1)}, {s(sT2)}, {v(z2p[tl]+h)}")
            for k, tl in enumerate(grp):
                hf = TILES[tl][1]
                for h in range(2):
                    A(pk("add", st1[hf], v(st1[hf], 2), v(gt2+4*k+2*h, 2)))
                    A(pk("fma", st2[hf], v(gt2+4*k+2*h, 2), v(gt2+4*k+2*h, 2), v(st2[hf], 2)))
        for hf in range(2):
            A(f"v_add_f32 {v(st1[hf])}, {v(st1[hf])}, {v(st1[hf]+1)}")
            A(f"v_add_f32 {v(st2[hf])}, {v(st2[hf])}, {v(st2[hf]+1)}")
        rs4 = (st1[0], st2[0], st1[1], st2[1])
        for k, r in enumerate(rs4): A(f"v_mov_b32 {v(gt2+k)}, {v(r)}")
        for k, r in enumerate(rs4): A(f"v_permlane16_swap_b32 {v(r)}, {v(gt2+k)}")
        for k, r in enumerate(rs4): A(f"v_add_f32 {v(r)}, {v(r)}, {v(gt2+k)}")
        for k, r in enumerate(rs4): A(f"v_mov_b32 {v(gt2+k)}, {v(r)}")
        for k, r in enumerate(rs4): A(f"v_permlane32_swap_b32 {v(r)}, {v(gt2+k)}")
        for k, r in enumerate(rs4): A(f"v_add_f32 {v(r)}, {v(r)}, {v(gt2+k)}")
        for x in [f"v_cmp_eq_u32 vcc, 1, {v(vq)}",
           f"v_mov_b32 {v(vt[4])}, 0x7fc00000",
           f"s_lshl1_add_u32 {s(sT1)}, {s(sRB)}, {s(sTH)}",
           f"v_cndmask_b32 {v(vt[2])}, {v(st1[0])}, {v(st1[1])}, vcc",
           f"v_cndmask_b32 {v(vt[3])}, {v(st2[0])}, {v(st2[1])}, vcc",
           f"v_cndmask_b32 {v(vt[0])}, {v(vtt[0])}, {v(vtt[1])}, vcc",
           f"v_cmp_eq_u32 vcc, -1, {v(vt[2])}",
           f"s_lshl_b32 {s(sT1)}, {s(sT1)}, 12",
           f"v_cndmask_b32 {v(vt[2])}, {v(vt[2])}, {v(vt[4])}, vcc",
           f"v_cmp_eq_u32 vcc, -1, {v(vt[3])}",
           f"s_add_u32 {s(sT1)}, {s(sT1)}, {WS_STAT}",
           f"v_cndmask_b32 {v(vt[3])}, {v(vt[3])}, {v(vt[4])}, vcc",
           f"s_lshl1_add_u32 {s(sT2)}, {s(sCC)}, {s(sFH)}",
           f"s_lshl_b32 {s(sT2)}, {s(sT2)}, 8",
           f"s_add_u32 {s(sT2)}, {s(sT2)}, {s(sT1)}",
           f"v_and_b32 {v(vt[0])}, 31, {v(vt[0])}",
           f"v_lshl_add_u32 {v(vt[0])}, {v(vt[0])}, 3, {s(sT2)}",
           "s_mov_b32 exec_hi, 0",
           f"global_store_dwordx2 {v(vt[0])}, {v(vt[2],2)}, s[4:5] sc0 sc1",
           "s_mov_b32 exec_hi, -1"]: A(x)
        for tl, (wf, hf) in enumerate(TILES):
            A(f"ds_write_b64 {v(vLx[hf])}, {v(z2p[tl],2)} offset:{wf*32}")
    def touches():
        A(f"v_and_b32 {v(vt[5])}, 63, v0")
        A(f"s_lshr_b32 {s(sT1)}, s2, 3")
        A(f"s_lshl2_add_u32 {s(sT1)}, {s(sT1)}, {s(sW)}")
        A(f"s_bfe_u32 {s(sT0)}, s2, 0x20001")
        A(f"s_lshl_b32 {s(sT0)}, {s(sT0)}, 21")
        A(f"s_lshl_b32 {s(sT2)}, {s(sT1)}, 14")
        A(f"s_add_u32 {s(sT0)}, {s(sT0)}, {s(sT2)}")
        if pfhalf:
            A(f"s_and_b32 {s(sT2)}, s2, 1")
            A(f"s_lshl_b32 {s(sT2)}, {s(sT2)}, 13")
            A(f"s_add_u32 {s(sT0)}, {s(sT0)}, {s(sT2)}")
        A(f"v_lshl_add_u32 {v(vt[1])}, {v(vt[5])}, 7, {s(sT0)}")
        A(f"global_load_dword {v(vpf)}, {v(vt[1])}, s[12:13]")
        if not pfhalf:
            A(f"v_add_u32 {v(vt[1])}, 8192, {v(vt[1])}")
            A(f"global_load_dword {v(vpf+1)}, {v(vt[1])}, s[12:13]")
        lab = f"{name}_nowo"
        A(f"s_cmp_ge_u32 {s(sT1)}, 56")
        A(f"s_cbranch_scc1 {lab}")
        A(f"v_lshl_add_u32 {v(vt[1])}, {s(sT1)}, 6, {v(vt[5])}")
        A(f"v_lshrrev_b32 {v(vt[2])}, 2, {v(vt[1])}")
        A(f"v_and_b32 {v(vt[1])}, 3, {v(vt[1])}")
        A(f"v_lshlrev_b32 {v(vt[2])}, 10, {v(vt[2])}")
        A(f"v_lshl_add_u32 {v(vt[2])}, {v(vt[1])}, 7, {v(vt[2])}")
        A(f"s_and_b32 {s(sT0)}, s2, 1")
        A(f"s_lshl_b32 {s(sT0)}, {s(sT0)}, 9")
        A(f"v_add_u32 {v(vt[2])}, {s(sT0)}, {v(vt[2])}")
        A(f"global_load_dword {v(vpf+2)}, {v(vt[2])}, s[16:17]")
        A.label(lab)
    def hookZ(st):
        if st == 7:
            if prefetch and pfpos == 0: touches()
            z2_part1()
    consumer_full(A, NSTZ, readsZ, mfmasZ, hook=hookZ)
    A("s_barrier")
    if prefetch and pfpos == 1: touches()
    ST.stamp()
    vLa = [vH[0][0], vH[1][0]]; vL4 = vH[0][1]
    for hf in range(2):
        A(f"v_mul_u32_u24 {v(vLa[hf])}, 224, {v(vtt[hf])}")
        A(f"v_lshl_add_u32 {v(vLa[hf])}, {v(vq)}, 3, {v(vLa[hf])}")
        A(f"v_add_u32 {v(vLa[hf])}, {ZT}, {v(vLa[hf])}")
    A(f"v_add_u32 {v(vL4)}, 96, {v(vLa[0])}")
    A(f"s_lshl_b32 {s(sT0)}, {s(sFH)}, 7")
    for hf in range(2): A(f"v_add_u32 {v(vLa[hf])}, {s(sT0)}, {v(vLa[hf])}")
    gt = FW[0][0][0]
    for grp in ([0, 1, 2, 3], [4, 5, 6]):
        for x in gelu_pk_multi([acc[1][tl] for tl in grp], gt, vC): A(x)
        for tl in grp:
            wf, hf = TILES[tl]; ac = acc[1][tl]
            for h in range(2): A(f"v_cvt_pk_bf16_f32 {v(ac+h)}, {v(ac+2*h)}, {v(ac+2*h+1)}")
            if wf < 3: A(f"ds_write_b64 {v(vLa[hf])}, {v(ac,2)} offset:{wf*32}")
            else: A(f"ds_write_b64 {v(vL4)}, {v(ac,2)}")
    nvmax[0] = max(nvmax[0], R.hi)
    R = RegAlloc(5)
    vA = R.alloc(); vB = [R.alloc() for _ in range(2)]
    cA = R.alloc(); cB = [R.alloc() for _ in range(2)]
    vtb = R.alloc(8, 4); vt = [vtb + k for k in range(8)]
    accg = [[R.alloc(4) for _ in range(2)] for _ in range(7)]
    FA = [[R.alloc(4) for _ in range(7)] for _ in range(2)]
    FB = [[R.alloc(4) for _ in range(2)] for _ in range(2)]
    vb = R.alloc(); vtw = R.alloc()
    vxw = R.alloc(); vxr = R.alloc(); vz1 = R.alloc(); vz = R.alloc(4); vrb = R.alloc()
    A("s_waitcnt lgkmcnt(0)")
    A(f"v_lshl_add_u32 {v(vtw)}, {s(sW)}, 4, {v(vi)}")
    A(f"v_lshl_add_u32 {v(vt[0])}, {s(sRB)}, 6, {v(vtw)}")
    A(f"v_lshlrev_b32 {v(vt[0])}, 1, {v(vt[0])}")
    A(f"global_load_ushort {v(vb)}, {v(vt[0])}, s[36:37]")
    A(f"s_and_b32 {s(sT0)}, {s(sW)}, 1")
    A(f"s_lshl_b32 {s(sT0)}, {s(sT0)}, 2")
    A(f"v_add_u32 {v(vt[4])}, {s(sT0)}, {v(vq)}")
    A(f"v_and_b32 {v(vt[2])}, 7, {v(vi)}")
    A(f"v_xor_b32 {v(vt[1])}, {v(vt[4])}, {v(vt[2])}")
    A(f"v_lshlrev_b32 {v(vt[1])}, 4, {v(vt[1])}")
    A(f"v_lshl_add_u32 {v(vA)}, {v(vi)}, 7, {v(vt[1])}")
    A(f"v_add_u32 {v(vt[1])}, {B_OFF}, {v(vt[1])}")
    A(f"v_lshl_add_u32 {v(vB[0])}, {v(vtw)}, 7, {v(vt[1])}")
    A(f"v_xor_b32 {v(vt[3])}, 16, {v(vtw)}")
    A(f"v_lshl_add_u32 {v(vB[1])}, {v(vt[3])}, 7, {v(vt[1])}")
    A(f"v_and_b32 {v(vt[0])}, 63, v0")
    A(f"s_mul_i32 {s(sT0)}, {s(sW)}, 7168")
    A(f"s_add_u32 {s(sT0)}, {s(sT0)}, {GX}")
    A(f"v_lshl_add_u32 {v(vxw)}, {v(vt[0])}, 4, {s(sT0)}")
    A(f"s_xor_b32 {s(sT1)}, {s(sW)}, 1")
    A(f"s_mul_i32 {s(sT1)}, {s(sT1)}, 7168")
    A(f"s_add_u32 {s(sT1)}, {s(sT1)}, {GX}")
    A(f"v_lshl_add_u32 {v(vxr)}, {v(vt[0])}, 4, {s(sT1)}")
    A(f"v_mul_u32_u24 {v(vz1)}, 224, {v(vtw)}")
    A(f"v_lshl_add_u32 {v(vz1)}, {v(vq)}, 3, {v(vz1)}")
    A(f"v_add_u32 {v(vz1)}, {ZT}, {v(vz1)}")
    for j in range(4):
        A(f"v_add_u32 {v(vt[4])}, {64*j}, {v(vt[0])}")
        div14(A, vt[5], vt[6], vt[4], vt[7])
        A(f"v_mul_u32_u24 {v(vt[5])}, 1792, {v(vt[5])}")
        A(f"v_lshl_add_u32 {v(vz+j)}, {v(vt[6])}, 4, {v(vt[5])}")
    A(f"s_lshl2_add_u32 {s(sT0)}, {s(sRB)}, {s(sW)}")
    A(f"s_mul_i32 {s(sT0)}, {s(sT0)}, {16*1792}")
    A(f"s_mul_i32 {s(sT1)}, {s(sCC)}, 224")
    A(f"s_add_u32 {s(sT0)}, {s(sT0)}, {s(sT1)}")
    A(f"s_add_u32 {s(sT0)}, {s(sT0)}, {WS_P0}")
    for j in range(4): A(f"v_add_u32 {v(vz+j)}, {s(sT0)}, {v(vz+j)}")
    A(f"s_mul_i32 {s(sT0)}, {s(sW)}, {16*224}")
    A(f"s_add_u32 {s(sT0)}, {s(sT0)}, {ZT}")
    A(f"v_lshl_add_u32 {v(vrb)}, {v(vt[0])}, 4, {s(sT0)}")
    A(f"s_mov_b32 {s(sSlot)}, 0")
    A(f"s_mov_b32 {s(sI)}, 0")
    def rdsG(buf, a_, b_):
        return [f"ds_read_b128 {v(FB[buf][nb],4)}, {v(b_[nb])}" for nb in range(2)] + \
               [f"ds_read_b128 {v(FA[buf][fa],4)}, {v(a_)} offset:{fa*2048}" for fa in range(7)]
    def mmsG(buf, first=False):
        o = []
        for fa in range(7):
            for nb in range(2):
                c = "0" if first else v(accg[fa][nb], 4)
                o.append(f"v_mfma_f32_16x16x32_bf16 {v(accg[fa][nb],4)}, {v(FA[buf][fa],4)}, {v(FB[buf][nb],4)}, {c}")
        return o
    def adv():
        A(f"s_add_u32 {s(sSlot)}, {s(sSlot)}, {STAGE}")
        A(f"s_cmp_ge_u32 {s(sSlot)}, {RING}")
        A(f"s_cselect_b32 {s(sSlot)}, 0, {s(sSlot)}")
        A(f"v_add_u32 {v(cA)}, {s(sSlot)}, {v(vA)}")
        for nb in range(2): A(f"v_add_u32 {v(cB[nb])}, {s(sSlot)}, {v(vB[nb])}")
    ST.stamp()
    A("s_barrier")
    A("s_barrier")
    ST.stamp()
    for r in rdsG(0, vA, vB): A(r)
    adv()
    A("s_waitcnt lgkmcnt(0)")
    A("s_barrier")
    for x in interleave2(mmsG(0, True), rdsG(1, cA, cB)): A(x)
    loop = f"{name}_gloop"
    A.label(loop)
    for buf in (1, 0):
        adv()
        A("s_waitcnt lgkmcnt(0)")
        A("s_barrier")
        for x in interleave2(mmsG(buf), rdsG(buf ^ 1, cA, cB)): A(x)
    A(f"s_add_u32 {s(sI)}, {s(sI)}, 1")
    A(f"s_cmp_lt_u32 {s(sI)}, 15")
    A(f"s_cbranch_scc1 {loop}")
    A("s_waitcnt lgkmcnt(0)")
    for x in mmsG(1): A(x)
    ST.stamp()
    for fa in range(7): A(f"ds_write_b128 {v(vxw)}, {v(accg[fa][1],4)} offset:{fa*1024}")
    A("s_waitcnt vmcnt(0) lgkmcnt(0)")
    A(f"v_lshlrev_b32 {v(vb)}, 16, {v(vb)}")
    A("s_barrier")
    for fa in range(7): A(f"ds_read_b128 {v(FA[0][fa],4)}, {v(vxr)} offset:{fa*1024}")
    zr = [FA[1][fa] for fa in range(7)]
    for fa in range(7): A(f"ds_read_b64 {v(zr[fa],2)}, {v(vz1)} offset:{fa*32}")
    A(f"v_mov_b32 {v(FB[1][0])}, {v(vb)}")
    A(f"v_mov_b32 {v(FB[1][0]+1)}, {v(vb)}")
    A("s_mov_b32 s33, 0xffff0000")
    for fa in range(7):
        ac = accg[fa][0]; pr = FA[0][fa]
        A(f"s_waitcnt lgkmcnt({13 - fa})")
        for h in (0, 2): A(pk("add", ac + h, v(ac + h, 2), v(pr + h, 2)))
        for h in (0, 2): A(pk("add", ac + h, v(ac + h, 2), v(FB[1][0], 2)))
    for fa in range(7):
        ac = accg[fa][0]; pr = FA[0][fa]; z = zr[fa]
        A(f"s_waitcnt lgkmcnt({6 - fa})")
        for h in range(2):
            A(f"v_lshlrev_b32 {v(z+2)}, 16, {v(z+h)}")
            A(f"v_and_b32 {v(z+3)}, s33, {v(z+h)}")
            A(pk("mul", ac + 2*h, v(ac + 2*h, 2), v(z + 2, 2)))
            A(f"v_cvt_pk_bf16_f32 {v(pr+h)}, {v(ac+2*h)}, {v(ac+2*h+1)}")
        A(f"ds_write_b64 {v(vz1)}, {v(pr,2)} offset:{fa*32}")
    A("s_waitcnt lgkmcnt(0)")
    ob = [FA[1][j] for j in range(4)]
    for j in range(4): A(f"ds_read_b128 {v(ob[j],4)}, {v(vrb)} offset:{j*1024}")
    for j in range(3):
        A(f"s_waitcnt lgkmcnt({3-j})")
        A(f"global_store_dwordx4 {v(vz+j)}, {v(ob[j],4)}, s[4:5] sc0 sc1")
    A("s_waitcnt lgkmcnt(0)")
    A("s_mov_b32 exec_hi, 0")
    A(f"global_store_dwordx4 {v(vz+3)}, {v(ob[3],4)}, s[4:5] sc0 sc1")
    A("s_mov_b32 exec_hi, -1")
    nvmax[0] = max(nvmax[0], R.hi)
    R = RegAlloc(5)
    vtw2 = R.alloc()
    vtb = R.alloc(8, 4); vt = [vtb + k for k in range(8)]
    vW = [[R.alloc() for _ in range(4)] for _ in range(2)]
    vP = [[R.alloc() for _ in range(2)] for _ in range(2)]
    acco = [[R.alloc(4) for _ in range(2)] for _ in range(4)]
    FWo = [[[R.alloc(4) for _ in range(4)] for _ in range(2)] for _ in range(2)]
    FP = [[[R.alloc(4) for _ in range(2)] for _ in range(2)] for _ in range(2)]
    gb = [R.alloc(4) for _ in range(4)]
    vcnt = R.alloc(2)
    A(f"s_lshl3_add_u32 {s(sT0)}, {s(sRB)}, {s(sCC)}")
    A(f"s_lshl_b32 {s(sT0)}, {s(sT0)}, 7")
    A(f"s_add_u32 {s(sT0)}, {s(sT0)}, {WS_CNT + 32768}")
    A(f"v_mov_b32 {v(vcnt)}, {JOIN + 4}")
    A(f"v_mov_b32 {v(vcnt+1)}, 1")
    A("s_waitcnt vmcnt(0)")
    ST.stamp()
    A("s_mov_b64 exec, 1")
    A(f"ds_add_rtn_u32 {v(vcnt)}, {v(vcnt)}, {v(vcnt+1)}")
    A("s_waitcnt lgkmcnt(0)")
    A(f"v_readfirstlane_b32 {s(sT1)}, {v(vcnt)}")
    A(f"v_mov_b32 {v(vcnt)}, {s(sT0)}")
    A(f"s_cmp_lg_u32 {s(sT1)}, 3")
    A(f"s_cbranch_scc1 {name}_nofl2")
    A(f"global_store_dword {v(vcnt)}, {v(vcnt+1)}, s[4:5] sc0 sc1")
    A.label(f"{name}_nofl2")
    A("s_mov_b64 exec, -1")
    A("s_barrier")
    A(f"v_lshl_add_u32 {v(vtw2)}, {s(sW)}, 4, {v(vi)}")
    A(f"s_and_b32 {s(sT2)}, {s(sW)}, 1")
    A(f"v_lshrrev_b32 {v(vt[0])}, 2, {v(vi)}")
    A(f"v_lshl_add_u32 {v(vt[0])}, {v(vq)}, 3, {v(vt[0])}")
    A(f"v_lshlrev_b32 {v(vt[0])}, 7, {v(vt[0])}")
    A(f"v_and_b32 {v(vt[1])}, 1, {v(vi)}")
    A(f"v_lshl_add_u32 {v(vt[0])}, {v(vt[1])}, 3, {v(vt[0])}")
    A(f"s_lshl_b32 {s(sT0)}, {s(sT2)}, 13")
    A(f"v_add_u32 {v(vt[0])}, {s(sT0)}, {v(vt[0])}")
    A(f"v_bfe_u32 {v(vt[1])}, {v(vi)}, 3, 1")
    A(f"v_and_b32 {v(vt[2])}, 1, {v(vq)}")
    A(f"v_lshl_or_b32 {v(vt[1])}, {v(vt[2])}, 1, {v(vt[1])}")
    A(f"v_lshlrev_b32 {v(vt[1])}, 1, {v(vt[1])}")
    A(f"v_bfe_u32 {v(vt[2])}, {v(vi)}, 1, 1")
    A(f"v_xor_b32 {v(vt[1])}, {v(vt[1])}, {v(vt[2])}")
    for dt in range(4):
        A(f"v_xor_b32 {v(vt[3])}, {2*dt}, {v(vt[1])}")
        A(f"v_lshl_add_u32 {v(vW[0][dt])}, {v(vt[3])}, 4, {v(vt[0])}")
        A(f"v_add_u32 {v(vW[1][dt])}, 65536, {v(vW[0][dt])}")
    A(f"v_and_b32 {v(vt[0])}, 7, {v(vi)}")
    A(f"v_xor_b32 {v(vt[1])}, {v(vq)}, {v(vt[0])}")
    A(f"v_lshlrev_b32 {v(vt[1])}, 4, {v(vt[1])}")
    A(f"s_add_u32 {s(sT0)}, {s(sT0)}, {OP}")
    A(f"v_add_u32 {v(vt[1])}, {s(sT0)}, {v(vt[1])}")
    A(f"v_lshl_add_u32 {v(vP[0][0])}, {v(vtw2)}, 7, {v(vt[1])}")
    A(f"v_xor_b32 {v(vP[1][0])}, 2048, {v(vP[0][0])}")
    for tl in range(2): A(f"v_xor_b32 {v(vP[tl][1])}, 64, {v(vP[tl][0])}")
    A(f"s_lshl_b32 {s(sT0)}, {s(sCC)}, 8")
    A(f"s_add_u32 {s(sT0)}, {s(sT0)}, {WS_MOD + 2560*4}")
    A(f"v_lshl_add_u32 {v(vt[0])}, {v(vq)}, 4, {s(sT0)}")
    for dt in range(4): A(f"global_load_dwordx4 {v(gb[dt],4)}, {v(vt[0])}, s[4:5] offset:{dt*64}")
    assert (OP + 2048) % 4096 == 2048 and OP % 4096 == 0
    def readsO(st, buf):
        g = st // 4; so = (st % 4) * 16384; po = (st % NSO) * PSLOT
        o = []
        for ks in range(2):
            for tl in range(2): o.append(f"ds_read_b128 {v(FP[buf][ks][tl],4)}, {v(vP[tl][ks])} offset:{po}")
            for dt in range(4):
                for p in range(2):
                    o.append(f"ds_read_b64_tr_b16 {v(FWo[buf][ks][dt]+2*p,2)}, {v(vW[g][dt])} offset:{so + ks*4096 + p*512}")
        return o
    def mfmasO(st, buf):
        o = []
        for ks in range(2):
            for dt in range(4):
                for tl in range(2):
                    c = "0" if st == 0 and ks == 0 else v(acco[dt][tl], 4)
                    o.append(f"v_mfma_f32_16x16x32_bf16 {v(acco[dt][tl],4)}, {v(FWo[buf][ks][dt],4)}, {v(FP[buf][ks][tl],4)}, {c}")
        return o
    XT = OP + ((NSTO - 3) % NSO) * PSLOT
    E_OFF = 0
    consumer_full(A, NSTO, readsO, mfmasO)
    ST.stamp()
    A(f"v_and_b32 {v(vt[0])}, 63, v0")
    A(f"s_lshl_b32 {s(sT0)}, {s(sW)}, 12")
    A(f"s_add_u32 {s(sT0)}, {s(sT0)}, {E_OFF}")
    A(f"v_lshl_add_u32 {v(vt[1])}, {v(vt[0])}, 4, {s(sT0)}")
    A(f"v_xor_b32 {v(vt[2])}, 4096, {v(vt[1])}")
    for dt in range(4): A(f"ds_write_b128 {v(vt[1])}, {v(acco[dt][1],4)} offset:{dt*1024}")
    va = [vt[4], vt[5], vt[6], vt[7]]
    A(f"v_and_b32 {v(vt[3])}, 7, {v(vi)}")
    A(f"v_lshrrev_b32 {v(vW[0][0])}, 1, {v(vq)}")
    A(f"v_xor_b32 {v(vt[3])}, {v(vt[3])}, {v(vW[0][0])}")
    A(f"v_and_b32 {v(vW[0][0])}, 1, {v(vq)}")
    A(f"v_lshlrev_b32 {v(vW[0][0])}, 3, {v(vW[0][0])}")
    A(f"v_lshl_add_u32 {v(vW[0][0])}, {v(vtw2)}, 7, {v(vW[0][0])}")
    A(f"v_add_u32 {v(vW[0][0])}, {XT}, {v(vW[0][0])}")
    for dt in range(4):
        A(f"v_xor_b32 {v(vW[0][1])}, {2*dt}, {v(vt[3])}")
        A(f"v_lshl_add_u32 {v(va[dt])}, {v(vW[0][1])}, 4, {v(vW[0][0])}")
    vrb2 = vW[1][0]; vgo = vW[1][1]
    A(f"v_lshrrev_b32 {v(vW[1][2])}, 3, {v(vt[0])}")
    A(f"v_and_b32 {v(vW[1][3])}, 7, {v(vt[0])}")
    A(f"v_xor_b32 {v(vrb2)}, {v(vW[1][2])}, {v(vW[1][3])}")
    A(f"v_lshlrev_b32 {v(vrb2)}, 4, {v(vrb2)}")
    A(f"v_lshl_add_u32 {v(vrb2)}, {v(vW[1][2])}, 7, {v(vrb2)}")
    A(f"s_lshl_b32 {s(sT0)}, {s(sW)}, 11")
    A(f"s_add_u32 {s(sT0)}, {s(sT0)}, {XT}")
    A(f"v_add_u32 {v(vrb2)}, {s(sT0)}, {v(vrb2)}")
    A(f"v_lshlrev_b32 {v(vgo)}, 10, {v(vW[1][2])}")
    A(f"v_lshl_add_u32 {v(vgo)}, {v(vW[1][3])}, 4, {v(vgo)}")
    A(f"s_lshl2_add_u32 {s(sT0)}, {s(sRB)}, {s(sW)}")
    A(f"s_lshl_b32 {s(sT0)}, {s(sT0)}, 14")
    A(f"s_lshl_b32 {s(sT1)}, {s(sCC)}, 7")
    A(f"s_add_u32 {s(sT0)}, {s(sT0)}, {s(sT1)}")
    A(f"v_add_u32 {v(vgo)}, {s(sT0)}, {v(vgo)}")
    A("s_waitcnt vmcnt(0) lgkmcnt(0)")
    A("s_barrier")
    for dt in range(4): A(f"ds_read_b128 {v(FWo[0][0][dt],4)}, {v(vt[2])} offset:{dt*1024}")
    xa = [FWo[0][1][dt] for dt in range(4)]
    for dt in range(4): A(f"ds_read_b64 {v(xa[dt],2)}, {v(va[dt])}")
    A(f"s_mov_b32 {s(sT0)}, 0xffff0000")
    for dt in range(4):
        ac = acco[dt][0]; pr = FWo[0][0][dt]; x = xa[dt]
        A(f"s_waitcnt lgkmcnt({7-dt})")
        for h in (0, 2): A(pk("add", ac + h, v(ac + h, 2), v(pr + h, 2)))
        A(f"s_waitcnt lgkmcnt({3-dt})")
        for h in range(2):
            A(f"v_lshlrev_b32 {v(x+2)}, 16, {v(x+h)}")
            A(f"v_and_b32 {v(x+3)}, {s(sT0)}, {v(x+h)}")
            A(pk("fma", pr, v(ac + 2*h, 2), v(gb[dt] + 2*h, 2), v(x + 2, 2)))
            A(f"v_cvt_pk_bf16_f32 {v(ac+h)}, {v(pr)}, {v(pr+1)}")
        A(f"ds_write_b64 {v(va[dt])}, {v(ac,2)}")
    A("s_waitcnt lgkmcnt(0)")
    ob = [FP[0][0][0], FP[0][0][1]]
    for u in range(2): A(f"ds_read_b128 {v(ob[u],4)}, {v(vrb2)} offset:{u*1024}")
    A("s_waitcnt lgkmcnt(1)")
    A(f"global_store_dwordx4 {v(vgo)}, {v(ob[0],4)}, s[38:39]")
    A(f"v_add_u32 {v(vgo)}, 8192, {v(vgo)}")
    A("s_waitcnt lgkmcnt(0)")
    A(f"global_store_dwordx4 {v(vgo)}, {v(ob[1],4)}, s[38:39]")
    if stamps:
        ST.stamp(); ST.flush(4, vt[4])
    A("s_endpgm")
    nvmax[0] = max(nvmax[0], R.hi)
    A.label(f"{name}_loader")
    STL = Stamps(A, on=stamps, kidx=2, base=70)
    R = RegAlloc(5)
    voW = [R.alloc() for _ in range(4)]; voH = [R.alloc() for _ in range(2)]
    vl = R.alloc(); t0 = R.alloc(); t1 = R.alloc(); t2 = R.alloc(); t3 = R.alloc()
    vtb = R.alloc(8, 4); vt = [vtb + k for k in range(8)]
    za = [R.alloc(4) for _ in range(4)]
    z2p = [R.alloc(2) for _ in range(7)]
    st1 = [R.alloc(2) for _ in range(2)]
    pol = [R.alloc(4) for _ in range(4)]
    vrow = [R.alloc() for _ in range(2)]; vLa = [R.alloc() for _ in range(2)]
    vo = [R.alloc() for _ in range(6)]
    vcn = R.alloc(2)
    sLw, sWk, sHk, sLW, sLH = 29, 30, 31, 32, 33
    A("s_mov_b32 s10, %d" % (512 * WROW)); A("s_mov_b32 s11, 0x20000")
    A("s_mov_b32 s6, %d" % (32 * MB)); A("s_mov_b32 s7, 0x20000")
    A(f"s_sub_u32 {s(sLw)}, {s(sW)}, 4")
    A(f"v_and_b32 {v(vl)}, 63, v0")
    div14(A, t0, t1, vl, t2)
    A(f"v_mul_u32_u24 {v(t0)}, {WROW}, {v(t0)}")
    A(f"v_lshl_add_u32 {v(t0)}, {v(t1)}, 4, {v(t0)}")
    A(f"s_mul_i32 {s(sT0)}, {s(sLw)}, {16*WROW}")
    A(f"v_add_u32 {v(voW[0])}, {s(sT0)}, {v(t0)}")
    for g in range(1, 4): A(f"v_add_u32 {v(voW[g])}, {g*(4*WROW - GS)}, {v(voW[0])}")
    A(f"v_lshrrev_b32 {v(t0)}, 3, {v(vl)}")
    A(f"v_and_b32 {v(t1)}, 7, {v(vl)}")
    A(f"v_xor_b32 {v(t1)}, {v(t1)}, {v(t0)}")
    A(f"v_lshlrev_b32 {v(t1)}, 4, {v(t1)}")
    A(f"v_lshl_add_u32 {v(t0)}, {v(t0)}, 10, {v(t1)}")
    A(f"s_lshl_b32 {s(sT0)}, {s(sLw)}, 14")
    A(f"v_add_u32 {v(voH[0])}, {s(sT0)}, {v(t0)}")
    A(f"v_add_u32 {v(voH[1])}, {8192-1024}, {v(voH[0])}")
    A(f"s_mul_i32 {s(sWk)}, {s(sCC)}, 224")
    A(f"s_lshl_b32 {s(sHk)}, {s(sRB)}, 16")
    A(f"s_add_u32 {s(sHk)}, {s(sHk)}, {WS_H2}")
    A(f"s_mul_i32 {s(sLW)}, {s(sLw)}, {4*GS}")
    A(f"s_lshl_b32 {s(sLH)}, {s(sLw)}, 11")
    A("s_waitcnt lgkmcnt(0)")
    def issueZ(st):
        half, kc = st >> 3, st & 7; slot = st % NSZ
        A(f"s_add_u32 m0, {s(sLW)}, {W_OFF + slot*SLOT}")
        A(f"s_add_u32 {s(sT0)}, {s(sWk)}, {kc*64*WROW + (1792 if half == 0 else 0)}")
        A("s_mov_b32 exec_hi, 0x00ffffff")
        for g in range(4):
            A(f"buffer_load_dwordx4 {v(voW[g])}, s[8:11], {s(sT0)} offen offset:{g*GS} lds")
        A("s_mov_b32 exec_hi, -1")
        if half == 0:
            A(f"s_add_u32 m0, {s(sLH)}, {kc*8192}")
            A(f"s_add_u32 {s(sT0)}, {s(sHk)}, {kc*128}")
            for j in range(2):
                A(f"buffer_load_dwordx4 {v(voH[j])}, s[4:7], {s(sT0)} offen offset:{j*1024} lds")
    for st in range(NSZ): issueZ(st)
    A(f"v_lshrrev_b32 {v(t0)}, 3, {v(vl)}")
    A(f"v_lshl_add_u32 {v(t0)}, {v(t0)}, 12, {v(t1)}")
    sL1, sL2, sK1 = 40, 41, 42
    SR1, SR2 = 44, 48
    A(f"s_lshl_b32 {s(sT0)}, {s(sLw)}, 3")
    A(f"s_mov_b32 {s(sT1)}, 0x060c0600")
    A(f"s_lshr_b32 {s(sT1)}, {s(sT1)}, {s(sT0)}")
    A(f"s_and_b32 {s(sT1)}, {s(sT1)}, 0xff")
    A(f"s_mov_b32 {s(sT2)}, 0x03000903")
    A(f"s_lshr_b32 {s(sT2)}, {s(sT2)}, {s(sT0)}")
    A(f"s_and_b32 {s(sT2)}, {s(sT2)}, 0xff")
    STEP = 8 * 4096 - 1024
    A(f"s_lshl_b32 {s(sT0)}, {s(sT1)}, 15")
    A(f"v_add_u32 {v(vo[0])}, {s(sT0)}, {v(t0)}")
    A(f"s_lshl_b32 {s(sT0)}, {s(sT2)}, 15")
    A(f"v_add_u32 {v(vo[3])}, {s(sT0)}, {v(t0)}")
    for k in (1, 2):
        A(f"v_add_u32 {v(vo[k])}, {k*STEP}, {v(vo[0])}")
        A(f"v_add_u32 {v(vo[3+k])}, {k*STEP}, {v(vo[3])}")
    A(f"s_lshl_b32 {s(sL1)}, {s(sT1)}, 10")
    A(f"s_lshl_b32 {s(sL2)}, {s(sT2)}, 10")
    A(f"s_cmp_eq_u32 {s(sLw)}, 3")
    A(f"s_cselect_b32 {s(sT0)}, {B_OFF}, 0")
    A(f"s_add_u32 {s(sL1)}, {s(sL1)}, {s(sT0)}")
    A(f"s_cmp_ge_u32 {s(sLw)}, 2")
    A(f"s_cselect_b32 {s(sT0)}, {B_OFF}, 0")
    A(f"s_add_u32 {s(sL2)}, {s(sL2)}, {s(sT0)}")
    A(f"s_mul_i32 {s(sT0)}, {s(sCC)}, {112*4096}")
    A(f"s_add_u32 {s(sT0)}, {s(sT0)}, {WS_Z2T}")
    A(f"s_add_u32 s52, s4, {s(sT0)}")
    A(f"s_addc_u32 s53, s5, 0")
    A(f"s_lshl_b32 {s(sT0)}, {s(sRB)}, 18")
    A(f"s_add_u32 s54, s12, {s(sT0)}")
    A(f"s_addc_u32 s55, s13, 0")
    A(f"s_cmp_eq_u32 {s(sLw)}, 3")
    A(f"s_cselect_b32 {s(SR1)}, s54, s52")
    A(f"s_cselect_b32 {s(SR1+1)}, s55, s53")
    A(f"s_mov_b32 {s(SR1+2)}, {112*4096}")
    A(f"s_mov_b32 {s(SR1+3)}, 0x20000")
    A(f"s_cmp_ge_u32 {s(sLw)}, 2")
    A(f"s_cselect_b32 {s(SR2)}, s54, s52")
    A(f"s_cselect_b32 {s(SR2+1)}, s55, s53")
    A(f"s_mov_b32 {s(SR2+2)}, {112*4096}")
    A(f"s_mov_b32 {s(SR2+3)}, 0x20000")
    cntZ = lambda st: 6 if st < 8 else 4
    issued = NSZ
    for i in range(NSTZ):
        out = sum(cntZ(j) for j in range(i + 1, issued))
        A(f"s_waitcnt vmcnt({out})")
        A("s_barrier")
        if i >= 1 and issued < NSTZ:
            issueZ(issued); issued += 1
    A(f"s_lshl1_add_u32 {s(sT1)}, {s(sRB)}, {s(sTH)}")
    A(f"s_lshl_b32 {s(sT1)}, {s(sT1)}, 12")
    A(f"s_add_u32 {s(sT1)}, {s(sT1)}, {WS_STAT}")
    for hf in range(2):
        A(f"v_and_b32 {v(vrow[hf])}, 31, {v(vtt[hf])}")
        A(f"v_lshl_add_u32 {v(vrow[hf])}, {v(vrow[hf])}, 3, {s(sT1)}")
        A(f"v_lshl_add_u32 {v(vrow[hf])}, {v(vq)}, 10, {v(vrow[hf])}")
    A(f"s_mul_i32 {s(sT0)}, {s(sLw)}, {XS}")
    A(f"s_add_u32 {s(sT0)}, {s(sT0)}, {X_OFF}")
    for hf in range(2):
        A(f"v_and_b32 {v(vLa[hf])}, 31, {v(vtt[hf])}")
        A(f"v_mul_u32_u24 {v(vLa[hf])}, 144, {v(vLa[hf])}")
        A(f"v_lshl_add_u32 {v(vLa[hf])}, {v(vq)}, 3, {v(vLa[hf])}")
        A(f"v_add_u32 {v(vLa[hf])}, {s(sT0)}, {v(vLa[hf])}")
    vtr = voH[0]; vgz = voH[1]; vtr3 = voW[0]; vgz3 = voW[1]
    A(f"v_lshrrev_b32 {v(t0)}, 2, {v(vi)}")
    A(f"v_lshl_add_u32 {v(t0)}, {v(vq)}, 3, {v(t0)}")
    A(f"v_mul_u32_u24 {v(vtr)}, 144, {v(t0)}")
    A(f"v_and_b32 {v(t1)}, 3, {v(vi)}")
    A(f"v_lshl_add_u32 {v(vtr)}, {v(t1)}, 3, {v(vtr)}")
    A(f"v_add_u32 {v(vtr)}, {s(sT0)}, {v(vtr)}")
    A(f"s_mul_i32 {s(sT1)}, {s(sFH)}, {16*144}")
    A(f"s_add_u32 {s(sT1)}, {s(sT1)}, 96")
    A(f"v_add_u32 {v(vtr3)}, {s(sT1)}, {v(vtr)}")
    A(f"v_lshlrev_b32 {v(vgz)}, 12, {v(vi)}")
    A(f"v_lshl_add_u32 {v(vgz)}, {v(vq)}, 4, {v(vgz)}")
    A(f"s_mul_i32 {s(sT1)}, {s(sCC)}, {112*4096}")
    A(f"s_lshl_b32 {s(sT2)}, {s(sRB)}, 7")
    A(f"s_add_u32 {s(sT1)}, {s(sT1)}, {s(sT2)}")
    A(f"s_lshl_b32 {s(sT2)}, {s(sTH)}, 6")
    A(f"s_add_u32 {s(sT1)}, {s(sT1)}, {s(sT2)}")
    A(f"s_add_u32 {s(sT1)}, {s(sT1)}, {WS_Z2T}")
    A(f"s_lshl_b32 {s(sT2)}, {s(sFH)}, 5")
    A(f"s_add_u32 {s(sT2)}, {s(sT2)}, {48*4096}")
    A(f"s_add_u32 {s(sT2)}, {s(sT2)}, {s(sT1)}")
    A(f"v_add_u32 {v(vgz3)}, {s(sT2)}, {v(vgz)}")
    A(f"s_lshl_b32 {s(sT2)}, {s(sFH)}, 18")
    A(f"s_add_u32 {s(sT1)}, {s(sT1)}, {s(sT2)}")
    A(f"v_add_u32 {v(vgz)}, {s(sT1)}, {v(vgz)}")
    for tl, (wf, hf) in enumerate(TILES):
        A(f"ds_read_b64 {v(z2p[tl],2)}, {v(vLa[hf])} offset:{wf*32}")
    A("s_barrier")
    lskip = f"{name}_nob"
    A(f"s_cmp_lt_u32 {s(sLw)}, 2")
    A(f"s_cbranch_scc1 {lskip}")
    A(f"s_mov_b32 {s(sK1)}, 0")
    for st in range(NSG):
        A(f"s_add_u32 m0, {s(sL2)}, {st*STAGE}")
        if st: A(f"s_add_u32 {s(sK1)}, {s(sK1)}, 128")
        for k in range(3): A(f"buffer_load_dwordx4 {v(vo[3+k])}, {s(SR2,4)}, {s(sK1)} offen offset:{k*1024} lds")
    A.label(lskip)
    if stamps: A("s_mov_b32 s20, 0"); STL.n = 0; STL.stamp()
    A(f"s_mov_b32 {s(sK)}, 0")
    A.label(f"{name}_poll")
    for hf in range(2):
        for u in range(4):
            A(f"global_load_dwordx2 {v(pol[hf*2+(u>>1)]+2*(u&1),2)}, {v(vrow[hf])}, s[4:5] offset:{u*256} sc1")
    A("s_waitcnt vmcnt(0)")
    A(f"v_max3_u32 {v(vt[0])}, {v(pol[0])}, {v(pol[0]+1)}, {v(pol[0]+2)}")
    rest = [pol[0]+3] + [pol[b_]+r for b_ in range(1, 4) for r in range(4)]
    for k in range(0, len(rest) - 1, 2): A(f"v_max3_u32 {v(vt[0])}, {v(vt[0])}, {v(rest[k])}, {v(rest[k+1])}")
    A(f"v_max_u32 {v(vt[0])}, {v(vt[0])}, {v(rest[-1])}")
    A(f"v_cmp_eq_u32 vcc, -1, {v(vt[0])}")
    A(f"s_add_u32 {s(sK)}, {s(sK)}, 1")
    A(f"s_cmp_eq_u64 vcc, 0")
    A(f"s_cbranch_scc1 {name}_polled")
    A("s_sleep 2")
    A(f"s_cmp_lt_u32 {s(sK)}, {SPIN}")
    A(f"s_cbranch_scc1 {name}_poll")
    A.label(f"{name}_polled")
    mean = [vt[0], vt[1]]; rstd = [vt[2], vt[3]]
    for hf in range(2):
        p0, p1 = pol[hf*2], pol[hf*2+1]
        A(pk("add", p0, v(p0, 2), v(p0+2, 2)))
        A(pk("add", p1, v(p1, 2), v(p1+2, 2)))
        A(pk("add", p0, v(p0, 2), v(p1, 2)))
        A(f"v_mov_b32 {v(mean[hf])}, {v(p0)}")
        A(f"v_mov_b32 {v(rstd[hf])}, {v(p0+1)}")
    xor16_32_sum(A, mean + rstd, vt[6])
    for hf in range(2):
        A(f"v_mul_f32 {v(mean[hf])}, {fhex(1.0/896)}, {v(mean[hf])}")
        A(f"v_mul_f32 {v(rstd[hf])}, {fhex(1.0/896)}, {v(rstd[hf])}")
        A(f"v_fma_f32 {v(rstd[hf])}, -{v(mean[hf])}, {v(mean[hf])}, {v(rstd[hf])}")
        A(f"v_max_f32 {v(rstd[hf])}, 0, {v(rstd[hf])}")
        A(f"v_add_f32 {v(rstd[hf])}, 0x3727c5ac, {v(rstd[hf])}")
        A(f"v_rsq_f32 {v(rstd[hf])}, {v(rstd[hf])}")
        A(f"v_mul_f32 {v(mean[hf])}, {v(mean[hf])}, {v(rstd[hf])}")
    for hf in range(2):
        A(f"v_mov_b32 {v(st1[hf])}, {v(rstd[hf])}")
        A(f"v_sub_f32 {v(st1[hf]+1)}, 0, {v(mean[hf])}")
    A(f"s_mov_b32 {s(sT0)}, 0xffff0000")
    A("s_waitcnt lgkmcnt(0)")
    for tl, (wf, hf) in enumerate(TILES):
        z = z2p[tl]
        for h in range(2):
            A(f"v_lshlrev_b32 {v(vt[4])}, 16, {v(z+h)}")
            A(f"v_and_b32 {v(vt[5])}, {s(sT0)}, {v(z+h)}")
            A(pk("fma", vt[4], v(vt[4], 2), v(st1[hf], 2), v(st1[hf], 2), "op_sel:[0,0,1] op_sel_hi:[1,0,1]"))
            A(f"v_cvt_pk_bf16_f32 {v(z+h)}, {v(vt[4])}, {v(vt[5])}")
        A(f"ds_write_b64 {v(vLa[hf])}, {v(z,2)} offset:{wf*32}")
    A("s_waitcnt lgkmcnt(0)")
    for wf in range(3):
        for p in range(2): A(f"ds_read_b64_tr_b16 {v(za[wf]+2*p,2)}, {v(vtr)} offset:{wf*32 + 4*p*144}")
    for p in range(2): A(f"ds_read_b64_tr_b16 {v(za[3]+2*p,2)}, {v(vtr3)} offset:{4*p*144}")
    for wf in range(3):
        A(f"s_waitcnt lgkmcnt({6-2*wf})")
        A(f"global_store_dwordx4 {v(vgz)}, {v(za[wf],4)}, s[4:5] sc0 sc1")
        if wf < 2: A(f"v_add_u32 {v(vgz)}, {16*4096}, {v(vgz)}")
    A("s_waitcnt lgkmcnt(0)")
    A("s_mov_b32 exec_hi, 0")
    A(f"global_store_dwordx4 {v(vgz3)}, {v(za[3],4)}, s[4:5] sc0 sc1")
    A("s_mov_b32 exec_hi, -1")
    def arrive(join_off, s_off, tag):
        A(f"v_mov_b32 {v(vcn)}, {join_off}")
        A(f"v_mov_b32 {v(vcn+1)}, 1")
        A("s_waitcnt vmcnt(0)")
        A("s_mov_b64 exec, 1")
        A(f"ds_add_rtn_u32 {v(vcn)}, {v(vcn)}, {v(vcn+1)}")
        A("s_waitcnt lgkmcnt(0)")
        A(f"v_readfirstlane_b32 {s(sT1)}, {v(vcn)}")
        A(f"v_mov_b32 {v(vcn)}, {s(s_off)}")
        A(f"s_cmp_lg_u32 {s(sT1)}, 3")
        A(f"s_cbranch_scc1 {name}_nofl{tag}")
        A(f"global_store_dword {v(vcn)}, {v(vcn+1)}, s[4:5] sc0 sc1")
        A.label(f"{name}_nofl{tag}")
        A("s_mov_b64 exec, -1")
    def wait_flags(tag, s_base, nflags):
        dn = f"{name}_d{tag}"; lp = f"{name}_w{tag}"
        A(f"s_cmp_lg_u32 {s(sLw)}, 0")
        A(f"s_cbranch_scc1 {dn}")
        A(f"v_and_b32 {v(vcn)}, {nflags-1}, {v(vl)}")
        A(f"v_lshl_add_u32 {v(vcn)}, {v(vcn)}, 7, {s(s_base)}")
        A(f"s_mov_b32 {s(sK)}, 0")
        A.label(lp)
        A(f"global_load_dword {v(vcn+1)}, {v(vcn)}, s[4:5] sc1")
        A("s_waitcnt vmcnt(0)")
        A(f"v_cmp_eq_u32 vcc, 0, {v(vcn+1)}")
        A(f"s_add_u32 {s(sK)}, {s(sK)}, 1")
        A(f"s_cmp_eq_u64 vcc, 0")
        A(f"s_cbranch_scc1 {dn}")
        A("s_sleep 1")
        A(f"s_cmp_lt_u32 {s(sK)}, {SPIN}")
        A(f"s_cbranch_scc1 {lp}")
        A.label(dn)
        A("s_barrier")
    A(f"s_lshl_b32 {s(sT0)}, {s(sCC)}, 5")
    A(f"s_add_u32 {s(sT0)}, {s(sT0)}, {s(sRB)}")
    A(f"s_lshl_b32 {s(sT0)}, {s(sT0)}, 7")
    A(f"s_add_u32 {s(sT0)}, {s(sT0)}, {WS_CNT}")
    arrive(JOIN, sT0, "1")
    if stamps: STL.stamp()
    A(f"s_lshl_b32 {s(sT2)}, {s(sCC)}, 12")
    A(f"s_add_u32 {s(sT2)}, {s(sT2)}, {WS_CNT}")
    wait_flags("c", sT2, 32)
    if stamps: STL.stamp()
    A(f"s_cmp_ge_u32 {s(sLw)}, 2")
    A(f"s_cbranch_scc1 {name}_ldY")
    def pathG(tag, n1, early2):
        n = n1 + 3
        q = []
        def need(x): return len(q) - 1 - max(k for k, y in enumerate(q) if y == x)
        A(f"s_mov_b32 {s(sK1)}, 0")
        for st in range(NSG):
            A(f"s_add_u32 m0, {s(sL1)}, {st*STAGE}")
            if st: A(f"s_add_u32 {s(sK1)}, {s(sK1)}, 128")
            for k in range(n1): A(f"buffer_load_dwordx4 {v(vo[k])}, {s(SR1,4)}, {s(sK1)} offen offset:{k*1024} lds"); q.append(st)
            if not early2:
                A(f"s_add_u32 m0, {s(sL2)}, {st*STAGE}")
                for k in range(3): A(f"buffer_load_dwordx4 {v(vo[3+k])}, {s(SR2,4)}, {s(sK1)} offen offset:{k*1024} lds"); q.append(st)
        A(f"s_add_u32 {s(sK1)}, {s(sK1)}, 128")
        A(f"s_mov_b32 {s(sSlot)}, 0")
        def issue(st):
            A(f"s_add_u32 m0, {s(sSlot)}, {s(sL1)}")
            A(f"s_add_u32 {s(sT0)}, {s(sSlot)}, {s(sL2)}")
            for k in range(n1): A(f"buffer_load_dwordx4 {v(vo[k])}, {s(SR1,4)}, {s(sK1)} offen offset:{k*1024} lds"); q.append(st)
            A(f"s_mov_b32 m0, {s(sT0)}")
            A(f"s_add_u32 {s(sSlot)}, {s(sSlot)}, {STAGE}")
            for k in range(3): A(f"buffer_load_dwordx4 {v(vo[3+k])}, {s(SR2,4)}, {s(sK1)} offen offset:{k*1024} lds"); q.append(st)
            A(f"s_add_u32 {s(sK1)}, {s(sK1)}, 128")
            A(f"s_cmp_ge_u32 {s(sSlot)}, {RING}")
            A(f"s_cselect_b32 {s(sSlot)}, 0, {s(sSlot)}")
        A(f"s_waitcnt vmcnt({need(0)})")
        A("s_barrier")
        H = NSG + 1
        for i in range(1, H):
            A(f"s_waitcnt vmcnt({need(i)})"); A("s_barrier"); issue(i - 1 + NSG)
        nsteady = NSTG - NSG
        A(f"s_mov_b32 {s(sI)}, {H}")
        lp = f"{name}_gl{tag}"
        A.label(lp)
        wv = need(H)
        A(f"s_waitcnt vmcnt({wv})"); A("s_barrier"); issue(H - 1 + NSG)
        A(f"s_add_u32 {s(sI)}, {s(sI)}, 1")
        A(f"s_cmp_le_u32 {s(sI)}, {nsteady}")
        A(f"s_cbranch_scc1 {lp}")
        for i in range(H + 1, nsteady + 1):
            assert need(i) == wv
            for _ in range(n): q.append(i - 1 + NSG)
        for i in range(nsteady + 1, NSTG):
            A(f"s_waitcnt vmcnt({need(i)})"); A("s_barrier")
        A(f"s_branch {name}_gdone")
    pathG("X", 3, False)
    A.label(f"{name}_ldY")
    pathG("Y", 2, True)
    A.label(f"{name}_gdone")
    voWo = voW; voP = [vo[0], vo[1], vo[2], vo[3]]; voX = [vo[4], vo[5]]
    A(f"v_lshrrev_b32 {v(t0)}, 3, {v(vl)}")
    A(f"v_and_b32 {v(t1)}, 7, {v(vl)}")
    A(f"v_bfe_u32 {v(t2)}, {v(vl)}, 4, 1")
    for jj in range(4):
        A(f"v_or_b32 {v(t3)}, {(jj&1)<<1}, {v(t2)}")
        A(f"v_lshlrev_b32 {v(t3)}, 1, {v(t3)}")
        A(f"v_xor_b32 {v(t3)}, {v(t3)}, {v(t1)}")
        A(f"v_lshlrev_b32 {v(t3)}, 4, {v(t3)}")
        A(f"v_lshl_add_u32 {v(voWo[jj])}, {v(t0)}, 10, {v(t3)}")
        if jj: A(f"v_add_u32 {v(voWo[jj])}, {jj*(8192-1024)}, {v(voWo[jj])}")
    A(f"v_xor_b32 {v(t1)}, {v(t1)}, {v(t0)}")
    A(f"v_lshlrev_b32 {v(t1)}, 4, {v(t1)}")
    A(f"s_and_b32 {s(sT0)}, {s(sLw)}, 1")
    A(f"s_lshl_b32 {s(sT0)}, {s(sT0)}, 5")
    A(f"v_add_u32 {v(t2)}, {s(sT0)}, {v(t0)}")
    A(f"v_mul_u32_u24 {v(voP[0])}, 1792, {v(t2)}")
    A(f"s_lshr_b32 {s(sT1)}, {s(sLw)}, 1")
    A(f"s_lshl_b32 {s(sT1)}, {s(sT1)}, 7")
    A(f"v_add3_u32 {v(voP[0])}, {v(voP[0])}, {v(t1)}, {s(sT1)}")
    for jj in range(1, 4): A(f"v_add_u32 {v(voP[jj])}, {jj*(8*1792-1024)}, {v(voP[0])}")
    A(f"s_lshl_b32 {s(sT0)}, {s(sLw)}, 4")
    A(f"v_add_u32 {v(t2)}, {s(sT0)}, {v(t0)}")
    A(f"v_lshl_add_u32 {v(voX[0])}, {v(t2)}, 10, {v(t1)}")
    A(f"v_add_u32 {v(voX[1])}, {8192-1024}, {v(voX[0])}")
    A(f"s_mov_b32 s18, {FH*D*2}"); A("s_mov_b32 s19, 0x20000")
    A(f"s_mul_i32 {s(sWk)}, {s(sLw)}, {28*8192}")
    A(f"s_lshl_b32 {s(sT0)}, {s(sCC)}, 7")
    A(f"s_add_u32 {s(sWk)}, {s(sWk)}, {s(sT0)}")
    A(f"s_mul_i32 {s(sLW)}, {s(sLw)}, {28*1024}")
    sPk, sLP, sXb = 31, 33, 40
    A(f"s_mul_i32 {s(sPk)}, {s(sRB)}, {64*1792}")
    A(f"s_add_u32 {s(sPk)}, {s(sPk)}, {WS_P0}")
    A(f"s_lshl_b32 {s(sLP)}, {s(sLw)}, 12")
    A(f"s_add_u32 {s(sLP)}, {s(sLP)}, {OP}")
    A(f"s_lshl_b32 {s(sXb)}, {s(sRB)}, 16")
    A(f"s_add_u32 {s(sXb)}, {s(sXb)}, {s(sT0)}")
    A(f"s_add_u32 {s(sXb)}, {s(sXb)}, {WS_X1}")
    A("s_barrier")
    assert 28 % 2 == 0
    for g in range(7):
        A(f"s_add_u32 m0, {s(sLW)}, {OW + g*4096}")
        A(f"s_add_u32 {s(sT0)}, {s(sWk)}, {g*32768}")
        for jj in range(4): A(f"buffer_load_dwordx4 {v(voWo[jj])}, s[16:19], {s(sT0)} offen offset:{jj*1024} lds")
    A(f"s_lshl_b32 {s(sT2)}, {s(sRB)}, 10")
    A(f"s_add_u32 {s(sT2)}, {s(sT2)}, {WS_CNT + 32768}")
    wait_flags("t", sT2, 8)
    if stamps: STL.stamp()
    def issueO(st):
        slot = st % NSO
        A(f"s_add_u32 m0, {s(sLP)}, {slot*PSLOT}")
        A(f"s_add_u32 {s(sT0)}, {s(sPk)}, {st*256}")
        for jj in range(4): A(f"buffer_load_dwordx4 {v(voP[jj])}, s[4:7], {s(sT0)} offen offset:{jj*1024} lds")
    cntO = lambda st: 4
    for st in range(NSO): issueO(st)
    issued = NSO; xq = 0
    for i in range(NSTO):
        out = sum(cntO(j) for j in range(i + 1, issued)) + xq
        A(f"s_waitcnt vmcnt({out})")
        A("s_barrier")
        if i >= 1 and issued < NSTO:
            issueO(issued); issued += 1
        if i == NSTO - 2:
            A(f"s_lshl_b32 {s(sT0)}, {s(sLw)}, 11")
            A(f"s_add_u32 m0, {s(sT0)}, {XT}")
            for jj in range(2): A(f"buffer_load_dwordx4 {v(voX[jj])}, s[4:7], {s(sXb)} offen offset:{jj*1024} lds")
            xq = 2
    A("s_waitcnt vmcnt(0)")
    A("s_barrier")
    if stamps:
        STL.stamp(); A(f"s_cmp_lg_u32 {s(sLw)}, 0"); A(f"s_cselect_b32 s20, 1, 0"); STL.flush(4, vt[0], slot=1)
    A("s_endpgm")
    nvmax[0] = max(nvmax[0], R.hi)
    A.label(f"{name}_end")
    A("s_endpgm")
    return dict(name=name, grid=NWG, block=512, lds=LDS, vgpr=256, sgpr=96 if stamps else 60)
```

```python
import sys
from build4 import assemble2
from g7a import gen_ka, gen_kb
from gkm import gen_km
def make(path, st=False, ka={}, kb={}, km={}):
    gens = [lambda A: gen_ka(A, stamps=st, **ka), lambda A: gen_kb(A, stamps=st, **kb), lambda A: gen_km(A, stamps=st, **km)]
    open(path, "w").write(assemble2(gens))
V = {
 "p_a": (dict(light=True), dict(prefetch=True, pfwin=True), dict(pfhalf=True)),
 "p_b": (dict(light=True), dict(prefetch=True, pfwin=True), dict(pfhalf=False)),
 "p_c": (dict(light=False), dict(prefetch=False), dict(pfhalf=True)),
 "p_d": (dict(light=False), dict(prefetch=True, pfwin=False), dict(pfhalf=False)),
}
for n, (a, b, m) in V.items():
    make(n + ".s", False, a, b, m); make(n + "_st.s", True, a, b, m)
```

```python
from g2b import *
WS_CNT = WS_STAT + 256 * 1024
SPIN = 0x8000

def gen_km(A, name="km_kernel", stamps=False, prefetch=True, pfpos=0, pfhalf=False):
    NWG = 256
    GS = 960; SLOT = 16 * GS; W_OFF = 65536; NSZ = 4; NSTZ = 16; WROW = 3584
    X_OFF = W_OFF + NSZ * SLOT; XS = 32 * 144
    ZT = 145408
    NSG = 5; NSTG = 32; B_OFF = 14 * 1024; STAGE = 22 * 1024; RING = NSG * STAGE
    GX = 114688
    OW = 0; OP = 114688; NSO = 3; NSTO = 7; PSLOT = 16384
    LDS = 163840
    JOIN = 159744
    A.barrier_state(); A.raw(kernel_header(name))
    ST = Stamps(A, on=stamps, kidx=2)
    sW, sRB, sCC, sT0, sT1, sT2, sTH, sFH, sK, sSlot, sI = 20, 21, 22, 23, 24, 25, 26, 27, 28, 34, 35
    A(f"s_cmp_ge_u32 s2, {NWG}")
    A(f"s_cbranch_scc1 {name}_end")
    ST.stamp()
    load_ptr(A, 4, "ws"); load_ptr(A, 8, "win"); load_ptr(A, 12, "wsp"); load_ptr(A, 16, "wout"); load_ptr(A, 36, "bsp"); load_ptr(A, 38, "out")
    A(f"v_readfirstlane_b32 {s(sW)}, v0")
    A(f"s_bfe_u32 {s(sRB)}, s2, 0x20001")
    A(f"s_bfe_u32 {s(sT0)}, s2, 0x30003")
    A(f"s_lshl3_add_u32 {s(sRB)}, {s(sRB)}, {s(sT0)}")
    A(f"s_and_b32 {s(sCC)}, s2, 1")
    A(f"s_lshr_b32 {s(sT0)}, s2, 6")
    A(f"s_lshl2_add_u32 {s(sCC)}, {s(sCC)}, {s(sT0)}")
    A(f"s_lshr_b32 {s(sW)}, {s(sW)}, 6")
    A(f"s_and_b32 {s(sTH)}, {s(sW)}, 1")
    A(f"s_bfe_u32 {s(sFH)}, {s(sW)}, 0x10001")
    vq, vi = 1, 2
    vtt = [3, 4]
    A(f"v_bfe_u32 v1, v0, 4, 2")
    A(f"v_and_b32 v2, 15, v0")
    A(f"s_lshl1_add_u32 {s(sT0)}, {s(sTH)}, {s(sFH)}")
    A(f"s_xor_b32 {s(sT1)}, {s(sT0)}, 1")
    A(f"v_lshl_add_u32 {v(vtt[0])}, {s(sT0)}, 4, {v(vi)}")
    A(f"v_lshl_add_u32 {v(vtt[1])}, {s(sT1)}, 4, {v(vi)}")
    A(f"s_cmp_ge_u32 {s(sW)}, 4")
    A(f"s_cbranch_scc1 {name}_loader")
    TILES = [(0, 0), (0, 1), (1, 0), (1, 1), (2, 0), (2, 1), (3, 0)]
    nvmax = [0]
    R = RegAlloc(5)
    vC = R.alloc(2)
    vtb = R.alloc(8, 4); vt = [vtb + k for k in range(8)]
    vH = [[R.alloc() for _ in range(2)] for _ in range(2)]
    vWa = [R.alloc() for _ in range(2)]; vWb = [R.alloc() for _ in range(2)]
    vLx = [R.alloc() for _ in range(2)]
    gt2 = R.alloc(16, 4)
    vpf = 252
    z2p = [R.alloc(2) for _ in range(7)]
    st1 = [R.alloc(2) for _ in range(2)]; st2 = [R.alloc(2) for _ in range(2)]
    acc1 = [R.alloc(4) for _ in range(7)]; acc = [acc1, acc1]
    cH = [[R.alloc() for _ in range(2)] for _ in range(2)]; nH = [[R.alloc() for _ in range(2)] for _ in range(2)]
    FH_ = [[[R.alloc(4) for _ in range(2)] for _ in range(2)] for _ in range(2)]
    FW = [[[R.alloc(4) for _ in range(4)] for _ in range(2)] for _ in range(2)]
    A(f"v_and_b32 {v(vt[0])}, 7, {v(vi)}")
    A(f"v_xor_b32 {v(vt[1])}, {v(vq)}, {v(vt[0])}")
    A(f"v_lshlrev_b32 {v(vt[1])}, 4, {v(vt[1])}")
    for hf in range(2):
        A(f"v_lshl_add_u32 {v(vH[hf][0])}, {v(vtt[hf])}, 7, {v(vt[1])}")
        A(f"v_xor_b32 {v(vH[hf][1])}, 64, {v(vH[hf][0])}")
    A(f"v_mul_u32_u24 {v(vt[1])}, {2*GS}, {v(vq)}")
    A(f"v_lshrrev_b32 {v(vt[2])}, 2, {v(vi)}")
    A(f"v_mul_u32_u24 {v(vt[2])}, 224, {v(vt[2])}")
    A(f"v_and_b32 {v(vt[3])}, 3, {v(vi)}")
    A(f"v_lshl_add_u32 {v(vt[1])}, {v(vt[3])}, 3, {v(vt[1])}")
    A(f"v_add_u32 {v(vt[1])}, {v(vt[1])}, {v(vt[2])}")
    A(f"s_lshl_b32 {s(sT0)}, {s(sFH)}, 7")
    A(f"s_add_u32 {s(sT0)}, {s(sT0)}, {W_OFF}")
    A(f"v_add_u32 {v(vWa[0])}, {s(sT0)}, {v(vt[1])}")
    A(f"v_add_u32 {v(vWb[0])}, {W_OFF+96}, {v(vt[1])}")
    A(f"v_add_u32 {v(vWa[1])}, {3*SLOT}, {v(vWa[0])}")
    A(f"v_add_u32 {v(vWb[1])}, {3*SLOT}, {v(vWb[0])}")
    A(f"s_mul_i32 {s(sT0)}, {s(sW)}, {XS}")
    A(f"s_add_u32 {s(sT0)}, {s(sT0)}, {X_OFF}")
    for hf in range(2):
        A(f"v_and_b32 {v(vLx[hf])}, 31, {v(vtt[hf])}")
        A(f"v_mul_u32_u24 {v(vLx[hf])}, 144, {v(vLx[hf])}")
        A(f"v_lshl_add_u32 {v(vLx[hf])}, {v(vq)}, 3, {v(vLx[hf])}")
        A(f"v_add_u32 {v(vLx[hf])}, {s(sT0)}, {v(vLx[hf])}")
    for hf in range(2):
        for r in range(2):
            A(f"v_mov_b32 {v(st1[hf]+r)}, 0"); A(f"v_mov_b32 {v(st2[hf]+r)}, 0")
    A(f"v_mov_b32 {v(vC)}, {fhex(GELU_C2)}")
    A(f"v_mov_b32 {v(vC+1)}, {fhex(GELU_C1)}")
    A(f"v_mov_b32 {v(vt[0])}, {JOIN}")
    A(f"v_mov_b32 {v(vt[2])}, 0"); A(f"v_mov_b32 {v(vt[3])}, 0")
    A(f"ds_write_b64 {v(vt[0])}, {v(vt[2],2)}")
    A("s_waitcnt lgkmcnt(0)")
    def readsZ(slot, buf, hregs, hoff):
        sg = slot // 3; so = (slot % 3) * SLOT
        o = []
        for ks in range(2):
            for hf in range(2): o.append(f"ds_read_b128 {v(FH_[buf][ks][hf],4)}, {v(hregs[hf][ks])} offset:{hoff}")
            for wf in range(4):
                for p in range(2):
                    base = vWa[sg] if wf < 3 else vWb[sg]
                    off = so + ks * 8 * GS + p * GS + (wf * 32 if wf < 3 else 0)
                    o.append(f"ds_read_b64_tr_b16 {v(FW[buf][ks][wf]+2*p,2)}, {v(base)} offset:{off}")
        return o
    def mfmasZ(buf):
        o = []
        for ks in range(2):
            for tl, (wf, hf) in enumerate(TILES):
                o.append(f"v_mfma_f32_16x16x32_bf16 {v(acc1[tl],4)}, {v(FW[buf][ks][wf],4)}, {v(FH_[buf][ks][hf],4)}, {v(acc1[tl],4)}")
        return o
    def zero_acc():
        for tl in range(7):
            for r in range(4): A(f"v_mov_b32 {v(acc1[tl]+r)}, 0")
    def z2_part1():
        A(f"s_mov_b32 {s(sT2)}, 0xffff0000")
        for grp in ([0, 1, 2, 3], [4, 5, 6]):
            for x in gelu_pk_multi([acc[0][tl] for tl in grp], gt2, vC): A(x)
            for tl in grp:
                ac = acc[0][tl]
                for h in range(2): A(f"v_cvt_pk_bf16_f32 {v(z2p[tl]+h)}, {v(ac+2*h)}, {v(ac+2*h+1)}")
            for k, tl in enumerate(grp):
                for h in range(2):
                    A(f"v_lshlrev_b32 {v(gt2+4*k+2*h)}, 16, {v(z2p[tl]+h)}")
                    A(f"v_and_b32 {v(gt2+4*k+2*h+1)}, {s(sT2)}, {v(z2p[tl]+h)}")
            for k, tl in enumerate(grp):
                hf = TILES[tl][1]
                for h in range(2):
                    A(pk("add", st1[hf], v(st1[hf], 2), v(gt2+4*k+2*h, 2)))
                    A(pk("fma", st2[hf], v(gt2+4*k+2*h, 2), v(gt2+4*k+2*h, 2), v(st2[hf], 2)))
        for hf in range(2):
            A(f"v_add_f32 {v(st1[hf])}, {v(st1[hf])}, {v(st1[hf]+1)}")
            A(f"v_add_f32 {v(st2[hf])}, {v(st2[hf])}, {v(st2[hf]+1)}")
        rs4 = (st1[0], st2[0], st1[1], st2[1])
        for k, r in enumerate(rs4): A(f"v_mov_b32 {v(gt2+k)}, {v(r)}")
        for k, r in enumerate(rs4): A(f"v_permlane16_swap_b32 {v(r)}, {v(gt2+k)}")
        for k, r in enumerate(rs4): A(f"v_add_f32 {v(r)}, {v(r)}, {v(gt2+k)}")
        for k, r in enumerate(rs4): A(f"v_mov_b32 {v(gt2+k)}, {v(r)}")
        for k, r in enumerate(rs4): A(f"v_permlane32_swap_b32 {v(r)}, {v(gt2+k)}")
        for k, r in enumerate(rs4): A(f"v_add_f32 {v(r)}, {v(r)}, {v(gt2+k)}")
        for x in [f"v_cmp_eq_u32 vcc, 1, {v(vq)}",
           f"v_mov_b32 {v(vt[4])}, 0x7fc00000",
           f"s_lshl1_add_u32 {s(sT1)}, {s(sRB)}, {s(sTH)}",
           f"v_cndmask_b32 {v(vt[2])}, {v(st1[0])}, {v(st1[1])}, vcc",
           f"v_cndmask_b32 {v(vt[3])}, {v(st2[0])}, {v(st2[1])}, vcc",
           f"v_cndmask_b32 {v(vt[0])}, {v(vtt[0])}, {v(vtt[1])}, vcc",
           f"v_cmp_eq_u32 vcc, -1, {v(vt[2])}",
           f"s_lshl_b32 {s(sT1)}, {s(sT1)}, 12",
           f"v_cndmask_b32 {v(vt[2])}, {v(vt[2])}, {v(vt[4])}, vcc",
           f"v_cmp_eq_u32 vcc, -1, {v(vt[3])}",
           f"s_add_u32 {s(sT1)}, {s(sT1)}, {WS_STAT}",
           f"v_cndmask_b32 {v(vt[3])}, {v(vt[3])}, {v(vt[4])}, vcc",
           f"s_lshl1_add_u32 {s(sT2)}, {s(sCC)}, {s(sFH)}",
           f"s_lshl_b32 {s(sT2)}, {s(sT2)}, 8",
           f"s_add_u32 {s(sT2)}, {s(sT2)}, {s(sT1)}",
           f"v_and_b32 {v(vt[0])}, 31, {v(vt[0])}",
           f"v_lshl_add_u32 {v(vt[0])}, {v(vt[0])}, 3, {s(sT2)}",
           "s_mov_b32 exec_hi, 0",
           f"global_store_dwordx2 {v(vt[0])}, {v(vt[2],2)}, s[4:5] sc0 sc1",
           "s_mov_b32 exec_hi, -1"]: A(x)
        for tl, (wf, hf) in enumerate(TILES):
            A(f"ds_write_b64 {v(vLx[hf])}, {v(z2p[tl],2)} offset:{wf*32}")
    def touches():
        A(f"v_and_b32 {v(vt[5])}, 63, v0")
        A(f"s_lshr_b32 {s(sT1)}, s2, 3")
        A(f"s_lshl2_add_u32 {s(sT1)}, {s(sT1)}, {s(sW)}")
        A(f"s_bfe_u32 {s(sT0)}, s2, 0x20001")
        A(f"s_lshl_b32 {s(sT0)}, {s(sT0)}, 21")
        A(f"s_lshl_b32 {s(sT2)}, {s(sT1)}, 14")
        A(f"s_add_u32 {s(sT0)}, {s(sT0)}, {s(sT2)}")
        if pfhalf:
            A(f"s_and_b32 {s(sT2)}, s2, 1")
            A(f"s_lshl_b32 {s(sT2)}, {s(sT2)}, 13")
            A(f"s_add_u32 {s(sT0)}, {s(sT0)}, {s(sT2)}")
        A(f"v_lshl_add_u32 {v(vt[1])}, {v(vt[5])}, 7, {s(sT0)}")
        A(f"global_load_dword {v(vpf)}, {v(vt[1])}, s[12:13]")
        if not pfhalf:
            A(f"v_add_u32 {v(vt[1])}, 8192, {v(vt[1])}")
            A(f"global_load_dword {v(vpf+1)}, {v(vt[1])}, s[12:13]")
        lab = f"{name}_nowo"
        A(f"s_cmp_ge_u32 {s(sT1)}, 56")
        A(f"s_cbranch_scc1 {lab}")
        A(f"v_lshl_add_u32 {v(vt[1])}, {s(sT1)}, 6, {v(vt[5])}")
        A(f"v_lshrrev_b32 {v(vt[2])}, 2, {v(vt[1])}")
        A(f"v_and_b32 {v(vt[1])}, 3, {v(vt[1])}")
        A(f"v_lshlrev_b32 {v(vt[2])}, 10, {v(vt[2])}")
        A(f"v_lshl_add_u32 {v(vt[2])}, {v(vt[1])}, 7, {v(vt[2])}")
        A(f"s_and_b32 {s(sT0)}, s2, 1")
        A(f"s_lshl_b32 {s(sT0)}, {s(sT0)}, 9")
        A(f"v_add_u32 {v(vt[2])}, {s(sT0)}, {v(vt[2])}")
        A(f"global_load_dword {v(vpf+2)}, {v(vt[2])}, s[16:17]")
        A.label(lab)
    sZ = 43
    zero_acc()
    A(f"s_mov_b32 {s(sZ)}, 0")
    A("s_barrier")
    for r in readsZ(0, 0, vH, 0): A(r)
    zl = f"{name}_zloop"; zc = f"{name}_zcont"
    A.label(zl)
    A(f"s_and_b32 {s(sT0)}, {s(sZ)}, 1")
    A(f"s_lshl_b32 {s(sT0)}, {s(sT0)}, 15")
    A(f"s_xor_b32 {s(sT1)}, {s(sT0)}, 32768")
    for hf in range(2):
        for ks in range(2):
            A(f"v_add_u32 {v(cH[hf][ks])}, {s(sT0)}, {v(vH[hf][ks])}")
            A(f"v_add_u32 {v(nH[hf][ks])}, {s(sT1)}, {v(vH[hf][ks])}")
    for j in range(4):
        A("s_waitcnt lgkmcnt(0)")
        A("s_barrier")
        rd = readsZ((j + 1) % 4, (j + 1) & 1, cH if j < 3 else nH, (j + 1) * 8192 if j < 3 else 0)
        for x in interleave2(mfmasZ(j & 1), rd): A(x)
    A(f"s_add_u32 {s(sZ)}, {s(sZ)}, 1")
    A(f"s_cmp_lg_u32 {s(sZ)}, 2")
    A(f"s_cbranch_scc1 {zc}")
    if prefetch and pfpos == 0: touches()
    z2_part1()
    zero_acc()
    A.label(zc)
    A(f"s_cmp_lt_u32 {s(sZ)}, 4")
    A(f"s_cbranch_scc1 {zl}")
    ST.stamp()
    A("s_waitcnt lgkmcnt(0)")
    vLa = [vH[0][0], vH[1][0]]; vL4 = vH[0][1]
    for hf in range(2):
        A(f"v_mul_u32_u24 {v(vLa[hf])}, 224, {v(vtt[hf])}")
        A(f"v_lshl_add_u32 {v(vLa[hf])}, {v(vq)}, 3, {v(vLa[hf])}")
        A(f"v_add_u32 {v(vLa[hf])}, {ZT}, {v(vLa[hf])}")
    A(f"v_add_u32 {v(vL4)}, 96, {v(vLa[0])}")
    A(f"s_lshl_b32 {s(sT0)}, {s(sFH)}, 7")
    for hf in range(2): A(f"v_add_u32 {v(vLa[hf])}, {s(sT0)}, {v(vLa[hf])}")
    gt = FW[0][0][0]
    for grp in ([0, 1, 2, 3], [4, 5, 6]):
        for x in gelu_pk_multi([acc[1][tl] for tl in grp], gt, vC): A(x)
        for tl in grp:
            wf, hf = TILES[tl]; ac = acc[1][tl]
            for h in range(2): A(f"v_cvt_pk_bf16_f32 {v(ac+h)}, {v(ac+2*h)}, {v(ac+2*h+1)}")
            if wf < 3: A(f"ds_write_b64 {v(vLa[hf])}, {v(ac,2)} offset:{wf*32}")
            else: A(f"ds_write_b64 {v(vL4)}, {v(ac,2)}")
    nvmax[0] = max(nvmax[0], R.hi)
    R = RegAlloc(5)
    vA = R.alloc(); vB = [R.alloc() for _ in range(2)]
    cA = R.alloc(); cB = [R.alloc() for _ in range(2)]
    vtb = R.alloc(8, 4); vt = [vtb + k for k in range(8)]
    accg = [[R.alloc(4) for _ in range(2)] for _ in range(7)]
    FA = [[R.alloc(4) for _ in range(7)] for _ in range(2)]
    FB = [[R.alloc(4) for _ in range(2)] for _ in range(2)]
    vb = R.alloc(); vtw = R.alloc()
    vxw = R.alloc(); vxr = R.alloc(); vz1 = R.alloc(); vz = R.alloc(4); vrb = R.alloc()
    A("s_waitcnt lgkmcnt(0)")
    A(f"v_lshl_add_u32 {v(vtw)}, {s(sW)}, 4, {v(vi)}")
    A(f"v_lshl_add_u32 {v(vt[0])}, {s(sRB)}, 6, {v(vtw)}")
    A(f"v_lshlrev_b32 {v(vt[0])}, 1, {v(vt[0])}")
    A(f"global_load_ushort {v(vb)}, {v(vt[0])}, s[36:37]")
    A(f"s_and_b32 {s(sT0)}, {s(sW)}, 1")
    A(f"s_lshl_b32 {s(sT0)}, {s(sT0)}, 2")
    A(f"v_add_u32 {v(vt[4])}, {s(sT0)}, {v(vq)}")
    A(f"v_and_b32 {v(vt[2])}, 7, {v(vi)}")
    A(f"v_xor_b32 {v(vt[1])}, {v(vt[4])}, {v(vt[2])}")
    A(f"v_lshlrev_b32 {v(vt[1])}, 4, {v(vt[1])}")
    A(f"v_lshl_add_u32 {v(vA)}, {v(vi)}, 7, {v(vt[1])}")
    A(f"v_add_u32 {v(vt[1])}, {B_OFF}, {v(vt[1])}")
    A(f"v_lshl_add_u32 {v(vB[0])}, {v(vtw)}, 7, {v(vt[1])}")
    A(f"v_xor_b32 {v(vt[3])}, 16, {v(vtw)}")
    A(f"v_lshl_add_u32 {v(vB[1])}, {v(vt[3])}, 7, {v(vt[1])}")
    A(f"v_and_b32 {v(vt[0])}, 63, v0")
    A(f"s_mul_i32 {s(sT0)}, {s(sW)}, 7168")
    A(f"s_add_u32 {s(sT0)}, {s(sT0)}, {GX}")
    A(f"v_lshl_add_u32 {v(vxw)}, {v(vt[0])}, 4, {s(sT0)}")
    A(f"s_xor_b32 {s(sT1)}, {s(sW)}, 1")
    A(f"s_mul_i32 {s(sT1)}, {s(sT1)}, 7168")
    A(f"s_add_u32 {s(sT1)}, {s(sT1)}, {GX}")
    A(f"v_lshl_add_u32 {v(vxr)}, {v(vt[0])}, 4, {s(sT1)}")
    A(f"v_mul_u32_u24 {v(vz1)}, 224, {v(vtw)}")
    A(f"v_lshl_add_u32 {v(vz1)}, {v(vq)}, 3, {v(vz1)}")
    A(f"v_add_u32 {v(vz1)}, {ZT}, {v(vz1)}")
    for j in range(4):
        A(f"v_add_u32 {v(vt[4])}, {64*j}, {v(vt[0])}")
        div14(A, vt[5], vt[6], vt[4], vt[7])
        A(f"v_mul_u32_u24 {v(vt[5])}, 1792, {v(vt[5])}")
        A(f"v_lshl_add_u32 {v(vz+j)}, {v(vt[6])}, 4, {v(vt[5])}")
    A(f"s_lshl2_add_u32 {s(sT0)}, {s(sRB)}, {s(sW)}")
    A(f"s_mul_i32 {s(sT0)}, {s(sT0)}, {16*1792}")
    A(f"s_mul_i32 {s(sT1)}, {s(sCC)}, 224")
    A(f"s_add_u32 {s(sT0)}, {s(sT0)}, {s(sT1)}")
    A(f"s_add_u32 {s(sT0)}, {s(sT0)}, {WS_P0}")
    for j in range(4): A(f"v_add_u32 {v(vz+j)}, {s(sT0)}, {v(vz+j)}")
    A(f"s_mul_i32 {s(sT0)}, {s(sW)}, {16*224}")
    A(f"s_add_u32 {s(sT0)}, {s(sT0)}, {ZT}")
    A(f"v_lshl_add_u32 {v(vrb)}, {v(vt[0])}, 4, {s(sT0)}")
    A(f"s_mov_b32 {s(sSlot)}, 0")
    A(f"s_mov_b32 {s(sI)}, 0")
    def rdsG(buf, a_, b_):
        return [f"ds_read_b128 {v(FB[buf][nb],4)}, {v(b_[nb])}" for nb in range(2)] + \
               [f"ds_read_b128 {v(FA[buf][fa],4)}, {v(a_)} offset:{fa*2048}" for fa in range(7)]
    def mmsG(buf, first=False):
        o = []
        for fa in range(7):
            for nb in range(2):
                c = "0" if first else v(accg[fa][nb], 4)
                o.append(f"v_mfma_f32_16x16x32_bf16 {v(accg[fa][nb],4)}, {v(FA[buf][fa],4)}, {v(FB[buf][nb],4)}, {c}")
        return o
    def adv():
        A(f"s_add_u32 {s(sSlot)}, {s(sSlot)}, {STAGE}")
        A(f"s_cmp_ge_u32 {s(sSlot)}, {RING}")
        A(f"s_cselect_b32 {s(sSlot)}, 0, {s(sSlot)}")
        A(f"v_add_u32 {v(cA)}, {s(sSlot)}, {v(vA)}")
        for nb in range(2): A(f"v_add_u32 {v(cB[nb])}, {s(sSlot)}, {v(vB[nb])}")
    ST.stamp()
    A("s_barrier")
    A("s_barrier")
    ST.stamp()
    for r in rdsG(0, vA, vB): A(r)
    adv()
    A("s_waitcnt lgkmcnt(0)")
    A("s_barrier")
    for x in interleave2(mmsG(0, True), rdsG(1, cA, cB)): A(x)
    loop = f"{name}_gloop"
    A.label(loop)
    for buf in (1, 0):
        adv()
        A("s_waitcnt lgkmcnt(0)")
        A("s_barrier")
        for x in interleave2(mmsG(buf), rdsG(buf ^ 1, cA, cB)): A(x)
    A(f"s_add_u32 {s(sI)}, {s(sI)}, 1")
    A(f"s_cmp_lt_u32 {s(sI)}, 15")
    A(f"s_cbranch_scc1 {loop}")
    A("s_waitcnt lgkmcnt(0)")
    for x in mmsG(1): A(x)
    ST.stamp()
    for fa in range(7): A(f"ds_write_b128 {v(vxw)}, {v(accg[fa][1],4)} offset:{fa*1024}")
    A("s_waitcnt vmcnt(0) lgkmcnt(0)")
    A(f"v_lshlrev_b32 {v(vb)}, 16, {v(vb)}")
    A("s_barrier")
    for fa in range(7): A(f"ds_read_b128 {v(FA[0][fa],4)}, {v(vxr)} offset:{fa*1024}")
    zr = [FA[1][fa] for fa in range(7)]
    for fa in range(7): A(f"ds_read_b64 {v(zr[fa],2)}, {v(vz1)} offset:{fa*32}")
    A(f"v_mov_b32 {v(FB[1][0])}, {v(vb)}")
    A(f"v_mov_b32 {v(FB[1][0]+1)}, {v(vb)}")
    A("s_mov_b32 s33, 0xffff0000")
    for fa in range(7):
        ac = accg[fa][0]; pr = FA[0][fa]
        A(f"s_waitcnt lgkmcnt({13 - fa})")
        for h in (0, 2): A(pk("add", ac + h, v(ac + h, 2), v(pr + h, 2)))
        for h in (0, 2): A(pk("add", ac + h, v(ac + h, 2), v(FB[1][0], 2)))
    for fa in range(7):
        ac = accg[fa][0]; pr = FA[0][fa]; z = zr[fa]
        A(f"s_waitcnt lgkmcnt({6 - fa})")
        for h in range(2):
            A(f"v_lshlrev_b32 {v(z+2)}, 16, {v(z+h)}")
            A(f"v_and_b32 {v(z+3)}, s33, {v(z+h)}")
            A(pk("mul", ac + 2*h, v(ac + 2*h, 2), v(z + 2, 2)))
            A(f"v_cvt_pk_bf16_f32 {v(pr+h)}, {v(ac+2*h)}, {v(ac+2*h+1)}")
        A(f"ds_write_b64 {v(vz1)}, {v(pr,2)} offset:{fa*32}")
    A("s_waitcnt lgkmcnt(0)")
    ob = [FA[1][j] for j in range(4)]
    for j in range(4): A(f"ds_read_b128 {v(ob[j],4)}, {v(vrb)} offset:{j*1024}")
    for j in range(3):
        A(f"s_waitcnt lgkmcnt({3-j})")
        A(f"global_store_dwordx4 {v(vz+j)}, {v(ob[j],4)}, s[4:5] sc0 sc1")
    A("s_waitcnt lgkmcnt(0)")
    A("s_mov_b32 exec_hi, 0")
    A(f"global_store_dwordx4 {v(vz+3)}, {v(ob[3],4)}, s[4:5] sc0 sc1")
    A("s_mov_b32 exec_hi, -1")
    nvmax[0] = max(nvmax[0], R.hi)
    R = RegAlloc(5)
    vtw2 = R.alloc()
    vtb = R.alloc(8, 4); vt = [vtb + k for k in range(8)]
    vW = [[R.alloc() for _ in range(4)] for _ in range(2)]
    vP = [[R.alloc() for _ in range(2)] for _ in range(2)]
    acco = [[R.alloc(4) for _ in range(2)] for _ in range(4)]
    FWo = [[[R.alloc(4) for _ in range(4)] for _ in range(2)] for _ in range(2)]
    FP = [[[R.alloc(4) for _ in range(2)] for _ in range(2)] for _ in range(2)]
    gb = [R.alloc(4) for _ in range(4)]
    vcnt = R.alloc(2)
    A(f"s_lshl3_add_u32 {s(sT0)}, {s(sRB)}, {s(sCC)}")
    A(f"s_lshl_b32 {s(sT0)}, {s(sT0)}, 7")
    A(f"s_add_u32 {s(sT0)}, {s(sT0)}, {WS_CNT + 32768}")
    A(f"v_mov_b32 {v(vcnt)}, {JOIN + 4}")
    A(f"v_mov_b32 {v(vcnt+1)}, 1")
    A("s_waitcnt vmcnt(0)")
    ST.stamp()
    A("s_mov_b64 exec, 1")
    A(f"ds_add_rtn_u32 {v(vcnt)}, {v(vcnt)}, {v(vcnt+1)}")
    A("s_waitcnt lgkmcnt(0)")
    A(f"v_readfirstlane_b32 {s(sT1)}, {v(vcnt)}")
    A(f"v_mov_b32 {v(vcnt)}, {s(sT0)}")
    A(f"s_cmp_lg_u32 {s(sT1)}, 3")
    A(f"s_cbranch_scc1 {name}_nofl2")
    A(f"global_store_dword {v(vcnt)}, {v(vcnt+1)}, s[4:5] sc0 sc1")
    A.label(f"{name}_nofl2")
    A("s_mov_b64 exec, -1")
    A("s_barrier")
    A(f"v_lshl_add_u32 {v(vtw2)}, {s(sW)}, 4, {v(vi)}")
    A(f"s_and_b32 {s(sT2)}, {s(sW)}, 1")
    A(f"v_lshrrev_b32 {v(vt[0])}, 2, {v(vi)}")
    A(f"v_lshl_add_u32 {v(vt[0])}, {v(vq)}, 3, {v(vt[0])}")
    A(f"v_lshlrev_b32 {v(vt[0])}, 7, {v(vt[0])}")
    A(f"v_and_b32 {v(vt[1])}, 1, {v(vi)}")
    A(f"v_lshl_add_u32 {v(vt[0])}, {v(vt[1])}, 3, {v(vt[0])}")
    A(f"s_lshl_b32 {s(sT0)}, {s(sT2)}, 13")
    A(f"v_add_u32 {v(vt[0])}, {s(sT0)}, {v(vt[0])}")
    A(f"v_bfe_u32 {v(vt[1])}, {v(vi)}, 3, 1")
    A(f"v_and_b32 {v(vt[2])}, 1, {v(vq)}")
    A(f"v_lshl_or_b32 {v(vt[1])}, {v(vt[2])}, 1, {v(vt[1])}")
    A(f"v_lshlrev_b32 {v(vt[1])}, 1, {v(vt[1])}")
    A(f"v_bfe_u32 {v(vt[2])}, {v(vi)}, 1, 1")
    A(f"v_xor_b32 {v(vt[1])}, {v(vt[1])}, {v(vt[2])}")
    for dt in range(4):
        A(f"v_xor_b32 {v(vt[3])}, {2*dt}, {v(vt[1])}")
        A(f"v_lshl_add_u32 {v(vW[0][dt])}, {v(vt[3])}, 4, {v(vt[0])}")
        A(f"v_add_u32 {v(vW[1][dt])}, 65536, {v(vW[0][dt])}")
    A(f"v_and_b32 {v(vt[0])}, 7, {v(vi)}")
    A(f"v_xor_b32 {v(vt[1])}, {v(vq)}, {v(vt[0])}")
    A(f"v_lshlrev_b32 {v(vt[1])}, 4, {v(vt[1])}")
    A(f"s_add_u32 {s(sT0)}, {s(sT0)}, {OP}")
    A(f"v_add_u32 {v(vt[1])}, {s(sT0)}, {v(vt[1])}")
    A(f"v_lshl_add_u32 {v(vP[0][0])}, {v(vtw2)}, 7, {v(vt[1])}")
    A(f"v_xor_b32 {v(vP[1][0])}, 2048, {v(vP[0][0])}")
    for tl in range(2): A(f"v_xor_b32 {v(vP[tl][1])}, 64, {v(vP[tl][0])}")
    A(f"s_lshl_b32 {s(sT0)}, {s(sCC)}, 8")
    A(f"s_add_u32 {s(sT0)}, {s(sT0)}, {WS_MOD + 2560*4}")
    A(f"v_lshl_add_u32 {v(vt[0])}, {v(vq)}, 4, {s(sT0)}")
    for dt in range(4): A(f"global_load_dwordx4 {v(gb[dt],4)}, {v(vt[0])}, s[4:5] offset:{dt*64}")
    assert (OP + 2048) % 4096 == 2048 and OP % 4096 == 0
    def readsO(st, buf):
        g = st // 4; so = (st % 4) * 16384; po = (st % NSO) * PSLOT
        o = []
        for ks in range(2):
            for tl in range(2): o.append(f"ds_read_b128 {v(FP[buf][ks][tl],4)}, {v(vP[tl][ks])} offset:{po}")
            for dt in range(4):
                for p in range(2):
                    o.append(f"ds_read_b64_tr_b16 {v(FWo[buf][ks][dt]+2*p,2)}, {v(vW[g][dt])} offset:{so + ks*4096 + p*512}")
        return o
    def mfmasO(st, buf):
        o = []
        for ks in range(2):
            for dt in range(4):
                for tl in range(2):
                    c = "0" if st == 0 and ks == 0 else v(acco[dt][tl], 4)
                    o.append(f"v_mfma_f32_16x16x32_bf16 {v(acco[dt][tl],4)}, {v(FWo[buf][ks][dt],4)}, {v(FP[buf][ks][tl],4)}, {c}")
        return o
    XT = OP + ((NSTO - 3) % NSO) * PSLOT
    E_OFF = 0
    consumer_full(A, NSTO, readsO, mfmasO)
    ST.stamp()
    A(f"v_and_b32 {v(vt[0])}, 63, v0")
    A(f"s_lshl_b32 {s(sT0)}, {s(sW)}, 12")
    A(f"s_add_u32 {s(sT0)}, {s(sT0)}, {E_OFF}")
    A(f"v_lshl_add_u32 {v(vt[1])}, {v(vt[0])}, 4, {s(sT0)}")
    A(f"v_xor_b32 {v(vt[2])}, 4096, {v(vt[1])}")
    for dt in range(4): A(f"ds_write_b128 {v(vt[1])}, {v(acco[dt][1],4)} offset:{dt*1024}")
    va = [vt[4], vt[5], vt[6], vt[7]]
    A(f"v_and_b32 {v(vt[3])}, 7, {v(vi)}")
    A(f"v_lshrrev_b32 {v(vW[0][0])}, 1, {v(vq)}")
    A(f"v_xor_b32 {v(vt[3])}, {v(vt[3])}, {v(vW[0][0])}")
    A(f"v_and_b32 {v(vW[0][0])}, 1, {v(vq)}")
    A(f"v_lshlrev_b32 {v(vW[0][0])}, 3, {v(vW[0][0])}")
    A(f"v_lshl_add_u32 {v(vW[0][0])}, {v(vtw2)}, 7, {v(vW[0][0])}")
    A(f"v_add_u32 {v(vW[0][0])}, {XT}, {v(vW[0][0])}")
    for dt in range(4):
        A(f"v_xor_b32 {v(vW[0][1])}, {2*dt}, {v(vt[3])}")
        A(f"v_lshl_add_u32 {v(va[dt])}, {v(vW[0][1])}, 4, {v(vW[0][0])}")
    vrb2 = vW[1][0]; vgo = vW[1][1]
    A(f"v_lshrrev_b32 {v(vW[1][2])}, 3, {v(vt[0])}")
    A(f"v_and_b32 {v(vW[1][3])}, 7, {v(vt[0])}")
    A(f"v_xor_b32 {v(vrb2)}, {v(vW[1][2])}, {v(vW[1][3])}")
    A(f"v_lshlrev_b32 {v(vrb2)}, 4, {v(vrb2)}")
    A(f"v_lshl_add_u32 {v(vrb2)}, {v(vW[1][2])}, 7, {v(vrb2)}")
    A(f"s_lshl_b32 {s(sT0)}, {s(sW)}, 11")
    A(f"s_add_u32 {s(sT0)}, {s(sT0)}, {XT}")
    A(f"v_add_u32 {v(vrb2)}, {s(sT0)}, {v(vrb2)}")
    A(f"v_lshlrev_b32 {v(vgo)}, 10, {v(vW[1][2])}")
    A(f"v_lshl_add_u32 {v(vgo)}, {v(vW[1][3])}, 4, {v(vgo)}")
    A(f"s_lshl2_add_u32 {s(sT0)}, {s(sRB)}, {s(sW)}")
    A(f"s_lshl_b32 {s(sT0)}, {s(sT0)}, 14")
    A(f"s_lshl_b32 {s(sT1)}, {s(sCC)}, 7")
    A(f"s_add_u32 {s(sT0)}, {s(sT0)}, {s(sT1)}")
    A(f"v_add_u32 {v(vgo)}, {s(sT0)}, {v(vgo)}")
    A("s_waitcnt vmcnt(0) lgkmcnt(0)")
    A("s_barrier")
    for dt in range(4): A(f"ds_read_b128 {v(FWo[0][0][dt],4)}, {v(vt[2])} offset:{dt*1024}")
    xa = [FWo[0][1][dt] for dt in range(4)]
    for dt in range(4): A(f"ds_read_b64 {v(xa[dt],2)}, {v(va[dt])}")
    A(f"s_mov_b32 {s(sT0)}, 0xffff0000")
    for dt in range(4):
        ac = acco[dt][0]; pr = FWo[0][0][dt]; x = xa[dt]
        A(f"s_waitcnt lgkmcnt({7-dt})")
        for h in (0, 2): A(pk("add", ac + h, v(ac + h, 2), v(pr + h, 2)))
        A(f"s_waitcnt lgkmcnt({3-dt})")
        for h in range(2):
            A(f"v_lshlrev_b32 {v(x+2)}, 16, {v(x+h)}")
            A(f"v_and_b32 {v(x+3)}, {s(sT0)}, {v(x+h)}")
            A(pk("fma", pr, v(ac + 2*h, 2), v(gb[dt] + 2*h, 2), v(x + 2, 2)))
            A(f"v_cvt_pk_bf16_f32 {v(ac+h)}, {v(pr)}, {v(pr+1)}")
        A(f"ds_write_b64 {v(va[dt])}, {v(ac,2)}")
    A("s_waitcnt lgkmcnt(0)")
    ob = [FP[0][0][0], FP[0][0][1]]
    for u in range(2): A(f"ds_read_b128 {v(ob[u],4)}, {v(vrb2)} offset:{u*1024}")
    A("s_waitcnt lgkmcnt(1)")
    A(f"global_store_dwordx4 {v(vgo)}, {v(ob[0],4)}, s[38:39]")
    A(f"v_add_u32 {v(vgo)}, 8192, {v(vgo)}")
    A("s_waitcnt lgkmcnt(0)")
    A(f"global_store_dwordx4 {v(vgo)}, {v(ob[1],4)}, s[38:39]")
    if stamps:
        ST.stamp(); ST.flush(4, vt[4])
    A("s_endpgm")
    nvmax[0] = max(nvmax[0], R.hi)
    A.label(f"{name}_loader")
    STL = Stamps(A, on=stamps, kidx=2, base=70)
    R = RegAlloc(5)
    voW = [R.alloc() for _ in range(4)]; voH = [R.alloc() for _ in range(2)]
    vl = R.alloc(); t0 = R.alloc(); t1 = R.alloc(); t2 = R.alloc(); t3 = R.alloc()
    vtb = R.alloc(8, 4); vt = [vtb + k for k in range(8)]
    za = [R.alloc(4) for _ in range(4)]
    z2p = [R.alloc(2) for _ in range(7)]
    st1 = [R.alloc(2) for _ in range(2)]
    pol = [R.alloc(4) for _ in range(4)]
    vrow = [R.alloc() for _ in range(2)]; vLa = [R.alloc() for _ in range(2)]
    vo = [R.alloc() for _ in range(6)]
    vcn = R.alloc(2)
    sLw, sWk, sHk, sLW, sLH = 29, 30, 31, 32, 33
    A("s_mov_b32 s10, %d" % (512 * WROW)); A("s_mov_b32 s11, 0x20000")
    A("s_mov_b32 s6, %d" % (32 * MB)); A("s_mov_b32 s7, 0x20000")
    A(f"s_sub_u32 {s(sLw)}, {s(sW)}, 4")
    A(f"v_and_b32 {v(vl)}, 63, v0")
    div14(A, t0, t1, vl, t2)
    A(f"v_mul_u32_u24 {v(t0)}, {WROW}, {v(t0)}")
    A(f"v_lshl_add_u32 {v(t0)}, {v(t1)}, 4, {v(t0)}")
    A(f"s_mul_i32 {s(sT0)}, {s(sLw)}, {16*WROW}")
    A(f"v_add_u32 {v(voW[0])}, {s(sT0)}, {v(t0)}")
    for g in range(1, 4): A(f"v_add_u32 {v(voW[g])}, {g*(4*WROW - GS)}, {v(voW[0])}")
    A(f"v_lshrrev_b32 {v(t0)}, 3, {v(vl)}")
    A(f"v_and_b32 {v(t1)}, 7, {v(vl)}")
    A(f"v_xor_b32 {v(t1)}, {v(t1)}, {v(t0)}")
    A(f"v_lshlrev_b32 {v(t1)}, 4, {v(t1)}")
    A(f"v_lshl_add_u32 {v(t0)}, {v(t0)}, 10, {v(t1)}")
    A(f"s_lshl_b32 {s(sT0)}, {s(sLw)}, 14")
    A(f"v_add_u32 {v(voH[0])}, {s(sT0)}, {v(t0)}")
    A(f"v_add_u32 {v(voH[1])}, {8192-1024}, {v(voH[0])}")
    A(f"s_mul_i32 {s(sWk)}, {s(sCC)}, 224")
    A(f"s_lshl_b32 {s(sHk)}, {s(sRB)}, 16")
    A(f"s_add_u32 {s(sHk)}, {s(sHk)}, {WS_H2}")
    A(f"s_mul_i32 {s(sLW)}, {s(sLw)}, {4*GS}")
    A(f"s_lshl_b32 {s(sLH)}, {s(sLw)}, 11")
    A("s_waitcnt lgkmcnt(0)")
    def issueZ(st):
        half, kc = st >> 3, st & 7; slot = st % NSZ
        A(f"s_add_u32 m0, {s(sLW)}, {W_OFF + slot*SLOT}")
        A(f"s_add_u32 {s(sT0)}, {s(sWk)}, {kc*64*WROW + (1792 if half == 0 else 0)}")
        A("s_mov_b32 exec_hi, 0x00ffffff")
        for g in range(4):
            A(f"buffer_load_dwordx4 {v(voW[g])}, s[8:11], {s(sT0)} offen offset:{g*GS} lds")
        A("s_mov_b32 exec_hi, -1")
        if half == 0:
            A(f"s_add_u32 m0, {s(sLH)}, {kc*8192}")
            A(f"s_add_u32 {s(sT0)}, {s(sHk)}, {kc*128}")
            for j in range(2):
                A(f"buffer_load_dwordx4 {v(voH[j])}, s[4:7], {s(sT0)} offen offset:{j*1024} lds")
    for st in range(NSZ): issueZ(st)
    A(f"v_lshrrev_b32 {v(t0)}, 3, {v(vl)}")
    A(f"v_lshl_add_u32 {v(t0)}, {v(t0)}, 12, {v(t1)}")
    sL1, sL2, sK1 = 40, 41, 42
    SR1, SR2 = 44, 48
    A(f"s_lshl_b32 {s(sT0)}, {s(sLw)}, 3")
    A(f"s_mov_b32 {s(sT1)}, 0x060c0600")
    A(f"s_lshr_b32 {s(sT1)}, {s(sT1)}, {s(sT0)}")
    A(f"s_and_b32 {s(sT1)}, {s(sT1)}, 0xff")
    A(f"s_mov_b32 {s(sT2)}, 0x03000903")
    A(f"s_lshr_b32 {s(sT2)}, {s(sT2)}, {s(sT0)}")
    A(f"s_and_b32 {s(sT2)}, {s(sT2)}, 0xff")
    STEP = 8 * 4096 - 1024
    A(f"s_lshl_b32 {s(sT0)}, {s(sT1)}, 15")
    A(f"v_add_u32 {v(vo[0])}, {s(sT0)}, {v(t0)}")
    A(f"s_lshl_b32 {s(sT0)}, {s(sT2)}, 15")
    A(f"v_add_u32 {v(vo[3])}, {s(sT0)}, {v(t0)}")
    for k in (1, 2):
        A(f"v_add_u32 {v(vo[k])}, {k*STEP}, {v(vo[0])}")
        A(f"v_add_u32 {v(vo[3+k])}, {k*STEP}, {v(vo[3])}")
    A(f"s_lshl_b32 {s(sL1)}, {s(sT1)}, 10")
    A(f"s_lshl_b32 {s(sL2)}, {s(sT2)}, 10")
    A(f"s_cmp_eq_u32 {s(sLw)}, 3")
    A(f"s_cselect_b32 {s(sT0)}, {B_OFF}, 0")
    A(f"s_add_u32 {s(sL1)}, {s(sL1)}, {s(sT0)}")
    A(f"s_cmp_ge_u32 {s(sLw)}, 2")
    A(f"s_cselect_b32 {s(sT0)}, {B_OFF}, 0")
    A(f"s_add_u32 {s(sL2)}, {s(sL2)}, {s(sT0)}")
    A(f"s_mul_i32 {s(sT0)}, {s(sCC)}, {112*4096}")
    A(f"s_add_u32 {s(sT0)}, {s(sT0)}, {WS_Z2T}")
    A(f"s_add_u32 s52, s4, {s(sT0)}")
    A(f"s_addc_u32 s53, s5, 0")
    A(f"s_lshl_b32 {s(sT0)}, {s(sRB)}, 18")
    A(f"s_add_u32 s54, s12, {s(sT0)}")
    A(f"s_addc_u32 s55, s13, 0")
    A(f"s_cmp_eq_u32 {s(sLw)}, 3")
    A(f"s_cselect_b32 {s(SR1)}, s54, s52")
    A(f"s_cselect_b32 {s(SR1+1)}, s55, s53")
    A(f"s_mov_b32 {s(SR1+2)}, {112*4096}")
    A(f"s_mov_b32 {s(SR1+3)}, 0x20000")
    A(f"s_cmp_ge_u32 {s(sLw)}, 2")
    A(f"s_cselect_b32 {s(SR2)}, s54, s52")
    A(f"s_cselect_b32 {s(SR2+1)}, s55, s53")
    A(f"s_mov_b32 {s(SR2+2)}, {112*4096}")
    A(f"s_mov_b32 {s(SR2+3)}, 0x20000")
    cntZ = lambda st: 6 if st < 8 else 4
    issued = NSZ
    for i in range(NSTZ):
        out = sum(cntZ(j) for j in range(i + 1, issued))
        A(f"s_waitcnt vmcnt({out})")
        A("s_barrier")
        if i >= 1 and issued < NSTZ:
            issueZ(issued); issued += 1
    A(f"s_lshl1_add_u32 {s(sT1)}, {s(sRB)}, {s(sTH)}")
    A(f"s_lshl_b32 {s(sT1)}, {s(sT1)}, 12")
    A(f"s_add_u32 {s(sT1)}, {s(sT1)}, {WS_STAT}")
    for hf in range(2):
        A(f"v_and_b32 {v(vrow[hf])}, 31, {v(vtt[hf])}")
        A(f"v_lshl_add_u32 {v(vrow[hf])}, {v(vrow[hf])}, 3, {s(sT1)}")
        A(f"v_lshl_add_u32 {v(vrow[hf])}, {v(vq)}, 10, {v(vrow[hf])}")
    A(f"s_mul_i32 {s(sT0)}, {s(sLw)}, {XS}")
    A(f"s_add_u32 {s(sT0)}, {s(sT0)}, {X_OFF}")
    for hf in range(2):
        A(f"v_and_b32 {v(vLa[hf])}, 31, {v(vtt[hf])}")
        A(f"v_mul_u32_u24 {v(vLa[hf])}, 144, {v(vLa[hf])}")
        A(f"v_lshl_add_u32 {v(vLa[hf])}, {v(vq)}, 3, {v(vLa[hf])}")
        A(f"v_add_u32 {v(vLa[hf])}, {s(sT0)}, {v(vLa[hf])}")
    vtr = voH[0]; vgz = voH[1]; vtr3 = voW[0]; vgz3 = voW[1]
    A(f"v_lshrrev_b32 {v(t0)}, 2, {v(vi)}")
    A(f"v_lshl_add_u32 {v(t0)}, {v(vq)}, 3, {v(t0)}")
    A(f"v_mul_u32_u24 {v(vtr)}, 144, {v(t0)}")
    A(f"v_and_b32 {v(t1)}, 3, {v(vi)}")
    A(f"v_lshl_add_u32 {v(vtr)}, {v(t1)}, 3, {v(vtr)}")
    A(f"v_add_u32 {v(vtr)}, {s(sT0)}, {v(vtr)}")
    A(f"s_mul_i32 {s(sT1)}, {s(sFH)}, {16*144}")
    A(f"s_add_u32 {s(sT1)}, {s(sT1)}, 96")
    A(f"v_add_u32 {v(vtr3)}, {s(sT1)}, {v(vtr)}")
    A(f"v_lshlrev_b32 {v(vgz)}, 12, {v(vi)}")
    A(f"v_lshl_add_u32 {v(vgz)}, {v(vq)}, 4, {v(vgz)}")
    A(f"s_mul_i32 {s(sT1)}, {s(sCC)}, {112*4096}")
    A(f"s_lshl_b32 {s(sT2)}, {s(sRB)}, 7")
    A(f"s_add_u32 {s(sT1)}, {s(sT1)}, {s(sT2)}")
    A(f"s_lshl_b32 {s(sT2)}, {s(sTH)}, 6")
    A(f"s_add_u32 {s(sT1)}, {s(sT1)}, {s(sT2)}")
    A(f"s_add_u32 {s(sT1)}, {s(sT1)}, {WS_Z2T}")
    A(f"s_lshl_b32 {s(sT2)}, {s(sFH)}, 5")
    A(f"s_add_u32 {s(sT2)}, {s(sT2)}, {48*4096}")
    A(f"s_add_u32 {s(sT2)}, {s(sT2)}, {s(sT1)}")
    A(f"v_add_u32 {v(vgz3)}, {s(sT2)}, {v(vgz)}")
    A(f"s_lshl_b32 {s(sT2)}, {s(sFH)}, 18")
    A(f"s_add_u32 {s(sT1)}, {s(sT1)}, {s(sT2)}")
    A(f"v_add_u32 {v(vgz)}, {s(sT1)}, {v(vgz)}")
    for tl, (wf, hf) in enumerate(TILES):
        A(f"ds_read_b64 {v(z2p[tl],2)}, {v(vLa[hf])} offset:{wf*32}")
    A("s_barrier")
    lskip = f"{name}_nob"
    A(f"s_cmp_lt_u32 {s(sLw)}, 2")
    A(f"s_cbranch_scc1 {lskip}")
    A(f"s_mov_b32 {s(sK1)}, 0")
    for st in range(NSG):
        A(f"s_add_u32 m0, {s(sL2)}, {st*STAGE}")
        if st: A(f"s_add_u32 {s(sK1)}, {s(sK1)}, 128")
        for k in range(3): A(f"buffer_load_dwordx4 {v(vo[3+k])}, {s(SR2,4)}, {s(sK1)} offen offset:{k*1024} lds")
    A.label(lskip)
    if stamps: A("s_mov_b32 s20, 0"); STL.n = 0; STL.stamp()
    A(f"s_mov_b32 {s(sK)}, 0")
    A.label(f"{name}_poll")
    for hf in range(2):
        for u in range(4):
            A(f"global_load_dwordx2 {v(pol[hf*2+(u>>1)]+2*(u&1),2)}, {v(vrow[hf])}, s[4:5] offset:{u*256} sc1")
    A("s_waitcnt vmcnt(0)")
    A(f"v_max3_u32 {v(vt[0])}, {v(pol[0])}, {v(pol[0]+1)}, {v(pol[0]+2)}")
    rest = [pol[0]+3] + [pol[b_]+r for b_ in range(1, 4) for r in range(4)]
    for k in range(0, len(rest) - 1, 2): A(f"v_max3_u32 {v(vt[0])}, {v(vt[0])}, {v(rest[k])}, {v(rest[k+1])}")
    A(f"v_max_u32 {v(vt[0])}, {v(vt[0])}, {v(rest[-1])}")
    A(f"v_cmp_eq_u32 vcc, -1, {v(vt[0])}")
    A(f"s_add_u32 {s(sK)}, {s(sK)}, 1")
    A(f"s_cmp_eq_u64 vcc, 0")
    A(f"s_cbranch_scc1 {name}_polled")
    A("s_sleep 2")
    A(f"s_cmp_lt_u32 {s(sK)}, {SPIN}")
    A(f"s_cbranch_scc1 {name}_poll")
    A.label(f"{name}_polled")
    mean = [vt[0], vt[1]]; rstd = [vt[2], vt[3]]
    for hf in range(2):
        p0, p1 = pol[hf*2], pol[hf*2+1]
        A(pk("add", p0, v(p0, 2), v(p0+2, 2)))
        A(pk("add", p1, v(p1, 2), v(p1+2, 2)))
        A(pk("add", p0, v(p0, 2), v(p1, 2)))
        A(f"v_mov_b32 {v(mean[hf])}, {v(p0)}")
        A(f"v_mov_b32 {v(rstd[hf])}, {v(p0+1)}")
    xor16_32_sum(A, mean + rstd, vt[6])
    for hf in range(2):
        A(f"v_mul_f32 {v(mean[hf])}, {fhex(1.0/896)}, {v(mean[hf])}")
        A(f"v_mul_f32 {v(rstd[hf])}, {fhex(1.0/896)}, {v(rstd[hf])}")
        A(f"v_fma_f32 {v(rstd[hf])}, -{v(mean[hf])}, {v(mean[hf])}, {v(rstd[hf])}")
        A(f"v_max_f32 {v(rstd[hf])}, 0, {v(rstd[hf])}")
        A(f"v_add_f32 {v(rstd[hf])}, 0x3727c5ac, {v(rstd[hf])}")
        A(f"v_rsq_f32 {v(rstd[hf])}, {v(rstd[hf])}")
        A(f"v_mul_f32 {v(mean[hf])}, {v(mean[hf])}, {v(rstd[hf])}")
    for hf in range(2):
        A(f"v_mov_b32 {v(st1[hf])}, {v(rstd[hf])}")
        A(f"v_sub_f32 {v(st1[hf]+1)}, 0, {v(mean[hf])}")
    A(f"s_mov_b32 {s(sT0)}, 0xffff0000")
    A("s_waitcnt lgkmcnt(0)")
    for tl, (wf, hf) in enumerate(TILES):
        z = z2p[tl]
        for h in range(2):
            A(f"v_lshlrev_b32 {v(vt[4])}, 16, {v(z+h)}")
            A(f"v_and_b32 {v(vt[5])}, {s(sT0)}, {v(z+h)}")
            A(pk("fma", vt[4], v(vt[4], 2), v(st1[hf], 2), v(st1[hf], 2), "op_sel:[0,0,1] op_sel_hi:[1,0,1]"))
            A(f"v_cvt_pk_bf16_f32 {v(z+h)}, {v(vt[4])}, {v(vt[5])}")
        A(f"ds_write_b64 {v(vLa[hf])}, {v(z,2)} offset:{wf*32}")
    A("s_waitcnt lgkmcnt(0)")
    for wf in range(3):
        for p in range(2): A(f"ds_read_b64_tr_b16 {v(za[wf]+2*p,2)}, {v(vtr)} offset:{wf*32 + 4*p*144}")
    for p in range(2): A(f"ds_read_b64_tr_b16 {v(za[3]+2*p,2)}, {v(vtr3)} offset:{4*p*144}")
    for wf in range(3):
        A(f"s_waitcnt lgkmcnt({6-2*wf})")
        A(f"global_store_dwordx4 {v(vgz)}, {v(za[wf],4)}, s[4:5] sc0 sc1")
        if wf < 2: A(f"v_add_u32 {v(vgz)}, {16*4096}, {v(vgz)}")
    A("s_waitcnt lgkmcnt(0)")
    A("s_mov_b32 exec_hi, 0")
    A(f"global_store_dwordx4 {v(vgz3)}, {v(za[3],4)}, s[4:5] sc0 sc1")
    A("s_mov_b32 exec_hi, -1")
    def arrive(join_off, s_off, tag):
        A(f"v_mov_b32 {v(vcn)}, {join_off}")
        A(f"v_mov_b32 {v(vcn+1)}, 1")
        A("s_waitcnt vmcnt(0)")
        A("s_mov_b64 exec, 1")
        A(f"ds_add_rtn_u32 {v(vcn)}, {v(vcn)}, {v(vcn+1)}")
        A("s_waitcnt lgkmcnt(0)")
        A(f"v_readfirstlane_b32 {s(sT1)}, {v(vcn)}")
        A(f"v_mov_b32 {v(vcn)}, {s(s_off)}")
        A(f"s_cmp_lg_u32 {s(sT1)}, 3")
        A(f"s_cbranch_scc1 {name}_nofl{tag}")
        A(f"global_store_dword {v(vcn)}, {v(vcn+1)}, s[4:5] sc0 sc1")
        A.label(f"{name}_nofl{tag}")
        A("s_mov_b64 exec, -1")
    def wait_flags(tag, s_base, nflags):
        dn = f"{name}_d{tag}"; lp = f"{name}_w{tag}"
        A(f"s_cmp_lg_u32 {s(sLw)}, 0")
        A(f"s_cbranch_scc1 {dn}")
        A(f"v_and_b32 {v(vcn)}, {nflags-1}, {v(vl)}")
        A(f"v_lshl_add_u32 {v(vcn)}, {v(vcn)}, 7, {s(s_base)}")
        A(f"s_mov_b32 {s(sK)}, 0")
        A.label(lp)
        A(f"global_load_dword {v(vcn+1)}, {v(vcn)}, s[4:5] sc1")
        A("s_waitcnt vmcnt(0)")
        A(f"v_cmp_eq_u32 vcc, 0, {v(vcn+1)}")
        A(f"s_add_u32 {s(sK)}, {s(sK)}, 1")
        A(f"s_cmp_eq_u64 vcc, 0")
        A(f"s_cbranch_scc1 {dn}")
        A("s_sleep 1")
        A(f"s_cmp_lt_u32 {s(sK)}, {SPIN}")
        A(f"s_cbranch_scc1 {lp}")
        A.label(dn)
        A("s_barrier")
    A(f"s_lshl_b32 {s(sT0)}, {s(sCC)}, 5")
    A(f"s_add_u32 {s(sT0)}, {s(sT0)}, {s(sRB)}")
    A(f"s_lshl_b32 {s(sT0)}, {s(sT0)}, 7")
    A(f"s_add_u32 {s(sT0)}, {s(sT0)}, {WS_CNT}")
    arrive(JOIN, sT0, "1")
    if stamps: STL.stamp()
    A(f"s_lshl_b32 {s(sT2)}, {s(sCC)}, 12")
    A(f"s_add_u32 {s(sT2)}, {s(sT2)}, {WS_CNT}")
    wait_flags("c", sT2, 32)
    if stamps: STL.stamp()
    A(f"s_cmp_ge_u32 {s(sLw)}, 2")
    A(f"s_cbranch_scc1 {name}_ldY")
    def pathG(tag, n1, early2):
        n = n1 + 3
        q = []
        def need(x): return len(q) - 1 - max(k for k, y in enumerate(q) if y == x)
        A(f"s_mov_b32 {s(sK1)}, 0")
        for st in range(NSG):
            A(f"s_add_u32 m0, {s(sL1)}, {st*STAGE}")
            if st: A(f"s_add_u32 {s(sK1)}, {s(sK1)}, 128")
            for k in range(n1): A(f"buffer_load_dwordx4 {v(vo[k])}, {s(SR1,4)}, {s(sK1)} offen offset:{k*1024} lds"); q.append(st)
            if not early2:
                A(f"s_add_u32 m0, {s(sL2)}, {st*STAGE}")
                for k in range(3): A(f"buffer_load_dwordx4 {v(vo[3+k])}, {s(SR2,4)}, {s(sK1)} offen offset:{k*1024} lds"); q.append(st)
        A(f"s_add_u32 {s(sK1)}, {s(sK1)}, 128")
        A(f"s_mov_b32 {s(sSlot)}, 0")
        def issue(st):
            A(f"s_add_u32 m0, {s(sSlot)}, {s(sL1)}")
            A(f"s_add_u32 {s(sT0)}, {s(sSlot)}, {s(sL2)}")
            for k in range(n1): A(f"buffer_load_dwordx4 {v(vo[k])}, {s(SR1,4)}, {s(sK1)} offen offset:{k*1024} lds"); q.append(st)
            A(f"s_mov_b32 m0, {s(sT0)}")
            A(f"s_add_u32 {s(sSlot)}, {s(sSlot)}, {STAGE}")
            for k in range(3): A(f"buffer_load_dwordx4 {v(vo[3+k])}, {s(SR2,4)}, {s(sK1)} offen offset:{k*1024} lds"); q.append(st)
            A(f"s_add_u32 {s(sK1)}, {s(sK1)}, 128")
            A(f"s_cmp_ge_u32 {s(sSlot)}, {RING}")
            A(f"s_cselect_b32 {s(sSlot)}, 0, {s(sSlot)}")
        A(f"s_waitcnt vmcnt({need(0)})")
        A("s_barrier")
        H = NSG + 1
        for i in range(1, H):
            A(f"s_waitcnt vmcnt({need(i)})"); A("s_barrier"); issue(i - 1 + NSG)
        nsteady = NSTG - NSG
        A(f"s_mov_b32 {s(sI)}, {H}")
        lp = f"{name}_gl{tag}"
        A.label(lp)
        wv = need(H)
        A(f"s_waitcnt vmcnt({wv})"); A("s_barrier"); issue(H - 1 + NSG)
        A(f"s_add_u32 {s(sI)}, {s(sI)}, 1")
        A(f"s_cmp_le_u32 {s(sI)}, {nsteady}")
        A(f"s_cbranch_scc1 {lp}")
        for i in range(H + 1, nsteady + 1):
            assert need(i) == wv
            for _ in range(n): q.append(i - 1 + NSG)
        for i in range(nsteady + 1, NSTG):
            A(f"s_waitcnt vmcnt({need(i)})"); A("s_barrier")
        A(f"s_branch {name}_gdone")
    pathG("X", 3, False)
    A.label(f"{name}_ldY")
    pathG("Y", 2, True)
    A.label(f"{name}_gdone")
    voWo = voW; voP = [vo[0], vo[1], vo[2], vo[3]]; voX = [vo[4], vo[5]]
    A(f"v_lshrrev_b32 {v(t0)}, 3, {v(vl)}")
    A(f"v_and_b32 {v(t1)}, 7, {v(vl)}")
    A(f"v_bfe_u32 {v(t2)}, {v(vl)}, 4, 1")
    for jj in range(4):
        A(f"v_or_b32 {v(t3)}, {(jj&1)<<1}, {v(t2)}")
        A(f"v_lshlrev_b32 {v(t3)}, 1, {v(t3)}")
        A(f"v_xor_b32 {v(t3)}, {v(t3)}, {v(t1)}")
        A(f"v_lshlrev_b32 {v(t3)}, 4, {v(t3)}")
        A(f"v_lshl_add_u32 {v(voWo[jj])}, {v(t0)}, 10, {v(t3)}")
        if jj: A(f"v_add_u32 {v(voWo[jj])}, {jj*(8192-1024)}, {v(voWo[jj])}")
    A(f"v_xor_b32 {v(t1)}, {v(t1)}, {v(t0)}")
    A(f"v_lshlrev_b32 {v(t1)}, 4, {v(t1)}")
    A(f"s_and_b32 {s(sT0)}, {s(sLw)}, 1")
    A(f"s_lshl_b32 {s(sT0)}, {s(sT0)}, 5")
    A(f"v_add_u32 {v(t2)}, {s(sT0)}, {v(t0)}")
    A(f"v_mul_u32_u24 {v(voP[0])}, 1792, {v(t2)}")
    A(f"s_lshr_b32 {s(sT1)}, {s(sLw)}, 1")
    A(f"s_lshl_b32 {s(sT1)}, {s(sT1)}, 7")
    A(f"v_add3_u32 {v(voP[0])}, {v(voP[0])}, {v(t1)}, {s(sT1)}")
    for jj in range(1, 4): A(f"v_add_u32 {v(voP[jj])}, {jj*(8*1792-1024)}, {v(voP[0])}")
    A(f"s_lshl_b32 {s(sT0)}, {s(sLw)}, 4")
    A(f"v_add_u32 {v(t2)}, {s(sT0)}, {v(t0)}")
    A(f"v_lshl_add_u32 {v(voX[0])}, {v(t2)}, 10, {v(t1)}")
    A(f"v_add_u32 {v(voX[1])}, {8192-1024}, {v(voX[0])}")
    A(f"s_mov_b32 s18, {FH*D*2}"); A("s_mov_b32 s19, 0x20000")
    A(f"s_mul_i32 {s(sWk)}, {s(sLw)}, {28*8192}")
    A(f"s_lshl_b32 {s(sT0)}, {s(sCC)}, 7")
    A(f"s_add_u32 {s(sWk)}, {s(sWk)}, {s(sT0)}")
    A(f"s_mul_i32 {s(sLW)}, {s(sLw)}, {28*1024}")
    sPk, sLP, sXb = 31, 33, 40
    A(f"s_mul_i32 {s(sPk)}, {s(sRB)}, {64*1792}")
    A(f"s_add_u32 {s(sPk)}, {s(sPk)}, {WS_P0}")
    A(f"s_lshl_b32 {s(sLP)}, {s(sLw)}, 12")
    A(f"s_add_u32 {s(sLP)}, {s(sLP)}, {OP}")
    A(f"s_lshl_b32 {s(sXb)}, {s(sRB)}, 16")
    A(f"s_add_u32 {s(sXb)}, {s(sXb)}, {s(sT0)}")
    A(f"s_add_u32 {s(sXb)}, {s(sXb)}, {WS_X1}")
    A("s_barrier")
    assert 28 % 2 == 0
    for g in range(7):
        A(f"s_add_u32 m0, {s(sLW)}, {OW + g*4096}")
        A(f"s_add_u32 {s(sT0)}, {s(sWk)}, {g*32768}")
        for jj in range(4): A(f"buffer_load_dwordx4 {v(voWo[jj])}, s[16:19], {s(sT0)} offen offset:{jj*1024} lds")
    A(f"s_lshl_b32 {s(sT2)}, {s(sRB)}, 10")
    A(f"s_add_u32 {s(sT2)}, {s(sT2)}, {WS_CNT + 32768}")
    wait_flags("t", sT2, 8)
    if stamps: STL.stamp()
    def issueO(st):
        slot = st % NSO
        A(f"s_add_u32 m0, {s(sLP)}, {slot*PSLOT}")
        A(f"s_add_u32 {s(sT0)}, {s(sPk)}, {st*256}")
        for jj in range(4): A(f"buffer_load_dwordx4 {v(voP[jj])}, s[4:7], {s(sT0)} offen offset:{jj*1024} lds")
    cntO = lambda st: 4
    for st in range(NSO): issueO(st)
    issued = NSO; xq = 0
    for i in range(NSTO):
        out = sum(cntO(j) for j in range(i + 1, issued)) + xq
        A(f"s_waitcnt vmcnt({out})")
        A("s_barrier")
        if i >= 1 and issued < NSTO:
            issueO(issued); issued += 1
        if i == NSTO - 2:
            A(f"s_lshl_b32 {s(sT0)}, {s(sLw)}, 11")
            A(f"s_add_u32 m0, {s(sT0)}, {XT}")
            for jj in range(2): A(f"buffer_load_dwordx4 {v(voX[jj])}, s[4:7], {s(sXb)} offen offset:{jj*1024} lds")
            xq = 2
    A("s_waitcnt vmcnt(0)")
    A("s_barrier")
    if stamps:
        STL.stamp(); A(f"s_cmp_lg_u32 {s(sLw)}, 0"); A(f"s_cselect_b32 s20, 1, 0"); STL.flush(4, vt[0], slot=1)
    A("s_endpgm")
    nvmax[0] = max(nvmax[0], R.hi)
    A.label(f"{name}_end")
    A("s_endpgm")
    return dict(name=name, grid=NWG, block=512, lds=LDS, vgpr=256, sgpr=96 if stamps else 60)
```

```python
import sys
from build4 import assemble2
from g7a import gen_ka, gen_kb
from gkm2 import gen_km
def make(path, st=False, ka={}, kb={}, km={}):
    gens = [lambda A: gen_ka(A, stamps=st, **ka), lambda A: gen_kb(A, stamps=st, **kb), lambda A: gen_km(A, stamps=st, **km)]
    open(path, "w").write(assemble2(gens))
V = {
 "q_a": (dict(light=True), dict(prefetch=True, pfwin=True), dict(pfhalf=True)),
}
for n, (a, b, m) in V.items():
    make(n + ".s", False, a, b, m); make(n + "_st.s", True, a, b, m)
```

```python
from g2b import *
from tables import TAB_OFF
from g2a import getpc_sym
WS_FLG = WS_STAT + 256 * 1024
FA_O = 0; FB_O = 256 * 128; FC_O = FB_O + 160 * 128; FT_O = FC_O + 256 * 128
WS_EPOCH = WS_FLG + FT_O + 256 * 128
SPIN = 0x8000
sX, sWM, sCV, sTB_, sTAG = 56, 58, 60, 62, 64

def gen_kf(A, name="kf_kernel", stamps=False, prefetch=True, pfpos=0, pfhalf=True, pfwin=True, wmcalc=True):
    NWG = 256
    GS = 960; SLOT = 16 * GS; W_OFF = 65536; NSZ = 4; NSTZ = 16; WROW = 3584
    X_OFF = W_OFF + NSZ * SLOT; XS = 32 * 144
    ZT = 145408
    NSG = 5; NSTG = 32; B_OFF = 14 * 1024; STAGE = 22 * 1024; RING = NSG * STAGE
    GX = 114688
    OW = 0; OP = 114688; NSO = 3; NSTO = 7; PSLOT = 16384
    LDS = 163840
    JOIN = 159744
    A.barrier_state(); A.raw(kernel_header(name))
    ST = Stamps(A, on=stamps, kidx=0)
    sW, sRB, sCC, sT0, sT1, sT2, sTH, sFH, sK, sSlot, sI = 20, 21, 22, 23, 24, 25, 26, 27, 28, 34, 35
    A(f"s_cmp_ge_u32 s2, {NWG}")
    A(f"s_cbranch_scc1 {name}_end")
    ST.stamp()
    load_ptr(A, 4, "ws"); load_ptr(A, 8, "win"); load_ptr(A, 12, "wsp"); load_ptr(A, 16, "wout"); load_ptr(A, 36, "bsp"); load_ptr(A, 38, "out")
    load_ptr(A, sX, "x"); load_ptr(A, sWM, "wmod"); load_ptr(A, sCV, "c")
    getpc_sym(A, sTB_, "fft_tables")
    A(f"v_readfirstlane_b32 {s(sW)}, v0")
    A(f"s_lshr_b32 {s(sW)}, {s(sW)}, 6")
    vJ = 250
    def arrive(jidx, count, s_off, tag):
        A(f"v_mov_b32 {v(vJ)}, {JOIN + 4*jidx}")
        A(f"v_mov_b32 {v(vJ+1)}, 1")
        A("s_waitcnt vmcnt(0)")
        A("s_mov_b64 exec, 1")
        A(f"ds_add_rtn_u32 {v(vJ)}, {v(vJ)}, {v(vJ+1)}")
        A("s_waitcnt lgkmcnt(0)")
        A(f"v_readfirstlane_b32 {s(sT1)}, {v(vJ)}")
        A(f"v_mov_b32 {v(vJ)}, {s(s_off)}")
        A(f"v_mov_b32 {v(vJ+1)}, {s(sTAG)}")
        A(f"s_cmp_lg_u32 {s(sT1)}, {count-1}")
        A(f"s_cbranch_scc1 {name}_nofl{tag}")
        A(f"global_store_dword {v(vJ)}, {v(vJ+1)}, s[4:5] sc0 sc1")
        A.label(f"{name}_nofl{tag}")
        A("s_mov_b64 exec, -1")
    def wait_flags(tag, s_base, nflags, by_wave0, addr_fn=None):
        dn = f"{name}_d{tag}"; lp = f"{name}_w{tag}"
        A(f"s_cmp_lg_u32 {s(sW)}, {0 if by_wave0 else 4}")
        A(f"s_cbranch_scc1 {dn}")
        nl = (nflags + 63) // 64
        va_ = 244; vd_ = 248
        A(f"v_and_b32 {v(va_)}, 63, v0")
        if addr_fn: addr_fn(va_)
        else:
            if nflags < 64: A(f"v_and_b32 {v(va_)}, {nflags-1}, {v(va_)}")
            A(f"v_lshl_add_u32 {v(va_)}, {v(va_)}, 7, {s(s_base)}")
            for k in range(1, nl): A(f"v_add_u32 {v(va_+k)}, {k*8192}, {v(va_)}")
        A(f"s_mov_b32 {s(sK)}, 0")
        A.label(lp)
        for k in range(nl): A(f"global_load_dword {v(vd_+k)}, {v(va_+k)}, s[4:5] sc1")
        A("s_waitcnt vmcnt(0)")
        for k in range(nl):
            A(f"v_xor_b32 {v(vd_+k)}, {s(sTAG)}, {v(vd_+k)}")
        for k in range(1, nl): A(f"v_or_b32 {v(vd_)}, {v(vd_)}, {v(vd_+k)}")
        A(f"v_cmp_ne_u32 vcc, 0, {v(vd_)}")
        A(f"s_add_u32 {s(sK)}, {s(sK)}, 1")
        A(f"s_cmp_eq_u64 vcc, 0")
        A(f"s_cbranch_scc1 {dn}")
        A("s_sleep 1")
        A(f"s_cmp_lt_u32 {s(sK)}, {SPIN}")
        A(f"s_cbranch_scc1 {lp}")
        A.label(dn)
        A("s_barrier")
    A(f"v_mov_b32 v1, {JOIN}")
    for j in range(4): A(f"v_mov_b32 v{4+j}, 0")
    A("ds_write_b128 v1, v[4:7]")
    A("s_waitcnt lgkmcnt(0)")
    A(f"s_add_u32 s40, s4, {WS_EPOCH}")
    A(f"s_addc_u32 s41, s5, 0")
    A(f"s_load_dword {s(sTAG)}, s[40:41], 0")
    ST.stamp()
    NFFT = 128; NMOD = 96; F_L = 16384
    A(f"s_cmp_ge_u32 s2, {NFFT}")
    A(f"s_cbranch_scc1 {name}_mod")
    A("s_and_b32 s40, s2, 7")
    A("s_bfe_u32 s41, s2, 0x20003")
    A("s_lshl2_add_u32 s40, s40, s41")
    A("s_lshl_b32 s40, s40, 10")
    A("s_lshr_b32 s41, s2, 5")
    R = RegAlloc(1)
    voff = R.alloc(); vi = R.alloc(); vq = R.alloc(); vt0 = R.alloc(); vt1 = R.alloc()
    vS = R.alloc(); vQ = R.alloc(); vtr = R.alloc(); vst = R.alloc(); vl16 = R.alloc()
    xr = [R.alloc(4) for _ in range(8)]
    assert xr[7] == xr[0] + 28
    xo = R.alloc(8, 4)
    Ff = [[R.alloc(4) for _ in range(2)] for _ in range(2)]
    Af = [[R.alloc(4) for _ in range(2)] for _ in range(2)]
    acc = [[R.alloc(4) for _ in range(2)] for _ in range(2)]
    tmp = R.alloc(16, 4)
    A(f"v_lshrrev_b32 {v(vt0)}, 3, v0")
    A(f"v_and_b32 {v(vt1)}, 7, v0")
    A(f"v_lshlrev_b32 {v(vt0)}, 15, {v(vt0)}")
    A(f"v_lshl_add_u32 {v(voff)}, {v(vt1)}, 4, {v(vt0)}")
    A(f"v_add_u32 {v(voff)}, s40, {v(voff)}")
    A(f"v_lshlrev_b32 {v(vl16)}, 4, v0")
    A("s_lshl_b32 s42, s20, 10")
    A(f"s_add_u32 m0, s42, {F_L}")
    for it in range(8):
        A(f"global_load_dwordx4 {v(xr[it],4)}, {v(voff)}, s[56:57] offset:{it*128}")
    A(f"global_load_lds_dwordx4 {v(vl16)}, s[62:63] offset:{TAB_OFF['tab_f64']}")
    A(f"v_and_b32 {v(vi)}, 15, v0")
    A(f"v_bfe_u32 {v(vq)}, v0, 4, 2")
    A(f"v_lshrrev_b32 {v(vt0)}, 8, v0")
    A(f"v_lshlrev_b32 {v(vst)}, 20, {v(vt0)}")
    A(f"v_lshl_add_u32 {v(vst)}, {v(vi)}, 15, {v(vst)}")
    A(f"v_bfe_u32 {v(vt1)}, v0, 6, 2")
    A(f"v_lshl_add_u32 {v(vst)}, {v(vt1)}, 5, {v(vst)}")
    A(f"v_lshl_add_u32 {v(vst)}, {v(vq)}, 3, {v(vst)}")
    A("s_lshl_b32 s42, s41, 8")
    A("s_add_u32 s40, s40, s42")
    A(f"s_add_u32 s40, s40, {WS_T}")
    A(f"v_add_u32 {v(vst)}, s40, {v(vst)}")
    A(f"v_lshlrev_b32 {v(vtr)}, 5, {v(vt1)}")
    A(f"v_lshrrev_b32 {v(vt1)}, 2, {v(vi)}")
    A(f"v_lshl_add_u32 {v(vt1)}, {v(vq)}, 3, {v(vt1)}")
    A(f"v_lshl_add_u32 {v(vtr)}, {v(vt1)}, 7, {v(vtr)}")
    A(f"v_and_b32 {v(vt1)}, 3, {v(vi)}")
    A(f"v_lshl_add_u32 {v(vtr)}, {v(vt1)}, 3, {v(vtr)}")
    vfa = R.alloc()
    A(f"v_and_b32 {v(vfa)}, 63, v0")
    A(f"v_lshlrev_b32 {v(vfa)}, 4, {v(vfa)}")
    A(f"v_lshl_add_u32 {v(vfa)}, {v(vt0)}, 12, {v(vfa)}")
    A(f"v_mov_b32 {v(vS)}, 0")
    A(f"v_mov_b32 {v(vQ)}, 0")
    A("s_mov_b32 s42, 0x3f803f80")
    for it in range(8):
        A(f"s_waitcnt vmcnt({7 - it + 1})")
        for j in range(4):
            A(f"v_dot2_f32_bf16 {v(vS)}, {v(xr[it]+j)}, s42, {v(vS)}")
            A(f"v_dot2_f32_bf16 {v(vQ)}, {v(xr[it]+j)}, {v(xr[it]+j)}, {v(vQ)}")
    A("s_lshl_b32 s43, s41, 3")
    A("s_mov_b32 s42, 0xffff0000")
    A("s_set_gpr_idx_on s43, gpr_idx(SRC0)")
    for j in range(8): A(f"v_mov_b32 {v(xo+j)}, {v(xr[0]+j)}")
    A("s_set_gpr_idx_off")
    for mode in ("quad_perm:[1,0,3,2]", "quad_perm:[2,3,0,1]", "row_half_mirror"):
        A(f"v_add_f32_dpp {v(vS)}, {v(vS)}, {v(vS)} {mode} row_mask:0xf bank_mask:0xf")
        A(f"v_add_f32_dpp {v(vQ)}, {v(vQ)}, {v(vQ)} {mode} row_mask:0xf bank_mask:0xf")
        A(f"v_lshlrev_b32 {v(tmp+0)}, 16, {v(xo+0)}") if mode.startswith("quad_perm:[1") else None
    for j in range(8):
        if j: A(f"v_lshlrev_b32 {v(tmp+2*j)}, 16, {v(xo+j)}")
        A(f"v_and_b32 {v(tmp+2*j+1)}, s42, {v(xo+j)}")
    A(f"v_mul_f32 {v(vS)}, 0x3b000000, {v(vS)}")
    A(f"v_mul_f32 {v(vQ)}, 0x3b000000, {v(vQ)}")
    A(f"v_fma_f32 {v(vQ)}, -{v(vS)}, {v(vS)}, {v(vQ)}")
    A(f"v_max_f32 {v(vQ)}, 0, {v(vQ)}")
    A(f"v_add_f32 {v(vQ)}, 0x3727c5ac, {v(vQ)}")
    A(f"v_rsq_f32 {v(vQ)}, {v(vQ)}")
    A(f"v_mul_f32 {v(vS)}, {v(vS)}, {v(vQ)}")
    for j in range(16): A(f"v_fma_f32 {v(tmp+j)}, {v(tmp+j)}, {v(vQ)}, -{v(vS)}")
    for h in range(2):
        for j in range(4): A(f"v_cvt_pk_bf16_f32 {v(xo+4*h+j)}, {v(tmp+8*h+2*j)}, {v(tmp+8*h+2*j+1)}")
        A(f"ds_write_b128 {v(vl16)}, {v(xo+4*h,4)} offset:{h*8192}")
    A("s_waitcnt vmcnt(0) lgkmcnt(0)")
    A("s_barrier")
    for h in range(2):
        for ks in range(2):
            for p in range(2):
                A(f"ds_read_b64_tr_b16 {v(Af[h][ks]+2*p,2)}, {v(vtr)} offset:{h*8192 + ks*32*128 + p*4*128}")
        if h == 0:
            for nt in range(2):
                for ks in range(2): A(f"ds_read_b128 {v(Ff[nt][ks],4)}, {v(vfa)} offset:{F_L + nt*2048 + ks*1024}")
    A(f"v_add_u32 {v(vt1)}, {16*32768}, {v(vst)}")
    for h in range(2):
        A(f"s_waitcnt lgkmcnt({4*(1-h)})")
        for ks in range(2):
            for nt in range(2):
                c = "0" if ks == 0 else v(acc[h][nt], 4)
                A(f"v_mfma_f32_16x16x32_bf16 {v(acc[h][nt],4)}, {v(Af[h][ks],4)}, {v(Ff[nt][ks],4)}, {c}")
    for h in range(2):
        for nt in range(2):
            k = h * 2 + nt
            A(f"v_cvt_pk_bf16_f32 {v(tmp+2*k)}, {v(acc[h][nt])}, {v(acc[h][nt]+1)}")
            A(f"v_cvt_pk_bf16_f32 {v(tmp+2*k+1)}, {v(acc[h][nt]+2)}, {v(acc[h][nt]+3)}")
            A(f"global_store_dwordx2 {v(vst if nt == 0 else vt1)}, {v(tmp+2*k,2)}, s[4:5] offset:{h*128} sc0 sc1")
    A("s_waitcnt lgkmcnt(0)")
    A(f"s_add_u32 {s(sTAG)}, {s(sTAG)}, 1")
    A(f"s_lshl_b32 {s(sT0)}, s2, 7")
    A(f"s_add_u32 {s(sT0)}, {s(sT0)}, {WS_FLG + FA_O}")
    arrive(2, 8, sT0, "af")
    A(f"s_branch {name}_adone")
    A.label(f"{name}_mod")
    A(f"s_cmp_ge_u32 s2, {NFFT+NMOD}")
    A(f"s_cbranch_scc1 {name}_pf")
    A(f"s_sub_u32 s40, s2, {NFFT}")
    A("s_lshl_b32 s41, s40, 6")
    R = RegAlloc(1)
    vk = R.alloc(); vt0 = R.alloc(); vt1 = R.alloc(); vc = R.alloc()
    vo = [R.alloc() for _ in range(4)]
    wr = [R.alloc(4) for _ in range(4)]
    cv = [R.alloc() for _ in range(4)]; ch = [R.alloc() for _ in range(4)]
    ac = R.alloc(8, 4); rr = R.alloc(16, 4)
    A(f"v_and_b32 {v(vt0)}, 0x1c0, v0")
    A(f"v_bfe_u32 {v(vt1)}, v0, 2, 4")
    A(f"v_add_u32 {v(vk)}, {v(vt0)}, {v(vt1)}")
    A(f"v_and_b32 {v(vc)}, 3, v0")
    A(f"v_mul_u32_u24 {v(vo[0])}, 6144, {v(vk)}")
    A(f"v_lshl_add_u32 {v(vo[0])}, {v(vc)}, 4, {v(vo[0])}")
    A(f"v_add_u32 {v(vo[0])}, s41, {v(vo[0])}")
    for it in range(1, 4): A(f"v_add_u32 {v(vo[it])}, {it*16*6144}, {v(vo[0])}")
    A(f"v_lshlrev_b32 {v(vk)}, 1, {v(vk)}")
    for it in range(4): A(f"global_load_ushort {v(cv[it])}, {v(vk)}, s[60:61] offset:{it*32}")
    for it in range(4): A(f"global_load_dwordx4 {v(wr[it],4)}, {v(vo[it])}, s[58:59]")
    for j in range(8): A(f"v_mov_b32 {v(ac+j)}, 0")
    A("s_waitcnt vmcnt(4)")
    for it in range(4): A(f"v_lshlrev_b32 {v(cv[it])}, 16, {v(cv[it])}")
    for it in range(4): A(f"v_mul_f32 {v(ch[it])}, 0xbfb8aa3b, {v(cv[it])}")
    for it in range(4): A(f"v_exp_f32 {v(ch[it])}, {v(ch[it])}")
    for it in range(4): A(f"v_add_f32 {v(ch[it])}, 1.0, {v(ch[it])}")
    for it in range(4): A(f"v_rcp_f32 {v(ch[it])}, {v(ch[it])}")
    for it in range(4): A(f"v_mul_f32 {v(cv[it])}, {v(cv[it])}, {v(ch[it])}")
    for it in range(4): A(f"v_cvt_pk_bf16_f32 {v(cv[it])}, {v(cv[it])}, 0")
    for it in range(4): A(f"v_lshlrev_b32 {v(ch[it])}, 16, {v(cv[it])}")
    for it in range(4):
        A(f"s_waitcnt vmcnt({3-it})")
        for j in range(4):
            A(f"v_dot2_f32_bf16 {v(ac+2*j)}, {v(wr[it]+j)}, {v(cv[it])}, {v(ac+2*j)}")
            A(f"v_dot2_f32_bf16 {v(ac+2*j+1)}, {v(wr[it]+j)}, {v(ch[it])}, {v(ac+2*j+1)}")
    for rot in (4, 8):
        for j in range(8):
            A(f"v_add_f32_dpp {v(ac+j)}, {v(ac+j)}, {v(ac+j)} row_ror:{rot} row_mask:0xf bank_mask:0xf")
    A(f"v_lshrrev_b32 {v(vt0)}, 4, v0")
    A(f"v_lshlrev_b32 {v(vt0)}, 7, {v(vt0)}")
    A(f"v_lshl_add_u32 {v(vt0)}, {v(vc)}, 5, {v(vt0)}")
    A(f"ds_write_b128 {v(vt0)}, {v(ac,4)}")
    A(f"ds_write_b128 {v(vt0)}, {v(ac+4,4)} offset:16")
    if prefetch:
        lab = f"{name}_nocp"
        A("s_cmp_ge_u32 s40, 8")
        A(f"s_cbranch_scc1 {lab}")
        getpc_sym(A, 44, "code_begin")
        A(f"v_lshlrev_b32 {v(vt0)}, 7, v0")
        A(f"v_mov_b32 {v(vt1)}, code_end-code_begin-4")
        A(f"v_min_u32 {v(vt0)}, {v(vt0)}, {v(vt1)}")
        A(f"v_and_b32 {v(vt0)}, -4, {v(vt0)}")
        A(f"global_load_dword {v(vk)}, {v(vt0)}, s[44:45]")
        A.label(lab)
    A("s_waitcnt lgkmcnt(0)")
    A("s_barrier")
    A("s_cmp_ge_u32 s20, 1")
    A(f"s_cbranch_scc1 {name}_aend")
    A(f"v_and_b32 {v(vt1)}, 31, v0")
    A(f"v_lshrrev_b32 {v(vt0)}, 5, v0")
    A(f"v_lshlrev_b32 {v(vt0)}, 11, {v(vt0)}")
    A(f"v_lshl_add_u32 {v(vt0)}, {v(vt1)}, 2, {v(vt0)}")
    for p in range(16): A(f"ds_read_b32 {v(rr+p)}, {v(vt0)} offset:{p*128}")
    A("s_lshr_b32 s41, s40, 4")
    A("s_cmp_eq_u32 s41, 1")
    A("s_cselect_b32 s42, 1.0, 0")
    A("s_cmp_eq_u32 s41, 4")
    A("s_cselect_b32 s42, 1.0, s42")
    A("s_lshl_b32 s41, s40, 7")
    if WS_MOD: A(f"s_add_u32 s41, s41, {WS_MOD}")
    A(f"v_lshl_add_u32 {v(vt1)}, {v(vt1)}, 2, s41")
    A("s_waitcnt lgkmcnt(0)")
    for st_ in (8, 4, 2, 1):
        for p in range(st_): A(f"v_add_f32 {v(rr+p)}, {v(rr+p)}, {v(rr+p+st_)}")
    A(f"v_mov_b32 {v(rr+1)}, {v(rr)}")
    A(f"v_permlane32_swap_b32 {v(rr)}, {v(rr+1)}")
    A(f"v_add_f32 {v(rr)}, {v(rr)}, {v(rr+1)}")
    A(f"v_cvt_pk_bf16_f32 {v(rr)}, {v(rr)}, {v(rr)}")
    A(f"v_lshlrev_b32 {v(rr)}, 16, {v(rr)}")
    A(f"v_add_f32 {v(rr)}, s42, {v(rr)}")
    A(f"v_cvt_pk_bf16_f32 {v(rr)}, {v(rr)}, {v(rr)}")
    A(f"v_lshlrev_b32 {v(rr)}, 16, {v(rr)}")
    A(f"global_store_dword {v(vt1)}, {v(rr)}, s[4:5] sc0 sc1")
    A.label(f"{name}_aend")
    A("s_waitcnt lgkmcnt(0)")
    A(f"s_add_u32 {s(sTAG)}, {s(sTAG)}, 1")
    A(f"s_lshl_b32 {s(sT0)}, s2, 7")
    A(f"s_add_u32 {s(sT0)}, {s(sT0)}, {WS_FLG + FA_O}")
    arrive(2, 8, sT0, "am")
    A(f"s_branch {name}_adone")
    A.label(f"{name}_pf")
    A(f"s_sub_u32 s40, s2, {NFFT+NMOD}")
    A("s_lshl_b32 s41, s40, 13")
    A(f"s_add_u32 s41, s41, {WS_STAT}")
    A("v_lshl_add_u32 v1, v0, 4, s41")
    for j in range(4): A(f"v_mov_b32 v{4+j}, -1")
    A("global_store_dwordx4 v1, v[4:7], s[4:5] sc0 sc1")
    A("s_barrier")
    A("s_waitcnt lgkmcnt(0)")
    A(f"s_add_u32 {s(sTAG)}, {s(sTAG)}, 1")
    A(f"s_lshl_b32 {s(sT0)}, s2, 7")
    A(f"s_add_u32 {s(sT0)}, {s(sT0)}, {WS_FLG + FA_O}")
    arrive(2, 8, sT0, "ap")
    if prefetch:
        A("s_mul_i32 s40, s40, 448")
        A("v_add_u32 v1, s40, v0")
        A("v_lshlrev_b32 v1, 7, v1")
        A("v_min_u32 v1, %d, v1" % 0) if False else None
        A("v_cmp_gt_u32 vcc, 448, v0")
        A("s_and_saveexec_b64 s[42:43], vcc")
        A(f"s_cbranch_execz {name}_pfx")
        A("global_load_dword v252, v1, s[8:9]")
        A.label(f"{name}_pfx")
        A("s_mov_b64 exec, s[42:43]")
    A.label(f"{name}_adone")
    A("s_barrier")
    ST.stamp()
    A(f"s_cmp_ge_u32 s2, 132")
    A(f"s_cbranch_scc1 {name}_bdone")
    TB_L = 0; MD_L = TB_L + 10240; WM_L = MD_L + 8192; T_B = WM_L + 1024
    TS = 1056; V_OFF = T_B + 64 * TS; VS = 80; US = 144; YS = 2064
    U_OFF = T_B; Y_OFF = T_B + 20480
    sC, sG, sRow, sMir, sRow2, sY = 21, 22, 26, 27, 29, 49
    SRD_T = 4
    A(f"s_mov_b32 s6, {WS_T + 2*MB}")
    A("s_mov_b32 s7, 0x20000")
    A(f"s_and_b32 {s(sT0)}, s2, 7")
    A(f"s_bfe_u32 {s(sG)}, s2, 0x20003")
    A(f"s_lshr_b32 {s(sT1)}, s2, 5")
    A(f"s_lshl3_add_u32 {s(sC)}, {s(sT1)}, {s(sT0)}")
    A(f"s_cmp_ge_u32 s2, 128")
    A(f"s_cselect_b32 {s(sC)}, 32, {s(sC)}")
    A(f"s_cselect_b32 {s(sG)}, {s(sT0)}, {s(sG)}")
    R = RegAlloc(1)
    vl = R.alloc(); vq = R.alloc(); vi = R.alloc(); vl16 = R.alloc(); vtid16 = R.alloc()
    vtb = R.alloc(8, 4); vt = [vtb + k for k in range(8)]
    A0 = R.alloc(4); A1 = R.alloc(4)
    F1 = [R.alloc(4) for _ in range(2)]; F2 = [[R.alloc(4) for _ in range(2)] for _ in range(2)]
    tw = R.alloc(16, 4)
    opca = [R.alloc() for _ in range(4)]
    xrow = [R.alloc(4) for _ in range(2)]
    Bf = [[R.alloc(4) for _ in range(2)] for _ in range(4)]
    acc = [R.alloc(4) for _ in range(4)]
    ga = R.alloc(8, 4); sb = R.alloc(8, 4); ocb = R.alloc(8, 4)
    vaT = R.alloc(); vaVw = R.alloc(); vaVr = R.alloc(); vaUw = R.alloc(); vaUr = R.alloc(); vaYw = R.alloc()
    vrow = [R.alloc() for _ in range(2)]
    xf = R.alloc(8, 4); yy = R.alloc(8, 4)
    Rr = R.alloc(4); Ri = R.alloc(4)
    A(f"v_and_b32 {v(vl)}, 63, v0")
    A(f"v_lshlrev_b32 {v(vl16)}, 4, {v(vl)}")
    A(f"v_lshlrev_b32 {v(vtid16)}, 4, v0")
    A(f"v_and_b32 {v(vi)}, 15, v0")
    A(f"v_bfe_u32 {v(vq)}, v0, 4, 2")
    if not wmcalc:
        A(f"v_bfe_u32 {v(vt[0])}, v0, 2, 3")
        A(f"v_lshlrev_b32 {v(vt[0])}, 18, {v(vt[0])}")
        A(f"v_and_b32 {v(vt[1])}, 3, v0")
        A(f"v_lshl_add_u32 {v(vt[0])}, {v(vt[1])}, 4, {v(vt[0])}")
        A(f"s_lshl_b32 {s(sT1)}, {s(sG)}, 21")
        A(f"s_lshl_b32 {s(sT2)}, {s(sC)}, 12")
        A(f"s_add_u32 {s(sT1)}, {s(sT1)}, {s(sT2)}")
        A(f"v_add_u32 {v(vt[0])}, {s(sT1)}, {v(vt[0])}")
    A(f"s_lshl3_add_u32 {s(sT1)}, {s(sG)}, {s(sW)}")
    A(f"s_lshl_b32 {s(sT1)}, {s(sT1)}, 6")
    A(f"s_add_u32 {s(sRow)}, {s(sT1)}, {s(sC)}")
    A(f"s_sub_u32 {s(sRow2)}, 2048, {s(sRow)}")
    A(f"s_and_b32 {s(sRow2)}, {s(sRow2)}, 2047")
    A(f"s_lshl_b32 {s(sRow)}, {s(sRow)}, 10")
    A(f"s_lshl_b32 {s(sRow2)}, {s(sRow2)}, 10")
    A(f"v_add_u32 {v(vrow[0])}, {s(sRow)}, {v(vl16)}")
    A(f"v_add_u32 {v(vrow[1])}, {s(sRow2)}, {v(vl16)}")
    A(f"s_lshl_b32 {s(sT2)}, {s(sW)}, 10")
    A(f"s_add_u32 m0, {s(sT2)}, {TB_L}")
    A(f"v_add_u32 {v(vt[1])}, {TAB_OFF['tab_f1']}, {v(vtid16)}")
    A(f"global_load_lds_dwordx4 {v(vt[1])}, s[62:63]")
    lx = f"{name}_bnox"; l23 = f"{name}_bx23"
    A(f"s_cmp_ge_u32 {s(sW)}, {2 if wmcalc else 4}")
    A(f"s_cbranch_scc1 {lx}")
    if not wmcalc:
        A(f"s_cmp_ge_u32 {s(sW)}, 2")
        A(f"s_cbranch_scc1 {l23}")
    A(f"s_add_u32 m0, {s(sT2)}, {TB_L + 8192}")
    A(f"v_add_u32 {v(vt[1])}, 8192, {v(vt[1])}")
    A(f"global_load_lds_dwordx4 {v(vt[1])}, s[62:63]")
    if not wmcalc:
        A(f"s_branch {lx}")
        A.label(l23)
        A(f"s_cmp_eq_u32 {s(sW)}, 3")
        A("s_cselect_b32 s6, s8, s6")
        A("s_cselect_b32 s7, s9, s7")
        A(f"s_cselect_b32 {s(sT1)}, 512, 0")
        A(f"s_add_u32 m0, {s(sT1)}, {WM_L}")
        A("s_mov_b32 exec_hi, 0")
        A(f"global_load_lds_dwordx4 {v(vt[0])}, s[6:7]")
        A("s_mov_b32 exec_hi, -1")
    A.label(lx)
    for h in range(2): A(f"global_load_dwordx4 {v(xrow[h],4)}, {v(vrow[h])}, s[56:57]")
    A(f"v_lshrrev_b32 {v(vt[0])}, 2, {v(vi)}")
    A(f"v_lshl_add_u32 {v(vt[0])}, {v(vq)}, 2, {v(vt[0])}")
    A(f"v_mul_u32_u24 {v(vaT)}, {TS}, {v(vt[0])}")
    A(f"v_and_b32 {v(vt[0])}, 3, {v(vi)}")
    A(f"v_lshl_add_u32 {v(vaT)}, {v(vt[0])}, 3, {v(vaT)}")
    A(f"v_and_b32 {v(vt[4])}, 0x1c0, v0")
    A(f"v_lshl_add_u32 {v(vaT)}, {v(vt[4])}, 1, {v(vaT)}")
    A(f"v_add_u32 {v(vaT)}, {T_B}, {v(vaT)}")
    A(f"v_lshl_add_u32 {v(vt[0])}, {v(vq)}, 6, {v(vi)}")
    A(f"v_mul_u32_u24 {v(vaVw)}, {VS}, {v(vt[0])}")
    A(f"v_lshrrev_b32 {v(vt[0])}, 3, {v(vt[4])}")
    A(f"s_mov_b32 {s(sT2)}, {V_OFF}")
    A(f"v_add3_u32 {v(vaVw)}, {v(vaVw)}, {v(vt[0])}, {s(sT2)}")
    A(f"v_lshrrev_b32 {v(vt[0])}, 1, {v(vt[4])}")
    A(f"v_add_u32 {v(vt[0])}, {v(vt[0])}, {v(vi)}")
    A(f"v_mul_u32_u24 {v(vaVr)}, {VS}, {v(vt[0])}")
    A(f"v_lshl_add_u32 {v(vaVr)}, {v(vq)}, 4, {v(vaVr)}")
    A(f"v_add_u32 {v(vaVr)}, {V_OFF}, {v(vaVr)}")
    A(f"v_lshrrev_b32 {v(vt[0])}, 2, {v(vt[4])}")
    A(f"v_lshl_add_u32 {v(vt[3])}, {v(vq)}, 1, {v(vt[0])}")
    A(f"v_mul_u32_u24 {v(vaUw)}, {US}, {v(vt[3])}")
    A(f"v_lshl_add_u32 {v(vaUw)}, {v(vi)}, 2, {v(vaUw)}")
    A(f"v_add_u32 {v(vt[3])}, {v(vt[0])}, {v(vi)}")
    A(f"v_mul_u32_u24 {v(vaUr)}, {US}, {v(vt[3])}")
    A(f"v_lshl_add_u32 {v(vaUr)}, {v(vq)}, 4, {v(vaUr)}")
    A(f"s_mul_i32 {s(sY)}, {s(sW)}, {YS}")
    A(f"s_add_u32 {s(sY)}, {s(sY)}, {Y_OFF}")
    A(f"v_lshlrev_b32 {v(vaYw)}, 6, {v(vi)}")
    A(f"v_lshl_add_u32 {v(vaYw)}, {v(vq)}, 4, {v(vaYw)}")
    A(f"v_add_u32 {v(vaYw)}, {s(sY)}, {v(vaYw)}")
    A(f"v_lshrrev_b32 {v(vt[5])}, 1, {v(vi)}")
    A(f"v_lshlrev_b32 {v(vt[5])}, 6, {v(vt[5])}")
    A(f"v_lshl_add_u32 {v(vt[5])}, {v(vq)}, 3, {v(vt[5])}")
    A(f"v_add_u32 {v(vt[6])}, {v(vt[4])}, {v(vi)}")
    A(f"v_lshlrev_b32 {v(vt[6])}, 2, {v(vt[6])}")
    A(f"v_and_b32 {v(vt[3])}, 1, v0")
    A(f"v_cmp_eq_u32 vcc, 1, {v(vt[3])}")
    if wmcalc:
        vT = Rr; vK = Rr + 1; cs_ = [Ri + j for j in range(4)]
        A(f"s_lshl_b32 {s(sT1)}, {s(sG)}, 9")
        A(f"s_add_u32 {s(sT1)}, {s(sT1)}, {s(sC)}")
        A(f"v_lshrrev_b32 {v(vT)}, 1, {v(vi)}")
        A(f"v_lshl_add_u32 {v(vT)}, {v(vT)}, 6, {s(sT1)}")
        A(f"v_lshlrev_b32 {v(vK)}, 2, {v(vq)}")
        A(f"v_mul_u32_u24 {v(vK)}, {v(vT)}, {v(vK)}")
        for jp in range(4):
            ang = []
            for u in range(2):
                jj = 2 * jp + u; koff = jj if jj < 4 else 16 + jj - 4
                r = cs_[u]
                A(f"v_mad_u32_u24 {v(r)}, {v(vT)}, {koff}, {v(vK)}")
                A(f"v_and_b32 {v(r)}, 2047, {v(r)}")
                A(f"v_cvt_f32_u32 {v(r)}, {v(r)}")
                A(f"v_mul_f32 {v(r)}, 0x3a000000, {v(r)}")
            for u in range(2):
                A(f"v_sin_f32 {v(cs_[2+u])}, {v(cs_[u])}")
                A(f"v_cos_f32 {v(cs_[u])}, {v(cs_[u])}")
            t0_, t1_, t2_, t3_ = vt[0], vt[1], vt[2], vt[7]
            A(f"v_sub_f32 {v(t0_)}, 0, {v(cs_[2])}")
            A(f"v_sub_f32 {v(t1_)}, 0, {v(cs_[3])}")
            A(f"v_cndmask_b32 {v(t0_)}, {v(cs_[0])}, {v(t0_)}, vcc")
            A(f"v_cndmask_b32 {v(t1_)}, {v(cs_[1])}, {v(t1_)}, vcc")
            A(f"v_cvt_pk_bf16_f32 {v(A0+jp)}, {v(t0_)}, {v(t1_)}")
            A(f"v_cndmask_b32 {v(t2_)}, {v(cs_[2])}, {v(cs_[0])}, vcc")
            A(f"v_cndmask_b32 {v(t3_)}, {v(cs_[3])}, {v(cs_[1])}, vcc")
            A(f"v_cvt_pk_bf16_f32 {v(A1+jp)}, {v(t2_)}, {v(t3_)}")
    A(f"s_add_u32 {s(sT1)}, {s(sC)}, 32")
    A(f"s_and_b32 {s(sT2)}, {s(sC)}, 31")
    A(f"s_cselect_b32 {s(sMir)}, 1, 0")
    A(f"s_cselect_b32 {s(sT1)}, {s(sT1)}, 0x4000")
    A(f"s_cmp_ge_u32 {s(sW)}, 4")
    A(f"s_cselect_b32 {s(sT0)}, {s(sT1)}, {s(sC)}")
    A(f"s_lshl_b32 {s(sT0)}, {s(sT0)}, 15")
    A(f"s_and_b32 {s(sT1)}, {s(sW)}, 3")
    A(f"s_lshl_b32 {s(sT1)}, {s(sT1)}, 13")
    A(f"s_add_u32 {s(sT0)}, {s(sT0)}, {s(sT1)}")
    A(f"s_add_u32 {s(sT0)}, {s(sT0)}, {WS_T - 128}")
    A(f"s_mul_i32 {s(sT1)}, {s(sW)}, {8*TS}")
    A(f"s_add_u32 m0, {s(sT1)}, {T_B}")
    for j in range(4): A(f"v_add_u32 {v(vt[4+j])}, {128 - 32*j}, {v(vl16)}")
    A(f"s_lshl_b32 {s(sT2)}, {s(sW)}, 10")
    A(f"s_mov_b32 s48, {WS_FLG + FA_O}")
    wait_flags("a", 48, 256, True)
    for g in range(2):
        if g:
            A(f"s_add_u32 m0, m0, {4*TS}")
            A(f"s_add_u32 {s(sT0)}, {s(sT0)}, 4096")
        for j in range(4):
            A(f"buffer_load_dwordx4 {v(vt[4+j])}, {s(SRD_T,4)}, {s(sT0)} offen offset:{j*TS} lds")
    A(f"s_add_u32 m0, {s(sT2)}, {MD_L}")
    A(f"v_add_u32 {v(vt[2])}, {WS_MOD + 2048}, {v(vtid16)}")
    A(f"global_load_lds_dwordx4 {v(vt[2])}, s[4:5]")
    A("s_waitcnt vmcnt(0)")
    A(f"v_and_b32 {v(vt[4])}, 0x1c0, v0")
    A(f"v_add_u32 {v(vt[6])}, {v(vt[4])}, {v(vi)}")
    A(f"v_lshlrev_b32 {v(vt[6])}, 2, {v(vt[6])}")
    vpf = R.alloc(); vpd = R.alloc(2)
    if prefetch and pfwin:
        A(f"s_lshr_b32 {s(sT2)}, s2, 3")
        A(f"s_lshl3_add_u32 {s(sT2)}, {s(sT2)}, {s(sW)}")
        A(f"s_and_b32 {s(sT2)}, {s(sT2)}, 127")
        A(f"s_mul_i32 {s(sT2)}, {s(sT2)}, 56")
        A(f"v_min_u32 {v(vpf)}, 55, {v(vl)}")
        A(f"v_add_u32 {v(vpf)}, {s(sT2)}, {v(vpf)}")
        A(f"v_mul_u32_u24 {v(vpd)}, 9363, {v(vpf)}")
        A(f"v_lshrrev_b32 {v(vpd)}, 17, {v(vpd)}")
        A(f"v_mul_u32_u24 {v(vpd+1)}, 14, {v(vpd)}")
        A(f"v_sub_u32 {v(vpd+1)}, {v(vpf)}, {v(vpd+1)}")
        A(f"v_mul_u32_u24 {v(vpf)}, 3584, {v(vpd)}")
        A(f"v_lshl_add_u32 {v(vpf)}, {v(vpd+1)}, 7, {v(vpf)}")
        A(f"v_cmp_lt_u32 s[46:47], 6, {v(vpd+1)}")
        A(f"v_mov_b32 {v(vpd)}, 896")
        A(f"v_cndmask_b32 {v(vpd)}, 0, {v(vpd)}, s[46:47]")
        A(f"s_and_b32 {s(sT1)}, s2, 1")
        A(f"s_mul_i32 {s(sT1)}, {s(sT1)}, 896")
        A(f"v_add3_u32 {v(vpf)}, {v(vpf)}, {v(vpd)}, {s(sT1)}")
    elif prefetch:
        A(f"s_bfe_u32 {s(sT1)}, s2, 0x20001")
        A(f"s_lshl_b32 {s(sT1)}, {s(sT1)}, 21")
        A(f"s_lshr_b32 {s(sT2)}, s2, 3")
        A(f"s_lshl3_add_u32 {s(sT2)}, {s(sT2)}, {s(sW)}")
        A(f"s_and_b32 {s(sT2)}, {s(sT2)}, 127")
        A(f"s_lshl_b32 {s(sT2)}, {s(sT2)}, 14")
        A(f"s_add_u32 {s(sT1)}, {s(sT1)}, {s(sT2)}")
        if pfhalf:
            A(f"s_and_b32 {s(sT2)}, s2, 1")
            A(f"s_lshl_b32 {s(sT2)}, {s(sT2)}, 13")
            A(f"s_add_u32 {s(sT1)}, {s(sT1)}, {s(sT2)}")
        A(f"v_lshl_add_u32 {v(vpf)}, {v(vl)}, 7, {s(sT1)}")
    pass
    A("s_barrier")
    if prefetch:
        A(f"global_load_dword {v(vpd)}, {v(vpf)}, s[8:9]")
        if not pfhalf:
            A(f"v_add_u32 {v(vpf)}, 8192, {v(vpf)}")
            A(f"global_load_dword {v(vpd+1)}, {v(vpf)}, s[8:9]")
    if not wmcalc:
        for reg, o in ((Rr, 0), (Ri, 512)):
            A(f"ds_read_b64 {v(reg,2)}, {v(vt[5])} offset:{WM_L + o}")
            A(f"ds_read_b64 {v(reg+2,2)}, {v(vt[5])} offset:{WM_L + o + 32}")
    for jt in range(4):
        for c in range(2):
            for p in range(2):
                A(f"ds_read_b64_tr_b16 {v(Bf[jt][c]+2*p,2)}, {v(vaT)} offset:{c*32*TS + p*16*TS + jt*32}")
        if jt == 1:
            pass
    if not wmcalc:
        A("s_waitcnt lgkmcnt(15)")
        for j in range(4):
            A(f"v_xor_b32 {v(vt[0])}, {s(sT0)}, {v(Ri+j)}")
            A(f"v_cndmask_b32 {v(A0+j)}, {v(Rr+j)}, {v(Ri+j)}, vcc")
            A(f"v_cndmask_b32 {v(A1+j)}, {v(vt[0])}, {v(Rr+j)}, vcc")
    for jt in range(4): A(f"ds_read_b32 {v(opca[jt])}, {v(vt[6])} offset:{MD_L + jt*64}")
    for jt in range(4):
        A(f"s_waitcnt lgkmcnt({min(15, (3-jt)*4 + 4)})")
        A(f"v_mfma_f32_16x16x32_bf16 {v(acc[jt],4)}, {v(A0,4)}, {v(Bf[jt][0],4)}, 0")
        A(f"v_mfma_f32_16x16x32_bf16 {v(acc[jt],4)}, {v(A1,4)}, {v(Bf[jt][1],4)}, {v(acc[jt],4)}")
    for mt in range(2): A(f"ds_read_b128 {v(F1[mt],4)}, {v(vl16)} offset:{TB_L + mt*1024}")
    A(f"v_lshlrev_b32 {v(vt[7])}, 2, {v(vl16)}")
    for h in range(4): A(f"ds_read_b128 {v(tw+4*h,4)}, {v(vt[7])} offset:{TB_L + 6144 + h*16}")
    A("s_waitcnt lgkmcnt(6)")
    for jt in range(4):
        for r in range(4): A(f"v_mul_f32 {v(acc[jt]+r)}, {v(acc[jt]+r)}, {v(opca[jt])}")
    lab = f"{name}_bnodc"
    A(f"s_or_b32 {s(sT0)}, {s(sC)}, {s(sG)}")
    A(f"s_cbranch_scc1 {lab}")
    A(f"v_and_b32 {v(vt[2])}, 0x1cf, v0")
    A(f"v_lshlrev_b32 {v(vt[2])}, 2, {v(vt[2])}")
    if WS_MOD: A(f"v_add_u32 {v(vt[2])}, {WS_MOD}, {v(vt[2])}")
    for jt in range(4): A(f"global_load_dword {v(Bf[0][0]+jt)}, {v(vt[2])}, s[4:5] offset:{jt*64}")
    A(f"v_cmp_eq_u32 vcc, 0, {v(vq)}")
    A(f"v_mov_b32 {v(vt[1])}, 0x45000000")
    A(f"v_cndmask_b32 {v(vt[1])}, 0, {v(vt[1])}, vcc")
    A("s_waitcnt vmcnt(0)")
    for jt in range(4): A(f"v_fmac_f32 {v(acc[jt])}, {v(Bf[0][0]+jt)}, {v(vt[1])}")
    A.label(lab)
    for jt in range(4):
        ac = acc[jt]
        A(f"v_cvt_pk_bf16_f32 {v(ac)}, {v(ac)}, {v(ac+1)}")
        A(f"v_cvt_pk_bf16_f32 {v(ac+1)}, {v(ac+2)}, {v(ac+3)}")
        o0 = (jt&1)*16*VS + (jt>>1)*4
        A(f"ds_write_b32 {v(vaVw)}, {v(ac)} offset:{o0}")
        A(f"ds_write_b32 {v(vaVw)}, {v(ac+1)} offset:{o0 + 32*VS}")
    A(f"s_mov_b32 {s(sT0)}, 0xffff0000")
    A("s_waitcnt lgkmcnt(0)")
    A("s_barrier")
    pass
    for h in range(2): A(f"ds_read_b128 {v(Bf[h][0],4)}, {v(vaVr)} offset:{h*16*VS}")
    for nt in range(2):
        for ks in range(2): A(f"ds_read_b128 {v(F2[nt][ks],4)}, {v(vl16)} offset:{TB_L + 2048 + nt*2048 + ks*1024}")
    A(f"v_lshlrev_b32 {v(vt[7])}, 1, {v(vl16)}")
    for h in range(2):
        A(f"s_waitcnt lgkmcnt({5-h})")
        for mt in range(2):
            A(f"v_mfma_f32_16x16x32_bf16 {v(acc[2*h+mt],4)}, {v(F1[mt],4)}, {v(Bf[h][0],4)}, 0")
    for reg, sec in ((ga, 1), (sb, 2), (ocb, 3)):
        for u in range(2): A(f"ds_read_b128 {v(reg+4*u,4)}, {v(vt[7])} offset:{MD_L + sec*2048 + u*16}")
    for h in range(2):
        for mt in range(2):
            for pp in range(2):
                re, im = acc[2*h+mt] + 2 * pp, acc[2*h+mt] + 2 * pp + 1
                k = ((h*2+mt)*2+pp)*2
                c_, s_ = tw + k, tw + k + 1
                t0, t1 = vt[4*pp], vt[4*pp+1]
                if pp == 1 and False: pass
                A(f"v_mul_f32 {v(t0)}, {v(re)}, {v(c_)}")
                A(f"v_mul_f32 {v(t1)}, {v(im)}, {v(c_)}")
                A(f"v_fma_f32 {v(t0)}, {v(im)}, {v(s_)}, {v(t0)}")
                A(f"v_fma_f32 {v(t1)}, -{v(re)}, {v(s_)}, {v(t1)}")
                A(f"v_cvt_pk_bf16_f32 {v(vt[4*pp+2])}, {v(t0)}, {v(t1)}")
                A(f"ds_write_b32 {v(vaUw)}, {v(vt[4*pp+2])} offset:{U_OFF + (8*mt+pp)*US + h*64}")
    A("s_waitcnt lgkmcnt(0)")
    for ks in range(2): A(f"ds_read_b128 {v(Bf[ks][0],4)}, {v(vaUr)} offset:{U_OFF + ks*64}")
    A(f"s_waitcnt vmcnt({(1 if pfhalf else 2) if prefetch else 0})")
    xg = [xf, yy]
    for r in range(2):
        for j in range(4):
            A(f"v_lshlrev_b32 {v(xg[r]+2*j)}, 16, {v(xrow[r]+j)}")
            A(f"v_and_b32 {v(xg[r]+2*j+1)}, {s(sT0)}, {v(xrow[r]+j)}")
    for ks in range(2):
        A(f"s_waitcnt lgkmcnt({1-ks})")
        for nt in range(2):
            c = "0" if ks == 0 else v(acc[nt], 4)
            A(f"v_mfma_f32_16x16x32_bf16 {v(acc[nt],4)}, {v(Bf[ks][0],4)}, {v(F2[nt][ks],4)}, {c}")
    A(f"v_lshl_add_u32 {v(vt[0])}, {v(vl16)}, 1, {s(sY)}")
    A(f"v_lshlrev_b32 {v(vt[2])}, 1, {v(vl16)}")
    A(f"v_sub_u32 {v(vt[1])}, 2048, {v(vt[2])}")
    A(f"v_and_b32 {v(vt[1])}, 2047, {v(vt[1])}")
    A(f"v_add_u32 {v(vt[1])}, {s(sY)}, {v(vt[1])}")
    A(f"s_add_u32 {s(sT1)}, {s(sY)}, {505*4}")
    A(f"v_sub_u32 {v(vt[2])}, {s(sT1)}, {v(vt[2])}")
    for nt in range(2): A(f"ds_write_b128 {v(vaYw)}, {v(acc[nt],4)} offset:{nt*1024}")
    A("s_waitcnt lgkmcnt(0)")
    pass
    y = Bf[2][0]; assert Bf[2][1] == y + 4
    y2 = Bf[3][0]; assert Bf[3][1] == y2 + 4
    A(f"ds_read_b128 {v(y,4)}, {v(vt[0])}")
    A(f"ds_read_b128 {v(y+4,4)}, {v(vt[0])} offset:16")
    A(f"ds_read_b32 {v(y2)}, {v(vt[1])}")
    A(f"ds_read_b32 {v(y2+1)}, {v(vt[2])} offset:24")
    for j in (2, 4, 6): A(f"ds_read2_b32 {v(y2+j,2)}, {v(vt[2])} offset0:{7-j} offset1:{6-j}")
    A("s_waitcnt lgkmcnt(5)")
    for j in range(8): A(f"v_fma_f32 {v(xf+j)}, {v(ga+j)}, {v(y+j)}, {v(xf+j)}")
    A("s_waitcnt lgkmcnt(0)")
    for j in range(8): A(f"v_fma_f32 {v(yy+j)}, {v(ga+j)}, {v(y2+j)}, {v(yy+j)}")
    for r in range(2):
        for j in range(4): A(f"v_cvt_pk_bf16_f32 {v(xrow[r]+j)}, {v(xg[r]+2*j)}, {v(xg[r]+2*j+1)}")
    A(f"v_add_u32 {v(vt[2])}, {WS_X1}, {v(vrow[0])}")
    A(f"v_add_u32 {v(vt[3])}, {WS_X1}, {v(vrow[1])}")
    A(f"global_store_dwordx4 {v(vt[2])}, {v(xrow[0],4)}, s[4:5] sc0 sc1")
    lab2 = f"{name}_bnomir1"
    A(f"s_cmp_eq_u32 {s(sMir)}, 0")
    A(f"s_cbranch_scc1 {lab2}")
    A(f"global_store_dwordx4 {v(vt[3])}, {v(xrow[1],4)}, s[4:5] sc0 sc1")
    A.label(lab2)
    for r in range(2):
        for j in range(4):
            A(f"v_lshlrev_b32 {v(xg[r]+2*j)}, 16, {v(xrow[r]+j)}")
            A(f"v_and_b32 {v(xg[r]+2*j+1)}, {s(sT0)}, {v(xrow[r]+j)}")
    S_ = [vt[0], vt[1]]; Q_ = [vt[4], vt[5]]
    for r in range(2):
        A(f"v_add_f32 {v(S_[r])}, {v(xg[r])}, {v(xg[r]+1)}")
        A(f"v_mul_f32 {v(Q_[r])}, {v(xg[r])}, {v(xg[r])}")
    for j in range(1, 8):
        for r in range(2):
            if j >= 2: A(f"v_add_f32 {v(S_[r])}, {v(S_[r])}, {v(xg[r]+j)}")
            A(f"v_fmac_f32 {v(Q_[r])}, {v(xg[r]+j)}, {v(xg[r]+j)}")
    chains = [S_[0], Q_[0], S_[1], Q_[1]]
    for mode, rm in (("quad_perm:[1,0,3,2]", "0xf"), ("quad_perm:[2,3,0,1]", "0xf"), ("row_half_mirror", "0xf"), ("row_mirror", "0xf"), ("row_bcast:15", "0xa"), ("row_bcast:31", "0xc")):
        for c_ in chains: A(f"v_add_f32_dpp {v(c_)}, {v(c_)}, {v(c_)} {mode} row_mask:{rm} bank_mask:0xf")
    for k, c_ in enumerate(chains): A(f"v_readlane_b32 {s(30+k)}, {v(c_)}, 63")
    A(f"v_mov_b32 {v(vt[6])}, 0x3b000000")
    for r in range(2):
        A(f"v_mul_f32 {v(S_[r])}, {s(30+2*r)}, {v(vt[6])}")
        A(f"v_mul_f32 {v(Q_[r])}, {s(31+2*r)}, {v(vt[6])}")
    for r in range(2): A(f"v_fma_f32 {v(Q_[r])}, -{v(S_[r])}, {v(S_[r])}, {v(Q_[r])}")
    for r in range(2): A(f"v_max_f32 {v(Q_[r])}, 0, {v(Q_[r])}")
    for r in range(2): A(f"v_add_f32 {v(Q_[r])}, 0x3727c5ac, {v(Q_[r])}")
    for r in range(2): A(f"v_rsq_f32 {v(Q_[r])}, {v(Q_[r])}")
    A(f"v_add_u32 {v(vt[2])}, {WS_H2}, {v(vrow[0])}")
    A(f"v_add_u32 {v(vt[3])}, {WS_H2}, {v(vrow[1])}")
    for r in range(2):
        for j in range(8): A(f"v_sub_f32 {v(xg[r]+j)}, {v(xg[r]+j)}, {v(S_[r])}")
    for r in range(2):
        for j in range(8): A(f"v_mul_f32 {v(xg[r]+j)}, {v(xg[r]+j)}, {v(Q_[r])}")
    for r in range(2):
        for j in range(8): A(f"v_fma_f32 {v(xg[r]+j)}, {v(xg[r]+j)}, {v(ocb+j)}, {v(sb+j)}")
    yo = [y, y2]
    for r in range(2):
        for j in range(4): A(f"v_cvt_pk_bf16_f32 {v(yo[r]+j)}, {v(xg[r]+2*j)}, {v(xg[r]+2*j+1)}")
    A(f"global_store_dwordx4 {v(vt[2])}, {v(y,4)}, s[4:5] sc0 sc1")
    A(f"s_cmp_eq_u32 {s(sMir)}, 0")
    A(f"s_cbranch_scc1 {name}_bfin")
    A(f"global_store_dwordx4 {v(vt[3])}, {v(y2,4)}, s[4:5] sc0 sc1")
    A.label(f"{name}_bfin")
    A(f"s_lshl_b32 {s(sT0)}, s2, 7")
    A(f"s_add_u32 {s(sT0)}, {s(sT0)}, {WS_FLG + FB_O}")
    arrive(3, 8, sT0, "b")
    A("s_barrier")
    A.label(f"{name}_bdone")
    ST.stamp()
    A(f"s_bfe_u32 {s(sRB)}, s2, 0x20001")
    A(f"s_bfe_u32 {s(sT0)}, s2, 0x30003")
    A(f"s_lshl3_add_u32 {s(sRB)}, {s(sRB)}, {s(sT0)}")
    A(f"s_and_b32 {s(sCC)}, s2, 1")
    A(f"s_lshr_b32 {s(sT0)}, s2, 6")
    A(f"s_lshl2_add_u32 {s(sCC)}, {s(sCC)}, {s(sT0)}")
    A(f"s_and_b32 {s(sTH)}, {s(sW)}, 1")
    A(f"s_bfe_u32 {s(sFH)}, {s(sW)}, 0x10001")
    vq, vi = 1, 2
    vtt = [3, 4]
    A(f"v_bfe_u32 v1, v0, 4, 2")
    A(f"v_and_b32 v2, 15, v0")
    A(f"s_lshl1_add_u32 {s(sT0)}, {s(sTH)}, {s(sFH)}")
    A(f"s_xor_b32 {s(sT1)}, {s(sT0)}, 1")
    A(f"v_lshl_add_u32 {v(vtt[0])}, {s(sT0)}, 4, {v(vi)}")
    A(f"v_lshl_add_u32 {v(vtt[1])}, {s(sT1)}, 4, {v(vi)}")
    A(f"s_cmp_ge_u32 {s(sW)}, 4")
    A(f"s_cbranch_scc1 {name}_loader")
    TILES = [(0, 0), (0, 1), (1, 0), (1, 1), (2, 0), (2, 1), (3, 0)]
    nvmax = [0]
    R = RegAlloc(5)
    vC = R.alloc(2)
    vtb = R.alloc(8, 4); vt = [vtb + k for k in range(8)]
    vH = [[R.alloc() for _ in range(2)] for _ in range(2)]
    vWa = [R.alloc() for _ in range(2)]; vWb = [R.alloc() for _ in range(2)]
    vLx = [R.alloc() for _ in range(2)]
    gt2 = R.alloc(16, 4)
    vpf = 252
    z2p = [R.alloc(2) for _ in range(7)]
    st1 = [R.alloc(2) for _ in range(2)]; st2 = [R.alloc(2) for _ in range(2)]
    acc1 = [R.alloc(4) for _ in range(7)]; acc = [acc1, acc1]
    cH = [[R.alloc() for _ in range(2)] for _ in range(2)]; nH = [[R.alloc() for _ in range(2)] for _ in range(2)]
    FH_ = [[[R.alloc(4) for _ in range(2)] for _ in range(2)] for _ in range(2)]
    FW = [[[R.alloc(4) for _ in range(4)] for _ in range(2)] for _ in range(2)]
    A(f"v_and_b32 {v(vt[0])}, 7, {v(vi)}")
    A(f"v_xor_b32 {v(vt[1])}, {v(vq)}, {v(vt[0])}")
    A(f"v_lshlrev_b32 {v(vt[1])}, 4, {v(vt[1])}")
    for hf in range(2):
        A(f"v_lshl_add_u32 {v(vH[hf][0])}, {v(vtt[hf])}, 7, {v(vt[1])}")
        A(f"v_xor_b32 {v(vH[hf][1])}, 64, {v(vH[hf][0])}")
    A(f"v_mul_u32_u24 {v(vt[1])}, {2*GS}, {v(vq)}")
    A(f"v_lshrrev_b32 {v(vt[2])}, 2, {v(vi)}")
    A(f"v_mul_u32_u24 {v(vt[2])}, 224, {v(vt[2])}")
    A(f"v_and_b32 {v(vt[3])}, 3, {v(vi)}")
    A(f"v_lshl_add_u32 {v(vt[1])}, {v(vt[3])}, 3, {v(vt[1])}")
    A(f"v_add_u32 {v(vt[1])}, {v(vt[1])}, {v(vt[2])}")
    A(f"s_lshl_b32 {s(sT0)}, {s(sFH)}, 7")
    A(f"s_add_u32 {s(sT0)}, {s(sT0)}, {W_OFF}")
    A(f"v_add_u32 {v(vWa[0])}, {s(sT0)}, {v(vt[1])}")
    A(f"v_add_u32 {v(vWb[0])}, {W_OFF+96}, {v(vt[1])}")
    A(f"v_add_u32 {v(vWa[1])}, {3*SLOT}, {v(vWa[0])}")
    A(f"v_add_u32 {v(vWb[1])}, {3*SLOT}, {v(vWb[0])}")
    A(f"s_mul_i32 {s(sT0)}, {s(sW)}, {XS}")
    A(f"s_add_u32 {s(sT0)}, {s(sT0)}, {X_OFF}")
    for hf in range(2):
        A(f"v_and_b32 {v(vLx[hf])}, 31, {v(vtt[hf])}")
        A(f"v_mul_u32_u24 {v(vLx[hf])}, 144, {v(vLx[hf])}")
        A(f"v_lshl_add_u32 {v(vLx[hf])}, {v(vq)}, 3, {v(vLx[hf])}")
        A(f"v_add_u32 {v(vLx[hf])}, {s(sT0)}, {v(vLx[hf])}")
    for hf in range(2):
        for r in range(2):
            A(f"v_mov_b32 {v(st1[hf]+r)}, 0"); A(f"v_mov_b32 {v(st2[hf]+r)}, 0")
    A(f"v_mov_b32 {v(vC)}, {fhex(GELU_C2)}")
    A(f"v_mov_b32 {v(vC+1)}, {fhex(GELU_C1)}")
    A("s_waitcnt lgkmcnt(0)")
    def readsZ(slot, buf, hregs, hoff):
        sg = slot // 3; so = (slot % 3) * SLOT
        o = []
        for ks in range(2):
            for hf in range(2): o.append(f"ds_read_b128 {v(FH_[buf][ks][hf],4)}, {v(hregs[hf][ks])} offset:{hoff}")
            for wf in range(4):
                for p in range(2):
                    base = vWa[sg] if wf < 3 else vWb[sg]
                    off = so + ks * 8 * GS + p * GS + (wf * 32 if wf < 3 else 0)
                    o.append(f"ds_read_b64_tr_b16 {v(FW[buf][ks][wf]+2*p,2)}, {v(base)} offset:{off}")
        return o
    def mfmasZ(buf):
        o = []
        for ks in range(2):
            for tl, (wf, hf) in enumerate(TILES):
                o.append(f"v_mfma_f32_16x16x32_bf16 {v(acc1[tl],4)}, {v(FW[buf][ks][wf],4)}, {v(FH_[buf][ks][hf],4)}, {v(acc1[tl],4)}")
        return o
    def zero_acc():
        for tl in range(7):
            for r in range(4): A(f"v_mov_b32 {v(acc1[tl]+r)}, 0")
    def z2_part1():
        A(f"s_mov_b32 {s(sT2)}, 0xffff0000")
        for grp in ([0, 1, 2, 3], [4, 5, 6]):
            for x in gelu_pk_multi([acc[0][tl] for tl in grp], gt2, vC): A(x)
            for tl in grp:
                ac = acc[0][tl]
                for h in range(2): A(f"v_cvt_pk_bf16_f32 {v(z2p[tl]+h)}, {v(ac+2*h)}, {v(ac+2*h+1)}")
            for k, tl in enumerate(grp):
                for h in range(2):
                    A(f"v_lshlrev_b32 {v(gt2+4*k+2*h)}, 16, {v(z2p[tl]+h)}")
                    A(f"v_and_b32 {v(gt2+4*k+2*h+1)}, {s(sT2)}, {v(z2p[tl]+h)}")
            for k, tl in enumerate(grp):
                hf = TILES[tl][1]
                for h in range(2):
                    A(pk("add", st1[hf], v(st1[hf], 2), v(gt2+4*k+2*h, 2)))
                    A(pk("fma", st2[hf], v(gt2+4*k+2*h, 2), v(gt2+4*k+2*h, 2), v(st2[hf], 2)))
        for hf in range(2):
            A(f"v_add_f32 {v(st1[hf])}, {v(st1[hf])}, {v(st1[hf]+1)}")
            A(f"v_add_f32 {v(st2[hf])}, {v(st2[hf])}, {v(st2[hf]+1)}")
        rs4 = (st1[0], st2[0], st1[1], st2[1])
        for k, r in enumerate(rs4): A(f"v_mov_b32 {v(gt2+k)}, {v(r)}")
        for k, r in enumerate(rs4): A(f"v_permlane16_swap_b32 {v(r)}, {v(gt2+k)}")
        for k, r in enumerate(rs4): A(f"v_add_f32 {v(r)}, {v(r)}, {v(gt2+k)}")
        for k, r in enumerate(rs4): A(f"v_mov_b32 {v(gt2+k)}, {v(r)}")
        for k, r in enumerate(rs4): A(f"v_permlane32_swap_b32 {v(r)}, {v(gt2+k)}")
        for k, r in enumerate(rs4): A(f"v_add_f32 {v(r)}, {v(r)}, {v(gt2+k)}")
        for x in [f"v_cmp_eq_u32 vcc, 1, {v(vq)}",
           f"v_mov_b32 {v(vt[4])}, 0x7fc00000",
           f"s_lshl1_add_u32 {s(sT1)}, {s(sRB)}, {s(sTH)}",
           f"v_cndmask_b32 {v(vt[2])}, {v(st1[0])}, {v(st1[1])}, vcc",
           f"v_cndmask_b32 {v(vt[3])}, {v(st2[0])}, {v(st2[1])}, vcc",
           f"v_cndmask_b32 {v(vt[0])}, {v(vtt[0])}, {v(vtt[1])}, vcc",
           f"v_cmp_eq_u32 vcc, -1, {v(vt[2])}",
           f"s_lshl_b32 {s(sT1)}, {s(sT1)}, 12",
           f"v_cndmask_b32 {v(vt[2])}, {v(vt[2])}, {v(vt[4])}, vcc",
           f"v_cmp_eq_u32 vcc, -1, {v(vt[3])}",
           f"s_add_u32 {s(sT1)}, {s(sT1)}, {WS_STAT}",
           f"v_cndmask_b32 {v(vt[3])}, {v(vt[3])}, {v(vt[4])}, vcc",
           f"s_lshl1_add_u32 {s(sT2)}, {s(sCC)}, {s(sFH)}",
           f"s_lshl_b32 {s(sT2)}, {s(sT2)}, 8",
           f"s_add_u32 {s(sT2)}, {s(sT2)}, {s(sT1)}",
           f"v_and_b32 {v(vt[0])}, 31, {v(vt[0])}",
           f"v_lshl_add_u32 {v(vt[0])}, {v(vt[0])}, 3, {s(sT2)}",
           "s_mov_b32 exec_hi, 0",
           f"global_store_dwordx2 {v(vt[0])}, {v(vt[2],2)}, s[4:5] sc0 sc1",
           "s_mov_b32 exec_hi, -1"]: A(x)
        for tl, (wf, hf) in enumerate(TILES):
            A(f"ds_write_b64 {v(vLx[hf])}, {v(z2p[tl],2)} offset:{wf*32}")
    def touches():
        A(f"v_and_b32 {v(vt[5])}, 63, v0")
        A(f"s_lshr_b32 {s(sT1)}, s2, 3")
        A(f"s_lshl2_add_u32 {s(sT1)}, {s(sT1)}, {s(sW)}")
        A(f"s_bfe_u32 {s(sT0)}, s2, 0x20001")
        A(f"s_lshl_b32 {s(sT0)}, {s(sT0)}, 21")
        A(f"s_lshl_b32 {s(sT2)}, {s(sT1)}, 14")
        A(f"s_add_u32 {s(sT0)}, {s(sT0)}, {s(sT2)}")
        if pfhalf:
            A(f"s_and_b32 {s(sT2)}, s2, 1")
            A(f"s_lshl_b32 {s(sT2)}, {s(sT2)}, 13")
            A(f"s_add_u32 {s(sT0)}, {s(sT0)}, {s(sT2)}")
        A(f"v_lshl_add_u32 {v(vt[1])}, {v(vt[5])}, 7, {s(sT0)}")
        A(f"global_load_dword {v(vpf)}, {v(vt[1])}, s[12:13]")
        if not pfhalf:
            A(f"v_add_u32 {v(vt[1])}, 8192, {v(vt[1])}")
            A(f"global_load_dword {v(vpf+1)}, {v(vt[1])}, s[12:13]")
        lab = f"{name}_nowo"
        A(f"s_cmp_ge_u32 {s(sT1)}, 56")
        A(f"s_cbranch_scc1 {lab}")
        A(f"v_lshl_add_u32 {v(vt[1])}, {s(sT1)}, 6, {v(vt[5])}")
        A(f"v_lshrrev_b32 {v(vt[2])}, 2, {v(vt[1])}")
        A(f"v_and_b32 {v(vt[1])}, 3, {v(vt[1])}")
        A(f"v_lshlrev_b32 {v(vt[2])}, 10, {v(vt[2])}")
        A(f"v_lshl_add_u32 {v(vt[2])}, {v(vt[1])}, 7, {v(vt[2])}")
        A(f"s_and_b32 {s(sT0)}, s2, 1")
        A(f"s_lshl_b32 {s(sT0)}, {s(sT0)}, 9")
        A(f"v_add_u32 {v(vt[2])}, {s(sT0)}, {v(vt[2])}")
        A(f"global_load_dword {v(vpf+2)}, {v(vt[2])}, s[16:17]")
        A.label(lab)
    sZ = 43
    zero_acc()
    A(f"s_mov_b32 {s(sZ)}, 0")
    A("s_barrier")
    A("s_barrier")
    for r in readsZ(0, 0, vH, 0): A(r)
    zl = f"{name}_zloop"; zc = f"{name}_zcont"
    A.label(zl)
    A(f"s_and_b32 {s(sT0)}, {s(sZ)}, 1")
    A(f"s_lshl_b32 {s(sT0)}, {s(sT0)}, 15")
    A(f"s_xor_b32 {s(sT1)}, {s(sT0)}, 32768")
    for hf in range(2):
        for ks in range(2):
            A(f"v_add_u32 {v(cH[hf][ks])}, {s(sT0)}, {v(vH[hf][ks])}")
            A(f"v_add_u32 {v(nH[hf][ks])}, {s(sT1)}, {v(vH[hf][ks])}")
    for j in range(4):
        A("s_waitcnt lgkmcnt(0)")
        A("s_barrier")
        rd = readsZ((j + 1) % 4, (j + 1) & 1, cH if j < 3 else nH, (j + 1) * 8192 if j < 3 else 0)
        for x in interleave2(mfmasZ(j & 1), rd): A(x)
    A(f"s_add_u32 {s(sZ)}, {s(sZ)}, 1")
    A(f"s_cmp_lg_u32 {s(sZ)}, 2")
    A(f"s_cbranch_scc1 {zc}")
    if prefetch and pfpos == 0: touches()
    z2_part1()
    zero_acc()
    A.label(zc)
    A(f"s_cmp_lt_u32 {s(sZ)}, 4")
    A(f"s_cbranch_scc1 {zl}")
    ST.stamp()
    A("s_waitcnt lgkmcnt(0)")
    vLa = [vH[0][0], vH[1][0]]; vL4 = vH[0][1]
    for hf in range(2):
        A(f"v_mul_u32_u24 {v(vLa[hf])}, 224, {v(vtt[hf])}")
        A(f"v_lshl_add_u32 {v(vLa[hf])}, {v(vq)}, 3, {v(vLa[hf])}")
        A(f"v_add_u32 {v(vLa[hf])}, {ZT}, {v(vLa[hf])}")
    A(f"v_add_u32 {v(vL4)}, 96, {v(vLa[0])}")
    A(f"s_lshl_b32 {s(sT0)}, {s(sFH)}, 7")
    for hf in range(2): A(f"v_add_u32 {v(vLa[hf])}, {s(sT0)}, {v(vLa[hf])}")
    gt = FW[0][0][0]
    for grp in ([0, 1, 2, 3], [4, 5, 6]):
        for x in gelu_pk_multi([acc[1][tl] for tl in grp], gt, vC): A(x)
        for tl in grp:
            wf, hf = TILES[tl]; ac = acc[1][tl]
            for h in range(2): A(f"v_cvt_pk_bf16_f32 {v(ac+h)}, {v(ac+2*h)}, {v(ac+2*h+1)}")
            if wf < 3: A(f"ds_write_b64 {v(vLa[hf])}, {v(ac,2)} offset:{wf*32}")
            else: A(f"ds_write_b64 {v(vL4)}, {v(ac,2)}")
    nvmax[0] = max(nvmax[0], R.hi)
    R = RegAlloc(5)
    vA = R.alloc(); vB = [R.alloc() for _ in range(2)]
    cA = R.alloc(); cB = [R.alloc() for _ in range(2)]
    vtb = R.alloc(8, 4); vt = [vtb + k for k in range(8)]
    accg = [[R.alloc(4) for _ in range(2)] for _ in range(7)]
    FA = [[R.alloc(4) for _ in range(7)] for _ in range(2)]
    FB = [[R.alloc(4) for _ in range(2)] for _ in range(2)]
    vb = R.alloc(); vtw = R.alloc()
    vxw = R.alloc(); vxr = R.alloc(); vz1 = R.alloc(); vz = R.alloc(4); vrb = R.alloc()
    A("s_waitcnt lgkmcnt(0)")
    A(f"v_lshl_add_u32 {v(vtw)}, {s(sW)}, 4, {v(vi)}")
    A(f"v_lshl_add_u32 {v(vt[0])}, {s(sRB)}, 6, {v(vtw)}")
    A(f"v_lshlrev_b32 {v(vt[0])}, 1, {v(vt[0])}")
    A(f"global_load_ushort {v(vb)}, {v(vt[0])}, s[36:37]")
    A(f"s_and_b32 {s(sT0)}, {s(sW)}, 1")
    A(f"s_lshl_b32 {s(sT0)}, {s(sT0)}, 2")
    A(f"v_add_u32 {v(vt[4])}, {s(sT0)}, {v(vq)}")
    A(f"v_and_b32 {v(vt[2])}, 7, {v(vi)}")
    A(f"v_xor_b32 {v(vt[1])}, {v(vt[4])}, {v(vt[2])}")
    A(f"v_lshlrev_b32 {v(vt[1])}, 4, {v(vt[1])}")
    A(f"v_lshl_add_u32 {v(vA)}, {v(vi)}, 7, {v(vt[1])}")
    A(f"v_add_u32 {v(vt[1])}, {B_OFF}, {v(vt[1])}")
    A(f"v_lshl_add_u32 {v(vB[0])}, {v(vtw)}, 7, {v(vt[1])}")
    A(f"v_xor_b32 {v(vt[3])}, 16, {v(vtw)}")
    A(f"v_lshl_add_u32 {v(vB[1])}, {v(vt[3])}, 7, {v(vt[1])}")
    A(f"v_and_b32 {v(vt[0])}, 63, v0")
    A(f"s_mul_i32 {s(sT0)}, {s(sW)}, 7168")
    A(f"s_add_u32 {s(sT0)}, {s(sT0)}, {GX}")
    A(f"v_lshl_add_u32 {v(vxw)}, {v(vt[0])}, 4, {s(sT0)}")
    A(f"s_xor_b32 {s(sT1)}, {s(sW)}, 1")
    A(f"s_mul_i32 {s(sT1)}, {s(sT1)}, 7168")
    A(f"s_add_u32 {s(sT1)}, {s(sT1)}, {GX}")
    A(f"v_lshl_add_u32 {v(vxr)}, {v(vt[0])}, 4, {s(sT1)}")
    A(f"v_mul_u32_u24 {v(vz1)}, 224, {v(vtw)}")
    A(f"v_lshl_add_u32 {v(vz1)}, {v(vq)}, 3, {v(vz1)}")
    A(f"v_add_u32 {v(vz1)}, {ZT}, {v(vz1)}")
    for j in range(4):
        A(f"v_add_u32 {v(vt[4])}, {64*j}, {v(vt[0])}")
        div14(A, vt[5], vt[6], vt[4], vt[7])
        A(f"v_mul_u32_u24 {v(vt[5])}, 1792, {v(vt[5])}")
        A(f"v_lshl_add_u32 {v(vz+j)}, {v(vt[6])}, 4, {v(vt[5])}")
    A(f"s_lshl2_add_u32 {s(sT0)}, {s(sRB)}, {s(sW)}")
    A(f"s_mul_i32 {s(sT0)}, {s(sT0)}, {16*1792}")
    A(f"s_mul_i32 {s(sT1)}, {s(sCC)}, 224")
    A(f"s_add_u32 {s(sT0)}, {s(sT0)}, {s(sT1)}")
    A(f"s_add_u32 {s(sT0)}, {s(sT0)}, {WS_P0}")
    for j in range(4): A(f"v_add_u32 {v(vz+j)}, {s(sT0)}, {v(vz+j)}")
    A(f"s_mul_i32 {s(sT0)}, {s(sW)}, {16*224}")
    A(f"s_add_u32 {s(sT0)}, {s(sT0)}, {ZT}")
    A(f"v_lshl_add_u32 {v(vrb)}, {v(vt[0])}, 4, {s(sT0)}")
    A(f"s_mov_b32 {s(sSlot)}, 0")
    A(f"s_mov_b32 {s(sI)}, 0")
    def rdsG(buf, a_, b_):
        return [f"ds_read_b128 {v(FB[buf][nb],4)}, {v(b_[nb])}" for nb in range(2)] + \
               [f"ds_read_b128 {v(FA[buf][fa],4)}, {v(a_)} offset:{fa*2048}" for fa in range(7)]
    def mmsG(buf, first=False):
        o = []
        for fa in range(7):
            for nb in range(2):
                c = "0" if first else v(accg[fa][nb], 4)
                o.append(f"v_mfma_f32_16x16x32_bf16 {v(accg[fa][nb],4)}, {v(FA[buf][fa],4)}, {v(FB[buf][nb],4)}, {c}")
        return o
    def adv():
        A(f"s_add_u32 {s(sSlot)}, {s(sSlot)}, {STAGE}")
        A(f"s_cmp_ge_u32 {s(sSlot)}, {RING}")
        A(f"s_cselect_b32 {s(sSlot)}, 0, {s(sSlot)}")
        A(f"v_add_u32 {v(cA)}, {s(sSlot)}, {v(vA)}")
        for nb in range(2): A(f"v_add_u32 {v(cB[nb])}, {s(sSlot)}, {v(vB[nb])}")
    ST.stamp()
    A("s_barrier")
    A("s_barrier")
    ST.stamp()
    for r in rdsG(0, vA, vB): A(r)
    adv()
    A("s_waitcnt lgkmcnt(0)")
    A("s_barrier")
    for x in interleave2(mmsG(0, True), rdsG(1, cA, cB)): A(x)
    loop = f"{name}_gloop"
    A.label(loop)
    for buf in (1, 0):
        adv()
        A("s_waitcnt lgkmcnt(0)")
        A("s_barrier")
        for x in interleave2(mmsG(buf), rdsG(buf ^ 1, cA, cB)): A(x)
    A(f"s_add_u32 {s(sI)}, {s(sI)}, 1")
    A(f"s_cmp_lt_u32 {s(sI)}, 15")
    A(f"s_cbranch_scc1 {loop}")
    A("s_waitcnt lgkmcnt(0)")
    for x in mmsG(1): A(x)
    ST.stamp()
    for fa in range(7): A(f"ds_write_b128 {v(vxw)}, {v(accg[fa][1],4)} offset:{fa*1024}")
    A("s_waitcnt vmcnt(0) lgkmcnt(0)")
    A(f"v_lshlrev_b32 {v(vb)}, 16, {v(vb)}")
    A("s_barrier")
    for fa in range(7): A(f"ds_read_b128 {v(FA[0][fa],4)}, {v(vxr)} offset:{fa*1024}")
    zr = [FA[1][fa] for fa in range(7)]
    for fa in range(7): A(f"ds_read_b64 {v(zr[fa],2)}, {v(vz1)} offset:{fa*32}")
    A(f"v_mov_b32 {v(FB[1][0])}, {v(vb)}")
    A(f"v_mov_b32 {v(FB[1][0]+1)}, {v(vb)}")
    A("s_mov_b32 s33, 0xffff0000")
    for fa in range(7):
        ac = accg[fa][0]; pr = FA[0][fa]
        A(f"s_waitcnt lgkmcnt({13 - fa})")
        for h in (0, 2): A(pk("add", ac + h, v(ac + h, 2), v(pr + h, 2)))
        for h in (0, 2): A(pk("add", ac + h, v(ac + h, 2), v(FB[1][0], 2)))
    for fa in range(7):
        ac = accg[fa][0]; pr = FA[0][fa]; z = zr[fa]
        A(f"s_waitcnt lgkmcnt({6 - fa})")
        for h in range(2):
            A(f"v_lshlrev_b32 {v(z+2)}, 16, {v(z+h)}")
            A(f"v_and_b32 {v(z+3)}, s33, {v(z+h)}")
            A(pk("mul", ac + 2*h, v(ac + 2*h, 2), v(z + 2, 2)))
            A(f"v_cvt_pk_bf16_f32 {v(pr+h)}, {v(ac+2*h)}, {v(ac+2*h+1)}")
        A(f"ds_write_b64 {v(vz1)}, {v(pr,2)} offset:{fa*32}")
    A("s_waitcnt lgkmcnt(0)")
    ob = [FA[1][j] for j in range(4)]
    for j in range(4): A(f"ds_read_b128 {v(ob[j],4)}, {v(vrb)} offset:{j*1024}")
    for j in range(3):
        A(f"s_waitcnt lgkmcnt({3-j})")
        A(f"global_store_dwordx4 {v(vz+j)}, {v(ob[j],4)}, s[4:5] sc0 sc1")
    A("s_waitcnt lgkmcnt(0)")
    A("s_mov_b32 exec_hi, 0")
    A(f"global_store_dwordx4 {v(vz+3)}, {v(ob[3],4)}, s[4:5] sc0 sc1")
    A("s_mov_b32 exec_hi, -1")
    nvmax[0] = max(nvmax[0], R.hi)
    R = RegAlloc(5)
    vtw2 = R.alloc()
    vtb = R.alloc(8, 4); vt = [vtb + k for k in range(8)]
    vW = [[R.alloc() for _ in range(4)] for _ in range(2)]
    vP = [[R.alloc() for _ in range(2)] for _ in range(2)]
    acco = [[R.alloc(4) for _ in range(2)] for _ in range(4)]
    FWo = [[[R.alloc(4) for _ in range(4)] for _ in range(2)] for _ in range(2)]
    FP = [[[R.alloc(4) for _ in range(2)] for _ in range(2)] for _ in range(2)]
    gb = [R.alloc(4) for _ in range(4)]
    vcnt = R.alloc(2)
    A(f"s_lshl3_add_u32 {s(sT0)}, {s(sRB)}, {s(sCC)}")
    A(f"s_lshl_b32 {s(sT0)}, {s(sT0)}, 7")
    A(f"s_add_u32 {s(sT0)}, {s(sT0)}, {WS_FLG + FT_O}")
    arrive(1, 4, sT0, "p")
    ST.stamp()
    A("s_barrier")
    A(f"v_lshl_add_u32 {v(vtw2)}, {s(sW)}, 4, {v(vi)}")
    A(f"s_and_b32 {s(sT2)}, {s(sW)}, 1")
    A(f"v_lshrrev_b32 {v(vt[0])}, 2, {v(vi)}")
    A(f"v_lshl_add_u32 {v(vt[0])}, {v(vq)}, 3, {v(vt[0])}")
    A(f"v_lshlrev_b32 {v(vt[0])}, 7, {v(vt[0])}")
    A(f"v_and_b32 {v(vt[1])}, 1, {v(vi)}")
    A(f"v_lshl_add_u32 {v(vt[0])}, {v(vt[1])}, 3, {v(vt[0])}")
    A(f"s_lshl_b32 {s(sT0)}, {s(sT2)}, 13")
    A(f"v_add_u32 {v(vt[0])}, {s(sT0)}, {v(vt[0])}")
    A(f"v_bfe_u32 {v(vt[1])}, {v(vi)}, 3, 1")
    A(f"v_and_b32 {v(vt[2])}, 1, {v(vq)}")
    A(f"v_lshl_or_b32 {v(vt[1])}, {v(vt[2])}, 1, {v(vt[1])}")
    A(f"v_lshlrev_b32 {v(vt[1])}, 1, {v(vt[1])}")
    A(f"v_bfe_u32 {v(vt[2])}, {v(vi)}, 1, 1")
    A(f"v_xor_b32 {v(vt[1])}, {v(vt[1])}, {v(vt[2])}")
    for dt in range(4):
        A(f"v_xor_b32 {v(vt[3])}, {2*dt}, {v(vt[1])}")
        A(f"v_lshl_add_u32 {v(vW[0][dt])}, {v(vt[3])}, 4, {v(vt[0])}")
        A(f"v_add_u32 {v(vW[1][dt])}, 65536, {v(vW[0][dt])}")
    A(f"v_and_b32 {v(vt[0])}, 7, {v(vi)}")
    A(f"v_xor_b32 {v(vt[1])}, {v(vq)}, {v(vt[0])}")
    A(f"v_lshlrev_b32 {v(vt[1])}, 4, {v(vt[1])}")
    A(f"s_add_u32 {s(sT0)}, {s(sT0)}, {OP}")
    A(f"v_add_u32 {v(vt[1])}, {s(sT0)}, {v(vt[1])}")
    A(f"v_lshl_add_u32 {v(vP[0][0])}, {v(vtw2)}, 7, {v(vt[1])}")
    A(f"v_xor_b32 {v(vP[1][0])}, 2048, {v(vP[0][0])}")
    for tl in range(2): A(f"v_xor_b32 {v(vP[tl][1])}, 64, {v(vP[tl][0])}")
    A(f"s_lshl_b32 {s(sT0)}, {s(sCC)}, 8")
    A(f"s_add_u32 {s(sT0)}, {s(sT0)}, {WS_MOD + 2560*4}")
    A(f"v_lshl_add_u32 {v(vt[0])}, {v(vq)}, 4, {s(sT0)}")
    for dt in range(4): A(f"global_load_dwordx4 {v(gb[dt],4)}, {v(vt[0])}, s[4:5] offset:{dt*64}")
    assert (OP + 2048) % 4096 == 2048 and OP % 4096 == 0
    def readsO(st, buf):
        g = st // 4; so = (st % 4) * 16384; po = (st % NSO) * PSLOT
        o = []
        for ks in range(2):
            for tl in range(2): o.append(f"ds_read_b128 {v(FP[buf][ks][tl],4)}, {v(vP[tl][ks])} offset:{po}")
            for dt in range(4):
                for p in range(2):
                    o.append(f"ds_read_b64_tr_b16 {v(FWo[buf][ks][dt]+2*p,2)}, {v(vW[g][dt])} offset:{so + ks*4096 + p*512}")
        return o
    def mfmasO(st, buf):
        o = []
        for ks in range(2):
            for dt in range(4):
                for tl in range(2):
                    c = "0" if st == 0 and ks == 0 else v(acco[dt][tl], 4)
                    o.append(f"v_mfma_f32_16x16x32_bf16 {v(acco[dt][tl],4)}, {v(FWo[buf][ks][dt],4)}, {v(FP[buf][ks][tl],4)}, {c}")
        return o
    XT = OP + ((NSTO - 3) % NSO) * PSLOT
    E_OFF = 0
    consumer_full(A, NSTO, readsO, mfmasO)
    ST.stamp()
    A(f"v_and_b32 {v(vt[0])}, 63, v0")
    A(f"s_lshl_b32 {s(sT0)}, {s(sW)}, 12")
    A(f"s_add_u32 {s(sT0)}, {s(sT0)}, {E_OFF}")
    A(f"v_lshl_add_u32 {v(vt[1])}, {v(vt[0])}, 4, {s(sT0)}")
    A(f"v_xor_b32 {v(vt[2])}, 4096, {v(vt[1])}")
    for dt in range(4): A(f"ds_write_b128 {v(vt[1])}, {v(acco[dt][1],4)} offset:{dt*1024}")
    va = [vt[4], vt[5], vt[6], vt[7]]
    A(f"v_and_b32 {v(vt[3])}, 7, {v(vi)}")
    A(f"v_lshrrev_b32 {v(vW[0][0])}, 1, {v(vq)}")
    A(f"v_xor_b32 {v(vt[3])}, {v(vt[3])}, {v(vW[0][0])}")
    A(f"v_and_b32 {v(vW[0][0])}, 1, {v(vq)}")
    A(f"v_lshlrev_b32 {v(vW[0][0])}, 3, {v(vW[0][0])}")
    A(f"v_lshl_add_u32 {v(vW[0][0])}, {v(vtw2)}, 7, {v(vW[0][0])}")
    A(f"v_add_u32 {v(vW[0][0])}, {XT}, {v(vW[0][0])}")
    for dt in range(4):
        A(f"v_xor_b32 {v(vW[0][1])}, {2*dt}, {v(vt[3])}")
        A(f"v_lshl_add_u32 {v(va[dt])}, {v(vW[0][1])}, 4, {v(vW[0][0])}")
    vrb2 = vW[1][0]; vgo = vW[1][1]
    A(f"v_lshrrev_b32 {v(vW[1][2])}, 3, {v(vt[0])}")
    A(f"v_and_b32 {v(vW[1][3])}, 7, {v(vt[0])}")
    A(f"v_xor_b32 {v(vrb2)}, {v(vW[1][2])}, {v(vW[1][3])}")
    A(f"v_lshlrev_b32 {v(vrb2)}, 4, {v(vrb2)}")
    A(f"v_lshl_add_u32 {v(vrb2)}, {v(vW[1][2])}, 7, {v(vrb2)}")
    A(f"s_lshl_b32 {s(sT0)}, {s(sW)}, 11")
    A(f"s_add_u32 {s(sT0)}, {s(sT0)}, {XT}")
    A(f"v_add_u32 {v(vrb2)}, {s(sT0)}, {v(vrb2)}")
    A(f"v_lshlrev_b32 {v(vgo)}, 10, {v(vW[1][2])}")
    A(f"v_lshl_add_u32 {v(vgo)}, {v(vW[1][3])}, 4, {v(vgo)}")
    A(f"s_lshl2_add_u32 {s(sT0)}, {s(sRB)}, {s(sW)}")
    A(f"s_lshl_b32 {s(sT0)}, {s(sT0)}, 14")
    A(f"s_lshl_b32 {s(sT1)}, {s(sCC)}, 7")
    A(f"s_add_u32 {s(sT0)}, {s(sT0)}, {s(sT1)}")
    A(f"v_add_u32 {v(vgo)}, {s(sT0)}, {v(vgo)}")
    A("s_waitcnt vmcnt(0) lgkmcnt(0)")
    A("s_barrier")
    for dt in range(4): A(f"ds_read_b128 {v(FWo[0][0][dt],4)}, {v(vt[2])} offset:{dt*1024}")
    xa = [FWo[0][1][dt] for dt in range(4)]
    for dt in range(4): A(f"ds_read_b64 {v(xa[dt],2)}, {v(va[dt])}")
    A(f"s_mov_b32 {s(sT0)}, 0xffff0000")
    for dt in range(4):
        ac = acco[dt][0]; pr = FWo[0][0][dt]; x = xa[dt]
        A(f"s_waitcnt lgkmcnt({7-dt})")
        for h in (0, 2): A(pk("add", ac + h, v(ac + h, 2), v(pr + h, 2)))
        A(f"s_waitcnt lgkmcnt({3-dt})")
        for h in range(2):
            A(f"v_lshlrev_b32 {v(x+2)}, 16, {v(x+h)}")
            A(f"v_and_b32 {v(x+3)}, {s(sT0)}, {v(x+h)}")
            A(pk("fma", pr, v(ac + 2*h, 2), v(gb[dt] + 2*h, 2), v(x + 2, 2)))
            A(f"v_cvt_pk_bf16_f32 {v(ac+h)}, {v(pr)}, {v(pr+1)}")
        A(f"ds_write_b64 {v(va[dt])}, {v(ac,2)}")
    A("s_waitcnt lgkmcnt(0)")
    ob = [FP[0][0][0], FP[0][0][1]]
    for u in range(2): A(f"ds_read_b128 {v(ob[u],4)}, {v(vrb2)} offset:{u*1024}")
    A("s_waitcnt lgkmcnt(1)")
    A(f"global_store_dwordx4 {v(vgo)}, {v(ob[0],4)}, s[38:39]")
    A(f"v_add_u32 {v(vgo)}, 8192, {v(vgo)}")
    A("s_waitcnt lgkmcnt(0)")
    A(f"global_store_dwordx4 {v(vgo)}, {v(ob[1],4)}, s[38:39]")
    if stamps:
        ST.stamp(); ST.flush(4, vt[4])
    A("s_endpgm")
    nvmax[0] = max(nvmax[0], R.hi)
    A.label(f"{name}_loader")
    STL = Stamps(A, on=stamps, kidx=0, base=70)
    R = RegAlloc(5)
    voW = [R.alloc() for _ in range(4)]; voH = [R.alloc() for _ in range(2)]
    vl = R.alloc(); t0 = R.alloc(); t1 = R.alloc(); t2 = R.alloc(); t3 = R.alloc()
    vtb = R.alloc(8, 4); vt = [vtb + k for k in range(8)]
    za = [R.alloc(4) for _ in range(4)]
    z2p = [R.alloc(2) for _ in range(7)]
    st1 = [R.alloc(2) for _ in range(2)]
    pol = [R.alloc(4) for _ in range(4)]
    vrow = [R.alloc() for _ in range(2)]; vLa = [R.alloc() for _ in range(2)]
    vo = [R.alloc() for _ in range(6)]
    vcn = R.alloc(2)
    sLw, sWk, sHk, sLW, sLH = 29, 30, 31, 32, 33
    A("s_mov_b32 s10, %d" % (512 * WROW)); A("s_mov_b32 s11, 0x20000")
    A("s_mov_b32 s6, %d" % (32 * MB)); A("s_mov_b32 s7, 0x20000")
    A(f"s_sub_u32 {s(sLw)}, {s(sW)}, 4")
    A(f"v_and_b32 {v(vl)}, 63, v0")
    div14(A, t0, t1, vl, t2)
    A(f"v_mul_u32_u24 {v(t0)}, {WROW}, {v(t0)}")
    A(f"v_lshl_add_u32 {v(t0)}, {v(t1)}, 4, {v(t0)}")
    A(f"s_mul_i32 {s(sT0)}, {s(sLw)}, {16*WROW}")
    A(f"v_add_u32 {v(voW[0])}, {s(sT0)}, {v(t0)}")
    for g in range(1, 4): A(f"v_add_u32 {v(voW[g])}, {g*(4*WROW - GS)}, {v(voW[0])}")
    A(f"v_lshrrev_b32 {v(t0)}, 3, {v(vl)}")
    A(f"v_and_b32 {v(t1)}, 7, {v(vl)}")
    A(f"v_xor_b32 {v(t1)}, {v(t1)}, {v(t0)}")
    A(f"v_lshlrev_b32 {v(t1)}, 4, {v(t1)}")
    A(f"v_lshl_add_u32 {v(t0)}, {v(t0)}, 10, {v(t1)}")
    A(f"s_lshl_b32 {s(sT0)}, {s(sLw)}, 14")
    A(f"v_add_u32 {v(voH[0])}, {s(sT0)}, {v(t0)}")
    A(f"v_add_u32 {v(voH[1])}, {8192-1024}, {v(voH[0])}")
    A(f"s_mul_i32 {s(sWk)}, {s(sCC)}, 224")
    A(f"s_lshl_b32 {s(sHk)}, {s(sRB)}, 16")
    A(f"s_add_u32 {s(sHk)}, {s(sHk)}, {WS_H2}")
    A(f"s_mul_i32 {s(sLW)}, {s(sLw)}, {4*GS}")
    A(f"s_lshl_b32 {s(sLH)}, {s(sLw)}, 11")
    A("s_waitcnt lgkmcnt(0)")
    def issueZ(st, w=True, h=True):
        half, kc = st >> 3, st & 7; slot = st % NSZ
        if w:
            A(f"s_add_u32 m0, {s(sLW)}, {W_OFF + slot*SLOT}")
            A(f"s_add_u32 {s(sT0)}, {s(sWk)}, {kc*64*WROW + (1792 if half == 0 else 0)}")
            A("s_mov_b32 exec_hi, 0x00ffffff")
            for g in range(4):
                A(f"buffer_load_dwordx4 {v(voW[g])}, s[8:11], {s(sT0)} offen offset:{g*GS} lds")
            A("s_mov_b32 exec_hi, -1")
        if half == 0 and h:
            A(f"s_add_u32 m0, {s(sLH)}, {kc*8192}")
            A(f"s_add_u32 {s(sT0)}, {s(sHk)}, {kc*128}")
            for j in range(2):
                A(f"buffer_load_dwordx4 {v(voH[j])}, s[4:7], {s(sT0)} offen offset:{j*1024} lds")
    for st in range(NSZ): issueZ(st, h=False)
    def addrB(va_):
        a, b_, c_ = vt[0], vt[1], vt[2]
        A(f"s_lshr_b32 {s(sT1)}, {s(sRB)}, 3")
        A(f"s_sub_u32 {s(sT2)}, 31, {s(sRB)}")
        A(f"s_lshr_b32 {s(sT2)}, {s(sT2)}, 3")
        A(f"v_cmp_lt_u32 vcc, 32, {v(va_)}")
        A(f"v_subrev_u32 {v(a)}, 32, {v(va_)}")
        A(f"v_cndmask_b32 {v(a)}, {v(va_)}, {v(a)}, vcc")
        A(f"v_mov_b32 {v(b_)}, {s(sT1)}")
        A(f"v_mov_b32 {v(c_)}, {s(sT2)}")
        A(f"v_cndmask_b32 {v(b_)}, {v(b_)}, {v(c_)}, vcc")
        A(f"v_and_b32 {v(c_)}, 7, {v(a)}")
        A(f"v_lshl_add_u32 {v(c_)}, {v(b_)}, 3, {v(c_)}")
        A(f"v_lshrrev_b32 {v(va_)}, 3, {v(a)}")
        A(f"v_lshl_add_u32 {v(c_)}, {v(va_)}, 5, {v(c_)}")
        A(f"v_add_u32 {v(b_)}, 128, {v(b_)}")
        A(f"v_cmp_eq_u32 vcc, 32, {v(a)}")
        A(f"v_cndmask_b32 {v(c_)}, {v(c_)}, {v(b_)}, vcc")
        A(f"s_mov_b32 {s(sT1)}, {WS_FLG + FB_O}")
        A(f"v_lshl_add_u32 {v(va_)}, {v(c_)}, 7, {s(sT1)}")
    wait_flags("b", sT2, 64, False, addrB)
    if stamps: STL.n = 5 if False else STL.n
    for st in range(NSZ): issueZ(st, w=False)
    le = f"{name}_noep"
    A(f"s_or_b32 {s(sT0)}, s2, {s(sLw)}")
    A(f"s_cbranch_scc1 {le}")
    A(f"v_mov_b32 v244, {WS_EPOCH}")
    A(f"v_mov_b32 v245, {s(sTAG)}")
    A("s_mov_b64 exec, 1")
    A("global_store_dword v244, v245, s[4:5] sc0 sc1")
    A("s_mov_b64 exec, -1")
    A.label(le)
    A(f"v_lshrrev_b32 {v(t0)}, 3, {v(vl)}")
    A(f"v_lshl_add_u32 {v(t0)}, {v(t0)}, 12, {v(t1)}")
    sL1, sL2, sK1 = 40, 41, 42
    SR1, SR2 = 44, 48
    A(f"s_lshl_b32 {s(sT0)}, {s(sLw)}, 3")
    A(f"s_mov_b32 {s(sT1)}, 0x060c0600")
    A(f"s_lshr_b32 {s(sT1)}, {s(sT1)}, {s(sT0)}")
    A(f"s_and_b32 {s(sT1)}, {s(sT1)}, 0xff")
    A(f"s_mov_b32 {s(sT2)}, 0x03000903")
    A(f"s_lshr_b32 {s(sT2)}, {s(sT2)}, {s(sT0)}")
    A(f"s_and_b32 {s(sT2)}, {s(sT2)}, 0xff")
    STEP = 8 * 4096 - 1024
    A(f"s_lshl_b32 {s(sT0)}, {s(sT1)}, 15")
    A(f"v_add_u32 {v(vo[0])}, {s(sT0)}, {v(t0)}")
    A(f"s_lshl_b32 {s(sT0)}, {s(sT2)}, 15")
    A(f"v_add_u32 {v(vo[3])}, {s(sT0)}, {v(t0)}")
    for k in (1, 2):
        A(f"v_add_u32 {v(vo[k])}, {k*STEP}, {v(vo[0])}")
        A(f"v_add_u32 {v(vo[3+k])}, {k*STEP}, {v(vo[3])}")
    A(f"s_lshl_b32 {s(sL1)}, {s(sT1)}, 10")
    A(f"s_lshl_b32 {s(sL2)}, {s(sT2)}, 10")
    A(f"s_cmp_eq_u32 {s(sLw)}, 3")
    A(f"s_cselect_b32 {s(sT0)}, {B_OFF}, 0")
    A(f"s_add_u32 {s(sL1)}, {s(sL1)}, {s(sT0)}")
    A(f"s_cmp_ge_u32 {s(sLw)}, 2")
    A(f"s_cselect_b32 {s(sT0)}, {B_OFF}, 0")
    A(f"s_add_u32 {s(sL2)}, {s(sL2)}, {s(sT0)}")
    A(f"s_mul_i32 {s(sT0)}, {s(sCC)}, {112*4096}")
    A(f"s_add_u32 {s(sT0)}, {s(sT0)}, {WS_Z2T}")
    A(f"s_add_u32 s52, s4, {s(sT0)}")
    A(f"s_addc_u32 s53, s5, 0")
    A(f"s_lshl_b32 {s(sT0)}, {s(sRB)}, 18")
    A(f"s_add_u32 s54, s12, {s(sT0)}")
    A(f"s_addc_u32 s55, s13, 0")
    A(f"s_cmp_eq_u32 {s(sLw)}, 3")
    A(f"s_cselect_b32 {s(SR1)}, s54, s52")
    A(f"s_cselect_b32 {s(SR1+1)}, s55, s53")
    A(f"s_mov_b32 {s(SR1+2)}, {112*4096}")
    A(f"s_mov_b32 {s(SR1+3)}, 0x20000")
    A(f"s_cmp_ge_u32 {s(sLw)}, 2")
    A(f"s_cselect_b32 {s(SR2)}, s54, s52")
    A(f"s_cselect_b32 {s(SR2+1)}, s55, s53")
    A(f"s_mov_b32 {s(SR2+2)}, {112*4096}")
    A(f"s_mov_b32 {s(SR2+3)}, 0x20000")
    qz = [("W", s_) for s_ in range(NSZ) for _ in range(4)] + [("H", s_) for s_ in range(NSZ) for _ in range(2)]
    qz = [x for x in qz if x[0] == "H"]
    issued = NSZ
    for i in range(NSTZ):
        idx = [k for k, x in enumerate(qz) if x[1] == i]
        out = (len(qz) - 1 - max(idx)) if idx else len(qz)
        A(f"s_waitcnt vmcnt({out})")
        A("s_barrier")
        if i >= 1 and issued < NSTZ:
            issueZ(issued)
            qz += [("W", issued)] * 4 + ([("H", issued)] * 2 if issued < 8 else [])
            issued += 1
    A(f"s_lshl1_add_u32 {s(sT1)}, {s(sRB)}, {s(sTH)}")
    A(f"s_lshl_b32 {s(sT1)}, {s(sT1)}, 12")
    A(f"s_add_u32 {s(sT1)}, {s(sT1)}, {WS_STAT}")
    for hf in range(2):
        A(f"v_and_b32 {v(vrow[hf])}, 31, {v(vtt[hf])}")
        A(f"v_lshl_add_u32 {v(vrow[hf])}, {v(vrow[hf])}, 3, {s(sT1)}")
        A(f"v_lshl_add_u32 {v(vrow[hf])}, {v(vq)}, 10, {v(vrow[hf])}")
    A(f"s_mul_i32 {s(sT0)}, {s(sLw)}, {XS}")
    A(f"s_add_u32 {s(sT0)}, {s(sT0)}, {X_OFF}")
    for hf in range(2):
        A(f"v_and_b32 {v(vLa[hf])}, 31, {v(vtt[hf])}")
        A(f"v_mul_u32_u24 {v(vLa[hf])}, 144, {v(vLa[hf])}")
        A(f"v_lshl_add_u32 {v(vLa[hf])}, {v(vq)}, 3, {v(vLa[hf])}")
        A(f"v_add_u32 {v(vLa[hf])}, {s(sT0)}, {v(vLa[hf])}")
    vtr = voH[0]; vgz = voH[1]; vtr3 = voW[0]; vgz3 = voW[1]
    A(f"v_lshrrev_b32 {v(t0)}, 2, {v(vi)}")
    A(f"v_lshl_add_u32 {v(t0)}, {v(vq)}, 3, {v(t0)}")
    A(f"v_mul_u32_u24 {v(vtr)}, 144, {v(t0)}")
    A(f"v_and_b32 {v(t1)}, 3, {v(vi)}")
    A(f"v_lshl_add_u32 {v(vtr)}, {v(t1)}, 3, {v(vtr)}")
    A(f"v_add_u32 {v(vtr)}, {s(sT0)}, {v(vtr)}")
    A(f"s_mul_i32 {s(sT1)}, {s(sFH)}, {16*144}")
    A(f"s_add_u32 {s(sT1)}, {s(sT1)}, 96")
    A(f"v_add_u32 {v(vtr3)}, {s(sT1)}, {v(vtr)}")
    A(f"v_lshlrev_b32 {v(vgz)}, 12, {v(vi)}")
    A(f"v_lshl_add_u32 {v(vgz)}, {v(vq)}, 4, {v(vgz)}")
    A(f"s_mul_i32 {s(sT1)}, {s(sCC)}, {112*4096}")
    A(f"s_lshl_b32 {s(sT2)}, {s(sRB)}, 7")
    A(f"s_add_u32 {s(sT1)}, {s(sT1)}, {s(sT2)}")
    A(f"s_lshl_b32 {s(sT2)}, {s(sTH)}, 6")
    A(f"s_add_u32 {s(sT1)}, {s(sT1)}, {s(sT2)}")
    A(f"s_add_u32 {s(sT1)}, {s(sT1)}, {WS_Z2T}")
    A(f"s_lshl_b32 {s(sT2)}, {s(sFH)}, 5")
    A(f"s_add_u32 {s(sT2)}, {s(sT2)}, {48*4096}")
    A(f"s_add_u32 {s(sT2)}, {s(sT2)}, {s(sT1)}")
    A(f"v_add_u32 {v(vgz3)}, {s(sT2)}, {v(vgz)}")
    A(f"s_lshl_b32 {s(sT2)}, {s(sFH)}, 18")
    A(f"s_add_u32 {s(sT1)}, {s(sT1)}, {s(sT2)}")
    A(f"v_add_u32 {v(vgz)}, {s(sT1)}, {v(vgz)}")
    for tl, (wf, hf) in enumerate(TILES):
        A(f"ds_read_b64 {v(z2p[tl],2)}, {v(vLa[hf])} offset:{wf*32}")
    A("s_barrier")
    lskip = f"{name}_nob"
    A(f"s_cmp_lt_u32 {s(sLw)}, 2")
    A(f"s_cbranch_scc1 {lskip}")
    A(f"s_mov_b32 {s(sK1)}, 0")
    for st in range(NSG):
        A(f"s_add_u32 m0, {s(sL2)}, {st*STAGE}")
        if st: A(f"s_add_u32 {s(sK1)}, {s(sK1)}, 128")
        for k in range(3): A(f"buffer_load_dwordx4 {v(vo[3+k])}, {s(SR2,4)}, {s(sK1)} offen offset:{k*1024} lds")
    A.label(lskip)
    if stamps: A("s_mov_b32 s20, 0"); STL.n = 0; STL.stamp()
    A(f"s_mov_b32 {s(sK)}, 0")
    A.label(f"{name}_poll")
    for hf in range(2):
        for u in range(4):
            A(f"global_load_dwordx2 {v(pol[hf*2+(u>>1)]+2*(u&1),2)}, {v(vrow[hf])}, s[4:5] offset:{u*256} sc1")
    A("s_waitcnt vmcnt(0)")
    A(f"v_max3_u32 {v(vt[0])}, {v(pol[0])}, {v(pol[0]+1)}, {v(pol[0]+2)}")
    rest = [pol[0]+3] + [pol[b_]+r for b_ in range(1, 4) for r in range(4)]
    for k in range(0, len(rest) - 1, 2): A(f"v_max3_u32 {v(vt[0])}, {v(vt[0])}, {v(rest[k])}, {v(rest[k+1])}")
    A(f"v_max_u32 {v(vt[0])}, {v(vt[0])}, {v(rest[-1])}")
    A(f"v_cmp_eq_u32 vcc, -1, {v(vt[0])}")
    A(f"s_add_u32 {s(sK)}, {s(sK)}, 1")
    A(f"s_cmp_eq_u64 vcc, 0")
    A(f"s_cbranch_scc1 {name}_polled")
    A("s_sleep 2")
    A(f"s_cmp_lt_u32 {s(sK)}, {SPIN}")
    A(f"s_cbranch_scc1 {name}_poll")
    A.label(f"{name}_polled")
    mean = [vt[0], vt[1]]; rstd = [vt[2], vt[3]]
    for hf in range(2):
        p0, p1 = pol[hf*2], pol[hf*2+1]
        A(pk("add", p0, v(p0, 2), v(p0+2, 2)))
        A(pk("add", p1, v(p1, 2), v(p1+2, 2)))
        A(pk("add", p0, v(p0, 2), v(p1, 2)))
        A(f"v_mov_b32 {v(mean[hf])}, {v(p0)}")
        A(f"v_mov_b32 {v(rstd[hf])}, {v(p0+1)}")
    xor16_32_sum(A, mean + rstd, vt[6])
    for hf in range(2):
        A(f"v_mul_f32 {v(mean[hf])}, {fhex(1.0/896)}, {v(mean[hf])}")
        A(f"v_mul_f32 {v(rstd[hf])}, {fhex(1.0/896)}, {v(rstd[hf])}")
        A(f"v_fma_f32 {v(rstd[hf])}, -{v(mean[hf])}, {v(mean[hf])}, {v(rstd[hf])}")
        A(f"v_max_f32 {v(rstd[hf])}, 0, {v(rstd[hf])}")
        A(f"v_add_f32 {v(rstd[hf])}, 0x3727c5ac, {v(rstd[hf])}")
        A(f"v_rsq_f32 {v(rstd[hf])}, {v(rstd[hf])}")
        A(f"v_mul_f32 {v(mean[hf])}, {v(mean[hf])}, {v(rstd[hf])}")
    for hf in range(2):
        A(f"v_mov_b32 {v(st1[hf])}, {v(rstd[hf])}")
        A(f"v_sub_f32 {v(st1[hf]+1)}, 0, {v(mean[hf])}")
    A(f"s_mov_b32 {s(sT0)}, 0xffff0000")
    A("s_waitcnt lgkmcnt(0)")
    for tl, (wf, hf) in enumerate(TILES):
        z = z2p[tl]
        for h in range(2):
            A(f"v_lshlrev_b32 {v(vt[4])}, 16, {v(z+h)}")
            A(f"v_and_b32 {v(vt[5])}, {s(sT0)}, {v(z+h)}")
            A(pk("fma", vt[4], v(vt[4], 2), v(st1[hf], 2), v(st1[hf], 2), "op_sel:[0,0,1] op_sel_hi:[1,0,1]"))
            A(f"v_cvt_pk_bf16_f32 {v(z+h)}, {v(vt[4])}, {v(vt[5])}")
        A(f"ds_write_b64 {v(vLa[hf])}, {v(z,2)} offset:{wf*32}")
    A("s_waitcnt lgkmcnt(0)")
    for wf in range(3):
        for p in range(2): A(f"ds_read_b64_tr_b16 {v(za[wf]+2*p,2)}, {v(vtr)} offset:{wf*32 + 4*p*144}")
    for p in range(2): A(f"ds_read_b64_tr_b16 {v(za[3]+2*p,2)}, {v(vtr3)} offset:{4*p*144}")
    for wf in range(3):
        A(f"s_waitcnt lgkmcnt({6-2*wf})")
        A(f"global_store_dwordx4 {v(vgz)}, {v(za[wf],4)}, s[4:5] sc0 sc1")
        if wf < 2: A(f"v_add_u32 {v(vgz)}, {16*4096}, {v(vgz)}")
    A("s_waitcnt lgkmcnt(0)")
    A("s_mov_b32 exec_hi, 0")
    A(f"global_store_dwordx4 {v(vgz3)}, {v(za[3],4)}, s[4:5] sc0 sc1")
    A("s_mov_b32 exec_hi, -1")
    A(f"s_lshl_b32 {s(sT0)}, {s(sCC)}, 5")
    A(f"s_add_u32 {s(sT0)}, {s(sT0)}, {s(sRB)}")
    A(f"s_lshl_b32 {s(sT0)}, {s(sT0)}, 7")
    A(f"s_add_u32 {s(sT0)}, {s(sT0)}, {WS_FLG + FC_O}")
    arrive(0, 4, sT0, "z")
    if stamps: STL.stamp()
    A(f"s_lshl_b32 {s(sT2)}, {s(sCC)}, 12")
    A(f"s_add_u32 {s(sT2)}, {s(sT2)}, {WS_FLG + FC_O}")
    wait_flags("c", sT2, 32, False)
    if stamps: STL.stamp()
    A(f"s_cmp_ge_u32 {s(sLw)}, 2")
    A(f"s_cbranch_scc1 {name}_ldY")
    def pathG(tag, n1, early2):
        n = n1 + 3
        q = []
        def need(x): return len(q) - 1 - max(k for k, y in enumerate(q) if y == x)
        A(f"s_mov_b32 {s(sK1)}, 0")
        for st in range(NSG):
            A(f"s_add_u32 m0, {s(sL1)}, {st*STAGE}")
            if st: A(f"s_add_u32 {s(sK1)}, {s(sK1)}, 128")
            for k in range(n1): A(f"buffer_load_dwordx4 {v(vo[k])}, {s(SR1,4)}, {s(sK1)} offen offset:{k*1024} lds"); q.append(st)
            if not early2:
                A(f"s_add_u32 m0, {s(sL2)}, {st*STAGE}")
                for k in range(3): A(f"buffer_load_dwordx4 {v(vo[3+k])}, {s(SR2,4)}, {s(sK1)} offen offset:{k*1024} lds"); q.append(st)
        A(f"s_add_u32 {s(sK1)}, {s(sK1)}, 128")
        A(f"s_mov_b32 {s(sSlot)}, 0")
        def issue(st):
            A(f"s_add_u32 m0, {s(sSlot)}, {s(sL1)}")
            A(f"s_add_u32 {s(sT0)}, {s(sSlot)}, {s(sL2)}")
            for k in range(n1): A(f"buffer_load_dwordx4 {v(vo[k])}, {s(SR1,4)}, {s(sK1)} offen offset:{k*1024} lds"); q.append(st)
            A(f"s_mov_b32 m0, {s(sT0)}")
            A(f"s_add_u32 {s(sSlot)}, {s(sSlot)}, {STAGE}")
            for k in range(3): A(f"buffer_load_dwordx4 {v(vo[3+k])}, {s(SR2,4)}, {s(sK1)} offen offset:{k*1024} lds"); q.append(st)
            A(f"s_add_u32 {s(sK1)}, {s(sK1)}, 128")
            A(f"s_cmp_ge_u32 {s(sSlot)}, {RING}")
            A(f"s_cselect_b32 {s(sSlot)}, 0, {s(sSlot)}")
        A(f"s_waitcnt vmcnt({need(0)})")
        A("s_barrier")
        H = NSG + 1
        for i in range(1, H):
            A(f"s_waitcnt vmcnt({need(i)})"); A("s_barrier"); issue(i - 1 + NSG)
        nsteady = NSTG - NSG
        A(f"s_mov_b32 {s(sI)}, {H}")
        lp = f"{name}_gl{tag}"
        A.label(lp)
        wv = need(H)
        A(f"s_waitcnt vmcnt({wv})"); A("s_barrier"); issue(H - 1 + NSG)
        A(f"s_add_u32 {s(sI)}, {s(sI)}, 1")
        A(f"s_cmp_le_u32 {s(sI)}, {nsteady}")
        A(f"s_cbranch_scc1 {lp}")
        for i in range(H + 1, nsteady + 1):
            assert need(i) == wv
            for _ in range(n): q.append(i - 1 + NSG)
        for i in range(nsteady + 1, NSTG):
            A(f"s_waitcnt vmcnt({need(i)})"); A("s_barrier")
        A(f"s_branch {name}_gdone")
    pathG("X", 3, False)
    A.label(f"{name}_ldY")
    pathG("Y", 2, True)
    A.label(f"{name}_gdone")
    voWo = voW; voP = [vo[0], vo[1], vo[2], vo[3]]; voX = [vo[4], vo[5]]
    A(f"v_lshrrev_b32 {v(t0)}, 3, {v(vl)}")
    A(f"v_and_b32 {v(t1)}, 7, {v(vl)}")
    A(f"v_bfe_u32 {v(t2)}, {v(vl)}, 4, 1")
    for jj in range(4):
        A(f"v_or_b32 {v(t3)}, {(jj&1)<<1}, {v(t2)}")
        A(f"v_lshlrev_b32 {v(t3)}, 1, {v(t3)}")
        A(f"v_xor_b32 {v(t3)}, {v(t3)}, {v(t1)}")
        A(f"v_lshlrev_b32 {v(t3)}, 4, {v(t3)}")
        A(f"v_lshl_add_u32 {v(voWo[jj])}, {v(t0)}, 10, {v(t3)}")
        if jj: A(f"v_add_u32 {v(voWo[jj])}, {jj*(8192-1024)}, {v(voWo[jj])}")
    A(f"v_xor_b32 {v(t1)}, {v(t1)}, {v(t0)}")
    A(f"v_lshlrev_b32 {v(t1)}, 4, {v(t1)}")
    A(f"s_and_b32 {s(sT0)}, {s(sLw)}, 1")
    A(f"s_lshl_b32 {s(sT0)}, {s(sT0)}, 5")
    A(f"v_add_u32 {v(t2)}, {s(sT0)}, {v(t0)}")
    A(f"v_mul_u32_u24 {v(voP[0])}, 1792, {v(t2)}")
    A(f"s_lshr_b32 {s(sT1)}, {s(sLw)}, 1")
    A(f"s_lshl_b32 {s(sT1)}, {s(sT1)}, 7")
    A(f"v_add3_u32 {v(voP[0])}, {v(voP[0])}, {v(t1)}, {s(sT1)}")
    for jj in range(1, 4): A(f"v_add_u32 {v(voP[jj])}, {jj*(8*1792-1024)}, {v(voP[0])}")
    A(f"s_lshl_b32 {s(sT0)}, {s(sLw)}, 4")
    A(f"v_add_u32 {v(t2)}, {s(sT0)}, {v(t0)}")
    A(f"v_lshl_add_u32 {v(voX[0])}, {v(t2)}, 10, {v(t1)}")
    A(f"v_add_u32 {v(voX[1])}, {8192-1024}, {v(voX[0])}")
    A(f"s_mov_b32 s18, {FH*D*2}"); A("s_mov_b32 s19, 0x20000")
    A(f"s_mul_i32 {s(sWk)}, {s(sLw)}, {28*8192}")
    A(f"s_lshl_b32 {s(sT0)}, {s(sCC)}, 7")
    A(f"s_add_u32 {s(sWk)}, {s(sWk)}, {s(sT0)}")
    A(f"s_mul_i32 {s(sLW)}, {s(sLw)}, {28*1024}")
    sPk, sLP, sXb = 31, 33, 40
    A(f"s_mul_i32 {s(sPk)}, {s(sRB)}, {64*1792}")
    A(f"s_add_u32 {s(sPk)}, {s(sPk)}, {WS_P0}")
    A(f"s_lshl_b32 {s(sLP)}, {s(sLw)}, 12")
    A(f"s_add_u32 {s(sLP)}, {s(sLP)}, {OP}")
    A(f"s_lshl_b32 {s(sXb)}, {s(sRB)}, 16")
    A(f"s_add_u32 {s(sXb)}, {s(sXb)}, {s(sT0)}")
    A(f"s_add_u32 {s(sXb)}, {s(sXb)}, {WS_X1}")
    A("s_barrier")
    assert 28 % 2 == 0
    for g in range(7):
        A(f"s_add_u32 m0, {s(sLW)}, {OW + g*4096}")
        A(f"s_add_u32 {s(sT0)}, {s(sWk)}, {g*32768}")
        for jj in range(4): A(f"buffer_load_dwordx4 {v(voWo[jj])}, s[16:19], {s(sT0)} offen offset:{jj*1024} lds")
    A(f"s_lshl_b32 {s(sT2)}, {s(sRB)}, 10")
    A(f"s_add_u32 {s(sT2)}, {s(sT2)}, {WS_FLG + FT_O}")
    wait_flags("t", sT2, 8, False)
    if stamps: STL.stamp()
    def issueO(st):
        slot = st % NSO
        A(f"s_add_u32 m0, {s(sLP)}, {slot*PSLOT}")
        A(f"s_add_u32 {s(sT0)}, {s(sPk)}, {st*256}")
        for jj in range(4): A(f"buffer_load_dwordx4 {v(voP[jj])}, s[4:7], {s(sT0)} offen offset:{jj*1024} lds")
    cntO = lambda st: 4
    for st in range(NSO): issueO(st)
    issued = NSO; xq = 0
    for i in range(NSTO):
        out = sum(cntO(j) for j in range(i + 1, issued)) + xq
        A(f"s_waitcnt vmcnt({out})")
        A("s_barrier")
        if i >= 1 and issued < NSTO:
            issueO(issued); issued += 1
        if i == NSTO - 2:
            A(f"s_lshl_b32 {s(sT0)}, {s(sLw)}, 11")
            A(f"s_add_u32 m0, {s(sT0)}, {XT}")
            for jj in range(2): A(f"buffer_load_dwordx4 {v(voX[jj])}, s[4:7], {s(sXb)} offen offset:{jj*1024} lds")
            xq = 2
    A("s_waitcnt vmcnt(0)")
    A("s_barrier")
    if stamps:
        STL.stamp(); A(f"s_cmp_lg_u32 {s(sLw)}, 0"); A(f"s_cselect_b32 s20, 1, 0"); STL.flush(4, vt[0], slot=1)
    A("s_endpgm")
    nvmax[0] = max(nvmax[0], R.hi)
    A.label(f"{name}_end")
    A("s_endpgm")
    return dict(name=name, grid=NWG, block=512, lds=LDS, vgpr=256, sgpr=96 if stamps else 68)
```

```python
import sys
from build4 import assemble2
from gkf import gen_kf
def make(path, st=False, **kw):
    open(path, "w").write(assemble2([lambda A: gen_kf(A, stamps=st, **kw)]))
if __name__ == "__main__":
    make("f_a.s"); make("f_a_st.s", True)
```

```python
from g2b import *
from tables import TAB_OFF
from g2a import getpc_sym
WS_FLG = WS_STAT + 256 * 1024
FA_O = 0; FB_O = 256 * 128; FC_O = FB_O + 160 * 128; FT_O = FC_O + 256 * 128
WS_EPOCH = WS_FLG + FT_O + 256 * 128
SPIN = 0x8000
sX, sWM, sCV, sTB_, sTAG = 56, 58, 60, 62, 64

def gen_kf(A, name="kf_kernel", stamps=False, prefetch=True, pfpos=0, pfhalf=True, pfwin=True, wmcalc=True):
    NWG = 256
    GS = 960; SLOT = 16 * GS; W_OFF = 65536; NSZ = 4; NSTZ = 16; WROW = 3584
    X_OFF = W_OFF + NSZ * SLOT; XS = 32 * 144
    ZT = 145408
    NSG = 5; NSTG = 32; B_OFF = 14 * 1024; STAGE = 22 * 1024; RING = NSG * STAGE
    GX = 114688
    OW = 0; NW = 5; OP = NW * 16384; NSO = 5; NSTO = 7; PSLOT = 16384
    LDS = 163840
    JOIN = 159744
    A.barrier_state(); A.raw(kernel_header(name))
    ST = Stamps(A, on=stamps, kidx=0)
    sW, sRB, sCC, sT0, sT1, sT2, sTH, sFH, sK, sSlot, sI = 20, 21, 22, 23, 24, 25, 26, 27, 28, 34, 35
    A(f"s_cmp_ge_u32 s2, {NWG}")
    A(f"s_cbranch_scc1 {name}_end")
    ST.stamp()
    load_ptr(A, 4, "ws"); load_ptr(A, 8, "win"); load_ptr(A, 12, "wsp"); load_ptr(A, 16, "wout"); load_ptr(A, 36, "bsp"); load_ptr(A, 38, "out")
    load_ptr(A, sX, "x"); load_ptr(A, sWM, "wmod"); load_ptr(A, sCV, "c")
    getpc_sym(A, sTB_, "fft_tables")
    A(f"v_readfirstlane_b32 {s(sW)}, v0")
    A(f"s_lshr_b32 {s(sW)}, {s(sW)}, 6")
    vJ = 250
    def arrive(jidx, count, s_off, tag):
        A(f"v_mov_b32 {v(vJ)}, {JOIN + 4*jidx}")
        A(f"v_mov_b32 {v(vJ+1)}, 1")
        A("s_waitcnt vmcnt(0)")
        A("s_mov_b64 exec, 1")
        A(f"ds_add_rtn_u32 {v(vJ)}, {v(vJ)}, {v(vJ+1)}")
        A("s_waitcnt lgkmcnt(0)")
        A(f"v_readfirstlane_b32 {s(sT1)}, {v(vJ)}")
        A(f"v_mov_b32 {v(vJ)}, {s(s_off)}")
        A(f"v_mov_b32 {v(vJ+1)}, {s(sTAG)}")
        A(f"s_cmp_lg_u32 {s(sT1)}, {count-1}")
        A(f"s_cbranch_scc1 {name}_nofl{tag}")
        A(f"global_store_dword {v(vJ)}, {v(vJ+1)}, s[4:5] sc1")
        A.label(f"{name}_nofl{tag}")
        A("s_mov_b64 exec, -1")
    def wait_flags(tag, s_base, nflags, by_wave0, addr_fn=None):
        dn = f"{name}_d{tag}"; lp = f"{name}_w{tag}"
        A(f"s_cmp_lg_u32 {s(sW)}, {0 if by_wave0 else 4}")
        A(f"s_cbranch_scc1 {dn}")
        nl = (nflags + 63) // 64
        va_ = 244; vd_ = 248
        A(f"v_and_b32 {v(va_)}, 63, v0")
        if addr_fn: addr_fn(va_)
        else:
            if nflags < 64: A(f"v_and_b32 {v(va_)}, {nflags-1}, {v(va_)}")
            A(f"v_lshl_add_u32 {v(va_)}, {v(va_)}, 7, {s(s_base)}")
            for k in range(1, nl): A(f"v_add_u32 {v(va_+k)}, {k*8192}, {v(va_)}")
        A(f"s_mov_b32 {s(sK)}, 0")
        A.label(lp)
        for k in range(nl): A(f"global_load_dword {v(vd_+k)}, {v(va_+k)}, s[4:5] sc1")
        A("s_waitcnt vmcnt(0)")
        for k in range(nl):
            A(f"v_xor_b32 {v(vd_+k)}, {s(sTAG)}, {v(vd_+k)}")
        for k in range(1, nl): A(f"v_or_b32 {v(vd_)}, {v(vd_)}, {v(vd_+k)}")
        A(f"v_cmp_ne_u32 vcc, 0, {v(vd_)}")
        A(f"s_add_u32 {s(sK)}, {s(sK)}, 1")
        A(f"s_cmp_eq_u64 vcc, 0")
        A(f"s_cbranch_scc1 {dn}")
        A("s_sleep 1")
        A(f"s_cmp_lt_u32 {s(sK)}, {SPIN}")
        A(f"s_cbranch_scc1 {lp}")
        A.label(dn)
        A("s_barrier")
    A(f"v_mov_b32 v1, {JOIN}")
    for j in range(4): A(f"v_mov_b32 v{4+j}, 0")
    A("ds_write_b128 v1, v[4:7]")
    A("s_waitcnt lgkmcnt(0)")
    A(f"s_add_u32 s40, s4, {WS_EPOCH}")
    A(f"s_addc_u32 s41, s5, 0")
    A(f"s_load_dword {s(sTAG)}, s[40:41], 0")
    ST.stamp()
    NFFT = 128; NMOD = 96; F_L = 16384
    A(f"s_cmp_ge_u32 s2, {NFFT}")
    A(f"s_cbranch_scc1 {name}_mod")
    A("s_and_b32 s40, s2, 7")
    A("s_bfe_u32 s41, s2, 0x20003")
    A("s_lshl2_add_u32 s40, s40, s41")
    A("s_lshl_b32 s40, s40, 10")
    A("s_lshr_b32 s41, s2, 5")
    R = RegAlloc(1)
    voff = R.alloc(); vi = R.alloc(); vq = R.alloc(); vt0 = R.alloc(); vt1 = R.alloc()
    vS = R.alloc(); vQ = R.alloc(); vtr = R.alloc(); vst = R.alloc(); vl16 = R.alloc()
    xr = [R.alloc(4) for _ in range(8)]
    assert xr[7] == xr[0] + 28
    xo = R.alloc(8, 4)
    Ff = [[R.alloc(4) for _ in range(2)] for _ in range(2)]
    Af = [[R.alloc(4) for _ in range(2)] for _ in range(2)]
    acc = [[R.alloc(4) for _ in range(2)] for _ in range(2)]
    tmp = R.alloc(16, 4)
    A(f"v_lshrrev_b32 {v(vt0)}, 3, v0")
    A(f"v_and_b32 {v(vt1)}, 7, v0")
    A(f"v_lshlrev_b32 {v(vt0)}, 15, {v(vt0)}")
    A(f"v_lshl_add_u32 {v(voff)}, {v(vt1)}, 4, {v(vt0)}")
    A(f"v_add_u32 {v(voff)}, s40, {v(voff)}")
    A(f"v_lshlrev_b32 {v(vl16)}, 4, v0")
    A("s_lshl_b32 s42, s20, 10")
    A(f"s_add_u32 m0, s42, {F_L}")
    for it in range(8):
        A(f"global_load_dwordx4 {v(xr[it],4)}, {v(voff)}, s[56:57] offset:{it*128}")
    A(f"global_load_lds_dwordx4 {v(vl16)}, s[62:63] offset:{TAB_OFF['tab_f64']}")
    A(f"v_and_b32 {v(vi)}, 15, v0")
    A(f"v_bfe_u32 {v(vq)}, v0, 4, 2")
    A(f"v_lshrrev_b32 {v(vt0)}, 8, v0")
    A(f"v_bfe_u32 {v(vt1)}, v0, 6, 2")
    A("s_lshl_b32 s42, s41, 8")
    A("s_add_u32 s40, s40, s42")
    A(f"s_add_u32 s40, s40, {WS_T}")
    TST = 32768; TSS = 272
    vsw = R.alloc(); vsr = R.alloc(); vsg = R.alloc()
    A(f"v_lshl_add_u32 {v(vsw)}, {v(vt0)}, 5, {v(vi)}")
    A(f"v_mul_u32_u24 {v(vsw)}, {TSS}, {v(vsw)}")
    A(f"v_lshl_add_u32 {v(vsw)}, {v(vt1)}, 5, {v(vsw)}")
    A(f"v_lshl_add_u32 {v(vsw)}, {v(vq)}, 3, {v(vsw)}")
    A(f"v_add_u32 {v(vsw)}, {TST}, {v(vsw)}")
    A(f"v_lshrrev_b32 {v(vsg)}, 6, v0")
    A(f"v_lshl_add_u32 {v(vsg)}, {v(vsg)}, 3, {v(vq)}")
    A(f"v_mul_u32_u24 {v(vsr)}, {TSS}, {v(vsg)}")
    A(f"v_lshl_add_u32 {v(vsr)}, {v(vi)}, 4, {v(vsr)}")
    A(f"v_add_u32 {v(vsr)}, {TST}, {v(vsr)}")
    A(f"v_lshlrev_b32 {v(vsg)}, 15, {v(vsg)}")
    A(f"v_lshl_add_u32 {v(vsg)}, {v(vi)}, 4, {v(vsg)}")
    A(f"v_add_u32 {v(vsg)}, s40, {v(vsg)}")
    A(f"v_lshlrev_b32 {v(vtr)}, 5, {v(vt1)}")
    A(f"v_lshrrev_b32 {v(vt1)}, 2, {v(vi)}")
    A(f"v_lshl_add_u32 {v(vt1)}, {v(vq)}, 3, {v(vt1)}")
    A(f"v_lshl_add_u32 {v(vtr)}, {v(vt1)}, 7, {v(vtr)}")
    A(f"v_and_b32 {v(vt1)}, 3, {v(vi)}")
    A(f"v_lshl_add_u32 {v(vtr)}, {v(vt1)}, 3, {v(vtr)}")
    vfa = R.alloc()
    A(f"v_and_b32 {v(vfa)}, 63, v0")
    A(f"v_lshlrev_b32 {v(vfa)}, 4, {v(vfa)}")
    A(f"v_lshl_add_u32 {v(vfa)}, {v(vt0)}, 12, {v(vfa)}")
    A(f"v_mov_b32 {v(vS)}, 0")
    A(f"v_mov_b32 {v(vQ)}, 0")
    A("s_mov_b32 s42, 0x3f803f80")
    for it in range(8):
        A(f"s_waitcnt vmcnt({7 - it + 1})")
        for j in range(4):
            A(f"v_dot2_f32_bf16 {v(vS)}, {v(xr[it]+j)}, s42, {v(vS)}")
            A(f"v_dot2_f32_bf16 {v(vQ)}, {v(xr[it]+j)}, {v(xr[it]+j)}, {v(vQ)}")
    A("s_lshl_b32 s43, s41, 3")
    A("s_mov_b32 s42, 0xffff0000")
    A("s_set_gpr_idx_on s43, gpr_idx(SRC0)")
    for j in range(8): A(f"v_mov_b32 {v(xo+j)}, {v(xr[0]+j)}")
    A("s_set_gpr_idx_off")
    for mode in ("quad_perm:[1,0,3,2]", "quad_perm:[2,3,0,1]", "row_half_mirror"):
        A(f"v_add_f32_dpp {v(vS)}, {v(vS)}, {v(vS)} {mode} row_mask:0xf bank_mask:0xf")
        A(f"v_add_f32_dpp {v(vQ)}, {v(vQ)}, {v(vQ)} {mode} row_mask:0xf bank_mask:0xf")
        A(f"v_lshlrev_b32 {v(tmp+0)}, 16, {v(xo+0)}") if mode.startswith("quad_perm:[1") else None
    for j in range(8):
        if j: A(f"v_lshlrev_b32 {v(tmp+2*j)}, 16, {v(xo+j)}")
        A(f"v_and_b32 {v(tmp+2*j+1)}, s42, {v(xo+j)}")
    A(f"v_mul_f32 {v(vS)}, 0x3b000000, {v(vS)}")
    A(f"v_mul_f32 {v(vQ)}, 0x3b000000, {v(vQ)}")
    A(f"v_fma_f32 {v(vQ)}, -{v(vS)}, {v(vS)}, {v(vQ)}")
    A(f"v_max_f32 {v(vQ)}, 0, {v(vQ)}")
    A(f"v_add_f32 {v(vQ)}, 0x3727c5ac, {v(vQ)}")
    A(f"v_rsq_f32 {v(vQ)}, {v(vQ)}")
    A(f"v_mul_f32 {v(vS)}, {v(vS)}, {v(vQ)}")
    for j in range(16): A(f"v_fma_f32 {v(tmp+j)}, {v(tmp+j)}, {v(vQ)}, -{v(vS)}")
    for h in range(2):
        for j in range(4): A(f"v_cvt_pk_bf16_f32 {v(xo+4*h+j)}, {v(tmp+8*h+2*j)}, {v(tmp+8*h+2*j+1)}")
        A(f"ds_write_b128 {v(vl16)}, {v(xo+4*h,4)} offset:{h*8192}")
    A("s_waitcnt vmcnt(0) lgkmcnt(0)")
    A("s_barrier")
    for h in range(2):
        for ks in range(2):
            for p in range(2):
                A(f"ds_read_b64_tr_b16 {v(Af[h][ks]+2*p,2)}, {v(vtr)} offset:{h*8192 + ks*32*128 + p*4*128}")
        if h == 0:
            for nt in range(2):
                for ks in range(2): A(f"ds_read_b128 {v(Ff[nt][ks],4)}, {v(vfa)} offset:{F_L + nt*2048 + ks*1024}")
    for h in range(2):
        A(f"s_waitcnt lgkmcnt({4*(1-h)})")
        for ks in range(2):
            for nt in range(2):
                c = "0" if ks == 0 else v(acc[h][nt], 4)
                A(f"v_mfma_f32_16x16x32_bf16 {v(acc[h][nt],4)}, {v(Af[h][ks],4)}, {v(Ff[nt][ks],4)}, {c}")
    for h in range(2):
        for nt in range(2):
            k = h * 2 + nt
            A(f"v_cvt_pk_bf16_f32 {v(tmp+2*k)}, {v(acc[h][nt])}, {v(acc[h][nt]+1)}")
            A(f"v_cvt_pk_bf16_f32 {v(tmp+2*k+1)}, {v(acc[h][nt]+2)}, {v(acc[h][nt]+3)}")
            A(f"ds_write_b64 {v(vsw)}, {v(tmp+2*k,2)} offset:{nt*16*TSS + h*128}")
    A("s_waitcnt lgkmcnt(0)")
    A("s_barrier")
    for u in range(2): A(f"ds_read_b128 {v(tmp+8+4*u,4)}, {v(vsr)} offset:{u*4*TSS}")
    A("s_waitcnt lgkmcnt(1)")
    A(f"global_store_dwordx4 {v(vsg)}, {v(tmp+8,4)}, s[4:5] sc1")
    A(f"v_add_u32 {v(vsg)}, {4*32768}, {v(vsg)}")
    A("s_waitcnt lgkmcnt(0)")
    A(f"global_store_dwordx4 {v(vsg)}, {v(tmp+12,4)}, s[4:5] sc1")
    A("s_waitcnt lgkmcnt(0)")
    A(f"s_add_u32 {s(sTAG)}, {s(sTAG)}, 1")
    A(f"s_lshl_b32 {s(sT0)}, s2, 7")
    A(f"s_add_u32 {s(sT0)}, {s(sT0)}, {WS_FLG + FA_O}")
    arrive(2, 8, sT0, "af")
    A(f"s_branch {name}_adone")
    A.label(f"{name}_mod")
    A(f"s_cmp_ge_u32 s2, {NFFT+NMOD}")
    A(f"s_cbranch_scc1 {name}_pf")
    A(f"s_sub_u32 s40, s2, {NFFT}")
    A("s_lshl_b32 s41, s40, 6")
    R = RegAlloc(1)
    vk = R.alloc(); vt0 = R.alloc(); vt1 = R.alloc(); vc = R.alloc()
    vo = [R.alloc() for _ in range(4)]
    wr = [R.alloc(4) for _ in range(4)]
    cv = [R.alloc() for _ in range(4)]; ch = [R.alloc() for _ in range(4)]
    ac = R.alloc(8, 4); rr = R.alloc(16, 4)
    A(f"v_and_b32 {v(vt0)}, 0x1c0, v0")
    A(f"v_bfe_u32 {v(vt1)}, v0, 2, 4")
    A(f"v_add_u32 {v(vk)}, {v(vt0)}, {v(vt1)}")
    A(f"v_and_b32 {v(vc)}, 3, v0")
    A(f"v_mul_u32_u24 {v(vo[0])}, 6144, {v(vk)}")
    A(f"v_lshl_add_u32 {v(vo[0])}, {v(vc)}, 4, {v(vo[0])}")
    A(f"v_add_u32 {v(vo[0])}, s41, {v(vo[0])}")
    for it in range(1, 4): A(f"v_add_u32 {v(vo[it])}, {it*16*6144}, {v(vo[0])}")
    A(f"v_lshlrev_b32 {v(vk)}, 1, {v(vk)}")
    for it in range(4): A(f"global_load_ushort {v(cv[it])}, {v(vk)}, s[60:61] offset:{it*32}")
    for it in range(4): A(f"global_load_dwordx4 {v(wr[it],4)}, {v(vo[it])}, s[58:59]")
    for j in range(8): A(f"v_mov_b32 {v(ac+j)}, 0")
    A("s_waitcnt vmcnt(4)")
    for it in range(4): A(f"v_lshlrev_b32 {v(cv[it])}, 16, {v(cv[it])}")
    for it in range(4): A(f"v_mul_f32 {v(ch[it])}, 0xbfb8aa3b, {v(cv[it])}")
    for it in range(4): A(f"v_exp_f32 {v(ch[it])}, {v(ch[it])}")
    for it in range(4): A(f"v_add_f32 {v(ch[it])}, 1.0, {v(ch[it])}")
    for it in range(4): A(f"v_rcp_f32 {v(ch[it])}, {v(ch[it])}")
    for it in range(4): A(f"v_mul_f32 {v(cv[it])}, {v(cv[it])}, {v(ch[it])}")
    for it in range(4): A(f"v_cvt_pk_bf16_f32 {v(cv[it])}, {v(cv[it])}, 0")
    for it in range(4): A(f"v_lshlrev_b32 {v(ch[it])}, 16, {v(cv[it])}")
    for it in range(4):
        A(f"s_waitcnt vmcnt({3-it})")
        for j in range(4):
            A(f"v_dot2_f32_bf16 {v(ac+2*j)}, {v(wr[it]+j)}, {v(cv[it])}, {v(ac+2*j)}")
            A(f"v_dot2_f32_bf16 {v(ac+2*j+1)}, {v(wr[it]+j)}, {v(ch[it])}, {v(ac+2*j+1)}")
    for rot in (4, 8):
        for j in range(8):
            A(f"v_add_f32_dpp {v(ac+j)}, {v(ac+j)}, {v(ac+j)} row_ror:{rot} row_mask:0xf bank_mask:0xf")
    A(f"v_lshrrev_b32 {v(vt0)}, 4, v0")
    A(f"v_lshlrev_b32 {v(vt0)}, 7, {v(vt0)}")
    A(f"v_lshl_add_u32 {v(vt0)}, {v(vc)}, 5, {v(vt0)}")
    A(f"ds_write_b128 {v(vt0)}, {v(ac,4)}")
    A(f"ds_write_b128 {v(vt0)}, {v(ac+4,4)} offset:16")
    if prefetch:
        lab = f"{name}_nocp"
        A("s_cmp_ge_u32 s40, 8")
        A(f"s_cbranch_scc1 {lab}")
        getpc_sym(A, 44, "code_begin")
        A(f"v_lshlrev_b32 {v(vt0)}, 7, v0")
        A(f"v_mov_b32 {v(vt1)}, code_end-code_begin-4")
        A(f"v_min_u32 {v(vt0)}, {v(vt0)}, {v(vt1)}")
        A(f"v_and_b32 {v(vt0)}, -4, {v(vt0)}")
        A(f"global_load_dword {v(vk)}, {v(vt0)}, s[44:45]")
        A.label(lab)
    A("s_waitcnt lgkmcnt(0)")
    A("s_barrier")
    A("s_cmp_ge_u32 s20, 1")
    A(f"s_cbranch_scc1 {name}_aend")
    A(f"v_and_b32 {v(vt1)}, 31, v0")
    A(f"v_lshrrev_b32 {v(vt0)}, 5, v0")
    A(f"v_lshlrev_b32 {v(vt0)}, 11, {v(vt0)}")
    A(f"v_lshl_add_u32 {v(vt0)}, {v(vt1)}, 2, {v(vt0)}")
    for p in range(16): A(f"ds_read_b32 {v(rr+p)}, {v(vt0)} offset:{p*128}")
    A("s_lshr_b32 s41, s40, 4")
    A("s_cmp_eq_u32 s41, 1")
    A("s_cselect_b32 s42, 1.0, 0")
    A("s_cmp_eq_u32 s41, 4")
    A("s_cselect_b32 s42, 1.0, s42")
    A("s_lshl_b32 s41, s40, 7")
    if WS_MOD: A(f"s_add_u32 s41, s41, {WS_MOD}")
    A(f"v_lshl_add_u32 {v(vt1)}, {v(vt1)}, 2, s41")
    A("s_waitcnt lgkmcnt(0)")
    for st_ in (8, 4, 2, 1):
        for p in range(st_): A(f"v_add_f32 {v(rr+p)}, {v(rr+p)}, {v(rr+p+st_)}")
    A(f"v_mov_b32 {v(rr+1)}, {v(rr)}")
    A(f"v_permlane32_swap_b32 {v(rr)}, {v(rr+1)}")
    A(f"v_add_f32 {v(rr)}, {v(rr)}, {v(rr+1)}")
    A(f"v_cvt_pk_bf16_f32 {v(rr)}, {v(rr)}, {v(rr)}")
    A(f"v_lshlrev_b32 {v(rr)}, 16, {v(rr)}")
    A(f"v_add_f32 {v(rr)}, s42, {v(rr)}")
    A(f"v_cvt_pk_bf16_f32 {v(rr)}, {v(rr)}, {v(rr)}")
    A(f"v_lshlrev_b32 {v(rr)}, 16, {v(rr)}")
    A(f"global_store_dword {v(vt1)}, {v(rr)}, s[4:5] sc1")
    A.label(f"{name}_aend")
    A("s_waitcnt lgkmcnt(0)")
    A(f"s_add_u32 {s(sTAG)}, {s(sTAG)}, 1")
    A(f"s_lshl_b32 {s(sT0)}, s2, 7")
    A(f"s_add_u32 {s(sT0)}, {s(sT0)}, {WS_FLG + FA_O}")
    arrive(2, 8, sT0, "am")
    A(f"s_branch {name}_adone")
    A.label(f"{name}_pf")
    A(f"s_sub_u32 s40, s2, {NFFT+NMOD}")
    A("s_lshl_b32 s41, s40, 13")
    A(f"s_add_u32 s41, s41, {WS_STAT}")
    A("v_lshl_add_u32 v1, v0, 4, s41")
    for j in range(4): A(f"v_mov_b32 v{4+j}, -1")
    A("global_store_dwordx4 v1, v[4:7], s[4:5] sc1")
    A("s_barrier")
    A("s_waitcnt lgkmcnt(0)")
    A(f"s_add_u32 {s(sTAG)}, {s(sTAG)}, 1")
    A(f"s_lshl_b32 {s(sT0)}, s2, 7")
    A(f"s_add_u32 {s(sT0)}, {s(sT0)}, {WS_FLG + FA_O}")
    arrive(2, 8, sT0, "ap")
    if prefetch:
        A("s_mul_i32 s40, s40, 448")
        A("v_add_u32 v1, s40, v0")
        A("v_lshlrev_b32 v1, 7, v1")
        A("v_min_u32 v1, %d, v1" % 0) if False else None
        A("v_cmp_gt_u32 vcc, 448, v0")
        A("s_and_saveexec_b64 s[42:43], vcc")
        A(f"s_cbranch_execz {name}_pfx")
        A("global_load_dword v252, v1, s[8:9]")
        A.label(f"{name}_pfx")
        A("s_mov_b64 exec, s[42:43]")
    A.label(f"{name}_adone")
    A("s_barrier")
    ST.stamp()
    if stamps:
        for k in range(3): A(f"s_mov_b64 {s(ST.base + 2*(ST.n + k), 2)}, {s(ST.base + 2*(ST.n-1), 2)}")
    A(f"s_cmp_ge_u32 s2, 132")
    A(f"s_cbranch_scc1 {name}_bdone")
    TB_L = 0; MD_L = TB_L + 10240; WM_L = MD_L + 8192; T_B = WM_L + 1024
    TS = 1056; V_OFF = T_B + 64 * TS; VS = 80; US = 144; YS = 2064
    U_OFF = T_B; Y_OFF = T_B + 20480
    sC, sG, sRow, sMir, sRow2, sY = 21, 22, 26, 27, 29, 49
    SRD_T = 4
    A(f"s_mov_b32 s6, {WS_T + 2*MB}")
    A("s_mov_b32 s7, 0x20000")
    A(f"s_and_b32 {s(sT0)}, s2, 7")
    A(f"s_bfe_u32 {s(sG)}, s2, 0x20003")
    A(f"s_lshr_b32 {s(sT1)}, s2, 5")
    A(f"s_lshl3_add_u32 {s(sC)}, {s(sT1)}, {s(sT0)}")
    A(f"s_cmp_ge_u32 s2, 128")
    A(f"s_cselect_b32 {s(sC)}, 32, {s(sC)}")
    A(f"s_cselect_b32 {s(sG)}, {s(sT0)}, {s(sG)}")
    R = RegAlloc(1)
    vl = R.alloc(); vq = R.alloc(); vi = R.alloc(); vl16 = R.alloc(); vtid16 = R.alloc()
    vtb = R.alloc(8, 4); vt = [vtb + k for k in range(8)]
    A0 = R.alloc(4); A1 = R.alloc(4)
    F1 = [R.alloc(4) for _ in range(2)]; F2 = [[R.alloc(4) for _ in range(2)] for _ in range(2)]
    tw = R.alloc(16, 4)
    opca = [R.alloc() for _ in range(4)]
    xrow = [R.alloc(4) for _ in range(2)]
    Bf = [[R.alloc(4) for _ in range(2)] for _ in range(4)]
    acc = [R.alloc(4) for _ in range(4)]
    ga = R.alloc(8, 4); sb = R.alloc(8, 4); ocb = R.alloc(8, 4)
    vaT = R.alloc(); vaVw = R.alloc(); vaVr = R.alloc(); vaUw = R.alloc(); vaUr = R.alloc(); vaYw = R.alloc()
    vrow = [R.alloc() for _ in range(2)]
    xf = R.alloc(8, 4); yy = R.alloc(8, 4)
    Rr = R.alloc(4); Ri = R.alloc(4)
    A(f"v_and_b32 {v(vl)}, 63, v0")
    A(f"v_lshlrev_b32 {v(vl16)}, 4, {v(vl)}")
    A(f"v_lshlrev_b32 {v(vtid16)}, 4, v0")
    A(f"v_and_b32 {v(vi)}, 15, v0")
    A(f"v_bfe_u32 {v(vq)}, v0, 4, 2")
    if not wmcalc:
        A(f"v_bfe_u32 {v(vt[0])}, v0, 2, 3")
        A(f"v_lshlrev_b32 {v(vt[0])}, 18, {v(vt[0])}")
        A(f"v_and_b32 {v(vt[1])}, 3, v0")
        A(f"v_lshl_add_u32 {v(vt[0])}, {v(vt[1])}, 4, {v(vt[0])}")
        A(f"s_lshl_b32 {s(sT1)}, {s(sG)}, 21")
        A(f"s_lshl_b32 {s(sT2)}, {s(sC)}, 12")
        A(f"s_add_u32 {s(sT1)}, {s(sT1)}, {s(sT2)}")
        A(f"v_add_u32 {v(vt[0])}, {s(sT1)}, {v(vt[0])}")
    A(f"s_lshl3_add_u32 {s(sT1)}, {s(sG)}, {s(sW)}")
    A(f"s_lshl_b32 {s(sT1)}, {s(sT1)}, 6")
    A(f"s_add_u32 {s(sRow)}, {s(sT1)}, {s(sC)}")
    A(f"s_sub_u32 {s(sRow2)}, 2048, {s(sRow)}")
    A(f"s_and_b32 {s(sRow2)}, {s(sRow2)}, 2047")
    A(f"s_lshl_b32 {s(sRow)}, {s(sRow)}, 10")
    A(f"s_lshl_b32 {s(sRow2)}, {s(sRow2)}, 10")
    A(f"v_add_u32 {v(vrow[0])}, {s(sRow)}, {v(vl16)}")
    A(f"v_add_u32 {v(vrow[1])}, {s(sRow2)}, {v(vl16)}")
    A(f"s_lshl_b32 {s(sT2)}, {s(sW)}, 10")
    A(f"s_add_u32 m0, {s(sT2)}, {TB_L}")
    A(f"v_add_u32 {v(vt[1])}, {TAB_OFF['tab_f1']}, {v(vtid16)}")
    A(f"global_load_lds_dwordx4 {v(vt[1])}, s[62:63]")
    lx = f"{name}_bnox"; l23 = f"{name}_bx23"
    A(f"s_cmp_ge_u32 {s(sW)}, {2 if wmcalc else 4}")
    A(f"s_cbranch_scc1 {lx}")
    if not wmcalc:
        A(f"s_cmp_ge_u32 {s(sW)}, 2")
        A(f"s_cbranch_scc1 {l23}")
    A(f"s_add_u32 m0, {s(sT2)}, {TB_L + 8192}")
    A(f"v_add_u32 {v(vt[1])}, 8192, {v(vt[1])}")
    A(f"global_load_lds_dwordx4 {v(vt[1])}, s[62:63]")
    if not wmcalc:
        A(f"s_branch {lx}")
        A.label(l23)
        A(f"s_cmp_eq_u32 {s(sW)}, 3")
        A("s_cselect_b32 s6, s8, s6")
        A("s_cselect_b32 s7, s9, s7")
        A(f"s_cselect_b32 {s(sT1)}, 512, 0")
        A(f"s_add_u32 m0, {s(sT1)}, {WM_L}")
        A("s_mov_b32 exec_hi, 0")
        A(f"global_load_lds_dwordx4 {v(vt[0])}, s[6:7]")
        A("s_mov_b32 exec_hi, -1")
    A.label(lx)
    for h in range(2): A(f"global_load_dwordx4 {v(xrow[h],4)}, {v(vrow[h])}, s[56:57]")
    A(f"v_lshrrev_b32 {v(vt[0])}, 2, {v(vi)}")
    A(f"v_lshl_add_u32 {v(vt[0])}, {v(vq)}, 2, {v(vt[0])}")
    A(f"v_mul_u32_u24 {v(vaT)}, {TS}, {v(vt[0])}")
    A(f"v_and_b32 {v(vt[0])}, 3, {v(vi)}")
    A(f"v_lshl_add_u32 {v(vaT)}, {v(vt[0])}, 3, {v(vaT)}")
    A(f"v_and_b32 {v(vt[4])}, 0x1c0, v0")
    A(f"v_lshl_add_u32 {v(vaT)}, {v(vt[4])}, 1, {v(vaT)}")
    A(f"v_add_u32 {v(vaT)}, {T_B}, {v(vaT)}")
    A(f"v_lshl_add_u32 {v(vt[0])}, {v(vq)}, 6, {v(vi)}")
    A(f"v_mul_u32_u24 {v(vaVw)}, {VS}, {v(vt[0])}")
    A(f"v_lshrrev_b32 {v(vt[0])}, 3, {v(vt[4])}")
    A(f"s_mov_b32 {s(sT2)}, {V_OFF}")
    A(f"v_add3_u32 {v(vaVw)}, {v(vaVw)}, {v(vt[0])}, {s(sT2)}")
    A(f"v_lshrrev_b32 {v(vt[0])}, 1, {v(vt[4])}")
    A(f"v_add_u32 {v(vt[0])}, {v(vt[0])}, {v(vi)}")
    A(f"v_mul_u32_u24 {v(vaVr)}, {VS}, {v(vt[0])}")
    A(f"v_lshl_add_u32 {v(vaVr)}, {v(vq)}, 4, {v(vaVr)}")
    A(f"v_add_u32 {v(vaVr)}, {V_OFF}, {v(vaVr)}")
    A(f"v_lshrrev_b32 {v(vt[0])}, 2, {v(vt[4])}")
    A(f"v_lshl_add_u32 {v(vt[3])}, {v(vq)}, 1, {v(vt[0])}")
    A(f"v_mul_u32_u24 {v(vaUw)}, {US}, {v(vt[3])}")
    A(f"v_lshl_add_u32 {v(vaUw)}, {v(vi)}, 2, {v(vaUw)}")
    A(f"v_add_u32 {v(vt[3])}, {v(vt[0])}, {v(vi)}")
    A(f"v_mul_u32_u24 {v(vaUr)}, {US}, {v(vt[3])}")
    A(f"v_lshl_add_u32 {v(vaUr)}, {v(vq)}, 4, {v(vaUr)}")
    A(f"s_mul_i32 {s(sY)}, {s(sW)}, {YS}")
    A(f"s_add_u32 {s(sY)}, {s(sY)}, {Y_OFF}")
    A(f"v_lshlrev_b32 {v(vaYw)}, 6, {v(vi)}")
    A(f"v_lshl_add_u32 {v(vaYw)}, {v(vq)}, 4, {v(vaYw)}")
    A(f"v_add_u32 {v(vaYw)}, {s(sY)}, {v(vaYw)}")
    A(f"v_lshrrev_b32 {v(vt[5])}, 1, {v(vi)}")
    A(f"v_lshlrev_b32 {v(vt[5])}, 6, {v(vt[5])}")
    A(f"v_lshl_add_u32 {v(vt[5])}, {v(vq)}, 3, {v(vt[5])}")
    A(f"v_add_u32 {v(vt[6])}, {v(vt[4])}, {v(vi)}")
    A(f"v_lshlrev_b32 {v(vt[6])}, 2, {v(vt[6])}")
    A(f"v_and_b32 {v(vt[3])}, 1, v0")
    A(f"v_cmp_eq_u32 vcc, 1, {v(vt[3])}")
    if wmcalc:
        vT = Rr; vK = Rr + 1; cs_ = [Ri + j for j in range(4)]
        A(f"s_lshl_b32 {s(sT1)}, {s(sG)}, 9")
        A(f"s_add_u32 {s(sT1)}, {s(sT1)}, {s(sC)}")
        A(f"v_lshrrev_b32 {v(vT)}, 1, {v(vi)}")
        A(f"v_lshl_add_u32 {v(vT)}, {v(vT)}, 6, {s(sT1)}")
        A(f"v_lshlrev_b32 {v(vK)}, 2, {v(vq)}")
        A(f"v_mul_u32_u24 {v(vK)}, {v(vT)}, {v(vK)}")
        for jp in range(4):
            ang = []
            for u in range(2):
                jj = 2 * jp + u; koff = jj if jj < 4 else 16 + jj - 4
                r = cs_[u]
                A(f"v_mad_u32_u24 {v(r)}, {v(vT)}, {koff}, {v(vK)}")
                A(f"v_and_b32 {v(r)}, 2047, {v(r)}")
                A(f"v_cvt_f32_u32 {v(r)}, {v(r)}")
                A(f"v_mul_f32 {v(r)}, 0x3a000000, {v(r)}")
            for u in range(2):
                A(f"v_sin_f32 {v(cs_[2+u])}, {v(cs_[u])}")
                A(f"v_cos_f32 {v(cs_[u])}, {v(cs_[u])}")
            t0_, t1_, t2_, t3_ = vt[0], vt[1], vt[2], vt[7]
            A(f"v_sub_f32 {v(t0_)}, 0, {v(cs_[2])}")
            A(f"v_sub_f32 {v(t1_)}, 0, {v(cs_[3])}")
            A(f"v_cndmask_b32 {v(t0_)}, {v(cs_[0])}, {v(t0_)}, vcc")
            A(f"v_cndmask_b32 {v(t1_)}, {v(cs_[1])}, {v(t1_)}, vcc")
            A(f"v_cvt_pk_bf16_f32 {v(A0+jp)}, {v(t0_)}, {v(t1_)}")
            A(f"v_cndmask_b32 {v(t2_)}, {v(cs_[2])}, {v(cs_[0])}, vcc")
            A(f"v_cndmask_b32 {v(t3_)}, {v(cs_[3])}, {v(cs_[1])}, vcc")
            A(f"v_cvt_pk_bf16_f32 {v(A1+jp)}, {v(t2_)}, {v(t3_)}")
    A(f"s_add_u32 {s(sT1)}, {s(sC)}, 32")
    A(f"s_and_b32 {s(sT2)}, {s(sC)}, 31")
    A(f"s_cselect_b32 {s(sMir)}, 1, 0")
    A(f"s_cselect_b32 {s(sT1)}, {s(sT1)}, 0x4000")
    A(f"s_cmp_ge_u32 {s(sW)}, 4")
    A(f"s_cselect_b32 {s(sT0)}, {s(sT1)}, {s(sC)}")
    A(f"s_lshl_b32 {s(sT0)}, {s(sT0)}, 15")
    A(f"s_and_b32 {s(sT1)}, {s(sW)}, 3")
    A(f"s_lshl_b32 {s(sT1)}, {s(sT1)}, 13")
    A(f"s_add_u32 {s(sT0)}, {s(sT0)}, {s(sT1)}")
    A(f"s_add_u32 {s(sT0)}, {s(sT0)}, {WS_T - 128}")
    A(f"s_mul_i32 {s(sT1)}, {s(sW)}, {8*TS}")
    A(f"s_add_u32 m0, {s(sT1)}, {T_B}")
    for j in range(4): A(f"v_add_u32 {v(vt[4+j])}, {128 - 32*j}, {v(vl16)}")
    A(f"s_lshl_b32 {s(sT2)}, {s(sW)}, 10")
    A(f"s_mov_b32 s48, {WS_FLG + FA_O}")
    wait_flags("a", 48, 256, True)
    ST.stamp()
    for g in range(2):
        if g:
            A(f"s_add_u32 m0, m0, {4*TS}")
            A(f"s_add_u32 {s(sT0)}, {s(sT0)}, 4096")
        for j in range(4):
            A(f"buffer_load_dwordx4 {v(vt[4+j])}, {s(SRD_T,4)}, {s(sT0)} offen offset:{j*TS} lds")
    A(f"s_add_u32 m0, {s(sT2)}, {MD_L}")
    A(f"v_add_u32 {v(vt[2])}, {WS_MOD + 2048}, {v(vtid16)}")
    A(f"global_load_lds_dwordx4 {v(vt[2])}, s[4:5]")
    A("s_waitcnt vmcnt(0)")
    A(f"v_and_b32 {v(vt[4])}, 0x1c0, v0")
    A(f"v_add_u32 {v(vt[6])}, {v(vt[4])}, {v(vi)}")
    A(f"v_lshlrev_b32 {v(vt[6])}, 2, {v(vt[6])}")
    vpf = R.alloc(); vpd = R.alloc(2)
    if prefetch and pfwin:
        A(f"s_lshr_b32 {s(sT2)}, s2, 3")
        A(f"s_lshl3_add_u32 {s(sT2)}, {s(sT2)}, {s(sW)}")
        A(f"s_and_b32 {s(sT2)}, {s(sT2)}, 127")
        A(f"s_mul_i32 {s(sT2)}, {s(sT2)}, 56")
        A(f"v_min_u32 {v(vpf)}, 55, {v(vl)}")
        A(f"v_add_u32 {v(vpf)}, {s(sT2)}, {v(vpf)}")
        A(f"v_mul_u32_u24 {v(vpd)}, 9363, {v(vpf)}")
        A(f"v_lshrrev_b32 {v(vpd)}, 17, {v(vpd)}")
        A(f"v_mul_u32_u24 {v(vpd+1)}, 14, {v(vpd)}")
        A(f"v_sub_u32 {v(vpd+1)}, {v(vpf)}, {v(vpd+1)}")
        A(f"v_mul_u32_u24 {v(vpf)}, 3584, {v(vpd)}")
        A(f"v_lshl_add_u32 {v(vpf)}, {v(vpd+1)}, 7, {v(vpf)}")
        A(f"v_cmp_lt_u32 s[46:47], 6, {v(vpd+1)}")
        A(f"v_mov_b32 {v(vpd)}, 896")
        A(f"v_cndmask_b32 {v(vpd)}, 0, {v(vpd)}, s[46:47]")
        A(f"s_and_b32 {s(sT1)}, s2, 1")
        A(f"s_mul_i32 {s(sT1)}, {s(sT1)}, 896")
        A(f"v_add3_u32 {v(vpf)}, {v(vpf)}, {v(vpd)}, {s(sT1)}")
    elif prefetch:
        A(f"s_bfe_u32 {s(sT1)}, s2, 0x20001")
        A(f"s_lshl_b32 {s(sT1)}, {s(sT1)}, 21")
        A(f"s_lshr_b32 {s(sT2)}, s2, 3")
        A(f"s_lshl3_add_u32 {s(sT2)}, {s(sT2)}, {s(sW)}")
        A(f"s_and_b32 {s(sT2)}, {s(sT2)}, 127")
        A(f"s_lshl_b32 {s(sT2)}, {s(sT2)}, 14")
        A(f"s_add_u32 {s(sT1)}, {s(sT1)}, {s(sT2)}")
        if pfhalf:
            A(f"s_and_b32 {s(sT2)}, s2, 1")
            A(f"s_lshl_b32 {s(sT2)}, {s(sT2)}, 13")
            A(f"s_add_u32 {s(sT1)}, {s(sT1)}, {s(sT2)}")
        A(f"v_lshl_add_u32 {v(vpf)}, {v(vl)}, 7, {s(sT1)}")
    A("s_barrier")
    ST.stamp()
    if prefetch:
        A(f"global_load_dword {v(vpd)}, {v(vpf)}, s[8:9]")
        if not pfhalf:
            A(f"v_add_u32 {v(vpf)}, 8192, {v(vpf)}")
            A(f"global_load_dword {v(vpd+1)}, {v(vpf)}, s[8:9]")
    if not wmcalc:
        for reg, o in ((Rr, 0), (Ri, 512)):
            A(f"ds_read_b64 {v(reg,2)}, {v(vt[5])} offset:{WM_L + o}")
            A(f"ds_read_b64 {v(reg+2,2)}, {v(vt[5])} offset:{WM_L + o + 32}")
    for jt in range(4):
        for c in range(2):
            for p in range(2):
                A(f"ds_read_b64_tr_b16 {v(Bf[jt][c]+2*p,2)}, {v(vaT)} offset:{c*32*TS + p*16*TS + jt*32}")
        if jt == 1:
            pass
    if not wmcalc:
        A("s_waitcnt lgkmcnt(15)")
        for j in range(4):
            A(f"v_xor_b32 {v(vt[0])}, {s(sT0)}, {v(Ri+j)}")
            A(f"v_cndmask_b32 {v(A0+j)}, {v(Rr+j)}, {v(Ri+j)}, vcc")
            A(f"v_cndmask_b32 {v(A1+j)}, {v(vt[0])}, {v(Rr+j)}, vcc")
    for jt in range(4): A(f"ds_read_b32 {v(opca[jt])}, {v(vt[6])} offset:{MD_L + jt*64}")
    for jt in range(4):
        A(f"s_waitcnt lgkmcnt({min(15, (3-jt)*4 + 4)})")
        A(f"v_mfma_f32_16x16x32_bf16 {v(acc[jt],4)}, {v(A0,4)}, {v(Bf[jt][0],4)}, 0")
        A(f"v_mfma_f32_16x16x32_bf16 {v(acc[jt],4)}, {v(A1,4)}, {v(Bf[jt][1],4)}, {v(acc[jt],4)}")
    for mt in range(2): A(f"ds_read_b128 {v(F1[mt],4)}, {v(vl16)} offset:{TB_L + mt*1024}")
    A(f"v_lshlrev_b32 {v(vt[7])}, 2, {v(vl16)}")
    for h in range(4): A(f"ds_read_b128 {v(tw+4*h,4)}, {v(vt[7])} offset:{TB_L + 6144 + h*16}")
    A("s_waitcnt lgkmcnt(6)")
    for jt in range(4):
        for r in range(4): A(f"v_mul_f32 {v(acc[jt]+r)}, {v(acc[jt]+r)}, {v(opca[jt])}")
    lab = f"{name}_bnodc"
    A(f"s_or_b32 {s(sT0)}, {s(sC)}, {s(sG)}")
    A(f"s_cbranch_scc1 {lab}")
    A(f"v_and_b32 {v(vt[2])}, 0x1cf, v0")
    A(f"v_lshlrev_b32 {v(vt[2])}, 2, {v(vt[2])}")
    if WS_MOD: A(f"v_add_u32 {v(vt[2])}, {WS_MOD}, {v(vt[2])}")
    for jt in range(4): A(f"global_load_dword {v(Bf[0][0]+jt)}, {v(vt[2])}, s[4:5] offset:{jt*64}")
    A(f"v_cmp_eq_u32 vcc, 0, {v(vq)}")
    A(f"v_mov_b32 {v(vt[1])}, 0x45000000")
    A(f"v_cndmask_b32 {v(vt[1])}, 0, {v(vt[1])}, vcc")
    A("s_waitcnt vmcnt(0)")
    for jt in range(4): A(f"v_fmac_f32 {v(acc[jt])}, {v(Bf[0][0]+jt)}, {v(vt[1])}")
    A.label(lab)
    for jt in range(4):
        ac = acc[jt]
        A(f"v_cvt_pk_bf16_f32 {v(ac)}, {v(ac)}, {v(ac+1)}")
        A(f"v_cvt_pk_bf16_f32 {v(ac+1)}, {v(ac+2)}, {v(ac+3)}")
        o0 = (jt&1)*16*VS + (jt>>1)*4
        A(f"ds_write_b32 {v(vaVw)}, {v(ac)} offset:{o0}")
        A(f"ds_write_b32 {v(vaVw)}, {v(ac+1)} offset:{o0 + 32*VS}")
    A(f"s_mov_b32 {s(sT0)}, 0xffff0000")
    A("s_waitcnt lgkmcnt(0)")
    A("s_barrier")
    pass
    for h in range(2): A(f"ds_read_b128 {v(Bf[h][0],4)}, {v(vaVr)} offset:{h*16*VS}")
    for nt in range(2):
        for ks in range(2): A(f"ds_read_b128 {v(F2[nt][ks],4)}, {v(vl16)} offset:{TB_L + 2048 + nt*2048 + ks*1024}")
    A(f"v_lshlrev_b32 {v(vt[7])}, 1, {v(vl16)}")
    for h in range(2):
        A(f"s_waitcnt lgkmcnt({5-h})")
        for mt in range(2):
            A(f"v_mfma_f32_16x16x32_bf16 {v(acc[2*h+mt],4)}, {v(F1[mt],4)}, {v(Bf[h][0],4)}, 0")
    for reg, sec in ((ga, 1), (sb, 2), (ocb, 3)):
        for u in range(2): A(f"ds_read_b128 {v(reg+4*u,4)}, {v(vt[7])} offset:{MD_L + sec*2048 + u*16}")
    for h in range(2):
        for mt in range(2):
            for pp in range(2):
                re, im = acc[2*h+mt] + 2 * pp, acc[2*h+mt] + 2 * pp + 1
                k = ((h*2+mt)*2+pp)*2
                c_, s_ = tw + k, tw + k + 1
                t0, t1 = vt[4*pp], vt[4*pp+1]
                if pp == 1 and False: pass
                A(f"v_mul_f32 {v(t0)}, {v(re)}, {v(c_)}")
                A(f"v_mul_f32 {v(t1)}, {v(im)}, {v(c_)}")
                A(f"v_fma_f32 {v(t0)}, {v(im)}, {v(s_)}, {v(t0)}")
                A(f"v_fma_f32 {v(t1)}, -{v(re)}, {v(s_)}, {v(t1)}")
                A(f"v_cvt_pk_bf16_f32 {v(vt[4*pp+2])}, {v(t0)}, {v(t1)}")
                A(f"ds_write_b32 {v(vaUw)}, {v(vt[4*pp+2])} offset:{U_OFF + (8*mt+pp)*US + h*64}")
    A("s_waitcnt lgkmcnt(0)")
    for ks in range(2): A(f"ds_read_b128 {v(Bf[ks][0],4)}, {v(vaUr)} offset:{U_OFF + ks*64}")
    A(f"s_waitcnt vmcnt({(1 if pfhalf else 2) if prefetch else 0})")
    xg = [xf, yy]
    for r in range(2):
        for j in range(4):
            A(f"v_lshlrev_b32 {v(xg[r]+2*j)}, 16, {v(xrow[r]+j)}")
            A(f"v_and_b32 {v(xg[r]+2*j+1)}, {s(sT0)}, {v(xrow[r]+j)}")
    for ks in range(2):
        A(f"s_waitcnt lgkmcnt({1-ks})")
        for nt in range(2):
            c = "0" if ks == 0 else v(acc[nt], 4)
            A(f"v_mfma_f32_16x16x32_bf16 {v(acc[nt],4)}, {v(Bf[ks][0],4)}, {v(F2[nt][ks],4)}, {c}")
    A(f"v_lshl_add_u32 {v(vt[0])}, {v(vl16)}, 1, {s(sY)}")
    A(f"v_lshlrev_b32 {v(vt[2])}, 1, {v(vl16)}")
    A(f"v_sub_u32 {v(vt[1])}, 2048, {v(vt[2])}")
    A(f"v_and_b32 {v(vt[1])}, 2047, {v(vt[1])}")
    A(f"v_add_u32 {v(vt[1])}, {s(sY)}, {v(vt[1])}")
    A(f"s_add_u32 {s(sT1)}, {s(sY)}, {505*4}")
    A(f"v_sub_u32 {v(vt[2])}, {s(sT1)}, {v(vt[2])}")
    for nt in range(2): A(f"ds_write_b128 {v(vaYw)}, {v(acc[nt],4)} offset:{nt*1024}")
    A("s_waitcnt lgkmcnt(0)")
    pass
    y = Bf[2][0]; assert Bf[2][1] == y + 4
    y2 = Bf[3][0]; assert Bf[3][1] == y2 + 4
    A(f"ds_read_b128 {v(y,4)}, {v(vt[0])}")
    A(f"ds_read_b128 {v(y+4,4)}, {v(vt[0])} offset:16")
    A(f"ds_read_b32 {v(y2)}, {v(vt[1])}")
    A(f"ds_read_b32 {v(y2+1)}, {v(vt[2])} offset:24")
    for j in (2, 4, 6): A(f"ds_read2_b32 {v(y2+j,2)}, {v(vt[2])} offset0:{7-j} offset1:{6-j}")
    A("s_waitcnt lgkmcnt(5)")
    for j in range(8): A(f"v_fma_f32 {v(xf+j)}, {v(ga+j)}, {v(y+j)}, {v(xf+j)}")
    A("s_waitcnt lgkmcnt(0)")
    for j in range(8): A(f"v_fma_f32 {v(yy+j)}, {v(ga+j)}, {v(y2+j)}, {v(yy+j)}")
    for r in range(2):
        for j in range(4): A(f"v_cvt_pk_bf16_f32 {v(xrow[r]+j)}, {v(xg[r]+2*j)}, {v(xg[r]+2*j+1)}")
    A(f"v_add_u32 {v(vt[2])}, {WS_X1}, {v(vrow[0])}")
    A(f"v_add_u32 {v(vt[3])}, {WS_X1}, {v(vrow[1])}")
    A(f"global_store_dwordx4 {v(vt[2])}, {v(xrow[0],4)}, s[4:5] sc1")
    lab2 = f"{name}_bnomir1"
    A(f"s_cmp_eq_u32 {s(sMir)}, 0")
    A(f"s_cbranch_scc1 {lab2}")
    A(f"global_store_dwordx4 {v(vt[3])}, {v(xrow[1],4)}, s[4:5] sc1")
    A.label(lab2)
    for r in range(2):
        for j in range(4):
            A(f"v_lshlrev_b32 {v(xg[r]+2*j)}, 16, {v(xrow[r]+j)}")
            A(f"v_and_b32 {v(xg[r]+2*j+1)}, {s(sT0)}, {v(xrow[r]+j)}")
    S_ = [vt[0], vt[1]]; Q_ = [vt[4], vt[5]]
    for r in range(2):
        A(f"v_add_f32 {v(S_[r])}, {v(xg[r])}, {v(xg[r]+1)}")
        A(f"v_mul_f32 {v(Q_[r])}, {v(xg[r])}, {v(xg[r])}")
    for j in range(1, 8):
        for r in range(2):
            if j >= 2: A(f"v_add_f32 {v(S_[r])}, {v(S_[r])}, {v(xg[r]+j)}")
            A(f"v_fmac_f32 {v(Q_[r])}, {v(xg[r]+j)}, {v(xg[r]+j)}")
    chains = [S_[0], Q_[0], S_[1], Q_[1]]
    for mode, rm in (("quad_perm:[1,0,3,2]", "0xf"), ("quad_perm:[2,3,0,1]", "0xf"), ("row_half_mirror", "0xf"), ("row_mirror", "0xf"), ("row_bcast:15", "0xa"), ("row_bcast:31", "0xc")):
        for c_ in chains: A(f"v_add_f32_dpp {v(c_)}, {v(c_)}, {v(c_)} {mode} row_mask:{rm} bank_mask:0xf")
    for k, c_ in enumerate(chains): A(f"v_readlane_b32 {s(30+k)}, {v(c_)}, 63")
    A(f"v_mov_b32 {v(vt[6])}, 0x3b000000")
    for r in range(2):
        A(f"v_mul_f32 {v(S_[r])}, {s(30+2*r)}, {v(vt[6])}")
        A(f"v_mul_f32 {v(Q_[r])}, {s(31+2*r)}, {v(vt[6])}")
    for r in range(2): A(f"v_fma_f32 {v(Q_[r])}, -{v(S_[r])}, {v(S_[r])}, {v(Q_[r])}")
    for r in range(2): A(f"v_max_f32 {v(Q_[r])}, 0, {v(Q_[r])}")
    for r in range(2): A(f"v_add_f32 {v(Q_[r])}, 0x3727c5ac, {v(Q_[r])}")
    for r in range(2): A(f"v_rsq_f32 {v(Q_[r])}, {v(Q_[r])}")
    A(f"v_add_u32 {v(vt[2])}, {WS_H2}, {v(vrow[0])}")
    A(f"v_add_u32 {v(vt[3])}, {WS_H2}, {v(vrow[1])}")
    for r in range(2):
        for j in range(8): A(f"v_sub_f32 {v(xg[r]+j)}, {v(xg[r]+j)}, {v(S_[r])}")
    for r in range(2):
        for j in range(8): A(f"v_mul_f32 {v(xg[r]+j)}, {v(xg[r]+j)}, {v(Q_[r])}")
    for r in range(2):
        for j in range(8): A(f"v_fma_f32 {v(xg[r]+j)}, {v(xg[r]+j)}, {v(ocb+j)}, {v(sb+j)}")
    yo = [y, y2]
    for r in range(2):
        for j in range(4): A(f"v_cvt_pk_bf16_f32 {v(yo[r]+j)}, {v(xg[r]+2*j)}, {v(xg[r]+2*j+1)}")
    A(f"global_store_dwordx4 {v(vt[2])}, {v(y,4)}, s[4:5] sc1")
    A(f"s_cmp_eq_u32 {s(sMir)}, 0")
    A(f"s_cbranch_scc1 {name}_bfin")
    A(f"global_store_dwordx4 {v(vt[3])}, {v(y2,4)}, s[4:5] sc1")
    A.label(f"{name}_bfin")
    ST.stamp()
    A(f"s_lshl_b32 {s(sT0)}, s2, 7")
    A(f"s_add_u32 {s(sT0)}, {s(sT0)}, {WS_FLG + FB_O}")
    arrive(3, 8, sT0, "b")
    A("s_barrier")
    A.label(f"{name}_bdone")
    ST.stamp()
    A(f"s_bfe_u32 {s(sRB)}, s2, 0x20001")
    A(f"s_bfe_u32 {s(sT0)}, s2, 0x30003")
    A(f"s_lshl3_add_u32 {s(sRB)}, {s(sRB)}, {s(sT0)}")
    A(f"s_and_b32 {s(sCC)}, s2, 1")
    A(f"s_lshr_b32 {s(sT0)}, s2, 6")
    A(f"s_lshl2_add_u32 {s(sCC)}, {s(sCC)}, {s(sT0)}")
    A(f"s_and_b32 {s(sTH)}, {s(sW)}, 1")
    A(f"s_bfe_u32 {s(sFH)}, {s(sW)}, 0x10001")
    vq, vi = 1, 2
    vtt = [3, 4]
    A(f"v_bfe_u32 v1, v0, 4, 2")
    A(f"v_and_b32 v2, 15, v0")
    A(f"s_lshl1_add_u32 {s(sT0)}, {s(sTH)}, {s(sFH)}")
    A(f"s_xor_b32 {s(sT1)}, {s(sT0)}, 1")
    A(f"v_lshl_add_u32 {v(vtt[0])}, {s(sT0)}, 4, {v(vi)}")
    A(f"v_lshl_add_u32 {v(vtt[1])}, {s(sT1)}, 4, {v(vi)}")
    A(f"s_cmp_ge_u32 {s(sW)}, 4")
    A(f"s_cbranch_scc1 {name}_loader")
    TILES = [(0, 0), (0, 1), (1, 0), (1, 1), (2, 0), (2, 1), (3, 0)]
    nvmax = [0]
    R = RegAlloc(5)
    vC = R.alloc(2)
    vtb = R.alloc(8, 4); vt = [vtb + k for k in range(8)]
    vH = [[R.alloc() for _ in range(2)] for _ in range(2)]
    vWa = [R.alloc() for _ in range(2)]; vWb = [R.alloc() for _ in range(2)]
    vLx = [R.alloc() for _ in range(2)]
    gt2 = R.alloc(16, 4)
    vpf = 252
    z2p = [R.alloc(2) for _ in range(7)]
    st1 = [R.alloc(2) for _ in range(2)]; st2 = [R.alloc(2) for _ in range(2)]
    acc1 = [R.alloc(4) for _ in range(7)]; acc = [acc1, acc1]
    cH = [[R.alloc() for _ in range(2)] for _ in range(2)]; nH = [[R.alloc() for _ in range(2)] for _ in range(2)]
    FH_ = [[[R.alloc(4) for _ in range(2)] for _ in range(2)] for _ in range(2)]
    FW = [[[R.alloc(4) for _ in range(4)] for _ in range(2)] for _ in range(2)]
    A(f"v_and_b32 {v(vt[0])}, 7, {v(vi)}")
    A(f"v_xor_b32 {v(vt[1])}, {v(vq)}, {v(vt[0])}")
    A(f"v_lshlrev_b32 {v(vt[1])}, 4, {v(vt[1])}")
    for hf in range(2):
        A(f"v_lshl_add_u32 {v(vH[hf][0])}, {v(vtt[hf])}, 7, {v(vt[1])}")
        A(f"v_xor_b32 {v(vH[hf][1])}, 64, {v(vH[hf][0])}")
    A(f"v_mul_u32_u24 {v(vt[1])}, {2*GS}, {v(vq)}")
    A(f"v_lshrrev_b32 {v(vt[2])}, 2, {v(vi)}")
    A(f"v_mul_u32_u24 {v(vt[2])}, 224, {v(vt[2])}")
    A(f"v_and_b32 {v(vt[3])}, 3, {v(vi)}")
    A(f"v_lshl_add_u32 {v(vt[1])}, {v(vt[3])}, 3, {v(vt[1])}")
    A(f"v_add_u32 {v(vt[1])}, {v(vt[1])}, {v(vt[2])}")
    A(f"s_lshl_b32 {s(sT0)}, {s(sFH)}, 7")
    A(f"s_add_u32 {s(sT0)}, {s(sT0)}, {W_OFF}")
    A(f"v_add_u32 {v(vWa[0])}, {s(sT0)}, {v(vt[1])}")
    A(f"v_add_u32 {v(vWb[0])}, {W_OFF+96}, {v(vt[1])}")
    A(f"v_add_u32 {v(vWa[1])}, {3*SLOT}, {v(vWa[0])}")
    A(f"v_add_u32 {v(vWb[1])}, {3*SLOT}, {v(vWb[0])}")
    A(f"s_mul_i32 {s(sT0)}, {s(sW)}, {XS}")
    A(f"s_add_u32 {s(sT0)}, {s(sT0)}, {X_OFF}")
    for hf in range(2):
        A(f"v_and_b32 {v(vLx[hf])}, 31, {v(vtt[hf])}")
        A(f"v_mul_u32_u24 {v(vLx[hf])}, 144, {v(vLx[hf])}")
        A(f"v_lshl_add_u32 {v(vLx[hf])}, {v(vq)}, 3, {v(vLx[hf])}")
        A(f"v_add_u32 {v(vLx[hf])}, {s(sT0)}, {v(vLx[hf])}")
    for hf in range(2):
        for r in range(2):
            A(f"v_mov_b32 {v(st1[hf]+r)}, 0"); A(f"v_mov_b32 {v(st2[hf]+r)}, 0")
    A(f"v_mov_b32 {v(vC)}, {fhex(GELU_C2)}")
    A(f"v_mov_b32 {v(vC+1)}, {fhex(GELU_C1)}")
    A("s_waitcnt lgkmcnt(0)")
    def readsZ(slot, buf, hregs, hoff):
        sg = slot // 3; so = (slot % 3) * SLOT
        o = []
        for ks in range(2):
            for hf in range(2): o.append(f"ds_read_b128 {v(FH_[buf][ks][hf],4)}, {v(hregs[hf][ks])} offset:{hoff}")
            for wf in range(4):
                for p in range(2):
                    base = vWa[sg] if wf < 3 else vWb[sg]
                    off = so + ks * 8 * GS + p * GS + (wf * 32 if wf < 3 else 0)
                    o.append(f"ds_read_b64_tr_b16 {v(FW[buf][ks][wf]+2*p,2)}, {v(base)} offset:{off}")
        return o
    def mfmasZ(buf):
        o = []
        for ks in range(2):
            for tl, (wf, hf) in enumerate(TILES):
                o.append(f"v_mfma_f32_16x16x32_bf16 {v(acc1[tl],4)}, {v(FW[buf][ks][wf],4)}, {v(FH_[buf][ks][hf],4)}, {v(acc1[tl],4)}")
        return o
    def zero_acc():
        for tl in range(7):
            for r in range(4): A(f"v_mov_b32 {v(acc1[tl]+r)}, 0")
    def z2_part1():
        A(f"s_mov_b32 {s(sT2)}, 0xffff0000")
        for grp in ([0, 1, 2, 3], [4, 5, 6]):
            for x in gelu_pk_multi([acc[0][tl] for tl in grp], gt2, vC): A(x)
            for tl in grp:
                ac = acc[0][tl]
                for h in range(2): A(f"v_cvt_pk_bf16_f32 {v(z2p[tl]+h)}, {v(ac+2*h)}, {v(ac+2*h+1)}")
            for k, tl in enumerate(grp):
                for h in range(2):
                    A(f"v_lshlrev_b32 {v(gt2+4*k+2*h)}, 16, {v(z2p[tl]+h)}")
                    A(f"v_and_b32 {v(gt2+4*k+2*h+1)}, {s(sT2)}, {v(z2p[tl]+h)}")
            for k, tl in enumerate(grp):
                hf = TILES[tl][1]
                for h in range(2):
                    A(pk("add", st1[hf], v(st1[hf], 2), v(gt2+4*k+2*h, 2)))
                    A(pk("fma", st2[hf], v(gt2+4*k+2*h, 2), v(gt2+4*k+2*h, 2), v(st2[hf], 2)))
        for hf in range(2):
            A(f"v_add_f32 {v(st1[hf])}, {v(st1[hf])}, {v(st1[hf]+1)}")
            A(f"v_add_f32 {v(st2[hf])}, {v(st2[hf])}, {v(st2[hf]+1)}")
        rs4 = (st1[0], st2[0], st1[1], st2[1])
        for k, r in enumerate(rs4): A(f"v_mov_b32 {v(gt2+k)}, {v(r)}")
        for k, r in enumerate(rs4): A(f"v_permlane16_swap_b32 {v(r)}, {v(gt2+k)}")
        for k, r in enumerate(rs4): A(f"v_add_f32 {v(r)}, {v(r)}, {v(gt2+k)}")
        for k, r in enumerate(rs4): A(f"v_mov_b32 {v(gt2+k)}, {v(r)}")
        for k, r in enumerate(rs4): A(f"v_permlane32_swap_b32 {v(r)}, {v(gt2+k)}")
        for k, r in enumerate(rs4): A(f"v_add_f32 {v(r)}, {v(r)}, {v(gt2+k)}")
        for x in [f"v_cmp_eq_u32 vcc, 1, {v(vq)}",
           f"v_mov_b32 {v(vt[4])}, 0x7fc00000",
           f"s_lshl1_add_u32 {s(sT1)}, {s(sRB)}, {s(sTH)}",
           f"v_cndmask_b32 {v(vt[2])}, {v(st1[0])}, {v(st1[1])}, vcc",
           f"v_cndmask_b32 {v(vt[3])}, {v(st2[0])}, {v(st2[1])}, vcc",
           f"v_cndmask_b32 {v(vt[0])}, {v(vtt[0])}, {v(vtt[1])}, vcc",
           f"v_cmp_eq_u32 vcc, -1, {v(vt[2])}",
           f"s_lshl_b32 {s(sT1)}, {s(sT1)}, 12",
           f"v_cndmask_b32 {v(vt[2])}, {v(vt[2])}, {v(vt[4])}, vcc",
           f"v_cmp_eq_u32 vcc, -1, {v(vt[3])}",
           f"s_add_u32 {s(sT1)}, {s(sT1)}, {WS_STAT}",
           f"v_cndmask_b32 {v(vt[3])}, {v(vt[3])}, {v(vt[4])}, vcc",
           f"s_lshl1_add_u32 {s(sT2)}, {s(sCC)}, {s(sFH)}",
           f"s_lshl_b32 {s(sT2)}, {s(sT2)}, 8",
           f"s_add_u32 {s(sT2)}, {s(sT2)}, {s(sT1)}",
           f"v_and_b32 {v(vt[0])}, 31, {v(vt[0])}",
           f"v_lshl_add_u32 {v(vt[0])}, {v(vt[0])}, 3, {s(sT2)}",
           "s_mov_b32 exec_hi, 0",
           f"global_store_dwordx2 {v(vt[0])}, {v(vt[2],2)}, s[4:5] sc1",
           "s_mov_b32 exec_hi, -1"]: A(x)
        for tl, (wf, hf) in enumerate(TILES):
            A(f"ds_write_b64 {v(vLx[hf])}, {v(z2p[tl],2)} offset:{wf*32}")
    def touches():
        A(f"v_and_b32 {v(vt[5])}, 63, v0")
        A(f"s_lshr_b32 {s(sT1)}, s2, 3")
        A(f"s_lshl2_add_u32 {s(sT1)}, {s(sT1)}, {s(sW)}")
        A(f"s_bfe_u32 {s(sT0)}, s2, 0x20001")
        A(f"s_lshl_b32 {s(sT0)}, {s(sT0)}, 21")
        A(f"s_lshl_b32 {s(sT2)}, {s(sT1)}, 14")
        A(f"s_add_u32 {s(sT0)}, {s(sT0)}, {s(sT2)}")
        if pfhalf:
            A(f"s_and_b32 {s(sT2)}, s2, 1")
            A(f"s_lshl_b32 {s(sT2)}, {s(sT2)}, 13")
            A(f"s_add_u32 {s(sT0)}, {s(sT0)}, {s(sT2)}")
        A(f"v_lshl_add_u32 {v(vt[1])}, {v(vt[5])}, 7, {s(sT0)}")
        A(f"global_load_dword {v(vpf)}, {v(vt[1])}, s[12:13]")
        if not pfhalf:
            A(f"v_add_u32 {v(vt[1])}, 8192, {v(vt[1])}")
            A(f"global_load_dword {v(vpf+1)}, {v(vt[1])}, s[12:13]")
        lab = f"{name}_nowo"
        A(f"s_cmp_ge_u32 {s(sT1)}, 56")
        A(f"s_cbranch_scc1 {lab}")
        A(f"v_lshl_add_u32 {v(vt[1])}, {s(sT1)}, 6, {v(vt[5])}")
        A(f"v_lshrrev_b32 {v(vt[2])}, 2, {v(vt[1])}")
        A(f"v_and_b32 {v(vt[1])}, 3, {v(vt[1])}")
        A(f"v_lshlrev_b32 {v(vt[2])}, 10, {v(vt[2])}")
        A(f"v_lshl_add_u32 {v(vt[2])}, {v(vt[1])}, 7, {v(vt[2])}")
        A(f"s_and_b32 {s(sT0)}, s2, 1")
        A(f"s_lshl_b32 {s(sT0)}, {s(sT0)}, 9")
        A(f"v_add_u32 {v(vt[2])}, {s(sT0)}, {v(vt[2])}")
        A(f"global_load_dword {v(vpf+2)}, {v(vt[2])}, s[16:17]")
        A.label(lab)
    sZ = 43
    zero_acc()
    A(f"s_mov_b32 {s(sZ)}, 0")
    A("s_barrier")
    A("s_barrier")
    for r in readsZ(0, 0, vH, 0): A(r)
    zl = f"{name}_zloop"; zc = f"{name}_zcont"
    A.label(zl)
    A(f"s_and_b32 {s(sT0)}, {s(sZ)}, 1")
    A(f"s_lshl_b32 {s(sT0)}, {s(sT0)}, 15")
    A(f"s_xor_b32 {s(sT1)}, {s(sT0)}, 32768")
    for hf in range(2):
        for ks in range(2):
            A(f"v_add_u32 {v(cH[hf][ks])}, {s(sT0)}, {v(vH[hf][ks])}")
            A(f"v_add_u32 {v(nH[hf][ks])}, {s(sT1)}, {v(vH[hf][ks])}")
    for j in range(4):
        A("s_waitcnt lgkmcnt(0)")
        A("s_barrier")
        rd = readsZ((j + 1) % 4, (j + 1) & 1, cH if j < 3 else nH, (j + 1) * 8192 if j < 3 else 0)
        for x in interleave2(mfmasZ(j & 1), rd): A(x)
    A(f"s_add_u32 {s(sZ)}, {s(sZ)}, 1")
    A(f"s_cmp_lg_u32 {s(sZ)}, 2")
    A(f"s_cbranch_scc1 {zc}")
    if prefetch and pfpos == 0: touches()
    z2_part1()
    zero_acc()
    A.label(zc)
    A(f"s_cmp_lt_u32 {s(sZ)}, 4")
    A(f"s_cbranch_scc1 {zl}")
    ST.stamp()
    A("s_waitcnt lgkmcnt(0)")
    vLa = [vH[0][0], vH[1][0]]; vL4 = vH[0][1]
    for hf in range(2):
        A(f"v_mul_u32_u24 {v(vLa[hf])}, 224, {v(vtt[hf])}")
        A(f"v_lshl_add_u32 {v(vLa[hf])}, {v(vq)}, 3, {v(vLa[hf])}")
        A(f"v_add_u32 {v(vLa[hf])}, {ZT}, {v(vLa[hf])}")
    A(f"v_add_u32 {v(vL4)}, 96, {v(vLa[0])}")
    A(f"s_lshl_b32 {s(sT0)}, {s(sFH)}, 7")
    for hf in range(2): A(f"v_add_u32 {v(vLa[hf])}, {s(sT0)}, {v(vLa[hf])}")
    gt = FW[0][0][0]
    for grp in ([0, 1, 2, 3], [4, 5, 6]):
        for x in gelu_pk_multi([acc[1][tl] for tl in grp], gt, vC): A(x)
        for tl in grp:
            wf, hf = TILES[tl]; ac = acc[1][tl]
            for h in range(2): A(f"v_cvt_pk_bf16_f32 {v(ac+h)}, {v(ac+2*h)}, {v(ac+2*h+1)}")
            if wf < 3: A(f"ds_write_b64 {v(vLa[hf])}, {v(ac,2)} offset:{wf*32}")
            else: A(f"ds_write_b64 {v(vL4)}, {v(ac,2)}")
    nvmax[0] = max(nvmax[0], R.hi)
    R = RegAlloc(5)
    vA = R.alloc(); vB = [R.alloc() for _ in range(2)]
    cA = R.alloc(); cB = [R.alloc() for _ in range(2)]
    vtb = R.alloc(8, 4); vt = [vtb + k for k in range(8)]
    accg = [[R.alloc(4) for _ in range(2)] for _ in range(7)]
    FA = [[R.alloc(4) for _ in range(7)] for _ in range(2)]
    FB = [[R.alloc(4) for _ in range(2)] for _ in range(2)]
    vb = R.alloc(); vtw = R.alloc()
    vxw = R.alloc(); vxr = R.alloc(); vz1 = R.alloc(); vz = R.alloc(4); vrb = R.alloc()
    A("s_waitcnt lgkmcnt(0)")
    A(f"v_lshl_add_u32 {v(vtw)}, {s(sW)}, 4, {v(vi)}")
    A(f"v_lshl_add_u32 {v(vt[0])}, {s(sRB)}, 6, {v(vtw)}")
    A(f"v_lshlrev_b32 {v(vt[0])}, 1, {v(vt[0])}")
    A(f"global_load_ushort {v(vb)}, {v(vt[0])}, s[36:37]")
    A(f"s_and_b32 {s(sT0)}, {s(sW)}, 1")
    A(f"s_lshl_b32 {s(sT0)}, {s(sT0)}, 2")
    A(f"v_add_u32 {v(vt[4])}, {s(sT0)}, {v(vq)}")
    A(f"v_and_b32 {v(vt[2])}, 7, {v(vi)}")
    A(f"v_xor_b32 {v(vt[1])}, {v(vt[4])}, {v(vt[2])}")
    A(f"v_lshlrev_b32 {v(vt[1])}, 4, {v(vt[1])}")
    A(f"v_lshl_add_u32 {v(vA)}, {v(vi)}, 7, {v(vt[1])}")
    A(f"v_add_u32 {v(vt[1])}, {B_OFF}, {v(vt[1])}")
    A(f"v_lshl_add_u32 {v(vB[0])}, {v(vtw)}, 7, {v(vt[1])}")
    A(f"v_xor_b32 {v(vt[3])}, 16, {v(vtw)}")
    A(f"v_lshl_add_u32 {v(vB[1])}, {v(vt[3])}, 7, {v(vt[1])}")
    A(f"v_and_b32 {v(vt[0])}, 63, v0")
    A(f"s_mul_i32 {s(sT0)}, {s(sW)}, 7168")
    A(f"s_add_u32 {s(sT0)}, {s(sT0)}, {GX}")
    A(f"v_lshl_add_u32 {v(vxw)}, {v(vt[0])}, 4, {s(sT0)}")
    A(f"s_xor_b32 {s(sT1)}, {s(sW)}, 1")
    A(f"s_mul_i32 {s(sT1)}, {s(sT1)}, 7168")
    A(f"s_add_u32 {s(sT1)}, {s(sT1)}, {GX}")
    A(f"v_lshl_add_u32 {v(vxr)}, {v(vt[0])}, 4, {s(sT1)}")
    A(f"v_mul_u32_u24 {v(vz1)}, 224, {v(vtw)}")
    A(f"v_lshl_add_u32 {v(vz1)}, {v(vq)}, 3, {v(vz1)}")
    A(f"v_add_u32 {v(vz1)}, {ZT}, {v(vz1)}")
    for j in range(4):
        A(f"v_add_u32 {v(vt[4])}, {64*j}, {v(vt[0])}")
        div14(A, vt[5], vt[6], vt[4], vt[7])
        A(f"v_mul_u32_u24 {v(vt[5])}, 1792, {v(vt[5])}")
        A(f"v_lshl_add_u32 {v(vz+j)}, {v(vt[6])}, 4, {v(vt[5])}")
    A(f"s_lshl2_add_u32 {s(sT0)}, {s(sRB)}, {s(sW)}")
    A(f"s_mul_i32 {s(sT0)}, {s(sT0)}, {16*1792}")
    A(f"s_mul_i32 {s(sT1)}, {s(sCC)}, 224")
    A(f"s_add_u32 {s(sT0)}, {s(sT0)}, {s(sT1)}")
    A(f"s_add_u32 {s(sT0)}, {s(sT0)}, {WS_P0}")
    for j in range(4): A(f"v_add_u32 {v(vz+j)}, {s(sT0)}, {v(vz+j)}")
    A(f"s_mul_i32 {s(sT0)}, {s(sW)}, {16*224}")
    A(f"s_add_u32 {s(sT0)}, {s(sT0)}, {ZT}")
    A(f"v_lshl_add_u32 {v(vrb)}, {v(vt[0])}, 4, {s(sT0)}")
    A(f"s_mov_b32 {s(sSlot)}, 0")
    A(f"s_mov_b32 {s(sI)}, 0")
    def rdsG(buf, a_, b_):
        return [f"ds_read_b128 {v(FB[buf][nb],4)}, {v(b_[nb])}" for nb in range(2)] + \
               [f"ds_read_b128 {v(FA[buf][fa],4)}, {v(a_)} offset:{fa*2048}" for fa in range(7)]
    def mmsG(buf, first=False):
        o = []
        for fa in range(7):
            for nb in range(2):
                c = "0" if first else v(accg[fa][nb], 4)
                o.append(f"v_mfma_f32_16x16x32_bf16 {v(accg[fa][nb],4)}, {v(FA[buf][fa],4)}, {v(FB[buf][nb],4)}, {c}")
        return o
    def adv():
        A(f"s_add_u32 {s(sSlot)}, {s(sSlot)}, {STAGE}")
        A(f"s_cmp_ge_u32 {s(sSlot)}, {RING}")
        A(f"s_cselect_b32 {s(sSlot)}, 0, {s(sSlot)}")
        A(f"v_add_u32 {v(cA)}, {s(sSlot)}, {v(vA)}")
        for nb in range(2): A(f"v_add_u32 {v(cB[nb])}, {s(sSlot)}, {v(vB[nb])}")
    ST.stamp()
    A("s_barrier")
    A("s_barrier")
    ST.stamp()
    for r in rdsG(0, vA, vB): A(r)
    adv()
    A("s_waitcnt lgkmcnt(0)")
    A("s_barrier")
    for x in interleave2(mmsG(0, True), rdsG(1, cA, cB)): A(x)
    loop = f"{name}_gloop"
    A.label(loop)
    for buf in (1, 0):
        adv()
        A("s_waitcnt lgkmcnt(0)")
        A("s_barrier")
        for x in interleave2(mmsG(buf), rdsG(buf ^ 1, cA, cB)): A(x)
    A(f"s_add_u32 {s(sI)}, {s(sI)}, 1")
    A(f"s_cmp_lt_u32 {s(sI)}, 15")
    A(f"s_cbranch_scc1 {loop}")
    A("s_waitcnt lgkmcnt(0)")
    for x in mmsG(1): A(x)
    ST.stamp()
    for fa in range(7): A(f"ds_write_b128 {v(vxw)}, {v(accg[fa][1],4)} offset:{fa*1024}")
    A("s_waitcnt vmcnt(0) lgkmcnt(0)")
    A(f"v_lshlrev_b32 {v(vb)}, 16, {v(vb)}")
    A("s_barrier")
    for fa in range(7): A(f"ds_read_b128 {v(FA[0][fa],4)}, {v(vxr)} offset:{fa*1024}")
    zr = [FA[1][fa] for fa in range(7)]
    for fa in range(7): A(f"ds_read_b64 {v(zr[fa],2)}, {v(vz1)} offset:{fa*32}")
    A(f"v_mov_b32 {v(FB[1][0])}, {v(vb)}")
    A(f"v_mov_b32 {v(FB[1][0]+1)}, {v(vb)}")
    A("s_mov_b32 s33, 0xffff0000")
    for fa in range(7):
        ac = accg[fa][0]; pr = FA[0][fa]
        A(f"s_waitcnt lgkmcnt({13 - fa})")
        for h in (0, 2): A(pk("add", ac + h, v(ac + h, 2), v(pr + h, 2)))
        for h in (0, 2): A(pk("add", ac + h, v(ac + h, 2), v(FB[1][0], 2)))
    for fa in range(7):
        ac = accg[fa][0]; pr = FA[0][fa]; z = zr[fa]
        A(f"s_waitcnt lgkmcnt({6 - fa})")
        for h in range(2):
            A(f"v_lshlrev_b32 {v(z+2)}, 16, {v(z+h)}")
            A(f"v_and_b32 {v(z+3)}, s33, {v(z+h)}")
            A(pk("mul", ac + 2*h, v(ac + 2*h, 2), v(z + 2, 2)))
            A(f"v_cvt_pk_bf16_f32 {v(pr+h)}, {v(ac+2*h)}, {v(ac+2*h+1)}")
        A(f"ds_write_b64 {v(vz1)}, {v(pr,2)} offset:{fa*32}")
    A("s_waitcnt lgkmcnt(0)")
    ob = [FA[1][j] for j in range(4)]
    for j in range(4): A(f"ds_read_b128 {v(ob[j],4)}, {v(vrb)} offset:{j*1024}")
    for j in range(3):
        A(f"s_waitcnt lgkmcnt({3-j})")
        A(f"global_store_dwordx4 {v(vz+j)}, {v(ob[j],4)}, s[4:5] sc1")
    A("s_waitcnt lgkmcnt(0)")
    A("s_mov_b32 exec_hi, 0")
    A(f"global_store_dwordx4 {v(vz+3)}, {v(ob[3],4)}, s[4:5] sc1")
    A("s_mov_b32 exec_hi, -1")
    nvmax[0] = max(nvmax[0], R.hi)
    R = RegAlloc(5)
    vtw2 = R.alloc()
    vtb = R.alloc(8, 4); vt = [vtb + k for k in range(8)]
    vW = [[R.alloc() for _ in range(4)] for _ in range(2)]
    vP = [[R.alloc() for _ in range(2)] for _ in range(2)]
    vP2 = [[R.alloc() for _ in range(2)] for _ in range(2)]
    acco = [[R.alloc(4) for _ in range(2)] for _ in range(4)]
    FWo = [[[R.alloc(4) for _ in range(4)] for _ in range(2)] for _ in range(2)]
    FP = [[[R.alloc(4) for _ in range(2)] for _ in range(2)] for _ in range(2)]
    gb = [R.alloc(4) for _ in range(4)]
    vcnt = R.alloc(2)
    A(f"s_lshl3_add_u32 {s(sT0)}, {s(sRB)}, {s(sCC)}")
    A(f"s_lshl_b32 {s(sT0)}, {s(sT0)}, 7")
    A(f"s_add_u32 {s(sT0)}, {s(sT0)}, {WS_FLG + FT_O}")
    arrive(1, 4, sT0, "p")
    ST.stamp()
    A("s_barrier")
    A(f"v_lshl_add_u32 {v(vtw2)}, {s(sW)}, 4, {v(vi)}")
    A(f"s_and_b32 {s(sT2)}, {s(sW)}, 1")
    A(f"v_lshrrev_b32 {v(vt[0])}, 2, {v(vi)}")
    A(f"v_lshl_add_u32 {v(vt[0])}, {v(vq)}, 3, {v(vt[0])}")
    A(f"v_lshlrev_b32 {v(vt[0])}, 7, {v(vt[0])}")
    A(f"v_and_b32 {v(vt[1])}, 1, {v(vi)}")
    A(f"v_lshl_add_u32 {v(vt[0])}, {v(vt[1])}, 3, {v(vt[0])}")
    A(f"s_lshl_b32 {s(sT0)}, {s(sT2)}, 13")
    A(f"v_add_u32 {v(vt[0])}, {s(sT0)}, {v(vt[0])}")
    A(f"v_bfe_u32 {v(vt[1])}, {v(vi)}, 3, 1")
    A(f"v_and_b32 {v(vt[2])}, 1, {v(vq)}")
    A(f"v_lshl_or_b32 {v(vt[1])}, {v(vt[2])}, 1, {v(vt[1])}")
    A(f"v_lshlrev_b32 {v(vt[1])}, 1, {v(vt[1])}")
    A(f"v_bfe_u32 {v(vt[2])}, {v(vi)}, 1, 1")
    A(f"v_xor_b32 {v(vt[1])}, {v(vt[1])}, {v(vt[2])}")
    for dt in range(4):
        A(f"v_xor_b32 {v(vt[3])}, {2*dt}, {v(vt[1])}")
        A(f"v_lshl_add_u32 {v(vW[0][dt])}, {v(vt[3])}, 4, {v(vt[0])}")
        A(f"v_add_u32 {v(vW[1][dt])}, 65536, {v(vW[0][dt])}")
    A(f"v_and_b32 {v(vt[0])}, 7, {v(vi)}")
    A(f"v_xor_b32 {v(vt[1])}, {v(vq)}, {v(vt[0])}")
    A(f"v_lshlrev_b32 {v(vt[1])}, 4, {v(vt[1])}")
    A(f"s_add_u32 {s(sT0)}, {s(sT0)}, {OP}")
    A(f"v_add_u32 {v(vt[1])}, {s(sT0)}, {v(vt[1])}")
    A(f"v_lshl_add_u32 {v(vP[0][0])}, {v(vtw2)}, 7, {v(vt[1])}")
    A(f"v_xor_b32 {v(vP[1][0])}, 2048, {v(vP[0][0])}")
    for tl in range(2): A(f"v_xor_b32 {v(vP[tl][1])}, 64, {v(vP[tl][0])}")
    for tl in range(2):
        for ks in range(2): A(f"v_add_u32 {v(vP2[tl][ks])}, 65536, {v(vP[tl][ks])}")
    A(f"s_lshl_b32 {s(sT0)}, {s(sCC)}, 8")
    A(f"s_add_u32 {s(sT0)}, {s(sT0)}, {WS_MOD + 2560*4}")
    A(f"v_lshl_add_u32 {v(vt[0])}, {v(vq)}, 4, {s(sT0)}")
    for dt in range(4): A(f"global_load_dwordx4 {v(gb[dt],4)}, {v(vt[0])}, s[4:5] offset:{dt*64}")
    assert OP % 4096 == 0
    def readsO(st, buf):
        ws_ = st % NW; g = ws_ // 4; so = (ws_ % 4) * 16384
        ps = st % NSO; pr_ = vP if ps < 4 else vP2; po = (ps % 4) * PSLOT
        o = []
        for ks in range(2):
            for tl in range(2): o.append(f"ds_read_b128 {v(FP[buf][ks][tl],4)}, {v(pr_[tl][ks])} offset:{po}")
            for dt in range(4):
                for p in range(2):
                    o.append(f"ds_read_b64_tr_b16 {v(FWo[buf][ks][dt]+2*p,2)}, {v(vW[g][dt])} offset:{so + ks*4096 + p*512}")
        return o
    def mfmasO(st, buf):
        o = []
        for ks in range(2):
            for dt in range(4):
                for tl in range(2):
                    c = "0" if st == 0 and ks == 0 else v(acco[dt][tl], 4)
                    o.append(f"v_mfma_f32_16x16x32_bf16 {v(acco[dt][tl],4)}, {v(FWo[buf][ks][dt],4)}, {v(FP[buf][ks][tl],4)}, {c}")
        return o
    XT = OP + 2 * PSLOT
    E_OFF = 2 * 16384
    consumer_full(A, NSTO, readsO, mfmasO)
    ST.stamp()
    A(f"v_and_b32 {v(vt[0])}, 63, v0")
    A(f"s_lshl_b32 {s(sT0)}, {s(sW)}, 12")
    A(f"s_add_u32 {s(sT0)}, {s(sT0)}, {E_OFF}")
    A(f"v_lshl_add_u32 {v(vt[1])}, {v(vt[0])}, 4, {s(sT0)}")
    A(f"v_xor_b32 {v(vt[2])}, 4096, {v(vt[1])}")
    for dt in range(4): A(f"ds_write_b128 {v(vt[1])}, {v(acco[dt][1],4)} offset:{dt*1024}")
    va = [vt[4], vt[5], vt[6], vt[7]]
    A(f"v_and_b32 {v(vt[3])}, 7, {v(vi)}")
    A(f"v_lshrrev_b32 {v(vW[0][0])}, 1, {v(vq)}")
    A(f"v_xor_b32 {v(vt[3])}, {v(vt[3])}, {v(vW[0][0])}")
    A(f"v_and_b32 {v(vW[0][0])}, 1, {v(vq)}")
    A(f"v_lshlrev_b32 {v(vW[0][0])}, 3, {v(vW[0][0])}")
    A(f"v_lshl_add_u32 {v(vW[0][0])}, {v(vtw2)}, 7, {v(vW[0][0])}")
    A(f"v_add_u32 {v(vW[0][0])}, {XT}, {v(vW[0][0])}")
    for dt in range(4):
        A(f"v_xor_b32 {v(vW[0][1])}, {2*dt}, {v(vt[3])}")
        A(f"v_lshl_add_u32 {v(va[dt])}, {v(vW[0][1])}, 4, {v(vW[0][0])}")
    vrb2 = vW[1][0]; vgo = vW[1][1]
    A(f"v_lshrrev_b32 {v(vW[1][2])}, 3, {v(vt[0])}")
    A(f"v_and_b32 {v(vW[1][3])}, 7, {v(vt[0])}")
    A(f"v_xor_b32 {v(vrb2)}, {v(vW[1][2])}, {v(vW[1][3])}")
    A(f"v_lshlrev_b32 {v(vrb2)}, 4, {v(vrb2)}")
    A(f"v_lshl_add_u32 {v(vrb2)}, {v(vW[1][2])}, 7, {v(vrb2)}")
    A(f"s_lshl_b32 {s(sT0)}, {s(sW)}, 11")
    A(f"s_add_u32 {s(sT0)}, {s(sT0)}, {XT}")
    A(f"v_add_u32 {v(vrb2)}, {s(sT0)}, {v(vrb2)}")
    A(f"v_lshlrev_b32 {v(vgo)}, 10, {v(vW[1][2])}")
    A(f"v_lshl_add_u32 {v(vgo)}, {v(vW[1][3])}, 4, {v(vgo)}")
    A(f"s_lshl2_add_u32 {s(sT0)}, {s(sRB)}, {s(sW)}")
    A(f"s_lshl_b32 {s(sT0)}, {s(sT0)}, 14")
    A(f"s_lshl_b32 {s(sT1)}, {s(sCC)}, 7")
    A(f"s_add_u32 {s(sT0)}, {s(sT0)}, {s(sT1)}")
    A(f"v_add_u32 {v(vgo)}, {s(sT0)}, {v(vgo)}")
    A("s_waitcnt vmcnt(0) lgkmcnt(0)")
    A("s_barrier")
    for dt in range(4): A(f"ds_read_b128 {v(FWo[0][0][dt],4)}, {v(vt[2])} offset:{dt*1024}")
    xa = [FWo[0][1][dt] for dt in range(4)]
    for dt in range(4): A(f"ds_read_b64 {v(xa[dt],2)}, {v(va[dt])}")
    A(f"s_mov_b32 {s(sT0)}, 0xffff0000")
    for dt in range(4):
        ac = acco[dt][0]; pr = FWo[0][0][dt]; x = xa[dt]
        A(f"s_waitcnt lgkmcnt({7-dt})")
        for h in (0, 2): A(pk("add", ac + h, v(ac + h, 2), v(pr + h, 2)))
        A(f"s_waitcnt lgkmcnt({3-dt})")
        for h in range(2):
            A(f"v_lshlrev_b32 {v(x+2)}, 16, {v(x+h)}")
            A(f"v_and_b32 {v(x+3)}, {s(sT0)}, {v(x+h)}")
            A(pk("fma", pr, v(ac + 2*h, 2), v(gb[dt] + 2*h, 2), v(x + 2, 2)))
            A(f"v_cvt_pk_bf16_f32 {v(ac+h)}, {v(pr)}, {v(pr+1)}")
        A(f"ds_write_b64 {v(va[dt])}, {v(ac,2)}")
    A("s_waitcnt lgkmcnt(0)")
    ob = [FP[0][0][0], FP[0][0][1]]
    for u in range(2): A(f"ds_read_b128 {v(ob[u],4)}, {v(vrb2)} offset:{u*1024}")
    A("s_waitcnt lgkmcnt(1)")
    A(f"global_store_dwordx4 {v(vgo)}, {v(ob[0],4)}, s[38:39]")
    A(f"v_add_u32 {v(vgo)}, 8192, {v(vgo)}")
    A("s_waitcnt lgkmcnt(0)")
    A(f"global_store_dwordx4 {v(vgo)}, {v(ob[1],4)}, s[38:39]")
    if stamps:
        ST.stamp(); ST.flush(4, vt[4])
    A("s_endpgm")
    nvmax[0] = max(nvmax[0], R.hi)
    A.label(f"{name}_loader")
    STL = Stamps(A, on=stamps, kidx=0, base=70)
    R = RegAlloc(5)
    voW = [R.alloc() for _ in range(4)]; voH = [R.alloc() for _ in range(2)]
    vl = R.alloc(); t0 = R.alloc(); t1 = R.alloc(); t2 = R.alloc(); t3 = R.alloc()
    vtb = R.alloc(8, 4); vt = [vtb + k for k in range(8)]
    za = [R.alloc(4) for _ in range(4)]
    z2p = [R.alloc(2) for _ in range(7)]
    st1 = [R.alloc(2) for _ in range(2)]
    pol = [R.alloc(4) for _ in range(4)]
    vrow = [R.alloc() for _ in range(2)]; vLa = [R.alloc() for _ in range(2)]
    vo = [R.alloc() for _ in range(6)]
    vcn = R.alloc(2)
    sLw, sWk, sHk, sLW, sLH = 29, 30, 31, 32, 33
    A("s_mov_b32 s10, %d" % (512 * WROW)); A("s_mov_b32 s11, 0x20000")
    A("s_mov_b32 s6, %d" % (32 * MB)); A("s_mov_b32 s7, 0x20000")
    A(f"s_sub_u32 {s(sLw)}, {s(sW)}, 4")
    A(f"v_and_b32 {v(vl)}, 63, v0")
    div14(A, t0, t1, vl, t2)
    A(f"v_mul_u32_u24 {v(t0)}, {WROW}, {v(t0)}")
    A(f"v_lshl_add_u32 {v(t0)}, {v(t1)}, 4, {v(t0)}")
    A(f"s_mul_i32 {s(sT0)}, {s(sLw)}, {16*WROW}")
    A(f"v_add_u32 {v(voW[0])}, {s(sT0)}, {v(t0)}")
    for g in range(1, 4): A(f"v_add_u32 {v(voW[g])}, {g*(4*WROW - GS)}, {v(voW[0])}")
    A(f"v_lshrrev_b32 {v(t0)}, 3, {v(vl)}")
    A(f"v_and_b32 {v(t1)}, 7, {v(vl)}")
    A(f"v_xor_b32 {v(t1)}, {v(t1)}, {v(t0)}")
    A(f"v_lshlrev_b32 {v(t1)}, 4, {v(t1)}")
    A(f"v_lshl_add_u32 {v(t0)}, {v(t0)}, 10, {v(t1)}")
    A(f"s_lshl_b32 {s(sT0)}, {s(sLw)}, 14")
    A(f"v_add_u32 {v(voH[0])}, {s(sT0)}, {v(t0)}")
    A(f"v_add_u32 {v(voH[1])}, {8192-1024}, {v(voH[0])}")
    A(f"s_mul_i32 {s(sWk)}, {s(sCC)}, 224")
    A(f"s_lshl_b32 {s(sHk)}, {s(sRB)}, 16")
    A(f"s_add_u32 {s(sHk)}, {s(sHk)}, {WS_H2}")
    A(f"s_mul_i32 {s(sLW)}, {s(sLw)}, {4*GS}")
    A(f"s_lshl_b32 {s(sLH)}, {s(sLw)}, 11")
    A("s_waitcnt lgkmcnt(0)")
    def issueZ(st, w=True, h=True):
        half, kc = st >> 3, st & 7; slot = st % NSZ
        if w:
            A(f"s_add_u32 m0, {s(sLW)}, {W_OFF + slot*SLOT}")
            A(f"s_add_u32 {s(sT0)}, {s(sWk)}, {kc*64*WROW + (1792 if half == 0 else 0)}")
            A("s_mov_b32 exec_hi, 0x00ffffff")
            for g in range(4):
                A(f"buffer_load_dwordx4 {v(voW[g])}, s[8:11], {s(sT0)} offen offset:{g*GS} lds")
            A("s_mov_b32 exec_hi, -1")
        if half == 0 and h:
            A(f"s_add_u32 m0, {s(sLH)}, {kc*8192}")
            A(f"s_add_u32 {s(sT0)}, {s(sHk)}, {kc*128}")
            for j in range(2):
                A(f"buffer_load_dwordx4 {v(voH[j])}, s[4:7], {s(sT0)} offen offset:{j*1024} lds")
    for st in range(NSZ): issueZ(st, h=False)
    def addrB(va_):
        a, b_, c_ = vt[0], vt[1], vt[2]
        A(f"s_lshr_b32 {s(sT1)}, {s(sRB)}, 3")
        A(f"s_sub_u32 {s(sT2)}, 31, {s(sRB)}")
        A(f"s_lshr_b32 {s(sT2)}, {s(sT2)}, 3")
        A(f"v_cmp_lt_u32 vcc, 32, {v(va_)}")
        A(f"v_subrev_u32 {v(a)}, 32, {v(va_)}")
        A(f"v_cndmask_b32 {v(a)}, {v(va_)}, {v(a)}, vcc")
        A(f"v_mov_b32 {v(b_)}, {s(sT1)}")
        A(f"v_mov_b32 {v(c_)}, {s(sT2)}")
        A(f"v_cndmask_b32 {v(b_)}, {v(b_)}, {v(c_)}, vcc")
        A(f"v_and_b32 {v(c_)}, 7, {v(a)}")
        A(f"v_lshl_add_u32 {v(c_)}, {v(b_)}, 3, {v(c_)}")
        A(f"v_lshrrev_b32 {v(va_)}, 3, {v(a)}")
        A(f"v_lshl_add_u32 {v(c_)}, {v(va_)}, 5, {v(c_)}")
        A(f"v_add_u32 {v(b_)}, 128, {v(b_)}")
        A(f"v_cmp_eq_u32 vcc, 32, {v(a)}")
        A(f"v_cndmask_b32 {v(c_)}, {v(c_)}, {v(b_)}, vcc")
        A(f"s_mov_b32 {s(sT1)}, {WS_FLG + FB_O}")
        A(f"v_lshl_add_u32 {v(va_)}, {v(c_)}, 7, {s(sT1)}")
    wait_flags("b", sT2, 64, False, addrB)
    if stamps: STL.n = 0; STL.stamp()
    for st in range(NSZ): issueZ(st, w=False)
    le = f"{name}_noep"
    A(f"s_or_b32 {s(sT0)}, s2, {s(sLw)}")
    A(f"s_cbranch_scc1 {le}")
    A(f"v_mov_b32 v244, {WS_EPOCH}")
    A(f"v_mov_b32 v245, {s(sTAG)}")
    A("s_mov_b64 exec, 1")
    A("global_store_dword v244, v245, s[4:5] sc1")
    A("s_mov_b64 exec, -1")
    A.label(le)
    A(f"v_lshrrev_b32 {v(t0)}, 3, {v(vl)}")
    A(f"v_lshl_add_u32 {v(t0)}, {v(t0)}, 12, {v(t1)}")
    sL1, sL2, sK1 = 40, 41, 42
    SR1, SR2 = 44, 48
    A(f"s_lshl_b32 {s(sT0)}, {s(sLw)}, 3")
    A(f"s_mov_b32 {s(sT1)}, 0x060c0600")
    A(f"s_lshr_b32 {s(sT1)}, {s(sT1)}, {s(sT0)}")
    A(f"s_and_b32 {s(sT1)}, {s(sT1)}, 0xff")
    A(f"s_mov_b32 {s(sT2)}, 0x03000903")
    A(f"s_lshr_b32 {s(sT2)}, {s(sT2)}, {s(sT0)}")
    A(f"s_and_b32 {s(sT2)}, {s(sT2)}, 0xff")
    STEP = 8 * 4096 - 1024
    A(f"s_lshl_b32 {s(sT0)}, {s(sT1)}, 15")
    A(f"v_add_u32 {v(vo[0])}, {s(sT0)}, {v(t0)}")
    A(f"s_lshl_b32 {s(sT0)}, {s(sT2)}, 15")
    A(f"v_add_u32 {v(vo[3])}, {s(sT0)}, {v(t0)}")
    for k in (1, 2):
        A(f"v_add_u32 {v(vo[k])}, {k*STEP}, {v(vo[0])}")
        A(f"v_add_u32 {v(vo[3+k])}, {k*STEP}, {v(vo[3])}")
    A(f"s_lshl_b32 {s(sL1)}, {s(sT1)}, 10")
    A(f"s_lshl_b32 {s(sL2)}, {s(sT2)}, 10")
    A(f"s_cmp_eq_u32 {s(sLw)}, 3")
    A(f"s_cselect_b32 {s(sT0)}, {B_OFF}, 0")
    A(f"s_add_u32 {s(sL1)}, {s(sL1)}, {s(sT0)}")
    A(f"s_cmp_ge_u32 {s(sLw)}, 2")
    A(f"s_cselect_b32 {s(sT0)}, {B_OFF}, 0")
    A(f"s_add_u32 {s(sL2)}, {s(sL2)}, {s(sT0)}")
    A(f"s_mul_i32 {s(sT0)}, {s(sCC)}, {112*4096}")
    A(f"s_add_u32 {s(sT0)}, {s(sT0)}, {WS_Z2T}")
    A(f"s_add_u32 s52, s4, {s(sT0)}")
    A(f"s_addc_u32 s53, s5, 0")
    A(f"s_lshl_b32 {s(sT0)}, {s(sRB)}, 18")
    A(f"s_add_u32 s54, s12, {s(sT0)}")
    A(f"s_addc_u32 s55, s13, 0")
    A(f"s_cmp_eq_u32 {s(sLw)}, 3")
    A(f"s_cselect_b32 {s(SR1)}, s54, s52")
    A(f"s_cselect_b32 {s(SR1+1)}, s55, s53")
    A(f"s_mov_b32 {s(SR1+2)}, {112*4096}")
    A(f"s_mov_b32 {s(SR1+3)}, 0x20000")
    A(f"s_cmp_ge_u32 {s(sLw)}, 2")
    A(f"s_cselect_b32 {s(SR2)}, s54, s52")
    A(f"s_cselect_b32 {s(SR2+1)}, s55, s53")
    A(f"s_mov_b32 {s(SR2+2)}, {112*4096}")
    A(f"s_mov_b32 {s(SR2+3)}, 0x20000")
    qz = [("W", s_) for s_ in range(NSZ) for _ in range(4)] + [("H", s_) for s_ in range(NSZ) for _ in range(2)]
    qz = [x for x in qz if x[0] == "H"]
    issued = NSZ
    for i in range(NSTZ):
        idx = [k for k, x in enumerate(qz) if x[1] == i]
        out = (len(qz) - 1 - max(idx)) if idx else len(qz)
        A(f"s_waitcnt vmcnt({out})")
        A("s_barrier")
        if i >= 1 and issued < NSTZ:
            issueZ(issued)
            qz += [("W", issued)] * 4 + ([("H", issued)] * 2 if issued < 8 else [])
            issued += 1
    A(f"s_lshl1_add_u32 {s(sT1)}, {s(sRB)}, {s(sTH)}")
    A(f"s_lshl_b32 {s(sT1)}, {s(sT1)}, 12")
    A(f"s_add_u32 {s(sT1)}, {s(sT1)}, {WS_STAT}")
    for hf in range(2):
        A(f"v_and_b32 {v(vrow[hf])}, 31, {v(vtt[hf])}")
        A(f"v_lshl_add_u32 {v(vrow[hf])}, {v(vrow[hf])}, 3, {s(sT1)}")
        A(f"v_lshl_add_u32 {v(vrow[hf])}, {v(vq)}, 10, {v(vrow[hf])}")
    A(f"s_mul_i32 {s(sT0)}, {s(sLw)}, {XS}")
    A(f"s_add_u32 {s(sT0)}, {s(sT0)}, {X_OFF}")
    for hf in range(2):
        A(f"v_and_b32 {v(vLa[hf])}, 31, {v(vtt[hf])}")
        A(f"v_mul_u32_u24 {v(vLa[hf])}, 144, {v(vLa[hf])}")
        A(f"v_lshl_add_u32 {v(vLa[hf])}, {v(vq)}, 3, {v(vLa[hf])}")
        A(f"v_add_u32 {v(vLa[hf])}, {s(sT0)}, {v(vLa[hf])}")
    vtr = voH[0]; vgz = voH[1]; vtr3 = voW[0]; vgz3 = voW[1]
    A(f"v_lshrrev_b32 {v(t0)}, 2, {v(vi)}")
    A(f"v_lshl_add_u32 {v(t0)}, {v(vq)}, 3, {v(t0)}")
    A(f"v_mul_u32_u24 {v(vtr)}, 144, {v(t0)}")
    A(f"v_and_b32 {v(t1)}, 3, {v(vi)}")
    A(f"v_lshl_add_u32 {v(vtr)}, {v(t1)}, 3, {v(vtr)}")
    A(f"v_add_u32 {v(vtr)}, {s(sT0)}, {v(vtr)}")
    A(f"s_mul_i32 {s(sT1)}, {s(sFH)}, {16*144}")
    A(f"s_add_u32 {s(sT1)}, {s(sT1)}, 96")
    A(f"v_add_u32 {v(vtr3)}, {s(sT1)}, {v(vtr)}")
    A(f"v_lshlrev_b32 {v(vgz)}, 12, {v(vi)}")
    A(f"v_lshl_add_u32 {v(vgz)}, {v(vq)}, 4, {v(vgz)}")
    A(f"s_mul_i32 {s(sT1)}, {s(sCC)}, {112*4096}")
    A(f"s_lshl_b32 {s(sT2)}, {s(sRB)}, 7")
    A(f"s_add_u32 {s(sT1)}, {s(sT1)}, {s(sT2)}")
    A(f"s_lshl_b32 {s(sT2)}, {s(sTH)}, 6")
    A(f"s_add_u32 {s(sT1)}, {s(sT1)}, {s(sT2)}")
    A(f"s_add_u32 {s(sT1)}, {s(sT1)}, {WS_Z2T}")
    A(f"s_lshl_b32 {s(sT2)}, {s(sFH)}, 5")
    A(f"s_add_u32 {s(sT2)}, {s(sT2)}, {48*4096}")
    A(f"s_add_u32 {s(sT2)}, {s(sT2)}, {s(sT1)}")
    A(f"v_add_u32 {v(vgz3)}, {s(sT2)}, {v(vgz)}")
    A(f"s_lshl_b32 {s(sT2)}, {s(sFH)}, 18")
    A(f"s_add_u32 {s(sT1)}, {s(sT1)}, {s(sT2)}")
    A(f"v_add_u32 {v(vgz)}, {s(sT1)}, {v(vgz)}")
    for tl, (wf, hf) in enumerate(TILES):
        A(f"ds_read_b64 {v(z2p[tl],2)}, {v(vLa[hf])} offset:{wf*32}")
    A("s_barrier")
    lskip = f"{name}_nob"
    A(f"s_cmp_lt_u32 {s(sLw)}, 2")
    A(f"s_cbranch_scc1 {lskip}")
    A(f"s_mov_b32 {s(sK1)}, 0")
    for st in range(NSG):
        A(f"s_add_u32 m0, {s(sL2)}, {st*STAGE}")
        if st: A(f"s_add_u32 {s(sK1)}, {s(sK1)}, 128")
        for k in range(3): A(f"buffer_load_dwordx4 {v(vo[3+k])}, {s(SR2,4)}, {s(sK1)} offen offset:{k*1024} lds")
    A.label(lskip)
    if stamps: STL.stamp()
    A(f"s_mov_b32 {s(sK)}, 0")
    A.label(f"{name}_poll")
    for hf in range(2):
        for u in range(4):
            A(f"global_load_dwordx2 {v(pol[hf*2+(u>>1)]+2*(u&1),2)}, {v(vrow[hf])}, s[4:5] offset:{u*256} sc1")
    A("s_waitcnt vmcnt(0)")
    A(f"v_max3_u32 {v(vt[0])}, {v(pol[0])}, {v(pol[0]+1)}, {v(pol[0]+2)}")
    rest = [pol[0]+3] + [pol[b_]+r for b_ in range(1, 4) for r in range(4)]
    for k in range(0, len(rest) - 1, 2): A(f"v_max3_u32 {v(vt[0])}, {v(vt[0])}, {v(rest[k])}, {v(rest[k+1])}")
    A(f"v_max_u32 {v(vt[0])}, {v(vt[0])}, {v(rest[-1])}")
    A(f"v_cmp_eq_u32 vcc, -1, {v(vt[0])}")
    A(f"s_add_u32 {s(sK)}, {s(sK)}, 1")
    A(f"s_cmp_eq_u64 vcc, 0")
    A(f"s_cbranch_scc1 {name}_polled")
    A("s_sleep 2")
    A(f"s_cmp_lt_u32 {s(sK)}, {SPIN}")
    A(f"s_cbranch_scc1 {name}_poll")
    A.label(f"{name}_polled")
    mean = [vt[0], vt[1]]; rstd = [vt[2], vt[3]]
    for hf in range(2):
        p0, p1 = pol[hf*2], pol[hf*2+1]
        A(pk("add", p0, v(p0, 2), v(p0+2, 2)))
        A(pk("add", p1, v(p1, 2), v(p1+2, 2)))
        A(pk("add", p0, v(p0, 2), v(p1, 2)))
        A(f"v_mov_b32 {v(mean[hf])}, {v(p0)}")
        A(f"v_mov_b32 {v(rstd[hf])}, {v(p0+1)}")
    xor16_32_sum(A, mean + rstd, vt[6])
    for hf in range(2):
        A(f"v_mul_f32 {v(mean[hf])}, {fhex(1.0/896)}, {v(mean[hf])}")
        A(f"v_mul_f32 {v(rstd[hf])}, {fhex(1.0/896)}, {v(rstd[hf])}")
        A(f"v_fma_f32 {v(rstd[hf])}, -{v(mean[hf])}, {v(mean[hf])}, {v(rstd[hf])}")
        A(f"v_max_f32 {v(rstd[hf])}, 0, {v(rstd[hf])}")
        A(f"v_add_f32 {v(rstd[hf])}, 0x3727c5ac, {v(rstd[hf])}")
        A(f"v_rsq_f32 {v(rstd[hf])}, {v(rstd[hf])}")
        A(f"v_mul_f32 {v(mean[hf])}, {v(mean[hf])}, {v(rstd[hf])}")
    for hf in range(2):
        A(f"v_mov_b32 {v(st1[hf])}, {v(rstd[hf])}")
        A(f"v_sub_f32 {v(st1[hf]+1)}, 0, {v(mean[hf])}")
    A(f"s_mov_b32 {s(sT0)}, 0xffff0000")
    A("s_waitcnt lgkmcnt(0)")
    for tl, (wf, hf) in enumerate(TILES):
        z = z2p[tl]
        for h in range(2):
            A(f"v_lshlrev_b32 {v(vt[4])}, 16, {v(z+h)}")
            A(f"v_and_b32 {v(vt[5])}, {s(sT0)}, {v(z+h)}")
            A(pk("fma", vt[4], v(vt[4], 2), v(st1[hf], 2), v(st1[hf], 2), "op_sel:[0,0,1] op_sel_hi:[1,0,1]"))
            A(f"v_cvt_pk_bf16_f32 {v(z+h)}, {v(vt[4])}, {v(vt[5])}")
        A(f"ds_write_b64 {v(vLa[hf])}, {v(z,2)} offset:{wf*32}")
    A("s_waitcnt lgkmcnt(0)")
    for wf in range(3):
        for p in range(2): A(f"ds_read_b64_tr_b16 {v(za[wf]+2*p,2)}, {v(vtr)} offset:{wf*32 + 4*p*144}")
    for p in range(2): A(f"ds_read_b64_tr_b16 {v(za[3]+2*p,2)}, {v(vtr3)} offset:{4*p*144}")
    for wf in range(3):
        A(f"s_waitcnt lgkmcnt({6-2*wf})")
        A(f"global_store_dwordx4 {v(vgz)}, {v(za[wf],4)}, s[4:5] sc1")
        if wf < 2: A(f"v_add_u32 {v(vgz)}, {16*4096}, {v(vgz)}")
    A("s_waitcnt lgkmcnt(0)")
    A("s_mov_b32 exec_hi, 0")
    A(f"global_store_dwordx4 {v(vgz3)}, {v(za[3],4)}, s[4:5] sc1")
    A("s_mov_b32 exec_hi, -1")
    A(f"s_lshl_b32 {s(sT0)}, {s(sCC)}, 5")
    A(f"s_add_u32 {s(sT0)}, {s(sT0)}, {s(sRB)}")
    A(f"s_lshl_b32 {s(sT0)}, {s(sT0)}, 7")
    A(f"s_add_u32 {s(sT0)}, {s(sT0)}, {WS_FLG + FC_O}")
    arrive(0, 4, sT0, "z")
    if stamps: STL.stamp()
    A(f"s_lshl_b32 {s(sT2)}, {s(sCC)}, 12")
    A(f"s_add_u32 {s(sT2)}, {s(sT2)}, {WS_FLG + FC_O}")
    wait_flags("c", sT2, 32, False)
    if stamps: STL.stamp()
    A(f"s_cmp_ge_u32 {s(sLw)}, 2")
    A(f"s_cbranch_scc1 {name}_ldY")
    def pathG(tag, n1, early2):
        n = n1 + 3
        q = []
        def need(x): return len(q) - 1 - max(k for k, y in enumerate(q) if y == x)
        A(f"s_mov_b32 {s(sK1)}, 0")
        for st in range(NSG):
            A(f"s_add_u32 m0, {s(sL1)}, {st*STAGE}")
            if st: A(f"s_add_u32 {s(sK1)}, {s(sK1)}, 128")
            for k in range(n1): A(f"buffer_load_dwordx4 {v(vo[k])}, {s(SR1,4)}, {s(sK1)} offen offset:{k*1024} lds"); q.append(st)
            if not early2:
                A(f"s_add_u32 m0, {s(sL2)}, {st*STAGE}")
                for k in range(3): A(f"buffer_load_dwordx4 {v(vo[3+k])}, {s(SR2,4)}, {s(sK1)} offen offset:{k*1024} lds"); q.append(st)
        A(f"s_add_u32 {s(sK1)}, {s(sK1)}, 128")
        A(f"s_mov_b32 {s(sSlot)}, 0")
        def issue(st):
            A(f"s_add_u32 m0, {s(sSlot)}, {s(sL1)}")
            A(f"s_add_u32 {s(sT0)}, {s(sSlot)}, {s(sL2)}")
            for k in range(n1): A(f"buffer_load_dwordx4 {v(vo[k])}, {s(SR1,4)}, {s(sK1)} offen offset:{k*1024} lds"); q.append(st)
            A(f"s_mov_b32 m0, {s(sT0)}")
            A(f"s_add_u32 {s(sSlot)}, {s(sSlot)}, {STAGE}")
            for k in range(3): A(f"buffer_load_dwordx4 {v(vo[3+k])}, {s(SR2,4)}, {s(sK1)} offen offset:{k*1024} lds"); q.append(st)
            A(f"s_add_u32 {s(sK1)}, {s(sK1)}, 128")
            A(f"s_cmp_ge_u32 {s(sSlot)}, {RING}")
            A(f"s_cselect_b32 {s(sSlot)}, 0, {s(sSlot)}")
        A(f"s_waitcnt vmcnt({need(0)})")
        A("s_barrier")
        H = NSG + 1
        for i in range(1, H):
            A(f"s_waitcnt vmcnt({need(i)})"); A("s_barrier"); issue(i - 1 + NSG)
        nsteady = NSTG - NSG
        A(f"s_mov_b32 {s(sI)}, {H}")
        lp = f"{name}_gl{tag}"
        A.label(lp)
        wv = need(H)
        A(f"s_waitcnt vmcnt({wv})"); A("s_barrier"); issue(H - 1 + NSG)
        A(f"s_add_u32 {s(sI)}, {s(sI)}, 1")
        A(f"s_cmp_le_u32 {s(sI)}, {nsteady}")
        A(f"s_cbranch_scc1 {lp}")
        for i in range(H + 1, nsteady + 1):
            assert need(i) == wv
            for _ in range(n): q.append(i - 1 + NSG)
        for i in range(nsteady + 1, NSTG):
            A(f"s_waitcnt vmcnt({need(i)})"); A("s_barrier")
        A(f"s_branch {name}_gdone")
    pathG("X", 3, False)
    A.label(f"{name}_ldY")
    pathG("Y", 2, True)
    A.label(f"{name}_gdone")
    voWo = voW; voP = [vo[0], vo[1], vo[2], vo[3]]; voX = [vo[4], vo[5]]
    A(f"v_lshrrev_b32 {v(t0)}, 3, {v(vl)}")
    A(f"v_and_b32 {v(t1)}, 7, {v(vl)}")
    A(f"v_bfe_u32 {v(t2)}, {v(vl)}, 4, 1")
    for jj in range(4):
        A(f"v_or_b32 {v(t3)}, {(jj&1)<<1}, {v(t2)}")
        A(f"v_lshlrev_b32 {v(t3)}, 1, {v(t3)}")
        A(f"v_xor_b32 {v(t3)}, {v(t3)}, {v(t1)}")
        A(f"v_lshlrev_b32 {v(t3)}, 4, {v(t3)}")
        A(f"v_lshl_add_u32 {v(voWo[jj])}, {v(t0)}, 10, {v(t3)}")
        if jj: A(f"v_add_u32 {v(voWo[jj])}, {jj*(8192-1024)}, {v(voWo[jj])}")
    A(f"v_xor_b32 {v(t1)}, {v(t1)}, {v(t0)}")
    A(f"v_lshlrev_b32 {v(t1)}, 4, {v(t1)}")
    A(f"s_and_b32 {s(sT0)}, {s(sLw)}, 1")
    A(f"s_lshl_b32 {s(sT0)}, {s(sT0)}, 5")
    A(f"v_add_u32 {v(t2)}, {s(sT0)}, {v(t0)}")
    A(f"v_mul_u32_u24 {v(voP[0])}, 1792, {v(t2)}")
    A(f"s_lshr_b32 {s(sT1)}, {s(sLw)}, 1")
    A(f"s_lshl_b32 {s(sT1)}, {s(sT1)}, 7")
    A(f"v_add3_u32 {v(voP[0])}, {v(voP[0])}, {v(t1)}, {s(sT1)}")
    for jj in range(1, 4): A(f"v_add_u32 {v(voP[jj])}, {jj*(8*1792-1024)}, {v(voP[0])}")
    A(f"s_lshl_b32 {s(sT0)}, {s(sLw)}, 4")
    A(f"v_add_u32 {v(t2)}, {s(sT0)}, {v(t0)}")
    A(f"v_lshl_add_u32 {v(voX[0])}, {v(t2)}, 10, {v(t1)}")
    A(f"v_add_u32 {v(voX[1])}, {8192-1024}, {v(voX[0])}")
    A(f"s_mov_b32 s18, {FH*D*2}"); A("s_mov_b32 s19, 0x20000")
    A(f"s_lshl_b32 {s(sWk)}, {s(sLw)}, 15")
    A(f"s_lshl_b32 {s(sT0)}, {s(sCC)}, 7")
    A(f"s_add_u32 {s(sWk)}, {s(sWk)}, {s(sT0)}")
    A(f"s_lshl_b32 {s(sLW)}, {s(sLw)}, 12")
    sPk, sLP, sXb = 31, 33, 40
    A(f"s_mul_i32 {s(sPk)}, {s(sRB)}, {64*1792}")
    A(f"s_add_u32 {s(sPk)}, {s(sPk)}, {WS_P0}")
    A(f"s_lshl_b32 {s(sLP)}, {s(sLw)}, 12")
    A(f"s_add_u32 {s(sLP)}, {s(sLP)}, {OP}")
    A(f"s_lshl_b32 {s(sXb)}, {s(sRB)}, 16")
    A(f"s_add_u32 {s(sXb)}, {s(sXb)}, {s(sT0)}")
    A(f"s_add_u32 {s(sXb)}, {s(sXb)}, {WS_X1}")
    A("s_barrier")
    def issueW(st):
        A(f"s_add_u32 m0, {s(sLW)}, {OW + (st % NW)*16384}")
        A(f"s_add_u32 {s(sT0)}, {s(sWk)}, {st*131072}")
        for jj in range(4): A(f"buffer_load_dwordx4 {v(voWo[jj])}, s[16:19], {s(sT0)} offen offset:{jj*1024} lds")
    for st in range(NW): issueW(st)
    A(f"s_lshl_b32 {s(sT2)}, {s(sRB)}, 10")
    A(f"s_add_u32 {s(sT2)}, {s(sT2)}, {WS_FLG + FT_O}")
    wait_flags("t", sT2, 8, False)
    if stamps: STL.stamp()
    def issueO(st):
        slot = st % NSO
        A(f"s_add_u32 m0, {s(sLP)}, {slot*PSLOT}")
        A(f"s_add_u32 {s(sT0)}, {s(sPk)}, {st*256}")
        for jj in range(4): A(f"buffer_load_dwordx4 {v(voP[jj])}, s[4:7], {s(sT0)} offen offset:{jj*1024} lds")
    qo = []
    for st in range(NSO):
        issueO(st); qo += [st] * 4
    for i in range(NSTO):
        out = len(qo) - 1 - max(k for k, x in enumerate(qo) if x == i)
        A(f"s_waitcnt vmcnt({out})")
        A("s_barrier")
        if i >= 1 and i - 1 + NSO < NSTO:
            st = i - 1 + NSO
            issueW(st); issueO(st); qo += [st] * 8
        if i == 3:
            A(f"s_lshl_b32 {s(sT0)}, {s(sLw)}, 11")
            A(f"s_add_u32 m0, {s(sT0)}, {XT}")
            for jj in range(2): A(f"buffer_load_dwordx4 {v(voX[jj])}, s[4:7], {s(sXb)} offen offset:{jj*1024} lds")
            qo += ["x"] * 2
    A("s_waitcnt vmcnt(0)")
    A("s_barrier")
    if stamps:
        STL.stamp(); A(f"s_mov_b32 s20, {s(sLw)}"); STL.flush(4, vt[0], slot=1)
    A("s_endpgm")
    nvmax[0] = max(nvmax[0], R.hi)
    A.label(f"{name}_end")
    A("s_endpgm")
    return dict(name=name, grid=NWG, block=512, lds=LDS, vgpr=256, sgpr=100 if stamps else 68)
```

```python
from g2b import *
from tables import TAB_OFF
from g2a import getpc_sym
WS_FLG = WS_STAT + 256 * 1024
FA_O = 0; FB_O = 256 * 128; FC_O = FB_O + 160 * 128; FT_O = FC_O + 256 * 128
WS_EPOCH = WS_FLG + FT_O + 256 * 128
SPIN = 0x8000
sX, sWM, sCV, sTB_, sTAG = 56, 58, 60, 62, 64

def gen_kf(A, name="kf_kernel", stamps=False, prefetch=True, pfpos=0, pfhalf=True, pfwin=True, wmcalc=True, lprio=0, psleep=1, biasC=True, early=False, earlysp=2):
    NWG = 256
    GS = 960; SLOT = 16 * GS; W_OFF = 65536; NSZ = 4; NSTZ = 16; WROW = 3584
    X_OFF = W_OFF + NSZ * SLOT; XS = 32 * 144
    ZT = 145408
    NSG = 5; NSTG = 32; B_OFF = 14 * 1024; STAGE = 22 * 1024; RING = NSG * STAGE
    GX = 114688
    OW = 0; NW = 5; OP = NW * 16384; NSO = 5; NSTO = 7; PSLOT = 16384
    LDS = 163840
    JOIN = 159744
    A.barrier_state(); A.raw(kernel_header(name))
    ST = Stamps(A, on=stamps, kidx=0)
    sW, sRB, sCC, sT0, sT1, sT2, sTH, sFH, sK, sSlot, sI = 20, 21, 22, 23, 24, 25, 26, 27, 28, 34, 35
    A(f"s_cmp_ge_u32 s2, {NWG}")
    A(f"s_cbranch_scc1 {name}_end")
    ST.stamp()
    load_ptr(A, 4, "ws"); load_ptr(A, 8, "win"); load_ptr(A, 12, "wsp"); load_ptr(A, 16, "wout"); load_ptr(A, 36, "bsp"); load_ptr(A, 38, "out")
    load_ptr(A, sX, "x"); load_ptr(A, sWM, "wmod"); load_ptr(A, sCV, "c")
    getpc_sym(A, sTB_, "fft_tables")
    A(f"v_readfirstlane_b32 {s(sW)}, v0")
    A(f"s_lshr_b32 {s(sW)}, {s(sW)}, 6")
    vJ = 250
    def arrive(jidx, count, s_off, tag):
        A(f"v_mov_b32 {v(vJ)}, {JOIN + 4*jidx}")
        A(f"v_mov_b32 {v(vJ+1)}, 1")
        A("s_waitcnt vmcnt(0)")
        A("s_mov_b64 exec, 1")
        A(f"ds_add_rtn_u32 {v(vJ)}, {v(vJ)}, {v(vJ+1)}")
        A("s_waitcnt lgkmcnt(0)")
        A(f"v_readfirstlane_b32 {s(sT1)}, {v(vJ)}")
        A(f"v_mov_b32 {v(vJ)}, {s(s_off)}")
        A(f"v_mov_b32 {v(vJ+1)}, {s(sTAG)}")
        A(f"s_cmp_lg_u32 {s(sT1)}, {count-1}")
        A(f"s_cbranch_scc1 {name}_nofl{tag}")
        A(f"global_store_dword {v(vJ)}, {v(vJ+1)}, s[4:5] sc1")
        A.label(f"{name}_nofl{tag}")
        A("s_mov_b64 exec, -1")
    def wait_flags(tag, s_base, nflags, by_wave0, addr_fn=None):
        dn = f"{name}_d{tag}"; lp = f"{name}_w{tag}"
        A(f"s_cmp_lg_u32 {s(sW)}, {0 if by_wave0 else 4}")
        A(f"s_cbranch_scc1 {dn}")
        nl = (nflags + 63) // 64
        va_ = 244; vd_ = 248
        A(f"v_and_b32 {v(va_)}, 63, v0")
        if addr_fn: addr_fn(va_)
        else:
            if nflags < 64: A(f"v_and_b32 {v(va_)}, {nflags-1}, {v(va_)}")
            A(f"v_lshl_add_u32 {v(va_)}, {v(va_)}, 7, {s(s_base)}")
            for k in range(1, nl): A(f"v_add_u32 {v(va_+k)}, {k*8192}, {v(va_)}")
        A(f"s_mov_b32 {s(sK)}, 0")
        A.label(lp)
        for k in range(nl): A(f"global_load_dword {v(vd_+k)}, {v(va_+k)}, s[4:5] sc1")
        A("s_waitcnt vmcnt(0)")
        for k in range(nl):
            A(f"v_xor_b32 {v(vd_+k)}, {s(sTAG)}, {v(vd_+k)}")
        for k in range(1, nl): A(f"v_or_b32 {v(vd_)}, {v(vd_)}, {v(vd_+k)}")
        A(f"v_cmp_ne_u32 vcc, 0, {v(vd_)}")
        A(f"s_add_u32 {s(sK)}, {s(sK)}, 1")
        A(f"s_cmp_eq_u64 vcc, 0")
        A(f"s_cbranch_scc1 {dn}")
        if psleep: A(f"s_sleep {psleep}")
        A(f"s_cmp_lt_u32 {s(sK)}, {SPIN}")
        A(f"s_cbranch_scc1 {lp}")
        A.label(dn)
        A("s_barrier")
    def early_touches():
        A(f"s_sub_u32 s44, s2, 128")
        A(f"s_lshr_b32 s44, s44, 3")
        A(f"s_lshl3_add_u32 s44, s44, {s(sW)}")
        A("v_and_b32 v1, 63, v0")
        A("s_mul_i32 s45, s44, 56")
        A("v_min_u32 v2, 55, v1")
        A("v_add_u32 v2, s45, v2")
        A("v_mul_u32_u24 v3, 9363, v2")
        A("v_lshrrev_b32 v3, 17, v3")
        A("v_mul_u32_u24 v4, 14, v3")
        A("v_sub_u32 v4, v2, v4")
        A("v_mul_u32_u24 v2, 3584, v3")
        A("v_lshl_add_u32 v2, v4, 7, v2")
        A("v_cmp_lt_u32 vcc, 6, v4")
        A("v_mov_b32 v3, 896")
        A("v_cndmask_b32 v3, 0, v3, vcc")
        A("s_and_b32 s45, s2, 1")
        A("s_mul_i32 s45, s45, 896")
        A("v_add3_u32 v2, v2, v3, s45")
        A("global_load_dword v252, v2, s[8:9]")
        A("s_bfe_u32 s45, s2, 0x20001")
        A("s_lshl_b32 s45, s45, 21")
        A("s_lshl_b32 s46, s44, 14")
        A("s_add_u32 s45, s45, s46")
        if earlysp == 1:
            A("s_and_b32 s46, s2, 1"); A("s_lshl_b32 s46, s46, 13"); A("s_add_u32 s45, s45, s46")
        A("v_lshl_add_u32 v2, v1, 7, s45")
        A("global_load_dword v253, v2, s[12:13]")
        if earlysp == 2:
            A("v_add_u32 v2, 8192, v2")
            A("global_load_dword v254, v2, s[12:13]")
        lab = A.newlabel(f"{name}_nwo")
        A("s_cmp_ge_u32 s44, 56")
        A(f"s_cbranch_scc1 {lab}")
        A("v_lshl_add_u32 v2, s44, 6, v1")
        A("v_lshrrev_b32 v3, 2, v2")
        A("v_and_b32 v2, 3, v2")
        A("v_lshlrev_b32 v3, 10, v3")
        A("v_lshl_add_u32 v3, v2, 7, v3")
        A("s_and_b32 s45, s2, 1")
        A("s_lshl_b32 s45, s45, 9")
        A("v_add_u32 v3, s45, v3")
        A("global_load_dword v255, v3, s[16:17]")
        A.label(lab)
    A(f"v_mov_b32 v1, {JOIN}")
    for j in range(4): A(f"v_mov_b32 v{4+j}, 0")
    A("ds_write_b128 v1, v[4:7]")
    A("s_waitcnt lgkmcnt(0)")
    A(f"s_add_u32 s40, s4, {WS_EPOCH}")
    A(f"s_addc_u32 s41, s5, 0")
    A(f"s_load_dword {s(sTAG)}, s[40:41], 0")
    ST.stamp()
    NFFT = 128; NMOD = 96; F_L = 16384
    A(f"s_cmp_ge_u32 s2, {NFFT}")
    A(f"s_cbranch_scc1 {name}_mod")
    A("s_and_b32 s40, s2, 7")
    A("s_bfe_u32 s41, s2, 0x20003")
    A("s_lshl2_add_u32 s40, s40, s41")
    A("s_lshl_b32 s40, s40, 10")
    A("s_lshr_b32 s41, s2, 5")
    R = RegAlloc(1)
    voff = R.alloc(); vi = R.alloc(); vq = R.alloc(); vt0 = R.alloc(); vt1 = R.alloc()
    vS = R.alloc(); vQ = R.alloc(); vtr = R.alloc(); vst = R.alloc(); vl16 = R.alloc()
    xr = [R.alloc(4) for _ in range(8)]
    assert xr[7] == xr[0] + 28
    xo = R.alloc(8, 4)
    Ff = [[R.alloc(4) for _ in range(2)] for _ in range(2)]
    Af = [[R.alloc(4) for _ in range(2)] for _ in range(2)]
    acc = [[R.alloc(4) for _ in range(2)] for _ in range(2)]
    tmp = R.alloc(16, 4)
    A(f"v_lshrrev_b32 {v(vt0)}, 3, v0")
    A(f"v_and_b32 {v(vt1)}, 7, v0")
    A(f"v_lshlrev_b32 {v(vt0)}, 15, {v(vt0)}")
    A(f"v_lshl_add_u32 {v(voff)}, {v(vt1)}, 4, {v(vt0)}")
    A(f"v_add_u32 {v(voff)}, s40, {v(voff)}")
    A(f"v_lshlrev_b32 {v(vl16)}, 4, v0")
    A("s_lshl_b32 s42, s20, 10")
    A(f"s_add_u32 m0, s42, {F_L}")
    for it in range(8):
        A(f"global_load_dwordx4 {v(xr[it],4)}, {v(voff)}, s[56:57] offset:{it*128}")
    A(f"global_load_lds_dwordx4 {v(vl16)}, s[62:63] offset:{TAB_OFF['tab_f64']}")
    A(f"v_and_b32 {v(vi)}, 15, v0")
    A(f"v_bfe_u32 {v(vq)}, v0, 4, 2")
    A(f"v_lshrrev_b32 {v(vt0)}, 8, v0")
    A(f"v_bfe_u32 {v(vt1)}, v0, 6, 2")
    A("s_lshl_b32 s42, s41, 8")
    A("s_add_u32 s40, s40, s42")
    A(f"s_add_u32 s40, s40, {WS_T}")
    TST = 32768; TSS = 272
    vsw = R.alloc(); vsr = R.alloc(); vsg = R.alloc()
    A(f"v_lshl_add_u32 {v(vsw)}, {v(vt0)}, 5, {v(vi)}")
    A(f"v_mul_u32_u24 {v(vsw)}, {TSS}, {v(vsw)}")
    A(f"v_lshl_add_u32 {v(vsw)}, {v(vt1)}, 5, {v(vsw)}")
    A(f"v_lshl_add_u32 {v(vsw)}, {v(vq)}, 3, {v(vsw)}")
    A(f"v_add_u32 {v(vsw)}, {TST}, {v(vsw)}")
    A(f"v_lshrrev_b32 {v(vsg)}, 6, v0")
    A(f"v_lshl_add_u32 {v(vsg)}, {v(vsg)}, 3, {v(vq)}")
    A(f"v_mul_u32_u24 {v(vsr)}, {TSS}, {v(vsg)}")
    A(f"v_lshl_add_u32 {v(vsr)}, {v(vi)}, 4, {v(vsr)}")
    A(f"v_add_u32 {v(vsr)}, {TST}, {v(vsr)}")
    A(f"v_lshlrev_b32 {v(vsg)}, 15, {v(vsg)}")
    A(f"v_lshl_add_u32 {v(vsg)}, {v(vi)}, 4, {v(vsg)}")
    A(f"v_add_u32 {v(vsg)}, s40, {v(vsg)}")
    A(f"v_lshlrev_b32 {v(vtr)}, 5, {v(vt1)}")
    A(f"v_lshrrev_b32 {v(vt1)}, 2, {v(vi)}")
    A(f"v_lshl_add_u32 {v(vt1)}, {v(vq)}, 3, {v(vt1)}")
    A(f"v_lshl_add_u32 {v(vtr)}, {v(vt1)}, 7, {v(vtr)}")
    A(f"v_and_b32 {v(vt1)}, 3, {v(vi)}")
    A(f"v_lshl_add_u32 {v(vtr)}, {v(vt1)}, 3, {v(vtr)}")
    vfa = R.alloc()
    A(f"v_and_b32 {v(vfa)}, 63, v0")
    A(f"v_lshlrev_b32 {v(vfa)}, 4, {v(vfa)}")
    A(f"v_lshl_add_u32 {v(vfa)}, {v(vt0)}, 12, {v(vfa)}")
    A(f"v_mov_b32 {v(vS)}, 0")
    A(f"v_mov_b32 {v(vQ)}, 0")
    A("s_mov_b32 s42, 0x3f803f80")
    for it in range(8):
        A(f"s_waitcnt vmcnt({7 - it + 1})")
        for j in range(4):
            A(f"v_dot2_f32_bf16 {v(vS)}, {v(xr[it]+j)}, s42, {v(vS)}")
            A(f"v_dot2_f32_bf16 {v(vQ)}, {v(xr[it]+j)}, {v(xr[it]+j)}, {v(vQ)}")
    A("s_lshl_b32 s43, s41, 3")
    A("s_mov_b32 s42, 0xffff0000")
    A("s_set_gpr_idx_on s43, gpr_idx(SRC0)")
    for j in range(8): A(f"v_mov_b32 {v(xo+j)}, {v(xr[0]+j)}")
    A("s_set_gpr_idx_off")
    for mode in ("quad_perm:[1,0,3,2]", "quad_perm:[2,3,0,1]", "row_half_mirror"):
        A(f"v_add_f32_dpp {v(vS)}, {v(vS)}, {v(vS)} {mode} row_mask:0xf bank_mask:0xf")
        A(f"v_add_f32_dpp {v(vQ)}, {v(vQ)}, {v(vQ)} {mode} row_mask:0xf bank_mask:0xf")
        A(f"v_lshlrev_b32 {v(tmp+0)}, 16, {v(xo+0)}") if mode.startswith("quad_perm:[1") else None
    for j in range(8):
        if j: A(f"v_lshlrev_b32 {v(tmp+2*j)}, 16, {v(xo+j)}")
        A(f"v_and_b32 {v(tmp+2*j+1)}, s42, {v(xo+j)}")
    A(f"v_mul_f32 {v(vS)}, 0x3b000000, {v(vS)}")
    A(f"v_mul_f32 {v(vQ)}, 0x3b000000, {v(vQ)}")
    A(f"v_fma_f32 {v(vQ)}, -{v(vS)}, {v(vS)}, {v(vQ)}")
    A(f"v_max_f32 {v(vQ)}, 0, {v(vQ)}")
    A(f"v_add_f32 {v(vQ)}, 0x3727c5ac, {v(vQ)}")
    A(f"v_rsq_f32 {v(vQ)}, {v(vQ)}")
    A(f"v_mul_f32 {v(vS)}, {v(vS)}, {v(vQ)}")
    for j in range(16): A(f"v_fma_f32 {v(tmp+j)}, {v(tmp+j)}, {v(vQ)}, -{v(vS)}")
    for h in range(2):
        for j in range(4): A(f"v_cvt_pk_bf16_f32 {v(xo+4*h+j)}, {v(tmp+8*h+2*j)}, {v(tmp+8*h+2*j+1)}")
        A(f"ds_write_b128 {v(vl16)}, {v(xo+4*h,4)} offset:{h*8192}")
    A("s_waitcnt vmcnt(0) lgkmcnt(0)")
    A("s_barrier")
    for h in range(2):
        for ks in range(2):
            for p in range(2):
                A(f"ds_read_b64_tr_b16 {v(Af[h][ks]+2*p,2)}, {v(vtr)} offset:{h*8192 + ks*32*128 + p*4*128}")
        if h == 0:
            for nt in range(2):
                for ks in range(2): A(f"ds_read_b128 {v(Ff[nt][ks],4)}, {v(vfa)} offset:{F_L + nt*2048 + ks*1024}")
    for h in range(2):
        A(f"s_waitcnt lgkmcnt({4*(1-h)})")
        for ks in range(2):
            for nt in range(2):
                c = "0" if ks == 0 else v(acc[h][nt], 4)
                A(f"v_mfma_f32_16x16x32_bf16 {v(acc[h][nt],4)}, {v(Af[h][ks],4)}, {v(Ff[nt][ks],4)}, {c}")
    for h in range(2):
        for nt in range(2):
            k = h * 2 + nt
            A(f"v_cvt_pk_bf16_f32 {v(tmp+2*k)}, {v(acc[h][nt])}, {v(acc[h][nt]+1)}")
            A(f"v_cvt_pk_bf16_f32 {v(tmp+2*k+1)}, {v(acc[h][nt]+2)}, {v(acc[h][nt]+3)}")
            A(f"ds_write_b64 {v(vsw)}, {v(tmp+2*k,2)} offset:{nt*16*TSS + h*128}")
    A("s_waitcnt lgkmcnt(0)")
    A("s_barrier")
    for u in range(2): A(f"ds_read_b128 {v(tmp+8+4*u,4)}, {v(vsr)} offset:{u*4*TSS}")
    A("s_waitcnt lgkmcnt(1)")
    A(f"global_store_dwordx4 {v(vsg)}, {v(tmp+8,4)}, s[4:5] sc1")
    A(f"v_add_u32 {v(vsg)}, {4*32768}, {v(vsg)}")
    A("s_waitcnt lgkmcnt(0)")
    A(f"global_store_dwordx4 {v(vsg)}, {v(tmp+12,4)}, s[4:5] sc1")
    A("s_waitcnt lgkmcnt(0)")
    A(f"s_add_u32 {s(sTAG)}, {s(sTAG)}, 1")
    A(f"s_lshl_b32 {s(sT0)}, s2, 7")
    A(f"s_add_u32 {s(sT0)}, {s(sT0)}, {WS_FLG + FA_O}")
    arrive(2, 8, sT0, "af")
    A(f"s_branch {name}_adone")
    A.label(f"{name}_mod")
    A(f"s_cmp_ge_u32 s2, {NFFT+NMOD}")
    A(f"s_cbranch_scc1 {name}_pf")
    A(f"s_sub_u32 s40, s2, {NFFT}")
    A("s_lshl_b32 s41, s40, 6")
    R = RegAlloc(1)
    vk = R.alloc(); vt0 = R.alloc(); vt1 = R.alloc(); vc = R.alloc()
    vo = [R.alloc() for _ in range(4)]
    wr = [R.alloc(4) for _ in range(4)]
    cv = [R.alloc() for _ in range(4)]; ch = [R.alloc() for _ in range(4)]
    ac = R.alloc(8, 4); rr = R.alloc(16, 4)
    A(f"v_and_b32 {v(vt0)}, 0x1c0, v0")
    A(f"v_bfe_u32 {v(vt1)}, v0, 2, 4")
    A(f"v_add_u32 {v(vk)}, {v(vt0)}, {v(vt1)}")
    A(f"v_and_b32 {v(vc)}, 3, v0")
    A(f"v_mul_u32_u24 {v(vo[0])}, 6144, {v(vk)}")
    A(f"v_lshl_add_u32 {v(vo[0])}, {v(vc)}, 4, {v(vo[0])}")
    A(f"v_add_u32 {v(vo[0])}, s41, {v(vo[0])}")
    for it in range(1, 4): A(f"v_add_u32 {v(vo[it])}, {it*16*6144}, {v(vo[0])}")
    A(f"v_lshlrev_b32 {v(vk)}, 1, {v(vk)}")
    for it in range(4): A(f"global_load_ushort {v(cv[it])}, {v(vk)}, s[60:61] offset:{it*32}")
    for it in range(4): A(f"global_load_dwordx4 {v(wr[it],4)}, {v(vo[it])}, s[58:59]")
    for j in range(8): A(f"v_mov_b32 {v(ac+j)}, 0")
    A("s_waitcnt vmcnt(4)")
    for it in range(4): A(f"v_lshlrev_b32 {v(cv[it])}, 16, {v(cv[it])}")
    for it in range(4): A(f"v_mul_f32 {v(ch[it])}, 0xbfb8aa3b, {v(cv[it])}")
    for it in range(4): A(f"v_exp_f32 {v(ch[it])}, {v(ch[it])}")
    for it in range(4): A(f"v_add_f32 {v(ch[it])}, 1.0, {v(ch[it])}")
    for it in range(4): A(f"v_rcp_f32 {v(ch[it])}, {v(ch[it])}")
    for it in range(4): A(f"v_mul_f32 {v(cv[it])}, {v(cv[it])}, {v(ch[it])}")
    for it in range(4): A(f"v_cvt_pk_bf16_f32 {v(cv[it])}, {v(cv[it])}, 0")
    for it in range(4): A(f"v_lshlrev_b32 {v(ch[it])}, 16, {v(cv[it])}")
    for it in range(4):
        A(f"s_waitcnt vmcnt({3-it})")
        for j in range(4):
            A(f"v_dot2_f32_bf16 {v(ac+2*j)}, {v(wr[it]+j)}, {v(cv[it])}, {v(ac+2*j)}")
            A(f"v_dot2_f32_bf16 {v(ac+2*j+1)}, {v(wr[it]+j)}, {v(ch[it])}, {v(ac+2*j+1)}")
    for rot in (4, 8):
        for j in range(8):
            A(f"v_add_f32_dpp {v(ac+j)}, {v(ac+j)}, {v(ac+j)} row_ror:{rot} row_mask:0xf bank_mask:0xf")
    A(f"v_lshrrev_b32 {v(vt0)}, 4, v0")
    A(f"v_lshlrev_b32 {v(vt0)}, 7, {v(vt0)}")
    A(f"v_lshl_add_u32 {v(vt0)}, {v(vc)}, 5, {v(vt0)}")
    A(f"ds_write_b128 {v(vt0)}, {v(ac,4)}")
    A(f"ds_write_b128 {v(vt0)}, {v(ac+4,4)} offset:16")
    if prefetch:
        lab = f"{name}_nocp"
        A("s_cmp_ge_u32 s40, 8")
        A(f"s_cbranch_scc1 {lab}")
        getpc_sym(A, 44, "code_begin")
        A(f"v_lshlrev_b32 {v(vt0)}, 7, v0")
        A(f"v_mov_b32 {v(vt1)}, code_end-code_begin-4")
        A(f"v_min_u32 {v(vt0)}, {v(vt0)}, {v(vt1)}")
        A(f"v_and_b32 {v(vt0)}, -4, {v(vt0)}")
        A(f"global_load_dword {v(vk)}, {v(vt0)}, s[44:45]")
        A.label(lab)
    A("s_waitcnt lgkmcnt(0)")
    A("s_barrier")
    A("s_cmp_ge_u32 s20, 1")
    A(f"s_cbranch_scc1 {name}_aend")
    A(f"v_and_b32 {v(vt1)}, 31, v0")
    A(f"v_lshrrev_b32 {v(vt0)}, 5, v0")
    A(f"v_lshlrev_b32 {v(vt0)}, 11, {v(vt0)}")
    A(f"v_lshl_add_u32 {v(vt0)}, {v(vt1)}, 2, {v(vt0)}")
    for p in range(16): A(f"ds_read_b32 {v(rr+p)}, {v(vt0)} offset:{p*128}")
    A("s_lshr_b32 s41, s40, 4")
    A("s_cmp_eq_u32 s41, 1")
    A("s_cselect_b32 s42, 1.0, 0")
    A("s_cmp_eq_u32 s41, 4")
    A("s_cselect_b32 s42, 1.0, s42")
    A("s_lshl_b32 s41, s40, 7")
    if WS_MOD: A(f"s_add_u32 s41, s41, {WS_MOD}")
    A(f"v_lshl_add_u32 {v(vt1)}, {v(vt1)}, 2, s41")
    A("s_waitcnt lgkmcnt(0)")
    for st_ in (8, 4, 2, 1):
        for p in range(st_): A(f"v_add_f32 {v(rr+p)}, {v(rr+p)}, {v(rr+p+st_)}")
    A(f"v_mov_b32 {v(rr+1)}, {v(rr)}")
    A(f"v_permlane32_swap_b32 {v(rr)}, {v(rr+1)}")
    A(f"v_add_f32 {v(rr)}, {v(rr)}, {v(rr+1)}")
    A(f"v_cvt_pk_bf16_f32 {v(rr)}, {v(rr)}, {v(rr)}")
    A(f"v_lshlrev_b32 {v(rr)}, 16, {v(rr)}")
    A(f"v_add_f32 {v(rr)}, s42, {v(rr)}")
    A(f"v_cvt_pk_bf16_f32 {v(rr)}, {v(rr)}, {v(rr)}")
    A(f"v_lshlrev_b32 {v(rr)}, 16, {v(rr)}")
    A(f"global_store_dword {v(vt1)}, {v(rr)}, s[4:5] sc1")
    A.label(f"{name}_aend")
    A("s_waitcnt lgkmcnt(0)")
    A(f"s_add_u32 {s(sTAG)}, {s(sTAG)}, 1")
    A(f"s_lshl_b32 {s(sT0)}, s2, 7")
    A(f"s_add_u32 {s(sT0)}, {s(sT0)}, {WS_FLG + FA_O}")
    arrive(2, 8, sT0, "am")
    if early: early_touches()
    A(f"s_branch {name}_adone")
    A.label(f"{name}_pf")
    A(f"s_sub_u32 s40, s2, {NFFT+NMOD}")
    A("s_lshl_b32 s41, s40, 13")
    A(f"s_add_u32 s41, s41, {WS_STAT}")
    A("v_lshl_add_u32 v1, v0, 4, s41")
    for j in range(4): A(f"v_mov_b32 v{4+j}, -1")
    A("global_store_dwordx4 v1, v[4:7], s[4:5] sc1")
    A("s_barrier")
    A("s_waitcnt lgkmcnt(0)")
    A(f"s_add_u32 {s(sTAG)}, {s(sTAG)}, 1")
    A(f"s_lshl_b32 {s(sT0)}, s2, 7")
    A(f"s_add_u32 {s(sT0)}, {s(sT0)}, {WS_FLG + FA_O}")
    arrive(2, 8, sT0, "ap")
    if early: early_touches()
    if prefetch and not early:
        A("s_mul_i32 s40, s40, 448")
        A("v_add_u32 v1, s40, v0")
        A("v_lshlrev_b32 v1, 7, v1")
        A("v_min_u32 v1, %d, v1" % 0) if False else None
        A("v_cmp_gt_u32 vcc, 448, v0")
        A("s_and_saveexec_b64 s[42:43], vcc")
        A(f"s_cbranch_execz {name}_pfx")
        A("global_load_dword v252, v1, s[8:9]")
        A.label(f"{name}_pfx")
        A("s_mov_b64 exec, s[42:43]")
    A.label(f"{name}_adone")
    A("s_barrier")
    ST.stamp()
    if stamps:
        for k in range(3): A(f"s_mov_b64 {s(ST.base + 2*(ST.n + k), 2)}, {s(ST.base + 2*(ST.n-1), 2)}")
    A(f"s_cmp_ge_u32 s2, 132")
    A(f"s_cbranch_scc1 {name}_bdone")
    TB_L = 0; MD_L = TB_L + 10240; WM_L = MD_L + 8192; T_B = WM_L + 1024
    TS = 1056; V_OFF = T_B + 64 * TS; VS = 80; US = 144; YS = 2064
    U_OFF = T_B; Y_OFF = T_B + 20480
    sC, sG, sRow, sMir, sRow2, sY = 21, 22, 26, 27, 29, 49
    SRD_T = 4
    A(f"s_mov_b32 s6, {WS_T + 2*MB}")
    A("s_mov_b32 s7, 0x20000")
    A(f"s_and_b32 {s(sT0)}, s2, 7")
    A(f"s_bfe_u32 {s(sG)}, s2, 0x20003")
    A(f"s_lshr_b32 {s(sT1)}, s2, 5")
    A(f"s_lshl3_add_u32 {s(sC)}, {s(sT1)}, {s(sT0)}")
    A(f"s_cmp_ge_u32 s2, 128")
    A(f"s_cselect_b32 {s(sC)}, 32, {s(sC)}")
    A(f"s_cselect_b32 {s(sG)}, {s(sT0)}, {s(sG)}")
    R = RegAlloc(1)
    vl = R.alloc(); vq = R.alloc(); vi = R.alloc(); vl16 = R.alloc(); vtid16 = R.alloc()
    vtb = R.alloc(8, 4); vt = [vtb + k for k in range(8)]
    A0 = R.alloc(4); A1 = R.alloc(4)
    F1 = [R.alloc(4) for _ in range(2)]; F2 = [[R.alloc(4) for _ in range(2)] for _ in range(2)]
    tw = R.alloc(16, 4)
    opca = [R.alloc() for _ in range(4)]
    xrow = [R.alloc(4) for _ in range(2)]
    Bf = [[R.alloc(4) for _ in range(2)] for _ in range(4)]
    acc = [R.alloc(4) for _ in range(4)]
    ga = R.alloc(8, 4); sb = R.alloc(8, 4); ocb = R.alloc(8, 4)
    vaT = R.alloc(); vaVw = R.alloc(); vaVr = R.alloc(); vaUw = R.alloc(); vaUr = R.alloc(); vaYw = R.alloc()
    vrow = [R.alloc() for _ in range(2)]
    xf = R.alloc(8, 4); yy = R.alloc(8, 4)
    Rr = R.alloc(4); Ri = R.alloc(4)
    A(f"v_and_b32 {v(vl)}, 63, v0")
    A(f"v_lshlrev_b32 {v(vl16)}, 4, {v(vl)}")
    A(f"v_lshlrev_b32 {v(vtid16)}, 4, v0")
    A(f"v_and_b32 {v(vi)}, 15, v0")
    A(f"v_bfe_u32 {v(vq)}, v0, 4, 2")
    if not wmcalc:
        A(f"v_bfe_u32 {v(vt[0])}, v0, 2, 3")
        A(f"v_lshlrev_b32 {v(vt[0])}, 18, {v(vt[0])}")
        A(f"v_and_b32 {v(vt[1])}, 3, v0")
        A(f"v_lshl_add_u32 {v(vt[0])}, {v(vt[1])}, 4, {v(vt[0])}")
        A(f"s_lshl_b32 {s(sT1)}, {s(sG)}, 21")
        A(f"s_lshl_b32 {s(sT2)}, {s(sC)}, 12")
        A(f"s_add_u32 {s(sT1)}, {s(sT1)}, {s(sT2)}")
        A(f"v_add_u32 {v(vt[0])}, {s(sT1)}, {v(vt[0])}")
    A(f"s_lshl3_add_u32 {s(sT1)}, {s(sG)}, {s(sW)}")
    A(f"s_lshl_b32 {s(sT1)}, {s(sT1)}, 6")
    A(f"s_add_u32 {s(sRow)}, {s(sT1)}, {s(sC)}")
    A(f"s_sub_u32 {s(sRow2)}, 2048, {s(sRow)}")
    A(f"s_and_b32 {s(sRow2)}, {s(sRow2)}, 2047")
    A(f"s_lshl_b32 {s(sRow)}, {s(sRow)}, 10")
    A(f"s_lshl_b32 {s(sRow2)}, {s(sRow2)}, 10")
    A(f"v_add_u32 {v(vrow[0])}, {s(sRow)}, {v(vl16)}")
    A(f"v_add_u32 {v(vrow[1])}, {s(sRow2)}, {v(vl16)}")
    A(f"s_lshl_b32 {s(sT2)}, {s(sW)}, 10")
    A(f"s_add_u32 m0, {s(sT2)}, {TB_L}")
    A(f"v_add_u32 {v(vt[1])}, {TAB_OFF['tab_f1']}, {v(vtid16)}")
    A(f"global_load_lds_dwordx4 {v(vt[1])}, s[62:63]")
    lx = f"{name}_bnox"; l23 = f"{name}_bx23"
    A(f"s_cmp_ge_u32 {s(sW)}, {2 if wmcalc else 4}")
    A(f"s_cbranch_scc1 {lx}")
    if not wmcalc:
        A(f"s_cmp_ge_u32 {s(sW)}, 2")
        A(f"s_cbranch_scc1 {l23}")
    A(f"s_add_u32 m0, {s(sT2)}, {TB_L + 8192}")
    A(f"v_add_u32 {v(vt[1])}, 8192, {v(vt[1])}")
    A(f"global_load_lds_dwordx4 {v(vt[1])}, s[62:63]")
    if not wmcalc:
        A(f"s_branch {lx}")
        A.label(l23)
        A(f"s_cmp_eq_u32 {s(sW)}, 3")
        A("s_cselect_b32 s6, s8, s6")
        A("s_cselect_b32 s7, s9, s7")
        A(f"s_cselect_b32 {s(sT1)}, 512, 0")
        A(f"s_add_u32 m0, {s(sT1)}, {WM_L}")
        A("s_mov_b32 exec_hi, 0")
        A(f"global_load_lds_dwordx4 {v(vt[0])}, s[6:7]")
        A("s_mov_b32 exec_hi, -1")
    A.label(lx)
    for h in range(2): A(f"global_load_dwordx4 {v(xrow[h],4)}, {v(vrow[h])}, s[56:57]")
    A(f"v_lshrrev_b32 {v(vt[0])}, 2, {v(vi)}")
    A(f"v_lshl_add_u32 {v(vt[0])}, {v(vq)}, 2, {v(vt[0])}")
    A(f"v_mul_u32_u24 {v(vaT)}, {TS}, {v(vt[0])}")
    A(f"v_and_b32 {v(vt[0])}, 3, {v(vi)}")
    A(f"v_lshl_add_u32 {v(vaT)}, {v(vt[0])}, 3, {v(vaT)}")
    A(f"v_and_b32 {v(vt[4])}, 0x1c0, v0")
    A(f"v_lshl_add_u32 {v(vaT)}, {v(vt[4])}, 1, {v(vaT)}")
    A(f"v_add_u32 {v(vaT)}, {T_B}, {v(vaT)}")
    A(f"v_lshl_add_u32 {v(vt[0])}, {v(vq)}, 6, {v(vi)}")
    A(f"v_mul_u32_u24 {v(vaVw)}, {VS}, {v(vt[0])}")
    A(f"v_lshrrev_b32 {v(vt[0])}, 3, {v(vt[4])}")
    A(f"s_mov_b32 {s(sT2)}, {V_OFF}")
    A(f"v_add3_u32 {v(vaVw)}, {v(vaVw)}, {v(vt[0])}, {s(sT2)}")
    A(f"v_lshrrev_b32 {v(vt[0])}, 1, {v(vt[4])}")
    A(f"v_add_u32 {v(vt[0])}, {v(vt[0])}, {v(vi)}")
    A(f"v_mul_u32_u24 {v(vaVr)}, {VS}, {v(vt[0])}")
    A(f"v_lshl_add_u32 {v(vaVr)}, {v(vq)}, 4, {v(vaVr)}")
    A(f"v_add_u32 {v(vaVr)}, {V_OFF}, {v(vaVr)}")
    A(f"v_lshrrev_b32 {v(vt[0])}, 2, {v(vt[4])}")
    A(f"v_lshl_add_u32 {v(vt[3])}, {v(vq)}, 1, {v(vt[0])}")
    A(f"v_mul_u32_u24 {v(vaUw)}, {US}, {v(vt[3])}")
    A(f"v_lshl_add_u32 {v(vaUw)}, {v(vi)}, 2, {v(vaUw)}")
    A(f"v_add_u32 {v(vt[3])}, {v(vt[0])}, {v(vi)}")
    A(f"v_mul_u32_u24 {v(vaUr)}, {US}, {v(vt[3])}")
    A(f"v_lshl_add_u32 {v(vaUr)}, {v(vq)}, 4, {v(vaUr)}")
    A(f"s_mul_i32 {s(sY)}, {s(sW)}, {YS}")
    A(f"s_add_u32 {s(sY)}, {s(sY)}, {Y_OFF}")
    A(f"v_lshlrev_b32 {v(vaYw)}, 6, {v(vi)}")
    A(f"v_lshl_add_u32 {v(vaYw)}, {v(vq)}, 4, {v(vaYw)}")
    A(f"v_add_u32 {v(vaYw)}, {s(sY)}, {v(vaYw)}")
    A(f"v_lshrrev_b32 {v(vt[5])}, 1, {v(vi)}")
    A(f"v_lshlrev_b32 {v(vt[5])}, 6, {v(vt[5])}")
    A(f"v_lshl_add_u32 {v(vt[5])}, {v(vq)}, 3, {v(vt[5])}")
    A(f"v_add_u32 {v(vt[6])}, {v(vt[4])}, {v(vi)}")
    A(f"v_lshlrev_b32 {v(vt[6])}, 2, {v(vt[6])}")
    A(f"v_and_b32 {v(vt[3])}, 1, v0")
    A(f"v_cmp_eq_u32 vcc, 1, {v(vt[3])}")
    if wmcalc:
        vT = Rr; vK = Rr + 1; cs_ = [Ri + j for j in range(4)]
        A(f"s_lshl_b32 {s(sT1)}, {s(sG)}, 9")
        A(f"s_add_u32 {s(sT1)}, {s(sT1)}, {s(sC)}")
        A(f"v_lshrrev_b32 {v(vT)}, 1, {v(vi)}")
        A(f"v_lshl_add_u32 {v(vT)}, {v(vT)}, 6, {s(sT1)}")
        A(f"v_lshlrev_b32 {v(vK)}, 2, {v(vq)}")
        A(f"v_mul_u32_u24 {v(vK)}, {v(vT)}, {v(vK)}")
        for jp in range(4):
            ang = []
            for u in range(2):
                jj = 2 * jp + u; koff = jj if jj < 4 else 16 + jj - 4
                r = cs_[u]
                A(f"v_mad_u32_u24 {v(r)}, {v(vT)}, {koff}, {v(vK)}")
                A(f"v_and_b32 {v(r)}, 2047, {v(r)}")
                A(f"v_cvt_f32_u32 {v(r)}, {v(r)}")
                A(f"v_mul_f32 {v(r)}, 0x3a000000, {v(r)}")
            for u in range(2):
                A(f"v_sin_f32 {v(cs_[2+u])}, {v(cs_[u])}")
                A(f"v_cos_f32 {v(cs_[u])}, {v(cs_[u])}")
            t0_, t1_, t2_, t3_ = vt[0], vt[1], vt[2], vt[7]
            A(f"v_sub_f32 {v(t0_)}, 0, {v(cs_[2])}")
            A(f"v_sub_f32 {v(t1_)}, 0, {v(cs_[3])}")
            A(f"v_cndmask_b32 {v(t0_)}, {v(cs_[0])}, {v(t0_)}, vcc")
            A(f"v_cndmask_b32 {v(t1_)}, {v(cs_[1])}, {v(t1_)}, vcc")
            A(f"v_cvt_pk_bf16_f32 {v(A0+jp)}, {v(t0_)}, {v(t1_)}")
            A(f"v_cndmask_b32 {v(t2_)}, {v(cs_[2])}, {v(cs_[0])}, vcc")
            A(f"v_cndmask_b32 {v(t3_)}, {v(cs_[3])}, {v(cs_[1])}, vcc")
            A(f"v_cvt_pk_bf16_f32 {v(A1+jp)}, {v(t2_)}, {v(t3_)}")
    A(f"s_add_u32 {s(sT1)}, {s(sC)}, 32")
    A(f"s_and_b32 {s(sT2)}, {s(sC)}, 31")
    A(f"s_cselect_b32 {s(sMir)}, 1, 0")
    A(f"s_cselect_b32 {s(sT1)}, {s(sT1)}, 0x4000")
    A(f"s_cmp_ge_u32 {s(sW)}, 4")
    A(f"s_cselect_b32 {s(sT0)}, {s(sT1)}, {s(sC)}")
    A(f"s_lshl_b32 {s(sT0)}, {s(sT0)}, 15")
    A(f"s_and_b32 {s(sT1)}, {s(sW)}, 3")
    A(f"s_lshl_b32 {s(sT1)}, {s(sT1)}, 13")
    A(f"s_add_u32 {s(sT0)}, {s(sT0)}, {s(sT1)}")
    A(f"s_add_u32 {s(sT0)}, {s(sT0)}, {WS_T - 128}")
    A(f"s_mul_i32 {s(sT1)}, {s(sW)}, {8*TS}")
    A(f"s_add_u32 m0, {s(sT1)}, {T_B}")
    for j in range(4): A(f"v_add_u32 {v(vt[4+j])}, {128 - 32*j}, {v(vl16)}")
    A(f"s_lshl_b32 {s(sT2)}, {s(sW)}, 10")
    A(f"s_mov_b32 s48, {WS_FLG + FA_O}")
    wait_flags("a", 48, 256, True)
    ST.stamp()
    for g in range(2):
        if g:
            A(f"s_add_u32 m0, m0, {4*TS}")
            A(f"s_add_u32 {s(sT0)}, {s(sT0)}, 4096")
        for j in range(4):
            A(f"buffer_load_dwordx4 {v(vt[4+j])}, {s(SRD_T,4)}, {s(sT0)} offen offset:{j*TS} sc1 lds")
    A(f"s_add_u32 m0, {s(sT2)}, {MD_L}")
    A(f"v_add_u32 {v(vt[2])}, {WS_MOD + 2048}, {v(vtid16)}")
    A(f"global_load_lds_dwordx4 {v(vt[2])}, s[4:5] sc1")
    A("s_waitcnt vmcnt(0)")
    A(f"v_and_b32 {v(vt[4])}, 0x1c0, v0")
    A(f"v_add_u32 {v(vt[6])}, {v(vt[4])}, {v(vi)}")
    A(f"v_lshlrev_b32 {v(vt[6])}, 2, {v(vt[6])}")
    vpf = R.alloc(); vpd = R.alloc(2)
    if prefetch and not early and pfwin:
        A(f"s_lshr_b32 {s(sT2)}, s2, 3")
        A(f"s_lshl3_add_u32 {s(sT2)}, {s(sT2)}, {s(sW)}")
        A(f"s_and_b32 {s(sT2)}, {s(sT2)}, 127")
        A(f"s_mul_i32 {s(sT2)}, {s(sT2)}, 56")
        A(f"v_min_u32 {v(vpf)}, 55, {v(vl)}")
        A(f"v_add_u32 {v(vpf)}, {s(sT2)}, {v(vpf)}")
        A(f"v_mul_u32_u24 {v(vpd)}, 9363, {v(vpf)}")
        A(f"v_lshrrev_b32 {v(vpd)}, 17, {v(vpd)}")
        A(f"v_mul_u32_u24 {v(vpd+1)}, 14, {v(vpd)}")
        A(f"v_sub_u32 {v(vpd+1)}, {v(vpf)}, {v(vpd+1)}")
        A(f"v_mul_u32_u24 {v(vpf)}, 3584, {v(vpd)}")
        A(f"v_lshl_add_u32 {v(vpf)}, {v(vpd+1)}, 7, {v(vpf)}")
        A(f"v_cmp_lt_u32 s[46:47], 6, {v(vpd+1)}")
        A(f"v_mov_b32 {v(vpd)}, 896")
        A(f"v_cndmask_b32 {v(vpd)}, 0, {v(vpd)}, s[46:47]")
        A(f"s_and_b32 {s(sT1)}, s2, 1")
        A(f"s_mul_i32 {s(sT1)}, {s(sT1)}, 896")
        A(f"v_add3_u32 {v(vpf)}, {v(vpf)}, {v(vpd)}, {s(sT1)}")
    elif prefetch and not early:
        A(f"s_bfe_u32 {s(sT1)}, s2, 0x20001")
        A(f"s_lshl_b32 {s(sT1)}, {s(sT1)}, 21")
        A(f"s_lshr_b32 {s(sT2)}, s2, 3")
        A(f"s_lshl3_add_u32 {s(sT2)}, {s(sT2)}, {s(sW)}")
        A(f"s_and_b32 {s(sT2)}, {s(sT2)}, 127")
        A(f"s_lshl_b32 {s(sT2)}, {s(sT2)}, 14")
        A(f"s_add_u32 {s(sT1)}, {s(sT1)}, {s(sT2)}")
        if pfhalf:
            A(f"s_and_b32 {s(sT2)}, s2, 1")
            A(f"s_lshl_b32 {s(sT2)}, {s(sT2)}, 13")
            A(f"s_add_u32 {s(sT1)}, {s(sT1)}, {s(sT2)}")
        A(f"v_lshl_add_u32 {v(vpf)}, {v(vl)}, 7, {s(sT1)}")
    A("s_barrier")
    ST.stamp()
    if prefetch and not early:
        A(f"global_load_dword {v(vpd)}, {v(vpf)}, s[8:9]")
        if not pfhalf:
            A(f"v_add_u32 {v(vpf)}, 8192, {v(vpf)}")
            A(f"global_load_dword {v(vpd+1)}, {v(vpf)}, s[8:9]")
    if not wmcalc:
        for reg, o in ((Rr, 0), (Ri, 512)):
            A(f"ds_read_b64 {v(reg,2)}, {v(vt[5])} offset:{WM_L + o}")
            A(f"ds_read_b64 {v(reg+2,2)}, {v(vt[5])} offset:{WM_L + o + 32}")
    for jt in range(4):
        for c in range(2):
            for p in range(2):
                A(f"ds_read_b64_tr_b16 {v(Bf[jt][c]+2*p,2)}, {v(vaT)} offset:{c*32*TS + p*16*TS + jt*32}")
        if jt == 1:
            pass
    if not wmcalc:
        A("s_waitcnt lgkmcnt(15)")
        for j in range(4):
            A(f"v_xor_b32 {v(vt[0])}, {s(sT0)}, {v(Ri+j)}")
            A(f"v_cndmask_b32 {v(A0+j)}, {v(Rr+j)}, {v(Ri+j)}, vcc")
            A(f"v_cndmask_b32 {v(A1+j)}, {v(vt[0])}, {v(Rr+j)}, vcc")
    for jt in range(4): A(f"ds_read_b32 {v(opca[jt])}, {v(vt[6])} offset:{MD_L + jt*64}")
    for jt in range(4):
        A(f"s_waitcnt lgkmcnt({min(15, (3-jt)*4 + 4)})")
        A(f"v_mfma_f32_16x16x32_bf16 {v(acc[jt],4)}, {v(A0,4)}, {v(Bf[jt][0],4)}, 0")
        A(f"v_mfma_f32_16x16x32_bf16 {v(acc[jt],4)}, {v(A1,4)}, {v(Bf[jt][1],4)}, {v(acc[jt],4)}")
    for mt in range(2): A(f"ds_read_b128 {v(F1[mt],4)}, {v(vl16)} offset:{TB_L + mt*1024}")
    A(f"v_lshlrev_b32 {v(vt[7])}, 2, {v(vl16)}")
    for h in range(4): A(f"ds_read_b128 {v(tw+4*h,4)}, {v(vt[7])} offset:{TB_L + 6144 + h*16}")
    A("s_waitcnt lgkmcnt(6)")
    for jt in range(4):
        for r in range(4): A(f"v_mul_f32 {v(acc[jt]+r)}, {v(acc[jt]+r)}, {v(opca[jt])}")
    lab = f"{name}_bnodc"
    A(f"s_or_b32 {s(sT0)}, {s(sC)}, {s(sG)}")
    A(f"s_cbranch_scc1 {lab}")
    A(f"v_and_b32 {v(vt[2])}, 0x1cf, v0")
    A(f"v_lshlrev_b32 {v(vt[2])}, 2, {v(vt[2])}")
    if WS_MOD: A(f"v_add_u32 {v(vt[2])}, {WS_MOD}, {v(vt[2])}")
    for jt in range(4): A(f"global_load_dword {v(Bf[0][0]+jt)}, {v(vt[2])}, s[4:5] offset:{jt*64} sc1")
    A(f"v_cmp_eq_u32 vcc, 0, {v(vq)}")
    A(f"v_mov_b32 {v(vt[1])}, 0x45000000")
    A(f"v_cndmask_b32 {v(vt[1])}, 0, {v(vt[1])}, vcc")
    A("s_waitcnt vmcnt(0)")
    for jt in range(4): A(f"v_fmac_f32 {v(acc[jt])}, {v(Bf[0][0]+jt)}, {v(vt[1])}")
    A.label(lab)
    for jt in range(4):
        ac = acc[jt]
        A(f"v_cvt_pk_bf16_f32 {v(ac)}, {v(ac)}, {v(ac+1)}")
        A(f"v_cvt_pk_bf16_f32 {v(ac+1)}, {v(ac+2)}, {v(ac+3)}")
        o0 = (jt&1)*16*VS + (jt>>1)*4
        A(f"ds_write_b32 {v(vaVw)}, {v(ac)} offset:{o0}")
        A(f"ds_write_b32 {v(vaVw)}, {v(ac+1)} offset:{o0 + 32*VS}")
    A(f"s_mov_b32 {s(sT0)}, 0xffff0000")
    A("s_waitcnt lgkmcnt(0)")
    A("s_barrier")
    pass
    for h in range(2): A(f"ds_read_b128 {v(Bf[h][0],4)}, {v(vaVr)} offset:{h*16*VS}")
    for nt in range(2):
        for ks in range(2): A(f"ds_read_b128 {v(F2[nt][ks],4)}, {v(vl16)} offset:{TB_L + 2048 + nt*2048 + ks*1024}")
    A(f"v_lshlrev_b32 {v(vt[7])}, 1, {v(vl16)}")
    for h in range(2):
        A(f"s_waitcnt lgkmcnt({5-h})")
        for mt in range(2):
            A(f"v_mfma_f32_16x16x32_bf16 {v(acc[2*h+mt],4)}, {v(F1[mt],4)}, {v(Bf[h][0],4)}, 0")
    for reg, sec in ((ga, 1), (sb, 2), (ocb, 3)):
        for u in range(2): A(f"ds_read_b128 {v(reg+4*u,4)}, {v(vt[7])} offset:{MD_L + sec*2048 + u*16}")
    for h in range(2):
        for mt in range(2):
            for pp in range(2):
                re, im = acc[2*h+mt] + 2 * pp, acc[2*h+mt] + 2 * pp + 1
                k = ((h*2+mt)*2+pp)*2
                c_, s_ = tw + k, tw + k + 1
                t0, t1 = vt[4*pp], vt[4*pp+1]
                if pp == 1 and False: pass
                A(f"v_mul_f32 {v(t0)}, {v(re)}, {v(c_)}")
                A(f"v_mul_f32 {v(t1)}, {v(im)}, {v(c_)}")
                A(f"v_fma_f32 {v(t0)}, {v(im)}, {v(s_)}, {v(t0)}")
                A(f"v_fma_f32 {v(t1)}, -{v(re)}, {v(s_)}, {v(t1)}")
                A(f"v_cvt_pk_bf16_f32 {v(vt[4*pp+2])}, {v(t0)}, {v(t1)}")
                A(f"ds_write_b32 {v(vaUw)}, {v(vt[4*pp+2])} offset:{U_OFF + (8*mt+pp)*US + h*64}")
    A("s_waitcnt lgkmcnt(0)")
    for ks in range(2): A(f"ds_read_b128 {v(Bf[ks][0],4)}, {v(vaUr)} offset:{U_OFF + ks*64}")
    A(f"s_waitcnt vmcnt({(1 if pfhalf else 2) if (prefetch and not early) else 0})")
    xg = [xf, yy]
    for r in range(2):
        for j in range(4):
            A(f"v_lshlrev_b32 {v(xg[r]+2*j)}, 16, {v(xrow[r]+j)}")
            A(f"v_and_b32 {v(xg[r]+2*j+1)}, {s(sT0)}, {v(xrow[r]+j)}")
    for ks in range(2):
        A(f"s_waitcnt lgkmcnt({1-ks})")
        for nt in range(2):
            c = "0" if ks == 0 else v(acc[nt], 4)
            A(f"v_mfma_f32_16x16x32_bf16 {v(acc[nt],4)}, {v(Bf[ks][0],4)}, {v(F2[nt][ks],4)}, {c}")
    A(f"v_lshl_add_u32 {v(vt[0])}, {v(vl16)}, 1, {s(sY)}")
    A(f"v_lshlrev_b32 {v(vt[2])}, 1, {v(vl16)}")
    A(f"v_sub_u32 {v(vt[1])}, 2048, {v(vt[2])}")
    A(f"v_and_b32 {v(vt[1])}, 2047, {v(vt[1])}")
    A(f"v_add_u32 {v(vt[1])}, {s(sY)}, {v(vt[1])}")
    A(f"s_add_u32 {s(sT1)}, {s(sY)}, {505*4}")
    A(f"v_sub_u32 {v(vt[2])}, {s(sT1)}, {v(vt[2])}")
    for nt in range(2): A(f"ds_write_b128 {v(vaYw)}, {v(acc[nt],4)} offset:{nt*1024}")
    A("s_waitcnt lgkmcnt(0)")
    pass
    y = Bf[2][0]; assert Bf[2][1] == y + 4
    y2 = Bf[3][0]; assert Bf[3][1] == y2 + 4
    A(f"ds_read_b128 {v(y,4)}, {v(vt[0])}")
    A(f"ds_read_b128 {v(y+4,4)}, {v(vt[0])} offset:16")
    A(f"ds_read_b32 {v(y2)}, {v(vt[1])}")
    A(f"ds_read_b32 {v(y2+1)}, {v(vt[2])} offset:24")
    for j in (2, 4, 6): A(f"ds_read2_b32 {v(y2+j,2)}, {v(vt[2])} offset0:{7-j} offset1:{6-j}")
    A("s_waitcnt lgkmcnt(5)")
    for j in range(8): A(f"v_fma_f32 {v(xf+j)}, {v(ga+j)}, {v(y+j)}, {v(xf+j)}")
    A("s_waitcnt lgkmcnt(0)")
    for j in range(8): A(f"v_fma_f32 {v(yy+j)}, {v(ga+j)}, {v(y2+j)}, {v(yy+j)}")
    for r in range(2):
        for j in range(4): A(f"v_cvt_pk_bf16_f32 {v(xrow[r]+j)}, {v(xg[r]+2*j)}, {v(xg[r]+2*j+1)}")
    A(f"v_add_u32 {v(vt[2])}, {WS_X1}, {v(vrow[0])}")
    A(f"v_add_u32 {v(vt[3])}, {WS_X1}, {v(vrow[1])}")
    A(f"global_store_dwordx4 {v(vt[2])}, {v(xrow[0],4)}, s[4:5] sc1")
    lab2 = f"{name}_bnomir1"
    A(f"s_cmp_eq_u32 {s(sMir)}, 0")
    A(f"s_cbranch_scc1 {lab2}")
    A(f"global_store_dwordx4 {v(vt[3])}, {v(xrow[1],4)}, s[4:5] sc1")
    A.label(lab2)
    for r in range(2):
        for j in range(4):
            A(f"v_lshlrev_b32 {v(xg[r]+2*j)}, 16, {v(xrow[r]+j)}")
            A(f"v_and_b32 {v(xg[r]+2*j+1)}, {s(sT0)}, {v(xrow[r]+j)}")
    S_ = [vt[0], vt[1]]; Q_ = [vt[4], vt[5]]
    for r in range(2):
        A(f"v_add_f32 {v(S_[r])}, {v(xg[r])}, {v(xg[r]+1)}")
        A(f"v_mul_f32 {v(Q_[r])}, {v(xg[r])}, {v(xg[r])}")
    for j in range(1, 8):
        for r in range(2):
            if j >= 2: A(f"v_add_f32 {v(S_[r])}, {v(S_[r])}, {v(xg[r]+j)}")
            A(f"v_fmac_f32 {v(Q_[r])}, {v(xg[r]+j)}, {v(xg[r]+j)}")
    chains = [S_[0], Q_[0], S_[1], Q_[1]]
    for mode, rm in (("quad_perm:[1,0,3,2]", "0xf"), ("quad_perm:[2,3,0,1]", "0xf"), ("row_half_mirror", "0xf"), ("row_mirror", "0xf"), ("row_bcast:15", "0xa"), ("row_bcast:31", "0xc")):
        for c_ in chains: A(f"v_add_f32_dpp {v(c_)}, {v(c_)}, {v(c_)} {mode} row_mask:{rm} bank_mask:0xf")
    for k, c_ in enumerate(chains): A(f"v_readlane_b32 {s(30+k)}, {v(c_)}, 63")
    A(f"v_mov_b32 {v(vt[6])}, 0x3b000000")
    for r in range(2):
        A(f"v_mul_f32 {v(S_[r])}, {s(30+2*r)}, {v(vt[6])}")
        A(f"v_mul_f32 {v(Q_[r])}, {s(31+2*r)}, {v(vt[6])}")
    for r in range(2): A(f"v_fma_f32 {v(Q_[r])}, -{v(S_[r])}, {v(S_[r])}, {v(Q_[r])}")
    for r in range(2): A(f"v_max_f32 {v(Q_[r])}, 0, {v(Q_[r])}")
    for r in range(2): A(f"v_add_f32 {v(Q_[r])}, 0x3727c5ac, {v(Q_[r])}")
    for r in range(2): A(f"v_rsq_f32 {v(Q_[r])}, {v(Q_[r])}")
    A(f"v_add_u32 {v(vt[2])}, {WS_H2}, {v(vrow[0])}")
    A(f"v_add_u32 {v(vt[3])}, {WS_H2}, {v(vrow[1])}")
    for r in range(2):
        for j in range(8): A(f"v_sub_f32 {v(xg[r]+j)}, {v(xg[r]+j)}, {v(S_[r])}")
    for r in range(2):
        for j in range(8): A(f"v_mul_f32 {v(xg[r]+j)}, {v(xg[r]+j)}, {v(Q_[r])}")
    for r in range(2):
        for j in range(8): A(f"v_fma_f32 {v(xg[r]+j)}, {v(xg[r]+j)}, {v(ocb+j)}, {v(sb+j)}")
    yo = [y, y2]
    for r in range(2):
        for j in range(4): A(f"v_cvt_pk_bf16_f32 {v(yo[r]+j)}, {v(xg[r]+2*j)}, {v(xg[r]+2*j+1)}")
    A(f"global_store_dwordx4 {v(vt[2])}, {v(y,4)}, s[4:5] sc1")
    A(f"s_cmp_eq_u32 {s(sMir)}, 0")
    A(f"s_cbranch_scc1 {name}_bfin")
    A(f"global_store_dwordx4 {v(vt[3])}, {v(y2,4)}, s[4:5] sc1")
    A.label(f"{name}_bfin")
    ST.stamp()
    A(f"s_lshl_b32 {s(sT0)}, s2, 7")
    A(f"s_add_u32 {s(sT0)}, {s(sT0)}, {WS_FLG + FB_O}")
    arrive(3, 8, sT0, "b")
    A("s_barrier")
    A.label(f"{name}_bdone")
    ST.stamp()
    A(f"s_bfe_u32 {s(sRB)}, s2, 0x20001")
    A(f"s_bfe_u32 {s(sT0)}, s2, 0x30003")
    A(f"s_lshl3_add_u32 {s(sRB)}, {s(sRB)}, {s(sT0)}")
    A(f"s_and_b32 {s(sCC)}, s2, 1")
    A(f"s_lshr_b32 {s(sT0)}, s2, 6")
    A(f"s_lshl2_add_u32 {s(sCC)}, {s(sCC)}, {s(sT0)}")
    A(f"s_and_b32 {s(sTH)}, {s(sW)}, 1")
    A(f"s_bfe_u32 {s(sFH)}, {s(sW)}, 0x10001")
    vq, vi = 1, 2
    vtt = [3, 4]
    A(f"v_bfe_u32 v1, v0, 4, 2")
    A(f"v_and_b32 v2, 15, v0")
    A(f"s_lshl1_add_u32 {s(sT0)}, {s(sTH)}, {s(sFH)}")
    A(f"s_xor_b32 {s(sT1)}, {s(sT0)}, 1")
    A(f"v_lshl_add_u32 {v(vtt[0])}, {s(sT0)}, 4, {v(vi)}")
    A(f"v_lshl_add_u32 {v(vtt[1])}, {s(sT1)}, 4, {v(vi)}")
    A(f"s_cmp_ge_u32 {s(sW)}, 4")
    A(f"s_cbranch_scc1 {name}_loader")
    TILES = [(0, 0), (0, 1), (1, 0), (1, 1), (2, 0), (2, 1), (3, 0)]
    nvmax = [0]
    R = RegAlloc(5)
    vC = R.alloc(2)
    vtb = R.alloc(8, 4); vt = [vtb + k for k in range(8)]
    vH = [[R.alloc() for _ in range(2)] for _ in range(2)]
    vWa = [R.alloc() for _ in range(2)]; vWb = [R.alloc() for _ in range(2)]
    vLx = [R.alloc() for _ in range(2)]
    gt2 = R.alloc(16, 4)
    vpf = 252
    z2p = [R.alloc(2) for _ in range(7)]
    st1 = [R.alloc(2) for _ in range(2)]; st2 = [R.alloc(2) for _ in range(2)]
    acc1 = [R.alloc(4) for _ in range(7)]; acc = [acc1, acc1]
    cH = [[R.alloc() for _ in range(2)] for _ in range(2)]; nH = [[R.alloc() for _ in range(2)] for _ in range(2)]
    FH_ = [[[R.alloc(4) for _ in range(2)] for _ in range(2)] for _ in range(2)]
    FW = [[[R.alloc(4) for _ in range(4)] for _ in range(2)] for _ in range(2)]
    A(f"v_and_b32 {v(vt[0])}, 7, {v(vi)}")
    A(f"v_xor_b32 {v(vt[1])}, {v(vq)}, {v(vt[0])}")
    A(f"v_lshlrev_b32 {v(vt[1])}, 4, {v(vt[1])}")
    for hf in range(2):
        A(f"v_lshl_add_u32 {v(vH[hf][0])}, {v(vtt[hf])}, 7, {v(vt[1])}")
        A(f"v_xor_b32 {v(vH[hf][1])}, 64, {v(vH[hf][0])}")
    A(f"v_mul_u32_u24 {v(vt[1])}, {2*GS}, {v(vq)}")
    A(f"v_lshrrev_b32 {v(vt[2])}, 2, {v(vi)}")
    A(f"v_mul_u32_u24 {v(vt[2])}, 224, {v(vt[2])}")
    A(f"v_and_b32 {v(vt[3])}, 3, {v(vi)}")
    A(f"v_lshl_add_u32 {v(vt[1])}, {v(vt[3])}, 3, {v(vt[1])}")
    A(f"v_add_u32 {v(vt[1])}, {v(vt[1])}, {v(vt[2])}")
    A(f"s_lshl_b32 {s(sT0)}, {s(sFH)}, 7")
    A(f"s_add_u32 {s(sT0)}, {s(sT0)}, {W_OFF}")
    A(f"v_add_u32 {v(vWa[0])}, {s(sT0)}, {v(vt[1])}")
    A(f"v_add_u32 {v(vWb[0])}, {W_OFF+96}, {v(vt[1])}")
    A(f"v_add_u32 {v(vWa[1])}, {3*SLOT}, {v(vWa[0])}")
    A(f"v_add_u32 {v(vWb[1])}, {3*SLOT}, {v(vWb[0])}")
    A(f"s_mul_i32 {s(sT0)}, {s(sW)}, {XS}")
    A(f"s_add_u32 {s(sT0)}, {s(sT0)}, {X_OFF}")
    for hf in range(2):
        A(f"v_and_b32 {v(vLx[hf])}, 31, {v(vtt[hf])}")
        A(f"v_mul_u32_u24 {v(vLx[hf])}, 144, {v(vLx[hf])}")
        A(f"v_lshl_add_u32 {v(vLx[hf])}, {v(vq)}, 3, {v(vLx[hf])}")
        A(f"v_add_u32 {v(vLx[hf])}, {s(sT0)}, {v(vLx[hf])}")
    for hf in range(2):
        for r in range(2):
            A(f"v_mov_b32 {v(st1[hf]+r)}, 0"); A(f"v_mov_b32 {v(st2[hf]+r)}, 0")
    A(f"v_mov_b32 {v(vC)}, {fhex(GELU_C2)}")
    A(f"v_mov_b32 {v(vC+1)}, {fhex(GELU_C1)}")
    A("s_waitcnt lgkmcnt(0)")
    def readsZ(slot, buf, hregs, hoff):
        sg = slot // 3; so = (slot % 3) * SLOT
        o = []
        for ks in range(2):
            for hf in range(2): o.append(f"ds_read_b128 {v(FH_[buf][ks][hf],4)}, {v(hregs[hf][ks])} offset:{hoff}")
            for wf in range(4):
                for p in range(2):
                    base = vWa[sg] if wf < 3 else vWb[sg]
                    off = so + ks * 8 * GS + p * GS + (wf * 32 if wf < 3 else 0)
                    o.append(f"ds_read_b64_tr_b16 {v(FW[buf][ks][wf]+2*p,2)}, {v(base)} offset:{off}")
        return o
    def mfmasZ(buf):
        o = []
        for ks in range(2):
            for tl, (wf, hf) in enumerate(TILES):
                o.append(f"v_mfma_f32_16x16x32_bf16 {v(acc1[tl],4)}, {v(FW[buf][ks][wf],4)}, {v(FH_[buf][ks][hf],4)}, {v(acc1[tl],4)}")
        return o
    def zero_acc():
        for tl in range(7):
            for r in range(4): A(f"v_mov_b32 {v(acc1[tl]+r)}, 0")
    def z2_part1():
        A(f"s_mov_b32 {s(sT2)}, 0xffff0000")
        for grp in ([0, 1, 2, 3], [4, 5, 6]):
            for x in gelu_pk_multi([acc[0][tl] for tl in grp], gt2, vC): A(x)
            for tl in grp:
                ac = acc[0][tl]
                for h in range(2): A(f"v_cvt_pk_bf16_f32 {v(z2p[tl]+h)}, {v(ac+2*h)}, {v(ac+2*h+1)}")
            for k, tl in enumerate(grp):
                for h in range(2):
                    A(f"v_lshlrev_b32 {v(gt2+4*k+2*h)}, 16, {v(z2p[tl]+h)}")
                    A(f"v_and_b32 {v(gt2+4*k+2*h+1)}, {s(sT2)}, {v(z2p[tl]+h)}")
            for k, tl in enumerate(grp):
                hf = TILES[tl][1]
                for h in range(2):
                    A(pk("add", st1[hf], v(st1[hf], 2), v(gt2+4*k+2*h, 2)))
                    A(pk("fma", st2[hf], v(gt2+4*k+2*h, 2), v(gt2+4*k+2*h, 2), v(st2[hf], 2)))
        for hf in range(2):
            A(f"v_add_f32 {v(st1[hf])}, {v(st1[hf])}, {v(st1[hf]+1)}")
            A(f"v_add_f32 {v(st2[hf])}, {v(st2[hf])}, {v(st2[hf]+1)}")
        rs4 = (st1[0], st2[0], st1[1], st2[1])
        for k, r in enumerate(rs4): A(f"v_mov_b32 {v(gt2+k)}, {v(r)}")
        for k, r in enumerate(rs4): A(f"v_permlane16_swap_b32 {v(r)}, {v(gt2+k)}")
        for k, r in enumerate(rs4): A(f"v_add_f32 {v(r)}, {v(r)}, {v(gt2+k)}")
        for k, r in enumerate(rs4): A(f"v_mov_b32 {v(gt2+k)}, {v(r)}")
        for k, r in enumerate(rs4): A(f"v_permlane32_swap_b32 {v(r)}, {v(gt2+k)}")
        for k, r in enumerate(rs4): A(f"v_add_f32 {v(r)}, {v(r)}, {v(gt2+k)}")
        for x in [f"v_cmp_eq_u32 vcc, 1, {v(vq)}",
           f"v_mov_b32 {v(vt[4])}, 0x7fc00000",
           f"s_lshl1_add_u32 {s(sT1)}, {s(sRB)}, {s(sTH)}",
           f"v_cndmask_b32 {v(vt[2])}, {v(st1[0])}, {v(st1[1])}, vcc",
           f"v_cndmask_b32 {v(vt[3])}, {v(st2[0])}, {v(st2[1])}, vcc",
           f"v_cndmask_b32 {v(vt[0])}, {v(vtt[0])}, {v(vtt[1])}, vcc",
           f"v_cmp_eq_u32 vcc, -1, {v(vt[2])}",
           f"s_lshl_b32 {s(sT1)}, {s(sT1)}, 12",
           f"v_cndmask_b32 {v(vt[2])}, {v(vt[2])}, {v(vt[4])}, vcc",
           f"v_cmp_eq_u32 vcc, -1, {v(vt[3])}",
           f"s_add_u32 {s(sT1)}, {s(sT1)}, {WS_STAT}",
           f"v_cndmask_b32 {v(vt[3])}, {v(vt[3])}, {v(vt[4])}, vcc",
           f"s_lshl1_add_u32 {s(sT2)}, {s(sCC)}, {s(sFH)}",
           f"s_lshl_b32 {s(sT2)}, {s(sT2)}, 8",
           f"s_add_u32 {s(sT2)}, {s(sT2)}, {s(sT1)}",
           f"v_and_b32 {v(vt[0])}, 31, {v(vt[0])}",
           f"v_lshl_add_u32 {v(vt[0])}, {v(vt[0])}, 3, {s(sT2)}",
           "s_mov_b32 exec_hi, 0",
           f"global_store_dwordx2 {v(vt[0])}, {v(vt[2],2)}, s[4:5] sc1",
           "s_mov_b32 exec_hi, -1"]: A(x)
        for tl, (wf, hf) in enumerate(TILES):
            A(f"ds_write_b64 {v(vLx[hf])}, {v(z2p[tl],2)} offset:{wf*32}")
    def touches():
        A(f"v_and_b32 {v(vt[5])}, 63, v0")
        A(f"s_lshr_b32 {s(sT1)}, s2, 3")
        A(f"s_lshl2_add_u32 {s(sT1)}, {s(sT1)}, {s(sW)}")
        A(f"s_bfe_u32 {s(sT0)}, s2, 0x20001")
        A(f"s_lshl_b32 {s(sT0)}, {s(sT0)}, 21")
        A(f"s_lshl_b32 {s(sT2)}, {s(sT1)}, 14")
        A(f"s_add_u32 {s(sT0)}, {s(sT0)}, {s(sT2)}")
        if pfhalf:
            A(f"s_and_b32 {s(sT2)}, s2, 1")
            A(f"s_lshl_b32 {s(sT2)}, {s(sT2)}, 13")
            A(f"s_add_u32 {s(sT0)}, {s(sT0)}, {s(sT2)}")
        A(f"v_lshl_add_u32 {v(vt[1])}, {v(vt[5])}, 7, {s(sT0)}")
        A(f"global_load_dword {v(vpf)}, {v(vt[1])}, s[12:13]")
        if not pfhalf:
            A(f"v_add_u32 {v(vt[1])}, 8192, {v(vt[1])}")
            A(f"global_load_dword {v(vpf+1)}, {v(vt[1])}, s[12:13]")
        lab = f"{name}_nowo"
        A(f"s_cmp_ge_u32 {s(sT1)}, 56")
        A(f"s_cbranch_scc1 {lab}")
        A(f"v_lshl_add_u32 {v(vt[1])}, {s(sT1)}, 6, {v(vt[5])}")
        A(f"v_lshrrev_b32 {v(vt[2])}, 2, {v(vt[1])}")
        A(f"v_and_b32 {v(vt[1])}, 3, {v(vt[1])}")
        A(f"v_lshlrev_b32 {v(vt[2])}, 10, {v(vt[2])}")
        A(f"v_lshl_add_u32 {v(vt[2])}, {v(vt[1])}, 7, {v(vt[2])}")
        A(f"s_and_b32 {s(sT0)}, s2, 1")
        A(f"s_lshl_b32 {s(sT0)}, {s(sT0)}, 9")
        A(f"v_add_u32 {v(vt[2])}, {s(sT0)}, {v(vt[2])}")
        A(f"global_load_dword {v(vpf+2)}, {v(vt[2])}, s[16:17]")
        A.label(lab)
    sZ = 43
    zero_acc()
    A(f"s_mov_b32 {s(sZ)}, 0")
    A("s_barrier")
    A("s_barrier")
    for r in readsZ(0, 0, vH, 0): A(r)
    zl = f"{name}_zloop"; zc = f"{name}_zcont"
    A.label(zl)
    A(f"s_and_b32 {s(sT0)}, {s(sZ)}, 1")
    A(f"s_lshl_b32 {s(sT0)}, {s(sT0)}, 15")
    A(f"s_xor_b32 {s(sT1)}, {s(sT0)}, 32768")
    for hf in range(2):
        for ks in range(2):
            A(f"v_add_u32 {v(cH[hf][ks])}, {s(sT0)}, {v(vH[hf][ks])}")
            A(f"v_add_u32 {v(nH[hf][ks])}, {s(sT1)}, {v(vH[hf][ks])}")
    for j in range(4):
        A("s_waitcnt lgkmcnt(0)")
        A("s_barrier")
        rd = readsZ((j + 1) % 4, (j + 1) & 1, cH if j < 3 else nH, (j + 1) * 8192 if j < 3 else 0)
        for x in interleave2(mfmasZ(j & 1), rd): A(x)
    A(f"s_add_u32 {s(sZ)}, {s(sZ)}, 1")
    A(f"s_cmp_lg_u32 {s(sZ)}, 2")
    A(f"s_cbranch_scc1 {zc}")
    if prefetch and not early and pfpos == 0: touches()
    z2_part1()
    zero_acc()
    A.label(zc)
    A(f"s_cmp_lt_u32 {s(sZ)}, 4")
    A(f"s_cbranch_scc1 {zl}")
    ST.stamp()
    A("s_waitcnt lgkmcnt(0)")
    vLa = [vH[0][0], vH[1][0]]; vL4 = vH[0][1]
    for hf in range(2):
        A(f"v_mul_u32_u24 {v(vLa[hf])}, 224, {v(vtt[hf])}")
        A(f"v_lshl_add_u32 {v(vLa[hf])}, {v(vq)}, 3, {v(vLa[hf])}")
        A(f"v_add_u32 {v(vLa[hf])}, {ZT}, {v(vLa[hf])}")
    A(f"v_add_u32 {v(vL4)}, 96, {v(vLa[0])}")
    A(f"s_lshl_b32 {s(sT0)}, {s(sFH)}, 7")
    for hf in range(2): A(f"v_add_u32 {v(vLa[hf])}, {s(sT0)}, {v(vLa[hf])}")
    gt = FW[0][0][0]
    for grp in ([0, 1, 2, 3], [4, 5, 6]):
        for x in gelu_pk_multi([acc[1][tl] for tl in grp], gt, vC): A(x)
        for tl in grp:
            wf, hf = TILES[tl]; ac = acc[1][tl]
            for h in range(2): A(f"v_cvt_pk_bf16_f32 {v(ac+h)}, {v(ac+2*h)}, {v(ac+2*h+1)}")
            if wf < 3: A(f"ds_write_b64 {v(vLa[hf])}, {v(ac,2)} offset:{wf*32}")
            else: A(f"ds_write_b64 {v(vL4)}, {v(ac,2)}")
    nvmax[0] = max(nvmax[0], R.hi)
    R = RegAlloc(5)
    vA = R.alloc(); vB = [R.alloc() for _ in range(2)]
    cA = R.alloc(); cB = [R.alloc() for _ in range(2)]
    vtb = R.alloc(8, 4); vt = [vtb + k for k in range(8)]
    accg = [[R.alloc(4) for _ in range(2)] for _ in range(7)]
    FA = [[R.alloc(4) for _ in range(7)] for _ in range(2)]
    FB = [[R.alloc(4) for _ in range(2)] for _ in range(2)]
    vb = R.alloc(); vtw = R.alloc()
    vb4 = R.alloc(4)
    vxw = R.alloc(); vxr = R.alloc(); vz1 = R.alloc(); vz = R.alloc(4); vrb = R.alloc()
    A("s_waitcnt lgkmcnt(0)")
    A(f"v_lshl_add_u32 {v(vtw)}, {s(sW)}, 4, {v(vi)}")
    A(f"v_lshl_add_u32 {v(vt[0])}, {s(sRB)}, 6, {v(vtw)}")
    A(f"v_lshlrev_b32 {v(vt[0])}, 1, {v(vt[0])}")
    A(f"global_load_ushort {v(vb)}, {v(vt[0])}, s[36:37]")
    A(f"s_and_b32 {s(sT0)}, {s(sW)}, 1")
    A(f"s_lshl_b32 {s(sT0)}, {s(sT0)}, 2")
    A(f"v_add_u32 {v(vt[4])}, {s(sT0)}, {v(vq)}")
    A(f"v_and_b32 {v(vt[2])}, 7, {v(vi)}")
    A(f"v_xor_b32 {v(vt[1])}, {v(vt[4])}, {v(vt[2])}")
    A(f"v_lshlrev_b32 {v(vt[1])}, 4, {v(vt[1])}")
    A(f"v_lshl_add_u32 {v(vA)}, {v(vi)}, 7, {v(vt[1])}")
    A(f"v_add_u32 {v(vt[1])}, {B_OFF}, {v(vt[1])}")
    A(f"v_lshl_add_u32 {v(vB[0])}, {v(vtw)}, 7, {v(vt[1])}")
    A(f"v_xor_b32 {v(vt[3])}, 16, {v(vtw)}")
    A(f"v_lshl_add_u32 {v(vB[1])}, {v(vt[3])}, 7, {v(vt[1])}")
    A(f"v_and_b32 {v(vt[0])}, 63, v0")
    A(f"s_mul_i32 {s(sT0)}, {s(sW)}, 7168")
    A(f"s_add_u32 {s(sT0)}, {s(sT0)}, {GX}")
    A(f"v_lshl_add_u32 {v(vxw)}, {v(vt[0])}, 4, {s(sT0)}")
    A(f"s_xor_b32 {s(sT1)}, {s(sW)}, 1")
    A(f"s_mul_i32 {s(sT1)}, {s(sT1)}, 7168")
    A(f"s_add_u32 {s(sT1)}, {s(sT1)}, {GX}")
    A(f"v_lshl_add_u32 {v(vxr)}, {v(vt[0])}, 4, {s(sT1)}")
    A(f"v_mul_u32_u24 {v(vz1)}, 224, {v(vtw)}")
    A(f"v_lshl_add_u32 {v(vz1)}, {v(vq)}, 3, {v(vz1)}")
    A(f"v_add_u32 {v(vz1)}, {ZT}, {v(vz1)}")
    for j in range(4):
        A(f"v_add_u32 {v(vt[4])}, {64*j}, {v(vt[0])}")
        div14(A, vt[5], vt[6], vt[4], vt[7])
        A(f"v_mul_u32_u24 {v(vt[5])}, 1792, {v(vt[5])}")
        A(f"v_lshl_add_u32 {v(vz+j)}, {v(vt[6])}, 4, {v(vt[5])}")
    A(f"s_lshl2_add_u32 {s(sT0)}, {s(sRB)}, {s(sW)}")
    A(f"s_mul_i32 {s(sT0)}, {s(sT0)}, {16*1792}")
    A(f"s_mul_i32 {s(sT1)}, {s(sCC)}, 224")
    A(f"s_add_u32 {s(sT0)}, {s(sT0)}, {s(sT1)}")
    A(f"s_add_u32 {s(sT0)}, {s(sT0)}, {WS_P0}")
    for j in range(4): A(f"v_add_u32 {v(vz+j)}, {s(sT0)}, {v(vz+j)}")
    A(f"s_mul_i32 {s(sT0)}, {s(sW)}, {16*224}")
    A(f"s_add_u32 {s(sT0)}, {s(sT0)}, {ZT}")
    A(f"v_lshl_add_u32 {v(vrb)}, {v(vt[0])}, 4, {s(sT0)}")
    A(f"s_mov_b32 {s(sSlot)}, 0")
    A(f"s_mov_b32 {s(sI)}, 0")
    def rdsG(buf, a_, b_):
        return [f"ds_read_b128 {v(FB[buf][nb],4)}, {v(b_[nb])}" for nb in range(2)] + \
               [f"ds_read_b128 {v(FA[buf][fa],4)}, {v(a_)} offset:{fa*2048}" for fa in range(7)]
    def mmsG(buf, first=False):
        o = []
        for fa in range(7):
            for nb in range(2):
                c = ((v(vb4, 4) if (nb == 0 and biasC) else "0") if first else v(accg[fa][nb], 4))
                o.append(f"v_mfma_f32_16x16x32_bf16 {v(accg[fa][nb],4)}, {v(FA[buf][fa],4)}, {v(FB[buf][nb],4)}, {c}")
        return o
    def adv():
        A(f"s_add_u32 {s(sSlot)}, {s(sSlot)}, {STAGE}")
        A(f"s_cmp_ge_u32 {s(sSlot)}, {RING}")
        A(f"s_cselect_b32 {s(sSlot)}, 0, {s(sSlot)}")
        A(f"v_add_u32 {v(cA)}, {s(sSlot)}, {v(vA)}")
        for nb in range(2): A(f"v_add_u32 {v(cB[nb])}, {s(sSlot)}, {v(vB[nb])}")
    if biasC:
        A("s_waitcnt vmcnt(0)")
        for r in range(4): A(f"v_lshlrev_b32 {v(vb4+r)}, 16, {v(vb)}")
    ST.stamp()
    A("s_barrier")
    A("s_barrier")
    ST.stamp()
    for r in rdsG(0, vA, vB): A(r)
    adv()
    A("s_waitcnt lgkmcnt(0)")
    A("s_barrier")
    for x in interleave2(mmsG(0, True), rdsG(1, cA, cB)): A(x)
    loop = f"{name}_gloop"
    A.label(loop)
    for buf in (1, 0):
        adv()
        A("s_waitcnt lgkmcnt(0)")
        A("s_barrier")
        for x in interleave2(mmsG(buf), rdsG(buf ^ 1, cA, cB)): A(x)
    A(f"s_add_u32 {s(sI)}, {s(sI)}, 1")
    A(f"s_cmp_lt_u32 {s(sI)}, 15")
    A(f"s_cbranch_scc1 {loop}")
    A("s_waitcnt lgkmcnt(0)")
    for x in mmsG(1): A(x)
    ST.stamp()
    for fa in range(7): A(f"ds_write_b128 {v(vxw)}, {v(accg[fa][1],4)} offset:{fa*1024}")
    A("s_waitcnt vmcnt(0) lgkmcnt(0)")
    A(f"v_lshlrev_b32 {v(vb)}, 16, {v(vb)}")
    A("s_barrier")
    for fa in range(7): A(f"ds_read_b128 {v(FA[0][fa],4)}, {v(vxr)} offset:{fa*1024}")
    zr = [FA[1][fa] for fa in range(7)]
    for fa in range(7): A(f"ds_read_b64 {v(zr[fa],2)}, {v(vz1)} offset:{fa*32}")
    A(f"v_mov_b32 {v(FB[1][0])}, {v(vb)}")
    A(f"v_mov_b32 {v(FB[1][0]+1)}, {v(vb)}")
    A("s_mov_b32 s33, 0xffff0000")
    for fa in range(7):
        ac = accg[fa][0]; pr = FA[0][fa]
        A(f"s_waitcnt lgkmcnt({13 - fa})")
        for h in (0, 2): A(pk("add", ac + h, v(ac + h, 2), v(pr + h, 2)))
        if not biasC:
            for h in (0, 2): A(pk("add", ac + h, v(ac + h, 2), v(FB[1][0], 2)))
    for fa in range(7):
        ac = accg[fa][0]; pr = FA[0][fa]; z = zr[fa]
        A(f"s_waitcnt lgkmcnt({6 - fa})")
        for h in range(2):
            A(f"v_lshlrev_b32 {v(z+2)}, 16, {v(z+h)}")
            A(f"v_and_b32 {v(z+3)}, s33, {v(z+h)}")
            A(pk("mul", ac + 2*h, v(ac + 2*h, 2), v(z + 2, 2)))
            A(f"v_cvt_pk_bf16_f32 {v(pr+h)}, {v(ac+2*h)}, {v(ac+2*h+1)}")
        A(f"ds_write_b64 {v(vz1)}, {v(pr,2)} offset:{fa*32}")
    A("s_waitcnt lgkmcnt(0)")
    ob = [FA[1][j] for j in range(4)]
    for j in range(4): A(f"ds_read_b128 {v(ob[j],4)}, {v(vrb)} offset:{j*1024}")
    for j in range(3):
        A(f"s_waitcnt lgkmcnt({3-j})")
        A(f"global_store_dwordx4 {v(vz+j)}, {v(ob[j],4)}, s[4:5] sc1")
    A("s_waitcnt lgkmcnt(0)")
    A("s_mov_b32 exec_hi, 0")
    A(f"global_store_dwordx4 {v(vz+3)}, {v(ob[3],4)}, s[4:5] sc1")
    A("s_mov_b32 exec_hi, -1")
    nvmax[0] = max(nvmax[0], R.hi)
    R = RegAlloc(5)
    vtw2 = R.alloc()
    vtb = R.alloc(8, 4); vt = [vtb + k for k in range(8)]
    vW = [[R.alloc() for _ in range(4)] for _ in range(2)]
    vP = [[R.alloc() for _ in range(2)] for _ in range(2)]
    vP2 = [[R.alloc() for _ in range(2)] for _ in range(2)]
    acco = [[R.alloc(4) for _ in range(2)] for _ in range(4)]
    FWo = [[[R.alloc(4) for _ in range(4)] for _ in range(2)] for _ in range(2)]
    FP = [[[R.alloc(4) for _ in range(2)] for _ in range(2)] for _ in range(2)]
    gb = [R.alloc(4) for _ in range(4)]
    vcnt = R.alloc(2)
    A(f"s_lshl3_add_u32 {s(sT0)}, {s(sRB)}, {s(sCC)}")
    A(f"s_lshl_b32 {s(sT0)}, {s(sT0)}, 7")
    A(f"s_add_u32 {s(sT0)}, {s(sT0)}, {WS_FLG + FT_O}")
    arrive(1, 4, sT0, "p")
    ST.stamp()
    A("s_barrier")
    A(f"v_lshl_add_u32 {v(vtw2)}, {s(sW)}, 4, {v(vi)}")
    A(f"s_and_b32 {s(sT2)}, {s(sW)}, 1")
    A(f"v_lshrrev_b32 {v(vt[0])}, 2, {v(vi)}")
    A(f"v_lshl_add_u32 {v(vt[0])}, {v(vq)}, 3, {v(vt[0])}")
    A(f"v_lshlrev_b32 {v(vt[0])}, 7, {v(vt[0])}")
    A(f"v_and_b32 {v(vt[1])}, 1, {v(vi)}")
    A(f"v_lshl_add_u32 {v(vt[0])}, {v(vt[1])}, 3, {v(vt[0])}")
    A(f"s_lshl_b32 {s(sT0)}, {s(sT2)}, 13")
    A(f"v_add_u32 {v(vt[0])}, {s(sT0)}, {v(vt[0])}")
    A(f"v_bfe_u32 {v(vt[1])}, {v(vi)}, 3, 1")
    A(f"v_and_b32 {v(vt[2])}, 1, {v(vq)}")
    A(f"v_lshl_or_b32 {v(vt[1])}, {v(vt[2])}, 1, {v(vt[1])}")
    A(f"v_lshlrev_b32 {v(vt[1])}, 1, {v(vt[1])}")
    A(f"v_bfe_u32 {v(vt[2])}, {v(vi)}, 1, 1")
    A(f"v_xor_b32 {v(vt[1])}, {v(vt[1])}, {v(vt[2])}")
    for dt in range(4):
        A(f"v_xor_b32 {v(vt[3])}, {2*dt}, {v(vt[1])}")
        A(f"v_lshl_add_u32 {v(vW[0][dt])}, {v(vt[3])}, 4, {v(vt[0])}")
        A(f"v_add_u32 {v(vW[1][dt])}, 65536, {v(vW[0][dt])}")
    A(f"v_and_b32 {v(vt[0])}, 7, {v(vi)}")
    A(f"v_xor_b32 {v(vt[1])}, {v(vq)}, {v(vt[0])}")
    A(f"v_lshlrev_b32 {v(vt[1])}, 4, {v(vt[1])}")
    A(f"s_add_u32 {s(sT0)}, {s(sT0)}, {OP}")
    A(f"v_add_u32 {v(vt[1])}, {s(sT0)}, {v(vt[1])}")
    A(f"v_lshl_add_u32 {v(vP[0][0])}, {v(vtw2)}, 7, {v(vt[1])}")
    A(f"v_xor_b32 {v(vP[1][0])}, 2048, {v(vP[0][0])}")
    for tl in range(2): A(f"v_xor_b32 {v(vP[tl][1])}, 64, {v(vP[tl][0])}")
    for tl in range(2):
        for ks in range(2): A(f"v_add_u32 {v(vP2[tl][ks])}, 65536, {v(vP[tl][ks])}")
    A(f"s_lshl_b32 {s(sT0)}, {s(sCC)}, 8")
    A(f"s_add_u32 {s(sT0)}, {s(sT0)}, {WS_MOD + 2560*4}")
    A(f"v_lshl_add_u32 {v(vt[0])}, {v(vq)}, 4, {s(sT0)}")
    for dt in range(4): A(f"global_load_dwordx4 {v(gb[dt],4)}, {v(vt[0])}, s[4:5] offset:{dt*64} sc1")
    assert OP % 4096 == 0
    def readsO(st, buf):
        ws_ = st % NW; g = ws_ // 4; so = (ws_ % 4) * 16384
        ps = st % NSO; pr_ = vP if ps < 4 else vP2; po = (ps % 4) * PSLOT
        o = []
        for ks in range(2):
            for tl in range(2): o.append(f"ds_read_b128 {v(FP[buf][ks][tl],4)}, {v(pr_[tl][ks])} offset:{po}")
            for dt in range(4):
                for p in range(2):
                    o.append(f"ds_read_b64_tr_b16 {v(FWo[buf][ks][dt]+2*p,2)}, {v(vW[g][dt])} offset:{so + ks*4096 + p*512}")
        return o
    def mfmasO(st, buf):
        o = []
        for ks in range(2):
            for dt in range(4):
                for tl in range(2):
                    c = "0" if st == 0 and ks == 0 else v(acco[dt][tl], 4)
                    o.append(f"v_mfma_f32_16x16x32_bf16 {v(acco[dt][tl],4)}, {v(FWo[buf][ks][dt],4)}, {v(FP[buf][ks][tl],4)}, {c}")
        return o
    XT = OP + 2 * PSLOT
    E_OFF = 2 * 16384
    consumer_full(A, NSTO, readsO, mfmasO)
    ST.stamp()
    A(f"v_and_b32 {v(vt[0])}, 63, v0")
    A(f"s_lshl_b32 {s(sT0)}, {s(sW)}, 12")
    A(f"s_add_u32 {s(sT0)}, {s(sT0)}, {E_OFF}")
    A(f"v_lshl_add_u32 {v(vt[1])}, {v(vt[0])}, 4, {s(sT0)}")
    A(f"v_xor_b32 {v(vt[2])}, 4096, {v(vt[1])}")
    for dt in range(4): A(f"ds_write_b128 {v(vt[1])}, {v(acco[dt][1],4)} offset:{dt*1024}")
    va = [vt[4], vt[5], vt[6], vt[7]]
    A(f"v_and_b32 {v(vt[3])}, 7, {v(vi)}")
    A(f"v_lshrrev_b32 {v(vW[0][0])}, 1, {v(vq)}")
    A(f"v_xor_b32 {v(vt[3])}, {v(vt[3])}, {v(vW[0][0])}")
    A(f"v_and_b32 {v(vW[0][0])}, 1, {v(vq)}")
    A(f"v_lshlrev_b32 {v(vW[0][0])}, 3, {v(vW[0][0])}")
    A(f"v_lshl_add_u32 {v(vW[0][0])}, {v(vtw2)}, 7, {v(vW[0][0])}")
    A(f"v_add_u32 {v(vW[0][0])}, {XT}, {v(vW[0][0])}")
    for dt in range(4):
        A(f"v_xor_b32 {v(vW[0][1])}, {2*dt}, {v(vt[3])}")
        A(f"v_lshl_add_u32 {v(va[dt])}, {v(vW[0][1])}, 4, {v(vW[0][0])}")
    vrb2 = vW[1][0]; vgo = vW[1][1]
    A(f"v_lshrrev_b32 {v(vW[1][2])}, 3, {v(vt[0])}")
    A(f"v_and_b32 {v(vW[1][3])}, 7, {v(vt[0])}")
    A(f"v_xor_b32 {v(vrb2)}, {v(vW[1][2])}, {v(vW[1][3])}")
    A(f"v_lshlrev_b32 {v(vrb2)}, 4, {v(vrb2)}")
    A(f"v_lshl_add_u32 {v(vrb2)}, {v(vW[1][2])}, 7, {v(vrb2)}")
    A(f"s_lshl_b32 {s(sT0)}, {s(sW)}, 11")
    A(f"s_add_u32 {s(sT0)}, {s(sT0)}, {XT}")
    A(f"v_add_u32 {v(vrb2)}, {s(sT0)}, {v(vrb2)}")
    A(f"v_lshlrev_b32 {v(vgo)}, 10, {v(vW[1][2])}")
    A(f"v_lshl_add_u32 {v(vgo)}, {v(vW[1][3])}, 4, {v(vgo)}")
    A(f"s_lshl2_add_u32 {s(sT0)}, {s(sRB)}, {s(sW)}")
    A(f"s_lshl_b32 {s(sT0)}, {s(sT0)}, 14")
    A(f"s_lshl_b32 {s(sT1)}, {s(sCC)}, 7")
    A(f"s_add_u32 {s(sT0)}, {s(sT0)}, {s(sT1)}")
    A(f"v_add_u32 {v(vgo)}, {s(sT0)}, {v(vgo)}")
    A("s_waitcnt vmcnt(0) lgkmcnt(0)")
    A("s_barrier")
    for dt in range(4): A(f"ds_read_b128 {v(FWo[0][0][dt],4)}, {v(vt[2])} offset:{dt*1024}")
    xa = [FWo[0][1][dt] for dt in range(4)]
    for dt in range(4): A(f"ds_read_b64 {v(xa[dt],2)}, {v(va[dt])}")
    A(f"s_mov_b32 {s(sT0)}, 0xffff0000")
    for dt in range(4):
        ac = acco[dt][0]; pr = FWo[0][0][dt]; x = xa[dt]
        A(f"s_waitcnt lgkmcnt({7-dt})")
        for h in (0, 2): A(pk("add", ac + h, v(ac + h, 2), v(pr + h, 2)))
        A(f"s_waitcnt lgkmcnt({3-dt})")
        for h in range(2):
            A(f"v_lshlrev_b32 {v(x+2)}, 16, {v(x+h)}")
            A(f"v_and_b32 {v(x+3)}, {s(sT0)}, {v(x+h)}")
            A(pk("fma", pr, v(ac + 2*h, 2), v(gb[dt] + 2*h, 2), v(x + 2, 2)))
            A(f"v_cvt_pk_bf16_f32 {v(ac+h)}, {v(pr)}, {v(pr+1)}")
        A(f"ds_write_b64 {v(va[dt])}, {v(ac,2)}")
    A("s_waitcnt lgkmcnt(0)")
    ob = [FP[0][0][0], FP[0][0][1]]
    for u in range(2): A(f"ds_read_b128 {v(ob[u],4)}, {v(vrb2)} offset:{u*1024}")
    A("s_waitcnt lgkmcnt(1)")
    A(f"global_store_dwordx4 {v(vgo)}, {v(ob[0],4)}, s[38:39]")
    A(f"v_add_u32 {v(vgo)}, 8192, {v(vgo)}")
    A("s_waitcnt lgkmcnt(0)")
    A(f"global_store_dwordx4 {v(vgo)}, {v(ob[1],4)}, s[38:39]")
    if stamps:
        ST.stamp(); ST.flush(4, vt[4])
    A("s_endpgm")
    nvmax[0] = max(nvmax[0], R.hi)
    A.label(f"{name}_loader")
    STL = Stamps(A, on=stamps, kidx=0, base=70)
    if lprio: A(f"s_setprio {lprio}")
    R = RegAlloc(5)
    voW = [R.alloc() for _ in range(4)]; voH = [R.alloc() for _ in range(2)]
    vl = R.alloc(); t0 = R.alloc(); t1 = R.alloc(); t2 = R.alloc(); t3 = R.alloc()
    vtb = R.alloc(8, 4); vt = [vtb + k for k in range(8)]
    za = [R.alloc(4) for _ in range(4)]
    z2p = [R.alloc(2) for _ in range(7)]
    st1 = [R.alloc(2) for _ in range(2)]
    pol = [R.alloc(4) for _ in range(4)]
    vrow = [R.alloc() for _ in range(2)]; vLa = [R.alloc() for _ in range(2)]
    vo = [R.alloc() for _ in range(6)]
    vcn = R.alloc(2)
    sLw, sWk, sHk, sLW, sLH = 29, 30, 31, 32, 33
    A("s_mov_b32 s10, %d" % (512 * WROW)); A("s_mov_b32 s11, 0x20000")
    A("s_mov_b32 s6, %d" % (32 * MB)); A("s_mov_b32 s7, 0x20000")
    A(f"s_sub_u32 {s(sLw)}, {s(sW)}, 4")
    A(f"v_and_b32 {v(vl)}, 63, v0")
    div14(A, t0, t1, vl, t2)
    A(f"v_mul_u32_u24 {v(t0)}, {WROW}, {v(t0)}")
    A(f"v_lshl_add_u32 {v(t0)}, {v(t1)}, 4, {v(t0)}")
    A(f"s_mul_i32 {s(sT0)}, {s(sLw)}, {16*WROW}")
    A(f"v_add_u32 {v(voW[0])}, {s(sT0)}, {v(t0)}")
    for g in range(1, 4): A(f"v_add_u32 {v(voW[g])}, {g*(4*WROW - GS)}, {v(voW[0])}")
    A(f"v_lshrrev_b32 {v(t0)}, 3, {v(vl)}")
    A(f"v_and_b32 {v(t1)}, 7, {v(vl)}")
    A(f"v_xor_b32 {v(t1)}, {v(t1)}, {v(t0)}")
    A(f"v_lshlrev_b32 {v(t1)}, 4, {v(t1)}")
    A(f"v_lshl_add_u32 {v(t0)}, {v(t0)}, 10, {v(t1)}")
    A(f"s_lshl_b32 {s(sT0)}, {s(sLw)}, 14")
    A(f"v_add_u32 {v(voH[0])}, {s(sT0)}, {v(t0)}")
    A(f"v_add_u32 {v(voH[1])}, {8192-1024}, {v(voH[0])}")
    A(f"s_mul_i32 {s(sWk)}, {s(sCC)}, 224")
    A(f"s_lshl_b32 {s(sHk)}, {s(sRB)}, 16")
    A(f"s_add_u32 {s(sHk)}, {s(sHk)}, {WS_H2}")
    A(f"s_mul_i32 {s(sLW)}, {s(sLw)}, {4*GS}")
    A(f"s_lshl_b32 {s(sLH)}, {s(sLw)}, 11")
    A("s_waitcnt lgkmcnt(0)")
    def issueZ(st, w=True, h=True):
        half, kc = st >> 3, st & 7; slot = st % NSZ
        if w:
            A(f"s_add_u32 m0, {s(sLW)}, {W_OFF + slot*SLOT}")
            A(f"s_add_u32 {s(sT0)}, {s(sWk)}, {kc*64*WROW + (1792 if half == 0 else 0)}")
            A("s_mov_b32 exec_hi, 0x00ffffff")
            for g in range(4):
                A(f"buffer_load_dwordx4 {v(voW[g])}, s[8:11], {s(sT0)} offen offset:{g*GS} lds")
            A("s_mov_b32 exec_hi, -1")
        if half == 0 and h:
            A(f"s_add_u32 m0, {s(sLH)}, {kc*8192}")
            A(f"s_add_u32 {s(sT0)}, {s(sHk)}, {kc*128}")
            for j in range(2):
                A(f"buffer_load_dwordx4 {v(voH[j])}, s[4:7], {s(sT0)} offen offset:{j*1024} sc1 lds")
    for st in range(NSZ): issueZ(st, h=False)
    def addrB(va_):
        a, b_, c_ = vt[0], vt[1], vt[2]
        A(f"s_lshr_b32 {s(sT1)}, {s(sRB)}, 3")
        A(f"s_sub_u32 {s(sT2)}, 31, {s(sRB)}")
        A(f"s_lshr_b32 {s(sT2)}, {s(sT2)}, 3")
        A(f"v_cmp_lt_u32 vcc, 32, {v(va_)}")
        A(f"v_subrev_u32 {v(a)}, 32, {v(va_)}")
        A(f"v_cndmask_b32 {v(a)}, {v(va_)}, {v(a)}, vcc")
        A(f"v_mov_b32 {v(b_)}, {s(sT1)}")
        A(f"v_mov_b32 {v(c_)}, {s(sT2)}")
        A(f"v_cndmask_b32 {v(b_)}, {v(b_)}, {v(c_)}, vcc")
        A(f"v_and_b32 {v(c_)}, 7, {v(a)}")
        A(f"v_lshl_add_u32 {v(c_)}, {v(b_)}, 3, {v(c_)}")
        A(f"v_lshrrev_b32 {v(va_)}, 3, {v(a)}")
        A(f"v_lshl_add_u32 {v(c_)}, {v(va_)}, 5, {v(c_)}")
        A(f"v_add_u32 {v(b_)}, 128, {v(b_)}")
        A(f"v_cmp_eq_u32 vcc, 32, {v(a)}")
        A(f"v_cndmask_b32 {v(c_)}, {v(c_)}, {v(b_)}, vcc")
        A(f"s_mov_b32 {s(sT1)}, {WS_FLG + FB_O}")
        A(f"v_lshl_add_u32 {v(va_)}, {v(c_)}, 7, {s(sT1)}")
    wait_flags("b", sT2, 64, False, addrB)
    if stamps: STL.n = 0; STL.stamp()
    for st in range(NSZ): issueZ(st, w=False)
    le = f"{name}_noep"
    A(f"s_or_b32 {s(sT0)}, s2, {s(sLw)}")
    A(f"s_cbranch_scc1 {le}")
    A(f"v_mov_b32 v244, {WS_EPOCH}")
    A(f"v_mov_b32 v245, {s(sTAG)}")
    A("s_mov_b64 exec, 1")
    A("global_store_dword v244, v245, s[4:5] sc1")
    A("s_mov_b64 exec, -1")
    A.label(le)
    A(f"v_lshrrev_b32 {v(t0)}, 3, {v(vl)}")
    A(f"v_lshl_add_u32 {v(t0)}, {v(t0)}, 12, {v(t1)}")
    sL1, sL2, sK1 = 40, 41, 42
    SR1, SR2 = 44, 48
    A(f"s_lshl_b32 {s(sT0)}, {s(sLw)}, 3")
    A(f"s_mov_b32 {s(sT1)}, 0x060c0600")
    A(f"s_lshr_b32 {s(sT1)}, {s(sT1)}, {s(sT0)}")
    A(f"s_and_b32 {s(sT1)}, {s(sT1)}, 0xff")
    A(f"s_mov_b32 {s(sT2)}, 0x03000903")
    A(f"s_lshr_b32 {s(sT2)}, {s(sT2)}, {s(sT0)}")
    A(f"s_and_b32 {s(sT2)}, {s(sT2)}, 0xff")
    STEP = 8 * 4096 - 1024
    A(f"s_lshl_b32 {s(sT0)}, {s(sT1)}, 15")
    A(f"v_add_u32 {v(vo[0])}, {s(sT0)}, {v(t0)}")
    A(f"s_lshl_b32 {s(sT0)}, {s(sT2)}, 15")
    A(f"v_add_u32 {v(vo[3])}, {s(sT0)}, {v(t0)}")
    for k in (1, 2):
        A(f"v_add_u32 {v(vo[k])}, {k*STEP}, {v(vo[0])}")
        A(f"v_add_u32 {v(vo[3+k])}, {k*STEP}, {v(vo[3])}")
    A(f"s_lshl_b32 {s(sL1)}, {s(sT1)}, 10")
    A(f"s_lshl_b32 {s(sL2)}, {s(sT2)}, 10")
    A(f"s_cmp_eq_u32 {s(sLw)}, 3")
    A(f"s_cselect_b32 {s(sT0)}, {B_OFF}, 0")
    A(f"s_add_u32 {s(sL1)}, {s(sL1)}, {s(sT0)}")
    A(f"s_cmp_ge_u32 {s(sLw)}, 2")
    A(f"s_cselect_b32 {s(sT0)}, {B_OFF}, 0")
    A(f"s_add_u32 {s(sL2)}, {s(sL2)}, {s(sT0)}")
    A(f"s_mul_i32 {s(sT0)}, {s(sCC)}, {112*4096}")
    A(f"s_add_u32 {s(sT0)}, {s(sT0)}, {WS_Z2T}")
    A(f"s_add_u32 s52, s4, {s(sT0)}")
    A(f"s_addc_u32 s53, s5, 0")
    A(f"s_lshl_b32 {s(sT0)}, {s(sRB)}, 18")
    A(f"s_add_u32 s54, s12, {s(sT0)}")
    A(f"s_addc_u32 s55, s13, 0")
    A(f"s_cmp_eq_u32 {s(sLw)}, 3")
    A(f"s_cselect_b32 {s(SR1)}, s54, s52")
    A(f"s_cselect_b32 {s(SR1+1)}, s55, s53")
    A(f"s_mov_b32 {s(SR1+2)}, {112*4096}")
    A(f"s_mov_b32 {s(SR1+3)}, 0x20000")
    A(f"s_cmp_ge_u32 {s(sLw)}, 2")
    A(f"s_cselect_b32 {s(SR2)}, s54, s52")
    A(f"s_cselect_b32 {s(SR2+1)}, s55, s53")
    A(f"s_mov_b32 {s(SR2+2)}, {112*4096}")
    A(f"s_mov_b32 {s(SR2+3)}, 0x20000")
    qz = [("W", s_) for s_ in range(NSZ) for _ in range(4)] + [("H", s_) for s_ in range(NSZ) for _ in range(2)]
    qz = [x for x in qz if x[0] == "H"]
    issued = NSZ
    for i in range(NSTZ):
        idx = [k for k, x in enumerate(qz) if x[1] == i]
        out = (len(qz) - 1 - max(idx)) if idx else len(qz)
        A(f"s_waitcnt vmcnt({out})")
        A("s_barrier")
        if i >= 1 and issued < NSTZ:
            issueZ(issued)
            qz += [("W", issued)] * 4 + ([("H", issued)] * 2 if issued < 8 else [])
            issued += 1
    A(f"s_lshl1_add_u32 {s(sT1)}, {s(sRB)}, {s(sTH)}")
    A(f"s_lshl_b32 {s(sT1)}, {s(sT1)}, 12")
    A(f"s_add_u32 {s(sT1)}, {s(sT1)}, {WS_STAT}")
    for hf in range(2):
        A(f"v_and_b32 {v(vrow[hf])}, 31, {v(vtt[hf])}")
        A(f"v_lshl_add_u32 {v(vrow[hf])}, {v(vrow[hf])}, 3, {s(sT1)}")
        A(f"v_lshl_add_u32 {v(vrow[hf])}, {v(vq)}, 10, {v(vrow[hf])}")
    A(f"s_mul_i32 {s(sT0)}, {s(sLw)}, {XS}")
    A(f"s_add_u32 {s(sT0)}, {s(sT0)}, {X_OFF}")
    for hf in range(2):
        A(f"v_and_b32 {v(vLa[hf])}, 31, {v(vtt[hf])}")
        A(f"v_mul_u32_u24 {v(vLa[hf])}, 144, {v(vLa[hf])}")
        A(f"v_lshl_add_u32 {v(vLa[hf])}, {v(vq)}, 3, {v(vLa[hf])}")
        A(f"v_add_u32 {v(vLa[hf])}, {s(sT0)}, {v(vLa[hf])}")
    vtr = voH[0]; vgz = voH[1]; vtr3 = voW[0]; vgz3 = voW[1]
    A(f"v_lshrrev_b32 {v(t0)}, 2, {v(vi)}")
    A(f"v_lshl_add_u32 {v(t0)}, {v(vq)}, 3, {v(t0)}")
    A(f"v_mul_u32_u24 {v(vtr)}, 144, {v(t0)}")
    A(f"v_and_b32 {v(t1)}, 3, {v(vi)}")
    A(f"v_lshl_add_u32 {v(vtr)}, {v(t1)}, 3, {v(vtr)}")
    A(f"v_add_u32 {v(vtr)}, {s(sT0)}, {v(vtr)}")
    A(f"s_mul_i32 {s(sT1)}, {s(sFH)}, {16*144}")
    A(f"s_add_u32 {s(sT1)}, {s(sT1)}, 96")
    A(f"v_add_u32 {v(vtr3)}, {s(sT1)}, {v(vtr)}")
    A(f"v_lshlrev_b32 {v(vgz)}, 12, {v(vi)}")
    A(f"v_lshl_add_u32 {v(vgz)}, {v(vq)}, 4, {v(vgz)}")
    A(f"s_mul_i32 {s(sT1)}, {s(sCC)}, {112*4096}")
    A(f"s_lshl_b32 {s(sT2)}, {s(sRB)}, 7")
    A(f"s_add_u32 {s(sT1)}, {s(sT1)}, {s(sT2)}")
    A(f"s_lshl_b32 {s(sT2)}, {s(sTH)}, 6")
    A(f"s_add_u32 {s(sT1)}, {s(sT1)}, {s(sT2)}")
    A(f"s_add_u32 {s(sT1)}, {s(sT1)}, {WS_Z2T}")
    A(f"s_lshl_b32 {s(sT2)}, {s(sFH)}, 5")
    A(f"s_add_u32 {s(sT2)}, {s(sT2)}, {48*4096}")
    A(f"s_add_u32 {s(sT2)}, {s(sT2)}, {s(sT1)}")
    A(f"v_add_u32 {v(vgz3)}, {s(sT2)}, {v(vgz)}")
    A(f"s_lshl_b32 {s(sT2)}, {s(sFH)}, 18")
    A(f"s_add_u32 {s(sT1)}, {s(sT1)}, {s(sT2)}")
    A(f"v_add_u32 {v(vgz)}, {s(sT1)}, {v(vgz)}")
    for tl, (wf, hf) in enumerate(TILES):
        A(f"ds_read_b64 {v(z2p[tl],2)}, {v(vLa[hf])} offset:{wf*32}")
    A("s_barrier")
    lskip = f"{name}_nob"
    A(f"s_cmp_lt_u32 {s(sLw)}, 2")
    A(f"s_cbranch_scc1 {lskip}")
    A(f"s_mov_b32 {s(sK1)}, 0")
    for st in range(NSG):
        A(f"s_add_u32 m0, {s(sL2)}, {st*STAGE}")
        if st: A(f"s_add_u32 {s(sK1)}, {s(sK1)}, 128")
        for k in range(3): A(f"buffer_load_dwordx4 {v(vo[3+k])}, {s(SR2,4)}, {s(sK1)} offen offset:{k*1024} sc1 lds")
    A.label(lskip)
    if stamps: STL.stamp()
    A(f"s_mov_b32 {s(sK)}, 0")
    A.label(f"{name}_poll")
    for hf in range(2):
        for u in range(4):
            A(f"global_load_dwordx2 {v(pol[hf*2+(u>>1)]+2*(u&1),2)}, {v(vrow[hf])}, s[4:5] offset:{u*256} sc1")
    A("s_waitcnt vmcnt(0)")
    A(f"v_max3_u32 {v(vt[0])}, {v(pol[0])}, {v(pol[0]+1)}, {v(pol[0]+2)}")
    rest = [pol[0]+3] + [pol[b_]+r for b_ in range(1, 4) for r in range(4)]
    for k in range(0, len(rest) - 1, 2): A(f"v_max3_u32 {v(vt[0])}, {v(vt[0])}, {v(rest[k])}, {v(rest[k+1])}")
    A(f"v_max_u32 {v(vt[0])}, {v(vt[0])}, {v(rest[-1])}")
    A(f"v_cmp_eq_u32 vcc, -1, {v(vt[0])}")
    A(f"s_add_u32 {s(sK)}, {s(sK)}, 1")
    A(f"s_cmp_eq_u64 vcc, 0")
    A(f"s_cbranch_scc1 {name}_polled")
    A("s_sleep 2")
    A(f"s_cmp_lt_u32 {s(sK)}, {SPIN}")
    A(f"s_cbranch_scc1 {name}_poll")
    A.label(f"{name}_polled")
    mean = [vt[0], vt[1]]; rstd = [vt[2], vt[3]]
    for hf in range(2):
        p0, p1 = pol[hf*2], pol[hf*2+1]
        A(pk("add", p0, v(p0, 2), v(p0+2, 2)))
        A(pk("add", p1, v(p1, 2), v(p1+2, 2)))
        A(pk("add", p0, v(p0, 2), v(p1, 2)))
        A(f"v_mov_b32 {v(mean[hf])}, {v(p0)}")
        A(f"v_mov_b32 {v(rstd[hf])}, {v(p0+1)}")
    xor16_32_sum(A, mean + rstd, vt[6])
    for hf in range(2):
        A(f"v_mul_f32 {v(mean[hf])}, {fhex(1.0/896)}, {v(mean[hf])}")
        A(f"v_mul_f32 {v(rstd[hf])}, {fhex(1.0/896)}, {v(rstd[hf])}")
        A(f"v_fma_f32 {v(rstd[hf])}, -{v(mean[hf])}, {v(mean[hf])}, {v(rstd[hf])}")
        A(f"v_max_f32 {v(rstd[hf])}, 0, {v(rstd[hf])}")
        A(f"v_add_f32 {v(rstd[hf])}, 0x3727c5ac, {v(rstd[hf])}")
        A(f"v_rsq_f32 {v(rstd[hf])}, {v(rstd[hf])}")
        A(f"v_mul_f32 {v(mean[hf])}, {v(mean[hf])}, {v(rstd[hf])}")
    for hf in range(2):
        A(f"v_mov_b32 {v(st1[hf])}, {v(rstd[hf])}")
        A(f"v_sub_f32 {v(st1[hf]+1)}, 0, {v(mean[hf])}")
    A(f"s_mov_b32 {s(sT0)}, 0xffff0000")
    A("s_waitcnt lgkmcnt(0)")
    for tl, (wf, hf) in enumerate(TILES):
        z = z2p[tl]
        for h in range(2):
            A(f"v_lshlrev_b32 {v(vt[4])}, 16, {v(z+h)}")
            A(f"v_and_b32 {v(vt[5])}, {s(sT0)}, {v(z+h)}")
            A(pk("fma", vt[4], v(vt[4], 2), v(st1[hf], 2), v(st1[hf], 2), "op_sel:[0,0,1] op_sel_hi:[1,0,1]"))
            A(f"v_cvt_pk_bf16_f32 {v(z+h)}, {v(vt[4])}, {v(vt[5])}")
        A(f"ds_write_b64 {v(vLa[hf])}, {v(z,2)} offset:{wf*32}")
    A("s_waitcnt lgkmcnt(0)")
    for wf in range(3):
        for p in range(2): A(f"ds_read_b64_tr_b16 {v(za[wf]+2*p,2)}, {v(vtr)} offset:{wf*32 + 4*p*144}")
    for p in range(2): A(f"ds_read_b64_tr_b16 {v(za[3]+2*p,2)}, {v(vtr3)} offset:{4*p*144}")
    for wf in range(3):
        A(f"s_waitcnt lgkmcnt({6-2*wf})")
        A(f"global_store_dwordx4 {v(vgz)}, {v(za[wf],4)}, s[4:5] sc1")
        if wf < 2: A(f"v_add_u32 {v(vgz)}, {16*4096}, {v(vgz)}")
    A("s_waitcnt lgkmcnt(0)")
    A("s_mov_b32 exec_hi, 0")
    A(f"global_store_dwordx4 {v(vgz3)}, {v(za[3],4)}, s[4:5] sc1")
    A("s_mov_b32 exec_hi, -1")
    A(f"s_lshl_b32 {s(sT0)}, {s(sCC)}, 5")
    A(f"s_add_u32 {s(sT0)}, {s(sT0)}, {s(sRB)}")
    A(f"s_lshl_b32 {s(sT0)}, {s(sT0)}, 7")
    A(f"s_add_u32 {s(sT0)}, {s(sT0)}, {WS_FLG + FC_O}")
    arrive(0, 4, sT0, "z")
    if stamps: STL.stamp()
    A(f"s_lshl_b32 {s(sT2)}, {s(sCC)}, 12")
    A(f"s_add_u32 {s(sT2)}, {s(sT2)}, {WS_FLG + FC_O}")
    wait_flags("c", sT2, 32, False)
    if stamps: STL.stamp()
    A(f"s_cmp_ge_u32 {s(sLw)}, 2")
    A(f"s_cbranch_scc1 {name}_ldY")
    def pathG(tag, n1, early2):
        n = n1 + 3
        q = []
        def need(x): return len(q) - 1 - max(k for k, y in enumerate(q) if y == x)
        A(f"s_mov_b32 {s(sK1)}, 0")
        for st in range(NSG):
            A(f"s_add_u32 m0, {s(sL1)}, {st*STAGE}")
            if st: A(f"s_add_u32 {s(sK1)}, {s(sK1)}, 128")
            for k in range(n1): A(f"buffer_load_dwordx4 {v(vo[k])}, {s(SR1,4)}, {s(sK1)} offen offset:{k*1024} sc1 lds"); q.append(st)
            if not early2:
                A(f"s_add_u32 m0, {s(sL2)}, {st*STAGE}")
                for k in range(3): A(f"buffer_load_dwordx4 {v(vo[3+k])}, {s(SR2,4)}, {s(sK1)} offen offset:{k*1024} sc1 lds"); q.append(st)
        A(f"s_add_u32 {s(sK1)}, {s(sK1)}, 128")
        A(f"s_mov_b32 {s(sSlot)}, 0")
        def issue(st):
            A(f"s_add_u32 m0, {s(sSlot)}, {s(sL1)}")
            A(f"s_add_u32 {s(sT0)}, {s(sSlot)}, {s(sL2)}")
            for k in range(n1): A(f"buffer_load_dwordx4 {v(vo[k])}, {s(SR1,4)}, {s(sK1)} offen offset:{k*1024} sc1 lds"); q.append(st)
            A(f"s_mov_b32 m0, {s(sT0)}")
            A(f"s_add_u32 {s(sSlot)}, {s(sSlot)}, {STAGE}")
            for k in range(3): A(f"buffer_load_dwordx4 {v(vo[3+k])}, {s(SR2,4)}, {s(sK1)} offen offset:{k*1024} sc1 lds"); q.append(st)
            A(f"s_add_u32 {s(sK1)}, {s(sK1)}, 128")
            A(f"s_cmp_ge_u32 {s(sSlot)}, {RING}")
            A(f"s_cselect_b32 {s(sSlot)}, 0, {s(sSlot)}")
        A(f"s_waitcnt vmcnt({need(0)})")
        A("s_barrier")
        H = NSG + 1
        for i in range(1, H):
            A(f"s_waitcnt vmcnt({need(i)})"); A("s_barrier"); issue(i - 1 + NSG)
        nsteady = NSTG - NSG
        A(f"s_mov_b32 {s(sI)}, {H}")
        lp = f"{name}_gl{tag}"
        A.label(lp)
        wv = need(H)
        A(f"s_waitcnt vmcnt({wv})"); A("s_barrier"); issue(H - 1 + NSG)
        A(f"s_add_u32 {s(sI)}, {s(sI)}, 1")
        A(f"s_cmp_le_u32 {s(sI)}, {nsteady}")
        A(f"s_cbranch_scc1 {lp}")
        for i in range(H + 1, nsteady + 1):
            assert need(i) == wv
            for _ in range(n): q.append(i - 1 + NSG)
        for i in range(nsteady + 1, NSTG):
            A(f"s_waitcnt vmcnt({need(i)})"); A("s_barrier")
        A(f"s_branch {name}_gdone")
    pathG("X", 3, False)
    A.label(f"{name}_ldY")
    pathG("Y", 2, True)
    A.label(f"{name}_gdone")
    voWo = voW; voP = [vo[0], vo[1], vo[2], vo[3]]; voX = [vo[4], vo[5]]
    A(f"v_lshrrev_b32 {v(t0)}, 3, {v(vl)}")
    A(f"v_and_b32 {v(t1)}, 7, {v(vl)}")
    A(f"v_bfe_u32 {v(t2)}, {v(vl)}, 4, 1")
    for jj in range(4):
        A(f"v_or_b32 {v(t3)}, {(jj&1)<<1}, {v(t2)}")
        A(f"v_lshlrev_b32 {v(t3)}, 1, {v(t3)}")
        A(f"v_xor_b32 {v(t3)}, {v(t3)}, {v(t1)}")
        A(f"v_lshlrev_b32 {v(t3)}, 4, {v(t3)}")
        A(f"v_lshl_add_u32 {v(voWo[jj])}, {v(t0)}, 10, {v(t3)}")
        if jj: A(f"v_add_u32 {v(voWo[jj])}, {jj*(8192-1024)}, {v(voWo[jj])}")
    A(f"v_xor_b32 {v(t1)}, {v(t1)}, {v(t0)}")
    A(f"v_lshlrev_b32 {v(t1)}, 4, {v(t1)}")
    A(f"s_and_b32 {s(sT0)}, {s(sLw)}, 1")
    A(f"s_lshl_b32 {s(sT0)}, {s(sT0)}, 5")
    A(f"v_add_u32 {v(t2)}, {s(sT0)}, {v(t0)}")
    A(f"v_mul_u32_u24 {v(voP[0])}, 1792, {v(t2)}")
    A(f"s_lshr_b32 {s(sT1)}, {s(sLw)}, 1")
    A(f"s_lshl_b32 {s(sT1)}, {s(sT1)}, 7")
    A(f"v_add3_u32 {v(voP[0])}, {v(voP[0])}, {v(t1)}, {s(sT1)}")
    for jj in range(1, 4): A(f"v_add_u32 {v(voP[jj])}, {jj*(8*1792-1024)}, {v(voP[0])}")
    A(f"s_lshl_b32 {s(sT0)}, {s(sLw)}, 4")
    A(f"v_add_u32 {v(t2)}, {s(sT0)}, {v(t0)}")
    A(f"v_lshl_add_u32 {v(voX[0])}, {v(t2)}, 10, {v(t1)}")
    A(f"v_add_u32 {v(voX[1])}, {8192-1024}, {v(voX[0])}")
    A(f"s_mov_b32 s18, {FH*D*2}"); A("s_mov_b32 s19, 0x20000")
    A(f"s_lshl_b32 {s(sWk)}, {s(sLw)}, 15")
    A(f"s_lshl_b32 {s(sT0)}, {s(sCC)}, 7")
    A(f"s_add_u32 {s(sWk)}, {s(sWk)}, {s(sT0)}")
    A(f"s_lshl_b32 {s(sLW)}, {s(sLw)}, 12")
    sPk, sLP, sXb = 31, 33, 40
    A(f"s_mul_i32 {s(sPk)}, {s(sRB)}, {64*1792}")
    A(f"s_add_u32 {s(sPk)}, {s(sPk)}, {WS_P0}")
    A(f"s_lshl_b32 {s(sLP)}, {s(sLw)}, 12")
    A(f"s_add_u32 {s(sLP)}, {s(sLP)}, {OP}")
    A(f"s_lshl_b32 {s(sXb)}, {s(sRB)}, 16")
    A(f"s_add_u32 {s(sXb)}, {s(sXb)}, {s(sT0)}")
    A(f"s_add_u32 {s(sXb)}, {s(sXb)}, {WS_X1}")
    A("s_barrier")
    def issueW(st):
        A(f"s_add_u32 m0, {s(sLW)}, {OW + (st % NW)*16384}")
        A(f"s_add_u32 {s(sT0)}, {s(sWk)}, {st*131072}")
        for jj in range(4): A(f"buffer_load_dwordx4 {v(voWo[jj])}, s[16:19], {s(sT0)} offen offset:{jj*1024} lds")
    for st in range(NW): issueW(st)
    A(f"s_lshl_b32 {s(sT2)}, {s(sRB)}, 10")
    A(f"s_add_u32 {s(sT2)}, {s(sT2)}, {WS_FLG + FT_O}")
    wait_flags("t", sT2, 8, False)
    if stamps: STL.stamp()
    def issueO(st):
        slot = st % NSO
        A(f"s_add_u32 m0, {s(sLP)}, {slot*PSLOT}")
        A(f"s_add_u32 {s(sT0)}, {s(sPk)}, {st*256}")
        for jj in range(4): A(f"buffer_load_dwordx4 {v(voP[jj])}, s[4:7], {s(sT0)} offen offset:{jj*1024} sc1 lds")
    qo = []
    for st in range(NSO):
        issueO(st); qo += [st] * 4
    for i in range(NSTO):
        out = len(qo) - 1 - max(k for k, x in enumerate(qo) if x == i)
        A(f"s_waitcnt vmcnt({out})")
        A("s_barrier")
        if i >= 1 and i - 1 + NSO < NSTO:
            st = i - 1 + NSO
            issueW(st); issueO(st); qo += [st] * 8
        if i == 3:
            A(f"s_lshl_b32 {s(sT0)}, {s(sLw)}, 11")
            A(f"s_add_u32 m0, {s(sT0)}, {XT}")
            for jj in range(2): A(f"buffer_load_dwordx4 {v(voX[jj])}, s[4:7], {s(sXb)} offen offset:{jj*1024} sc1 lds")
            qo += ["x"] * 2
    A("s_waitcnt vmcnt(0)")
    A("s_barrier")
    if stamps:
        STL.stamp(); A(f"s_mov_b32 s20, {s(sLw)}"); STL.flush(4, vt[0], slot=1)
    A("s_endpgm")
    nvmax[0] = max(nvmax[0], R.hi)
    A.label(f"{name}_end")
    A("s_endpgm")
    return dict(name=name, grid=NWG, block=512, lds=LDS, vgpr=256, sgpr=100 if stamps else 68)
```

```python
import sys
from build4 import assemble2
from gkf import gen_kf
N = "adaLN_cond__spectral_fnet__mixer_gmlp__prompt_kernel"
HEADER = """; adaLN-conditioned FNet (2-D DFT mixing) + gMLP block for gfx950, one persistent kernel (256 workgroups, one per CU).
"""
def make(path, st=False, plain=True, **kw):
    t = assemble2([lambda A: gen_kf(A, name=N if plain else "kf_kernel", stamps=st, **kw)])
    if plain:
        first, rest = t.split("\n", 1)
        t = "; @launch grid=(256,1,1) block=(512,1,1) lds=163840\n" + HEADER + rest
    open(path, "w").write(t)
if __name__ == "__main__":
    make(sys.argv[1])
```

```python
from g2b import *
from tables import TAB_OFF
from g2a import getpc_sym
WS_FLG = WS_STAT + 256 * 1024
FA_O = 0; FB_O = 256 * 128; FC_O = FB_O + 160 * 128; FT_O = FC_O + 256 * 128
WS_EPOCH = WS_FLG + FT_O + 256 * 128
SPIN = 0x40000
sX, sWM, sCV, sTB_, sTAG = 56, 58, 60, 62, 64

def gen_kf(A, name="kf_kernel", stamps=False, prefetch=True, pfpos=0, pfhalf=True, pfwin=True, wmcalc=True, lprio=0, psleep=1, biasC=True, early=False, earlysp=2, zst=False, tflag='sc1', hall=True, ztouch=True, gB=False, NB=26, pipe=0, epoll=False):
    NWG = 256
    GS = 960; SLOT = 16 * GS; W_OFF = 65536; NSZ = 4; NSTZ = 16; WROW = 3584
    X_OFF = W_OFF + NSZ * SLOT; XS = 32 * 144
    ZT = 145408
    NSG = 5; NSTG = 32; B_OFF = (16 if gB else 14) * 1024; STAGE = (24 if gB else 22) * 1024; RING = NSG * STAGE
    GX = 114688
    OW = 0; NW = 5; OP = NW * 16384; NSO = 5; NSTO = 7; PSLOT = 16384
    LDS = 163840
    JOIN = 159744
    A.barrier_state(); A.raw(kernel_header(name))
    ST = Stamps(A, on=stamps, kidx=0)
    sW, sRB, sCC, sT0, sT1, sT2, sTH, sFH, sK, sSlot, sI = 20, 21, 22, 23, 24, 25, 26, 27, 28, 34, 35
    A(f"s_cmp_ge_u32 s2, {NWG}")
    A(f"s_cbranch_scc1 {name}_end")
    ST.stamp()
    load_ptr(A, 4, "ws"); load_ptr(A, 8, "win"); load_ptr(A, 12, "wsp"); load_ptr(A, 16, "wout"); load_ptr(A, 36, "bsp"); load_ptr(A, 38, "out")
    load_ptr(A, sX, "x"); load_ptr(A, sWM, "wmod"); load_ptr(A, sCV, "c")
    getpc_sym(A, sTB_, "fft_tables")
    A(f"v_readfirstlane_b32 {s(sW)}, v0")
    A(f"s_lshr_b32 {s(sW)}, {s(sW)}, 6")
    vJ = 250
    def arrive(jidx, count, s_off, tag):
        A(f"v_mov_b32 {v(vJ)}, {JOIN + 4*jidx}")
        A(f"v_mov_b32 {v(vJ+1)}, 1")
        A("s_waitcnt vmcnt(0)")
        A("s_mov_b64 exec, 1")
        A(f"ds_add_rtn_u32 {v(vJ)}, {v(vJ)}, {v(vJ+1)}")
        A("s_waitcnt lgkmcnt(0)")
        A(f"v_readfirstlane_b32 {s(sT1)}, {v(vJ)}")
        A(f"v_mov_b32 {v(vJ)}, {s(s_off)}")
        A(f"v_mov_b32 {v(vJ+1)}, {s(sTAG)}")
        A(f"s_cmp_lg_u32 {s(sT1)}, {count-1}")
        A(f"s_cbranch_scc1 {name}_nofl{tag}")
        A(f"global_store_dword {v(vJ)}, {v(vJ+1)}, s[4:5] sc1")
        A.label(f"{name}_nofl{tag}")
        A("s_mov_b64 exec, -1")
    def wait_flags(tag, s_base, nflags, by_wave0, addr_fn=None):
        dn = f"{name}_d{tag}"; lp = f"{name}_w{tag}"
        A(f"s_cmp_lg_u32 {s(sW)}, {0 if by_wave0 else 4}")
        A(f"s_cbranch_scc1 {dn}")
        nl = (nflags + 63) // 64
        va_ = 244; vd_ = 248
        A(f"v_and_b32 {v(va_)}, 63, v0")
        if addr_fn: addr_fn(va_)
        else:
            if nflags < 64: A(f"v_and_b32 {v(va_)}, {nflags-1}, {v(va_)}")
            A(f"v_lshl_add_u32 {v(va_)}, {v(va_)}, 7, {s(s_base)}")
            for k in range(1, nl): A(f"v_add_u32 {v(va_+k)}, {k*8192}, {v(va_)}")
        A(f"s_mov_b32 {s(sK)}, 0")
        if pipe and nl == 1:
            for k in range(pipe - 1): A(f"global_load_dword {v(vd_+k)}, {v(va_)}, s[4:5] sc1")
            A.label(lp)
            for k in range(pipe):
                kk = (k + pipe - 1) % pipe
                A(f"global_load_dword {v(vd_+kk)}, {v(va_)}, s[4:5] sc1")
                A(f"s_waitcnt vmcnt({pipe-1})")
                A(f"v_cmp_ne_u32 vcc, {s(sTAG)}, {v(vd_+k)}")
                A(f"s_cmp_eq_u64 vcc, 0")
                A(f"s_cbranch_scc1 {dn}x")
            A(f"s_add_u32 {s(sK)}, {s(sK)}, 1")
            A(f"s_cmp_lt_u32 {s(sK)}, {SPIN}")
            A(f"s_cbranch_scc1 {lp}")
            A.label(f"{dn}x")
            A("s_waitcnt vmcnt(0)")
        else:
            A.label(lp)
            for k in range(nl): A(f"global_load_dword {v(vd_+k)}, {v(va_+k)}, s[4:5] sc1")
            A("s_waitcnt vmcnt(0)")
            for k in range(nl):
                A(f"v_xor_b32 {v(vd_+k)}, {s(sTAG)}, {v(vd_+k)}")
            for k in range(1, nl): A(f"v_or_b32 {v(vd_)}, {v(vd_)}, {v(vd_+k)}")
            A(f"v_cmp_ne_u32 vcc, 0, {v(vd_)}")
            A(f"s_add_u32 {s(sK)}, {s(sK)}, 1")
            A(f"s_cmp_eq_u64 vcc, 0")
            A(f"s_cbranch_scc1 {dn}")
            if psleep: A(f"s_sleep {psleep}")
            A(f"s_cmp_lt_u32 {s(sK)}, {SPIN}")
            A(f"s_cbranch_scc1 {lp}")
        A.label(dn)
        A("s_barrier")
    def early_touches():
        A(f"s_sub_u32 s44, s2, 128")
        A(f"s_lshr_b32 s44, s44, 3")
        A(f"s_lshl3_add_u32 s44, s44, {s(sW)}")
        A("v_and_b32 v1, 63, v0")
        A("s_mul_i32 s45, s44, 56")
        A("v_min_u32 v2, 55, v1")
        A("v_add_u32 v2, s45, v2")
        A("v_mul_u32_u24 v3, 9363, v2")
        A("v_lshrrev_b32 v3, 17, v3")
        A("v_mul_u32_u24 v4, 14, v3")
        A("v_sub_u32 v4, v2, v4")
        A("v_mul_u32_u24 v2, 3584, v3")
        A("v_lshl_add_u32 v2, v4, 7, v2")
        A("v_cmp_lt_u32 vcc, 6, v4")
        A("v_mov_b32 v3, 896")
        A("v_cndmask_b32 v3, 0, v3, vcc")
        A("s_and_b32 s45, s2, 1")
        A("s_mul_i32 s45, s45, 896")
        A("v_add3_u32 v2, v2, v3, s45")
        A("global_load_dword v252, v2, s[8:9]")
        A("s_bfe_u32 s45, s2, 0x20001")
        A("s_lshl_b32 s45, s45, 21")
        A("s_lshl_b32 s46, s44, 14")
        A("s_add_u32 s45, s45, s46")
        if earlysp == 1:
            A("s_and_b32 s46, s2, 1"); A("s_lshl_b32 s46, s46, 13"); A("s_add_u32 s45, s45, s46")
        A("v_lshl_add_u32 v2, v1, 7, s45")
        A("global_load_dword v253, v2, s[12:13]")
        if earlysp == 2:
            A("v_add_u32 v2, 8192, v2")
            A("global_load_dword v254, v2, s[12:13]")
        lab = A.newlabel(f"{name}_nwo")
        A("s_cmp_ge_u32 s44, 56")
        A(f"s_cbranch_scc1 {lab}")
        A("v_lshl_add_u32 v2, s44, 6, v1")
        A("v_lshrrev_b32 v3, 2, v2")
        A("v_and_b32 v2, 3, v2")
        A("v_lshlrev_b32 v3, 10, v3")
        A("v_lshl_add_u32 v3, v2, 7, v3")
        A("s_and_b32 s45, s2, 1")
        A("s_lshl_b32 s45, s45, 9")
        A("v_add_u32 v3, s45, v3")
        A("global_load_dword v255, v3, s[16:17]")
        A.label(lab)
    A(f"v_mov_b32 v1, {JOIN}")
    for j in range(4): A(f"v_mov_b32 v{4+j}, 0")
    A("ds_write_b128 v1, v[4:7]")
    A("s_waitcnt lgkmcnt(0)")
    A(f"s_add_u32 s40, s4, {WS_EPOCH}")
    A(f"s_addc_u32 s41, s5, 0")
    A(f"s_load_dword {s(sTAG)}, s[40:41], 0")
    ST.stamp()
    NFFT = 128; NMOD = 96; F_L = 16384
    A(f"s_cmp_ge_u32 s2, {NFFT}")
    A(f"s_cbranch_scc1 {name}_mod")
    A("s_and_b32 s40, s2, 7")
    A("s_bfe_u32 s41, s2, 0x20003")
    A("s_lshl2_add_u32 s40, s40, s41")
    A("s_lshl_b32 s40, s40, 10")
    A("s_lshr_b32 s41, s2, 5")
    R = RegAlloc(1)
    voff = R.alloc(); vi = R.alloc(); vq = R.alloc(); vt0 = R.alloc(); vt1 = R.alloc()
    vS = R.alloc(); vQ = R.alloc(); vtr = R.alloc(); vst = R.alloc(); vl16 = R.alloc()
    xr = [R.alloc(4) for _ in range(8)]
    assert xr[7] == xr[0] + 28
    xo = R.alloc(8, 4)
    Ff = [[R.alloc(4) for _ in range(2)] for _ in range(2)]
    Af = [[R.alloc(4) for _ in range(2)] for _ in range(2)]
    acc = [[R.alloc(4) for _ in range(2)] for _ in range(2)]
    tmp = R.alloc(16, 4)
    A(f"v_lshrrev_b32 {v(vt0)}, 3, v0")
    A(f"v_and_b32 {v(vt1)}, 7, v0")
    A(f"v_lshlrev_b32 {v(vt0)}, 15, {v(vt0)}")
    A(f"v_lshl_add_u32 {v(voff)}, {v(vt1)}, 4, {v(vt0)}")
    A(f"v_add_u32 {v(voff)}, s40, {v(voff)}")
    A(f"v_lshlrev_b32 {v(vl16)}, 4, v0")
    A("s_lshl_b32 s42, s20, 10")
    A(f"s_add_u32 m0, s42, {F_L}")
    for it in range(8):
        A(f"global_load_dwordx4 {v(xr[it],4)}, {v(voff)}, s[56:57] offset:{it*128}")
    A(f"global_load_lds_dwordx4 {v(vl16)}, s[62:63] offset:{TAB_OFF['tab_f64']}")
    A(f"v_and_b32 {v(vi)}, 15, v0")
    A(f"v_bfe_u32 {v(vq)}, v0, 4, 2")
    A(f"v_lshrrev_b32 {v(vt0)}, 8, v0")
    A(f"v_bfe_u32 {v(vt1)}, v0, 6, 2")
    A("s_lshl_b32 s42, s41, 8")
    A("s_add_u32 s40, s40, s42")
    A(f"s_add_u32 s40, s40, {WS_T}")
    TST = 32768; TSS = 272
    vsw = R.alloc(); vsr = R.alloc(); vsg = R.alloc()
    A(f"v_lshl_add_u32 {v(vsw)}, {v(vt0)}, 5, {v(vi)}")
    A(f"v_mul_u32_u24 {v(vsw)}, {TSS}, {v(vsw)}")
    A(f"v_lshl_add_u32 {v(vsw)}, {v(vt1)}, 5, {v(vsw)}")
    A(f"v_lshl_add_u32 {v(vsw)}, {v(vq)}, 3, {v(vsw)}")
    A(f"v_add_u32 {v(vsw)}, {TST}, {v(vsw)}")
    A(f"v_lshrrev_b32 {v(vsg)}, 6, v0")
    A(f"v_lshl_add_u32 {v(vsg)}, {v(vsg)}, 3, {v(vq)}")
    A(f"v_mul_u32_u24 {v(vsr)}, {TSS}, {v(vsg)}")
    A(f"v_lshl_add_u32 {v(vsr)}, {v(vi)}, 4, {v(vsr)}")
    A(f"v_add_u32 {v(vsr)}, {TST}, {v(vsr)}")
    A(f"v_lshlrev_b32 {v(vsg)}, 15, {v(vsg)}")
    A(f"v_lshl_add_u32 {v(vsg)}, {v(vi)}, 4, {v(vsg)}")
    A(f"v_add_u32 {v(vsg)}, s40, {v(vsg)}")
    A(f"v_lshlrev_b32 {v(vtr)}, 5, {v(vt1)}")
    A(f"v_lshrrev_b32 {v(vt1)}, 2, {v(vi)}")
    A(f"v_lshl_add_u32 {v(vt1)}, {v(vq)}, 3, {v(vt1)}")
    A(f"v_lshl_add_u32 {v(vtr)}, {v(vt1)}, 7, {v(vtr)}")
    A(f"v_and_b32 {v(vt1)}, 3, {v(vi)}")
    A(f"v_lshl_add_u32 {v(vtr)}, {v(vt1)}, 3, {v(vtr)}")
    vfa = R.alloc()
    A(f"v_and_b32 {v(vfa)}, 63, v0")
    A(f"v_lshlrev_b32 {v(vfa)}, 4, {v(vfa)}")
    A(f"v_lshl_add_u32 {v(vfa)}, {v(vt0)}, 12, {v(vfa)}")
    A(f"v_mov_b32 {v(vS)}, 0")
    A(f"v_mov_b32 {v(vQ)}, 0")
    A("s_mov_b32 s42, 0x3f803f80")
    for it in range(8):
        A(f"s_waitcnt vmcnt({7 - it + 1})")
        for j in range(4):
            A(f"v_dot2_f32_bf16 {v(vS)}, {v(xr[it]+j)}, s42, {v(vS)}")
            A(f"v_dot2_f32_bf16 {v(vQ)}, {v(xr[it]+j)}, {v(xr[it]+j)}, {v(vQ)}")
    A("s_lshl_b32 s43, s41, 3")
    A("s_mov_b32 s42, 0xffff0000")
    A("s_set_gpr_idx_on s43, gpr_idx(SRC0)")
    for j in range(8): A(f"v_mov_b32 {v(xo+j)}, {v(xr[0]+j)}")
    A("s_set_gpr_idx_off")
    for mode in ("quad_perm:[1,0,3,2]", "quad_perm:[2,3,0,1]", "row_half_mirror"):
        A(f"v_add_f32_dpp {v(vS)}, {v(vS)}, {v(vS)} {mode} row_mask:0xf bank_mask:0xf")
        A(f"v_add_f32_dpp {v(vQ)}, {v(vQ)}, {v(vQ)} {mode} row_mask:0xf bank_mask:0xf")
        A(f"v_lshlrev_b32 {v(tmp+0)}, 16, {v(xo+0)}") if mode.startswith("quad_perm:[1") else None
    for j in range(8):
        if j: A(f"v_lshlrev_b32 {v(tmp+2*j)}, 16, {v(xo+j)}")
        A(f"v_and_b32 {v(tmp+2*j+1)}, s42, {v(xo+j)}")
    A(f"v_mul_f32 {v(vS)}, 0x3b000000, {v(vS)}")
    A(f"v_mul_f32 {v(vQ)}, 0x3b000000, {v(vQ)}")
    A(f"v_fma_f32 {v(vQ)}, -{v(vS)}, {v(vS)}, {v(vQ)}")
    A(f"v_max_f32 {v(vQ)}, 0, {v(vQ)}")
    A(f"v_add_f32 {v(vQ)}, 0x3727c5ac, {v(vQ)}")
    A(f"v_rsq_f32 {v(vQ)}, {v(vQ)}")
    A(f"v_mul_f32 {v(vS)}, {v(vS)}, {v(vQ)}")
    for j in range(16): A(f"v_fma_f32 {v(tmp+j)}, {v(tmp+j)}, {v(vQ)}, -{v(vS)}")
    for h in range(2):
        for j in range(4): A(f"v_cvt_pk_bf16_f32 {v(xo+4*h+j)}, {v(tmp+8*h+2*j)}, {v(tmp+8*h+2*j+1)}")
        A(f"ds_write_b128 {v(vl16)}, {v(xo+4*h,4)} offset:{h*8192}")
    A("s_waitcnt vmcnt(0) lgkmcnt(0)")
    A("s_barrier")
    for h in range(2):
        for ks in range(2):
            for p in range(2):
                A(f"ds_read_b64_tr_b16 {v(Af[h][ks]+2*p,2)}, {v(vtr)} offset:{h*8192 + ks*32*128 + p*4*128}")
        if h == 0:
            for nt in range(2):
                for ks in range(2): A(f"ds_read_b128 {v(Ff[nt][ks],4)}, {v(vfa)} offset:{F_L + nt*2048 + ks*1024}")
    for h in range(2):
        A(f"s_waitcnt lgkmcnt({4*(1-h)})")
        for ks in range(2):
            for nt in range(2):
                c = "0" if ks == 0 else v(acc[h][nt], 4)
                A(f"v_mfma_f32_16x16x32_bf16 {v(acc[h][nt],4)}, {v(Af[h][ks],4)}, {v(Ff[nt][ks],4)}, {c}")
    for h in range(2):
        for nt in range(2):
            k = h * 2 + nt
            A(f"v_cvt_pk_bf16_f32 {v(tmp+2*k)}, {v(acc[h][nt])}, {v(acc[h][nt]+1)}")
            A(f"v_cvt_pk_bf16_f32 {v(tmp+2*k+1)}, {v(acc[h][nt]+2)}, {v(acc[h][nt]+3)}")
            A(f"ds_write_b64 {v(vsw)}, {v(tmp+2*k,2)} offset:{nt*16*TSS + h*128}")
    A("s_waitcnt lgkmcnt(0)")
    A("s_barrier")
    for u in range(2): A(f"ds_read_b128 {v(tmp+8+4*u,4)}, {v(vsr)} offset:{u*4*TSS}")
    A("s_waitcnt lgkmcnt(1)")
    A(f"global_store_dwordx4 {v(vsg)}, {v(tmp+8,4)}, s[4:5] sc1")
    A(f"v_add_u32 {v(vsg)}, {4*32768}, {v(vsg)}")
    A("s_waitcnt lgkmcnt(0)")
    A(f"global_store_dwordx4 {v(vsg)}, {v(tmp+12,4)}, s[4:5] sc1")
    A("s_waitcnt lgkmcnt(0)")
    A(f"s_add_u32 {s(sTAG)}, {s(sTAG)}, 1")
    A(f"s_lshl_b32 {s(sT0)}, s2, 7")
    A(f"s_add_u32 {s(sT0)}, {s(sT0)}, {WS_FLG + FA_O}")
    arrive(2, 8, sT0, "af")
    A(f"s_branch {name}_adone")
    A.label(f"{name}_mod")
    A(f"s_cmp_ge_u32 s2, {NFFT+NMOD}")
    A(f"s_cbranch_scc1 {name}_pf")
    A(f"s_sub_u32 s40, s2, {NFFT}")
    A("s_lshl_b32 s41, s40, 6")
    R = RegAlloc(1)
    vk = R.alloc(); vt0 = R.alloc(); vt1 = R.alloc(); vc = R.alloc()
    vo = [R.alloc() for _ in range(4)]
    wr = [R.alloc(4) for _ in range(4)]
    cv = [R.alloc() for _ in range(4)]; ch = [R.alloc() for _ in range(4)]
    ac = R.alloc(8, 4); rr = R.alloc(16, 4)
    A(f"v_and_b32 {v(vt0)}, 0x1c0, v0")
    A(f"v_bfe_u32 {v(vt1)}, v0, 2, 4")
    A(f"v_add_u32 {v(vk)}, {v(vt0)}, {v(vt1)}")
    A(f"v_and_b32 {v(vc)}, 3, v0")
    A(f"v_mul_u32_u24 {v(vo[0])}, 6144, {v(vk)}")
    A(f"v_lshl_add_u32 {v(vo[0])}, {v(vc)}, 4, {v(vo[0])}")
    A(f"v_add_u32 {v(vo[0])}, s41, {v(vo[0])}")
    for it in range(1, 4): A(f"v_add_u32 {v(vo[it])}, {it*16*6144}, {v(vo[0])}")
    A(f"v_lshlrev_b32 {v(vk)}, 1, {v(vk)}")
    for it in range(4): A(f"global_load_ushort {v(cv[it])}, {v(vk)}, s[60:61] offset:{it*32}")
    for it in range(4): A(f"global_load_dwordx4 {v(wr[it],4)}, {v(vo[it])}, s[58:59]")
    for j in range(8): A(f"v_mov_b32 {v(ac+j)}, 0")
    A("s_waitcnt vmcnt(4)")
    for it in range(4): A(f"v_lshlrev_b32 {v(cv[it])}, 16, {v(cv[it])}")
    for it in range(4): A(f"v_mul_f32 {v(ch[it])}, 0xbfb8aa3b, {v(cv[it])}")
    for it in range(4): A(f"v_exp_f32 {v(ch[it])}, {v(ch[it])}")
    for it in range(4): A(f"v_add_f32 {v(ch[it])}, 1.0, {v(ch[it])}")
    for it in range(4): A(f"v_rcp_f32 {v(ch[it])}, {v(ch[it])}")
    for it in range(4): A(f"v_mul_f32 {v(cv[it])}, {v(cv[it])}, {v(ch[it])}")
    for it in range(4): A(f"v_cvt_pk_bf16_f32 {v(cv[it])}, {v(cv[it])}, 0")
    for it in range(4): A(f"v_lshlrev_b32 {v(ch[it])}, 16, {v(cv[it])}")
    for it in range(4):
        A(f"s_waitcnt vmcnt({3-it})")
        for j in range(4):
            A(f"v_dot2_f32_bf16 {v(ac+2*j)}, {v(wr[it]+j)}, {v(cv[it])}, {v(ac+2*j)}")
            A(f"v_dot2_f32_bf16 {v(ac+2*j+1)}, {v(wr[it]+j)}, {v(ch[it])}, {v(ac+2*j+1)}")
    for rot in (4, 8):
        for j in range(8):
            A(f"v_add_f32_dpp {v(ac+j)}, {v(ac+j)}, {v(ac+j)} row_ror:{rot} row_mask:0xf bank_mask:0xf")
    A(f"v_lshrrev_b32 {v(vt0)}, 4, v0")
    A(f"v_lshlrev_b32 {v(vt0)}, 7, {v(vt0)}")
    A(f"v_lshl_add_u32 {v(vt0)}, {v(vc)}, 5, {v(vt0)}")
    A(f"ds_write_b128 {v(vt0)}, {v(ac,4)}")
    A(f"ds_write_b128 {v(vt0)}, {v(ac+4,4)} offset:16")
    if prefetch:
        lab = f"{name}_nocp"
        A("s_cmp_ge_u32 s40, 8")
        A(f"s_cbranch_scc1 {lab}")
        getpc_sym(A, 44, "code_begin")
        A(f"v_lshlrev_b32 {v(vt0)}, 7, v0")
        A(f"v_mov_b32 {v(vt1)}, code_end-code_begin-4")
        A(f"v_min_u32 {v(vt0)}, {v(vt0)}, {v(vt1)}")
        A(f"v_and_b32 {v(vt0)}, -4, {v(vt0)}")
        A(f"global_load_dword {v(vk)}, {v(vt0)}, s[44:45]")
        A.label(lab)
    A("s_waitcnt lgkmcnt(0)")
    A("s_barrier")
    A("s_cmp_ge_u32 s20, 1")
    A(f"s_cbranch_scc1 {name}_aend")
    A(f"v_and_b32 {v(vt1)}, 31, v0")
    A(f"v_lshrrev_b32 {v(vt0)}, 5, v0")
    A(f"v_lshlrev_b32 {v(vt0)}, 11, {v(vt0)}")
    A(f"v_lshl_add_u32 {v(vt0)}, {v(vt1)}, 2, {v(vt0)}")
    for p in range(16): A(f"ds_read_b32 {v(rr+p)}, {v(vt0)} offset:{p*128}")
    A("s_lshr_b32 s41, s40, 4")
    A("s_cmp_eq_u32 s41, 1")
    A("s_cselect_b32 s42, 1.0, 0")
    A("s_cmp_eq_u32 s41, 4")
    A("s_cselect_b32 s42, 1.0, s42")
    A("s_lshl_b32 s41, s40, 7")
    if WS_MOD: A(f"s_add_u32 s41, s41, {WS_MOD}")
    A(f"v_lshl_add_u32 {v(vt1)}, {v(vt1)}, 2, s41")
    A("s_waitcnt lgkmcnt(0)")
    for st_ in (8, 4, 2, 1):
        for p in range(st_): A(f"v_add_f32 {v(rr+p)}, {v(rr+p)}, {v(rr+p+st_)}")
    A(f"v_mov_b32 {v(rr+1)}, {v(rr)}")
    A(f"v_permlane32_swap_b32 {v(rr)}, {v(rr+1)}")
    A(f"v_add_f32 {v(rr)}, {v(rr)}, {v(rr+1)}")
    A(f"v_cvt_pk_bf16_f32 {v(rr)}, {v(rr)}, {v(rr)}")
    A(f"v_lshlrev_b32 {v(rr)}, 16, {v(rr)}")
    A(f"v_add_f32 {v(rr)}, s42, {v(rr)}")
    A(f"v_cvt_pk_bf16_f32 {v(rr)}, {v(rr)}, {v(rr)}")
    A(f"v_lshlrev_b32 {v(rr)}, 16, {v(rr)}")
    A(f"global_store_dword {v(vt1)}, {v(rr)}, s[4:5] sc1")
    A.label(f"{name}_aend")
    A("s_waitcnt lgkmcnt(0)")
    A(f"s_add_u32 {s(sTAG)}, {s(sTAG)}, 1")
    A(f"s_lshl_b32 {s(sT0)}, s2, 7")
    A(f"s_add_u32 {s(sT0)}, {s(sT0)}, {WS_FLG + FA_O}")
    arrive(2, 8, sT0, "am")
    if early: early_touches()
    A(f"s_branch {name}_adone")
    A.label(f"{name}_pf")
    A(f"s_sub_u32 s40, s2, {NFFT+NMOD}")
    A("s_lshl_b32 s41, s40, 13")
    A(f"s_add_u32 s41, s41, {WS_STAT}")
    A("v_lshl_add_u32 v1, v0, 4, s41")
    for j in range(4): A(f"v_mov_b32 v{4+j}, -1")
    A("global_store_dwordx4 v1, v[4:7], s[4:5] sc1")
    A("s_barrier")
    A("s_waitcnt lgkmcnt(0)")
    A(f"s_add_u32 {s(sTAG)}, {s(sTAG)}, 1")
    A(f"s_lshl_b32 {s(sT0)}, s2, 7")
    A(f"s_add_u32 {s(sT0)}, {s(sT0)}, {WS_FLG + FA_O}")
    arrive(2, 8, sT0, "ap")
    if early: early_touches()
    if prefetch and not early:
        A("s_mul_i32 s40, s40, 448")
        A("v_add_u32 v1, s40, v0")
        A("v_lshlrev_b32 v1, 7, v1")
        A("v_min_u32 v1, %d, v1" % 0) if False else None
        A("v_cmp_gt_u32 vcc, 448, v0")
        A("s_and_saveexec_b64 s[42:43], vcc")
        A(f"s_cbranch_execz {name}_pfx")
        A("global_load_dword v252, v1, s[8:9]")
        A.label(f"{name}_pfx")
        A("s_mov_b64 exec, s[42:43]")
    A.label(f"{name}_adone")
    A("s_barrier")
    ST.stamp()
    if stamps and not zst:
        for k in range(3): A(f"s_mov_b64 {s(ST.base + 2*(ST.n + k), 2)}, {s(ST.base + 2*(ST.n-1), 2)}")
    A(f"s_cmp_ge_u32 s2, 132")
    A(f"s_cbranch_scc1 {name}_bdone")
    TB_L = 0; MD_L = TB_L + 10240; WM_L = MD_L + 8192; T_B = WM_L + 1024
    TS = 1056; V_OFF = T_B + 64 * TS; VS = 80; US = 144; YS = 2064
    U_OFF = T_B; Y_OFF = T_B + 20480
    sC, sG, sRow, sMir, sRow2, sY = 21, 22, 26, 27, 29, 49
    SRD_T = 4
    A(f"s_mov_b32 s6, {WS_T + 2*MB}")
    A("s_mov_b32 s7, 0x20000")
    A(f"s_and_b32 {s(sT0)}, s2, 7")
    A(f"s_bfe_u32 {s(sG)}, s2, 0x20003")
    A(f"s_lshr_b32 {s(sT1)}, s2, 5")
    A(f"s_lshl3_add_u32 {s(sC)}, {s(sT1)}, {s(sT0)}")
    A(f"s_cmp_ge_u32 s2, 128")
    A(f"s_cselect_b32 {s(sC)}, 32, {s(sC)}")
    A(f"s_cselect_b32 {s(sG)}, {s(sT0)}, {s(sG)}")
    R = RegAlloc(1)
    vl = R.alloc(); vq = R.alloc(); vi = R.alloc(); vl16 = R.alloc(); vtid16 = R.alloc()
    vtb = R.alloc(8, 4); vt = [vtb + k for k in range(8)]
    A0 = R.alloc(4); A1 = R.alloc(4)
    F1 = [R.alloc(4) for _ in range(2)]; F2 = [[R.alloc(4) for _ in range(2)] for _ in range(2)]
    tw = R.alloc(16, 4)
    opca = [R.alloc() for _ in range(4)]
    xrow = [R.alloc(4) for _ in range(2)]
    Bf = [[R.alloc(4) for _ in range(2)] for _ in range(4)]
    acc = [R.alloc(4) for _ in range(4)]
    ga = R.alloc(8, 4); sb = R.alloc(8, 4); ocb = R.alloc(8, 4)
    vaT = R.alloc(); vaVw = R.alloc(); vaVr = R.alloc(); vaUw = R.alloc(); vaUr = R.alloc(); vaYw = R.alloc()
    vrow = [R.alloc() for _ in range(2)]
    xf = R.alloc(8, 4); yy = R.alloc(8, 4)
    Rr = R.alloc(4); Ri = R.alloc(4)
    A(f"v_and_b32 {v(vl)}, 63, v0")
    A(f"v_lshlrev_b32 {v(vl16)}, 4, {v(vl)}")
    A(f"v_lshlrev_b32 {v(vtid16)}, 4, v0")
    A(f"v_and_b32 {v(vi)}, 15, v0")
    A(f"v_bfe_u32 {v(vq)}, v0, 4, 2")
    if not wmcalc:
        A(f"v_bfe_u32 {v(vt[0])}, v0, 2, 3")
        A(f"v_lshlrev_b32 {v(vt[0])}, 18, {v(vt[0])}")
        A(f"v_and_b32 {v(vt[1])}, 3, v0")
        A(f"v_lshl_add_u32 {v(vt[0])}, {v(vt[1])}, 4, {v(vt[0])}")
        A(f"s_lshl_b32 {s(sT1)}, {s(sG)}, 21")
        A(f"s_lshl_b32 {s(sT2)}, {s(sC)}, 12")
        A(f"s_add_u32 {s(sT1)}, {s(sT1)}, {s(sT2)}")
        A(f"v_add_u32 {v(vt[0])}, {s(sT1)}, {v(vt[0])}")
    A(f"s_lshl3_add_u32 {s(sT1)}, {s(sG)}, {s(sW)}")
    A(f"s_lshl_b32 {s(sT1)}, {s(sT1)}, 6")
    A(f"s_add_u32 {s(sRow)}, {s(sT1)}, {s(sC)}")
    A(f"s_sub_u32 {s(sRow2)}, 2048, {s(sRow)}")
    A(f"s_and_b32 {s(sRow2)}, {s(sRow2)}, 2047")
    A(f"s_lshl_b32 {s(sRow)}, {s(sRow)}, 10")
    A(f"s_lshl_b32 {s(sRow2)}, {s(sRow2)}, 10")
    A(f"v_add_u32 {v(vrow[0])}, {s(sRow)}, {v(vl16)}")
    A(f"v_add_u32 {v(vrow[1])}, {s(sRow2)}, {v(vl16)}")
    A(f"s_lshl_b32 {s(sT2)}, {s(sW)}, 10")
    A(f"s_add_u32 m0, {s(sT2)}, {TB_L}")
    A(f"v_add_u32 {v(vt[1])}, {TAB_OFF['tab_f1']}, {v(vtid16)}")
    A(f"global_load_lds_dwordx4 {v(vt[1])}, s[62:63]")
    lx = f"{name}_bnox"; l23 = f"{name}_bx23"
    A(f"s_cmp_ge_u32 {s(sW)}, {2 if wmcalc else 4}")
    A(f"s_cbranch_scc1 {lx}")
    if not wmcalc:
        A(f"s_cmp_ge_u32 {s(sW)}, 2")
        A(f"s_cbranch_scc1 {l23}")
    A(f"s_add_u32 m0, {s(sT2)}, {TB_L + 8192}")
    A(f"v_add_u32 {v(vt[1])}, 8192, {v(vt[1])}")
    A(f"global_load_lds_dwordx4 {v(vt[1])}, s[62:63]")
    if not wmcalc:
        A(f"s_branch {lx}")
        A.label(l23)
        A(f"s_cmp_eq_u32 {s(sW)}, 3")
        A("s_cselect_b32 s6, s8, s6")
        A("s_cselect_b32 s7, s9, s7")
        A(f"s_cselect_b32 {s(sT1)}, 512, 0")
        A(f"s_add_u32 m0, {s(sT1)}, {WM_L}")
        A("s_mov_b32 exec_hi, 0")
        A(f"global_load_lds_dwordx4 {v(vt[0])}, s[6:7]")
        A("s_mov_b32 exec_hi, -1")
    A.label(lx)
    for h in range(2): A(f"global_load_dwordx4 {v(xrow[h],4)}, {v(vrow[h])}, s[56:57]")
    A(f"v_lshrrev_b32 {v(vt[0])}, 2, {v(vi)}")
    A(f"v_lshl_add_u32 {v(vt[0])}, {v(vq)}, 2, {v(vt[0])}")
    A(f"v_mul_u32_u24 {v(vaT)}, {TS}, {v(vt[0])}")
    A(f"v_and_b32 {v(vt[0])}, 3, {v(vi)}")
    A(f"v_lshl_add_u32 {v(vaT)}, {v(vt[0])}, 3, {v(vaT)}")
    A(f"v_and_b32 {v(vt[4])}, 0x1c0, v0")
    A(f"v_lshl_add_u32 {v(vaT)}, {v(vt[4])}, 1, {v(vaT)}")
    A(f"v_add_u32 {v(vaT)}, {T_B}, {v(vaT)}")
    A(f"v_lshl_add_u32 {v(vt[0])}, {v(vq)}, 6, {v(vi)}")
    A(f"v_mul_u32_u24 {v(vaVw)}, {VS}, {v(vt[0])}")
    A(f"v_lshrrev_b32 {v(vt[0])}, 3, {v(vt[4])}")
    A(f"s_mov_b32 {s(sT2)}, {V_OFF}")
    A(f"v_add3_u32 {v(vaVw)}, {v(vaVw)}, {v(vt[0])}, {s(sT2)}")
    A(f"v_lshrrev_b32 {v(vt[0])}, 1, {v(vt[4])}")
    A(f"v_add_u32 {v(vt[0])}, {v(vt[0])}, {v(vi)}")
    A(f"v_mul_u32_u24 {v(vaVr)}, {VS}, {v(vt[0])}")
    A(f"v_lshl_add_u32 {v(vaVr)}, {v(vq)}, 4, {v(vaVr)}")
    A(f"v_add_u32 {v(vaVr)}, {V_OFF}, {v(vaVr)}")
    A(f"v_lshrrev_b32 {v(vt[0])}, 2, {v(vt[4])}")
    A(f"v_lshl_add_u32 {v(vt[3])}, {v(vq)}, 1, {v(vt[0])}")
    A(f"v_mul_u32_u24 {v(vaUw)}, {US}, {v(vt[3])}")
    A(f"v_lshl_add_u32 {v(vaUw)}, {v(vi)}, 2, {v(vaUw)}")
    A(f"v_add_u32 {v(vt[3])}, {v(vt[0])}, {v(vi)}")
    A(f"v_mul_u32_u24 {v(vaUr)}, {US}, {v(vt[3])}")
    A(f"v_lshl_add_u32 {v(vaUr)}, {v(vq)}, 4, {v(vaUr)}")
    A(f"s_mul_i32 {s(sY)}, {s(sW)}, {YS}")
    A(f"s_add_u32 {s(sY)}, {s(sY)}, {Y_OFF}")
    A(f"v_lshlrev_b32 {v(vaYw)}, 6, {v(vi)}")
    A(f"v_lshl_add_u32 {v(vaYw)}, {v(vq)}, 4, {v(vaYw)}")
    A(f"v_add_u32 {v(vaYw)}, {s(sY)}, {v(vaYw)}")
    A(f"v_lshrrev_b32 {v(vt[5])}, 1, {v(vi)}")
    A(f"v_lshlrev_b32 {v(vt[5])}, 6, {v(vt[5])}")
    A(f"v_lshl_add_u32 {v(vt[5])}, {v(vq)}, 3, {v(vt[5])}")
    A(f"v_add_u32 {v(vt[6])}, {v(vt[4])}, {v(vi)}")
    A(f"v_lshlrev_b32 {v(vt[6])}, 2, {v(vt[6])}")
    A(f"v_and_b32 {v(vt[3])}, 1, v0")
    A(f"v_cmp_eq_u32 vcc, 1, {v(vt[3])}")
    if wmcalc:
        vT = Rr; vK = Rr + 1; cs_ = [Ri + j for j in range(4)]
        A(f"s_lshl_b32 {s(sT1)}, {s(sG)}, 9")
        A(f"s_add_u32 {s(sT1)}, {s(sT1)}, {s(sC)}")
        A(f"v_lshrrev_b32 {v(vT)}, 1, {v(vi)}")
        A(f"v_lshl_add_u32 {v(vT)}, {v(vT)}, 6, {s(sT1)}")
        A(f"v_lshlrev_b32 {v(vK)}, 2, {v(vq)}")
        A(f"v_mul_u32_u24 {v(vK)}, {v(vT)}, {v(vK)}")
        for jp in range(4):
            ang = []
            for u in range(2):
                jj = 2 * jp + u; koff = jj if jj < 4 else 16 + jj - 4
                r = cs_[u]
                A(f"v_mad_u32_u24 {v(r)}, {v(vT)}, {koff}, {v(vK)}")
                A(f"v_and_b32 {v(r)}, 2047, {v(r)}")
                A(f"v_cvt_f32_u32 {v(r)}, {v(r)}")
                A(f"v_mul_f32 {v(r)}, 0x3a000000, {v(r)}")
            for u in range(2):
                A(f"v_sin_f32 {v(cs_[2+u])}, {v(cs_[u])}")
                A(f"v_cos_f32 {v(cs_[u])}, {v(cs_[u])}")
            t0_, t1_, t2_, t3_ = vt[0], vt[1], vt[2], vt[7]
            A(f"v_sub_f32 {v(t0_)}, 0, {v(cs_[2])}")
            A(f"v_sub_f32 {v(t1_)}, 0, {v(cs_[3])}")
            A(f"v_cndmask_b32 {v(t0_)}, {v(cs_[0])}, {v(t0_)}, vcc")
            A(f"v_cndmask_b32 {v(t1_)}, {v(cs_[1])}, {v(t1_)}, vcc")
            A(f"v_cvt_pk_bf16_f32 {v(A0+jp)}, {v(t0_)}, {v(t1_)}")
            A(f"v_cndmask_b32 {v(t2_)}, {v(cs_[2])}, {v(cs_[0])}, vcc")
            A(f"v_cndmask_b32 {v(t3_)}, {v(cs_[3])}, {v(cs_[1])}, vcc")
            A(f"v_cvt_pk_bf16_f32 {v(A1+jp)}, {v(t2_)}, {v(t3_)}")
    A(f"s_add_u32 {s(sT1)}, {s(sC)}, 32")
    A(f"s_and_b32 {s(sT2)}, {s(sC)}, 31")
    A(f"s_cselect_b32 {s(sMir)}, 1, 0")
    A(f"s_cselect_b32 {s(sT1)}, {s(sT1)}, 0x4000")
    A(f"s_cmp_ge_u32 {s(sW)}, 4")
    A(f"s_cselect_b32 {s(sT0)}, {s(sT1)}, {s(sC)}")
    A(f"s_lshl_b32 {s(sT0)}, {s(sT0)}, 15")
    A(f"s_and_b32 {s(sT1)}, {s(sW)}, 3")
    A(f"s_lshl_b32 {s(sT1)}, {s(sT1)}, 13")
    A(f"s_add_u32 {s(sT0)}, {s(sT0)}, {s(sT1)}")
    A(f"s_add_u32 {s(sT0)}, {s(sT0)}, {WS_T - 128}")
    A(f"s_mul_i32 {s(sT1)}, {s(sW)}, {8*TS}")
    A(f"s_add_u32 m0, {s(sT1)}, {T_B}")
    for j in range(4): A(f"v_add_u32 {v(vt[4+j])}, {128 - 32*j}, {v(vl16)}")
    A(f"s_lshl_b32 {s(sT2)}, {s(sW)}, 10")
    A(f"s_mov_b32 s48, {WS_FLG + FA_O}")
    wait_flags("a", 48, 256, True)
    if not zst: ST.stamp()
    for g in range(2):
        if g:
            A(f"s_add_u32 m0, m0, {4*TS}")
            A(f"s_add_u32 {s(sT0)}, {s(sT0)}, 4096")
        for j in range(4):
            A(f"buffer_load_dwordx4 {v(vt[4+j])}, {s(SRD_T,4)}, {s(sT0)} offen offset:{j*TS} sc1 lds")
    A(f"s_add_u32 m0, {s(sT2)}, {MD_L}")
    A(f"v_add_u32 {v(vt[2])}, {WS_MOD + 2048}, {v(vtid16)}")
    A(f"global_load_lds_dwordx4 {v(vt[2])}, s[4:5] sc1")
    A("s_waitcnt vmcnt(0)")
    A(f"v_and_b32 {v(vt[4])}, 0x1c0, v0")
    A(f"v_add_u32 {v(vt[6])}, {v(vt[4])}, {v(vi)}")
    A(f"v_lshlrev_b32 {v(vt[6])}, 2, {v(vt[6])}")
    vpf = R.alloc(); vpd = R.alloc(2)
    if prefetch and not early and pfwin:
        A(f"s_lshr_b32 {s(sT2)}, s2, 3")
        A(f"s_lshl3_add_u32 {s(sT2)}, {s(sT2)}, {s(sW)}")
        A(f"s_and_b32 {s(sT2)}, {s(sT2)}, 127")
        A(f"s_mul_i32 {s(sT2)}, {s(sT2)}, 56")
        A(f"v_min_u32 {v(vpf)}, 55, {v(vl)}")
        A(f"v_add_u32 {v(vpf)}, {s(sT2)}, {v(vpf)}")
        A(f"v_mul_u32_u24 {v(vpd)}, 9363, {v(vpf)}")
        A(f"v_lshrrev_b32 {v(vpd)}, 17, {v(vpd)}")
        A(f"v_mul_u32_u24 {v(vpd+1)}, 14, {v(vpd)}")
        A(f"v_sub_u32 {v(vpd+1)}, {v(vpf)}, {v(vpd+1)}")
        A(f"v_mul_u32_u24 {v(vpf)}, 3584, {v(vpd)}")
        A(f"v_lshl_add_u32 {v(vpf)}, {v(vpd+1)}, 7, {v(vpf)}")
        A(f"v_cmp_lt_u32 s[46:47], 6, {v(vpd+1)}")
        A(f"v_mov_b32 {v(vpd)}, 896")
        A(f"v_cndmask_b32 {v(vpd)}, 0, {v(vpd)}, s[46:47]")
        A(f"s_and_b32 {s(sT1)}, s2, 1")
        A(f"s_mul_i32 {s(sT1)}, {s(sT1)}, 896")
        A(f"v_add3_u32 {v(vpf)}, {v(vpf)}, {v(vpd)}, {s(sT1)}")
    elif prefetch and not early:
        A(f"s_bfe_u32 {s(sT1)}, s2, 0x20001")
        A(f"s_lshl_b32 {s(sT1)}, {s(sT1)}, 21")
        A(f"s_lshr_b32 {s(sT2)}, s2, 3")
        A(f"s_lshl3_add_u32 {s(sT2)}, {s(sT2)}, {s(sW)}")
        A(f"s_and_b32 {s(sT2)}, {s(sT2)}, 127")
        A(f"s_lshl_b32 {s(sT2)}, {s(sT2)}, 14")
        A(f"s_add_u32 {s(sT1)}, {s(sT1)}, {s(sT2)}")
        if pfhalf:
            A(f"s_and_b32 {s(sT2)}, s2, 1")
            A(f"s_lshl_b32 {s(sT2)}, {s(sT2)}, 13")
            A(f"s_add_u32 {s(sT1)}, {s(sT1)}, {s(sT2)}")
        A(f"v_lshl_add_u32 {v(vpf)}, {v(vl)}, 7, {s(sT1)}")
    A("s_barrier")
    if not zst: ST.stamp()
    if prefetch and not early:
        A(f"global_load_dword {v(vpd)}, {v(vpf)}, s[8:9]")
        if not pfhalf:
            A(f"v_add_u32 {v(vpf)}, 8192, {v(vpf)}")
            A(f"global_load_dword {v(vpd+1)}, {v(vpf)}, s[8:9]")
    if not wmcalc:
        for reg, o in ((Rr, 0), (Ri, 512)):
            A(f"ds_read_b64 {v(reg,2)}, {v(vt[5])} offset:{WM_L + o}")
            A(f"ds_read_b64 {v(reg+2,2)}, {v(vt[5])} offset:{WM_L + o + 32}")
    for jt in range(4):
        for c in range(2):
            for p in range(2):
                A(f"ds_read_b64_tr_b16 {v(Bf[jt][c]+2*p,2)}, {v(vaT)} offset:{c*32*TS + p*16*TS + jt*32}")
        if jt == 1:
            pass
    if not wmcalc:
        A("s_waitcnt lgkmcnt(15)")
        for j in range(4):
            A(f"v_xor_b32 {v(vt[0])}, {s(sT0)}, {v(Ri+j)}")
            A(f"v_cndmask_b32 {v(A0+j)}, {v(Rr+j)}, {v(Ri+j)}, vcc")
            A(f"v_cndmask_b32 {v(A1+j)}, {v(vt[0])}, {v(Rr+j)}, vcc")
    for jt in range(4): A(f"ds_read_b32 {v(opca[jt])}, {v(vt[6])} offset:{MD_L + jt*64}")
    for jt in range(4):
        A(f"s_waitcnt lgkmcnt({min(15, (3-jt)*4 + 4)})")
        A(f"v_mfma_f32_16x16x32_bf16 {v(acc[jt],4)}, {v(A0,4)}, {v(Bf[jt][0],4)}, 0")
        A(f"v_mfma_f32_16x16x32_bf16 {v(acc[jt],4)}, {v(A1,4)}, {v(Bf[jt][1],4)}, {v(acc[jt],4)}")
    for mt in range(2): A(f"ds_read_b128 {v(F1[mt],4)}, {v(vl16)} offset:{TB_L + mt*1024}")
    A(f"v_lshlrev_b32 {v(vt[7])}, 2, {v(vl16)}")
    for h in range(4): A(f"ds_read_b128 {v(tw+4*h,4)}, {v(vt[7])} offset:{TB_L + 6144 + h*16}")
    A("s_waitcnt lgkmcnt(6)")
    for jt in range(4):
        for r in range(4): A(f"v_mul_f32 {v(acc[jt]+r)}, {v(acc[jt]+r)}, {v(opca[jt])}")
    lab = f"{name}_bnodc"
    A(f"s_or_b32 {s(sT0)}, {s(sC)}, {s(sG)}")
    A(f"s_cbranch_scc1 {lab}")
    A(f"v_and_b32 {v(vt[2])}, 0x1cf, v0")
    A(f"v_lshlrev_b32 {v(vt[2])}, 2, {v(vt[2])}")
    if WS_MOD: A(f"v_add_u32 {v(vt[2])}, {WS_MOD}, {v(vt[2])}")
    for jt in range(4): A(f"global_load_dword {v(Bf[0][0]+jt)}, {v(vt[2])}, s[4:5] offset:{jt*64} sc1")
    A(f"v_cmp_eq_u32 vcc, 0, {v(vq)}")
    A(f"v_mov_b32 {v(vt[1])}, 0x45000000")
    A(f"v_cndmask_b32 {v(vt[1])}, 0, {v(vt[1])}, vcc")
    A("s_waitcnt vmcnt(0)")
    for jt in range(4): A(f"v_fmac_f32 {v(acc[jt])}, {v(Bf[0][0]+jt)}, {v(vt[1])}")
    A.label(lab)
    for jt in range(4):
        ac = acc[jt]
        A(f"v_cvt_pk_bf16_f32 {v(ac)}, {v(ac)}, {v(ac+1)}")
        A(f"v_cvt_pk_bf16_f32 {v(ac+1)}, {v(ac+2)}, {v(ac+3)}")
        o0 = (jt&1)*16*VS + (jt>>1)*4
        A(f"ds_write_b32 {v(vaVw)}, {v(ac)} offset:{o0}")
        A(f"ds_write_b32 {v(vaVw)}, {v(ac+1)} offset:{o0 + 32*VS}")
    A(f"s_mov_b32 {s(sT0)}, 0xffff0000")
    A("s_waitcnt lgkmcnt(0)")
    A("s_barrier")
    pass
    for h in range(2): A(f"ds_read_b128 {v(Bf[h][0],4)}, {v(vaVr)} offset:{h*16*VS}")
    for nt in range(2):
        for ks in range(2): A(f"ds_read_b128 {v(F2[nt][ks],4)}, {v(vl16)} offset:{TB_L + 2048 + nt*2048 + ks*1024}")
    A(f"v_lshlrev_b32 {v(vt[7])}, 1, {v(vl16)}")
    for h in range(2):
        A(f"s_waitcnt lgkmcnt({5-h})")
        for mt in range(2):
            A(f"v_mfma_f32_16x16x32_bf16 {v(acc[2*h+mt],4)}, {v(F1[mt],4)}, {v(Bf[h][0],4)}, 0")
    for reg, sec in ((ga, 1), (sb, 2), (ocb, 3)):
        for u in range(2): A(f"ds_read_b128 {v(reg+4*u,4)}, {v(vt[7])} offset:{MD_L + sec*2048 + u*16}")
    for h in range(2):
        for mt in range(2):
            for pp in range(2):
                re, im = acc[2*h+mt] + 2 * pp, acc[2*h+mt] + 2 * pp + 1
                k = ((h*2+mt)*2+pp)*2
                c_, s_ = tw + k, tw + k + 1
                t0, t1 = vt[4*pp], vt[4*pp+1]
                if pp == 1 and False: pass
                A(f"v_mul_f32 {v(t0)}, {v(re)}, {v(c_)}")
                A(f"v_mul_f32 {v(t1)}, {v(im)}, {v(c_)}")
                A(f"v_fma_f32 {v(t0)}, {v(im)}, {v(s_)}, {v(t0)}")
                A(f"v_fma_f32 {v(t1)}, -{v(re)}, {v(s_)}, {v(t1)}")
                A(f"v_cvt_pk_bf16_f32 {v(vt[4*pp+2])}, {v(t0)}, {v(t1)}")
                A(f"ds_write_b32 {v(vaUw)}, {v(vt[4*pp+2])} offset:{U_OFF + (8*mt+pp)*US + h*64}")
    A("s_waitcnt lgkmcnt(0)")
    for ks in range(2): A(f"ds_read_b128 {v(Bf[ks][0],4)}, {v(vaUr)} offset:{U_OFF + ks*64}")
    A(f"s_waitcnt vmcnt({(1 if pfhalf else 2) if (prefetch and not early) else 0})")
    xg = [xf, yy]
    for r in range(2):
        for j in range(4):
            A(f"v_lshlrev_b32 {v(xg[r]+2*j)}, 16, {v(xrow[r]+j)}")
            A(f"v_and_b32 {v(xg[r]+2*j+1)}, {s(sT0)}, {v(xrow[r]+j)}")
    for ks in range(2):
        A(f"s_waitcnt lgkmcnt({1-ks})")
        for nt in range(2):
            c = "0" if ks == 0 else v(acc[nt], 4)
            A(f"v_mfma_f32_16x16x32_bf16 {v(acc[nt],4)}, {v(Bf[ks][0],4)}, {v(F2[nt][ks],4)}, {c}")
    A(f"v_lshl_add_u32 {v(vt[0])}, {v(vl16)}, 1, {s(sY)}")
    A(f"v_lshlrev_b32 {v(vt[2])}, 1, {v(vl16)}")
    A(f"v_sub_u32 {v(vt[1])}, 2048, {v(vt[2])}")
    A(f"v_and_b32 {v(vt[1])}, 2047, {v(vt[1])}")
    A(f"v_add_u32 {v(vt[1])}, {s(sY)}, {v(vt[1])}")
    A(f"s_add_u32 {s(sT1)}, {s(sY)}, {505*4}")
    A(f"v_sub_u32 {v(vt[2])}, {s(sT1)}, {v(vt[2])}")
    for nt in range(2): A(f"ds_write_b128 {v(vaYw)}, {v(acc[nt],4)} offset:{nt*1024}")
    A("s_waitcnt lgkmcnt(0)")
    pass
    y = Bf[2][0]; assert Bf[2][1] == y + 4
    y2 = Bf[3][0]; assert Bf[3][1] == y2 + 4
    A(f"ds_read_b128 {v(y,4)}, {v(vt[0])}")
    A(f"ds_read_b128 {v(y+4,4)}, {v(vt[0])} offset:16")
    A(f"ds_read_b32 {v(y2)}, {v(vt[1])}")
    A(f"ds_read_b32 {v(y2+1)}, {v(vt[2])} offset:24")
    for j in (2, 4, 6): A(f"ds_read2_b32 {v(y2+j,2)}, {v(vt[2])} offset0:{7-j} offset1:{6-j}")
    A("s_waitcnt lgkmcnt(5)")
    for j in range(8): A(f"v_fma_f32 {v(xf+j)}, {v(ga+j)}, {v(y+j)}, {v(xf+j)}")
    A("s_waitcnt lgkmcnt(0)")
    for j in range(8): A(f"v_fma_f32 {v(yy+j)}, {v(ga+j)}, {v(y2+j)}, {v(yy+j)}")
    for r in range(2):
        for j in range(4): A(f"v_cvt_pk_bf16_f32 {v(xrow[r]+j)}, {v(xg[r]+2*j)}, {v(xg[r]+2*j+1)}")
    A(f"v_add_u32 {v(vt[2])}, {WS_X1}, {v(vrow[0])}")
    A(f"v_add_u32 {v(vt[3])}, {WS_X1}, {v(vrow[1])}")
    A(f"global_store_dwordx4 {v(vt[2])}, {v(xrow[0],4)}, s[4:5] sc1")
    lab2 = f"{name}_bnomir1"
    A(f"s_cmp_eq_u32 {s(sMir)}, 0")
    A(f"s_cbranch_scc1 {lab2}")
    A(f"global_store_dwordx4 {v(vt[3])}, {v(xrow[1],4)}, s[4:5] sc1")
    A.label(lab2)
    for r in range(2):
        for j in range(4):
            A(f"v_lshlrev_b32 {v(xg[r]+2*j)}, 16, {v(xrow[r]+j)}")
            A(f"v_and_b32 {v(xg[r]+2*j+1)}, {s(sT0)}, {v(xrow[r]+j)}")
    S_ = [vt[0], vt[1]]; Q_ = [vt[4], vt[5]]
    for r in range(2):
        A(f"v_add_f32 {v(S_[r])}, {v(xg[r])}, {v(xg[r]+1)}")
        A(f"v_mul_f32 {v(Q_[r])}, {v(xg[r])}, {v(xg[r])}")
    for j in range(1, 8):
        for r in range(2):
            if j >= 2: A(f"v_add_f32 {v(S_[r])}, {v(S_[r])}, {v(xg[r]+j)}")
            A(f"v_fmac_f32 {v(Q_[r])}, {v(xg[r]+j)}, {v(xg[r]+j)}")
    chains = [S_[0], Q_[0], S_[1], Q_[1]]
    for mode, rm in (("quad_perm:[1,0,3,2]", "0xf"), ("quad_perm:[2,3,0,1]", "0xf"), ("row_half_mirror", "0xf"), ("row_mirror", "0xf"), ("row_bcast:15", "0xa"), ("row_bcast:31", "0xc")):
        for c_ in chains: A(f"v_add_f32_dpp {v(c_)}, {v(c_)}, {v(c_)} {mode} row_mask:{rm} bank_mask:0xf")
    for k, c_ in enumerate(chains): A(f"v_readlane_b32 {s(30+k)}, {v(c_)}, 63")
    A(f"v_mov_b32 {v(vt[6])}, 0x3b000000")
    for r in range(2):
        A(f"v_mul_f32 {v(S_[r])}, {s(30+2*r)}, {v(vt[6])}")
        A(f"v_mul_f32 {v(Q_[r])}, {s(31+2*r)}, {v(vt[6])}")
    for r in range(2): A(f"v_fma_f32 {v(Q_[r])}, -{v(S_[r])}, {v(S_[r])}, {v(Q_[r])}")
    for r in range(2): A(f"v_max_f32 {v(Q_[r])}, 0, {v(Q_[r])}")
    for r in range(2): A(f"v_add_f32 {v(Q_[r])}, 0x3727c5ac, {v(Q_[r])}")
    for r in range(2): A(f"v_rsq_f32 {v(Q_[r])}, {v(Q_[r])}")
    A(f"v_add_u32 {v(vt[2])}, {WS_H2}, {v(vrow[0])}")
    A(f"v_add_u32 {v(vt[3])}, {WS_H2}, {v(vrow[1])}")
    for r in range(2):
        for j in range(8): A(f"v_sub_f32 {v(xg[r]+j)}, {v(xg[r]+j)}, {v(S_[r])}")
    for r in range(2):
        for j in range(8): A(f"v_mul_f32 {v(xg[r]+j)}, {v(xg[r]+j)}, {v(Q_[r])}")
    for r in range(2):
        for j in range(8): A(f"v_fma_f32 {v(xg[r]+j)}, {v(xg[r]+j)}, {v(ocb+j)}, {v(sb+j)}")
    yo = [y, y2]
    for r in range(2):
        for j in range(4): A(f"v_cvt_pk_bf16_f32 {v(yo[r]+j)}, {v(xg[r]+2*j)}, {v(xg[r]+2*j+1)}")
    A(f"global_store_dwordx4 {v(vt[2])}, {v(y,4)}, s[4:5] sc1")
    A(f"s_cmp_eq_u32 {s(sMir)}, 0")
    A(f"s_cbranch_scc1 {name}_bfin")
    A(f"global_store_dwordx4 {v(vt[3])}, {v(y2,4)}, s[4:5] sc1")
    A.label(f"{name}_bfin")
    if not zst: ST.stamp()
    A(f"s_lshl_b32 {s(sT0)}, s2, 7")
    A(f"s_add_u32 {s(sT0)}, {s(sT0)}, {WS_FLG + FB_O}")
    arrive(3, 8, sT0, "b")
    A("s_barrier")
    A.label(f"{name}_bdone")
    ST.stamp()
    A(f"s_bfe_u32 {s(sRB)}, s2, 0x20001")
    A(f"s_bfe_u32 {s(sT0)}, s2, 0x30003")
    A(f"s_lshl3_add_u32 {s(sRB)}, {s(sRB)}, {s(sT0)}")
    A(f"s_and_b32 {s(sCC)}, s2, 1")
    A(f"s_lshr_b32 {s(sT0)}, s2, 6")
    A(f"s_lshl2_add_u32 {s(sCC)}, {s(sCC)}, {s(sT0)}")
    A(f"s_and_b32 {s(sTH)}, {s(sW)}, 1")
    A(f"s_bfe_u32 {s(sFH)}, {s(sW)}, 0x10001")
    vq, vi = 1, 2
    vtt = [3, 4]
    A(f"v_bfe_u32 v1, v0, 4, 2")
    A(f"v_and_b32 v2, 15, v0")
    A(f"s_lshl1_add_u32 {s(sT0)}, {s(sTH)}, {s(sFH)}")
    A(f"s_xor_b32 {s(sT1)}, {s(sT0)}, 1")
    A(f"v_lshl_add_u32 {v(vtt[0])}, {s(sT0)}, 4, {v(vi)}")
    A(f"v_lshl_add_u32 {v(vtt[1])}, {s(sT1)}, 4, {v(vi)}")
    A(f"s_cmp_ge_u32 {s(sW)}, 4")
    A(f"s_cbranch_scc1 {name}_loader")
    TILES = [(0, 0), (0, 1), (1, 0), (1, 1), (2, 0), (2, 1), (3, 0)]
    nvmax = [0]
    R = RegAlloc(5)
    vC = R.alloc(2)
    vtb = R.alloc(8, 4); vt = [vtb + k for k in range(8)]
    vH = [[R.alloc() for _ in range(2)] for _ in range(2)]
    vWa = [R.alloc() for _ in range(2)]; vWb = [R.alloc() for _ in range(2)]
    vLx = [R.alloc() for _ in range(2)]
    gt2 = R.alloc(16, 4)
    vpf = 252
    z2p = [R.alloc(2) for _ in range(7)]
    st1 = [R.alloc(2) for _ in range(2)]; st2 = [R.alloc(2) for _ in range(2)]
    acc1 = [R.alloc(4) for _ in range(7)]; acc = [acc1, acc1]
    cH = [[R.alloc() for _ in range(2)] for _ in range(2)]; nH = [[R.alloc() for _ in range(2)] for _ in range(2)]
    FH_ = [[[R.alloc(4) for _ in range(2)] for _ in range(2)] for _ in range(2)]
    FW = [[[R.alloc(4) for _ in range(4)] for _ in range(2)] for _ in range(2)]
    A(f"v_and_b32 {v(vt[0])}, 7, {v(vi)}")
    A(f"v_xor_b32 {v(vt[1])}, {v(vq)}, {v(vt[0])}")
    A(f"v_lshlrev_b32 {v(vt[1])}, 4, {v(vt[1])}")
    for hf in range(2):
        A(f"v_lshl_add_u32 {v(vH[hf][0])}, {v(vtt[hf])}, 7, {v(vt[1])}")
        A(f"v_xor_b32 {v(vH[hf][1])}, 64, {v(vH[hf][0])}")
    A(f"v_mul_u32_u24 {v(vt[1])}, {2*GS}, {v(vq)}")
    A(f"v_lshrrev_b32 {v(vt[2])}, 2, {v(vi)}")
    A(f"v_mul_u32_u24 {v(vt[2])}, 224, {v(vt[2])}")
    A(f"v_and_b32 {v(vt[3])}, 3, {v(vi)}")
    A(f"v_lshl_add_u32 {v(vt[1])}, {v(vt[3])}, 3, {v(vt[1])}")
    A(f"v_add_u32 {v(vt[1])}, {v(vt[1])}, {v(vt[2])}")
    A(f"s_lshl_b32 {s(sT0)}, {s(sFH)}, 7")
    A(f"s_add_u32 {s(sT0)}, {s(sT0)}, {W_OFF}")
    A(f"v_add_u32 {v(vWa[0])}, {s(sT0)}, {v(vt[1])}")
    A(f"v_add_u32 {v(vWb[0])}, {W_OFF+96}, {v(vt[1])}")
    A(f"v_add_u32 {v(vWa[1])}, {3*SLOT}, {v(vWa[0])}")
    A(f"v_add_u32 {v(vWb[1])}, {3*SLOT}, {v(vWb[0])}")
    A(f"s_mul_i32 {s(sT0)}, {s(sW)}, {XS}")
    A(f"s_add_u32 {s(sT0)}, {s(sT0)}, {X_OFF}")
    for hf in range(2):
        A(f"v_and_b32 {v(vLx[hf])}, 31, {v(vtt[hf])}")
        A(f"v_mul_u32_u24 {v(vLx[hf])}, 144, {v(vLx[hf])}")
        A(f"v_lshl_add_u32 {v(vLx[hf])}, {v(vq)}, 3, {v(vLx[hf])}")
        A(f"v_add_u32 {v(vLx[hf])}, {s(sT0)}, {v(vLx[hf])}")
    for hf in range(2):
        for r in range(2):
            A(f"v_mov_b32 {v(st1[hf]+r)}, 0"); A(f"v_mov_b32 {v(st2[hf]+r)}, 0")
    A(f"v_mov_b32 {v(vC)}, {fhex(GELU_C2)}")
    A(f"v_mov_b32 {v(vC+1)}, {fhex(GELU_C1)}")
    A("s_waitcnt lgkmcnt(0)")
    def readsZ(slot, buf, hregs, hoff):
        sg = slot // 3; so = (slot % 3) * SLOT
        o = []
        for ks in range(2):
            for hf in range(2): o.append(f"ds_read_b128 {v(FH_[buf][ks][hf],4)}, {v(hregs[hf][ks])} offset:{hoff}")
            for wf in range(4):
                for p in range(2):
                    base = vWa[sg] if wf < 3 else vWb[sg]
                    off = so + ks * 8 * GS + p * GS + (wf * 32 if wf < 3 else 0)
                    o.append(f"ds_read_b64_tr_b16 {v(FW[buf][ks][wf]+2*p,2)}, {v(base)} offset:{off}")
        return o
    def mfmasZ(buf):
        o = []
        for ks in range(2):
            for tl, (wf, hf) in enumerate(TILES):
                o.append(f"v_mfma_f32_16x16x32_bf16 {v(acc1[tl],4)}, {v(FW[buf][ks][wf],4)}, {v(FH_[buf][ks][hf],4)}, {v(acc1[tl],4)}")
        return o
    def zero_acc():
        for tl in range(7):
            for r in range(4): A(f"v_mov_b32 {v(acc1[tl]+r)}, 0")
    def z2_part1():
        A(f"s_mov_b32 {s(sT2)}, 0xffff0000")
        for grp in ([0, 1, 2, 3], [4, 5, 6]):
            for x in gelu_pk_multi([acc[0][tl] for tl in grp], gt2, vC): A(x)
            for tl in grp:
                ac = acc[0][tl]
                for h in range(2): A(f"v_cvt_pk_bf16_f32 {v(z2p[tl]+h)}, {v(ac+2*h)}, {v(ac+2*h+1)}")
            for k, tl in enumerate(grp):
                for h in range(2):
                    A(f"v_lshlrev_b32 {v(gt2+4*k+2*h)}, 16, {v(z2p[tl]+h)}")
                    A(f"v_and_b32 {v(gt2+4*k+2*h+1)}, {s(sT2)}, {v(z2p[tl]+h)}")
            for k, tl in enumerate(grp):
                hf = TILES[tl][1]
                for h in range(2):
                    A(pk("add", st1[hf], v(st1[hf], 2), v(gt2+4*k+2*h, 2)))
                    A(pk("fma", st2[hf], v(gt2+4*k+2*h, 2), v(gt2+4*k+2*h, 2), v(st2[hf], 2)))
        for hf in range(2):
            A(f"v_add_f32 {v(st1[hf])}, {v(st1[hf])}, {v(st1[hf]+1)}")
            A(f"v_add_f32 {v(st2[hf])}, {v(st2[hf])}, {v(st2[hf]+1)}")
        rs4 = (st1[0], st2[0], st1[1], st2[1])
        for k, r in enumerate(rs4): A(f"v_mov_b32 {v(gt2+k)}, {v(r)}")
        for k, r in enumerate(rs4): A(f"v_permlane16_swap_b32 {v(r)}, {v(gt2+k)}")
        for k, r in enumerate(rs4): A(f"v_add_f32 {v(r)}, {v(r)}, {v(gt2+k)}")
        for k, r in enumerate(rs4): A(f"v_mov_b32 {v(gt2+k)}, {v(r)}")
        for k, r in enumerate(rs4): A(f"v_permlane32_swap_b32 {v(r)}, {v(gt2+k)}")
        for k, r in enumerate(rs4): A(f"v_add_f32 {v(r)}, {v(r)}, {v(gt2+k)}")
        for x in [f"v_cmp_eq_u32 vcc, 1, {v(vq)}",
           f"v_mov_b32 {v(vt[4])}, 0x7fc00000",
           f"s_lshl1_add_u32 {s(sT1)}, {s(sRB)}, {s(sTH)}",
           f"v_cndmask_b32 {v(vt[2])}, {v(st1[0])}, {v(st1[1])}, vcc",
           f"v_cndmask_b32 {v(vt[3])}, {v(st2[0])}, {v(st2[1])}, vcc",
           f"v_cndmask_b32 {v(vt[0])}, {v(vtt[0])}, {v(vtt[1])}, vcc",
           f"v_cmp_eq_u32 vcc, -1, {v(vt[2])}",
           f"s_lshl_b32 {s(sT1)}, {s(sT1)}, 12",
           f"v_cndmask_b32 {v(vt[2])}, {v(vt[2])}, {v(vt[4])}, vcc",
           f"v_cmp_eq_u32 vcc, -1, {v(vt[3])}",
           f"s_add_u32 {s(sT1)}, {s(sT1)}, {WS_STAT}",
           f"v_cndmask_b32 {v(vt[3])}, {v(vt[3])}, {v(vt[4])}, vcc",
           f"s_lshl1_add_u32 {s(sT2)}, {s(sCC)}, {s(sFH)}",
           f"s_lshl_b32 {s(sT2)}, {s(sT2)}, 8",
           f"s_add_u32 {s(sT2)}, {s(sT2)}, {s(sT1)}",
           f"v_and_b32 {v(vt[0])}, 31, {v(vt[0])}",
           f"v_lshl_add_u32 {v(vt[0])}, {v(vt[0])}, 3, {s(sT2)}",
           "s_mov_b32 exec_hi, 0",
           f"global_store_dwordx2 {v(vt[0])}, {v(vt[2],2)}, s[4:5] sc1",
           "s_mov_b32 exec_hi, -1"]: A(x)
        for tl, (wf, hf) in enumerate(TILES):
            A(f"ds_write_b64 {v(vLx[hf])}, {v(z2p[tl],2)} offset:{wf*32}")
    def touches():
        A(f"v_and_b32 {v(vt[5])}, 63, v0")
        A(f"s_lshr_b32 {s(sT1)}, s2, 3")
        A(f"s_lshl2_add_u32 {s(sT1)}, {s(sT1)}, {s(sW)}")
        A(f"s_bfe_u32 {s(sT0)}, s2, 0x20001")
        A(f"s_lshl_b32 {s(sT0)}, {s(sT0)}, 21")
        A(f"s_lshl_b32 {s(sT2)}, {s(sT1)}, 14")
        A(f"s_add_u32 {s(sT0)}, {s(sT0)}, {s(sT2)}")
        if pfhalf:
            A(f"s_and_b32 {s(sT2)}, s2, 1")
            A(f"s_lshl_b32 {s(sT2)}, {s(sT2)}, 13")
            A(f"s_add_u32 {s(sT0)}, {s(sT0)}, {s(sT2)}")
        A(f"v_lshl_add_u32 {v(vt[1])}, {v(vt[5])}, 7, {s(sT0)}")
        A(f"global_load_dword {v(vpf)}, {v(vt[1])}, s[12:13] {tflag}")
        if not pfhalf:
            A(f"v_add_u32 {v(vt[1])}, 8192, {v(vt[1])}")
            A(f"global_load_dword {v(vpf+1)}, {v(vt[1])}, s[12:13] {tflag}")
        lab = f"{name}_nowo"
        A(f"s_cmp_ge_u32 {s(sT1)}, 56")
        A(f"s_cbranch_scc1 {lab}")
        A(f"v_lshl_add_u32 {v(vt[1])}, {s(sT1)}, 6, {v(vt[5])}")
        A(f"v_lshrrev_b32 {v(vt[2])}, 2, {v(vt[1])}")
        A(f"v_and_b32 {v(vt[1])}, 3, {v(vt[1])}")
        A(f"v_lshlrev_b32 {v(vt[2])}, 10, {v(vt[2])}")
        A(f"v_lshl_add_u32 {v(vt[2])}, {v(vt[1])}, 7, {v(vt[2])}")
        A(f"s_and_b32 {s(sT0)}, s2, 1")
        A(f"s_lshl_b32 {s(sT0)}, {s(sT0)}, 9")
        A(f"v_add_u32 {v(vt[2])}, {s(sT0)}, {v(vt[2])}")
        A(f"global_load_dword {v(vpf+2)}, {v(vt[2])}, s[16:17] {tflag}")
        A.label(lab)
    sZ = 43
    zero_acc()
    A(f"s_mov_b32 {s(sZ)}, 0")
    A("s_barrier")
    A("s_barrier")
    if zst: ST.stamp()
    for r in readsZ(0, 0, vH, 0): A(r)
    zl = f"{name}_zloop"; zc = f"{name}_zcont"
    A.label(zl)
    A(f"s_and_b32 {s(sT0)}, {s(sZ)}, 1")
    A(f"s_lshl_b32 {s(sT0)}, {s(sT0)}, 15")
    A(f"s_xor_b32 {s(sT1)}, {s(sT0)}, 32768")
    for hf in range(2):
        for ks in range(2):
            A(f"v_add_u32 {v(cH[hf][ks])}, {s(sT0)}, {v(vH[hf][ks])}")
            A(f"v_add_u32 {v(nH[hf][ks])}, {s(sT1)}, {v(vH[hf][ks])}")
    for j in range(4):
        A("s_waitcnt lgkmcnt(0)")
        A("s_barrier")
        rd = readsZ((j + 1) % 4, (j + 1) & 1, cH if j < 3 else nH, (j + 1) * 8192 if j < 3 else 0)
        for x in interleave2(mfmasZ(j & 1), rd): A(x)
    A(f"s_add_u32 {s(sZ)}, {s(sZ)}, 1")
    A(f"s_cmp_lg_u32 {s(sZ)}, 2")
    A(f"s_cbranch_scc1 {zc}")
    if zst: ST.stamp()
    if prefetch and ztouch and not early and pfpos == 0: touches()
    z2_part1()
    if zst: ST.stamp()
    zero_acc()
    A.label(zc)
    A(f"s_cmp_lt_u32 {s(sZ)}, 4")
    A(f"s_cbranch_scc1 {zl}")
    ST.stamp()
    A("s_waitcnt lgkmcnt(0)")
    vLa = [vH[0][0], vH[1][0]]; vL4 = vH[0][1]
    for hf in range(2):
        A(f"v_mul_u32_u24 {v(vLa[hf])}, 224, {v(vtt[hf])}")
        A(f"v_lshl_add_u32 {v(vLa[hf])}, {v(vq)}, 3, {v(vLa[hf])}")
        A(f"v_add_u32 {v(vLa[hf])}, {ZT}, {v(vLa[hf])}")
    A(f"v_add_u32 {v(vL4)}, 96, {v(vLa[0])}")
    A(f"s_lshl_b32 {s(sT0)}, {s(sFH)}, 7")
    for hf in range(2): A(f"v_add_u32 {v(vLa[hf])}, {s(sT0)}, {v(vLa[hf])}")
    gt = FW[0][0][0]
    for grp in ([0, 1, 2, 3], [4, 5, 6]):
        for x in gelu_pk_multi([acc[1][tl] for tl in grp], gt, vC): A(x)
        for tl in grp:
            wf, hf = TILES[tl]; ac = acc[1][tl]
            for h in range(2): A(f"v_cvt_pk_bf16_f32 {v(ac+h)}, {v(ac+2*h)}, {v(ac+2*h+1)}")
            if wf < 3: A(f"ds_write_b64 {v(vLa[hf])}, {v(ac,2)} offset:{wf*32}")
            else: A(f"ds_write_b64 {v(vL4)}, {v(ac,2)}")
    nvmax[0] = max(nvmax[0], R.hi)
    R = RegAlloc(5)
    vA = R.alloc(); vB = [R.alloc() for _ in range(2)]
    cA = R.alloc(); cB = [R.alloc() for _ in range(2)]
    vtb = R.alloc(8, 4); vt = [vtb + k for k in range(8)]
    accg = [[R.alloc(4) for _ in range(2)] for _ in range(7)]
    FA = [[R.alloc(4) for _ in range(7)] for _ in range(2)]
    FB = [[R.alloc(4) for _ in range(2)] for _ in range(2)]
    vb = R.alloc(); vtw = R.alloc()
    vb4 = R.alloc(4)
    vxw = R.alloc(); vxr = R.alloc(); vz1 = R.alloc(); vz = R.alloc(4); vrb = R.alloc()
    A("s_waitcnt lgkmcnt(0)")
    A(f"v_lshl_add_u32 {v(vtw)}, {s(sW)}, 4, {v(vi)}")
    A(f"v_lshl_add_u32 {v(vt[0])}, {s(sRB)}, 6, {v(vtw)}")
    A(f"v_lshlrev_b32 {v(vt[0])}, 1, {v(vt[0])}")
    A(f"global_load_ushort {v(vb)}, {v(vt[0])}, s[36:37]")
    A(f"s_and_b32 {s(sT0)}, {s(sW)}, 1")
    A(f"s_lshl_b32 {s(sT0)}, {s(sT0)}, 2")
    A(f"v_add_u32 {v(vt[4])}, {s(sT0)}, {v(vq)}")
    A(f"v_and_b32 {v(vt[2])}, 7, {v(vi)}")
    A(f"v_xor_b32 {v(vt[1])}, {v(vt[4])}, {v(vt[2])}")
    A(f"v_lshlrev_b32 {v(vt[1])}, 4, {v(vt[1])}")
    A(f"v_lshl_add_u32 {v(vA)}, {v(vi)}, 7, {v(vt[1])}")
    A(f"v_add_u32 {v(vt[1])}, {B_OFF}, {v(vt[1])}")
    A(f"v_lshl_add_u32 {v(vB[0])}, {v(vtw)}, 7, {v(vt[1])}")
    A(f"v_xor_b32 {v(vt[3])}, 16, {v(vtw)}")
    A(f"v_lshl_add_u32 {v(vB[1])}, {v(vt[3])}, 7, {v(vt[1])}")
    A(f"v_and_b32 {v(vt[0])}, 63, v0")
    A(f"s_mul_i32 {s(sT0)}, {s(sW)}, 7168")
    A(f"s_add_u32 {s(sT0)}, {s(sT0)}, {GX}")
    A(f"v_lshl_add_u32 {v(vxw)}, {v(vt[0])}, 4, {s(sT0)}")
    A(f"s_xor_b32 {s(sT1)}, {s(sW)}, 1")
    A(f"s_mul_i32 {s(sT1)}, {s(sT1)}, 7168")
    A(f"s_add_u32 {s(sT1)}, {s(sT1)}, {GX}")
    A(f"v_lshl_add_u32 {v(vxr)}, {v(vt[0])}, 4, {s(sT1)}")
    A(f"v_mul_u32_u24 {v(vz1)}, 224, {v(vtw)}")
    A(f"v_lshl_add_u32 {v(vz1)}, {v(vq)}, 3, {v(vz1)}")
    A(f"v_add_u32 {v(vz1)}, {ZT}, {v(vz1)}")
    for j in range(4):
        A(f"v_add_u32 {v(vt[4])}, {64*j}, {v(vt[0])}")
        div14(A, vt[5], vt[6], vt[4], vt[7])
        A(f"v_mul_u32_u24 {v(vt[5])}, 1792, {v(vt[5])}")
        A(f"v_lshl_add_u32 {v(vz+j)}, {v(vt[6])}, 4, {v(vt[5])}")
    A(f"s_lshl2_add_u32 {s(sT0)}, {s(sRB)}, {s(sW)}")
    A(f"s_mul_i32 {s(sT0)}, {s(sT0)}, {16*1792}")
    A(f"s_mul_i32 {s(sT1)}, {s(sCC)}, 224")
    A(f"s_add_u32 {s(sT0)}, {s(sT0)}, {s(sT1)}")
    A(f"s_add_u32 {s(sT0)}, {s(sT0)}, {WS_P0}")
    for j in range(4): A(f"v_add_u32 {v(vz+j)}, {s(sT0)}, {v(vz+j)}")
    A(f"s_mul_i32 {s(sT0)}, {s(sW)}, {16*224}")
    A(f"s_add_u32 {s(sT0)}, {s(sT0)}, {ZT}")
    A(f"v_lshl_add_u32 {v(vrb)}, {v(vt[0])}, 4, {s(sT0)}")
    A(f"s_mov_b32 {s(sSlot)}, 0")
    A(f"s_mov_b32 {s(sI)}, 0")
    def rdsG(buf, a_, b_):
        return [f"ds_read_b128 {v(FB[buf][nb],4)}, {v(b_[nb])}" for nb in range(2)] + \
               [f"ds_read_b128 {v(FA[buf][fa],4)}, {v(a_)} offset:{fa*2048}" for fa in range(7)]
    def mmsG(buf, first=False):
        o = []
        for fa in range(7):
            for nb in range(2):
                c = ((v(vb4, 4) if (nb == 0 and biasC) else "0") if first else v(accg[fa][nb], 4))
                o.append(f"v_mfma_f32_16x16x32_bf16 {v(accg[fa][nb],4)}, {v(FA[buf][fa],4)}, {v(FB[buf][nb],4)}, {c}")
        return o
    def adv():
        A(f"s_add_u32 {s(sSlot)}, {s(sSlot)}, {STAGE}")
        A(f"s_cmp_ge_u32 {s(sSlot)}, {RING}")
        A(f"s_cselect_b32 {s(sSlot)}, 0, {s(sSlot)}")
        A(f"v_add_u32 {v(cA)}, {s(sSlot)}, {v(vA)}")
        for nb in range(2): A(f"v_add_u32 {v(cB[nb])}, {s(sSlot)}, {v(vB[nb])}")
    if biasC:
        A("s_waitcnt vmcnt(0)")
        for r in range(4): A(f"v_lshlrev_b32 {v(vb4+r)}, 16, {v(vb)}")
    ST.stamp()
    if gB:
        A(f"s_lshl_b32 s48, {s(sCC)}, 12")
        A(f"s_add_u32 s48, s48, {WS_FLG + FC_O}")
        wait_flags("c", 48, 32, True)
    else:
        A("s_barrier")
    A("s_barrier")
    ST.stamp()
    for r in rdsG(0, vA, vB): A(r)
    adv()
    A("s_waitcnt lgkmcnt(0)")
    A("s_barrier")
    for x in interleave2(mmsG(0, True), rdsG(1, cA, cB)): A(x)
    loop = f"{name}_gloop"
    A.label(loop)
    for buf in (1, 0):
        adv()
        A("s_waitcnt lgkmcnt(0)")
        A("s_barrier")
        for x in interleave2(mmsG(buf), rdsG(buf ^ 1, cA, cB)): A(x)
    A(f"s_add_u32 {s(sI)}, {s(sI)}, 1")
    A(f"s_cmp_lt_u32 {s(sI)}, 15")
    A(f"s_cbranch_scc1 {loop}")
    A("s_waitcnt lgkmcnt(0)")
    for x in mmsG(1): A(x)
    ST.stamp()
    for fa in range(7): A(f"ds_write_b128 {v(vxw)}, {v(accg[fa][1],4)} offset:{fa*1024}")
    A("s_waitcnt vmcnt(0) lgkmcnt(0)")
    A(f"v_lshlrev_b32 {v(vb)}, 16, {v(vb)}")
    A("s_barrier")
    for fa in range(7): A(f"ds_read_b128 {v(FA[0][fa],4)}, {v(vxr)} offset:{fa*1024}")
    zr = [FA[1][fa] for fa in range(7)]
    for fa in range(7): A(f"ds_read_b64 {v(zr[fa],2)}, {v(vz1)} offset:{fa*32}")
    A(f"v_mov_b32 {v(FB[1][0])}, {v(vb)}")
    A(f"v_mov_b32 {v(FB[1][0]+1)}, {v(vb)}")
    A("s_mov_b32 s33, 0xffff0000")
    for fa in range(7):
        ac = accg[fa][0]; pr = FA[0][fa]
        A(f"s_waitcnt lgkmcnt({13 - fa})")
        for h in (0, 2): A(pk("add", ac + h, v(ac + h, 2), v(pr + h, 2)))
        if not biasC:
            for h in (0, 2): A(pk("add", ac + h, v(ac + h, 2), v(FB[1][0], 2)))
    for fa in range(7):
        ac = accg[fa][0]; pr = FA[0][fa]; z = zr[fa]
        A(f"s_waitcnt lgkmcnt({6 - fa})")
        for h in range(2):
            A(f"v_lshlrev_b32 {v(z+2)}, 16, {v(z+h)}")
            A(f"v_and_b32 {v(z+3)}, s33, {v(z+h)}")
            A(pk("mul", ac + 2*h, v(ac + 2*h, 2), v(z + 2, 2)))
            A(f"v_cvt_pk_bf16_f32 {v(pr+h)}, {v(ac+2*h)}, {v(ac+2*h+1)}")
        A(f"ds_write_b64 {v(vz1)}, {v(pr,2)} offset:{fa*32}")
    A("s_waitcnt lgkmcnt(0)")
    ob = [FA[1][j] for j in range(4)]
    for j in range(4): A(f"ds_read_b128 {v(ob[j],4)}, {v(vrb)} offset:{j*1024}")
    for j in range(3):
        A(f"s_waitcnt lgkmcnt({3-j})")
        A(f"global_store_dwordx4 {v(vz+j)}, {v(ob[j],4)}, s[4:5] sc1")
    A("s_waitcnt lgkmcnt(0)")
    A("s_mov_b32 exec_hi, 0")
    A(f"global_store_dwordx4 {v(vz+3)}, {v(ob[3],4)}, s[4:5] sc1")
    A("s_mov_b32 exec_hi, -1")
    nvmax[0] = max(nvmax[0], R.hi)
    R = RegAlloc(5)
    vtw2 = R.alloc()
    vtb = R.alloc(8, 4); vt = [vtb + k for k in range(8)]
    vW = [[R.alloc() for _ in range(4)] for _ in range(2)]
    vP = [[R.alloc() for _ in range(2)] for _ in range(2)]
    vP2 = [[R.alloc() for _ in range(2)] for _ in range(2)]
    acco = [[R.alloc(4) for _ in range(2)] for _ in range(4)]
    FWo = [[[R.alloc(4) for _ in range(4)] for _ in range(2)] for _ in range(2)]
    FP = [[[R.alloc(4) for _ in range(2)] for _ in range(2)] for _ in range(2)]
    gb = [R.alloc(4) for _ in range(4)]
    vcnt = R.alloc(2)
    A(f"s_lshl3_add_u32 {s(sT0)}, {s(sRB)}, {s(sCC)}")
    A(f"s_lshl_b32 {s(sT0)}, {s(sT0)}, 7")
    A(f"s_add_u32 {s(sT0)}, {s(sT0)}, {WS_FLG + FT_O}")
    arrive(1, 4, sT0, "p")
    ST.stamp()
    A("s_barrier")
    A(f"v_lshl_add_u32 {v(vtw2)}, {s(sW)}, 4, {v(vi)}")
    A(f"s_and_b32 {s(sT2)}, {s(sW)}, 1")
    A(f"v_lshrrev_b32 {v(vt[0])}, 2, {v(vi)}")
    A(f"v_lshl_add_u32 {v(vt[0])}, {v(vq)}, 3, {v(vt[0])}")
    A(f"v_lshlrev_b32 {v(vt[0])}, 7, {v(vt[0])}")
    A(f"v_and_b32 {v(vt[1])}, 1, {v(vi)}")
    A(f"v_lshl_add_u32 {v(vt[0])}, {v(vt[1])}, 3, {v(vt[0])}")
    A(f"s_lshl_b32 {s(sT0)}, {s(sT2)}, 13")
    A(f"v_add_u32 {v(vt[0])}, {s(sT0)}, {v(vt[0])}")
    A(f"v_bfe_u32 {v(vt[1])}, {v(vi)}, 3, 1")
    A(f"v_and_b32 {v(vt[2])}, 1, {v(vq)}")
    A(f"v_lshl_or_b32 {v(vt[1])}, {v(vt[2])}, 1, {v(vt[1])}")
    A(f"v_lshlrev_b32 {v(vt[1])}, 1, {v(vt[1])}")
    A(f"v_bfe_u32 {v(vt[2])}, {v(vi)}, 1, 1")
    A(f"v_xor_b32 {v(vt[1])}, {v(vt[1])}, {v(vt[2])}")
    for dt in range(4):
        A(f"v_xor_b32 {v(vt[3])}, {2*dt}, {v(vt[1])}")
        A(f"v_lshl_add_u32 {v(vW[0][dt])}, {v(vt[3])}, 4, {v(vt[0])}")
        A(f"v_add_u32 {v(vW[1][dt])}, 65536, {v(vW[0][dt])}")
    A(f"v_and_b32 {v(vt[0])}, 7, {v(vi)}")
    A(f"v_xor_b32 {v(vt[1])}, {v(vq)}, {v(vt[0])}")
    A(f"v_lshlrev_b32 {v(vt[1])}, 4, {v(vt[1])}")
    A(f"s_add_u32 {s(sT0)}, {s(sT0)}, {OP}")
    A(f"v_add_u32 {v(vt[1])}, {s(sT0)}, {v(vt[1])}")
    A(f"v_lshl_add_u32 {v(vP[0][0])}, {v(vtw2)}, 7, {v(vt[1])}")
    A(f"v_xor_b32 {v(vP[1][0])}, 2048, {v(vP[0][0])}")
    for tl in range(2): A(f"v_xor_b32 {v(vP[tl][1])}, 64, {v(vP[tl][0])}")
    for tl in range(2):
        for ks in range(2): A(f"v_add_u32 {v(vP2[tl][ks])}, 65536, {v(vP[tl][ks])}")
    A(f"s_lshl_b32 {s(sT0)}, {s(sCC)}, 8")
    A(f"s_add_u32 {s(sT0)}, {s(sT0)}, {WS_MOD + 2560*4}")
    A(f"v_lshl_add_u32 {v(vt[0])}, {v(vq)}, 4, {s(sT0)}")
    for dt in range(4): A(f"global_load_dwordx4 {v(gb[dt],4)}, {v(vt[0])}, s[4:5] offset:{dt*64} sc1")
    assert OP % 4096 == 0
    def readsO(st, buf):
        ws_ = st % NW; g = ws_ // 4; so = (ws_ % 4) * 16384
        ps = st % NSO; pr_ = vP if ps < 4 else vP2; po = (ps % 4) * PSLOT
        o = []
        for ks in range(2):
            for tl in range(2): o.append(f"ds_read_b128 {v(FP[buf][ks][tl],4)}, {v(pr_[tl][ks])} offset:{po}")
            for dt in range(4):
                for p in range(2):
                    o.append(f"ds_read_b64_tr_b16 {v(FWo[buf][ks][dt]+2*p,2)}, {v(vW[g][dt])} offset:{so + ks*4096 + p*512}")
        return o
    def mfmasO(st, buf):
        o = []
        for ks in range(2):
            for dt in range(4):
                for tl in range(2):
                    c = "0" if st == 0 and ks == 0 else v(acco[dt][tl], 4)
                    o.append(f"v_mfma_f32_16x16x32_bf16 {v(acco[dt][tl],4)}, {v(FWo[buf][ks][dt],4)}, {v(FP[buf][ks][tl],4)}, {c}")
        return o
    XT = OP + 2 * PSLOT
    E_OFF = 2 * 16384
    consumer_full(A, NSTO, readsO, mfmasO)
    ST.stamp()
    A(f"v_and_b32 {v(vt[0])}, 63, v0")
    A(f"s_lshl_b32 {s(sT0)}, {s(sW)}, 12")
    A(f"s_add_u32 {s(sT0)}, {s(sT0)}, {E_OFF}")
    A(f"v_lshl_add_u32 {v(vt[1])}, {v(vt[0])}, 4, {s(sT0)}")
    A(f"v_xor_b32 {v(vt[2])}, 4096, {v(vt[1])}")
    for dt in range(4): A(f"ds_write_b128 {v(vt[1])}, {v(acco[dt][1],4)} offset:{dt*1024}")
    va = [vt[4], vt[5], vt[6], vt[7]]
    A(f"v_and_b32 {v(vt[3])}, 7, {v(vi)}")
    A(f"v_lshrrev_b32 {v(vW[0][0])}, 1, {v(vq)}")
    A(f"v_xor_b32 {v(vt[3])}, {v(vt[3])}, {v(vW[0][0])}")
    A(f"v_and_b32 {v(vW[0][0])}, 1, {v(vq)}")
    A(f"v_lshlrev_b32 {v(vW[0][0])}, 3, {v(vW[0][0])}")
    A(f"v_lshl_add_u32 {v(vW[0][0])}, {v(vtw2)}, 7, {v(vW[0][0])}")
    A(f"v_add_u32 {v(vW[0][0])}, {XT}, {v(vW[0][0])}")
    for dt in range(4):
        A(f"v_xor_b32 {v(vW[0][1])}, {2*dt}, {v(vt[3])}")
        A(f"v_lshl_add_u32 {v(va[dt])}, {v(vW[0][1])}, 4, {v(vW[0][0])}")
    vrb2 = vW[1][0]; vgo = vW[1][1]
    A(f"v_lshrrev_b32 {v(vW[1][2])}, 3, {v(vt[0])}")
    A(f"v_and_b32 {v(vW[1][3])}, 7, {v(vt[0])}")
    A(f"v_xor_b32 {v(vrb2)}, {v(vW[1][2])}, {v(vW[1][3])}")
    A(f"v_lshlrev_b32 {v(vrb2)}, 4, {v(vrb2)}")
    A(f"v_lshl_add_u32 {v(vrb2)}, {v(vW[1][2])}, 7, {v(vrb2)}")
    A(f"s_lshl_b32 {s(sT0)}, {s(sW)}, 11")
    A(f"s_add_u32 {s(sT0)}, {s(sT0)}, {XT}")
    A(f"v_add_u32 {v(vrb2)}, {s(sT0)}, {v(vrb2)}")
    A(f"v_lshlrev_b32 {v(vgo)}, 10, {v(vW[1][2])}")
    A(f"v_lshl_add_u32 {v(vgo)}, {v(vW[1][3])}, 4, {v(vgo)}")
    A(f"s_lshl2_add_u32 {s(sT0)}, {s(sRB)}, {s(sW)}")
    A(f"s_lshl_b32 {s(sT0)}, {s(sT0)}, 14")
    A(f"s_lshl_b32 {s(sT1)}, {s(sCC)}, 7")
    A(f"s_add_u32 {s(sT0)}, {s(sT0)}, {s(sT1)}")
    A(f"v_add_u32 {v(vgo)}, {s(sT0)}, {v(vgo)}")
    A("s_waitcnt vmcnt(0) lgkmcnt(0)")
    A("s_barrier")
    for dt in range(4): A(f"ds_read_b128 {v(FWo[0][0][dt],4)}, {v(vt[2])} offset:{dt*1024}")
    xa = [FWo[0][1][dt] for dt in range(4)]
    for dt in range(4): A(f"ds_read_b64 {v(xa[dt],2)}, {v(va[dt])}")
    A(f"s_mov_b32 {s(sT0)}, 0xffff0000")
    for dt in range(4):
        ac = acco[dt][0]; pr = FWo[0][0][dt]; x = xa[dt]
        A(f"s_waitcnt lgkmcnt({7-dt})")
        for h in (0, 2): A(pk("add", ac + h, v(ac + h, 2), v(pr + h, 2)))
        A(f"s_waitcnt lgkmcnt({3-dt})")
        for h in range(2):
            A(f"v_lshlrev_b32 {v(x+2)}, 16, {v(x+h)}")
            A(f"v_and_b32 {v(x+3)}, {s(sT0)}, {v(x+h)}")
            A(pk("fma", pr, v(ac + 2*h, 2), v(gb[dt] + 2*h, 2), v(x + 2, 2)))
            A(f"v_cvt_pk_bf16_f32 {v(ac+h)}, {v(pr)}, {v(pr+1)}")
        A(f"ds_write_b64 {v(va[dt])}, {v(ac,2)}")
    A("s_waitcnt lgkmcnt(0)")
    ob = [FP[0][0][0], FP[0][0][1]]
    for u in range(2): A(f"ds_read_b128 {v(ob[u],4)}, {v(vrb2)} offset:{u*1024}")
    A("s_waitcnt lgkmcnt(1)")
    A(f"global_store_dwordx4 {v(vgo)}, {v(ob[0],4)}, s[38:39]")
    A(f"v_add_u32 {v(vgo)}, 8192, {v(vgo)}")
    A("s_waitcnt lgkmcnt(0)")
    A(f"global_store_dwordx4 {v(vgo)}, {v(ob[1],4)}, s[38:39]")
    if stamps:
        ST.stamp(); ST.flush(4, vt[4])
    A("s_endpgm")
    nvmax[0] = max(nvmax[0], R.hi)
    A.label(f"{name}_loader")
    STL = Stamps(A, on=stamps, kidx=0, base=70)
    if lprio: A(f"s_setprio {lprio}")
    R = RegAlloc(5)
    voW = [R.alloc() for _ in range(4)]; voH = [R.alloc() for _ in range(2)]
    vl = R.alloc(); t0 = R.alloc(); t1 = R.alloc(); t2 = R.alloc(); t3 = R.alloc()
    vo = [R.alloc() for _ in range(6)]
    vBg = [R.alloc() for _ in range(2)]; vBw = [R.alloc() for _ in range(2)]
    assert R.next <= 28
    R.next = 28
    WB = [[28 + 8*k + 4*g for g in range(2)] for k in range(NB)]
    assert 28 + 8*NB <= 244
    vtb = R.alloc(8, 4); vt = [vtb + k for k in range(8)]
    za = [R.alloc(4) for _ in range(4)]
    z2p = [R.alloc(2) for _ in range(7)]
    st1 = [R.alloc(2) for _ in range(2)]
    pol = [R.alloc(4) for _ in range(4)]
    vrow = [R.alloc() for _ in range(2)]; vLa = [R.alloc() for _ in range(2)]
    vcn = R.alloc(2)
    sLw, sWk, sHk, sLW, sLH = 29, 30, 31, 32, 33
    A("s_mov_b32 s10, %d" % (512 * WROW)); A("s_mov_b32 s11, 0x20000")
    A("s_mov_b32 s6, %d" % (32 * MB)); A("s_mov_b32 s7, 0x20000")
    A(f"s_sub_u32 {s(sLw)}, {s(sW)}, 4")
    A(f"v_and_b32 {v(vl)}, 63, v0")
    div14(A, t0, t1, vl, t2)
    A(f"v_mul_u32_u24 {v(t0)}, {WROW}, {v(t0)}")
    A(f"v_lshl_add_u32 {v(t0)}, {v(t1)}, 4, {v(t0)}")
    A(f"s_mul_i32 {s(sT0)}, {s(sLw)}, {16*WROW}")
    A(f"v_add_u32 {v(voW[0])}, {s(sT0)}, {v(t0)}")
    for g in range(1, 4): A(f"v_add_u32 {v(voW[g])}, {g*(4*WROW - GS)}, {v(voW[0])}")
    A(f"v_lshrrev_b32 {v(t0)}, 3, {v(vl)}")
    A(f"v_and_b32 {v(t1)}, 7, {v(vl)}")
    A(f"v_xor_b32 {v(t1)}, {v(t1)}, {v(t0)}")
    A(f"v_lshlrev_b32 {v(t1)}, 4, {v(t1)}")
    A(f"v_lshl_add_u32 {v(t0)}, {v(t0)}, 10, {v(t1)}")
    A(f"s_lshl_b32 {s(sT0)}, {s(sLw)}, 14")
    A(f"v_add_u32 {v(voH[0])}, {s(sT0)}, {v(t0)}")
    A(f"v_add_u32 {v(voH[1])}, {8192-1024}, {v(voH[0])}")
    A(f"s_mul_i32 {s(sWk)}, {s(sCC)}, 224")
    A(f"s_lshl_b32 {s(sHk)}, {s(sRB)}, 16")
    A(f"s_add_u32 {s(sHk)}, {s(sHk)}, {WS_H2}")
    A(f"s_mul_i32 {s(sLW)}, {s(sLw)}, {4*GS}")
    A(f"s_lshl_b32 {s(sLH)}, {s(sLw)}, 11")
    A("s_waitcnt lgkmcnt(0)")
    def issueZ(st, w=True, h=True):
        half, kc = st >> 3, st & 7; slot = st % NSZ
        if w:
            A(f"s_add_u32 m0, {s(sLW)}, {W_OFF + slot*SLOT}")
            A(f"s_add_u32 {s(sT0)}, {s(sWk)}, {kc*64*WROW + (1792 if half == 0 else 0)}")
            A("s_mov_b32 exec_hi, 0x00ffffff")
            for g in range(4):
                A(f"buffer_load_dwordx4 {v(voW[g])}, s[8:11], {s(sT0)} offen offset:{g*GS} lds")
            A("s_mov_b32 exec_hi, -1")
        if half == 0 and h:
            A(f"s_add_u32 m0, {s(sLH)}, {kc*8192}")
            A(f"s_add_u32 {s(sT0)}, {s(sHk)}, {kc*128}")
            for j in range(2):
                A(f"buffer_load_dwordx4 {v(voH[j])}, s[4:7], {s(sT0)} offen offset:{j*1024} sc1 lds")
    for st in range(NSZ): issueZ(st, h=False)
    def addrB(va_):
        a, b_, c_ = vt[0], vt[1], vt[2]
        A(f"s_lshr_b32 {s(sT1)}, {s(sRB)}, 3")
        A(f"s_sub_u32 {s(sT2)}, 31, {s(sRB)}")
        A(f"s_lshr_b32 {s(sT2)}, {s(sT2)}, 3")
        A(f"v_cmp_lt_u32 vcc, 32, {v(va_)}")
        A(f"v_subrev_u32 {v(a)}, 32, {v(va_)}")
        A(f"v_cndmask_b32 {v(a)}, {v(va_)}, {v(a)}, vcc")
        A(f"v_mov_b32 {v(b_)}, {s(sT1)}")
        A(f"v_mov_b32 {v(c_)}, {s(sT2)}")
        A(f"v_cndmask_b32 {v(b_)}, {v(b_)}, {v(c_)}, vcc")
        A(f"v_and_b32 {v(c_)}, 7, {v(a)}")
        A(f"v_lshl_add_u32 {v(c_)}, {v(b_)}, 3, {v(c_)}")
        A(f"v_lshrrev_b32 {v(va_)}, 3, {v(a)}")
        A(f"v_lshl_add_u32 {v(c_)}, {v(va_)}, 5, {v(c_)}")
        A(f"v_add_u32 {v(b_)}, 128, {v(b_)}")
        A(f"v_cmp_eq_u32 vcc, 32, {v(a)}")
        A(f"v_cndmask_b32 {v(c_)}, {v(c_)}, {v(b_)}, vcc")
        A(f"s_mov_b32 {s(sT1)}, {WS_FLG + FB_O}")
        A(f"v_lshl_add_u32 {v(va_)}, {v(c_)}, 7, {s(sT1)}")
    wait_flags("b", sT2, 64, False, addrB)
    if stamps: STL.n = 0; STL.stamp()
    for st in range(8 if hall else NSZ): issueZ(st, w=False)
    le = f"{name}_noep"
    A(f"s_or_b32 {s(sT0)}, s2, {s(sLw)}")
    A(f"s_cbranch_scc1 {le}")
    A(f"v_mov_b32 v244, {WS_EPOCH}")
    A(f"v_mov_b32 v245, {s(sTAG)}")
    A("s_mov_b64 exec, 1")
    A("global_store_dword v244, v245, s[4:5] sc1")
    A("s_mov_b64 exec, -1")
    A.label(le)
    sL1, sL2, sK1 = 40, 41, 42
    SR1, SR2 = 44, 48
    if gB:
        STEP = 8 * 4096 - 1024
        A(f"v_lshrrev_b32 {v(t0)}, 3, {v(vl)}")
        A(f"v_lshl_add_u32 {v(t2)}, {v(t0)}, 12, {v(t1)}")
        A(f"s_lshl_b32 {s(sT0)}, {s(sLw)}, 17")
        A(f"v_add_u32 {v(vo[0])}, {s(sT0)}, {v(t2)}")
        for k in range(1, 4): A(f"v_add_u32 {v(vo[k])}, {k*STEP}, {v(vo[0])}")
        A(f"s_lshl_b32 {s(sL1)}, {s(sLw)}, 12")
        A(f"s_lshl_b32 {s(sT0)}, {s(sLw)}, 4")
        A(f"v_add_u32 {v(t2)}, {s(sT0)}, {v(t0)}")
        A(f"v_and_b32 {v(t3)}, 7, {v(vl)}")
        A(f"v_lshlrev_b32 {v(vBg[0])}, 12, {v(t2)}")
        A(f"v_lshl_add_u32 {v(vBg[0])}, {v(t3)}, 4, {v(vBg[0])}")
        A(f"v_add_u32 {v(vBg[1])}, {8*4096}, {v(vBg[0])}")
        A(f"v_lshl_add_u32 {v(vBw[0])}, {v(t2)}, 7, {v(t1)}")
        A(f"v_add_u32 {v(vBw[0])}, {B_OFF}, {v(vBw[0])}")
        A(f"v_add_u32 {v(vBw[1])}, {3*STAGE}, {v(vBw[0])}")
        A(f"s_mul_i32 {s(sT0)}, {s(sCC)}, {112*4096}")
        A(f"s_add_u32 {s(sT0)}, {s(sT0)}, {WS_Z2T}")
        A(f"s_add_u32 {s(SR1)}, s4, {s(sT0)}")
        A(f"s_addc_u32 {s(SR1+1)}, s5, 0")
        A(f"s_mov_b32 {s(SR1+2)}, {112*4096}"); A(f"s_mov_b32 {s(SR1+3)}, 0x20000")
        A(f"s_lshl_b32 {s(sT0)}, {s(sRB)}, 18")
        A(f"s_add_u32 {s(SR2)}, s12, {s(sT0)}")
        A(f"s_addc_u32 {s(SR2+1)}, s13, 0")
        A(f"s_mov_b32 {s(SR2+2)}, {64*4096}"); A(f"s_mov_b32 {s(SR2+3)}, 0x20000")
    else:
        A(f"v_lshrrev_b32 {v(t0)}, 3, {v(vl)}")
        A(f"v_lshl_add_u32 {v(t0)}, {v(t0)}, 12, {v(t1)}")
        A(f"s_lshl_b32 {s(sT0)}, {s(sLw)}, 3")
        A(f"s_mov_b32 {s(sT1)}, 0x060c0600")
        A(f"s_lshr_b32 {s(sT1)}, {s(sT1)}, {s(sT0)}")
        A(f"s_and_b32 {s(sT1)}, {s(sT1)}, 0xff")
        A(f"s_mov_b32 {s(sT2)}, 0x03000903")
        A(f"s_lshr_b32 {s(sT2)}, {s(sT2)}, {s(sT0)}")
        A(f"s_and_b32 {s(sT2)}, {s(sT2)}, 0xff")
        STEP = 8 * 4096 - 1024
        A(f"s_lshl_b32 {s(sT0)}, {s(sT1)}, 15")
        A(f"v_add_u32 {v(vo[0])}, {s(sT0)}, {v(t0)}")
        A(f"s_lshl_b32 {s(sT0)}, {s(sT2)}, 15")
        A(f"v_add_u32 {v(vo[3])}, {s(sT0)}, {v(t0)}")
        for k in (1, 2):
            A(f"v_add_u32 {v(vo[k])}, {k*STEP}, {v(vo[0])}")
            A(f"v_add_u32 {v(vo[3+k])}, {k*STEP}, {v(vo[3])}")
        A(f"s_lshl_b32 {s(sL1)}, {s(sT1)}, 10")
        A(f"s_lshl_b32 {s(sL2)}, {s(sT2)}, 10")
        A(f"s_cmp_eq_u32 {s(sLw)}, 3")
        A(f"s_cselect_b32 {s(sT0)}, {B_OFF}, 0")
        A(f"s_add_u32 {s(sL1)}, {s(sL1)}, {s(sT0)}")
        A(f"s_cmp_ge_u32 {s(sLw)}, 2")
        A(f"s_cselect_b32 {s(sT0)}, {B_OFF}, 0")
        A(f"s_add_u32 {s(sL2)}, {s(sL2)}, {s(sT0)}")
        A(f"s_mul_i32 {s(sT0)}, {s(sCC)}, {112*4096}")
        A(f"s_add_u32 {s(sT0)}, {s(sT0)}, {WS_Z2T}")
        A(f"s_add_u32 s52, s4, {s(sT0)}")
        A(f"s_addc_u32 s53, s5, 0")
        A(f"s_lshl_b32 {s(sT0)}, {s(sRB)}, 18")
        A(f"s_add_u32 s54, s12, {s(sT0)}")
        A(f"s_addc_u32 s55, s13, 0")
        A(f"s_cmp_eq_u32 {s(sLw)}, 3")
        A(f"s_cselect_b32 {s(SR1)}, s54, s52")
        A(f"s_cselect_b32 {s(SR1+1)}, s55, s53")
        A(f"s_mov_b32 {s(SR1+2)}, {112*4096}")
        A(f"s_mov_b32 {s(SR1+3)}, 0x20000")
        A(f"s_cmp_ge_u32 {s(sLw)}, 2")
        A(f"s_cselect_b32 {s(SR2)}, s54, s52")
        A(f"s_cselect_b32 {s(SR2+1)}, s55, s53")
        A(f"s_mov_b32 {s(SR2+2)}, {112*4096}")
        A(f"s_mov_b32 {s(SR2+3)}, 0x20000")
    vtr = R.alloc(); vgz = R.alloc(); vtr3 = R.alloc(); vgz3 = R.alloc()
    def poll_loads():
        for hf in range(2):
            for u in range(4):
                A(f"global_load_dwordx2 {v(pol[hf*2+(u>>1)]+2*(u&1),2)}, {v(vrow[hf])}, s[4:5] offset:{u*256} sc1")
    def addr_prep():
        A(f"s_lshl1_add_u32 {s(sT1)}, {s(sRB)}, {s(sTH)}")
        A(f"s_lshl_b32 {s(sT1)}, {s(sT1)}, 12")
        A(f"s_add_u32 {s(sT1)}, {s(sT1)}, {WS_STAT}")
        for hf in range(2):
            A(f"v_and_b32 {v(vrow[hf])}, 31, {v(vtt[hf])}")
            A(f"v_lshl_add_u32 {v(vrow[hf])}, {v(vrow[hf])}, 3, {s(sT1)}")
            A(f"v_lshl_add_u32 {v(vrow[hf])}, {v(vq)}, 10, {v(vrow[hf])}")
        A(f"s_mul_i32 {s(sT0)}, {s(sLw)}, {XS}")
        A(f"s_add_u32 {s(sT0)}, {s(sT0)}, {X_OFF}")
        for hf in range(2):
            A(f"v_and_b32 {v(vLa[hf])}, 31, {v(vtt[hf])}")
            A(f"v_mul_u32_u24 {v(vLa[hf])}, 144, {v(vLa[hf])}")
            A(f"v_lshl_add_u32 {v(vLa[hf])}, {v(vq)}, 3, {v(vLa[hf])}")
            A(f"v_add_u32 {v(vLa[hf])}, {s(sT0)}, {v(vLa[hf])}")
        A(f"v_lshrrev_b32 {v(t0)}, 2, {v(vi)}")
        A(f"v_lshl_add_u32 {v(t0)}, {v(vq)}, 3, {v(t0)}")
        A(f"v_mul_u32_u24 {v(vtr)}, 144, {v(t0)}")
        A(f"v_and_b32 {v(t1)}, 3, {v(vi)}")
        A(f"v_lshl_add_u32 {v(vtr)}, {v(t1)}, 3, {v(vtr)}")
        A(f"v_add_u32 {v(vtr)}, {s(sT0)}, {v(vtr)}")
        A(f"s_mul_i32 {s(sT1)}, {s(sFH)}, {16*144}")
        A(f"s_add_u32 {s(sT1)}, {s(sT1)}, 96")
        A(f"v_add_u32 {v(vtr3)}, {s(sT1)}, {v(vtr)}")
        A(f"v_lshlrev_b32 {v(vgz)}, 12, {v(vi)}")
        A(f"v_lshl_add_u32 {v(vgz)}, {v(vq)}, 4, {v(vgz)}")
        A(f"s_mul_i32 {s(sT1)}, {s(sCC)}, {112*4096}")
        A(f"s_lshl_b32 {s(sT2)}, {s(sRB)}, 7")
        A(f"s_add_u32 {s(sT1)}, {s(sT1)}, {s(sT2)}")
        A(f"s_lshl_b32 {s(sT2)}, {s(sTH)}, 6")
        A(f"s_add_u32 {s(sT1)}, {s(sT1)}, {s(sT2)}")
        A(f"s_add_u32 {s(sT1)}, {s(sT1)}, {WS_Z2T}")
        A(f"s_lshl_b32 {s(sT2)}, {s(sFH)}, 5")
        A(f"s_add_u32 {s(sT2)}, {s(sT2)}, {48*4096}")
        A(f"s_add_u32 {s(sT2)}, {s(sT2)}, {s(sT1)}")
        A(f"v_add_u32 {v(vgz3)}, {s(sT2)}, {v(vgz)}")
        A(f"s_lshl_b32 {s(sT2)}, {s(sFH)}, 18")
        A(f"s_add_u32 {s(sT1)}, {s(sT1)}, {s(sT2)}")
        A(f"v_add_u32 {v(vgz)}, {s(sT1)}, {v(vgz)}")
    nh0 = 8 if hall else NSZ
    qz = [("H", s_) for s_ in range(nh0) for _ in range(2)]
    issued = NSZ
    for i in range(NSTZ):
        idx = [k for k, x in enumerate(qz) if x[1] == i]
        out = (len(qz) - 1 - max(idx)) if idx else len(qz)
        A(f"s_waitcnt vmcnt({out})")
        A("s_barrier")
        if i >= 1 and issued < NSTZ:
            issueZ(issued, h=not hall)
            qz += [("W", issued)] * 4 + ([("H", issued)] * 2 if (issued < 8 and not hall) else [])
            issued += 1
        if epoll and i == 13: addr_prep()
        if epoll and i == 15: poll_loads()
    if not epoll: addr_prep()
    for tl, (wf, hf) in enumerate(TILES):
        A(f"ds_read_b64 {v(z2p[tl],2)}, {v(vLa[hf])} offset:{wf*32}")
    A("s_barrier")
    def earlyB():
        if not gB:
            lskip = f"{name}_nob"
            A(f"s_cmp_lt_u32 {s(sLw)}, 2")
            A(f"s_cbranch_scc1 {lskip}")
            A(f"s_mov_b32 {s(sK1)}, 0")
            for st in range(NSG):
                A(f"s_add_u32 m0, {s(sL2)}, {st*STAGE}")
                if st: A(f"s_add_u32 {s(sK1)}, {s(sK1)}, 128")
                for k in range(3): A(f"buffer_load_dwordx4 {v(vo[3+k])}, {s(SR2,4)}, {s(sK1)} offen offset:{k*1024} sc1 lds")
            A.label(lskip)
    if not epoll: earlyB()
    if stamps: STL.stamp()
    A(f"s_mov_b32 {s(sK)}, 0")
    if epoll: A(f"s_branch {name}_pchk")
    A.label(f"{name}_poll")
    poll_loads()
    A.label(f"{name}_pchk")
    A("s_waitcnt vmcnt(0)")
    A(f"v_max3_u32 {v(vt[0])}, {v(pol[0])}, {v(pol[0]+1)}, {v(pol[0]+2)}")
    rest = [pol[0]+3] + [pol[b_]+r for b_ in range(1, 4) for r in range(4)]
    for k in range(0, len(rest) - 1, 2): A(f"v_max3_u32 {v(vt[0])}, {v(vt[0])}, {v(rest[k])}, {v(rest[k+1])}")
    A(f"v_max_u32 {v(vt[0])}, {v(vt[0])}, {v(rest[-1])}")
    A(f"v_cmp_eq_u32 vcc, -1, {v(vt[0])}")
    A(f"s_add_u32 {s(sK)}, {s(sK)}, 1")
    A(f"s_cmp_eq_u64 vcc, 0")
    A(f"s_cbranch_scc1 {name}_polled")
    A("s_sleep 2")
    A(f"s_cmp_lt_u32 {s(sK)}, {SPIN}")
    A(f"s_cbranch_scc1 {name}_poll")
    A.label(f"{name}_polled")
    if epoll: earlyB()
    mean = [vt[0], vt[1]]; rstd = [vt[2], vt[3]]
    for hf in range(2):
        p0, p1 = pol[hf*2], pol[hf*2+1]
        A(pk("add", p0, v(p0, 2), v(p0+2, 2)))
        A(pk("add", p1, v(p1, 2), v(p1+2, 2)))
        A(pk("add", p0, v(p0, 2), v(p1, 2)))
        A(f"v_mov_b32 {v(mean[hf])}, {v(p0)}")
        A(f"v_mov_b32 {v(rstd[hf])}, {v(p0+1)}")
    xor16_32_sum(A, mean + rstd, vt[6])
    for hf in range(2):
        A(f"v_mul_f32 {v(mean[hf])}, {fhex(1.0/896)}, {v(mean[hf])}")
        A(f"v_mul_f32 {v(rstd[hf])}, {fhex(1.0/896)}, {v(rstd[hf])}")
        A(f"v_fma_f32 {v(rstd[hf])}, -{v(mean[hf])}, {v(mean[hf])}, {v(rstd[hf])}")
        A(f"v_max_f32 {v(rstd[hf])}, 0, {v(rstd[hf])}")
        A(f"v_add_f32 {v(rstd[hf])}, 0x3727c5ac, {v(rstd[hf])}")
        A(f"v_rsq_f32 {v(rstd[hf])}, {v(rstd[hf])}")
        A(f"v_mul_f32 {v(mean[hf])}, {v(mean[hf])}, {v(rstd[hf])}")
    for hf in range(2):
        A(f"v_mov_b32 {v(st1[hf])}, {v(rstd[hf])}")
        A(f"v_sub_f32 {v(st1[hf]+1)}, 0, {v(mean[hf])}")
    A(f"s_mov_b32 {s(sT0)}, 0xffff0000")
    A("s_waitcnt lgkmcnt(0)")
    for tl, (wf, hf) in enumerate(TILES):
        z = z2p[tl]
        for h in range(2):
            A(f"v_lshlrev_b32 {v(vt[4])}, 16, {v(z+h)}")
            A(f"v_and_b32 {v(vt[5])}, {s(sT0)}, {v(z+h)}")
            A(pk("fma", vt[4], v(vt[4], 2), v(st1[hf], 2), v(st1[hf], 2), "op_sel:[0,0,1] op_sel_hi:[1,0,1]"))
            A(f"v_cvt_pk_bf16_f32 {v(z+h)}, {v(vt[4])}, {v(vt[5])}")
        A(f"ds_write_b64 {v(vLa[hf])}, {v(z,2)} offset:{wf*32}")
    A("s_waitcnt lgkmcnt(0)")
    for wf in range(3):
        for p in range(2): A(f"ds_read_b64_tr_b16 {v(za[wf]+2*p,2)}, {v(vtr)} offset:{wf*32 + 4*p*144}")
    for p in range(2): A(f"ds_read_b64_tr_b16 {v(za[3]+2*p,2)}, {v(vtr3)} offset:{4*p*144}")
    for wf in range(3):
        A(f"s_waitcnt lgkmcnt({6-2*wf})")
        A(f"global_store_dwordx4 {v(vgz)}, {v(za[wf],4)}, s[4:5] sc1")
        if wf < 2: A(f"v_add_u32 {v(vgz)}, {16*4096}, {v(vgz)}")
    A("s_waitcnt lgkmcnt(0)")
    A("s_mov_b32 exec_hi, 0")
    A(f"global_store_dwordx4 {v(vgz3)}, {v(za[3],4)}, s[4:5] sc1")
    A("s_mov_b32 exec_hi, -1")
    A(f"s_lshl_b32 {s(sT0)}, {s(sCC)}, 5")
    A(f"s_add_u32 {s(sT0)}, {s(sT0)}, {s(sRB)}")
    A(f"s_lshl_b32 {s(sT0)}, {s(sT0)}, 7")
    A(f"s_add_u32 {s(sT0)}, {s(sT0)}, {WS_FLG + FC_O}")
    arrive(0, 4, sT0, "z")
    if stamps: STL.stamp()
    if gB:
        qg = []
        A(f"s_mov_b32 {s(sK1)}, 0")
        for st in range(NB):
            if st: A(f"s_add_u32 {s(sK1)}, {s(sK1)}, 128")
            for g in range(2):
                A(f"buffer_load_dwordx4 {v(WB[st][g],4)}, {v(vBg[g])}, {s(SR2,4)}, {s(sK1)} offen"); qg.append(("B", st))
        A("s_barrier")
    else:
        A(f"s_lshl_b32 {s(sT2)}, {s(sCC)}, 12")
        A(f"s_add_u32 {s(sT2)}, {s(sT2)}, {WS_FLG + FC_O}")
        wait_flags("c", sT2, 32, False)
    if stamps: STL.stamp()
    if gB:
        sKA, sKB = 41, 43
        def need(x): return min(63, len(qg) - 1 - max(k for k, y in enumerate(qg) if y == x))
        def issueA(st):
            A(f"s_add_u32 m0, {s(sL1)}, {(st % NSG)*STAGE}")
            A(f"s_mov_b32 {s(sKA)}, {st*128}")
            for k in range(4):
                A(f"buffer_load_dwordx4 {v(vo[k])}, {s(SR1,4)}, {s(sKA)} offen offset:{k*1024} sc1 lds"); qg.append(("A", st))
        def writeB(st):
            slot = st % NSG; base = vBw[slot // 3]; off = (slot % 3) * STAGE
            A(f"s_waitcnt vmcnt({need(('B', st))})")
            for g in range(2): A(f"ds_write_b128 {v(base)}, {v(WB[st % NB][g],4)} offset:{off + g*1024}")
            if st + NB < NSTG:
                A(f"s_mov_b32 {s(sKB)}, {(st + NB)*128}")
                A("s_waitcnt lgkmcnt(0)")
                for g in range(2):
                    A(f"buffer_load_dwordx4 {v(WB[st % NB][g],4)}, {v(vBg[g])}, {s(SR2,4)}, {s(sKB)} offen"); qg.append(("B", st + NB))
        for st in range(NSG): issueA(st)
        for st in range(NSG): writeB(st)
        for i in range(NSTG):
            A(f"s_waitcnt vmcnt({need(('A', i))}) lgkmcnt(0)")
            A("s_barrier")
            if i >= 1 and i - 1 + NSG < NSTG:
                issueA(i - 1 + NSG); writeB(i - 1 + NSG)
    else:
        A(f"s_cmp_ge_u32 {s(sLw)}, 2")
        A(f"s_cbranch_scc1 {name}_ldY")
        def pathG(tag, n1, early2):
            n = n1 + 3
            q = []
            def need(x): return len(q) - 1 - max(k for k, y in enumerate(q) if y == x)
            A(f"s_mov_b32 {s(sK1)}, 0")
            for st in range(NSG):
                A(f"s_add_u32 m0, {s(sL1)}, {st*STAGE}")
                if st: A(f"s_add_u32 {s(sK1)}, {s(sK1)}, 128")
                for k in range(n1): A(f"buffer_load_dwordx4 {v(vo[k])}, {s(SR1,4)}, {s(sK1)} offen offset:{k*1024} sc1 lds"); q.append(st)
                if not early2:
                    A(f"s_add_u32 m0, {s(sL2)}, {st*STAGE}")
                    for k in range(3): A(f"buffer_load_dwordx4 {v(vo[3+k])}, {s(SR2,4)}, {s(sK1)} offen offset:{k*1024} sc1 lds"); q.append(st)
            A(f"s_add_u32 {s(sK1)}, {s(sK1)}, 128")
            A(f"s_mov_b32 {s(sSlot)}, 0")
            def issue(st):
                A(f"s_add_u32 m0, {s(sSlot)}, {s(sL1)}")
                A(f"s_add_u32 {s(sT0)}, {s(sSlot)}, {s(sL2)}")
                for k in range(n1): A(f"buffer_load_dwordx4 {v(vo[k])}, {s(SR1,4)}, {s(sK1)} offen offset:{k*1024} sc1 lds"); q.append(st)
                A(f"s_mov_b32 m0, {s(sT0)}")
                A(f"s_add_u32 {s(sSlot)}, {s(sSlot)}, {STAGE}")
                for k in range(3): A(f"buffer_load_dwordx4 {v(vo[3+k])}, {s(SR2,4)}, {s(sK1)} offen offset:{k*1024} sc1 lds"); q.append(st)
                A(f"s_add_u32 {s(sK1)}, {s(sK1)}, 128")
                A(f"s_cmp_ge_u32 {s(sSlot)}, {RING}")
                A(f"s_cselect_b32 {s(sSlot)}, 0, {s(sSlot)}")
            A(f"s_waitcnt vmcnt({need(0)})")
            A("s_barrier")
            H = NSG + 1
            for i in range(1, H):
                A(f"s_waitcnt vmcnt({need(i)})"); A("s_barrier"); issue(i - 1 + NSG)
            nsteady = NSTG - NSG
            A(f"s_mov_b32 {s(sI)}, {H}")
            lp = f"{name}_gl{tag}"
            A.label(lp)
            wv = need(H)
            A(f"s_waitcnt vmcnt({wv})"); A("s_barrier"); issue(H - 1 + NSG)
            A(f"s_add_u32 {s(sI)}, {s(sI)}, 1")
            A(f"s_cmp_le_u32 {s(sI)}, {nsteady}")
            A(f"s_cbranch_scc1 {lp}")
            for i in range(H + 1, nsteady + 1):
                assert need(i) == wv
                for _ in range(n): q.append(i - 1 + NSG)
            for i in range(nsteady + 1, NSTG):
                A(f"s_waitcnt vmcnt({need(i)})"); A("s_barrier")
            A(f"s_branch {name}_gdone")
        pathG("X", 3, False)
        A.label(f"{name}_ldY")
        pathG("Y", 2, True)
    A.label(f"{name}_gdone")
    voWo = voW; voP = [vo[0], vo[1], vo[2], vo[3]]; voX = [vo[4], vo[5]]
    A(f"v_lshrrev_b32 {v(t0)}, 3, {v(vl)}")
    A(f"v_and_b32 {v(t1)}, 7, {v(vl)}")
    A(f"v_bfe_u32 {v(t2)}, {v(vl)}, 4, 1")
    for jj in range(4):
        A(f"v_or_b32 {v(t3)}, {(jj&1)<<1}, {v(t2)}")
        A(f"v_lshlrev_b32 {v(t3)}, 1, {v(t3)}")
        A(f"v_xor_b32 {v(t3)}, {v(t3)}, {v(t1)}")
        A(f"v_lshlrev_b32 {v(t3)}, 4, {v(t3)}")
        A(f"v_lshl_add_u32 {v(voWo[jj])}, {v(t0)}, 10, {v(t3)}")
        if jj: A(f"v_add_u32 {v(voWo[jj])}, {jj*(8192-1024)}, {v(voWo[jj])}")
    A(f"v_xor_b32 {v(t1)}, {v(t1)}, {v(t0)}")
    A(f"v_lshlrev_b32 {v(t1)}, 4, {v(t1)}")
    A(f"s_and_b32 {s(sT0)}, {s(sLw)}, 1")
    A(f"s_lshl_b32 {s(sT0)}, {s(sT0)}, 5")
    A(f"v_add_u32 {v(t2)}, {s(sT0)}, {v(t0)}")
    A(f"v_mul_u32_u24 {v(voP[0])}, 1792, {v(t2)}")
    A(f"s_lshr_b32 {s(sT1)}, {s(sLw)}, 1")
    A(f"s_lshl_b32 {s(sT1)}, {s(sT1)}, 7")
    A(f"v_add3_u32 {v(voP[0])}, {v(voP[0])}, {v(t1)}, {s(sT1)}")
    for jj in range(1, 4): A(f"v_add_u32 {v(voP[jj])}, {jj*(8*1792-1024)}, {v(voP[0])}")
    A(f"s_lshl_b32 {s(sT0)}, {s(sLw)}, 4")
    A(f"v_add_u32 {v(t2)}, {s(sT0)}, {v(t0)}")
    A(f"v_lshl_add_u32 {v(voX[0])}, {v(t2)}, 10, {v(t1)}")
    A(f"v_add_u32 {v(voX[1])}, {8192-1024}, {v(voX[0])}")
    A(f"s_mov_b32 s18, {FH*D*2}"); A("s_mov_b32 s19, 0x20000")
    A(f"s_lshl_b32 {s(sWk)}, {s(sLw)}, 15")
    A(f"s_lshl_b32 {s(sT0)}, {s(sCC)}, 7")
    A(f"s_add_u32 {s(sWk)}, {s(sWk)}, {s(sT0)}")
    A(f"s_lshl_b32 {s(sLW)}, {s(sLw)}, 12")
    sPk, sLP, sXb = 31, 33, 40
    A(f"s_mul_i32 {s(sPk)}, {s(sRB)}, {64*1792}")
    A(f"s_add_u32 {s(sPk)}, {s(sPk)}, {WS_P0}")
    A(f"s_lshl_b32 {s(sLP)}, {s(sLw)}, 12")
    A(f"s_add_u32 {s(sLP)}, {s(sLP)}, {OP}")
    A(f"s_lshl_b32 {s(sXb)}, {s(sRB)}, 16")
    A(f"s_add_u32 {s(sXb)}, {s(sXb)}, {s(sT0)}")
    A(f"s_add_u32 {s(sXb)}, {s(sXb)}, {WS_X1}")
    A("s_barrier")
    def issueW(st):
        A(f"s_add_u32 m0, {s(sLW)}, {OW + (st % NW)*16384}")
        A(f"s_add_u32 {s(sT0)}, {s(sWk)}, {st*131072}")
        for jj in range(4): A(f"buffer_load_dwordx4 {v(voWo[jj])}, s[16:19], {s(sT0)} offen offset:{jj*1024} lds")
    for st in range(NW): issueW(st)
    A(f"s_lshl_b32 {s(sT2)}, {s(sRB)}, 10")
    A(f"s_add_u32 {s(sT2)}, {s(sT2)}, {WS_FLG + FT_O}")
    wait_flags("t", sT2, 8, False)
    if stamps: STL.stamp()
    def issueO(st):
        slot = st % NSO
        A(f"s_add_u32 m0, {s(sLP)}, {slot*PSLOT}")
        A(f"s_add_u32 {s(sT0)}, {s(sPk)}, {st*256}")
        for jj in range(4): A(f"buffer_load_dwordx4 {v(voP[jj])}, s[4:7], {s(sT0)} offen offset:{jj*1024} sc1 lds")
    qo = []
    for st in range(NSO):
        issueO(st); qo += [st] * 4
    for i in range(NSTO):
        out = len(qo) - 1 - max(k for k, x in enumerate(qo) if x == i)
        A(f"s_waitcnt vmcnt({out})")
        A("s_barrier")
        if i >= 1 and i - 1 + NSO < NSTO:
            st = i - 1 + NSO
            issueW(st); issueO(st); qo += [st] * 8
        if i == 3:
            A(f"s_lshl_b32 {s(sT0)}, {s(sLw)}, 11")
            A(f"s_add_u32 m0, {s(sT0)}, {XT}")
            for jj in range(2): A(f"buffer_load_dwordx4 {v(voX[jj])}, s[4:7], {s(sXb)} offen offset:{jj*1024} sc1 lds")
            qo += ["x"] * 2
    A("s_waitcnt vmcnt(0)")
    A("s_barrier")
    if stamps:
        STL.stamp(); A(f"s_mov_b32 s20, {s(sLw)}"); STL.flush(4, vt[0], slot=1)
    A("s_endpgm")
    nvmax[0] = max(nvmax[0], R.hi)
    A.label(f"{name}_end")
    A("s_endpgm")
    return dict(name=name, grid=NWG, block=512, lds=LDS, vgpr=256, sgpr=100 if stamps else 68)
```
